```python
import torch

def _softmax(x, axis=-1):
    return torch.softmax(x, dim=axis)
def _gelu(x):
    return torch.nn.functional.gelu(x, approximate="tanh")
def _silu(x):
    return torch.nn.functional.silu(x)
def _sigmoid(x):
    return torch.sigmoid(x)
def _layernorm(x, axis=-1, eps=1e-5):
    m = x.mean(dim=axis, keepdim=True)
    v = x.var(dim=axis, keepdim=True, unbiased=False)
    return (x - m) / torch.sqrt(v + eps)
def _scatter_add(tgt, idx, src, axis=0):
    return tgt.clone().index_add_(axis, idx, src)
def _segment_sum(src, seg, n):
    out = torch.zeros((n,) + src.shape[1:], dtype=src.dtype)
    return out.index_add_(0, seg, src)
def _pad(x, pw):
    flat = tuple(v for pair in reversed(pw) for v in pair)
    return torch.nn.functional.pad(x, flat)

kernel_name = 'recurrent_scan__ssm_conv_s5__glu_gated_reglu__prompt'

def setup_inputs():

    _w = (lambda a: (lambda t: t.to(torch.bfloat16) if t.is_floating_point() else t)(torch.as_tensor(a)))
    def _A_setup():
        B, S, D = 1, 2048, 448
        P = D
        Lambda_re = -0.5 * (lambda _x: torch.exp(torch.as_tensor(_x)))((lambda *s: torch.randn(*s, dtype=torch.bfloat16) * 0.8)(P))
        Lambda_im = (lambda *s: torch.randn(*s, dtype=torch.bfloat16) * 0.8)(P) * 1.0
        B_re = (lambda *s: torch.randn(*s, dtype=torch.bfloat16) * 0.8)(P, D) * (D ** -0.5)
        B_im = (lambda *s: torch.randn(*s, dtype=torch.bfloat16) * 0.8)(P, D) * (D ** -0.5)
        C_re = (lambda *s: torch.randn(*s, dtype=torch.bfloat16) * 0.8)(D, P) * (P ** -0.5)
        C_im = (lambda *s: torch.randn(*s, dtype=torch.bfloat16) * 0.8)(D, P) * (P ** -0.5)
        log_dt = (lambda *s: torch.randn(*s, dtype=torch.bfloat16) * 0.8)(P) * 0.3 - 2.0
        Dskip = (lambda *s: torch.randn(*s, dtype=torch.bfloat16) * 0.8)(D)
        return {
            "x": _w((lambda *s: torch.randn(*s, dtype=torch.bfloat16) * 0.05)(B, S, D)),
            "Lambda_re": _w(Lambda_re),
            "Lambda_im": _w(Lambda_im),
            "B_re": _w(B_re),
            "B_im": _w(B_im),
            "C_re": _w(C_re),
            "C_im": _w(C_im),
            "log_dt": _w(log_dt),
            "Dskip": _w(Dskip),
        }
    _A_in = _A_setup()

    def _B_setup():
        B, S, D, F = 1, 2048, 448, 1792
        return {
            "x": _w((lambda *s: torch.randn(*s, dtype=torch.bfloat16) * 0.05)(B, S, D)),
            "W_gate": _w((lambda *s: torch.randn(*s, dtype=torch.bfloat16) * 0.2)(D, F) * (2.0 / D) ** 0.5),
            "W_up": _w((lambda *s: torch.randn(*s, dtype=torch.bfloat16) * 0.2)(D, F) * (2.0 / D) ** 0.5),
            "W_down": _w((lambda *s: torch.randn(*s, dtype=torch.bfloat16) * 0.2)(F, D) * (1.0 / F) ** 0.5),
        }
    _B_in = _B_setup()

    return {
        "A_x": _A_in["x"],
        "A_Lambda_re": _A_in["Lambda_re"],
        "A_Lambda_im": _A_in["Lambda_im"],
        "A_B_re": _A_in["B_re"],
        "A_B_im": _A_in["B_im"],
        "A_C_re": _A_in["C_re"],
        "A_C_im": _A_in["C_im"],
        "A_log_dt": _A_in["log_dt"],
        "A_Dskip": _A_in["Dskip"],
        "B_x": _B_in["x"],
        "B_W_gate": _B_in["W_gate"],
        "B_W_up": _B_in["W_up"],
        "B_W_down": _B_in["W_down"],
    }

def reference(A_x, A_Lambda_re, A_Lambda_im, A_B_re, A_B_im, A_C_re, A_C_im, A_log_dt, A_Dskip, B_x, B_W_gate, B_W_up, B_W_down):
    def _A_ref(x, Lambda_re, Lambda_im, B_re, B_im, C_re, C_im, log_dt, Dskip):
        Bsz, L, H = x.shape
        Lam = Lambda_re + 1j * Lambda_im
        Bmat = B_re + 1j * B_im
        Cmat = C_re + 1j * C_im
        dt = torch.exp(log_dt)
        Lam_bar = torch.exp(dt * Lam)
        B_bar = ((Lam_bar - 1.0) / Lam)[:, None] * Bmat
        Bu = torch.einsum("bld,pd->blp", x + 0j, B_bar)
        h = torch.zeros_like(Bu[:, 0, :])
        hs = []
        for t in range(L):
            h = Lam_bar[None, :] * h + Bu[:, t, :]
            hs.append(h)
        hseq = torch.stack(hs, 1)
        y = 2.0 * torch.einsum("blp,dp->bld", hseq, Cmat).real + x * Dskip[None, None, :]
        return y

    def _B_ref(x, W_gate, W_up, W_down):
        gate = torch.einsum("bsd,df->bsf", x, W_gate)
        up = torch.einsum("bsd,df->bsf", x, W_up)
        gate = gate * (lambda x, dt: x.to(dt))(gate > 0, gate.dtype)
        h = gate * up
        return torch.einsum("bsf,fd->bsd", h, W_down)

    x = A_x
    xn = _layernorm(x, axis=-1)
    s = _A_ref(xn, A_Lambda_re, A_Lambda_im, A_B_re, A_B_im, A_C_re, A_C_im, A_log_dt, A_Dskip)
    g = _silu(_B_ref(xn, B_W_gate, B_W_up, B_W_down))
    return x + s * g
```

```python
class Em:
    def __init__(self):
        self.l = []
        self.vm = []
    def __call__(self, s):
        for line in s.strip("\n").split("\n"):
            self.l.append("    " + line.strip() if not line.strip().endswith(":") else line.strip())
    def label(self, n): self.l.append(n + ":")
    def c(self, s): self.l.append("    ; " + s)
    def text(self): return "\n".join(self.l) + "\n"
    def vmem(self, s, tag):
        self(s); self.vm.append(tag)
    def vm_out(self): return len(self.vm)
    def vm_need(self, tags):
        idx = [i for i, t in enumerate(self.vm) if t in tags]
        if not idx: return None
        return len(self.vm) - 1 - idx[-1]
    def vm_wait(self, tags, extra=""):
        n = self.vm_need(tags)
        if n is None:
            if extra: self("s_waitcnt " + extra)
            return
        assert n <= 63
        self(f"s_waitcnt vmcnt({n}) {extra}".strip())
        self.vm = self.vm[len(self.vm) - n:] if n else []

def srd(e, d, base, nbytes):
    e(f"s_mov_b32 s{d}, s{base}")
    e(f"s_and_b32 s{d+1}, s{base+1}, 0xffff")
    e(f"s_mov_b32 s{d+2}, {nbytes}")
    e(f"s_mov_b32 s{d+3}, 0x20000")

def kd(name, vgpr, accum, sgpr=102):
    return f"""
.section .rodata,"a"
.p2align 6
.amdhsa_kernel {name}
  .amdhsa_next_free_vgpr {vgpr}
  .amdhsa_next_free_sgpr {sgpr}
  .amdhsa_accum_offset {accum}
  .amdhsa_group_segment_fixed_size 0
  .amdhsa_kernarg_size 128
  .amdhsa_user_sgpr_count 2
  .amdhsa_user_sgpr_kernarg_segment_ptr 1
  .amdhsa_system_sgpr_workgroup_id_x 1
  .amdhsa_float_denorm_mode_32 3
.end_amdhsa_kernel
"""
def khead(name):
    return f""".text
.globl {name}
.p2align 8
.type {name},@function
{name}:
"""
```

```python
from asmlib import *
from layout import *
K1_LDS = 163840
XB = 0
RING = 114688
NR = 5
MISC = RING + NR * 8192
STAT = MISC
CSB = MISC + 1024
CSW = MISC + 2048
SUB = MISC + 3072
HT = SUB
NSLOT = 35
FRAG_W = 42 * 2048
LOG2E = 0x3fb8aa3b

def mfma(d, a, b, first=False):
    c = "0" if first else f"v[{d}:{d+15}]"
    return f"v_mfma_f32_32x32x16_bf16 v[{d}:{d+15}], v[{a}:{a+3}], v[{b}:{b+3}], {c}"

class Stamper:
    def __init__(self, on): self.on = on; self.n = 0
    def __call__(self, e):
        if not self.on: return
        e(f"s_memtime s[{80}:{81}]\ns_waitcnt lgkmcnt(0)\ns_mov_b32 s{84+self.n}, s80")
        self.n += 1
        assert self.n <= 12
    def dump(self, e):
        if not self.on: return
        e("s_waitcnt vmcnt(0)")
        self(e)
        e("s_memrealtime s[80:81]\ns_waitcnt lgkmcnt(0)")
        e(f"s_mov_b32 s22, {WS_END + (1<<20)}")
        e("s_lshl_b32 s82, s2, 3\ns_add_u32 s82, s82, s3\ns_lshl_b32 s82, s82, 6")
        e(f"s_add_u32 s82, s82, {WS_END + 65536}")
        e("v_mov_b32 v1, 0\nv_cmp_eq_u32 vcc, 0, v0\ns_and_saveexec_b64 s[98:99], vcc")
        for i in range(12): e(f"v_mov_b32 v{4+i}, s{84+i}" if i < self.n else f"v_mov_b32 v{4+i}, 0")
        e("v_mov_b32 v16, s96\nv_mov_b32 v17, s80\nv_mov_b32 v18, 0\nv_mov_b32 v19, 0")
        for q in range(4): e(f"buffer_store_dwordx4 v[{4+4*q}:{7+4*q}], v1, s[20:23], s82 offen offset:{16*q}")

def w_dma(e, n):
    ps, kk = divmod(n - 7, 14)
    c, hk = kk >> 1, kk & 1
    e(f"s_add_u32 m0, s79, {(n % NR) * 8192}")
    e(f"s_add_u32 s83, s{72+c}, {32*hk*3584 + ps*128}")
    e.vmem("buffer_load_dwordx4 v7, s[16:19], s83 offen lds", ("slot", n))
    e.vmem("buffer_load_dwordx4 v8, s[16:19], s83 offen offset:1024 lds", ("slot", n))

def gen_k1(name="s5_k1_kernel", stamps=False):
    e = Em()
    e("s_cmp_ge_u32 s2, 252")
    e("s_cbranch_scc1 K1_END")
    if stamps: e("s_memrealtime s[96:97]\ns_memtime s[84:85]")
    e("s_load_dwordx16 s[32:47], s[0:1], 0")
    e("s_load_dwordx16 s[48:63], s[0:1], 64")
    e("v_lshrrev_b32 v1, 6, v0")
    e("v_mov_b32 v2, v0")
    e("v_and_b32 v0, 63, v0")
    e("v_readfirstlane_b32 s3, v1")
    e("s_cmp_ge_u32 s2, 224")
    e("s_cbranch_scc1 K1_SPARE")
    e("s_and_b32 s4, s3, 3")
    e("s_and_b32 s8, s2, 7")
    e("s_lshr_b32 s9, s2, 3")
    e("s_and_b32 s5, s8, 3")
    e("s_lshl_b32 s5, s5, 2")
    e("s_and_b32 s10, s9, 3")
    e("s_add_u32 s5, s5, s10")
    e("s_lshr_b32 s6, s8, 2")
    e("s_mul_i32 s6, s6, 7")
    e("s_lshr_b32 s11, s9, 2")
    e("s_add_u32 s6, s6, s11")
    e("s_lshl_b32 s10, s10, 1")
    e("s_add_u32 s7, s11, s10")
    e("s_cmp_ge_u32 s7, 7\ns_cselect_b32 s10, 7, 0\ns_sub_u32 s7, s7, s10")
    e("s_lshl_b32 s64, s7, 7")
    for c in range(1, 7):
        e(f"s_add_u32 s{64+c}, s{63+c}, 128")
        e(f"s_cmp_ge_u32 s{64+c}, 896\ns_cselect_b32 s{64+c}, 0, s{64+c}")
    e("s_and_b32 s10, s4, 1\ns_mul_i32 s10, s10, 57344\ns_lshl_b32 s11, s6, 8\ns_add_u32 s10, s10, s11")
    for c in range(7):
        e(f"s_mul_i32 s{72+c}, s{64+c}, 1792\ns_add_u32 s{72+c}, s{72+c}, s10")
    e(f"s_lshl_b32 s79, s4, 11\ns_add_u32 s79, s79, {RING}")
    e("v_lshrrev_b32 v1, 3, v0")
    e("v_and_b32 v2, 7, v0")
    e("v_lshrrev_b32 v3, 4, v0")
    e("v_and_b32 v4, 1, v3\nv_lshlrev_b32 v4, 2, v4\nv_xor_b32 v4, v4, v2\nv_lshlrev_b32 v4, 4, v4")
    e("v_mul_u32_u24 v7, 0xe00, v1\nv_add_u32 v7, v7, v4")
    e(f"v_add_u32 v8, {8*3584 - 1024}, v7")
    e("v_and_b32 v20, 31, v0\nv_lshrrev_b32 v21, 5, v0\nv_bfe_u32 v22, v0, 1, 3\nv_xor_b32 v22, v22, v21\nv_lshlrev_b32 v20, 7, v20")
    e("s_cmp_ge_u32 s3, 4")
    e("s_cbranch_scc1 K1_S")

    st = Stamper(stamps); st.n = 1 if stamps else 0
    e("v_xor_b32 v4, v2, v3\nv_lshlrev_b32 v4, 4, v4")
    e("v_xor_b32 v9, 64, v4")
    e("v_lshlrev_b32 v5, 4, v21\nv_and_b32 v6, 3, v1\nv_add_u32 v5, v5, v6\nv_mul_u32_u24 v5, 0x380, v5")
    e("v_mul_u32_u24 v6, 0x380, v1")
    e("v_add_u32 v23, v5, v4")
    e(f"v_add_u32 v24, v5, v9\nv_add_u32 v24, 2560, v24")
    e(f"v_add_u32 v25, 5120, v23")
    e(f"v_add_u32 v26, 5120, v24")
    e("v_add_u32 v5, v6, v4")
    e(f"v_add_u32 v6, v6, v9\nv_add_u32 v6, {8*896-1024}, v6")
    e("s_lshl_b32 s28, s5, 7\ns_lshl_b32 s29, s4, 5\ns_add_u32 s28, s28, s29\ns_mul_i32 s28, s28, 896")
    e("s_lshl_b32 s29, s6, 5\ns_and_b32 s30, s4, 1\ns_lshl_b32 s30, s30, 4\ns_add_u32 s29, s29, s30\ns_mul_i32 s29, s29, 896")
    e("s_lshl_b32 s30, s4, 12")
    e("s_waitcnt lgkmcnt(0)")
    srd(e, 8, 32, 2048 * 896)
    e("s_cmp_lt_u32 s4, 2")
    e("s_cselect_b32 s12, s38, s40\ns_cselect_b32 s13, s39, s41\ns_cselect_b32 s16, s52, s54\ns_cselect_b32 s17, s53, s55")
    e(f"s_and_b32 s13, s13, 0xffff\ns_mov_b32 s14, {448*896}\ns_mov_b32 s15, 0x20000")
    def x_dma(c):
        e(f"s_add_u32 m0, s30, {c*16384}")
        e(f"s_add_u32 s83, s28, s{64+c}")
        for ii in range(4):
            e.vmem(f"buffer_load_dwordx4 v{23+ii}, s[8:11], s83 offen" + (f" offset:{ii*1024}" if ii else "") + " lds", ("x", c))
    def b_dma(c):
        e(f"s_add_u32 m0, s79, {(c % NR)*8192}")
        e(f"s_add_u32 s83, s29, s{64+c}")
        e.vmem("buffer_load_dwordx4 v5, s[12:15], s83 offen lds", ("slot", c))
        e.vmem("buffer_load_dwordx4 v6, s[12:15], s83 offen offset:1024 lds", ("slot", c))
    for c in range(7):
        x_dma(c)
        if c < NR: b_dma(c)
    e(f"s_and_b32 s17, s17, 0xffff\ns_mov_b32 s18, {448*3584}\ns_mov_b32 s19, 0x20000")
    srd(e, 20, 62, WS_END)
    e("s_lshr_b32 s31, s4, 1\ns_lshl_b32 s31, s31, 13")
    e("v_add_u32 v20, s31, v20")
    for jj in range(4):
        e(f"v_xor_b32 v{10+jj}, {2*jj}, v22\nv_lshl_add_u32 v{10+jj}, v{10+jj}, 4, v20\nv_add_u32 v{14+jj}, 0x10000, v{10+jj}")
    e("v_bfe_u32 v1, v0, 2, 2")
    e("v_lshl_add_u32 v2, v21, 3, v1\nv_lshlrev_b32 v9, 7, v2")
    e("s_and_b32 s31, s4, 1")
    e("v_lshrrev_b32 v1, 1, v1\nv_xor_b32 v1, s31, v1\nv_lshl_add_u32 v9, v1, 6, v9")
    e("v_bfe_u32 v1, v0, 4, 1\nv_lshl_add_u32 v9, v1, 5, v9")
    e("v_and_b32 v1, 3, v0\nv_lshl_add_u32 v9, v1, 3, v9")
    e(f"v_add_u32 v9, {RING}, v9")
    e("v_lshlrev_b32 v18, 4, v0")
    e(f"s_lshl_b32 s31, s31, 7\ns_add_u32 s31, s31, {CSW}\nv_lshlrev_b32 v1, 4, v21\nv_add_u32 v21, s31, v1")
    e("v_bfe_u32 v1, v0, 2, 1\nv_lshlrev_b32 v1, 4, v1\nv_bfe_u32 v2, v0, 3, 2\nv_lshl_add_u32 v1, v2, 2, v1\nv_and_b32 v2, 3, v0\nv_add_u32 v1, v1, v2")
    e(f"s_lshr_b32 s31, s4, 1\ns_lshl_b32 s31, s31, 8\ns_add_u32 s31, s31, {STAT}\nv_lshl_add_u32 v22, v1, 2, s31")
    e(f"v_mov_b32 v2, 0\nv_mov_b32 v3, 0\ns_lshl_b32 s31, s4, 9\ns_add_u32 s31, s31, {SUB}\nv_lshl_add_u32 v1, v0, 3, s31")
    e("ds_write_b64 v1, v[2:3]")
    e("s_lshl_b32 s24, s5, 1\ns_lshr_b32 s31, s4, 1\ns_add_u32 s24, s24, s31\ns_lshl_b32 s24, s24, 2\ns_and_b32 s31, s4, 1\ns_lshl_b32 s31, s31, 1\ns_add_u32 s24, s24, s31")
    e(f"s_mul_i32 s24, s24, {FRAG_W}\ns_lshl_b32 s31, s6, 12\ns_add_u32 s24, s24, s31\ns_add_u32 s24, s24, {WS_A + 14*2048}\ns_add_u32 s25, s24, {FRAG_W}")
    for sg in range(7):
        e.vm_wait({("x", sg), ("slot", sg)}, "lgkmcnt(0)" if sg == 0 else "")
        e("s_barrier")
        if sg == 0: st(e)
        n = sg + NR - 1
        if sg >= 1:
            if n < 7: b_dma(n)
            else: w_dma(e, n)
    FS = [24, 40]
    ACC = [128, 192]
    CS = 56; T = 88
    def reads(sg, u, fs):
        ps, kk = divmod(sg - 7, 14)
        ks = 2 * kk + u; c, jj = ks >> 2, ks & 3
        xb = (10 + jj) if c < 4 else (14 + jj)
        xo = (c & 3) * 16384
        wo = (sg % NR) * 8192 + u * 2048
        return [f"ds_read_b64_tr_b16 v[{fs+8}:{fs+9}], v9 offset:{wo}",
                f"ds_read_b64_tr_b16 v[{fs+10}:{fs+11}], v9 offset:{wo+512}",
                f"ds_read_b128 v[{fs}:{fs+3}], v{xb} offset:{xo}",
                f"ds_read_b128 v[{fs+4}:{fs+7}], v{xb} offset:{xo+4096}",
                f"ds_read_b64_tr_b16 v[{fs+12}:{fs+13}], v9 offset:{wo+4096}",
                f"ds_read_b64_tr_b16 v[{fs+14}:{fs+15}], v9 offset:{wo+4096+512}"]
    def mf4(ps, fs, first):
        a = ACC[ps]
        return [mfma(a, fs+8, fs, first), mfma(a+16, fs+8, fs+4, first), mfma(a+32, fs+12, fs, first), mfma(a+48, fs+12, fs+4, first)]
    def epilogue(ps, packed):
        a = ACC[ps]; out = []
        for rt in range(2):
            G, U = a + 16*rt, a + 32 + 16*rt
            for h in range(2):
                tt = T + 4 * ((2*rt + h) & 3)
                for r in range(8*h, 8*h + 8, 2):
                    if packed:
                        out.append(f"v_pk_fma_f32 v[{G+r}:{G+r+1}], v[{CS+r}:{CS+r+1}], v[{19+rt - (0 if rt == 1 else 1)}:{19+rt - (0 if rt == 1 else 1)+1}], v[{G+r}:{G+r+1}] " + ("op_sel:[0,1,0] op_sel_hi:[1,1,1]" if rt == 0 else "op_sel_hi:[1,0,1]") + " neg_lo:[1,0,0] neg_hi:[1,0,0]")
                        out.append(f"v_pk_fma_f32 v[{U+r}:{U+r+1}], v[{CS+16+r}:{CS+17+r}], v[{19+rt - (0 if rt == 1 else 1)}:{19+rt - (0 if rt == 1 else 1)+1}], v[{U+r}:{U+r+1}] " + ("op_sel:[0,1,0] op_sel_hi:[1,1,1]" if rt == 0 else "op_sel_hi:[1,0,1]") + " neg_lo:[1,0,0] neg_hi:[1,0,0]")
                        out.append(f"v_max_f32 v{G+r}, 0, v{G+r}")
                        out.append(f"v_max_f32 v{G+r+1}, 0, v{G+r+1}")
                        out.append(f"v_pk_mul_f32 v[{G+r}:{G+r+1}], v[{G+r}:{G+r+1}], v[{U+r}:{U+r+1}]")
                    else:
                        for q in (r, r + 1):
                            out.append(f"v_fma_f32 v{G+q}, -v{CS+q}, v{19+rt}, v{G+q}")
                            out.append(f"v_fma_f32 v{U+q}, -v{CS+16+q}, v{19+rt}, v{U+q}")
                        for q in (r, r + 1): out.append(f"v_max_f32 v{G+q}, 0, v{G+q}")
                        for q in (r, r + 1): out.append(f"v_mul_f32 v{G+q}, v{G+q}, v{U+q}")
                    out.append(f"v_cvt_pk_bf16_f32 v{tt + ((r - 8*h) >> 1)}, v{G+r}, v{G+r+1}")
                out.append(f"buffer_store_dwordx4 v[{tt}:{tt+3}], v18, s[20:23], s{24+h} offen offset:{ps*2048 + rt*1024}")
        return out
    def cs_reads(ps):
        r = []
        for mt in range(2):
            for q in range(4):
                r.append(f"ds_read_b128 v[{CS+16*mt+4*q}:{CS+16*mt+4*q+3}], v21 offset:{mt*512 + ps*256 + q*32}")
        return r
    side = []
    e("s_setprio 2")
    prev = None
    for sg in range(7, NSLOT):
        ps, kk = divmod(sg - 7, 14)
        e.vm_wait({("slot", sg)})
        e("s_barrier")
        if sg in (7, 21): st(e)
        extra = []
        if sg == 21: extra = ["ds_read_b32 v19, v22", "ds_read_b32 v20, v22 offset:128"] + cs_reads(0)
        if sg == 22: side = epilogue(0, False)
        if sg == NSLOT - 1: assert not side; extra = cs_reads(1)
        for u in range(2):
            fs = FS[u]
            rd = reads(sg, u, fs)
            if u == 0: rd = rd + extra
            mm = prev if prev else []
            if not mm:
                for s in rd: e(s)
            else:
                ri = 0
                for i, m in enumerate(mm):
                    if u == 1:
                        nx = len(extra)
                        if i == 0: e(f"s_waitcnt lgkmcnt({min(15, 3 + nx)})")
                        if i == 1: e(f"s_waitcnt lgkmcnt({min(15, 2 + nx + ri)})")
                        if i == 2: e(f"s_waitcnt lgkmcnt({min(15, 0 + nx + ri)})")
                    e(m)
                    k = 3 if i < 2 else len(rd)
                    for s in rd[ri:ri + k]: e(s)
                    ri = min(len(rd), ri + k)
                    ns = 1 if i < 2 else 3
                    for _ in range(ns):
                        if side: e(side.pop(0))
            prev = mf4(ps, fs, kk == 0 and u == 0)
        e("s_waitcnt lgkmcnt(0)")
    for m in prev: e(m)
    st(e)
    e("s_nop 7\ns_nop 1")
    for s in epilogue(1, True): e(s)
    st.dump(e)
    e("s_endpgm")

    e.vm = []
    e.label("K1_S")
    st = Stamper(stamps); st.n = 1 if stamps else 0
    e("s_setprio 3")
    e("s_getpc_b64 s[28:29]")
    e.label("K1_PC")
    e(f"s_sub_u32 s28, s28, K1_PC-{name}\ns_subb_u32 s29, s29, 0")
    e(f"s_lshl_b32 s30, s4, 13\nv_lshlrev_b32 v1, 7, v0\nv_add_u32 v1, s30, v1\nv_min_u32 v1, ALL_END-{name}-4, v1")
    e.vmem("global_load_dword v250, v1, s[28:29]", "code")
    e("s_lshl_b32 s31, s4, 12")
    e("v_add_u32 v23, s31, v20")
    e(f"v_add_u32 v24, {RING}, v20")
    e("s_lshl_b32 s31, s4, 1")
    for jj in range(4):
        e(f"s_add_u32 s30, s31, {2*jj}\ns_and_b32 s30, s30, 6")
        e(f"v_xor_b32 v1, s30, v22\nv_lshl_add_u32 v{10+jj}, v1, 4, v23\nv_add_u32 v{14+jj}, 0x10000, v{10+jj}\nv_lshl_add_u32 v{168+jj}, v1, 4, v24")
    e("v_and_b32 v1, 31, v0\ns_lshl_b32 s30, s6, 5\nv_add_u32 v1, s30, v1\nv_lshlrev_b32 v1, 1, v1")
    e("v_mov_b32 v2, 0\nv_mov_b32 v3, 0\nv_mov_b32 v4, 0")
    e("s_waitcnt lgkmcnt(0)")
    e.vmem("global_load_short_d16_hi v2, v1, s[34:35]", "par")
    e.vmem("global_load_short_d16_hi v3, v1, s[36:37]", "par")
    e.vmem("global_load_short_d16_hi v4, v1, s[46:47]", "par")
    e("s_cmp_lt_u32 s4, 2\ns_cselect_b32 s16, s52, s54\ns_cselect_b32 s17, s53, s55")
    e(f"s_and_b32 s17, s17, 0xffff\ns_mov_b32 s18, {448*3584}\ns_mov_b32 s19, 0x20000")
    srd(e, 20, 62, WS_END)
    srd(e, 24, 60, 256)
    e("s_mov_b32 s31, 0x3f803f80")
    for r in (32, 33, 34, 35): e(f"v_mov_b32 v{r}, 0")
    e.vm_wait({"par"})
    e(f"v_mul_f32 v4, {LOG2E}, v4\nv_exp_f32 v4, v4\ns_nop 0\nv_cvt_pk_bf16_f32 v4, v4, v4\nv_and_b32 v4, 0xffff0000, v4")
    e(f"v_mul_f32 v5, v4, v2\nv_mul_f32 v6, v4, v3\nv_mul_f32 v5, {LOG2E}, v5\nv_exp_f32 v5, v5")
    e("v_mul_f32 v6, 0.15915494, v6\nv_rndne_f32 v9, v6\nv_sub_f32 v6, v6, v9\nv_cos_f32 v22, v6\nv_sin_f32 v23, v6\ns_nop 0")
    e("v_mul_f32 v22, v22, v5\nv_mul_f32 v23, v23, v5")
    e("v_mul_f32 v5, v2, v2\nv_fma_f32 v5, v3, v3, v5\nv_rcp_f32 v5, v5\nv_add_f32 v6, -1.0, v22")
    e("v_mul_f32 v30, v6, v2\nv_fma_f32 v30, v23, v3, v30\nv_mul_f32 v31, v23, v2\nv_fma_f32 v31, -v6, v3, v31")
    e("v_add_f32 v5, v5, v5\nv_mul_f32 v30, v30, v5\nv_mul_f32 v31, v31, v5")
    def csq(d, s):
        e(f"v_mul_f32 v9, v{s}, v{s+1}\nv_mul_f32 v{d}, v{s}, v{s}\nv_fma_f32 v{d}, -v{s+1}, v{s+1}, v{d}\nv_add_f32 v{d+1}, v9, v9")
    def cmul_ip(d, a):
        e(f"v_mul_f32 v9, v{d}, v{a+1}\nv_mul_f32 v{d}, v{d}, v{a}\nv_fma_f32 v{d}, -v{d+1}, v{a+1}, v{d}\nv_fma_f32 v{d+1}, v{d+1}, v{a}, v9")
    csq(24, 22); csq(24, 24); csq(24, 24); csq(24, 24)
    e("v_cmp_lt_u32 vcc, 31, v0\ns_nop 1\nv_cndmask_b32 v28, 1.0, v24, vcc\nv_cndmask_b32 v29, 0, v25, vcc")
    csq(26, 24)
    e("s_bitcmp1_b32 s4, 0\ns_cbranch_scc0 K1_pw1")
    cmul_ip(28, 26)
    e.label("K1_pw1")
    csq(26, 26)
    e("s_bitcmp1_b32 s4, 1\ns_cbranch_scc0 K1_pw2")
    cmul_ip(28, 26)
    e.label("K1_pw2")
    csq(26, 26)
    UR, UI = 40, 56
    SF = [72, 120]
    def dots(fs):
        o = []
        for j in range(4):
            for q in range(4):
                o.append(f"v_dot2c_f32_bf16 v33, v{fs+12*j+q}, v{fs+12*j+q}")
                o.append(f"v_dot2c_f32_bf16 v32, s31, v{fs+12*j+q}")
        for q in range(4):
            o.append(f"v_dot2c_f32_bf16 v34, s31, v{fs+4+q}")
            o.append(f"v_dot2c_f32_bf16 v35, s31, v{fs+8+q}")
        return o
    for sg in range(7):
        e("s_barrier")
        if sg == 0: st(e)
        fs = SF[sg & 1]
        for j in range(4):
            xb = (10 + j) if sg < 4 else (14 + j)
            e(f"ds_read_b128 v[{fs+12*j}:{fs+12*j+3}], v{xb} offset:{(sg & 3)*16384}")
            e(f"ds_read_b128 v[{fs+12*j+4}:{fs+12*j+7}], v{168+j} offset:{(sg % NR)*8192}")
            e(f"ds_read_b128 v[{fs+12*j+8}:{fs+12*j+11}], v{168+j} offset:{(sg % NR)*8192+4096}")
        if sg > 0:
            for s in dots(SF[(sg - 1) & 1]): e(s)
        for j in range(4):
            e(f"s_waitcnt lgkmcnt({9 - 3*j})")
            e(mfma(UR, fs+12*j, fs+12*j+4, sg == 0 and j == 0))
            e(mfma(UI, fs+12*j, fs+12*j+8, sg == 0 and j == 0))
    P = {}
    def piece(sg, f): P.setdefault(sg, []).append(f)
    def p_dots():
        for s in dots(SF[0]): e(s)
        e("s_setprio 0")
    piece(7, p_dots)
    def p_stats():
        e("v_mov_b32 v1, v32\nv_mov_b32 v2, v33\ns_nop 1")
        e("v_permlane32_swap_b32 v32, v1\nv_permlane32_swap_b32 v33, v2\nv_permlane32_swap_b32 v34, v35\ns_nop 1")
        e("v_add_f32 v32, v32, v1\nv_add_f32 v33, v33, v2\nv_add_f32 v34, v34, v35")
        e("v_mul_f32 v32, 0x3b124925, v32\nv_mul_f32 v33, 0x3b124925, v33")
        e("v_fma_f32 v33, -v32, v32, v33\nv_max_f32 v33, 0, v33\nv_cvt_pk_bf16_f32 v1, v33, v32")
        e("v_and_b32 v32, 0xffff0000, v1\nv_lshlrev_b32 v33, 16, v1\nv_add_f32 v33, 0x3727c5ac, v33")
        e("v_cvt_pk_bf16_f32 v33, v33, v33\nv_and_b32 v33, 0xffff0000, v33\nv_sqrt_f32 v33, v33")
        e("v_bfe_u32 v1, v0, 2, 1\nv_lshlrev_b32 v1, 4, v1\nv_bfe_u32 v2, v0, 3, 2\nv_lshl_add_u32 v1, v2, 2, v1\nv_and_b32 v2, 3, v0\nv_add_u32 v1, v1, v2")
        e("v_cvt_pk_bf16_f32 v33, v33, v33\nv_and_b32 v33, 0xffff0000, v33\nv_rcp_f32 v33, v33")
        e("s_lshl_b32 s30, s4, 5\nv_add_u32 v1, s30, v1\nv_lshlrev_b32 v1, 2, v1")
        e("v_cmp_lt_u32 vcc, 31, v0")
        e(f"v_lshl_add_u32 v2, v21, 9, v1\nv_add_u32 v2, {STAT}, v2")
        e("v_cndmask_b32 v32, v32, v33, vcc")
        e("ds_write_b32 v2, v32")
        e(f"s_lshl_b32 s30, s4, 2\ns_add_u32 s30, s30, {CSB}\nv_lshl_add_u32 v2, v0, 4, s30")
        e("ds_write_b32 v2, v34")
        e("s_cmp_lg_u32 s6, 0\ns_cbranch_scc1 K1_nost")
        e(f"v_lshl_add_u32 v1, v21, 13, v1\ns_lshl_b32 s30, s5, 9\ns_add_u32 s30, s30, {WS_ST}")
        e("buffer_store_dword v32, v1, s[20:23], s30 offen")
        e.label("K1_nost")
        e("s_waitcnt lgkmcnt(0)")
    piece(8, p_stats)
    M, R = 72, 88
    def p_rd():
        e(f"v_and_b32 v1, 31, v0\nv_lshlrev_b32 v1, 4, v1\nv_add_u32 v1, {CSB}, v1")
        e("ds_read_b128 v[104:107], v1\nds_read_b128 v[108:111], v1 offset:512")
        e(f"s_lshl_b32 s30, s4, 7\ns_add_u32 s30, s30, {STAT}\nv_lshl_add_u32 v2, v21, 6, s30")
        for q in range(4):
            e(f"ds_read_b128 v[{M+4*q}:{M+4*q+3}], v2 offset:{16*q}")
            e(f"ds_read_b128 v[{R+4*q}:{R+4*q+3}], v2 offset:{512+16*q}")
        e("s_waitcnt lgkmcnt(8)")
        e("v_add_f32 v104, v104, v105\nv_add_f32 v106, v106, v107\nv_add_f32 v108, v108, v109\nv_add_f32 v110, v110, v111\nv_add_f32 v34, v104, v106\nv_add_f32 v35, v108, v110")
        e("s_waitcnt lgkmcnt(0)")
    piece(9, p_rd)
    def fold(j0, j1):
        def f():
            for j in range(j0, j1):
                e(f"v_fma_f32 v{UR+j}, -v{M+j}, v34, v{UR+j}\nv_fma_f32 v{UI+j}, -v{M+j}, v35, v{UI+j}")
            for j in range(j0, j1):
                e(f"v_mul_f32 v{UR+j}, v{UR+j}, v{R+j}\nv_mul_f32 v{UI+j}, v{UI+j}, v{R+j}")
        return f
    piece(9, fold(0, 4)); piece(10, fold(4, 12)); piece(11, fold(12, 16))
    def step(dr, di, hr, hi, ur, ui, lr=22, li=23):
        e(f"v_fma_f32 v{dr}, v{lr}, v{hr}, v{ur}\nv_fma_f32 v{di}, v{lr}, v{hi}, v{ui}")
        e(f"v_fma_f32 v{dr}, -v{li}, v{hi}, v{dr}\nv_fma_f32 v{di}, v{li}, v{hr}, v{di}")
    def lscan(j0, j1):
        def f():
            for j in range(j0, j1):
                src = (UR, UI) if j == 1 else ((36, 37) if j % 2 == 0 else (38, 39))
                dst = (36, 37) if j % 2 == 1 else (38, 39)
                step(dst[0], dst[1], src[0], src[1], UR + j, UI + j)
        return f
    piece(11, lscan(1, 5)); piece(12, lscan(5, 13)); piece(13, lscan(13, 16))
    def p_subw():
        e(f"s_lshl_b32 s30, s4, 9\ns_add_u32 s30, s30, {SUB}\nv_lshl_add_u32 v5, v0, 3, s30")
        e(f"ds_write_b64 v5, v[36:37] offset:{7*256}")
        e("s_waitcnt lgkmcnt(0)")
    piece(13, p_subw)
    def p_prefix():
        for d in range(7):
            e(f"ds_read_b64 v[{104+2*d}:{105+2*d}], v5 offset:{d*256}")
        for d in range(1, 7):
            e(f"s_waitcnt lgkmcnt({6-d})")
            step(104 + 2*d, 105 + 2*d, 102 + 2*d, 103 + 2*d, 104 + 2*d, 105 + 2*d, 24, 25)
        step(36, 37, 116, 117, 36, 37, 24, 25)
        e("s_cmp_lg_u32 s4, 3\ns_cbranch_scc1 K1_nopub")
        e(f"s_lshl_b32 s30, s6, 4\ns_add_u32 s30, s30, s5\ns_lshl_b32 s30, s30, 8\ns_add_u32 s30, s30, {WS_AGG - 256}")
        e("v_lshlrev_b32 v1, 3, v0")
        e("s_mov_b32 exec_lo, 0")
        e("buffer_store_dwordx2 v[36:37], v1, s[20:23], s30 offen sc1")
        e("s_mov_b32 exec_lo, -1")
        e.label("K1_nopub")
    piece(14, p_prefix)
    def p_flag():
        e("s_cmp_lg_u32 s4, 3\ns_cbranch_scc1 K1_noflag")
        e("s_waitcnt vmcnt(2)")
        e("s_lshl_b32 s30, 1, s5\nv_mov_b32 v1, s30\ns_lshl_b32 s30, s6, 4\nv_mov_b32 v2, s30")
        e("s_mov_b64 exec, 1")
        e("buffer_atomic_or v1, v2, s[24:27], 0 offen sc1")
        e("s_mov_b64 exec, -1")
        e.label("K1_noflag")
    piece(15, p_flag)
    def poll(lbl, maskreg):
        e("s_lshl_b32 s30, s6, 4\nv_mov_b32 v2, s30\ns_mov_b32 s28, 0")
        e.label(lbl)
        e("buffer_load_dword v1, v2, s[24:27], 0 offen sc1")
        e("s_waitcnt vmcnt(0)")
        e("v_readfirstlane_b32 s30, v1")
        e(f"s_and_b32 s30, s30, s{maskreg}\ns_cmp_eq_u32 s30, s{maskreg}\ns_cbranch_scc1 {lbl}_ok\ns_sleep 2\ns_add_u32 s28, s28, 1\ns_cmp_lt_u32 s28, 0x40000\ns_cbranch_scc1 {lbl}")
        e.label(lbl + "_ok")
    def p_csw():
        e("s_cmp_lg_u32 s4, 0\ns_cbranch_scc1 K1_nocsw")
        e("s_mov_b32 s29, 0x30000")
        poll("K1_pollcs", 29)
        e(f"s_lshl_b32 s30, s6, 10\ns_add_u32 s30, s30, {WS_CS}\nv_lshlrev_b32 v1, 4, v0")
        e("buffer_load_dwordx4 v[104:107], v1, s[20:23], s30 offen sc1")
        e.label("K1_nocsw")
    piece(17, p_csw)
    def p_csw2():
        e("s_cmp_lg_u32 s4, 0\ns_cbranch_scc1 K1_nocsw2")
        e("s_waitcnt vmcnt(4)")
        e(f"v_lshlrev_b32 v1, 4, v0\nv_add_u32 v1, {CSW}, v1")
        e("ds_write_b128 v1, v[104:107]\ns_waitcnt lgkmcnt(0)")
        e.label("K1_nocsw2")
    piece(19, p_csw2)
    def p_look():
        e("s_lshl_b32 s29, 1, s5\ns_sub_u32 s29, s29, 1")
        poll("K1_pollag", 29)
        e.vm = []
        e(f"s_lshl_b32 s30, s6, 12\ns_add_u32 s30, s30, {WS_AGG}\nv_and_b32 v1, 31, v0\nv_lshlrev_b32 v1, 3, v1")
        for j in range(15):
            e.vmem(f"buffer_load_dwordx2 v[{120+2*j}:{121+2*j}], v1, s[20:23], s30 offen offset:{256*j} sc1", "agg")
    piece(25, p_look)
    def p_horner():
        e.vm_wait({"agg"})
        e("v_mov_b32 v36, 0\nv_mov_b32 v37, 0")
        for j in range(15):
            e(f"s_cmp_le_u32 s5, {j}\ns_cbranch_scc1 K1_hdone")
            step(120 + 2*j, 121 + 2*j, 36, 37, 120 + 2*j, 121 + 2*j, 26, 27)
            e(f"v_mov_b32 v36, v{120+2*j}\nv_mov_b32 v37, v{121+2*j}")
        e.label("K1_hdone")
        step(116, 117, 36, 37, 116, 117, 28, 29)
    piece(27, p_horner)
    def fscan(j0, j1):
        def f():
            for j in range(j0, j1):
                src = (116, 117) if j == 0 else (UR + j - 1, UI + j - 1)
                step(UR + j, UI + j, src[0], src[1], UR + j, UI + j)
        return f
    piece(28, fscan(0, 6)); piece(29, fscan(6, 12)); piece(30, fscan(12, 16))
    def p_haddr():
        e(f"s_lshl_b32 s30, s4, 10\ns_add_u32 s30, s30, {HT}")
        e("v_and_b32 v1, 31, v0\nv_lshlrev_b32 v1, 2, v1\nv_lshl_add_u32 v1, v21, 9, v1\nv_add_u32 v3, s30, v1")
        e("v_and_b32 v1, 7, v0\nv_lshrrev_b32 v2, 3, v0\nv_lshlrev_b32 v4, 7, v1\nv_lshl_add_u32 v4, v2, 4, v4\nv_add_u32 v4, s30, v4")
        e(f"v_lshrrev_b32 v5, 4, v0\nv_mul_u32_u24 v5, {FRAG_W}, v5\nv_and_b32 v2, 1, v2\nv_lshl_add_u32 v5, v2, 9, v5\nv_lshl_add_u32 v5, v1, 4, v5")
        e(f"s_lshl_b32 s29, s5, 1\ns_lshr_b32 s30, s4, 1\ns_add_u32 s29, s29, s30\ns_mul_i32 s29, s29, {4*FRAG_W}")
        e(f"s_lshl_b32 s30, s6, 11\ns_add_u32 s29, s29, s30\ns_and_b32 s30, s4, 1\ns_lshl_b32 s30, s30, 10\ns_add_u32 s29, s29, s30")
        if WS_A: e(f"s_add_u32 s29, s29, {WS_A}")
    piece(26, p_haddr)
    def hout(g):
        def f():
            for r in range(4):
                j = 4*g + r
                e(f"v_mul_f32 v{104+r}, v30, v{UR+j}\nv_mul_f32 v{108+r}, v30, v{UI+j}")
                e(f"v_fma_f32 v{104+r}, -v31, v{UI+j}, v{104+r}\nv_fma_f32 v{108+r}, -v31, v{UR+j}, -v{108+r}")
                e(f"v_cvt_pk_bf16_f32 v{104+r}, v{104+r}, v{108+r}")
                e(f"ds_write_b32 v3, v{104+r} offset:{r*128}")
            e("s_waitcnt lgkmcnt(0)")
            e(f"ds_read_b128 v[{112}:{115}], v4")
            e("s_waitcnt lgkmcnt(0)")
            e.vmem(f"buffer_store_dwordx4 v[112:115], v5, s[20:23], s29 offen offset:{g*128}", "h")
        return f
    for g in range(4): piece(31 + g, hout(g))
    for sg in range(7, NSLOT):
        e.vm_wait({("slot", sg)})
        e("s_barrier")
        if sg in (7, 15, 25, 27): st(e)
        n = sg + NR - 1
        if sg == 7:
            for f in P.pop(7): f()
        if n < NSLOT: w_dma(e, n)
        for f in P.pop(sg, []): f()
    assert not P
    st.dump(e)
    e("s_endpgm")

    e.vm = []
    e.label("K1_SPARE")
    e("s_sub_u32 s4, s2, 224")
    e("s_lshr_b32 s5, s4, 1")
    e("s_and_b32 s6, s4, 1")
    e("v_lshrrev_b32 v3, 4, v2\nv_and_b32 v4, 15, v2\nv_mul_u32_u24 v5, 0xe00, v3\nv_lshl_add_u32 v5, v4, 4, v5")
    e("v_lshlrev_b32 v6, 4, v0")
    e("s_waitcnt lgkmcnt(0)")
    e("s_cmp_eq_u32 s6, 0\ns_cselect_b32 s16, s52, s54\ns_cselect_b32 s17, s53, s55")
    e(f"s_and_b32 s17, s17, 0xffff\ns_mov_b32 s18, {448*3584}\ns_mov_b32 s19, 0x20000")
    e("s_lshl_b32 s28, s5, 8")
    for i in range(14):
        e.vmem(f"buffer_load_dwordx4 v[{16+4*i}:{19+4*i}], v5, s[16:19], s28 offen", ("cs", i))
        if i < 13: e(f"s_add_u32 s28, s28, {32*3584}")
    srd(e, 8, 56, 1792 * 896)
    e(f"s_mul_i32 s28, s4, 57344\ns_mul_i32 s29, s3, 7168\ns_add_u32 s28, s28, s29\ns_add_u32 m0, s29, 16384")
    e("s_nop 0")
    for n in range(4): e.vmem(f"buffer_load_dwordx4 v6, s[8:11], s28 offen offset:{n*1024} lds", "wd")
    e("s_add_u32 m0, m0, 4096\ns_add_u32 s28, s28, 4096")
    for n in range(3): e.vmem(f"buffer_load_dwordx4 v6, s[8:11], s28 offen offset:{n*1024} lds", "wd")
    srd(e, 64, 42, 448 * 896)
    srd(e, 68, 44, 448 * 896)
    e("v_mul_u32_u24 v7, 0x380, v2\ns_lshl_b32 s28, s4, 5")
    for q in range(2):
        e.vmem(f"buffer_load_dwordx4 v[{80+4*q}:{83+4*q}], v7, s[64:67], s28 offen offset:{16*q}", "c")
        e.vmem(f"buffer_load_dwordx4 v[{88+4*q}:{91+4*q}], v7, s[68:71], s28 offen offset:{16*q}", "c")
    srd(e, 20, 62, WS_END)
    srd(e, 24, 60, 256)
    for q in range(8): e(f"v_mov_b32 v{8+q}, 0")
    for i in range(14):
        e.vm_wait({("cs", i)})
        for q in range(4):
            e(f"v_lshlrev_b32 v72, 16, v{16+4*i+q}\nv_and_b32 v73, 0xffff0000, v{16+4*i+q}\nv_pk_add_f32 v[{8+2*q}:{9+2*q}], v[{8+2*q}:{9+2*q}], v[72:73]")
    e("v_lshlrev_b32 v3, 5, v2")
    e("ds_write_b128 v3, v[8:11]\nds_write_b128 v3, v[12:15] offset:16")
    e.vm_wait({"wd"}, "lgkmcnt(0)")
    e("s_barrier")
    e("s_cmp_lg_u32 s3, 7\ns_cbranch_scc1 K1_sp2")
    e("v_lshlrev_b32 v3, 3, v0")
    for h in range(2):
        for i in range(16): e(f"ds_read_b64 v[{16+2*i}:{17+2*i}], v3 offset:{(16*h+i)*512}")
        e("s_waitcnt lgkmcnt(0)")
        if h == 0: e("v_mov_b32 v8, 0\nv_mov_b32 v9, 0")
        for i in range(16): e(f"v_pk_add_f32 v[8:9], v[8:9], v[{16+2*i}:{17+2*i}]")
    e(f"s_lshl_b32 s28, s4, 9\ns_add_u32 s28, s28, {WS_CS}")
    e("buffer_store_dwordx2 v[8:9], v3, s[20:23], s28 offen sc1")
    e("s_waitcnt vmcnt(0)")
    e("s_lshl_b32 s28, 0x10000, s6\nv_mov_b32 v8, s28\ns_lshl_b32 s28, s5, 4\nv_mov_b32 v9, s28")
    e("s_mov_b64 exec, 1")
    e("buffer_atomic_or v8, v9, s[24:27], 0 offen sc1")
    e("s_mov_b64 exec, -1")
    e.label("K1_sp2")
    e("s_and_b32 s28, s3, 3\ns_lshr_b32 s29, s3, 2")
    e("v_lshrrev_b32 v3, 5, v0\nv_bfe_u32 v4, v0, 2, 2\nv_lshl_add_u32 v3, v3, 2, v4\nv_mul_u32_u24 v3, 0x380, v3")
    e("v_bfe_u32 v4, v0, 4, 1\nv_lshl_add_u32 v3, v4, 5, v3\nv_and_b32 v4, 3, v0\nv_lshl_add_u32 v3, v4, 3, v3")
    e(f"s_mul_i32 s30, s28, {16*896}\ns_lshl_b32 s31, s29, 6\ns_add_u32 s30, s30, s31\ns_add_u32 s30, s30, 16384\nv_add_u32 v3, s30, v3")
    for n in range(7):
        e(f"ds_read_b64_tr_b16 v[{16+4*n}:{17+4*n}], v3 offset:{n*128}")
        e(f"ds_read_b64_tr_b16 v[{18+4*n}:{19+4*n}], v3 offset:{n*128+7168}")
    e(f"s_mul_i32 s30, s28, {FRAG_W}\ns_lshl_b32 s31, s4, 11\ns_add_u32 s30, s30, s31\ns_lshl_b32 s31, s29, 10\ns_add_u32 s30, s30, s31\ns_add_u32 s30, s30, {WS_B + 14*2048}")
    for n in range(7):
        e(f"s_waitcnt lgkmcnt({12 - 2*n})")
        e(f"buffer_store_dwordx4 v[{16+4*n}:{19+4*n}], v6, s[20:23], s30 offen")
        if n < 6: e(f"s_add_u32 s30, s30, {4*FRAG_W}")
    e("s_cmp_eq_u32 s3, 7\ns_cbranch_scc1 K1_END")
    e("s_waitcnt vmcnt(7)")
    e("s_mov_b32 s28, 0x05040100\ns_mov_b32 s29, 0x07060302")
    for q in range(8):
        e(f"v_perm_b32 v{48+2*q}, v{88+q}, v{80+q}, s28\nv_perm_b32 v{49+2*q}, v{88+q}, v{80+q}, s29")
    e(f"s_mul_i32 s30, s3, {4*FRAG_W}\ns_lshl_b32 s31, s6, 1\ns_mul_i32 s31, s31, {FRAG_W}\ns_add_u32 s30, s30, s31\ns_lshl_b32 s31, s5, 11\ns_add_u32 s30, s30, s31\ns_add_u32 s30, s30, {WS_B}\ns_add_u32 s31, s30, {FRAG_W}")
    e("v_lshrrev_b32 v3, 5, v0\nv_lshlrev_b32 v3, 10, v3\nv_and_b32 v4, 31, v0\nv_lshl_add_u32 v3, v4, 4, v3")
    for ee in range(2):
        for hb in range(2):
            r = 48 + 8*ee + 4*hb
            e(f"buffer_store_dwordx4 v[{r}:{r+3}], v3, s[20:23], s{30+ee} offen offset:{hb*512}")
    e.label("K1_END")
    e("s_endpgm")
    return khead(name) + e.text(), kd(name, 256, 256)
```

```python
from asmlib import *
from layout import *
K2_LDS = 98304
def gen_k2(name="s5_k2_kernel", stamps=False, depth=15, exp=""):
    e = Em()
    e("s_cmp_ge_u32 s2, 224")
    e("s_cbranch_scc1 K2_END")
    if stamps: e("s_memrealtime s[90:91]\ns_memtime s[96:97]")
    e("s_load_dwordx2 s[4:5], s[0:1], 120")
    e("s_load_dwordx2 s[6:7], s[0:1], 0")
    e("s_load_dwordx2 s[8:9], s[0:1], 104")
    e("s_load_dwordx2 s[10:11], s[0:1], 64")
    e("v_lshrrev_b32 v13, 6, v0")
    e("v_and_b32 v0, 63, v0")
    e("v_readfirstlane_b32 s3, v13")
    e("s_and_b32 s12, s2, 7")
    e("s_lshr_b32 s13, s2, 3")
    e("s_and_b32 s14, s12, 3")
    e("s_lshl_b32 s14, s14, 3")
    e("s_lshr_b32 s15, s12, 2")
    e("s_lshl_b32 s15, s15, 2")
    e("s_add_u32 s14, s14, s15")
    e("s_and_b32 s15, s13, 3")
    e("s_add_u32 s14, s14, s15")
    e("s_lshr_b32 s15, s13, 2")
    e("s_lshr_b32 s16, s3, 1")
    e("s_and_b32 s17, s3, 1")
    e("s_lshl_b32 s18, s14, 2")
    e("s_add_u32 s18, s18, s3")
    e(f"s_mul_i32 s18, s18, {42*2048}")
    if WS_A: e(f"s_add_u32 s18, s18, {WS_A}")
    e("s_lshl_b32 s19, s15, 2")
    e("s_add_u32 s19, s19, s3")
    e(f"s_mul_i32 s19, s19, {42*2048}")
    e(f"s_add_u32 s19, s19, {WS_B}")
    if "sameA" in exp: e(f"s_mul_i32 s18, s3, {42*2048}")
    if "sameB" in exp: e(f"s_mul_i32 s19, s3, {42*2048}\ns_add_u32 s19, s19, {WS_B}")
    e("v_lshlrev_b32 v14, 4, v0")
    e("s_lshl_b32 s20, s16, 10")
    e("s_lshl_b32 s21, s17, 10")
    e("v_add_u32 v1, s20, v14")
    e("v_xor_b32 v2, 0x400, v1")
    e("v_add_u32 v3, s21, v14")
    e("v_xor_b32 v4, 0x400, v3")
    e("s_waitcnt lgkmcnt(0)")
    srd(e, 24, 4, WS_END)
    NK = 42
    nbuf = depth
    sA, sB = 18, 19
    state = {"next": 0}
    def issue(ks):
        b = (ks % nbuf) * 16
        off = (ks & 1) * 2048
        o = f" offset:{off}" if off else ""
        e.vmem(f"buffer_load_dwordx4 a[{b}:{b+3}], v1, s[24:27], s{sA} offen{o}", ("m", ks))
        e.vmem(f"buffer_load_dwordx4 a[{b+8}:{b+11}], v3, s[24:27], s{sB} offen{o}", ("m", ks))
        e.vmem(f"buffer_load_dwordx4 a[{b+4}:{b+7}], v2, s[24:27], s{sA} offen{o}", ("m", ks))
        e.vmem(f"buffer_load_dwordx4 a[{b+12}:{b+15}], v4, s[24:27], s{sB} offen{o}", ("m", ks))
        if ks & 1:
            e(f"s_add_u32 s{sA}, s{sA}, 4096")
            e(f"s_add_u32 s{sB}, s{sB}, 4096")
    for ks in range(8): issue(ks)
    state["next"] = 8
    srd(e, 28, 6, 2048 * 896)
    srd(e, 32, 8, 2048 * 1792)
    srd(e, 36, 10, 896)
    e("s_lshl_b32 s40, s14, 6")
    e("s_lshl_b32 s41, s16, 5")
    e("s_add_u32 s40, s40, s41")
    e("s_lshl_b32 s41, s15, 6")
    e("s_lshl_b32 s42, s17, 5")
    e("s_add_u32 s41, s41, s42")
    e("v_lshrrev_b32 v13, 5, v0")
    e("v_lshlrev_b32 v13, 4, v13")
    e("v_add_u32 v13, s40, v13")
    e("v_and_b32 v15, 31, v0")
    e("v_add_u32 v15, s41, v15")
    e("v_lshlrev_b32 v7, 2, v13")
    e("v_mul_u32_u24 v5, 0x380, v13")
    e("v_lshlrev_b32 v15, 1, v15")
    e("v_add_u32 v5, v5, v15")
    e("v_lshlrev_b32 v6, 1, v5")
    for r in range(16): e(f"v_mov_b32 v{16+r}, 0")
    e("v_mov_b32 v8, 0")
    for q in range(1, 8): e(f"s_movk_i32 s{44+q}, {q*3584}")
    e(f"s_mov_b32 s52, {WS_ST}")
    e(f"s_mov_b32 s53, {WS_ST + 8192}")
    for r in range(16):
        so = "0" if r < 4 else f"s{44 + (r >> 2)}"
        off = (r & 3) * 896
        e.vmem(f"buffer_load_short_d16_hi v{16+r}, v5, s[28:31], {so} offen" + (f" offset:{off}" if off else ""), "x")
    for q in range(4):
        e.vmem(f"buffer_load_dwordx4 v[{32+4*q}:{35+4*q}], v7, s[24:27], s52 offen offset:{16*q}", "x")
        e.vmem(f"buffer_load_dwordx4 v[{48+4*q}:{51+4*q}], v7, s[24:27], s53 offen offset:{16*q}", "x")
    e.vmem("buffer_load_short_d16_hi v8, v15, s[36:39], 0 offen", "x")
    for sg in (1, 2, 3):
        e(f"s_xor_b32 s42, s3, {sg}")
        e("s_mul_i32 s42, s42, 12288")
        e(f"s_add_u32 s42, s42, {(sg-1)*4096}")
        e(f"v_add_u32 v{8+sg}, s42, v14")
    e("s_mul_i32 s42, s3, 12288")
    e("v_add_u32 v12, s42, v14")
    def refill(cur):
        while state["next"] < NK and state["next"] < cur + nbuf and e.vm_out() + 4 <= 63:
            issue(state["next"]); state["next"] += 1
    refill(0)
    YACC, OACC = 64, 128
    side = []
    def xwrite(T, acc):
        r = []
        for sg in (1, 2, 3):
            for g in range(4):
                a = acc + sg * 16 + g * 4
                r.append(f"ds_write_b128 v{8+sg}, v[{a}:{a+3}] offset:{T*49152 + g*1024}")
        return r
    def xread(T):
        r = []
        for sg in range(3):
            for g in range(4):
                a = 192 + sg * 16 + g * 4
                r.append(f"ds_read_b128 v[{a}:{a+3}], v12 offset:{T*49152 + sg*4096 + g*1024}")
        return r
    for ks in range(NK):
        e.vm_wait({("m", ks)})
        b = (ks % nbuf) * 16
        acc = YACC if ks < 14 else OACC
        first = ks in (0, 14)
        for (a, bb) in ((0, 0), (1, 0), (0, 1), (1, 1)):
            d = acc + (2 * a + bb) * 16
            c = "0" if first else f"v[{d}:{d+15}]"
            e(f"v_mfma_f32_32x32x16_bf16 v[{d}:{d+15}], a[{b+4*a}:{b+4*a+3}], a[{b+8+4*bb}:{b+8+4*bb+3}], {c}")
        refill(ks + 1)
        if ks == 16:
            for s in xwrite(0, YACC): e(s)
        if ks == 19:
            e("s_waitcnt lgkmcnt(0)")
            e("s_barrier")
            for s in xread(0): e(s)
        if ks == 21:
            e.vm_wait({"x"}, "lgkmcnt(0)")
            for r in range(16):
                e(f"v_add_f32 v{YACC+r}, v{YACC+r}, v{192+r}")
                e(f"v_add_f32 v{208+r}, v{208+r}, v{224+r}")
        if ks == 22:
            for r in range(16):
                e(f"v_add_f32 v{YACC+r}, v{YACC+r}, v{208+r}")
                e(f"v_sub_f32 v{192+r}, v{16+r}, v{32+r}")
        if ks in (23, 24, 25):
            for r in range(0, 16, 2):
                e(f"v_cvt_pk_bf16_f32 v{208+r}, v{192+r}, v{193+r}")
            for r in range(0, 16, 2):
                e(f"v_and_b32 v{193+r}, 0xffff0000, v{208+r}")
                e(f"v_lshlrev_b32 v{192+r}, 16, v{208+r}")
            for r in range(16):
                if ks == 23: e(f"v_mul_f32 v{192+r}, v{192+r}, v{48+r}")
                elif ks == 24: e(f"v_mul_f32 v{192+r}, v{192+r}, v8")
                else: e(f"v_add_f32 v{YACC+r}, v{YACC+r}, v{192+r}")
        if ks == 26:
            for r in range(16): e(f"v_mul_f32 v{48+r}, v{48+r}, v{48+r}")
    if stamps: e("s_memrealtime s[92:93]")
    e("s_nop 7")
    e("s_nop 3")
    w = xwrite(1, OACC)
    for s in w[4:8] + w[0:4] + w[8:12]: e(s)
    e("s_waitcnt lgkmcnt(0)")
    e("s_barrier")
    for s in xread(1): e(s)
    e("s_mov_b32 s60, 0xbfb8aa3b")
    e("s_mov_b32 s61, 0xbfb8aa3b")
    e("s_waitcnt lgkmcnt(8)")
    for r in range(0, 16, 2): e(f"v_pk_add_f32 v[{OACC+r}:{OACC+r+1}], v[{OACC+r}:{OACC+r+1}], v[{192+r}:{193+r}]")
    e("s_waitcnt lgkmcnt(0)")
    for r in range(0, 16, 2): e(f"v_pk_add_f32 v[{208+r}:{209+r}], v[{208+r}:{209+r}], v[{224+r}:{225+r}]")
    for r in range(0, 16, 2): e(f"v_pk_add_f32 v[{OACC+r}:{OACC+r+1}], v[{OACC+r}:{OACC+r+1}], v[{208+r}:{209+r}]")
    for r in range(0, 16, 2): e(f"v_pk_mul_f32 v[{OACC+r}:{OACC+r+1}], v[{OACC+r}:{OACC+r+1}], v[{48+r}:{49+r}]")
    for r in range(0, 16, 2): e(f"v_cvt_pk_bf16_f32 v{208+r}, v{OACC+r}, v{OACC+r+1}")
    for r in range(0, 16, 2):
        e(f"v_and_b32 v{OACC+r+1}, 0xffff0000, v{208+r}")
        e(f"v_lshlrev_b32 v{OACC+r}, 16, v{208+r}")
    for r in range(0, 16, 2): e(f"v_pk_mul_f32 v[{192+r}:{193+r}], v[{OACC+r}:{OACC+r+1}], s[60:61]")
    for r in range(16): e(f"v_exp_f32 v{192+r}, v{192+r}")
    for r in range(0, 16, 2): e(f"v_pk_add_f32 v[{192+r}:{193+r}], v[{192+r}:{193+r}], 1.0 op_sel_hi:[1,0]")
    for r in range(16): e(f"v_rcp_f32 v{192+r}, v{192+r}")
    for r in range(0, 16, 2): e(f"v_pk_mul_f32 v[{192+r}:{193+r}], v[{192+r}:{193+r}], v[{OACC+r}:{OACC+r+1}]")
    for r in range(0, 16, 2): e(f"v_cvt_pk_bf16_f32 v{208+r}, v{192+r}, v{193+r}")
    for r in range(0, 16, 2):
        e(f"v_and_b32 v{193+r}, 0xffff0000, v{208+r}")
        e(f"v_lshlrev_b32 v{192+r}, 16, v{208+r}")
    for r in range(0, 16, 2):
        e(f"v_pk_fma_f32 v[{192+r}:{193+r}], v[{192+r}:{193+r}], v[{YACC+r}:{YACC+r+1}], v[{16+r}:{17+r}]")
        for rr in (r, r + 1):
            so = "0" if rr < 2 else f"s{44 + (rr >> 1)}"
            off = (rr & 1) * 1792
            e(f"buffer_store_dword v{192+rr}, v6, s[32:35], {so} offen" + (f" offset:{off}" if off else ""))
    if stamps:
        e("s_waitcnt vmcnt(0)")
        e("s_memrealtime s[94:95]\ns_memtime s[98:99]")
        e("s_waitcnt lgkmcnt(0)")
        e(f"s_mov_b32 s26, {WS_END + 65536}")
        e("v_mov_b32 v20, s90\nv_mov_b32 v21, s92\nv_mov_b32 v22, s94\ns_sub_u32 s96, s98, s96\nv_mov_b32 v23, s96")
        e("s_lshl_b32 s40, s2, 2\ns_add_u32 s40, s40, s3\ns_lshl_b32 s40, s40, 4")
        e(f"s_add_u32 s40, s40, {WS_END}")
        e("v_mov_b32 v24, 0")
        e("v_cmp_eq_u32 vcc, 0, v0\ns_and_saveexec_b64 s[42:43], vcc")
        e("buffer_store_dwordx4 v[20:23], v24, s[24:27], s40 offen")
    e.label("K2_END")
    e("s_endpgm")
    return khead(name) + e.text(), kd(name, 512, 256)
if __name__ == "__main__":
    import sys
    body, desc = gen_k2(stamps=True, depth=int(sys.argv[2]), exp=sys.argv[3])
    open(sys.argv[1], "w").write(f"; @launch kernel=s5_k2_kernel grid=(224,1,1) block=(256,1,1) lds={K2_LDS}\n.amdgcn_target \"amdgcn-amd-amdhsa--gfx950\"\n" + body + desc)
```

```python
import numpy as np
WS_A = 0
A_BYTES = 32 * 4 * 42 * 2048
WS_B = WS_A + A_BYTES
B_BYTES = 7 * 4 * 42 * 2048
WS_ST = WS_B + B_BYTES
ST_BYTES = 2048 * 8
WS_AGG = WS_ST + ST_BYTES
AGG_BYTES = 14 * 16 * 256
WS_CS = WS_AGG + AGG_BYTES
CS_BYTES = 14 * 1024
WS_END = WS_CS + CS_BYTES

def tau(i):
    return 16 * ((i >> 2) & 1) + 4 * (i >> 3) + (i & 3)

def build_ws(d, r, f2bf):
    hh = f2bf(r["hh"])
    hr = f2bf(r["hr"]); hi = f2bf(r["hi"])
    A = np.zeros((32, 4, 42, 2, 64, 8), np.uint16)
    B = np.zeros((7, 4, 42, 2, 64, 8), np.uint16)
    lane = np.arange(64); li = lane & 31; hb = lane >> 5
    j8 = np.arange(8)
    Wd = d["B_W_down"]; Cre = d["A_C_re"]; Cim = d["A_C_im"]
    taus = np.array([tau(i) for i in range(32)])
    for w in range(4):
        for pos in range(42):
            if pos < 14:
                s = pos; ky = 4 * s + w
                p = 8 * ky + 4 * hb[:, None] + (j8[None] >> 1)
                isim = (j8 & 1)[None].repeat(64, 0)
                for rt64 in range(32):
                    for h in range(2):
                        t = rt64 * 64 + h * 32 + taus[li]
                        A[rt64, w, pos, h] = np.where(isim == 1, hi[t[:, None], p], hr[t[:, None], p])
                for ct in range(7):
                    for h in range(2):
                        dd = ct * 64 + h * 32 + li
                        B[ct, w, pos, h] = np.where(isim == 1, Cim[dd[:, None], p], Cre[dd[:, None], p])
            else:
                s = (pos - 14) >> 1; ps = (pos - 14) & 1
                j = 4 * ps + w
                f = 128 * s + 16 * j + 8 * (j8[None] >> 2) + 4 * hb[:, None] + (j8[None] & 3)
                for rt64 in range(32):
                    for h in range(2):
                        t = rt64 * 64 + h * 32 + taus[li]
                        A[rt64, w, pos, h] = hh[t[:, None], f]
                for ct in range(7):
                    for h in range(2):
                        dd = ct * 64 + h * 32 + li
                        B[ct, w, pos, h] = Wd[f, dd[:, None]]
    st = np.concatenate([r["m"], r["rstd"]]).astype(np.float32)
    return A, B, st
```

```python
import sys
from k1 import *
from k2 import *
stamps = "stamps" in sys.argv
out = sys.argv[1]
b1, d1 = gen_k1(stamps=stamps)
b2, d2 = gen_k2(stamps=stamps)
hdr = open("recurrent_scan__ssm_conv_s5__glu_gated_reglu__prompt.s.ref").read().split("; Override")[0]
txt = hdr + f"; @launch kernel=s5_k1_kernel grid=(252,1,1) block=(512,1,1) lds={K1_LDS}\n; @launch kernel=s5_k2_kernel grid=(224,1,1) block=(256,1,1) lds={K2_LDS}\n"
txt += '.amdgcn_target "amdgcn-amd-amdhsa--gfx950"\n' + b1 + b2 + "ALL_END:\n" + d1 + d2
open(out, "w").write(txt)
```

```python
class Em:
    def __init__(self):
        self.l = []
        self.vm = []
    def __call__(self, s):
        for line in s.strip("\n").split("\n"):
            self.l.append("    " + line.strip() if not line.strip().endswith(":") else line.strip())
    def label(self, n): self.l.append(n + ":")
    def c(self, s): self.l.append("    ; " + s)
    def text(self): return "\n".join(self.l) + "\n"
    def vmem(self, s, tag):
        self(s); self.vm.append(tag)
    def vm_out(self): return len(self.vm)
    def vm_need(self, tags):
        idx = [i for i, t in enumerate(self.vm) if t in tags]
        if not idx: return None
        return len(self.vm) - 1 - idx[-1]
    def vm_wait(self, tags, extra=""):
        n = self.vm_need(tags)
        if n is None:
            if extra: self("s_waitcnt " + extra)
            return
        assert n <= 63
        self(f"s_waitcnt vmcnt({n}) {extra}".strip())
        self.vm = self.vm[len(self.vm) - n:] if n else []

def srd(e, d, base, nbytes):
    e(f"s_mov_b32 s{d}, s{base}")
    e(f"s_and_b32 s{d+1}, s{base+1}, 0xffff")
    e(f"s_mov_b32 s{d+2}, {nbytes}")
    e(f"s_mov_b32 s{d+3}, 0x20000")

def kd(name, vgpr, accum, sgpr=102):
    return f"""
.section .rodata,"a"
.p2align 6
.amdhsa_kernel {name}
  .amdhsa_next_free_vgpr {vgpr}
  .amdhsa_next_free_sgpr {sgpr}
  .amdhsa_accum_offset {accum}
  .amdhsa_group_segment_fixed_size 0
  .amdhsa_kernarg_size 128
  .amdhsa_user_sgpr_count 2
  .amdhsa_user_sgpr_kernarg_segment_ptr 1
  .amdhsa_system_sgpr_workgroup_id_x 1
  .amdhsa_float_denorm_mode_32 3
.end_amdhsa_kernel
"""
def khead(name):
    return f""".text
.globl {name}
.p2align 8
.type {name},@function
{name}:
"""

class Em2(Em):
    def __init__(self):
        super().__init__(); self.lg = []; self.uid = 0
    def lds(self, s, tag=None):
        self(s); self.lg.append(tag)
    def lg_wait(self, tags):
        idx = [i for i, t in enumerate(self.lg) if t in tags]
        if not idx: return
        n = min(15, len(self.lg) - 1 - idx[-1])
        self(f"s_waitcnt lgkmcnt({n})")
        self.lg = self.lg[len(self.lg) - n:] if n else []
    def lg0(self):
        self("s_waitcnt lgkmcnt(0)"); self.lg = []
    def vm0(self):
        self("s_waitcnt vmcnt(0)"); self.vm = []
    def newlabel(self, p):
        self.uid += 1; return f"{p}_{self.uid}"
```

```python
import numpy as np
WS_AY = 0
AY_W = 14 * 2048
AY_BYTES = 32 * 4 * AY_W
WS_AO = WS_AY + AY_BYTES
AO_W = 28 * 2048
AO_BYTES = 32 * 4 * AO_W
WS_AGG = WS_AO + AO_BYTES
AGG_BYTES = 14 * 16 * 512
WS_CS = WS_AGG + AGG_BYTES
CS_BYTES = 14 * 2048
WS_FH = WS_CS + CS_BYTES
WS_FO = WS_FH + 16 * 4 * 128
WS_EP = WS_FO + 16 * 4 * 128
WS_END = WS_EP + 128

def tau(i):
    return 16 * ((i >> 2) & 1) + 4 * (i >> 3) + (i & 3)

def build_ws(d, r, f2bf):
    hh = f2bf(r["hh"]); hr = f2bf(r["hr"]); hi = f2bf(r["hi"])
    AY = np.zeros((32, 4, 14, 2, 64, 8), np.uint16)
    AO = np.zeros((32, 4, 28, 2, 64, 8), np.uint16)
    lane = np.arange(64); li = lane & 31; hb = lane >> 5
    j8 = np.arange(8)
    taus = np.array([tau(i) for i in range(32)])
    for w in range(4):
        for pos in range(14):
            s = 7 * (w >> 1) + (pos >> 1); kh = pos & 1
            p = 32 * s + 16 * kh + 8 * hb[:, None] + j8[None]
            src = hi if (w & 1) else hr
            for rt64 in range(32):
                for h in range(2):
                    t = rt64 * 64 + h * 32 + taus[li]
                    AY[rt64, w, pos, h] = src[t[:, None], p]
        for pos in range(28):
            s = pos >> 1; jj = pos & 1
            f = 128 * s + 32 * w + 16 * jj + 8 * (j8[None] >> 2) + 4 * hb[:, None] + (j8[None] & 3)
            for rt64 in range(32):
                for h in range(2):
                    t = rt64 * 64 + h * 32 + taus[li]
                    AO[rt64, w, pos, h] = hh[t[:, None], f]
    return AY, AO
```

```python
from asmlib import *
from layout2 import *
LDS_BYTES = 163840
RING = 114688
NR = 5
MISC = RING + NR * 8192
STAT = MISC
CSB = MISC + 1024
CSW = MISC + 2048
SUB = MISC + 3072
FLG = MISC + 7168
LOG2E = 0x3fb8aa3b
SPIN_MAX = 0x200000

def mfma(d, a, b, first=False):
    c = "0" if first else f"v[{d}:{d+15}]"
    return f"v_mfma_f32_32x32x16_bf16 v[{d}:{d+15}], v[{a}:{a+3}], v[{b}:{b+3}], {c}"

class Stamper:
    def __init__(self, on, vreg): self.on = on; self.n = 0; self.v = vreg; self.names = []
    def __call__(self, e, name=""):
        if not self.on: return
        e.lg0()
        e(f"v_writelane_b32 v{self.v}, s80, {self.n}\ns_memtime s[80:81]")
        self.n += 1; self.names.append(name)
        assert self.n <= 60
    def dump(self, e):
        if not self.on: return
        e("s_waitcnt vmcnt(0)")
        self(e, "end"); self(e)
        e("s_memrealtime s[80:81]\ns_waitcnt lgkmcnt(0)")
        e(f"v_writelane_b32 v{self.v}, s96, 62\nv_writelane_b32 v{self.v}, s80, 63\ns_mov_b32 s80, {self.n}\nv_writelane_b32 v{self.v}, s80, 61")
        e(f"s_mov_b32 s22, {WS_END + (1<<20)}")
        e("s_lshl_b32 s82, s2, 3\ns_add_u32 s82, s82, s3\ns_lshl_b32 s82, s82, 8")
        e(f"s_add_u32 s82, s82, {WS_END}")
        e("v_lshlrev_b32 v1, 2, v0")
        e(f"buffer_store_dword v{self.v}, v1, s[20:23], s82 offen")

def spin(e, body, cond_ok, sleep=1):
    l = e.newlabel("SP")
    e("s_mov_b32 s95, 0")
    e.label(l)
    body()
    e(cond_ok)
    e(f"s_cbranch_scc1 {l}_ok")
    if sleep: e(f"s_sleep {sleep}")
    e(f"s_add_u32 s95, s95, 1\ns_cmp_lt_u32 s95, {SPIN_MAX}\ns_cbranch_scc1 {l}")
    e.label(l + "_ok")

def tau_of_lane(e, d, t):
    e(f"v_bfe_u32 v{d}, v0, 2, 1\nv_lshlrev_b32 v{d}, 4, v{d}\nv_bfe_u32 v{t}, v0, 3, 2\nv_lshl_add_u32 v{d}, v{t}, 2, v{d}\nv_and_b32 v{t}, 3, v0\nv_add_u32 v{d}, v{d}, v{t}")

def wd_slot(k):
    idx = k % 13
    if idx < 8: return ("c", (2 + (idx >> 1)) * 16384 + (idx & 1) * 2048)
    return ("r", RING + (idx - 8) * 8192)

def unit_table(e):
    e("s_lshl_b32 s64, s7, 1")
    for u in range(1, 14):
        e(f"s_add_u32 s{64+u}, s{63+u}, 1\ns_cmp_ge_u32 s{64+u}, 14\ns_cselect_b32 s{64+u}, 0, s{64+u}")

def wd_setup(e, va, srd_reg):
    e(f"v_lshrrev_b32 v{va}, 3, v0\nv_mul_u32_u24 v{va}, 0x380, v{va}\nv_bfe_u32 v{va+1}, v0, 4, 1\nv_lshlrev_b32 v{va+1}, 2, v{va+1}")
    e(f"v_and_b32 v1, 7, v0\nv_xor_b32 v1, v1, v{va+1}\nv_lshl_add_u32 v{va}, v1, 4, v{va}\nv_add_u32 v{va+1}, {8*896-1024}, v{va}")
    e(f"s_mul_i32 s88, s4, {32*896}\ns_lshl_b32 s89, s91, 7\ns_add_u32 s88, s88, s89\ns_lshl_b32 s89, s4, 12\ns_lshl_b32 s90, s4, 11")
    srd(e, srd_reg, 56, 1792 * 896)

def wd_dma(e, k, va, srd_reg):
    kind, off = wd_slot(k)
    u, jj = k >> 1, k & 1
    e(f"s_mul_i32 s83, s{64+u}, 114688")
    e(f"s_add_u32 m0, s{89 if kind == 'c' else 90}, {off}")
    e(f"s_add_u32 s83, s83, s88")
    if jj: e(f"s_add_u32 s83, s83, {16*896}")
    e.vmem(f"buffer_load_dwordx4 v{va}, s[{srd_reg}:{srd_reg+3}], s83 offen lds", ("wd", k))
    e.vmem(f"buffer_load_dwordx4 v{va+1}, s[{srd_reg}:{srd_reg+3}], s83 offen offset:1024 lds", ("wd", k))

def gen_fused(name, stamps=False, D0=3, NB=12):
    e = Em2()
    info = {}
    e("s_cmp_ge_u32 s2, 252")
    e("s_cbranch_scc1 K_END")
    if stamps: e("s_memrealtime s[96:97]\ns_memtime s[80:81]")
    e("s_load_dwordx16 s[32:47], s[0:1], 0")
    e("s_load_dwordx16 s[48:63], s[0:1], 64")
    e("v_lshrrev_b32 v1, 6, v0\nv_mov_b32 v2, v0\nv_and_b32 v0, 63, v0\nv_readfirstlane_b32 s3, v1")
    e("s_cmp_ge_u32 s2, 224")
    e("s_cbranch_scc1 K_SPARE")
    e("s_and_b32 s4, s3, 3\ns_and_b32 s8, s2, 7\ns_lshr_b32 s9, s2, 3")
    e("s_and_b32 s5, s8, 3\ns_lshl_b32 s5, s5, 2\ns_and_b32 s10, s9, 3\ns_add_u32 s5, s5, s10")
    e("s_lshr_b32 s85, s8, 2\ns_lshr_b32 s91, s9, 2\ns_mul_i32 s6, s85, 7\ns_add_u32 s6, s6, s91")
    e("s_lshl_b32 s10, s10, 1\ns_add_u32 s7, s91, s10\ns_cmp_ge_u32 s7, 7\ns_cselect_b32 s10, 7, 0\ns_sub_u32 s7, s7, s10")
    e("v_and_b32 v20, 31, v0\nv_lshrrev_b32 v21, 5, v0\nv_bfe_u32 v22, v0, 1, 3\nv_xor_b32 v22, v22, v21\nv_lshlrev_b32 v20, 7, v20")
    e("s_cmp_ge_u32 s3, 4")
    e("s_cbranch_scc1 K_S")

    st = Stamper(stamps, 127)
    e("s_lshl_b32 s64, s7, 7")
    for c in range(1, 7):
        e(f"s_add_u32 s{64+c}, s{63+c}, 128\ns_cmp_ge_u32 s{64+c}, 896\ns_cselect_b32 s{64+c}, 0, s{64+c}")
    e(f"s_lshl_b32 s79, s4, 11\ns_add_u32 s79, s79, {RING}")
    e("v_lshrrev_b32 v8, 3, v0\nv_and_b32 v9, 7, v0\nv_lshrrev_b32 v7, 4, v0\nv_xor_b32 v9, v9, v7\nv_lshlrev_b32 v9, 4, v9\nv_xor_b32 v7, 64, v9")
    e("v_lshlrev_b32 v5, 4, v21\nv_and_b32 v6, 3, v8\nv_add_u32 v5, v5, v6\nv_mul_u32_u24 v5, 0x380, v5\nv_mul_u32_u24 v6, 0x380, v8")
    e("v_add_u32 v1, v5, v9\nv_add_u32 v2, v5, v7\nv_add_u32 v2, 2560, v2\nv_add_u32 v3, 5120, v1\nv_add_u32 v4, 5120, v2")
    e(f"v_add_u32 v5, v6, v9\nv_add_u32 v6, v6, v7\nv_add_u32 v6, {8*896-1024}, v6")
    e("s_lshl_b32 s28, s5, 7\ns_lshl_b32 s29, s4, 5\ns_add_u32 s28, s28, s29\ns_mul_i32 s28, s28, 896")
    e("s_lshl_b32 s29, s6, 5\ns_and_b32 s30, s4, 1\ns_lshl_b32 s30, s30, 4\ns_add_u32 s29, s29, s30\ns_mul_i32 s29, s29, 896")
    e("s_lshl_b32 s30, s4, 12")
    e(f"s_mov_b32 s10, {2048*896}\ns_mov_b32 s11, 0x20000\ns_mov_b32 s14, {448*896}\ns_mov_b32 s15, 0x20000")
    e("s_cmp_lt_u32 s4, 2")
    e("s_waitcnt lgkmcnt(0)")
    e("s_cselect_b32 s12, s38, s40\ns_cselect_b32 s13, s39, s41\ns_mov_b32 s8, s32\ns_and_b32 s9, s33, 0xffff\ns_and_b32 s13, s13, 0xffff")
    def x_dma(c):
        e(f"s_add_u32 m0, s30, {c*16384}\ns_add_u32 s83, s28, s{64+c}")
        for ii in range(4):
            e.vmem(f"buffer_load_dwordx4 v{1+ii}, s[8:11], s83 offen" + (f" offset:{ii*1024}" if ii else "") + " lds", ("x", c))
    def b_dma(c):
        e(f"s_add_u32 m0, s79, {(c % NR)*8192}\ns_add_u32 s83, s29, s{64+c}")
        e.vmem("buffer_load_dwordx4 v5, s[12:15], s83 offen lds", ("x", c))
        e.vmem("buffer_load_dwordx4 v6, s[12:15], s83 offen offset:1024 lds", ("x", c))
    for c in range(D0):
        x_dma(c); b_dma(c)
    srd(e, 20, 62, WS_END)
    e(f"v_mov_b32 v120, 0\ns_mov_b32 s82, {WS_EP}")
    e.vmem("buffer_load_dword v120, v120, s[20:23], s82 offen sc1", "ep")
    srd(e, 16, 52, 448 * 3584)
    srd(e, 24, 54, 448 * 3584)
    e("s_lshl_b32 s31, s6, 8\ns_lshl_b32 s82, s4, 6\ns_add_u32 s31, s31, s82")
    for c in range(7): e(f"s_mul_i32 s{72+c}, s{64+c}, 1792\ns_add_u32 s{72+c}, s{72+c}, s31")
    e("v_lshrrev_b32 v7, 2, v0\nv_mul_u32_u24 v7, 0xe00, v7\nv_and_b32 v8, 3, v0\nv_lshl_add_u32 v7, v8, 4, v7")
    for jj in range(4):
        e(f"v_xor_b32 v{10+jj}, {2*jj}, v22\nv_lshl_add_u32 v{10+jj}, v{10+jj}, 4, v20\nv_add_u32 v{14+jj}, 0x10000, v{10+jj}")
    e("v_bfe_u32 v8, v0, 2, 2\nv_lshl_add_u32 v8, v21, 3, v8\nv_lshlrev_b32 v9, 6, v8")
    e("v_bfe_u32 v8, v0, 4, 1\nv_lshl_add_u32 v9, v8, 5, v9\nv_and_b32 v8, 3, v0\nv_lshl_add_u32 v9, v8, 3, v9\nv_add_u32 v9, s79, v9")
    e("v_lshlrev_b32 v18, 4, v0")
    e(f"s_lshl_b32 s31, s4, 2\ns_add_u32 s31, s31, {FLG}\nv_mov_b32 v19, s31")
    e(f"s_lshl_b32 s31, s4, 8\ns_add_u32 s31, s31, {CSW}\nv_lshl_add_u32 v122, v21, 4, s31")
    tau_of_lane(e, 123, 8)
    e(f"v_lshlrev_b32 v123, 2, v123\nv_add_u32 v123, {STAT}, v123")
    e(f"v_mov_b32 v124, 0\nv_mov_b32 v125, 0\ns_lshl_b32 s31, s4, 9\ns_add_u32 s31, s31, {SUB}\nv_lshl_add_u32 v8, v0, 3, s31")
    e.lds("ds_write_b64 v8, v[124:125]")
    e(f"v_lshlrev_b32 v8, 2, v0\nv_add_u32 v8, {FLG}, v8")
    e.lds("ds_write_b32 v8, v124")
    e(f"s_lshl_b32 s86, s5, 3\ns_add_u32 s86, s86, s4\ns_mul_i32 s86, s86, {AO_W}\ns_lshl_b32 s31, s6, 12\ns_add_u32 s86, s86, s31\ns_add_u32 s86, s86, {WS_AO}\ns_add_u32 s87, s86, {4*AO_W}")
    def w_dma(n, mt):
        c, jj = n >> 2, n & 3
        r = [f"s_add_u32 m0, s79, {((n + 2) % NR)*8192 + mt*1024}"]
        r.append(f"s_add_u32 s83, s{72+c}, {16*jj*3584}" if mt == 0 else "s_nop 0")
        return r, f"buffer_load_dwordx4 v7, s[{16+8*mt}:{19+8*mt}], s83 offen lds"
    def w_issue(n, mt):
        pre, ins = w_dma(n, mt)
        for s in pre: e(s)
        e.vmem(ins, ("w", n))
    FS = [24, 48]
    def reads(n):
        fs = FS[n & 1]; c, jj = n >> 2, n & 3
        xb = (10 + jj) if c < 4 else (14 + jj)
        xo = (c & 3) * 16384
        wo = ((n + 2) % NR) * 8192
        X = lambda rt: (f"ds_read_b128 v[{fs+4*rt}:{fs+4*rt+3}], v{xb} offset:{xo + rt*4096}", ("X", n, rt))
        Wr = lambda mt, u2: (f"ds_read_b64_tr_b16 v[{fs+16+4*mt+2*u2}:{fs+17+4*mt+2*u2}], v9 offset:{wo + mt*1024 + u2*256}", ("W", n))
        return [Wr(0, 0), Wr(0, 1), X(0), Wr(1, 0), Wr(1, 1), X(1), X(2), X(3)]
    e.lg0()
    for sg in range(8):
        tags = {("x", sg)}
        if sg == D0: tags.add("ep")
        e.vm_wait(tags)
        if sg == D0: e("v_readfirstlane_b32 s84, v120\ns_add_u32 s84, s84, 1")
        if sg == 7:
            e.vm_wait({("w", 0)})
            for s, t in reads(0): e.lds(s, t)
        st(e, f"b{sg}")
        e("s_barrier")
        if sg + D0 < 7:
            x_dma(sg + D0); b_dma(sg + D0)
        if sg >= 3:
            w_issue(sg - 3, 0); w_issue(sg - 3, 1)
    CS = 72; T = 104
    e("s_setprio 2")
    for n in range(28):
        fs = FS[n & 1]
        rd = reads(n + 1) if n < 27 else []
        if n == 27:
            rd = [("ds_read_b32 v121, v19 offset:16", "cs")] + [(f"ds_read_b32 v{20+rt}, v123 offset:{rt*128}", "cs") for rt in range(4)]
            rd += [(f"ds_read_b128 v[{CS+16*mt+4*q}:{CS+16*mt+4*q+3}], v122 offset:{mt*128 + q*32}", "cs") for mt in range(2) for q in range(4)]
        if n < 27: e.vm_wait({("w", n + 1)})
        for i in range(8):
            rt, mt = i >> 1, i & 1
            if i == 0: e.lg_wait({("W", n), ("X", n, 0)})
            elif mt == 0: e.lg_wait({("X", n, rt)})
            e(mfma(128 + 64*mt + 16*rt, fs + 16 + 4*mt, fs + 4*rt, n == 0))
            k = 1 if n < 27 else 2
            for s, t in rd[:k]: e.lds(s, t)
            rd = rd[k:]
            if n + 5 < 28 and i in (2, 5): w_issue(n + 5, 0 if i == 2 else 1)
            if i == 6 and (n & 3) == 3:
                e(f"v_mov_b32 v126, {(n >> 2) + 1}")
                e.lds("ds_write_b32 v19, v126")
        assert not rd
        if stamps and (n & 3) == 3: st(e, f"k{n}")
    e.lg0()
    e("v_readfirstlane_b32 s82, v121\ns_cmp_lg_u32 s82, 0\ns_cbranch_scc1 K_csok")
    def body():
        e("ds_read_b32 v121, v19 offset:16")
        for rt in range(4): e(f"ds_read_b32 v{20+rt}, v123 offset:{rt*128}")
        for mt in range(2):
            for q in range(4): e(f"ds_read_b128 v[{CS+16*mt+4*q}:{CS+16*mt+4*q+3}], v122 offset:{mt*128 + q*32}")
        e("s_waitcnt lgkmcnt(0)\nv_readfirstlane_b32 s82, v121")
    spin(e, body, "s_cmp_lg_u32 s82, 0")
    e.label("K_csok")
    st(e, "cs")
    e("s_nop 3")
    for rt in range(4):
        G, U = 128 + 16*rt, 192 + 16*rt
        mp = 20 + (rt & 2)
        sel = ("op_sel:[0,1,0] op_sel_hi:[1,1,1]" if rt & 1 else "op_sel_hi:[1,0,1]") + " neg_lo:[1,0,0] neg_hi:[1,0,0]"
        for h in range(2):
            tt = T + 4 * ((2*rt + h) & 3)
            rs = range(8*h, 8*h + 8, 2)
            for r in rs:
                e(f"v_pk_fma_f32 v[{G+r}:{G+r+1}], v[{CS+r}:{CS+r+1}], v[{mp}:{mp+1}], v[{G+r}:{G+r+1}] {sel}")
                e(f"v_pk_fma_f32 v[{U+r}:{U+r+1}], v[{CS+16+r}:{CS+17+r}], v[{mp}:{mp+1}], v[{U+r}:{U+r+1}] {sel}")
            for r in rs: e(f"v_max_f32 v{G+r}, 0, v{G+r}\nv_max_f32 v{G+r+1}, 0, v{G+r+1}")
            for r in rs: e(f"v_pk_mul_f32 v[{G+r}:{G+r+1}], v[{G+r}:{G+r+1}], v[{U+r}:{U+r+1}]")
            for r in rs: e(f"v_cvt_pk_bf16_f32 v{tt + ((r - 8*h) >> 1)}, v{G+r}, v{G+r+1}")
            e.vmem(f"buffer_store_dwordx4 v[{tt}:{tt+3}], v18, s[20:23], s{86 + (rt >> 1)} offen offset:{h*2048 + (rt & 1)*1024} sc1", "hh")
    st(e, "epi")
    e("s_setprio 0")
    unit_table(e)
    wd_setup(e, 2, 12)
    for k in range(8, 13): wd_dma(e, k, 2, 12)
    e("v_bfe_u32 v8, v0, 2, 2\nv_lshrrev_b32 v9, 5, v0\nv_lshl_add_u32 v9, v9, 2, v8\nv_lshlrev_b32 v9, 7, v9")
    e("s_and_b32 s31, s4, 1\nv_lshrrev_b32 v8, 1, v8\nv_xor_b32 v8, s31, v8\nv_lshl_add_u32 v9, v8, 6, v9")
    e("v_bfe_u32 v8, v0, 4, 1\nv_lshl_add_u32 v9, v8, 5, v9\nv_and_b32 v8, 3, v0\nv_lshl_add_u32 v9, v8, 3, v9\nv_xor_b32 v8, 64, v9")
    e(f"s_add_u32 s31, s89, 32768\nv_add_u32 v4, s31, v9\nv_add_u32 v5, s31, v8\nv_add_u32 v6, s79, v9\nv_add_u32 v7, s79, v8")
    e("s_lshr_b32 s31, s4, 1\ns_lshl_b32 s31, s31, 10\nv_add_u32 v10, s31, v18\nv_xor_b32 v11, 0x400, v10")
    e(f"s_lshl_b32 s92, s5, 1\ns_add_u32 s92, s92, s85\ns_lshl_b32 s86, s92, 2\ns_add_u32 s86, s86, s4\ns_mul_i32 s86, s86, {AO_W}\ns_add_u32 s86, s86, {WS_AO}")
    def breg(k):
        i = k % NB
        return 192 + 8*i if i < 8 else 24 + 8*(i - 8)
    def pull(k):
        kind, off = wd_slot(k)
        base = 4 if kind == "c" else 6
        off -= 32768 if kind == "c" else RING
        r = breg(k)
        for b in range(2):
            for u2 in range(2):
                e.lds(f"ds_read_b64_tr_b16 v[{r+4*b+2*u2}:{r+4*b+2*u2+1}], v{base+b} offset:{off + u2*1024}", ("B", k))
    e.vm_wait({"hh"})
    e(f"s_lshl_b32 s93, s5, 2\ns_add_u32 s93, s93, s4\ns_lshl_b32 s93, s93, 7\ns_add_u32 s93, s93, {WS_FO}")
    e("s_lshl_b32 s31, s6, 2\nv_mov_b32 v8, s31\nv_mov_b32 v9, s84\ns_mov_b64 exec, 1")
    e.vmem("buffer_store_dword v9, v8, s[20:23], s93 offen sc1", "fl")
    e("s_mov_b64 exec, -1")
    st(e, "hhflag")
    def body():
        e("ds_read_b32 v121, v19 offset:32\ns_waitcnt lgkmcnt(0)\nv_readfirstlane_b32 s82, v121")
    spin(e, body, "s_cmp_lg_u32 s82, 0")
    st(e, "wdl")
    for k in range(8): pull(k)
    e.lg0()
    for k in range(8): wd_dma(e, 13 + k, 2, 12)
    for k in range(8, NB):
        e.vm_wait({("wd", k)})
        pull(k)
    e.lg0()
    for k in range(8, NB):
        if 13 + k < 28: wd_dma(e, 13 + k, 2, 12)
    e("v_min_u32 v8, 13, v0\nv_lshlrev_b32 v8, 2, v8")
    def body():
        e("buffer_load_dword v9, v8, s[20:23], s93 offen sc1\ns_waitcnt vmcnt(0)\nv_cmp_eq_u32 vcc, s84, v9\ns_nop 1")
    spin(e, body, "s_cmp_eq_u64 vcc, -1", sleep=2)
    e.vm = []
    st(e, "hhseen")
    NA = 8
    def aissue(k):
        u, jj = k >> 1, k & 1
        if jj == 0: e(f"s_lshl_b32 s87, s{64+u}, 12\ns_add_u32 s87, s87, s86")
        r = 56 + 8 * (k % NA)
        for a in range(2):
            e.vmem(f"buffer_load_dwordx4 v[{r+4*a}:{r+4*a+3}], v{10+a}, s[20:23], s87 offen offset:{jj*2048} sc1", ("A", k))
    for k in range(NA): aissue(k)
    XR, MR, RR = 224, 240, 24
    def extras_load():
        srd(e, 16, 58, 2048 * 1792)
        srd(e, 24, 48, 896)
        e("s_lshl_b32 s28, s92, 6\ns_lshr_b32 s29, s4, 1\ns_lshl_b32 s29, s29, 5\ns_add_u32 s28, s28, s29")
        e("s_lshl_b32 s30, s91, 6\ns_and_b32 s31, s4, 1\ns_lshl_b32 s31, s31, 5\ns_add_u32 s30, s30, s31")
        e("v_lshrrev_b32 v12, 5, v0\nv_lshlrev_b32 v12, 4, v12\nv_add_u32 v13, s28, v12\nv_and_b32 v14, 31, v0\nv_add_u32 v14, s30, v14")
        e("v_mul_u32_u24 v13, 0x380, v13\nv_lshlrev_b32 v14, 1, v14\nv_add_u32 v13, v13, v14\nv_lshlrev_b32 v15, 1, v13")
        e(f"s_lshl_b32 s28, s85, 6\ns_add_u32 s28, s28, s29\ns_lshl_b32 s28, s28, 2\ns_add_u32 s28, s28, {STAT}\nv_lshl_add_u32 v12, v12, 2, s28")
        for r in range(16): e(f"v_mov_b32 v{XR+r}, 0")
        e("v_mov_b32 v16, 0")
        for q in range(1, 8): e(f"s_movk_i32 s{32+q}, {q*3584}")
        for r in range(16):
            so = "0" if r < 4 else f"s{32 + (r >> 2)}"
            off = (r & 3) * 896
            e.vmem(f"buffer_load_short_d16_hi v{XR+r}, v13, s[8:11], {so} offen" + (f" offset:{off}" if off else ""), "xv")
        e.vmem("buffer_load_short_d16_hi v16, v14, s[24:27], 0 offen", "xv")
    def extras_stat():
        for q in range(4):
            e.lds(f"ds_read_b128 v[{MR+4*q}:{MR+4*q+3}], v12 offset:{16*q}", "st")
            e.lds(f"ds_read_b128 v[{RR+4*q}:{RR+4*q+3}], v12 offset:{512+16*q}", "st")
    def rnd():
        for r in range(0, 16, 2): e(f"v_cvt_pk_bf16_f32 v{MR+r}, v{MR+r}, v{MR+r+1}")
        for r in range(0, 16, 2): e(f"v_and_b32 v{MR+r+1}, 0xffff0000, v{MR+r}\nv_lshlrev_b32 v{MR+r}, 16, v{MR+r}")
    OACC = 128
    for k in range(28):
        e.vm_wait({("A", k)})
        e.lg_wait({("B", k)})
        ar = 56 + 8 * (k % NA); br = breg(k)
        for (a, b) in ((0, 0), (1, 0), (0, 1), (1, 1)):
            e(mfma(OACC + (2*a + b)*16, ar + 4*a, br + 4*b, k == 0))
        if k + NA < 28: aissue(k + NA)
        if k + NB < 28:
            e.vm_wait({("wd", k + NB)})
            pull(k + NB)
        if k >= 1 and NB + 13 + (k - 1) < 28:
            e.lg_wait({("B", NB + k - 1)})
            wd_dma(e, NB + 13 + k - 1, 2, 12)
        if k == 18: extras_load()
        if k == 22: extras_stat()
        if k == 24:
            e.vm_wait({"xv"}); e.lg_wait({"st"})
            for r in range(16): e(f"v_sub_f32 v{MR+r}, v{XR+r}, v{MR+r}")
            rnd()
        if k == 25:
            for r in range(16): e(f"v_mul_f32 v{MR+r}, v{MR+r}, v{RR+r}")
            rnd()
        if k == 26:
            for r in range(16): e(f"v_mul_f32 v{MR+r}, v{MR+r}, v16")
            rnd()
            for r in range(16): e(f"v_mul_f32 v{RR+r}, v{RR+r}, v{RR+r}")
        if k == 27:
            e(f"s_add_u32 s31, s89, 32768\nv_add_u32 v4, s31, v18")
            for sg in (1, 2, 3):
                e(f"s_xor_b32 s31, s4, {sg}\ns_lshl_b32 s31, s31, 12\ns_add_u32 s31, s31, {(1+sg)*16384}\nv_add_u32 v{4+sg}, s31, v18")
            e("v_add_u32 v8, s89, v18")
    st(e, "oloop")
    for sg in (2, 1, 3):
        for g in range(4):
            a = OACC + sg*16 + g*4
            e(f"ds_write_b128 v4, v[{a}:{a+3}] offset:{(sg-1)*16384 + g*1024}")
    e.lg0()
    e("s_barrier")
    st(e, "fbar")
    PB = 56; YR = 104
    for sg in (1, 2, 3):
        for g in range(4): e(f"ds_read_b128 v[{PB+(sg-1)*16+4*g}:{PB+(sg-1)*16+4*g+3}], v{4+sg} offset:{g*1024}")
    for g in range(4): e(f"ds_read_b128 v[{YR+4*g}:{YR+4*g+3}], v8 offset:{g*1024}")
    e("s_mov_b32 s28, 0xbfb8aa3b\ns_mov_b32 s29, 0xbfb8aa3b")
    pk = lambda op, d, a, b, x="": e(f"v_pk_{op}_f32 v[{d}:{d+1}], v[{a}:{a+1}], {b} {x}".rstrip())
    R2 = range(0, 16, 2)
    e("s_waitcnt lgkmcnt(12)")
    for r in R2: pk("add", OACC+r, OACC+r, f"v[{PB+r}:{PB+r+1}]")
    e("s_waitcnt lgkmcnt(4)")
    for r in R2: pk("add", PB+16+r, PB+16+r, f"v[{PB+32+r}:{PB+33+r}]")
    for r in R2: pk("add", OACC+r, OACC+r, f"v[{PB+16+r}:{PB+17+r}]")
    for r in R2: pk("mul", OACC+r, OACC+r, f"v[{RR+r}:{RR+r+1}]")
    for r in R2: e(f"v_cvt_pk_bf16_f32 v{OACC+r}, v{OACC+r}, v{OACC+r+1}")
    for r in R2: e(f"v_and_b32 v{OACC+r+1}, 0xffff0000, v{OACC+r}\nv_lshlrev_b32 v{OACC+r}, 16, v{OACC+r}")
    for r in R2: pk("mul", PB+r, OACC+r, "s[28:29]")
    for r in range(16): e(f"v_exp_f32 v{PB+r}, v{PB+r}")
    e("s_waitcnt lgkmcnt(0)")
    for r in R2: pk("add", YR+r, YR+r, f"v[{MR+r}:{MR+r+1}]")
    for r in R2: pk("add", PB+r, PB+r, "1.0", "op_sel_hi:[1,0]")
    for r in range(16): e(f"v_rcp_f32 v{PB+r}, v{PB+r}")
    for r in R2: pk("mul", PB+r, PB+r, f"v[{OACC+r}:{OACC+r+1}]")
    for r in R2: e(f"v_cvt_pk_bf16_f32 v{PB+r}, v{PB+r}, v{PB+r+1}")
    for r in R2: e(f"v_and_b32 v{PB+r+1}, 0xffff0000, v{PB+r}\nv_lshlrev_b32 v{PB+r}, 16, v{PB+r}")
    for r in R2:
        e(f"v_pk_fma_f32 v[{PB+r}:{PB+r+1}], v[{PB+r}:{PB+r+1}], v[{YR+r}:{YR+r+1}], v[{XR+r}:{XR+r+1}]")
        for rr in (r, r + 1):
            so = "0" if rr < 2 else f"s{32 + (rr >> 1)}"
            off = (rr & 1) * 1792
            e(f"buffer_store_dword v{PB+rr}, v15, s[16:19], {so} offen" + (f" offset:{off}" if off else ""))
    e("s_cmp_lg_u32 s5, 15\ns_cbranch_scc1 K_nobump\ns_or_b32 s28, s6, s4\ns_cmp_lg_u32 s28, 0\ns_cbranch_scc1 K_nobump")
    e(f"v_mov_b32 v8, 0\nv_mov_b32 v9, s84\ns_mov_b32 s28, {WS_EP}\ns_mov_b64 exec, 1")
    e("buffer_store_dword v9, v8, s[20:23], s28 offen sc1")
    e("s_mov_b64 exec, -1")
    e.label("K_nobump")
    st.dump(e); info["F"] = st.names
    e("s_endpgm")

    e.vm = []; e.lg = []
    e.label("K_S")
    st = Stamper(stamps, 143)
    e("s_setprio 3")
    e("v_and_b32 v1, 31, v0\ns_lshl_b32 s30, s6, 5\nv_add_u32 v1, s30, v1\nv_lshlrev_b32 v1, 1, v1")
    e("v_mov_b32 v2, 0\nv_mov_b32 v3, 0\nv_mov_b32 v4, 0\nv_mov_b32 v8, 0")
    e("s_getpc_b64 s[28:29]")
    e.label("K_PC")
    e(f"s_sub_u32 s28, s28, K_PC-{name}\ns_subb_u32 s29, s29, 0")
    e(f"s_lshl_b32 s30, s4, 13\nv_lshlrev_b32 v5, 7, v0\nv_add_u32 v5, s30, v5\nv_min_u32 v5, ALL_END-{name}-4, v5")
    e.vmem("global_load_dword v250, v5, s[28:29]", "code")
    e("s_lshl_b32 s31, s4, 12\nv_add_u32 v23, s31, v20")
    e(f"v_add_u32 v24, {RING}, v20\ns_lshl_b32 s31, s4, 1")
    for jj in range(4):
        e(f"s_add_u32 s30, s31, {2*jj}\ns_and_b32 s30, s30, 6")
        e(f"v_xor_b32 v5, s30, v22\nv_lshl_add_u32 v{10+jj}, v5, 4, v23\nv_add_u32 v{14+jj}, 0x10000, v{10+jj}\nv_lshl_add_u32 v{168+jj}, v5, 4, v24")
    e(f"s_mov_b32 s22, {WS_END}\ns_mov_b32 s23, 0x20000\ns_mov_b32 s82, {WS_EP}")
    e("s_waitcnt lgkmcnt(0)")
    e.vmem("global_load_short_d16_hi v2, v1, s[34:35]", "par")
    e.vmem("global_load_short_d16_hi v3, v1, s[36:37]", "par")
    e.vmem("global_load_short_d16_hi v4, v1, s[46:47]", "par")
    e("s_mov_b32 s20, s62\ns_and_b32 s21, s63, 0xffff")
    e.vmem("buffer_load_dword v8, v8, s[20:23], s82 offen sc1", "par")
    e("s_mov_b32 s94, 0x3f803f80")
    for r in (32, 33, 34, 35): e(f"v_mov_b32 v{r}, 0")
    unit_table(e)
    wd_setup(e, 136, 24)
    e("s_bitcmp1_b32 s4, 0\ns_cselect_b32 s16, s44, s42\ns_cselect_b32 s17, s45, s43")
    e(f"s_and_b32 s17, s17, 0xffff\ns_mov_b32 s18, {448*896}\ns_mov_b32 s19, 0x20000")
    e(f"v_mov_b32 v18, {FLG}\nv_mov_b32 v19, 1")
    e.vm_wait({"par"})
    e("v_readfirstlane_b32 s84, v8\ns_add_u32 s84, s84, 1")
    def consts1():
        e(f"v_mul_f32 v4, {LOG2E}, v4\nv_exp_f32 v4, v4\ns_nop 0\nv_cvt_pk_bf16_f32 v4, v4, v4\nv_and_b32 v4, 0xffff0000, v4")
        e(f"v_mul_f32 v5, v4, v2\nv_mul_f32 v6, v4, v3\nv_mul_f32 v5, {LOG2E}, v5\nv_exp_f32 v5, v5")
        e("v_mul_f32 v6, 0.15915494, v6\nv_rndne_f32 v9, v6\nv_sub_f32 v6, v6, v9\nv_cos_f32 v22, v6\nv_sin_f32 v23, v6\ns_nop 0")
        e("v_mul_f32 v22, v22, v5\nv_mul_f32 v23, v23, v5")
        e("v_mul_f32 v5, v2, v2\nv_fma_f32 v5, v3, v3, v5\nv_rcp_f32 v5, v5\nv_add_f32 v6, -1.0, v22")
        e("v_mul_f32 v30, v6, v2\nv_fma_f32 v30, v23, v3, v30\nv_mul_f32 v31, v23, v2\nv_fma_f32 v31, -v6, v3, v31")
        e("v_add_f32 v5, v5, v5\nv_mul_f32 v30, v30, v5\nv_mul_f32 v31, v31, v5")
        def csq(d, s):
            e(f"v_mul_f32 v9, v{s}, v{s+1}\nv_mul_f32 v{d}, v{s}, v{s}\nv_fma_f32 v{d}, -v{s+1}, v{s+1}, v{d}\nv_add_f32 v{d+1}, v9, v9")
        def cmul_ip(d, a):
            e(f"v_mul_f32 v9, v{d}, v{a+1}\nv_mul_f32 v{d}, v{d}, v{a}\nv_fma_f32 v{d}, -v{d+1}, v{a+1}, v{d}\nv_fma_f32 v{d+1}, v{d+1}, v{a}, v9")
        csq(24, 22); csq(24, 24); csq(24, 24); csq(24, 24)
        e("v_cmp_lt_u32 vcc, 31, v0\ns_nop 1\nv_cndmask_b32 v28, 1.0, v24, vcc\nv_cndmask_b32 v29, 0, v25, vcc")
        csq(26, 24)
        e("s_bitcmp1_b32 s4, 0\ns_cbranch_scc0 K_pw1")
        cmul_ip(28, 26)
        e.label("K_pw1")
        csq(26, 26)
        e("s_bitcmp1_b32 s4, 1\ns_cbranch_scc0 K_pw2")
        cmul_ip(28, 26)
        e.label("K_pw2")
        csq(26, 26)
    consts1()
    UR, UI = 40, 56
    SF = [72, 172]
    def dots(fs):
        for j in range(4):
            for q in range(4):
                e(f"v_dot2c_f32_bf16 v33, v{fs+12*j+q}, v{fs+12*j+q}\nv_dot2c_f32_bf16 v32, s94, v{fs+12*j+q}")
        for q in range(4):
            e(f"v_dot2c_f32_bf16 v34, s94, v{fs+4+q}\nv_dot2c_f32_bf16 v35, s94, v{fs+8+q}")
    for sg in range(7):
        st(e, f"b{sg}")
        e("s_barrier")
        fs = SF[sg & 1]
        for j in range(4):
            xb = (10 + j) if sg < 4 else (14 + j)
            e(f"ds_read_b128 v[{fs+12*j}:{fs+12*j+3}], v{xb} offset:{(sg & 3)*16384}")
            e(f"ds_read_b128 v[{fs+12*j+4}:{fs+12*j+7}], v{168+j} offset:{(sg % NR)*8192}")
            e(f"ds_read_b128 v[{fs+12*j+8}:{fs+12*j+11}], v{168+j} offset:{(sg % NR)*8192+4096}")
        if sg > 0: dots(SF[(sg - 1) & 1])
        if sg == 6:
            e("s_waitcnt lgkmcnt(0)")
            dots(fs)
            st(e, "b7")
            e("s_barrier")
        for j in range(4):
            if sg < 6: e(f"s_waitcnt lgkmcnt({9 - 3*j})")
            e(mfma(UR, fs+12*j, fs+12*j+4, sg == 0 and j == 0))
            e(mfma(UI, fs+12*j, fs+12*j+8, sg == 0 and j == 0))
    e("s_setprio 1")
    gen = [0]
    def ssync(extra=None):
        gen[0] += 1
        e("s_mov_b64 exec, 1\nds_add_u32 v18, v19 offset:48\ns_mov_b64 exec, -1")
        def body():
            e("ds_read_b32 v1, v18 offset:48")
            if extra: extra()
            e("s_waitcnt lgkmcnt(0)\nv_readfirstlane_b32 s82, v1")
        spin(e, body, f"s_cmp_ge_u32 s82, {4*gen[0]}", sleep=0)
        e.lg = []
    def wait_prog(n):
        def body():
            e("ds_read_b128 v[4:7], v18\ns_waitcnt lgkmcnt(0)\nv_min_u32 v4, v4, v5\nv_min3_u32 v4, v4, v6, v7\ns_nop 0\nv_readfirstlane_b32 s82, v4")
        spin(e, body, f"s_cmp_ge_u32 s82, {n}", sleep=1)
        e.lg = []
    e("v_mov_b32 v1, v32\nv_mov_b32 v2, v33\ns_nop 1")
    e("v_permlane32_swap_b32 v32, v1\nv_permlane32_swap_b32 v33, v2\nv_permlane32_swap_b32 v34, v35\ns_nop 1")
    e("v_add_f32 v34, v34, v35\nv_add_f32 v32, v32, v1\nv_add_f32 v33, v33, v2")
    e(f"s_lshl_b32 s30, s4, 2\ns_add_u32 s30, s30, {CSB}\nv_lshl_add_u32 v2, v0, 4, s30")
    e("ds_write_b32 v2, v34")
    e("v_mul_f32 v32, 0x3b124925, v32\nv_mul_f32 v33, 0x3b124925, v33")
    e("v_fma_f32 v33, -v32, v32, v33\nv_max_f32 v33, 0, v33\nv_cvt_pk_bf16_f32 v1, v33, v32")
    e("v_and_b32 v32, 0xffff0000, v1\nv_lshlrev_b32 v33, 16, v1\nv_add_f32 v33, 0x3727c5ac, v33")
    e("v_cvt_pk_bf16_f32 v33, v33, v33\nv_and_b32 v33, 0xffff0000, v33\nv_sqrt_f32 v33, v33")
    tau_of_lane(e, 1, 2)
    e("v_cvt_pk_bf16_f32 v33, v33, v33\nv_and_b32 v33, 0xffff0000, v33\nv_rcp_f32 v33, v33")
    e(f"s_lshl_b32 s30, s4, 7\ns_add_u32 s30, s30, {STAT}\nv_lshl_add_u32 v1, v1, 2, s30\nv_cmp_lt_u32 vcc, 31, v0")
    e("v_lshl_add_u32 v2, v21, 9, v1\nv_lshl_add_u32 v3, v21, 6, s30")
    e("v_cndmask_b32 v32, v32, v33, vcc")
    e("ds_write_b32 v2, v32")
    M, R = 72, 88
    for q in range(4):
        e(f"ds_read_b128 v[{M+4*q}:{M+4*q+3}], v3 offset:{16*q}\nds_read_b128 v[{R+4*q}:{R+4*q+3}], v3 offset:{512+16*q}")
    e(f"v_and_b32 v2, 31, v0\nv_lshlrev_b32 v2, 4, v2\nv_add_u32 v2, {CSB}, v2")
    ssync(lambda: e("ds_read_b128 v[104:107], v2\nds_read_b128 v[108:111], v2 offset:512"))
    st(e, "ss1")
    e("v_add_f32 v104, v104, v105\nv_add_f32 v106, v106, v107\nv_add_f32 v108, v108, v109\nv_add_f32 v110, v110, v111\nv_add_f32 v34, v104, v106\nv_add_f32 v35, v108, v110")
    for j in range(16): e(f"v_fma_f32 v{UR+j}, -v{M+j}, v34, v{UR+j}\nv_fma_f32 v{UI+j}, -v{M+j}, v35, v{UI+j}")
    for j in range(16): e(f"v_mul_f32 v{UR+j}, v{UR+j}, v{R+j}\nv_mul_f32 v{UI+j}, v{UI+j}, v{R+j}")
    def step(dr, di, hr, hi, ur, ui, lr=22, li=23):
        e(f"v_fma_f32 v{dr}, v{lr}, v{hr}, v{ur}\nv_fma_f32 v{di}, v{lr}, v{hi}, v{ui}")
        e(f"v_fma_f32 v{dr}, -v{li}, v{hi}, v{dr}\nv_fma_f32 v{di}, v{li}, v{hr}, v{di}")
    for j in range(1, 16):
        src = (UR, UI) if j == 1 else ((36, 37) if j % 2 == 0 else (38, 39))
        dst = (36, 37) if j % 2 == 1 else (38, 39)
        step(dst[0], dst[1], src[0], src[1], UR + j, UI + j)
    e(f"s_lshl_b32 s30, s4, 9\ns_add_u32 s30, s30, {SUB}\nv_lshl_add_u32 v2, v0, 3, s30")
    e(f"ds_write_b64 v2, v[36:37] offset:{7*256}")
    def rdsub():
        for d in range(7): e(f"ds_read_b64 v[{104+2*d}:{105+2*d}], v2 offset:{d*256}")
    ssync(rdsub)
    st(e, "ss2")
    for d in range(1, 7):
        dd = (38, 39) if d == 6 else (104 + 2*d, 105 + 2*d)
        step(dd[0], dd[1], 102 + 2*d, 103 + 2*d, 104 + 2*d, 105 + 2*d, 24, 25)
    e("s_cmp_lg_u32 s4, 3\ns_cbranch_scc1 K_nopub")
    step(104, 106, 38, 39, 36, 37, 24, 25)
    e("v_mov_b32 v105, s84\nv_mov_b32 v107, s84")
    e(f"s_lshl_b32 s30, s6, 4\ns_add_u32 s30, s30, s5\ns_lshl_b32 s30, s30, 9\ns_add_u32 s30, s30, {WS_AGG - 512}")
    e("v_lshlrev_b32 v1, 4, v0\ns_mov_b32 exec_lo, 0")
    e("buffer_store_dwordx4 v[104:107], v1, s[20:23], s30 offen sc1")
    e("s_mov_b32 exec_lo, -1")
    e.label("K_nopub")
    st(e, "pub")
    e("v_lshrrev_b32 v138, 2, v0\nv_mul_u32_u24 v138, 0x380, v138\nv_and_b32 v1, 3, v0\nv_lshrrev_b32 v2, 4, v0\nv_xor_b32 v1, v1, v2\nv_lshl_add_u32 v138, v1, 4, v138")
    e("v_and_b32 v1, 31, v0\nv_bfe_u32 v2, v0, 2, 2\nv_xor_b32 v2, v2, v21\nv_lshlrev_b32 v1, 6, v1\nv_lshl_add_u32 v1, v2, 4, v1")
    e("s_and_b32 s30, s4, 1\ns_lshl_b32 s30, s30, 11\ns_add_u32 s30, s30, s89\nv_add_u32 v139, s30, v1\nv_xor_b32 v140, 32, v139\nv_xor_b32 v141, 0x800, v139\nv_xor_b32 v142, 0x800, v140")
    e(f"s_lshr_b32 s87, s4, 1\ns_mul_i32 s86, s91, {64*896}\ns_mul_i32 s30, s87, 448\ns_add_u32 s86, s86, s30")
    def c_piece(q, dst):
        if q < 6: e(f"s_add_u32 s{dst}, s87, {q}")
        else: e(f"s_cmp_eq_u32 s87, 0\ns_cselect_b32 s{dst}, 6, 0")
    def c_dma(qs):
        for n, q in enumerate(qs):
            c_piece(q, 28 + n)
            e(f"s_lshl_b32 s{28+n}, s{28+n}, 6\ns_add_u32 s{28+n}, s{28+n}, s86")
        for ii in range(4):
            for n, q in enumerate(qs):
                e(f"s_add_u32 m0, s89, {(q & 1)*16384 + ii*1024}")
                e(f"s_add_u32 s83, s{28+n}, {ii*16*896}")
                e.vmem("buffer_load_dwordx4 v138, s[16:19], s83 offen lds", ("c", q))
    def c_pull(qs):
        for q in qs:
            for kh in range(2):
                for b in range(2):
                    r = 144 + 16*q + 8*kh + 4*b
                    e(f"ds_read_b128 v[{r}:{r+3}], v{139 + 2*b + kh} offset:{(q & 1)*16384}")
        e.lg0()
    e(f"s_lshl_b32 s92, s6, 11\ns_lshl_b32 s30, s4, 8\ns_add_u32 s92, s92, s30\ns_add_u32 s92, s92, {WS_CS}")
    e("v_and_b32 v3, 31, v0\nv_lshlrev_b32 v3, 3, v3\nv_lshl_add_u32 v3, v21, 10, v3")
    e.vmem("buffer_load_dwordx2 v[8:9], v3, s[20:23], s92 offen sc1", "cs")
    wait_prog(2)
    st(e, "pr2")
    c_dma([0, 1])
    e.vm_wait({"cs"})
    e("v_cmp_eq_u32 vcc, s84, v9\ns_nop 1\ns_cmp_eq_u64 vcc, -1\ns_cbranch_scc1 K_cs_ok")
    def body():
        e("buffer_load_dwordx2 v[8:9], v3, s[20:23], s92 offen sc1\ns_waitcnt vmcnt(0)\nv_cmp_eq_u32 vcc, s84, v9\ns_nop 1")
    spin(e, body, "s_cmp_eq_u64 vcc, -1", sleep=2)
    e.label("K_cs_ok")
    e(f"s_lshl_b32 s30, s4, 8\ns_add_u32 s30, s30, {CSW}\nv_lshl_add_u32 v1, v0, 2, s30")
    e("ds_write_b32 v1, v8")
    e(f"s_lshl_b32 s30, s4, 2\ns_add_u32 s30, s30, {FLG}\nv_mov_b32 v20, s30")
    e("ds_write_b32 v20, v19 offset:16")
    st(e, "csw")
    e(f"s_lshl_b32 s92, s6, 13\ns_add_u32 s92, s92, {WS_AGG}\ns_add_u32 s93, s92, 4096\nv_and_b32 v3, 31, v0\nv_lshlrev_b32 v3, 4, v3")
    def agg_loads(lbl):
        for j in range(15):
            e(f"s_cmp_le_u32 s5, {j}\ns_cbranch_scc1 {lbl}")
            e(f"buffer_load_dwordx4 v[{72+4*j}:{75+4*j}], v3, s[20:23], s{92 + (j >> 3)} offen offset:{512*(j & 7)} sc1")
        e.label(lbl)
    agg_loads("K_al0")
    e.vm0()
    c_pull([0, 1])
    c_dma([2, 3])
    e("s_mov_b32 s95, 0")
    e.label("K_horner")
    e("v_mov_b32 v36, 0\nv_mov_b32 v37, 0\nv_mov_b32 v1, s84\nv_mov_b32 v2, s84")
    for j in range(15):
        b = 72 + 4*j
        e(f"s_cmp_le_u32 s5, {j}\ns_cbranch_scc1 K_hdone")
        step(b, b + 2, 36, 37, b, b + 2, 26, 27)
        e(f"v_min3_u32 v1, v1, v{b+1}, v{b+3}\nv_max3_u32 v2, v2, v{b+1}, v{b+3}\nv_mov_b32 v36, v{b}\nv_mov_b32 v37, v{b+2}")
    e.label("K_hdone")
    e("v_cmp_eq_u32 vcc, v1, v2\ns_nop 1\ns_cmp_eq_u64 vcc, -1\ns_cbranch_scc1 K_hok")
    e(f"s_add_u32 s95, s95, 1\ns_cmp_ge_u32 s95, {SPIN_MAX}\ns_cbranch_scc1 K_hok\ns_sleep 2")
    agg_loads("K_al1")
    e("s_waitcnt vmcnt(0)\ns_branch K_horner")
    e.label("K_hok")
    st(e, "look")
    step(38, 39, 36, 37, 38, 39, 28, 29)
    for j in range(16):
        src = (38, 39) if j == 0 else (UR + j - 1, UI + j - 1)
        step(UR + j, UI + j, src[0], src[1], UR + j, UI + j)
    e.vm0()
    c_pull([2, 3])
    c_dma([4, 5])
    for j in range(0, 16, 2):
        for x in range(2):
            e(f"v_mul_f32 v{88+x}, v30, v{UR+j+x}\nv_mul_f32 v{90+x}, v30, v{UI+j+x}")
            e(f"v_fma_f32 v{88+x}, -v31, v{UI+j+x}, v{88+x}\nv_fma_f32 v{90+x}, -v31, v{UR+j+x}, -v{90+x}")
        e(f"v_cvt_pk_bf16_f32 v{72+j//2}, v88, v89\nv_cvt_pk_bf16_f32 v{80+j//2}, v90, v91")
    e("s_add_u32 s30, s89, 16384\nv_and_b32 v1, 31, v0\nv_lshlrev_b32 v1, 6, v1\nv_lshl_add_u32 v1, v21, 5, v1\nv_add_u32 v1, s30, v1")
    e("v_bfe_u32 v2, v0, 2, 2\nv_lshl_add_u32 v2, v21, 3, v2\nv_lshlrev_b32 v2, 6, v2\nv_and_b32 v3, 1, v0\nv_lshl_add_u32 v2, v3, 5, v2")
    e("v_bfe_u32 v3, v0, 4, 1\nv_lshl_add_u32 v2, v3, 4, v2\nv_bfe_u32 v3, v0, 1, 1\nv_lshl_add_u32 v2, v3, 3, v2\nv_add_u32 v2, s30, v2\nv_lshlrev_b32 v3, 4, v0")
    e(f"s_lshl_b32 s92, s5, 1\ns_add_u32 s92, s92, s87\ns_lshl_b32 s92, s92, 1\ns_add_u32 s92, s92, s85\ns_mul_i32 s92, s92, {2*AY_W}")
    e(f"s_lshl_b32 s30, s91, 12\ns_add_u32 s92, s92, s30\ns_and_b32 s30, s4, 1\ns_lshl_b32 s30, s30, 10\ns_add_u32 s92, s92, s30\ns_add_u32 s93, s92, {AY_W}")
    e.vm0()
    c_pull([4, 5])
    c_dma([6])
    for mt in range(2):
        e(f"ds_write_b128 v1, v[{72+8*mt}:{75+8*mt}] offset:{mt*2048}\nds_write_b128 v1, v[{76+8*mt}:{79+8*mt}] offset:{mt*2048+16}")
    for mt in range(2):
        for kh in range(2):
            for u2 in range(2):
                r = 88 + 8*mt + 4*kh + 2*u2
                e(f"ds_read_b64_tr_b16 v[{r}:{r+1}], v2 offset:{mt*2048 + kh*1024 + u2*256}")
    e.lg0()
    for mt in range(2):
        for kh in range(2):
            r = 88 + 8*mt + 4*kh
            e.vmem(f"buffer_store_dwordx4 v[{r}:{r+3}], v3, s[20:23], s{92+mt} offen offset:{kh*2048} sc1", "h")
    st(e, "hst")
    wait_prog(4)
    for k in range(4): wd_dma(e, k, 136, 24)
    e.vm_wait({"h"})
    e(f"s_lshl_b32 s30, s5, 2\ns_add_u32 s30, s30, s4\ns_lshl_b32 s30, s30, 7\ns_add_u32 s30, s30, {WS_FH}")
    e("s_lshl_b32 s31, s6, 2\nv_mov_b32 v8, s31\nv_mov_b32 v9, s84\ns_mov_b64 exec, 1")
    e.vmem("buffer_store_dword v9, v8, s[20:23], s30 offen sc1", "fl")
    e("s_mov_b64 exec, -1")
    st(e, "hflag")
    c_pull([6])
    wait_prog(6)
    for k in range(4, 8): wd_dma(e, k, 136, 24)
    e.vm0()
    e("ds_write_b32 v20, v19 offset:32")
    st(e, "wdl")
    e(f"s_lshl_b32 s30, s5, 1\ns_add_u32 s30, s30, s85\ns_lshl_b32 s93, s30, 8\ns_add_u32 s93, s93, {WS_FH}")
    e(f"s_lshl_b32 s92, s30, 2\ns_add_u32 s92, s92, s4\ns_mul_i32 s92, s92, {AY_W}")
    e("s_mul_i32 s31, s87, 7\nv_and_b32 v8, 31, v0\nv_min_u32 v8, 6, v8\nv_add_u32 v8, s31, v8\nv_lshlrev_b32 v8, 2, v8\nv_lshl_add_u32 v8, v21, 7, v8")
    e("s_lshl_b32 s31, s87, 10\nv_add_u32 v10, s31, v3\nv_xor_b32 v11, 0x400, v10")
    def body():
        e("buffer_load_dword v9, v8, s[20:23], s93 offen sc1\ns_waitcnt vmcnt(0)\nv_cmp_eq_u32 vcc, s84, v9\ns_nop 1")
    spin(e, body, "s_cmp_eq_u64 vcc, -1", sleep=2)
    st(e, "hseen")
    free = [24 + 8*i for i in range(6)]
    areg = {}
    nxt = [0]
    def yissue():
        while nxt[0] < 14 and free:
            k = nxt[0]; q, kh = k >> 1, k & 1
            if kh == 0:
                c_piece(q, 28)
                e("s_lshl_b32 s28, s28, 12\ns_add_u32 s28, s28, s92")
            r = free.pop(0); areg[k] = r
            for a in range(2):
                e.vmem(f"buffer_load_dwordx4 v[{r+4*a}:{r+4*a+3}], v{10+a}, s[20:23], s28 offen offset:{kh*2048} sc1", ("A", k))
            nxt[0] += 1
    yissue()
    YACC = 72
    for k in range(14):
        e.vm_wait({("A", k)})
        br = 144 + 8*k
        for (a, b) in ((0, 0), (1, 0), (0, 1), (1, 1)):
            e(mfma(YACC + (2*a + b)*16, areg[k] + 4*a, br + 4*b, k == 0))
        free.append(areg[k]); free.append(br)
        yissue()
    st(e, "yloop")
    wait_prog(7)
    YCH = {1: 0, 2: 16384, 3: 6*16384}
    e("v_add_u32 v8, s89, v3\nv_add_u32 v9, 0x18000, v8")
    for sg in (2, 1, 3):
        for g in range(4):
            a = YACC + sg*16 + g*4
            if sg < 3: e(f"ds_write_b128 v8, v[{a}:{a+3}] offset:{YCH[sg] + g*1024}")
            else: e(f"ds_write_b128 v9, v[{a}:{a+3}] offset:{g*1024}")
    for sg in (1, 2, 3):
        e(f"s_xor_b32 s31, s4, {sg}\ns_lshl_b32 s31, s31, 12\ns_add_u32 s31, s31, {YCH[sg]}\nv_add_u32 v{11+sg}, s31, v3")
    def rdy():
        for sg in (1, 2, 3):
            for g in range(4): e(f"ds_read_b128 v[{144+(sg-1)*16+4*g}:{147+(sg-1)*16+4*g}], v{11+sg} offset:{g*1024}")
    ssync(rdy)
    for r in range(16): e(f"v_add_f32 v{YACC+r}, v{YACC+r}, v{144+r}\nv_add_f32 v{160+r}, v{160+r}, v{176+r}")
    for r in range(16): e(f"v_add_f32 v{YACC+r}, v{YACC+r}, v{160+r}")
    ssync()
    for g in range(4): e(f"ds_write_b128 v8, v[{YACC+4*g}:{YACC+4*g+3}] offset:{g*1024}")
    e.lg0()
    st.dump(e); info["S"] = st.names
    e("s_endpgm")

    e.vm = []; e.lg = []
    e.label("K_SPARE")
    st = Stamper(stamps, 143)
    e("s_sub_u32 s4, s2, 224\ns_lshr_b32 s5, s4, 1\ns_and_b32 s6, s4, 1")
    e("v_lshrrev_b32 v3, 4, v2\nv_and_b32 v4, 15, v2\nv_mul_u32_u24 v5, 0xe00, v3\nv_lshl_add_u32 v5, v4, 4, v5")
    e(f"v_mov_b32 v6, 0\ns_mov_b32 s82, {WS_EP}\ns_lshl_b32 s28, s5, 8")
    e("s_cmp_eq_u32 s6, 0")
    e("s_waitcnt lgkmcnt(0)")
    e("s_cselect_b32 s16, s52, s54\ns_cselect_b32 s17, s53, s55")
    e(f"s_and_b32 s17, s17, 0xffff\ns_mov_b32 s18, {448*3584}\ns_mov_b32 s19, 0x20000")
    srd(e, 20, 62, WS_END)
    e.vmem("buffer_load_dword v6, v6, s[20:23], s82 offen sc1", "ep")
    for i in range(14):
        e.vmem(f"buffer_load_dwordx4 v[{16+4*i}:{19+4*i}], v5, s[16:19], s28 offen", ("cs", i))
        if i < 13: e(f"s_add_u32 s28, s28, {32*3584}")
    for q in range(8): e(f"v_mov_b32 v{8+q}, 0")
    srd(e, 8, 56, 1792 * 896)
    srd(e, 64, 42, 448 * 896)
    srd(e, 68, 44, 448 * 896)
    e("v_lshlrev_b32 v7, 7, v2\ns_mul_i32 s28, s4, 57344\ns_mul_i32 s29, s4, 14336")
    for i in range(14):
        e.vm_wait({("cs", i)})
        if i == 10:
            e.vmem("buffer_load_dword v80, v7, s[8:11], s28 offen", "t")
            e("s_cmp_ge_u32 s3, 2\ns_cbranch_scc1 K_sp1")
            e("buffer_load_dword v81, v7, s[64:67], s29 offen\nbuffer_load_dword v82, v7, s[68:71], s29 offen")
            e.label("K_sp1")
        for q in range(4):
            e(f"v_lshlrev_b32 v72, 16, v{16+4*i+q}\nv_and_b32 v73, 0xffff0000, v{16+4*i+q}\nv_pk_add_f32 v[{8+2*q}:{9+2*q}], v[{8+2*q}:{9+2*q}], v[72:73]")
    e("v_lshlrev_b32 v3, 5, v2")
    e("ds_write_b128 v3, v[8:11]\nds_write_b128 v3, v[12:15] offset:16\ns_waitcnt lgkmcnt(0)")
    st(e, "acc")
    e("s_barrier")
    e("s_cmp_lg_u32 s3, 7\ns_cbranch_scc1 K_sp3")
    e("v_lshlrev_b32 v3, 3, v0\nv_add_u32 v9, 1, v6\nv_add_u32 v11, 1, v6")
    for h in range(2):
        for i in range(16): e(f"ds_read_b64 v[{16+2*i}:{17+2*i}], v3 offset:{(16*h+i)*512}")
        e("s_waitcnt lgkmcnt(0)")
        if h == 0: e("v_mov_b32 v12, 0\nv_mov_b32 v13, 0")
        for i in range(16): e(f"v_pk_add_f32 v[12:13], v[12:13], v[{16+2*i}:{17+2*i}]")
    e(f"v_mov_b32 v8, v12\nv_mov_b32 v10, v13\nv_lshlrev_b32 v3, 4, v0\ns_lshl_b32 s28, s4, 10\ns_add_u32 s28, s28, {WS_CS}")
    e("buffer_store_dwordx4 v[8:11], v3, s[20:23], s28 offen sc1")
    e.label("K_sp3")
    st.dump(e); info["sp"] = st.names
    e.label("K_END")
    e("s_endpgm")
    e.label("ALL_END")
    return khead(name) + e.text(), kd(name, 256, 256), info

if __name__ == "__main__":
    import sys, json
    NAME = "recurrent_scan__ssm_conv_s5__glu_gated_reglu__prompt_kernel"
    stamps = "stamps" in sys.argv
    kw = {}
    for a in sys.argv[2:]:
        if "=" in a:
            k, v = a.split("="); kw[k] = int(v)
    b, d, info = gen_fused(NAME, stamps=stamps, **kw)
    hdr = open("recurrent_scan__ssm_conv_s5__glu_gated_reglu__prompt.s.ref").read().split("; Override")[0]
    txt = hdr + f"; @launch grid=(252,1,1) block=(512,1,1) lds={LDS_BYTES}\n"
    if stamps: txt += "; STAMPS " + json.dumps(info) + "\n"
    txt += '.amdgcn_target "amdgcn-amd-amdhsa--gfx950"\n' + b + d
    open(sys.argv[1], "w").write(txt)
```

```python
from asmlib import *
from layout2 import *
LDS_BYTES = 163840
RING = 114688
NR = 5
MISC = RING + NR * 8192
STAT = MISC
CSB = MISC + 1024
CSW = MISC + 2048
SUB = MISC + 3072
FLG = MISC + 7168
LOG2E = 0x3fb8aa3b
SPIN_MAX = 0x200000

def mfma(d, a, b, first=False):
    c = "0" if first else f"v[{d}:{d+15}]"
    return f"v_mfma_f32_32x32x16_bf16 v[{d}:{d+15}], v[{a}:{a+3}], v[{b}:{b+3}], {c}"

class Stamper:
    def __init__(self, on, vreg): self.on = on; self.n = 0; self.v = vreg; self.names = []
    def __call__(self, e, name=""):
        if not self.on: return
        e.lg0()
        e(f"v_writelane_b32 v{self.v}, s80, {self.n}\ns_memtime s[80:81]")
        self.n += 1; self.names.append(name)
        assert self.n <= 60
    def dump(self, e):
        if not self.on: return
        e("s_waitcnt vmcnt(0)")
        self(e, "end"); self(e)
        e("s_memrealtime s[80:81]\ns_waitcnt lgkmcnt(0)")
        e(f"v_writelane_b32 v{self.v}, s96, 62\nv_writelane_b32 v{self.v}, s80, 63\ns_mov_b32 s80, {self.n}\nv_writelane_b32 v{self.v}, s80, 61")
        e(f"s_mov_b32 s22, {WS_END + (1<<20)}")
        e("s_lshl_b32 s82, s2, 3\ns_add_u32 s82, s82, s3\ns_lshl_b32 s82, s82, 8")
        e(f"s_add_u32 s82, s82, {WS_END}")
        e("v_lshlrev_b32 v1, 2, v0")
        e(f"buffer_store_dword v{self.v}, v1, s[20:23], s82 offen")

def spin(e, body, cond_ok, sleep=1):
    l = e.newlabel("SP")
    e("s_mov_b32 s95, 0")
    e.label(l)
    body()
    e(cond_ok)
    e(f"s_cbranch_scc1 {l}_ok")
    if sleep: e(f"s_sleep {sleep}")
    e(f"s_add_u32 s95, s95, 1\ns_cmp_lt_u32 s95, {SPIN_MAX}\ns_cbranch_scc1 {l}")
    e.label(l + "_ok")

def tau_of_lane(e, d, t):
    e(f"v_bfe_u32 v{d}, v0, 2, 1\nv_lshlrev_b32 v{d}, 4, v{d}\nv_bfe_u32 v{t}, v0, 3, 2\nv_lshl_add_u32 v{d}, v{t}, 2, v{d}\nv_and_b32 v{t}, 3, v0\nv_add_u32 v{d}, v{d}, v{t}")

def wd_slot(k):
    idx = k % 13
    if idx < 8: return ("c", (2 + (idx >> 1)) * 16384 + (idx & 1) * 2048)
    return ("r", RING + (idx - 8) * 8192)

def unit_table(e):
    e("s_lshl_b32 s64, s7, 1")
    for u in range(1, 14):
        e(f"s_add_u32 s{64+u}, s{63+u}, 1\ns_cmp_ge_u32 s{64+u}, 14\ns_cselect_b32 s{64+u}, 0, s{64+u}")

def wd_setup(e, va, srd_reg):
    e(f"v_lshrrev_b32 v{va}, 3, v0\nv_mul_u32_u24 v{va}, 0x380, v{va}\nv_bfe_u32 v{va+1}, v0, 4, 1\nv_lshlrev_b32 v{va+1}, 2, v{va+1}")
    e(f"v_and_b32 v1, 7, v0\nv_xor_b32 v1, v1, v{va+1}\nv_lshl_add_u32 v{va}, v1, 4, v{va}\nv_add_u32 v{va+1}, {8*896-1024}, v{va}")
    e(f"s_mul_i32 s88, s4, {32*896}\ns_lshl_b32 s89, s91, 7\ns_add_u32 s88, s88, s89\ns_lshl_b32 s89, s4, 12\ns_lshl_b32 s90, s4, 11")
    srd(e, srd_reg, 56, 1792 * 896)

def wd_dma(e, k, va, srd_reg):
    kind, off = wd_slot(k)
    u, jj = k >> 1, k & 1
    e(f"s_mul_i32 s83, s{64+u}, 114688")
    e(f"s_add_u32 m0, s{89 if kind == 'c' else 90}, {off}")
    e(f"s_add_u32 s83, s83, s88")
    if jj: e(f"s_add_u32 s83, s83, {16*896}")
    e.vmem(f"buffer_load_dwordx4 v{va}, s[{srd_reg}:{srd_reg+3}], s83 offen lds", ("wd", k))
    e.vmem(f"buffer_load_dwordx4 v{va+1}, s[{srd_reg}:{srd_reg+3}], s83 offen offset:1024 lds", ("wd", k))

def gen_fused(name, stamps=False, D0=3, NB=12, dbg=0):
    e = Em2()
    info = {}
    e("s_cmp_ge_u32 s2, 252")
    e("s_cbranch_scc1 K_END")
    if stamps: e("s_memrealtime s[96:97]\ns_memtime s[80:81]")
    e("s_load_dwordx16 s[32:47], s[0:1], 0")
    e("s_load_dwordx16 s[48:63], s[0:1], 64")
    e("v_lshrrev_b32 v1, 6, v0\nv_mov_b32 v2, v0\nv_and_b32 v0, 63, v0\nv_readfirstlane_b32 s3, v1")
    e("s_cmp_ge_u32 s2, 224")
    e("s_cbranch_scc1 K_SPARE")
    e("s_and_b32 s4, s3, 3\ns_and_b32 s8, s2, 7\ns_lshr_b32 s9, s2, 3")
    e("s_and_b32 s5, s8, 3\ns_lshl_b32 s5, s5, 2\ns_and_b32 s10, s9, 3\ns_add_u32 s5, s5, s10")
    e("s_lshr_b32 s85, s8, 2\ns_lshr_b32 s91, s9, 2\ns_mul_i32 s6, s85, 7\ns_add_u32 s6, s6, s91")
    e("s_lshl_b32 s10, s10, 1\ns_add_u32 s7, s91, s10\ns_cmp_ge_u32 s7, 7\ns_cselect_b32 s10, 7, 0\ns_sub_u32 s7, s7, s10")
    e("v_and_b32 v20, 31, v0\nv_lshrrev_b32 v21, 5, v0\nv_bfe_u32 v22, v0, 1, 3\nv_xor_b32 v22, v22, v21\nv_lshlrev_b32 v20, 7, v20")
    e("s_cmp_ge_u32 s3, 4")
    e("s_cbranch_scc1 K_S")

    st = Stamper(stamps, 127)
    e("s_lshl_b32 s64, s7, 7")
    for c in range(1, 7):
        e(f"s_add_u32 s{64+c}, s{63+c}, 128\ns_cmp_ge_u32 s{64+c}, 896\ns_cselect_b32 s{64+c}, 0, s{64+c}")
    e(f"s_lshl_b32 s79, s4, 11\ns_add_u32 s79, s79, {RING}")
    e("v_lshrrev_b32 v8, 3, v0\nv_and_b32 v9, 7, v0\nv_lshrrev_b32 v7, 4, v0\nv_xor_b32 v9, v9, v7\nv_lshlrev_b32 v9, 4, v9\nv_xor_b32 v7, 64, v9")
    e("v_lshlrev_b32 v5, 4, v21\nv_and_b32 v6, 3, v8\nv_add_u32 v5, v5, v6\nv_mul_u32_u24 v5, 0x380, v5\nv_mul_u32_u24 v6, 0x380, v8")
    e("v_add_u32 v1, v5, v9\nv_add_u32 v2, v5, v7\nv_add_u32 v2, 2560, v2\nv_add_u32 v3, 5120, v1\nv_add_u32 v4, 5120, v2")
    e(f"v_add_u32 v5, v6, v9\nv_add_u32 v6, v6, v7\nv_add_u32 v6, {8*896-1024}, v6")
    e("s_lshl_b32 s28, s5, 7\ns_lshl_b32 s29, s4, 5\ns_add_u32 s28, s28, s29\ns_mul_i32 s28, s28, 896")
    e("s_lshl_b32 s29, s6, 5\ns_and_b32 s30, s4, 1\ns_lshl_b32 s30, s30, 4\ns_add_u32 s29, s29, s30\ns_mul_i32 s29, s29, 896")
    e("s_lshl_b32 s30, s4, 12")
    e(f"s_mov_b32 s10, {2048*896}\ns_mov_b32 s11, 0x20000\ns_mov_b32 s14, {448*896}\ns_mov_b32 s15, 0x20000")
    e("s_cmp_lt_u32 s4, 2")
    e("s_waitcnt lgkmcnt(0)")
    e("s_cselect_b32 s12, s38, s40\ns_cselect_b32 s13, s39, s41\ns_mov_b32 s8, s32\ns_and_b32 s9, s33, 0xffff\ns_and_b32 s13, s13, 0xffff")
    def x_dma(c):
        e(f"s_add_u32 m0, s30, {c*16384}\ns_add_u32 s83, s28, s{64+c}")
        for ii in range(4):
            e.vmem(f"buffer_load_dwordx4 v{1+ii}, s[8:11], s83 offen" + (f" offset:{ii*1024}" if ii else "") + " lds", ("x", c))
    def b_dma(c):
        e(f"s_add_u32 m0, s79, {(c % NR)*8192}\ns_add_u32 s83, s29, s{64+c}")
        e.vmem("buffer_load_dwordx4 v5, s[12:15], s83 offen lds", ("x", c))
        e.vmem("buffer_load_dwordx4 v6, s[12:15], s83 offen offset:1024 lds", ("x", c))
    for c in range(D0):
        x_dma(c); b_dma(c)
    srd(e, 20, 62, WS_END)
    e(f"v_mov_b32 v120, 0\ns_mov_b32 s82, {WS_EP}")
    e.vmem("buffer_load_dword v120, v120, s[20:23], s82 offen sc1", "ep")
    srd(e, 16, 52, 448 * 3584)
    srd(e, 24, 54, 448 * 3584)
    e("s_lshl_b32 s31, s6, 8\ns_lshl_b32 s82, s4, 6\ns_add_u32 s31, s31, s82")
    for c in range(7): e(f"s_mul_i32 s{72+c}, s{64+c}, 1792\ns_add_u32 s{72+c}, s{72+c}, s31")
    e("v_lshrrev_b32 v7, 2, v0\nv_mul_u32_u24 v7, 0xe00, v7\nv_and_b32 v8, 3, v0\nv_lshl_add_u32 v7, v8, 4, v7")
    for jj in range(4):
        e(f"v_xor_b32 v{10+jj}, {2*jj}, v22\nv_lshl_add_u32 v{10+jj}, v{10+jj}, 4, v20\nv_add_u32 v{14+jj}, 0x10000, v{10+jj}")
    e("v_bfe_u32 v8, v0, 2, 2\nv_lshl_add_u32 v8, v21, 3, v8\nv_lshlrev_b32 v9, 6, v8")
    e("v_bfe_u32 v8, v0, 4, 1\nv_lshl_add_u32 v9, v8, 5, v9\nv_and_b32 v8, 3, v0\nv_lshl_add_u32 v9, v8, 3, v9\nv_add_u32 v9, s79, v9")
    e("v_lshlrev_b32 v18, 4, v0")
    e(f"s_lshl_b32 s31, s4, 2\ns_add_u32 s31, s31, {FLG}\nv_mov_b32 v19, s31")
    e(f"s_lshl_b32 s31, s4, 8\ns_add_u32 s31, s31, {CSW}\nv_lshl_add_u32 v122, v21, 4, s31")
    tau_of_lane(e, 123, 8)
    e(f"v_lshlrev_b32 v123, 2, v123\nv_add_u32 v123, {STAT}, v123")
    e(f"v_mov_b32 v124, 0\nv_mov_b32 v125, 0\ns_lshl_b32 s31, s4, 9\ns_add_u32 s31, s31, {SUB}\nv_lshl_add_u32 v8, v0, 3, s31")
    e.lds("ds_write_b64 v8, v[124:125]")
    e(f"v_lshlrev_b32 v8, 2, v0\nv_add_u32 v8, {FLG}, v8")
    e.lds("ds_write_b32 v8, v124")
    e(f"s_lshl_b32 s86, s5, 3\ns_add_u32 s86, s86, s4\ns_mul_i32 s86, s86, {AO_W}\ns_lshl_b32 s31, s6, 12\ns_add_u32 s86, s86, s31\ns_add_u32 s86, s86, {WS_AO}\ns_add_u32 s87, s86, {4*AO_W}")
    def w_dma(n, mt):
        c, jj = n >> 2, n & 3
        r = [f"s_add_u32 m0, s79, {((n + 2) % NR)*8192 + mt*1024}"]
        r.append(f"s_add_u32 s83, s{72+c}, {16*jj*3584}" if mt == 0 else "s_nop 0")
        return r, f"buffer_load_dwordx4 v7, s[{16+8*mt}:{19+8*mt}], s83 offen lds"
    def w_issue(n, mt):
        pre, ins = w_dma(n, mt)
        for s in pre: e(s)
        e.vmem(ins, ("w", n))
    FS = [24, 48]
    def reads(n):
        fs = FS[n & 1]; c, jj = n >> 2, n & 3
        xb = (10 + jj) if c < 4 else (14 + jj)
        xo = (c & 3) * 16384
        wo = ((n + 2) % NR) * 8192
        X = lambda rt: (f"ds_read_b128 v[{fs+4*rt}:{fs+4*rt+3}], v{xb} offset:{xo + rt*4096}", ("X", n, rt))
        Wr = lambda mt, u2: (f"ds_read_b64_tr_b16 v[{fs+16+4*mt+2*u2}:{fs+17+4*mt+2*u2}], v9 offset:{wo + mt*1024 + u2*256}", ("W", n))
        return [Wr(0, 0), Wr(0, 1), X(0), Wr(1, 0), Wr(1, 1), X(1), X(2), X(3)]
    e.lg0()
    for sg in range(8):
        tags = {("x", sg)}
        if sg == D0: tags.add("ep")
        e.vm_wait(tags)
        if sg == D0: e("v_readfirstlane_b32 s84, v120\ns_add_u32 s84, s84, 1")
        if sg == 7:
            e.vm_wait({("w", 0)})
            for s, t in reads(0): e.lds(s, t)
        st(e, f"b{sg}")
        e("s_barrier")
        if sg + D0 < 7:
            x_dma(sg + D0); b_dma(sg + D0)
        if sg >= 3:
            w_issue(sg - 3, 0); w_issue(sg - 3, 1)
    CS = 72; T = 104
    e("s_setprio 2")
    for n in range(28):
        fs = FS[n & 1]
        rd = reads(n + 1) if n < 27 else []
        if n == 27:
            rd = [("ds_read_b32 v121, v19 offset:16", "cs")] + [(f"ds_read_b32 v{20+rt}, v123 offset:{rt*128}", "cs") for rt in range(4)]
            rd += [(f"ds_read_b128 v[{CS+16*mt+4*q}:{CS+16*mt+4*q+3}], v122 offset:{mt*128 + q*32}", "cs") for mt in range(2) for q in range(4)]
        if n < 27: e.vm_wait({("w", n + 1)})
        for i in range(8):
            rt, mt = i >> 1, i & 1
            if i == 0: e.lg_wait({("W", n), ("X", n, 0)})
            elif mt == 0: e.lg_wait({("X", n, rt)})
            e(mfma(128 + 64*mt + 16*rt, fs + 16 + 4*mt, fs + 4*rt, n == 0))
            k = 1 if n < 27 else 2
            for s, t in rd[:k]: e.lds(s, t)
            rd = rd[k:]
            if n + 5 < 28 and i in (2, 5): w_issue(n + 5, 0 if i == 2 else 1)
            if i == 6 and (n & 3) == 3:
                e(f"v_mov_b32 v126, {(n >> 2) + 1}")
                e.lds("ds_write_b32 v19, v126")
        assert not rd
        if stamps and (n & 3) == 3: st(e, f"k{n}")
    e.lg0()
    e("v_readfirstlane_b32 s82, v121\ns_cmp_lg_u32 s82, 0\ns_cbranch_scc1 K_csok")
    def body():
        e("ds_read_b32 v121, v19 offset:16")
        for rt in range(4): e(f"ds_read_b32 v{20+rt}, v123 offset:{rt*128}")
        for mt in range(2):
            for q in range(4): e(f"ds_read_b128 v[{CS+16*mt+4*q}:{CS+16*mt+4*q+3}], v122 offset:{mt*128 + q*32}")
        e("s_waitcnt lgkmcnt(0)\nv_readfirstlane_b32 s82, v121")
    spin(e, body, "s_cmp_lg_u32 s82, 0")
    e.label("K_csok")
    st(e, "cs")
    e("s_nop 3")
    for rt in range(4):
        G, U = 128 + 16*rt, 192 + 16*rt
        mp = 20 + (rt & 2)
        sel = ("op_sel:[0,1,0] op_sel_hi:[1,1,1]" if rt & 1 else "op_sel_hi:[1,0,1]") + " neg_lo:[1,0,0] neg_hi:[1,0,0]"
        for h in range(2):
            tt = T + 4 * ((2*rt + h) & 3)
            rs = range(8*h, 8*h + 8, 2)
            for r in rs:
                e(f"v_pk_fma_f32 v[{G+r}:{G+r+1}], v[{CS+r}:{CS+r+1}], v[{mp}:{mp+1}], v[{G+r}:{G+r+1}] {sel}")
                e(f"v_pk_fma_f32 v[{U+r}:{U+r+1}], v[{CS+16+r}:{CS+17+r}], v[{mp}:{mp+1}], v[{U+r}:{U+r+1}] {sel}")
            for r in rs: e(f"v_max_f32 v{G+r}, 0, v{G+r}\nv_max_f32 v{G+r+1}, 0, v{G+r+1}")
            for r in rs: e(f"v_pk_mul_f32 v[{G+r}:{G+r+1}], v[{G+r}:{G+r+1}], v[{U+r}:{U+r+1}]")
            for r in rs: e(f"v_cvt_pk_bf16_f32 v{tt + ((r - 8*h) >> 1)}, v{G+r}, v{G+r+1}")
            e.vmem(f"buffer_store_dwordx4 v[{tt}:{tt+3}], v18, s[20:23], s{86 + (rt >> 1)} offen offset:{h*2048 + (rt & 1)*1024} sc1", "hh")
    st(e, "epi")
    e("s_setprio 0")
    unit_table(e)
    wd_setup(e, 2, 12)
    for k in range(8, 13): wd_dma(e, k, 2, 12)
    e("v_bfe_u32 v8, v0, 2, 2\nv_lshrrev_b32 v9, 5, v0\nv_lshl_add_u32 v9, v9, 2, v8\nv_lshlrev_b32 v9, 7, v9")
    e("s_and_b32 s31, s4, 1\nv_lshrrev_b32 v8, 1, v8\nv_xor_b32 v8, s31, v8\nv_lshl_add_u32 v9, v8, 6, v9")
    e("v_bfe_u32 v8, v0, 4, 1\nv_lshl_add_u32 v9, v8, 5, v9\nv_and_b32 v8, 3, v0\nv_lshl_add_u32 v9, v8, 3, v9\nv_xor_b32 v8, 64, v9")
    e(f"s_add_u32 s31, s89, 32768\nv_add_u32 v4, s31, v9\nv_add_u32 v5, s31, v8\nv_add_u32 v6, s79, v9\nv_add_u32 v7, s79, v8")
    e("s_lshr_b32 s31, s4, 1\ns_lshl_b32 s31, s31, 10\nv_add_u32 v10, s31, v18\nv_xor_b32 v11, 0x400, v10")
    e(f"s_lshl_b32 s92, s5, 1\ns_add_u32 s92, s92, s85\ns_lshl_b32 s86, s92, 2\ns_add_u32 s86, s86, s4\ns_mul_i32 s86, s86, {AO_W}\ns_add_u32 s86, s86, {WS_AO}")
    def breg(k):
        i = k % NB
        return 192 + 8*i if i < 8 else 24 + 8*(i - 8)
    def pull(k):
        kind, off = wd_slot(k)
        base = 4 if kind == "c" else 6
        off -= 32768 if kind == "c" else RING
        r = breg(k)
        for b in range(2):
            for u2 in range(2):
                e.lds(f"ds_read_b64_tr_b16 v[{r+4*b+2*u2}:{r+4*b+2*u2+1}], v{base+b} offset:{off + u2*1024}", ("B", k))
    e.vm_wait({"hh"})
    e(f"s_lshl_b32 s93, s5, 2\ns_add_u32 s93, s93, s4\ns_lshl_b32 s93, s93, 7\ns_add_u32 s93, s93, {WS_FO}")
    e("s_lshl_b32 s31, s6, 2\nv_mov_b32 v8, s31\nv_mov_b32 v9, s84\ns_mov_b64 exec, 1")
    e.vmem("buffer_store_dword v9, v8, s[20:23], s93 offen sc1", "fl")
    e("s_mov_b64 exec, -1")
    st(e, "hhflag")
    def body():
        e("ds_read_b32 v121, v19 offset:32\ns_waitcnt lgkmcnt(0)\nv_readfirstlane_b32 s82, v121")
    spin(e, body, "s_cmp_lg_u32 s82, 0")
    st(e, "wdl")
    for k in range(8): pull(k)
    e.lg0()
    for k in range(8): wd_dma(e, 13 + k, 2, 12)
    for k in range(8, NB):
        e.vm_wait({("wd", k)})
        pull(k)
    e.lg0()
    for k in range(8, NB):
        if 13 + k < 28: wd_dma(e, 13 + k, 2, 12)
    e("v_min_u32 v8, 13, v0\nv_lshlrev_b32 v8, 2, v8")
    def body():
        e("buffer_load_dword v9, v8, s[20:23], s93 offen sc1\ns_waitcnt vmcnt(0)\nv_cmp_eq_u32 vcc, s84, v9\ns_nop 1")
    spin(e, body, "s_cmp_eq_u64 vcc, -1", sleep=2)
    e.vm = []
    st(e, "hhseen")
    NA = 8
    def aissue(k):
        u, jj = k >> 1, k & 1
        if jj == 0: e(f"s_lshl_b32 s87, s{64+u}, 12\ns_add_u32 s87, s87, s86")
        r = 56 + 8 * (k % NA)
        for a in range(2):
            e.vmem(f"buffer_load_dwordx4 v[{r+4*a}:{r+4*a+3}], v{10+a}, s[20:23], s87 offen offset:{jj*2048} sc1", ("A", k))
    for k in range(NA): aissue(k)
    XR, MR, RR = 224, 240, 24
    def extras_load():
        srd(e, 16, 58, 2048 * 1792)
        srd(e, 24, 48, 896)
        e("s_lshl_b32 s28, s92, 6\ns_lshr_b32 s29, s4, 1\ns_lshl_b32 s29, s29, 5\ns_add_u32 s28, s28, s29")
        e("s_lshl_b32 s30, s91, 6\ns_and_b32 s31, s4, 1\ns_lshl_b32 s31, s31, 5\ns_add_u32 s30, s30, s31")
        e("v_lshrrev_b32 v12, 5, v0\nv_lshlrev_b32 v12, 4, v12\nv_add_u32 v13, s28, v12\nv_and_b32 v14, 31, v0\nv_add_u32 v14, s30, v14")
        e("v_mul_u32_u24 v13, 0x380, v13\nv_lshlrev_b32 v14, 1, v14\nv_add_u32 v13, v13, v14\nv_lshlrev_b32 v15, 1, v13")
        e(f"s_lshl_b32 s28, s85, 6\ns_add_u32 s28, s28, s29\ns_lshl_b32 s28, s28, 2\ns_add_u32 s28, s28, {STAT}\nv_lshl_add_u32 v12, v12, 2, s28")
        for r in range(16): e(f"v_mov_b32 v{XR+r}, 0")
        e("v_mov_b32 v16, 0")
        for q in range(1, 8): e(f"s_movk_i32 s{32+q}, {q*3584}")
        for r in range(16):
            so = "0" if r < 4 else f"s{32 + (r >> 2)}"
            off = (r & 3) * 896
            e.vmem(f"buffer_load_short_d16_hi v{XR+r}, v13, s[8:11], {so} offen" + (f" offset:{off}" if off else ""), "xv")
        e.vmem("buffer_load_short_d16_hi v16, v14, s[24:27], 0 offen", "xv")
    def extras_stat():
        for q in range(4):
            e.lds(f"ds_read_b128 v[{MR+4*q}:{MR+4*q+3}], v12 offset:{16*q}", "st")
            e.lds(f"ds_read_b128 v[{RR+4*q}:{RR+4*q+3}], v12 offset:{512+16*q}", "st")
    def rnd():
        for r in range(0, 16, 2): e(f"v_cvt_pk_bf16_f32 v{MR+r}, v{MR+r}, v{MR+r+1}")
        for r in range(0, 16, 2): e(f"v_and_b32 v{MR+r+1}, 0xffff0000, v{MR+r}\nv_lshlrev_b32 v{MR+r}, 16, v{MR+r}")
    OACC = 128
    for k in range(28):
        e.vm_wait({("A", k)})
        e.lg_wait({("B", k)})
        ar = 56 + 8 * (k % NA); br = breg(k)
        for (a, b) in ((0, 0), (1, 0), (0, 1), (1, 1)):
            e(mfma(OACC + (2*a + b)*16, ar + 4*a, br + 4*b, k == 0))
        if k + NA < 28: aissue(k + NA)
        if k + NB < 28:
            e.vm_wait({("wd", k + NB)})
            pull(k + NB)
        if k >= 1 and NB + 13 + (k - 1) < 28:
            e.lg_wait({("B", NB + k - 1)})
            wd_dma(e, NB + 13 + k - 1, 2, 12)
        if k == 18: extras_load()
        if k == 22: extras_stat()
        if k == 24:
            e.vm_wait({"xv"}); e.lg_wait({"st"})
            for r in range(16): e(f"v_sub_f32 v{MR+r}, v{XR+r}, v{MR+r}")
            rnd()
        if k == 25:
            for r in range(16): e(f"v_mul_f32 v{MR+r}, v{MR+r}, v{RR+r}")
            rnd()
        if k == 26:
            for r in range(16): e(f"v_mul_f32 v{MR+r}, v{MR+r}, v16")
            rnd()
            for r in range(16): e(f"v_mul_f32 v{RR+r}, v{RR+r}, v{RR+r}")
        if k == 27:
            e(f"s_add_u32 s31, s89, 32768\nv_add_u32 v4, s31, v18")
            for sg in (1, 2, 3):
                e(f"s_xor_b32 s31, s4, {sg}\ns_lshl_b32 s31, s31, 12\ns_add_u32 s31, s31, {(1+sg)*16384}\nv_add_u32 v{4+sg}, s31, v18")
            e("v_add_u32 v8, s89, v18")
    st(e, "oloop")
    for sg in (2, 1, 3):
        for g in range(4):
            a = OACC + sg*16 + g*4
            e(f"ds_write_b128 v4, v[{a}:{a+3}] offset:{(sg-1)*16384 + g*1024}")
    e.lg0()
    e("s_barrier")
    st(e, "fbar")
    PB = 56; YR = 104
    for sg in (1, 2, 3):
        for g in range(4): e(f"ds_read_b128 v[{PB+(sg-1)*16+4*g}:{PB+(sg-1)*16+4*g+3}], v{4+sg} offset:{g*1024}")
    for g in range(4): e(f"ds_read_b128 v[{YR+4*g}:{YR+4*g+3}], v8 offset:{g*1024}")
    e("s_mov_b32 s28, 0xbfb8aa3b\ns_mov_b32 s29, 0xbfb8aa3b")
    pk = lambda op, d, a, b, x="": e(f"v_pk_{op}_f32 v[{d}:{d+1}], v[{a}:{a+1}], {b} {x}".rstrip())
    R2 = range(0, 16, 2)
    e("s_waitcnt lgkmcnt(12)")
    for r in R2: pk("add", OACC+r, OACC+r, f"v[{PB+r}:{PB+r+1}]")
    e("s_waitcnt lgkmcnt(4)")
    for r in R2: pk("add", PB+16+r, PB+16+r, f"v[{PB+32+r}:{PB+33+r}]")
    for r in R2: pk("add", OACC+r, OACC+r, f"v[{PB+16+r}:{PB+17+r}]")
    for r in R2: pk("mul", OACC+r, OACC+r, f"v[{RR+r}:{RR+r+1}]")
    for r in R2: e(f"v_cvt_pk_bf16_f32 v{OACC+r}, v{OACC+r}, v{OACC+r+1}")
    for r in R2: e(f"v_and_b32 v{OACC+r+1}, 0xffff0000, v{OACC+r}\nv_lshlrev_b32 v{OACC+r}, 16, v{OACC+r}")
    for r in R2: pk("mul", PB+r, OACC+r, "s[28:29]")
    for r in range(16): e(f"v_exp_f32 v{PB+r}, v{PB+r}")
    e("s_waitcnt lgkmcnt(0)")
    for r in R2: pk("add", YR+r, YR+r, f"v[{MR+r}:{MR+r+1}]")
    for r in R2: pk("add", PB+r, PB+r, "1.0", "op_sel_hi:[1,0]")
    for r in range(16): e(f"v_rcp_f32 v{PB+r}, v{PB+r}")
    for r in R2: pk("mul", PB+r, PB+r, f"v[{OACC+r}:{OACC+r+1}]")
    for r in R2: e(f"v_cvt_pk_bf16_f32 v{PB+r}, v{PB+r}, v{PB+r+1}")
    for r in R2: e(f"v_and_b32 v{PB+r+1}, 0xffff0000, v{PB+r}\nv_lshlrev_b32 v{PB+r}, 16, v{PB+r}")
    for r in R2:
        e(f"v_pk_fma_f32 v[{PB+r}:{PB+r+1}], v[{PB+r}:{PB+r+1}], v[{YR+r}:{YR+r+1}], v[{XR+r}:{XR+r+1}]")
        for rr in (r, r + 1):
            so = "0" if rr < 2 else f"s{32 + (rr >> 1)}"
            off = (rr & 1) * 1792
            e(f"buffer_store_dword v{PB+rr}, v15, s[16:19], {so} offen" + (f" offset:{off}" if off else ""))
    e("s_cmp_lg_u32 s5, 15\ns_cbranch_scc1 K_nobump\ns_or_b32 s28, s6, s4\ns_cmp_lg_u32 s28, 0\ns_cbranch_scc1 K_nobump")
    e(f"v_mov_b32 v8, 0\nv_mov_b32 v9, s84\ns_mov_b32 s28, {WS_EP}\ns_mov_b64 exec, 1")
    e("buffer_store_dword v9, v8, s[20:23], s28 offen sc1")
    e("s_mov_b64 exec, -1")
    e.label("K_nobump")
    st.dump(e); info["F"] = st.names
    if dbg:
        srd(e, 24, 60, 256)
        e("s_cmp_lg_u32 s4, 0\ns_cbranch_scc1 K_nodbg")
        e("v_readlane_b32 s28, v127, 62\nv_readlane_b32 s29, v127, 63\ns_nop 3\ns_not_b32 s28, s28\nv_mov_b32 v4, s28\nv_mov_b32 v5, s29\nv_mov_b32 v6, 0\ns_mov_b64 exec, 1")
        e("buffer_atomic_umax v4, v6, s[24:27], 0 offen sc1\nbuffer_atomic_umax v5, v6, s[24:27], 0 offen offset:4 sc1\ns_mov_b64 exec, -1")
        e("s_cmp_lg_u32 s2, 100\ns_cbranch_scc1 K_nodbg")
        e("v_readlane_b32 s28, v127, 0\ns_nop 3\nv_subrev_u32 v4, s28, v127")
        sel = [st.names.index(n) + 1 for n in ("b0", "b3", "b7", "k3", "k11", "k19", "k27", "epi", "hhflag", "wdl", "hhseen", "oloop", "fbar", "end")]
        for i, ln in enumerate(sel):
            e(f"v_readlane_b32 s28, v4, {ln}\ns_nop 3\nv_mov_b32 v5, s28\nv_mov_b32 v6, {8 + 4*i}\ns_mov_b64 exec, 1\nbuffer_store_dword v5, v6, s[24:27], 0 offen\ns_mov_b64 exec, -1")
        e.label("K_nodbg")
    e("s_endpgm")

    e.vm = []; e.lg = []
    e.label("K_S")
    st = Stamper(stamps, 143)
    e("s_setprio 3")
    e("v_and_b32 v1, 31, v0\ns_lshl_b32 s30, s6, 5\nv_add_u32 v1, s30, v1\nv_lshlrev_b32 v1, 1, v1")
    e("v_mov_b32 v2, 0\nv_mov_b32 v3, 0\nv_mov_b32 v4, 0\nv_mov_b32 v8, 0")
    e("s_getpc_b64 s[28:29]")
    e.label("K_PC")
    e(f"s_sub_u32 s28, s28, K_PC-{name}\ns_subb_u32 s29, s29, 0")
    e(f"s_lshl_b32 s30, s4, 13\nv_lshlrev_b32 v5, 7, v0\nv_add_u32 v5, s30, v5\nv_min_u32 v5, ALL_END-{name}-4, v5")
    e.vmem("global_load_dword v250, v5, s[28:29]", "code")
    e("s_lshl_b32 s31, s4, 12\nv_add_u32 v23, s31, v20")
    e(f"v_add_u32 v24, {RING}, v20\ns_lshl_b32 s31, s4, 1")
    for jj in range(4):
        e(f"s_add_u32 s30, s31, {2*jj}\ns_and_b32 s30, s30, 6")
        e(f"v_xor_b32 v5, s30, v22\nv_lshl_add_u32 v{10+jj}, v5, 4, v23\nv_add_u32 v{14+jj}, 0x10000, v{10+jj}\nv_lshl_add_u32 v{168+jj}, v5, 4, v24")
    e(f"s_mov_b32 s22, {WS_END}\ns_mov_b32 s23, 0x20000\ns_mov_b32 s82, {WS_EP}")
    e("s_waitcnt lgkmcnt(0)")
    e.vmem("global_load_short_d16_hi v2, v1, s[34:35]", "par")
    e.vmem("global_load_short_d16_hi v3, v1, s[36:37]", "par")
    e.vmem("global_load_short_d16_hi v4, v1, s[46:47]", "par")
    e("s_mov_b32 s20, s62\ns_and_b32 s21, s63, 0xffff")
    e.vmem("buffer_load_dword v8, v8, s[20:23], s82 offen sc1", "par")
    e("s_mov_b32 s94, 0x3f803f80")
    for r in (32, 33, 34, 35): e(f"v_mov_b32 v{r}, 0")
    unit_table(e)
    wd_setup(e, 136, 24)
    e("s_bitcmp1_b32 s4, 0\ns_cselect_b32 s16, s44, s42\ns_cselect_b32 s17, s45, s43")
    e(f"s_and_b32 s17, s17, 0xffff\ns_mov_b32 s18, {448*896}\ns_mov_b32 s19, 0x20000")
    e(f"v_mov_b32 v18, {FLG}\nv_mov_b32 v19, 1")
    e.vm_wait({"par"})
    e("v_readfirstlane_b32 s84, v8\ns_add_u32 s84, s84, 1")
    def consts1():
        e(f"v_mul_f32 v4, {LOG2E}, v4\nv_exp_f32 v4, v4\ns_nop 0\nv_cvt_pk_bf16_f32 v4, v4, v4\nv_and_b32 v4, 0xffff0000, v4")
        e(f"v_mul_f32 v5, v4, v2\nv_mul_f32 v6, v4, v3\nv_mul_f32 v5, {LOG2E}, v5\nv_exp_f32 v5, v5")
        e("v_mul_f32 v6, 0.15915494, v6\nv_rndne_f32 v9, v6\nv_sub_f32 v6, v6, v9\nv_cos_f32 v22, v6\nv_sin_f32 v23, v6\ns_nop 0")
        e("v_mul_f32 v22, v22, v5\nv_mul_f32 v23, v23, v5")
        e("v_mul_f32 v5, v2, v2\nv_fma_f32 v5, v3, v3, v5\nv_rcp_f32 v5, v5\nv_add_f32 v6, -1.0, v22")
        e("v_mul_f32 v30, v6, v2\nv_fma_f32 v30, v23, v3, v30\nv_mul_f32 v31, v23, v2\nv_fma_f32 v31, -v6, v3, v31")
        e("v_add_f32 v5, v5, v5\nv_mul_f32 v30, v30, v5\nv_mul_f32 v31, v31, v5")
        def csq(d, s):
            e(f"v_mul_f32 v9, v{s}, v{s+1}\nv_mul_f32 v{d}, v{s}, v{s}\nv_fma_f32 v{d}, -v{s+1}, v{s+1}, v{d}\nv_add_f32 v{d+1}, v9, v9")
        def cmul_ip(d, a):
            e(f"v_mul_f32 v9, v{d}, v{a+1}\nv_mul_f32 v{d}, v{d}, v{a}\nv_fma_f32 v{d}, -v{d+1}, v{a+1}, v{d}\nv_fma_f32 v{d+1}, v{d+1}, v{a}, v9")
        csq(24, 22); csq(24, 24); csq(24, 24); csq(24, 24)
        e("v_cmp_lt_u32 vcc, 31, v0\ns_nop 1\nv_cndmask_b32 v28, 1.0, v24, vcc\nv_cndmask_b32 v29, 0, v25, vcc")
        csq(26, 24)
        e("s_bitcmp1_b32 s4, 0\ns_cbranch_scc0 K_pw1")
        cmul_ip(28, 26)
        e.label("K_pw1")
        csq(26, 26)
        e("s_bitcmp1_b32 s4, 1\ns_cbranch_scc0 K_pw2")
        cmul_ip(28, 26)
        e.label("K_pw2")
        csq(26, 26)
    consts1()
    UR, UI = 40, 56
    SF = [72, 172]
    def dots(fs):
        for j in range(4):
            for q in range(4):
                e(f"v_dot2c_f32_bf16 v33, v{fs+12*j+q}, v{fs+12*j+q}\nv_dot2c_f32_bf16 v32, s94, v{fs+12*j+q}")
        for q in range(4):
            e(f"v_dot2c_f32_bf16 v34, s94, v{fs+4+q}\nv_dot2c_f32_bf16 v35, s94, v{fs+8+q}")
    for sg in range(7):
        st(e, f"b{sg}")
        e("s_barrier")
        fs = SF[sg & 1]
        for j in range(4):
            xb = (10 + j) if sg < 4 else (14 + j)
            e(f"ds_read_b128 v[{fs+12*j}:{fs+12*j+3}], v{xb} offset:{(sg & 3)*16384}")
            e(f"ds_read_b128 v[{fs+12*j+4}:{fs+12*j+7}], v{168+j} offset:{(sg % NR)*8192}")
            e(f"ds_read_b128 v[{fs+12*j+8}:{fs+12*j+11}], v{168+j} offset:{(sg % NR)*8192+4096}")
        if sg > 0: dots(SF[(sg - 1) & 1])
        if sg == 6:
            e("s_waitcnt lgkmcnt(0)")
            dots(fs)
            st(e, "b7")
            e("s_barrier")
        for j in range(4):
            if sg < 6: e(f"s_waitcnt lgkmcnt({9 - 3*j})")
            e(mfma(UR, fs+12*j, fs+12*j+4, sg == 0 and j == 0))
            e(mfma(UI, fs+12*j, fs+12*j+8, sg == 0 and j == 0))
    e("s_setprio 1")
    gen = [0]
    def ssync(extra=None):
        gen[0] += 1
        e("s_mov_b64 exec, 1\nds_add_u32 v18, v19 offset:48\ns_mov_b64 exec, -1")
        def body():
            e("ds_read_b32 v1, v18 offset:48")
            if extra: extra()
            e("s_waitcnt lgkmcnt(0)\nv_readfirstlane_b32 s82, v1")
        spin(e, body, f"s_cmp_ge_u32 s82, {4*gen[0]}", sleep=0)
        e.lg = []
    def wait_prog(n):
        def body():
            e("ds_read_b128 v[4:7], v18\ns_waitcnt lgkmcnt(0)\nv_min_u32 v4, v4, v5\nv_min3_u32 v4, v4, v6, v7\ns_nop 0\nv_readfirstlane_b32 s82, v4")
        spin(e, body, f"s_cmp_ge_u32 s82, {n}", sleep=1)
        e.lg = []
    e("v_mov_b32 v1, v32\nv_mov_b32 v2, v33\ns_nop 1")
    e("v_permlane32_swap_b32 v32, v1\nv_permlane32_swap_b32 v33, v2\nv_permlane32_swap_b32 v34, v35\ns_nop 1")
    e("v_add_f32 v34, v34, v35\nv_add_f32 v32, v32, v1\nv_add_f32 v33, v33, v2")
    e(f"s_lshl_b32 s30, s4, 2\ns_add_u32 s30, s30, {CSB}\nv_lshl_add_u32 v2, v0, 4, s30")
    e("ds_write_b32 v2, v34")
    e("v_mul_f32 v32, 0x3b124925, v32\nv_mul_f32 v33, 0x3b124925, v33")
    e("v_fma_f32 v33, -v32, v32, v33\nv_max_f32 v33, 0, v33\nv_cvt_pk_bf16_f32 v1, v33, v32")
    e("v_and_b32 v32, 0xffff0000, v1\nv_lshlrev_b32 v33, 16, v1\nv_add_f32 v33, 0x3727c5ac, v33")
    e("v_cvt_pk_bf16_f32 v33, v33, v33\nv_and_b32 v33, 0xffff0000, v33\nv_sqrt_f32 v33, v33")
    tau_of_lane(e, 1, 2)
    e("v_cvt_pk_bf16_f32 v33, v33, v33\nv_and_b32 v33, 0xffff0000, v33\nv_rcp_f32 v33, v33")
    e(f"s_lshl_b32 s30, s4, 7\ns_add_u32 s30, s30, {STAT}\nv_lshl_add_u32 v1, v1, 2, s30\nv_cmp_lt_u32 vcc, 31, v0")
    e("v_lshl_add_u32 v2, v21, 9, v1\nv_lshl_add_u32 v3, v21, 6, s30")
    e("v_cndmask_b32 v32, v32, v33, vcc")
    e("ds_write_b32 v2, v32")
    M, R = 72, 88
    for q in range(4):
        e(f"ds_read_b128 v[{M+4*q}:{M+4*q+3}], v3 offset:{16*q}\nds_read_b128 v[{R+4*q}:{R+4*q+3}], v3 offset:{512+16*q}")
    e(f"v_and_b32 v2, 31, v0\nv_lshlrev_b32 v2, 4, v2\nv_add_u32 v2, {CSB}, v2")
    ssync(lambda: e("ds_read_b128 v[104:107], v2\nds_read_b128 v[108:111], v2 offset:512"))
    st(e, "ss1")
    e("v_add_f32 v104, v104, v105\nv_add_f32 v106, v106, v107\nv_add_f32 v108, v108, v109\nv_add_f32 v110, v110, v111\nv_add_f32 v34, v104, v106\nv_add_f32 v35, v108, v110")
    for j in range(16): e(f"v_fma_f32 v{UR+j}, -v{M+j}, v34, v{UR+j}\nv_fma_f32 v{UI+j}, -v{M+j}, v35, v{UI+j}")
    for j in range(16): e(f"v_mul_f32 v{UR+j}, v{UR+j}, v{R+j}\nv_mul_f32 v{UI+j}, v{UI+j}, v{R+j}")
    def step(dr, di, hr, hi, ur, ui, lr=22, li=23):
        e(f"v_fma_f32 v{dr}, v{lr}, v{hr}, v{ur}\nv_fma_f32 v{di}, v{lr}, v{hi}, v{ui}")
        e(f"v_fma_f32 v{dr}, -v{li}, v{hi}, v{dr}\nv_fma_f32 v{di}, v{li}, v{hr}, v{di}")
    for j in range(1, 16):
        src = (UR, UI) if j == 1 else ((36, 37) if j % 2 == 0 else (38, 39))
        dst = (36, 37) if j % 2 == 1 else (38, 39)
        step(dst[0], dst[1], src[0], src[1], UR + j, UI + j)
    e(f"s_lshl_b32 s30, s4, 9\ns_add_u32 s30, s30, {SUB}\nv_lshl_add_u32 v2, v0, 3, s30")
    e(f"ds_write_b64 v2, v[36:37] offset:{7*256}")
    def rdsub():
        for d in range(7): e(f"ds_read_b64 v[{104+2*d}:{105+2*d}], v2 offset:{d*256}")
    ssync(rdsub)
    st(e, "ss2")
    for d in range(1, 7):
        dd = (38, 39) if d == 6 else (104 + 2*d, 105 + 2*d)
        step(dd[0], dd[1], 102 + 2*d, 103 + 2*d, 104 + 2*d, 105 + 2*d, 24, 25)
    e("s_cmp_lg_u32 s4, 3\ns_cbranch_scc1 K_nopub")
    step(104, 106, 38, 39, 36, 37, 24, 25)
    e("v_mov_b32 v105, s84\nv_mov_b32 v107, s84")
    e(f"s_lshl_b32 s30, s6, 4\ns_add_u32 s30, s30, s5\ns_lshl_b32 s30, s30, 9\ns_add_u32 s30, s30, {WS_AGG - 512}")
    e("v_lshlrev_b32 v1, 4, v0\ns_mov_b32 exec_lo, 0")
    e("buffer_store_dwordx4 v[104:107], v1, s[20:23], s30 offen sc1")
    e("s_mov_b32 exec_lo, -1")
    e.label("K_nopub")
    st(e, "pub")
    e("v_lshrrev_b32 v138, 2, v0\nv_mul_u32_u24 v138, 0x380, v138\nv_and_b32 v1, 3, v0\nv_lshrrev_b32 v2, 4, v0\nv_xor_b32 v1, v1, v2\nv_lshl_add_u32 v138, v1, 4, v138")
    e("v_and_b32 v1, 31, v0\nv_bfe_u32 v2, v0, 2, 2\nv_xor_b32 v2, v2, v21\nv_lshlrev_b32 v1, 6, v1\nv_lshl_add_u32 v1, v2, 4, v1")
    e("s_and_b32 s30, s4, 1\ns_lshl_b32 s30, s30, 11\ns_add_u32 s30, s30, s89\nv_add_u32 v139, s30, v1\nv_xor_b32 v140, 32, v139\nv_xor_b32 v141, 0x800, v139\nv_xor_b32 v142, 0x800, v140")
    e(f"s_lshr_b32 s87, s4, 1\ns_mul_i32 s86, s91, {64*896}\ns_mul_i32 s30, s87, 448\ns_add_u32 s86, s86, s30")
    def c_piece(q, dst):
        if q < 6: e(f"s_add_u32 s{dst}, s87, {q}")
        else: e(f"s_cmp_eq_u32 s87, 0\ns_cselect_b32 s{dst}, 6, 0")
    def c_dma(qs):
        for n, q in enumerate(qs):
            c_piece(q, 28 + n)
            e(f"s_lshl_b32 s{28+n}, s{28+n}, 6\ns_add_u32 s{28+n}, s{28+n}, s86")
        for ii in range(4):
            for n, q in enumerate(qs):
                e(f"s_add_u32 m0, s89, {(q & 1)*16384 + ii*1024}")
                e(f"s_add_u32 s83, s{28+n}, {ii*16*896}")
                e.vmem("buffer_load_dwordx4 v138, s[16:19], s83 offen lds", ("c", q))
    def c_pull(qs):
        for q in qs:
            for kh in range(2):
                for b in range(2):
                    r = 144 + 16*q + 8*kh + 4*b
                    e(f"ds_read_b128 v[{r}:{r+3}], v{139 + 2*b + kh} offset:{(q & 1)*16384}")
        e.lg0()
    e(f"s_lshl_b32 s92, s6, 11\ns_lshl_b32 s30, s4, 8\ns_add_u32 s92, s92, s30\ns_add_u32 s92, s92, {WS_CS}")
    e("v_and_b32 v3, 31, v0\nv_lshlrev_b32 v3, 3, v3\nv_lshl_add_u32 v3, v21, 10, v3")
    e.vmem("buffer_load_dwordx2 v[8:9], v3, s[20:23], s92 offen sc1", "cs")
    wait_prog(2)
    st(e, "pr2")
    c_dma([0, 1])
    e.vm_wait({"cs"})
    e("v_cmp_eq_u32 vcc, s84, v9\ns_nop 1\ns_cmp_eq_u64 vcc, -1\ns_cbranch_scc1 K_cs_ok")
    def body():
        e("buffer_load_dwordx2 v[8:9], v3, s[20:23], s92 offen sc1\ns_waitcnt vmcnt(0)\nv_cmp_eq_u32 vcc, s84, v9\ns_nop 1")
    spin(e, body, "s_cmp_eq_u64 vcc, -1", sleep=2)
    e.label("K_cs_ok")
    e(f"s_lshl_b32 s30, s4, 8\ns_add_u32 s30, s30, {CSW}\nv_lshl_add_u32 v1, v0, 2, s30")
    e("ds_write_b32 v1, v8")
    e(f"s_lshl_b32 s30, s4, 2\ns_add_u32 s30, s30, {FLG}\nv_mov_b32 v20, s30")
    e("ds_write_b32 v20, v19 offset:16")
    st(e, "csw")
    e(f"s_lshl_b32 s92, s6, 13\ns_add_u32 s92, s92, {WS_AGG}\ns_add_u32 s93, s92, 4096\nv_and_b32 v3, 31, v0\nv_lshlrev_b32 v3, 4, v3")
    def agg_loads(lbl):
        for j in range(15):
            e(f"s_cmp_le_u32 s5, {j}\ns_cbranch_scc1 {lbl}")
            e(f"buffer_load_dwordx4 v[{72+4*j}:{75+4*j}], v3, s[20:23], s{92 + (j >> 3)} offen offset:{512*(j & 7)} sc1")
        e.label(lbl)
    agg_loads("K_al0")
    e.vm0()
    c_pull([0, 1])
    c_dma([2, 3])
    e("s_mov_b32 s95, 0")
    e.label("K_horner")
    e("v_mov_b32 v36, 0\nv_mov_b32 v37, 0\nv_mov_b32 v1, s84\nv_mov_b32 v2, s84")
    for j in range(15):
        b = 72 + 4*j
        e(f"s_cmp_le_u32 s5, {j}\ns_cbranch_scc1 K_hdone")
        step(b, b + 2, 36, 37, b, b + 2, 26, 27)
        e(f"v_min3_u32 v1, v1, v{b+1}, v{b+3}\nv_max3_u32 v2, v2, v{b+1}, v{b+3}\nv_mov_b32 v36, v{b}\nv_mov_b32 v37, v{b+2}")
    e.label("K_hdone")
    e("v_cmp_eq_u32 vcc, v1, v2\ns_nop 1\ns_cmp_eq_u64 vcc, -1\ns_cbranch_scc1 K_hok")
    e(f"s_add_u32 s95, s95, 1\ns_cmp_ge_u32 s95, {SPIN_MAX}\ns_cbranch_scc1 K_hok\ns_sleep 2")
    agg_loads("K_al1")
    e("s_waitcnt vmcnt(0)\ns_branch K_horner")
    e.label("K_hok")
    st(e, "look")
    step(38, 39, 36, 37, 38, 39, 28, 29)
    for j in range(16):
        src = (38, 39) if j == 0 else (UR + j - 1, UI + j - 1)
        step(UR + j, UI + j, src[0], src[1], UR + j, UI + j)
    e.vm0()
    c_pull([2, 3])
    c_dma([4, 5])
    for j in range(0, 16, 2):
        for x in range(2):
            e(f"v_mul_f32 v{88+x}, v30, v{UR+j+x}\nv_mul_f32 v{90+x}, v30, v{UI+j+x}")
            e(f"v_fma_f32 v{88+x}, -v31, v{UI+j+x}, v{88+x}\nv_fma_f32 v{90+x}, -v31, v{UR+j+x}, -v{90+x}")
        e(f"v_cvt_pk_bf16_f32 v{72+j//2}, v88, v89\nv_cvt_pk_bf16_f32 v{80+j//2}, v90, v91")
    e("s_add_u32 s30, s89, 16384\nv_and_b32 v1, 31, v0\nv_lshlrev_b32 v1, 6, v1\nv_lshl_add_u32 v1, v21, 5, v1\nv_add_u32 v1, s30, v1")
    e("v_bfe_u32 v2, v0, 2, 2\nv_lshl_add_u32 v2, v21, 3, v2\nv_lshlrev_b32 v2, 6, v2\nv_and_b32 v3, 1, v0\nv_lshl_add_u32 v2, v3, 5, v2")
    e("v_bfe_u32 v3, v0, 4, 1\nv_lshl_add_u32 v2, v3, 4, v2\nv_bfe_u32 v3, v0, 1, 1\nv_lshl_add_u32 v2, v3, 3, v2\nv_add_u32 v2, s30, v2\nv_lshlrev_b32 v3, 4, v0")
    e(f"s_lshl_b32 s92, s5, 1\ns_add_u32 s92, s92, s87\ns_lshl_b32 s92, s92, 1\ns_add_u32 s92, s92, s85\ns_mul_i32 s92, s92, {2*AY_W}")
    e(f"s_lshl_b32 s30, s91, 12\ns_add_u32 s92, s92, s30\ns_and_b32 s30, s4, 1\ns_lshl_b32 s30, s30, 10\ns_add_u32 s92, s92, s30\ns_add_u32 s93, s92, {AY_W}")
    e.vm0()
    c_pull([4, 5])
    c_dma([6])
    for mt in range(2):
        e(f"ds_write_b128 v1, v[{72+8*mt}:{75+8*mt}] offset:{mt*2048}\nds_write_b128 v1, v[{76+8*mt}:{79+8*mt}] offset:{mt*2048+16}")
    for mt in range(2):
        for kh in range(2):
            for u2 in range(2):
                r = 88 + 8*mt + 4*kh + 2*u2
                e(f"ds_read_b64_tr_b16 v[{r}:{r+1}], v2 offset:{mt*2048 + kh*1024 + u2*256}")
    e.lg0()
    for mt in range(2):
        for kh in range(2):
            r = 88 + 8*mt + 4*kh
            e.vmem(f"buffer_store_dwordx4 v[{r}:{r+3}], v3, s[20:23], s{92+mt} offen offset:{kh*2048} sc1", "h")
    st(e, "hst")
    wait_prog(4)
    for k in range(4): wd_dma(e, k, 136, 24)
    e.vm_wait({"h"})
    e(f"s_lshl_b32 s30, s5, 2\ns_add_u32 s30, s30, s4\ns_lshl_b32 s30, s30, 7\ns_add_u32 s30, s30, {WS_FH}")
    e("s_lshl_b32 s31, s6, 2\nv_mov_b32 v8, s31\nv_mov_b32 v9, s84\ns_mov_b64 exec, 1")
    e.vmem("buffer_store_dword v9, v8, s[20:23], s30 offen sc1", "fl")
    e("s_mov_b64 exec, -1")
    st(e, "hflag")
    c_pull([6])
    wait_prog(6)
    for k in range(4, 8): wd_dma(e, k, 136, 24)
    e.vm0()
    e("ds_write_b32 v20, v19 offset:32")
    st(e, "wdl")
    e(f"s_lshl_b32 s30, s5, 1\ns_add_u32 s30, s30, s85\ns_lshl_b32 s93, s30, 8\ns_add_u32 s93, s93, {WS_FH}")
    e(f"s_lshl_b32 s92, s30, 2\ns_add_u32 s92, s92, s4\ns_mul_i32 s92, s92, {AY_W}")
    e("s_mul_i32 s31, s87, 7\nv_and_b32 v8, 31, v0\nv_min_u32 v8, 6, v8\nv_add_u32 v8, s31, v8\nv_lshlrev_b32 v8, 2, v8\nv_lshl_add_u32 v8, v21, 7, v8")
    e("s_lshl_b32 s31, s87, 10\nv_add_u32 v10, s31, v3\nv_xor_b32 v11, 0x400, v10")
    def body():
        e("buffer_load_dword v9, v8, s[20:23], s93 offen sc1\ns_waitcnt vmcnt(0)\nv_cmp_eq_u32 vcc, s84, v9\ns_nop 1")
    spin(e, body, "s_cmp_eq_u64 vcc, -1", sleep=2)
    st(e, "hseen")
    free = [24 + 8*i for i in range(6)]
    areg = {}
    nxt = [0]
    def yissue():
        while nxt[0] < 14 and free:
            k = nxt[0]; q, kh = k >> 1, k & 1
            if kh == 0:
                c_piece(q, 28)
                e("s_lshl_b32 s28, s28, 12\ns_add_u32 s28, s28, s92")
            r = free.pop(0); areg[k] = r
            for a in range(2):
                e.vmem(f"buffer_load_dwordx4 v[{r+4*a}:{r+4*a+3}], v{10+a}, s[20:23], s28 offen offset:{kh*2048} sc1", ("A", k))
            nxt[0] += 1
    yissue()
    YACC = 72
    for k in range(14):
        e.vm_wait({("A", k)})
        br = 144 + 8*k
        for (a, b) in ((0, 0), (1, 0), (0, 1), (1, 1)):
            e(mfma(YACC + (2*a + b)*16, areg[k] + 4*a, br + 4*b, k == 0))
        free.append(areg[k]); free.append(br)
        yissue()
    st(e, "yloop")
    wait_prog(7)
    YCH = {1: 0, 2: 16384, 3: 6*16384}
    e("v_add_u32 v8, s89, v3\nv_add_u32 v9, 0x18000, v8")
    for sg in (2, 1, 3):
        for g in range(4):
            a = YACC + sg*16 + g*4
            if sg < 3: e(f"ds_write_b128 v8, v[{a}:{a+3}] offset:{YCH[sg] + g*1024}")
            else: e(f"ds_write_b128 v9, v[{a}:{a+3}] offset:{g*1024}")
    for sg in (1, 2, 3):
        e(f"s_xor_b32 s31, s4, {sg}\ns_lshl_b32 s31, s31, 12\ns_add_u32 s31, s31, {YCH[sg]}\nv_add_u32 v{11+sg}, s31, v3")
    def rdy():
        for sg in (1, 2, 3):
            for g in range(4): e(f"ds_read_b128 v[{144+(sg-1)*16+4*g}:{147+(sg-1)*16+4*g}], v{11+sg} offset:{g*1024}")
    ssync(rdy)
    for r in range(16): e(f"v_add_f32 v{YACC+r}, v{YACC+r}, v{144+r}\nv_add_f32 v{160+r}, v{160+r}, v{176+r}")
    for r in range(16): e(f"v_add_f32 v{YACC+r}, v{YACC+r}, v{160+r}")
    ssync()
    for g in range(4): e(f"ds_write_b128 v8, v[{YACC+4*g}:{YACC+4*g+3}] offset:{g*1024}")
    e.lg0()
    st.dump(e); info["S"] = st.names
    e("s_endpgm")

    e.vm = []; e.lg = []
    e.label("K_SPARE")
    st = Stamper(stamps, 143)
    e("s_sub_u32 s4, s2, 224\ns_lshr_b32 s5, s4, 1\ns_and_b32 s6, s4, 1")
    e("v_lshrrev_b32 v3, 4, v2\nv_and_b32 v4, 15, v2\nv_mul_u32_u24 v5, 0xe00, v3\nv_lshl_add_u32 v5, v4, 4, v5")
    e(f"v_mov_b32 v6, 0\ns_mov_b32 s82, {WS_EP}\ns_lshl_b32 s28, s5, 8")
    e("s_cmp_eq_u32 s6, 0")
    e("s_waitcnt lgkmcnt(0)")
    e("s_cselect_b32 s16, s52, s54\ns_cselect_b32 s17, s53, s55")
    e(f"s_and_b32 s17, s17, 0xffff\ns_mov_b32 s18, {448*3584}\ns_mov_b32 s19, 0x20000")
    srd(e, 20, 62, WS_END)
    e.vmem("buffer_load_dword v6, v6, s[20:23], s82 offen sc1", "ep")
    for i in range(14):
        e.vmem(f"buffer_load_dwordx4 v[{16+4*i}:{19+4*i}], v5, s[16:19], s28 offen", ("cs", i))
        if i < 13: e(f"s_add_u32 s28, s28, {32*3584}")
    for q in range(8): e(f"v_mov_b32 v{8+q}, 0")
    srd(e, 8, 56, 1792 * 896)
    srd(e, 64, 42, 448 * 896)
    srd(e, 68, 44, 448 * 896)
    e("v_lshlrev_b32 v7, 7, v2\ns_mul_i32 s28, s4, 57344\ns_mul_i32 s29, s4, 14336")
    for i in range(14):
        e.vm_wait({("cs", i)})
        if i == 10:
            e.vmem("buffer_load_dword v80, v7, s[8:11], s28 offen", "t")
            e("s_cmp_ge_u32 s3, 2\ns_cbranch_scc1 K_sp1")
            e("buffer_load_dword v81, v7, s[64:67], s29 offen\nbuffer_load_dword v82, v7, s[68:71], s29 offen")
            e.label("K_sp1")
        for q in range(4):
            e(f"v_lshlrev_b32 v72, 16, v{16+4*i+q}\nv_and_b32 v73, 0xffff0000, v{16+4*i+q}\nv_pk_add_f32 v[{8+2*q}:{9+2*q}], v[{8+2*q}:{9+2*q}], v[72:73]")
    e("v_lshlrev_b32 v3, 5, v2")
    e("ds_write_b128 v3, v[8:11]\nds_write_b128 v3, v[12:15] offset:16\ns_waitcnt lgkmcnt(0)")
    st(e, "acc")
    e("s_barrier")
    e("s_cmp_lg_u32 s3, 7\ns_cbranch_scc1 K_sp3")
    e("v_lshlrev_b32 v3, 3, v0\nv_add_u32 v9, 1, v6\nv_add_u32 v11, 1, v6")
    for h in range(2):
        for i in range(16): e(f"ds_read_b64 v[{16+2*i}:{17+2*i}], v3 offset:{(16*h+i)*512}")
        e("s_waitcnt lgkmcnt(0)")
        if h == 0: e("v_mov_b32 v12, 0\nv_mov_b32 v13, 0")
        for i in range(16): e(f"v_pk_add_f32 v[12:13], v[12:13], v[{16+2*i}:{17+2*i}]")
    e(f"v_mov_b32 v8, v12\nv_mov_b32 v10, v13\nv_lshlrev_b32 v3, 4, v0\ns_lshl_b32 s28, s4, 10\ns_add_u32 s28, s28, {WS_CS}")
    e("buffer_store_dwordx4 v[8:11], v3, s[20:23], s28 offen sc1")
    e.label("K_sp3")
    st.dump(e); info["sp"] = st.names
    e.label("K_END")
    e("s_endpgm")
    e.label("ALL_END")
    return khead(name) + e.text(), kd(name, 256, 256), info

if __name__ == "__main__":
    import sys, json
    NAME = "recurrent_scan__ssm_conv_s5__glu_gated_reglu__prompt_kernel"
    stamps = "stamps" in sys.argv
    kw = {}
    for a in sys.argv[2:]:
        if "=" in a:
            k, v = a.split("="); kw[k] = int(v)
    b, d, info = gen_fused(NAME, stamps=stamps, **kw)
    hdr = open("recurrent_scan__ssm_conv_s5__glu_gated_reglu__prompt.s.ref").read().split("; Override")[0]
    txt = hdr + f"; @launch grid=(252,1,1) block=(512,1,1) lds={LDS_BYTES}\n"
    if stamps: txt += "; STAMPS " + json.dumps(info) + "\n"
    txt += '.amdgcn_target "amdgcn-amd-amdhsa--gfx950"\n' + b + d
    open(sys.argv[1], "w").write(txt)
```

```python
import numpy as np
WS_AY = 0
A_W = 28 * 4096
AY_BYTES = 16 * 2 * A_W
WS_AO = WS_AY + AY_BYTES
AO_BYTES = 16 * 4 * A_W
WS_PX = WS_AO + AO_BYTES
PX_BYTES = 16 * 7 * 2 * 2 * 4 * 4096
WS_AGG = WS_PX + PX_BYTES
AGG_BYTES = 14 * 16 * 512
WS_CS = WS_AGG + AGG_BYTES
CS_BYTES = 14 * 2048
WS_FH = WS_CS + CS_BYTES
WS_FO = WS_FH + 256 * 128
WS_XID = WS_FO + 256 * 128
WS_EP = WS_XID + 256 * 128
WS_END = WS_EP + 128

def tau(i):
    return 16 * ((i >> 2) & 1) + 4 * (i >> 3) + (i & 3)

def build_ws(d, r, f2bf):
    hh = f2bf(r["hh"]); hr = f2bf(r["hr"]); hi = f2bf(r["hi"])
    AY = np.zeros((16, 2, 28, 4, 64, 8), np.uint16)
    AO = np.zeros((16, 4, 28, 4, 64, 8), np.uint16)
    lane = np.arange(64); li = lane & 31; hb = lane >> 5
    j8 = np.arange(8)
    taus = np.array([tau(i) for i in range(32)])
    for pos in range(28):
        p = 16 * pos + 8 * hb[:, None] + j8[None]
        for rb in range(16):
            for rt in range(4):
                t = rb * 128 + rt * 32 + taus[li]
                for mt in range(2):
                    AY[rb, mt, pos, rt] = (hi if mt else hr)[t[:, None], p]
                for w in range(4):
                    s = pos >> 1; jj = pos & 1
                    f = 128 * s + 32 * w + 16 * jj + 8 * (j8[None] >> 2) + 4 * hb[:, None] + (j8[None] & 3)
                    AO[rb, w, pos, rt] = hh[t[:, None], f]
    return AY, AO
```

```python
from asmlib import *
from layout7 import *
LDS_BYTES = 163840
RING = 114688
NR = 5
MISC = RING + NR * 8192
STAT = MISC
CSB = MISC + 1024
CSW = MISC + 2048
SUB = MISC + 3072
FLG = MISC + 7168
LOG2E = 0x3fb8aa3b
SPIN_MAX = 0x200000
UNIT = 114688
CH = 16384
SC = 3 * CH

def mfma(d, a, b, first=False):
    c = "0" if first else f"v[{d}:{d+15}]"
    return f"v_mfma_f32_32x32x16_bf16 v[{d}:{d+15}], v[{a}:{a+3}], v[{b}:{b+3}], {c}"

class Stamper:
    def __init__(self, on, vreg): self.on = on; self.n = 0; self.v = vreg; self.names = []
    def __call__(self, e, name=""):
        if not self.on: return
        e.lg0()
        e(f"v_writelane_b32 v{self.v}, s80, {self.n}\ns_memtime s[80:81]")
        self.n += 1; self.names.append(name)
        assert self.n <= 60
    def dump(self, e):
        if not self.on: return
        e("s_waitcnt vmcnt(0)")
        self(e, "end"); self(e)
        e("s_memrealtime s[80:81]\ns_waitcnt lgkmcnt(0)")
        e(f"v_writelane_b32 v{self.v}, s96, 62\nv_writelane_b32 v{self.v}, s80, 63\ns_mov_b32 s80, {self.n}\nv_writelane_b32 v{self.v}, s80, 61")
        e(f"s_mov_b32 s22, {WS_END + (1<<20)}")
        e("s_lshl_b32 s82, s2, 3\ns_add_u32 s82, s82, s3\ns_lshl_b32 s82, s82, 8")
        e(f"s_add_u32 s82, s82, {WS_END}")
        e("v_lshlrev_b32 v1, 2, v0")
        e(f"buffer_store_dword v{self.v}, v1, s[20:23], s82 offen")

def spin(e, body, cond_ok, sleep=1):
    l = e.newlabel("SP")
    e("s_mov_b32 s95, 0")
    e.label(l)
    body()
    e(cond_ok)
    e(f"s_cbranch_scc1 {l}_ok")
    if sleep: e(f"s_sleep {sleep}")
    e(f"s_add_u32 s95, s95, 1\ns_cmp_lt_u32 s95, {SPIN_MAX}\ns_cbranch_scc1 {l}")
    e.label(l + "_ok")

def tau_of_lane(e, d, t):
    e(f"v_bfe_u32 v{d}, v0, 2, 1\nv_lshlrev_b32 v{d}, 4, v{d}\nv_bfe_u32 v{t}, v0, 3, 2\nv_lshl_add_u32 v{d}, v{t}, 2, v{d}\nv_and_b32 v{t}, 3, v0\nv_add_u32 v{d}, v{d}, v{t}")

def plan_slots():
    wslot = {n: ("r", ((n + 2) % NR) * 8192) for n in range(5)}
    issue = {}
    nxt = 5
    free = []
    for n in range(28):
        if n in (5, 9, 13):
            c = (n >> 2) - 1
            free += [("c", c * CH), ("c", c * CH + 2048)]
        free.append(wslot[n])
        issue[n] = []
        while free and nxt < 28 and len(issue[n]) < 2:
            wslot[nxt] = free.pop(0); issue[n].append(nxt); nxt += 1
    last = max(n for n in issue if issue[n])
    used_after = {}
    inv = {}
    for n in range(28): inv[wslot[n]] = n
    order = sorted(inv.items(), key=lambda x: x[1])
    wd = [(sl, n + 1, 0) for sl, n in order]
    wd += [(("c", 5 * CH), 0, 6), (("c", 5 * CH + 2048), 0, 6), (("c", 6 * CH), 0, 7)]
    assert len(wd) == 14, len(wd)
    return wslot, issue, wd, last

def gen_fused(name, stamps=False, D0=3, pad=0, ra=2, kint=3, fine=1, sidle=0, sprio=3, sprio2=0, fprio=2, NA=16, pace=3, warm=1, ypre=0):
    e = Em2()
    info = {}
    wslot, wissue, wdslot, wlast = plan_slots()
    def stores(ins_list, tag):
        for x in ins_list: e.vmem(x + " sc1", tag)
    def wd_setup(va, sr):
        e(f"v_lshrrev_b32 v{va}, 3, v0\nv_mul_u32_u24 v{va}, 0x380, v{va}\nv_bfe_u32 v{va+1}, v0, 4, 1\nv_lshlrev_b32 v{va+1}, 2, v{va+1}")
        e(f"v_and_b32 v1, 7, v0\nv_xor_b32 v1, v1, v{va+1}\nv_lshl_add_u32 v{va}, v1, 4, v{va}\nv_add_u32 v{va+1}, {8*896-1024}, v{va}")
        srd(e, sr, 56, 1792 * 896)
        e("s_lshl_b32 s98, s99, 1")
        e(f"s_mul_i32 s88, s4, {32*896}\ns_lshl_b32 s82, s91, 7\ns_add_u32 s88, s88, s82\ns_mul_i32 s82, s85, {7*UNIT}\ns_add_u32 s88, s88, s82")
        e(f"s_mul_i32 s64, s98, {UNIT}\ns_add_u32 s64, s64, s88\ns_add_u32 s88, s88, {7*UNIT}")
        for u in range(1, 7):
            e(f"s_add_u32 s{64+u}, s{63+u}, {UNIT}\ns_cmp_ge_u32 s{64+u}, s88\ns_cselect_b32 s82, {7*UNIT}, 0\ns_sub_u32 s{64+u}, s{64+u}, s82")
    def wd_dma(k, va, sr):
        kind, off = wdslot[k][0]
        e(f"s_add_u32 m0, s{89 if kind == 'c' else 79}, {off}\ns_add_u32 s82, s{64+(k>>1)}, {(k&1)*16*896}")
        e.vmem(f"buffer_load_dwordx4 v{va}, s[{sr}:{sr+3}], s82 offen lds", ("wd", k))
        e.vmem(f"buffer_load_dwordx4 v{va+1}, s[{sr}:{sr+3}], s82 offen offset:1024 lds", ("wd", k))
    def wd_half(k, hf):
        kind, off = wdslot[k][0]
        e(f"s_add_u32 m0, s{89 if kind == 'c' else 79}, {off}\ns_add_u32 s82, s{64+(k>>1)}, {(k&1)*16*896}")
        e.vmem(f"buffer_load_dwordx4 v{2+hf}, s[12:15], s82 offen" + (" offset:1024" if hf else "") + " lds", ("wd", k))
    def lds_wait(addr, off, cond, tmp, sleep=1):
        def body(): e(f"ds_read_b32 v{tmp}, v{addr} offset:{off}\ns_waitcnt lgkmcnt(0)\nv_readfirstlane_b32 s82, v{tmp}")
        spin(e, body, cond, sleep=sleep)
        e.lg = []
    e("s_cmp_ge_u32 s2, 256")
    e("s_cbranch_scc1 K_END")
    if stamps: e("s_memrealtime s[96:97]\ns_memtime s[80:81]")
    elif pad: e("s_memrealtime s[96:97]")
    e("s_load_dwordx16 s[32:47], s[0:1], 0")
    e("s_load_dwordx16 s[48:63], s[0:1], 64")
    e("v_lshrrev_b32 v1, 6, v0\nv_mov_b32 v2, v0\nv_and_b32 v0, 63, v0\nv_readfirstlane_b32 s3, v1")
    e("s_cmp_ge_u32 s2, 224")
    e("s_cbranch_scc1 K_SPARE")
    e("s_and_b32 s4, s3, 3\ns_and_b32 s8, s2, 7\ns_lshr_b32 s9, s2, 3")
    e("s_and_b32 s5, s8, 3\ns_lshl_b32 s5, s5, 2\ns_and_b32 s99, s9, 3\ns_add_u32 s5, s5, s99")
    e("s_lshr_b32 s85, s8, 2\ns_lshr_b32 s91, s9, 2\ns_mul_i32 s6, s85, 7\ns_add_u32 s6, s6, s91")
    e("v_and_b32 v20, 31, v0\nv_lshrrev_b32 v21, 5, v0\nv_bfe_u32 v22, v0, 1, 3\nv_xor_b32 v22, v22, v21\nv_lshlrev_b32 v20, 7, v20")
    e(f"s_lshl_b32 s89, s4, 12\ns_lshl_b32 s79, s4, 11\ns_add_u32 s79, s79, {RING}")
    e("s_cmp_ge_u32 s3, 4")
    e("s_cbranch_scc1 K_S")

    st = Stamper(stamps, 127)
    e(f"s_setprio {fprio}")
    e(f"s_mul_i32 s10, s99, {ra}\ns_add_u32 s7, s91, s10")
    e("s_cmp_ge_u32 s7, 7\ns_cselect_b32 s10, 7, 0\ns_sub_u32 s7, s7, s10")
    e("s_lshl_b32 s64, s7, 7")
    for c in range(1, 7):
        e(f"s_add_u32 s{64+c}, s{63+c}, 128\ns_cmp_ge_u32 s{64+c}, 896\ns_cselect_b32 s{64+c}, 0, s{64+c}")
    e("v_lshrrev_b32 v8, 3, v0\nv_and_b32 v9, 7, v0\nv_lshrrev_b32 v7, 4, v0\nv_xor_b32 v9, v9, v7\nv_lshlrev_b32 v9, 4, v9\nv_xor_b32 v7, 64, v9")
    e("v_and_b32 v6, 3, v8\nv_lshl_add_u32 v5, v21, 4, v6\nv_lshl_add_u32 v6, v21, 3, v6\nv_mul_u32_u24 v5, 0x380, v5\nv_mul_u32_u24 v6, 0x380, v6")
    e("v_add_u32 v1, v5, v9\nv_add_u32 v2, v5, v7\nv_add_u32 v2, 2560, v2\nv_add_u32 v3, 5120, v1\nv_add_u32 v4, 5120, v2")
    e(f"v_add_u32 v5, v6, v9\nv_add_u32 v6, v6, v7\nv_add_u32 v6, {4*896-1024}, v6")
    e("s_lshl_b32 s28, s5, 7\ns_lshl_b32 s29, s4, 5\ns_add_u32 s28, s28, s29\ns_mul_i32 s28, s28, 896")
    e("s_lshl_b32 s29, s6, 5\ns_and_b32 s30, s4, 1\ns_lshl_b32 s30, s30, 4\ns_add_u32 s29, s29, s30\ns_mul_i32 s29, s29, 896")
    e(f"s_mov_b32 s10, {2048*896}\ns_mov_b32 s11, 0x20000\ns_mov_b32 s14, {448*896}\ns_mov_b32 s15, 0x20000")
    e("s_waitcnt lgkmcnt(0)")
    st(e, "karg")
    e("s_cmp_lt_u32 s4, 2")
    e("s_cselect_b32 s12, s38, s40\ns_cselect_b32 s13, s39, s41\ns_mov_b32 s8, s32\ns_and_b32 s9, s33, 0xffff\ns_and_b32 s13, s13, 0xffff")
    def xb_burst(c):
        e(f"s_add_u32 m0, s89, {c*CH}\ns_add_u32 s83, s28, s{64+c}")
        for ii in range(4):
            e.vmem(f"buffer_load_dwordx4 v{1+ii}, s[8:11], s83 offen" + (f" offset:{ii*1024}" if ii else "") + " lds", ("x", c))
        e(f"s_add_u32 m0, s79, {(c % NR)*8192}\ns_add_u32 s83, s29, s{64+c}")
        e.vmem("buffer_load_dwordx4 v5, s[12:15], s83 offen lds", ("x", c))
        e.vmem("buffer_load_dwordx4 v6, s[12:15], s83 offen offset:1024 lds", ("x", c))
    xb_burst(0)
    srd(e, 20, 62, WS_END)
    e(f"v_mov_b32 v120, 0\ns_mov_b32 s82, {WS_EP}")
    e.vmem("buffer_load_dword v120, v120, s[20:23], s82 offen sc1", "ep")
    e(f"v_mov_b32 v124, 0\nv_mov_b32 v125, 0\ns_lshl_b32 s31, s4, 9\ns_add_u32 s31, s31, {SUB}\nv_lshl_add_u32 v8, v0, 3, s31")
    e.lds("ds_write_b64 v8, v[124:125]")
    e(f"v_lshlrev_b32 v8, 2, v0\nv_add_u32 v8, {FLG}, v8")
    e.lds("ds_write_b32 v8, v124")
    for jj in range(4):
        e(f"v_xor_b32 v{10+jj}, {2*jj}, v22\nv_lshl_add_u32 v{10+jj}, v{10+jj}, 4, v20\nv_add_u32 v{14+jj}, 0x10000, v{10+jj}")
    if D0 > 1: xb_burst(1)
    srd(e, 16, 52, 448 * 3584)
    srd(e, 24, 54, 448 * 3584)
    e("s_lshl_b32 s31, s6, 8\ns_lshl_b32 s82, s4, 6\ns_add_u32 s31, s31, s82")
    for c in range(7): e(f"s_mul_i32 s{72+c}, s{64+c}, 1792\ns_add_u32 s{72+c}, s{72+c}, s31")
    e("v_lshrrev_b32 v7, 2, v0\nv_mul_u32_u24 v7, 0xe00, v7\nv_and_b32 v8, 3, v0\nv_lshl_add_u32 v7, v8, 4, v7")
    e("v_bfe_u32 v8, v0, 2, 2\nv_lshl_add_u32 v8, v21, 3, v8\nv_lshlrev_b32 v9, 6, v8")
    e("v_bfe_u32 v8, v0, 4, 1\nv_lshl_add_u32 v9, v8, 5, v9\nv_and_b32 v8, 3, v0\nv_lshl_add_u32 v9, v8, 3, v9\nv_add_u32 v125, s89, v9\nv_add_u32 v9, s79, v9")
    e("v_lshlrev_b32 v18, 4, v0")
    e(f"s_lshl_b32 s31, s4, 2\ns_add_u32 s31, s31, {FLG}\nv_mov_b32 v19, s31")
    e(f"s_lshl_b32 s31, s4, 8\ns_add_u32 s31, s31, {CSW}\nv_lshl_add_u32 v122, v21, 4, s31")
    tau_of_lane(e, 123, 8)
    e(f"v_lshlrev_b32 v123, 2, v123\nv_add_u32 v123, {STAT}, v123\nv_mov_b32 v8, {FLG}")
    e(f"s_lshl_b32 s92, s5, 2\ns_add_u32 s92, s92, s4\ns_mul_i32 s92, s92, {A_W}\ns_add_u32 s92, s92, {WS_AO}\ns_lshl_b32 s31, s6, 13\ns_add_u32 s86, s92, s31\ns_add_u32 s87, s86, 4096")
    for c in range(2, D0): xb_burst(c)
    def w_issue(n, mt):
        c, jj = n >> 2, n & 3
        kind, off = wslot[n]
        e(f"s_add_u32 m0, s{89 if kind == 'c' else 79}, {off + mt*1024}\ns_add_u32 s83, s{72+c}, {16*jj*3584}")
        e.vmem(f"buffer_load_dwordx4 v7, s[{16+8*mt}:{19+8*mt}], s83 offen lds", ("w", n))
    FS = [24, 48]
    def reads(n):
        fs = FS[n & 1]; c, jj = n >> 2, n & 3
        xb = (10 + jj) if c < 4 else (14 + jj)
        xo = (c & 3) * CH
        kind, wo = wslot[n]
        wb = 125 if kind == "c" else 9
        X = lambda rt: (f"ds_read_b128 v[{fs+4*rt}:{fs+4*rt+3}], v{xb} offset:{xo + rt*4096}", ("X", n, rt))
        Wr = lambda mt, u2: (f"ds_read_b64_tr_b16 v[{fs+16+4*mt+2*u2}:{fs+17+4*mt+2*u2}], v{wb} offset:{wo + mt*1024 + u2*256}", ("W", n))
        return [Wr(0, 0), Wr(0, 1), X(0), Wr(1, 0), Wr(1, 1), X(1), X(2), X(3)]
    for sg in range(8):
        tags = {("x", sg)}
        if sg == 1: tags.add("ep")
        e.vm_wait(tags)
        if sg == 0: e.lg0()
        if sg == 7:
            e.vm_wait({("w", 0)})
            for s, t in reads(0): e.lds(s, t)
        st(e, f"b{sg}")
        e("s_barrier")
        if sg + D0 < 7: xb_burst(sg + D0)
        if 3 <= sg < 7:
            w_issue(sg - 3, 0); w_issue(sg - 3, 1)
        if sg == 1: e("v_readfirstlane_b32 s84, v120\ns_add_u32 s84, s84, 1\ns_max_u32 s84, s84, 1")
        if sg == 5: wd_setup(2, 12)
    w_issue(4, 0); w_issue(4, 1)
    CS = 72; T = 104
    cs_rd = [("ds_read_b32 v121, v19 offset:16", "cs")] + [(f"ds_read_b32 v{20+rt}, v123 offset:{rt*128}", "cs") for rt in range(4)]
    cs_rd += [(f"ds_read_b128 v[{CS+16*mt+4*q}:{CS+16*mt+4*q+3}], v122 offset:{mt*128 + q*32}", "cs") for mt in range(2) for q in range(4)]
    p2 = []
    def p_(s): p2.extend(s.split("\n"))
    p_("v_bfe_u32 v112, v0, 2, 2\nv_lshrrev_b32 v113, 5, v0\nv_lshl_add_u32 v113, v113, 2, v112\nv_lshlrev_b32 v113, 7, v113")
    p_("s_lshr_b32 s31, s4, 1\nv_lshrrev_b32 v112, 1, v112\nv_xor_b32 v112, s31, v112\nv_lshl_add_u32 v113, v112, 6, v113")
    p_("v_bfe_u32 v112, v0, 4, 1\nv_lshl_add_u32 v113, v112, 5, v113\nv_and_b32 v112, 3, v0\nv_lshl_add_u32 v113, v112, 3, v113\nv_xor_b32 v112, 64, v113")
    p_(f"s_lshl_b32 s30, s31, 13\ns_lshl_b32 s31, s31, 12\ns_add_u32 s31, s31, {RING}")
    p_("v_add_u32 v108, s30, v113\nv_add_u32 v109, s30, v112\nv_add_u32 v110, s31, v113\nv_add_u32 v111, s31, v112\nv_add_u32 v112, 0x10000, v108\nv_add_u32 v113, 0x10000, v109")
    p_(f"s_lshl_b32 s93, s5, 1\ns_add_u32 s93, s93, s85\ns_lshl_b32 s93, s93, 10\ns_add_u32 s93, s93, {WS_FO}")
    p_(f"s_and_b32 s31, s4, 1\ns_mul_i32 s31, s31, {A_W}\ns_sub_u32 s92, s92, s31")
    p_(f"s_mul_i32 s31, s85, {7*8192}\ns_add_u32 s92, s92, s31\ns_xor_b32 s31, s85, 1\ns_lshl_b32 s31, s31, 11\ns_add_u32 s92, s92, s31")
    p_(f"s_lshl_b32 s90, s98, 13\ns_add_u32 s90, s90, s92\ns_add_u32 s92, s92, {7*8192}\ns_add_u32 s71, s90, {A_W}")
    p_("s_lshl_b32 s29, s85, 6\ns_and_b32 s31, s4, 1\ns_lshl_b32 s31, s31, 5\ns_add_u32 s29, s29, s31\ns_lshl_b32 s30, s5, 7\ns_add_u32 s30, s30, s29")
    p_(f"v_lshlrev_b32 v117, 4, v21\nv_add_u32 v114, s30, v117\ns_lshl_b32 s29, s29, 2\ns_add_u32 s29, s29, {STAT}\nv_lshl_add_u32 v117, v117, 2, s29")
    p_("s_lshl_b32 s29, s91, 6\ns_lshr_b32 s31, s4, 1\ns_lshl_b32 s31, s31, 5\ns_add_u32 s29, s29, s31\nv_and_b32 v115, 31, v0\nv_add_u32 v115, s29, v115")
    p_("v_mul_u32_u24 v114, 0x380, v114\nv_lshlrev_b32 v115, 1, v115\nv_add_u32 v114, v114, v115\nv_lshlrev_b32 v116, 1, v114")
    for q in range(1, 8): p_(f"s_movk_i32 s{32+q}, {q*3584}")
    p_(f"s_mul_i32 s40, s5, 7\ns_add_u32 s40, s40, s91\ns_lshl_b32 s40, s40, 1\ns_add_u32 s40, s40, s85\ns_lshl_b32 s40, s40, 15\ns_add_u32 s40, s40, s89\ns_xor_b32 s41, s40, 0x8000\ns_add_u32 s40, s40, {WS_PX + 16384}\ns_add_u32 s41, s41, {WS_PX + 16384}")
    slow = []; slow2 = []
    for n in range(28):
        fs = FS[n & 1]
        rd = reads(n + 1) if n < 27 else list(cs_rd)
        if n < 27: e.vm_wait({("w", n + 1)})
        dq = [("w", m, mt) for m in wissue[n] for mt in range(2)]
        for k in range(11):
            if wdslot[k][1] - 1 == n: dq += [("d", k, 0), ("d", k, 1)]
        gaps = (2, 5) if len(dq) <= 2 else (1, 3, 5, 7)
        for i in range(8):
            rt, mt = i >> 1, i & 1
            if i == 0: e.lg_wait({("W", n), ("X", n, 0)})
            elif mt == 0: e.lg_wait({("X", n, rt)})
            e(mfma(128 + 64*mt + 16*rt, fs + 16 + 4*mt, fs + 4*rt, n == 0))
            k = 1 if n < 27 else 2
            for s, t in rd[:k]: e.lds(s, t)
            rd = rd[k:]
            if n in (5, 9, 13) and i == 0:
                l = e.newlabel("PG")
                e(f"v_readfirstlane_b32 s82, v104\ns_cmp_lt_u32 s82, {n >> 2}\ns_cbranch_scc1 {l}")
                e.label(l + "_r")
                slow.append((l, n >> 2))
            if i in gaps and dq:
                kd_, a1, a2 = dq.pop(0)
                if kd_ == "w": w_issue(a1, a2)
                else: wd_half(a1, a2)
            if i == 6 and (n & 3) == 3:
                e(f"v_mov_b32 v126, {(n >> 2) + 1}")
                e.lds("ds_write_b32 v19, v126")
            if n in (4, 8, 12):
                if i == 2: e.lds("ds_read_b128 v[104:107], v8", "pg")
                if i == 6:
                    e.lg_wait({"pg"})
                    e("v_min_u32 v104, v104, v105\nv_min3_u32 v104, v104, v106, v107")
            if 11 <= n < 27 and i in (0, 1, 3, 4, 6, 7) and len(gaps) == 2:
                if p2: e(p2.pop(0))
        assert not rd and not dq
        if stamps and ((fine and (n & 3) == 3) or n == 27): st(e, f"k{n}")
    assert not p2
    e.lg0()
    e("v_readfirstlane_b32 s82, v121\ns_cmp_lg_u32 s82, 0\ns_cbranch_scc1 K_csok")
    def body():
        for s, t in cs_rd: e(s)
        e("s_waitcnt lgkmcnt(0)\nv_readfirstlane_b32 s82, v121")
    spin(e, body, "s_cmp_lg_u32 s82, 0")
    e.label("K_csok")
    st(e, "cs")
    for rt in range(4):
        G, U = 128 + 16*rt, 192 + 16*rt
        mp = 20 + (rt & 2)
        sel = ("op_sel:[0,1,0] op_sel_hi:[1,1,1]" if rt & 1 else "op_sel_hi:[1,0,1]") + " neg_lo:[1,0,0] neg_hi:[1,0,0]"
        for h in range(2):
            g = 2*rt + h
            tt = 24 + 4 * g
            rs = range(8*h, 8*h + 8, 2)
            if g == 1: e.lds("ds_read_b128 v[104:107], v8", "pg")
            for r in rs:
                e(f"v_pk_fma_f32 v[{G+r}:{G+r+1}], v[{CS+r}:{CS+r+1}], v[{mp}:{mp+1}], v[{G+r}:{G+r+1}] {sel}")
                e(f"v_pk_fma_f32 v[{U+r}:{U+r+1}], v[{CS+16+r}:{CS+17+r}], v[{mp}:{mp+1}], v[{U+r}:{U+r+1}] {sel}")
            for r in rs: e(f"v_max_f32 v{G+r}, 0, v{G+r}\nv_max_f32 v{G+r+1}, 0, v{G+r+1}")
            for r in rs: e(f"v_pk_mul_f32 v[{G+r}:{G+r+1}], v[{G+r}:{G+r+1}], v[{U+r}:{U+r+1}]")
            for r in rs: e(f"v_cvt_pk_bf16_f32 v{tt + ((r - 8*h) >> 1)}, v{G+r}, v{G+r+1}")
            stores([f"buffer_store_dwordx4 v[{tt}:{tt+3}], v18, s[20:23], s{86 + h} offen offset:{rt*1024}"], "hh")
            if g == 1:
                e.lg0()
                l = e.newlabel("PG")
                e(f"v_min_u32 v104, v104, v105\nv_min3_u32 v104, v104, v106, v107\ns_nop 0\nv_readfirstlane_b32 s82, v104\ns_cmp_lt_u32 s82, 7\ns_cbranch_scc1 {l}")
                e.label(l + "_r")
                slow.append((l, 7))
            if g in (1, 2, 3): wd_dma(10 + g, 2, 12)
    e.lds("ds_write_b32 v19, v126 offset:32")
    st(e, "epi")
    e("s_setprio 0")
    XR, MR, RR = 56, 72, 88
    for r in range(16): e(f"v_mov_b32 v{XR+r}, 0")
    e("v_mov_b32 v118, 0")
    for q in range(4):
        e.lds(f"ds_read_b128 v[{MR+4*q}:{MR+4*q+3}], v117 offset:{16*q}")
        e.lds(f"ds_read_b128 v[{RR+4*q}:{RR+4*q+3}], v117 offset:{512+16*q}")
    e("s_and_b32 s31, s4, 1\ns_lshl_b32 s31, s31, 10\nv_add_u32 v10, s31, v18\nv_add_u32 v11, 0x1000, v10")
    e("s_lshl_b32 s31, s91, 7\ns_lshl_b32 s30, s4, 2\ns_add_u32 s31, s31, s30\nv_mov_b32 v16, s31\nv_mov_b32 v17, s84")
    e("v_and_b32 v14, 7, v0\nv_min_u32 v14, 6, v14\nv_lshlrev_b32 v14, 7, v14\nv_bfe_u32 v15, v0, 3, 1\nv_lshl_add_u32 v14, v15, 2, v14\ns_and_b32 s30, s30, 8\nv_add_u32 v14, s30, v14")
    e(f"s_add_u32 s31, s89, {SC}\nv_add_u32 v4, s31, v18\nv_xor_b32 v5, 0x2000, v4\nv_xor_b32 v6, 8, v19")
    srd(e, 16, 58, 2048 * 1792)
    e.vm_wait({"hh"})
    e("s_mov_b64 exec, 1")
    stores(["buffer_store_dword v17, v16, s[20:23], s93 offen"], "fl")
    e("s_mov_b64 exec, -1")
    st(e, "hhflag")
    for r in range(16):
        so = "0" if r < 4 else f"s{32 + (r >> 2)}"
        off = (r & 3) * 896
        e.vmem(f"buffer_load_short_d16_hi v{XR+r}, v114, s[8:11], {so} offen" + (f" offset:{off}" if off else ""), "xv")
    e.vmem("global_load_short_d16_hi v118, v115, s[48:49]", "xv")
    def rnd(b):
        for r in range(0, 16, 2): e(f"v_cvt_pk_bf16_f32 v{b+r}, v{b+r}, v{b+r+1}")
        for r in range(0, 16, 2): e(f"v_and_b32 v{b+r+1}, 0xffff0000, v{b+r}\nv_lshlrev_b32 v{b+r}, 16, v{b+r}")
    e.vm_wait({"xv"}); e.lg0()
    for r in range(16): e(f"v_sub_f32 v{MR+r}, v{XR+r}, v{MR+r}")
    rnd(MR)
    for r in range(16): e(f"v_mul_f32 v{MR+r}, v{MR+r}, v{RR+r}")
    e("buffer_load_dword v17, v14, s[20:23], s93 offen sc1")
    rnd(MR)
    for r in range(16): e(f"v_mul_f32 v{MR+r}, v{MR+r}, v118")
    rnd(MR)
    for r in range(16): e(f"v_mul_f32 v{RR+r}, v{RR+r}, v{RR+r}")
    e("s_waitcnt vmcnt(0)\nv_cmp_eq_u32 vcc, s84, v17\ns_nop 1\ns_cmp_eq_u64 vcc, -1\ns_cbranch_scc1 K_hhok")
    def body():
        e("buffer_load_dword v17, v14, s[20:23], s93 offen sc1\ns_waitcnt vmcnt(0)\nv_cmp_eq_u32 vcc, s84, v17\ns_nop 1")
    spin(e, body, "s_cmp_eq_u64 vcc, -1", sleep=2)
    e.label("K_hhok")
    e.vm = []
    st(e, "hhseen")
    NT = 56
    def areg(t): return 192 + 4*(t % NA)
    def a_issue(t):
        sub = t & 3
        if sub == 0 and t > 0:
            e(f"s_add_u32 s90, s90, 8192\ns_cmp_ge_u32 s90, s92\ns_cselect_b32 s82, {7*8192}, 0\ns_sub_u32 s90, s90, s82")
            if t == 28: e("s_xor_b32 s90, s90, 0x800\ns_xor_b32 s92, s92, 0x800")
            e(f"s_add_u32 s71, s90, {A_W}")
        r = areg(t)
        e.vmem(f"buffer_load_dwordx4 v[{r}:{r+3}], v{10 + (sub & 1)}, s[20:23], s{71 if sub >> 1 else 90} offen sc1", ("A", t))
    def breg(t): return 24 + 8*(t % 4)
    def b_list(t):
        u = (t % 28) >> 2; sub = t & 3
        kind, off = wdslot[2*u + (sub & 1)][0]
        if kind == "r": bs = (110, 111); off += (sub >> 1) * 2048
        else:
            off += (sub >> 1) * 4096
            bs = (108, 109)
            if off >= 5*CH: bs = (112, 113); off -= 65536
        r = breg(t)
        return [(f"ds_read_b64_tr_b16 v[{r+4*b+2*u2}:{r+4*b+2*u2+1}], v{bs[b]} offset:{off + u2*1024}", ("B", t)) for b in range(2) for u2 in range(2)]
    for t in range(NA - 1): a_issue(t)
    for t in range(3):
        for s, tg in b_list(t): e.lds(s, tg)
    FO, OW = 128, 160
    side = []
    def S_(f): side.append(f)
    for t in range(NT):
        acc = FO if t < 28 else OW
        if t == 26: S_(lambda: e.lds("ds_read_b32 v121, v8 offset:84", "yx"))
        if t == 30:
            def chk():
                e.lg_wait({"yx"})
                l = e.newlabel("YX")
                e(f"v_readfirstlane_b32 s82, v121\ns_cmp_lt_u32 s82, 4\ns_cbranch_scc1 {l}")
                e.label(l + "_r")
                slow2.append((l, 8, 84, "s_cmp_ge_u32 s82, 4"))
            S_(chk)
            for g in range(4): S_(lambda g=g: e.lds(f"ds_write_b128 v4, v[{FO+16+4*g}:{FO+19+4*g}] offset:{CH + g*1024}"))
            S_(lambda: e.lds("ds_write_b32 v19, v126 offset:48"))
        if t == 36: S_(lambda: e.lds("ds_read_b32 v121, v6 offset:48", "px"))
        if t == 38:
            def chk2():
                e.lg_wait({"px"})
                l = e.newlabel("PX")
                e(f"v_readfirstlane_b32 s82, v121\ns_cmp_eq_u32 s82, 0\ns_cbranch_scc1 {l}")
                e.label(l + "_r")
                slow2.append((l, 6, 48, "s_cmp_lg_u32 s82, 0"))
            S_(chk2)
            for g in range(4): S_(lambda g=g: e.lds(f"ds_read_b128 v[{FO+16+4*g}:{FO+19+4*g}], v5 offset:{CH + g*1024}", "ex"))
        if t == 42:
            for g in range(4):
                def grp(g=g):
                    if g == 0: e.lg_wait({"ex"})
                    for r in range(4*g, 4*g + 4): e(f"v_add_f32 v{FO+r}, v{FO+r}, v{FO+16+r}")
                def grp2(g=g):
                    for r in (4*g, 4*g + 2): e(f"v_cvt_pk_bf16_f32 v{FO+16+r}, v{FO+r}, v{FO+r+1}\nv_mov_b32 v{FO+17+r}, s84")
                def grp3(g=g):
                    stores([f"buffer_store_dwordx4 v[{FO+16+4*g}:{FO+19+4*g}], v18, s[20:23], s41 offen offset:{g*1024}"], "px")
                S_(grp); S_(grp2); S_(grp3)
            S_(lambda: e.lds("ds_write_b32 v19, v126 offset:64"))
        if t == 52: S_(lambda: e.lds("ds_read_b32 v121, v6 offset:64", "rx"))
        e.vm_wait({("A", t)})
        e.lg_wait({("B", t)})
        bl = b_list(t + 3) if t + 3 < NT else []
        for b in range(2):
            e(mfma(acc + 16*b, areg(t), breg(t) + 4*b, t % 28 == 0))
            if b == 0 and t + NA - 1 < NT: a_issue(t + NA - 1)
            for s, tg in bl[2*b:2*b + 2]: e.lds(s, tg)
            if side: side.pop(0)()
        if t == 27: st(e, "ofor")
    assert not side
    RV = 192
    def recv_issue(dst, sb):
        for g in range(4): e(f"buffer_load_dwordx4 v[{dst+4*g}:{dst+4*g+3}], v{LN}, s[20:23], s{sb} offen offset:{g*1024} sc1")
    def recv_check(dst):
        e("s_waitcnt vmcnt(0)")
        e(f"v_min3_u32 v1, s84, v{dst+1}, v{dst+3}\nv_max3_u32 v2, s84, v{dst+1}, v{dst+3}")
        for g in range(1, 4): e(f"v_min3_u32 v1, v1, v{dst+4*g+1}, v{dst+4*g+3}\nv_max3_u32 v2, v2, v{dst+4*g+1}, v{dst+4*g+3}")
        e("v_cmp_eq_u32 vcc, v1, v2\ns_nop 1")
    def recv_finish(dst, sb):
        l = e.newlabel("RV")
        recv_check(dst)
        e(f"s_cmp_eq_u64 vcc, -1\ns_cbranch_scc1 {l}")
        def body():
            recv_issue(dst, sb); recv_check(dst)
        spin(e, body, "s_cmp_eq_u64 vcc, -1", sleep=rsleep)
        e.label(l)
        e.vm = []
        for r in range(0, 16, 2): e(f"v_and_b32 v{dst+r+1}, 0xffff0000, v{dst+r}\nv_lshlrev_b32 v{dst+r}, 16, v{dst+r}")
    LN = 18; rsleep = 1
    recv_issue(RV, 40)
    e.lg0()
    st(e, "oloop")
    l = e.newlabel("RX")
    e(f"v_readfirstlane_b32 s82, v121\ns_cmp_eq_u32 s82, 0\ns_cbranch_scc1 {l}")
    e.label(l + "_r")
    slow2.append((l, 6, 64, "s_cmp_lg_u32 s82, 0"))
    e("s_mov_b32 s28, 0xbfb8aa3b\ns_mov_b32 s29, 0xbfb8aa3b\ns_nop 1")
    for g in range(4): e(f"ds_write_b128 v4, v[{OW+16+4*g}:{OW+19+4*g}] offset:{CH + g*1024}")
    e.lg0()
    e("s_barrier")
    st(e, "fbar")
    for g in range(4): e(f"ds_read_b128 v[{FO+4*g}:{FO+3+4*g}], v5 offset:{CH + g*1024}")
    for g in range(4): e(f"ds_read_b128 v[{24+4*g}:{27+4*g}], v4 offset:{g*1024}")
    recv_finish(RV, 40)
    st(e, "orecv")
    pk = lambda op, d, a, b, x="": e(f"v_pk_{op}_f32 v[{d}:{d+1}], v[{a}:{a+1}], {b} {x}".rstrip())
    R2 = range(0, 16, 2)
    O, PB = OW, OW + 16
    for r in R2: pk("add", O+r, O+r, f"v[{RV+r}:{RV+r+1}]")
    e("s_waitcnt lgkmcnt(0)")
    for r in R2: pk("add", O+r, O+r, f"v[{FO+r}:{FO+r+1}]")
    for r in R2: pk("mul", O+r, O+r, f"v[{RR+r}:{RR+r+1}]")
    for r in R2: pk("mul", PB+r, O+r, "s[28:29]")
    for r in range(16): e(f"v_exp_f32 v{PB+r}, v{PB+r}")
    for r in R2: pk("add", MR+r, MR+r, f"v[{24+r}:{25+r}]")
    for r in R2: pk("add", PB+r, PB+r, "1.0", "op_sel_hi:[1,0]")
    for r in range(16): e(f"v_rcp_f32 v{PB+r}, v{PB+r}")
    for r in R2: pk("mul", O+r, O+r, f"v[{MR+r}:{MR+r+1}]")
    for r in R2:
        e(f"v_pk_fma_f32 v[{PB+r}:{PB+r+1}], v[{PB+r}:{PB+r+1}], v[{O+r}:{O+r+1}], v[{XR+r}:{XR+r+1}]")
        for rr in (r, r + 1):
            so = "0" if rr < 2 else f"s{32 + (rr >> 1)}"
            off = (rr & 1) * 1792
            e(f"buffer_store_dword v{PB+rr}, v116, s[16:19], {so} offen" + (f" offset:{off}" if off else ""))
    e("s_cmp_lg_u32 s5, 15\ns_cbranch_scc1 K_nobump\ns_or_b32 s28, s6, s4\ns_cmp_lg_u32 s28, 0\ns_cbranch_scc1 K_nobump")
    e(f"v_mov_b32 v8, 0\nv_mov_b32 v9, s84\ns_mov_b32 s28, {WS_EP}\ns_mov_b64 exec, 1")
    e("buffer_store_dword v9, v8, s[20:23], s28 offen sc1")
    e("s_mov_b64 exec, -1")
    e.label("K_nobump")
    if pad:
        e.label("K_pad")
        e(f"s_memrealtime s[28:29]\ns_waitcnt lgkmcnt(0)\ns_sub_u32 s28, s28, s96\ns_cmp_lt_u32 s28, {pad}\ns_cbranch_scc1 K_pad")
    st.dump(e); info["F"] = st.names
    e("s_endpgm")
    for l, addr, off, cond in slow2:
        e.label(l)
        lds_wait(addr, off, cond, 121, sleep=0)
        e(f"s_branch {l}_r")
    for l, need in slow:
        e.label(l)
        def body():
            e("ds_read_b128 v[104:107], v8\ns_waitcnt lgkmcnt(0)\nv_min_u32 v104, v104, v105\nv_min3_u32 v104, v104, v106, v107\ns_nop 0\nv_readfirstlane_b32 s82, v104")
        spin(e, body, f"s_cmp_ge_u32 s82, {need}", sleep=0)
        e(f"s_branch {l}_r")

    e.vm = []; e.lg = []
    e.label("K_S")
    st = Stamper(stamps, 143)
    e(f"s_setprio {sprio}")
    e("v_and_b32 v1, 19, v0\nv_bfe_u32 v2, v0, 2, 1\nv_lshl_add_u32 v1, v2, 3, v1\nv_bfe_u32 v2, v0, 3, 1\nv_lshl_add_u32 v1, v2, 2, v1\ns_lshl_b32 s30, s6, 5\nv_add_u32 v1, s30, v1\nv_lshlrev_b32 v1, 1, v1")
    e("v_mov_b32 v244, 0\nv_mov_b32 v245, 0\nv_mov_b32 v246, 0\nv_mov_b32 v247, 0")
    e(f"v_add_u32 v23, s89, v20\nv_add_u32 v24, {RING}, v20")
    e("s_lshl_b32 s31, s4, 1\nv_xor_b32 v6, s31, v22")
    for jj in range(4):
        e(f"v_xor_b32 v5, {2*jj}, v6\nv_lshl_add_u32 v{10+jj}, v5, 4, v23\nv_add_u32 v{14+jj}, 0x10000, v{10+jj}\nv_lshl_add_u32 v{240+jj}, v5, 4, v24")
    e("s_mov_b32 s94, 0x3f803f80\nv_mov_b32 v34, 0\nv_mov_b32 v35, 0\nv_mov_b32 v36, 0\nv_mov_b32 v37, 0")
    e(f"s_mov_b32 s22, {WS_END}\ns_mov_b32 s23, 0x20000\ns_mov_b32 s82, {WS_EP}")
    e(f"v_mov_b32 v18, {FLG}\nv_mov_b32 v19, 1\ns_lshl_b32 s30, s4, 2\ns_add_u32 s30, s30, {FLG}\nv_mov_b32 v20, s30")
    e("v_lshrrev_b32 v4, 3, v0\nv_mul_u32_u24 v4, 0x380, v4\nv_and_b32 v2, 7, v0\nv_lshrrev_b32 v3, 4, v0\nv_xor_b32 v2, v2, v3\nv_lshlrev_b32 v2, 4, v2")
    e(f"v_add_u32 v138, v4, v2\nv_xor_b32 v2, 64, v2\nv_add_u32 v139, v4, v2\nv_add_u32 v139, {8*896-1024}, v139")
    e("s_waitcnt lgkmcnt(0)")
    e.vmem("global_load_short_d16_hi v244, v1, s[34:35]", "par")
    e.vmem("global_load_short_d16_hi v245, v1, s[36:37]", "par")
    e.vmem("global_load_short_d16_hi v246, v1, s[46:47]", "par")
    e("s_mov_b32 s20, s62\ns_and_b32 s21, s63, 0xffff")
    e.vmem("buffer_load_dword v247, v247, s[20:23], s82 offen sc1", "par")
    e("s_bitcmp1_b32 s4, 0\ns_cselect_b64 s[64:65], -1, 0")
    e("s_bitcmp1_b32 s4, 1\ns_cselect_b32 s16, s44, s42\ns_cselect_b32 s17, s45, s43\ns_cselect_b64 s[66:67], -1, 0\ns_mov_b32 s68, 0\ns_mov_b32 s69, -1")
    e(f"s_and_b32 s17, s17, 0xffff\ns_mov_b32 s18, {448*896}\ns_mov_b32 s19, 0x20000")
    e(f"s_lshr_b32 s87, s4, 1\ns_mul_i32 s86, s91, {64*896}\ns_and_b32 s30, s4, 1\ns_lshl_b32 s71, s85, 2\ns_add_u32 s72, s71, 2\ns_add_u32 s71, s71, s30\ns_cmp_eq_u32 s30, 0\ns_cselect_b32 s72, s72, 3")
    e("s_lshl_b32 s71, s71, 7\ns_add_u32 s71, s71, s86\ns_lshl_b32 s72, s72, 7\ns_add_u32 s72, s72, s86\ns_lshl_b32 s73, s85, 6")
    K = []
    def k_(s): K.extend(s.split("\n"))
    k_(f"v_mul_f32 v246, {LOG2E}, v246\nv_exp_f32 v246, v246\ns_nop 0\nv_cvt_pk_bf16_f32 v246, v246, v246\nv_and_b32 v246, 0xffff0000, v246")
    k_(f"v_mul_f32 v5, v246, v244\nv_mul_f32 v6, v246, v245\nv_mul_f32 v5, {LOG2E}, v5\nv_exp_f32 v5, v5")
    k_("v_mul_f32 v6, 0.15915494, v6\nv_rndne_f32 v9, v6\nv_sub_f32 v6, v6, v9\nv_cos_f32 v22, v6\nv_sin_f32 v23, v6\ns_nop 0")
    k_("v_mul_f32 v22, v22, v5\nv_mul_f32 v23, v23, v5")
    k_("v_mul_f32 v5, v244, v244\nv_fma_f32 v5, v245, v245, v5\nv_rcp_f32 v5, v5\nv_add_f32 v6, -1.0, v22")
    k_("v_mul_f32 v30, v6, v244\nv_fma_f32 v30, v23, v245, v30\nv_mul_f32 v31, v23, v244\nv_fma_f32 v31, -v6, v245, v31")
    k_("v_add_f32 v5, v5, v5\nv_mul_f32 v30, v30, v5\nv_mul_f32 v31, v31, v5\nv_xor_b32 v33, 0x80000000, v23")
    def csq(d, s): k_(f"v_mul_f32 v9, v{s}, v{s+1}\nv_mul_f32 v{d}, v{s}, v{s}\nv_fma_f32 v{d}, -v{s+1}, v{s+1}, v{d}\nv_add_f32 v{d+1}, v9, v9")
    def pwmul(mask):
        k_(f"v_cndmask_b32 v5, 1.0, v26, {mask}\nv_cndmask_b32 v6, 0, v27, {mask}")
        k_("v_mul_f32 v9, v28, v6\nv_mul_f32 v28, v28, v5\nv_fma_f32 v28, -v29, v6, v28\nv_fma_f32 v29, v29, v5, v9")
    csq(24, 22); csq(24, 24); csq(24, 24); csq(24, 24)
    k_("v_cndmask_b32 v28, 1.0, v24, s[68:69]\nv_cndmask_b32 v29, 0, v25, s[68:69]")
    csq(26, 24); pwmul("s[64:65]"); csq(26, 26); pwmul("s[66:67]"); csq(26, 26); csq(136, 26)
    QR, QI = 104, 120
    for j in range(16):
        pr, pi = (30, 31) if j == 0 else (QR + j - 1, QI + j - 1)
        k_(f"v_mul_f32 v{QR+j}, v22, v{pr}\nv_mul_f32 v{QI+j}, v22, v{pi}\nv_fmac_f32 v{QR+j}, v33, v{pi}\nv_fmac_f32 v{QI+j}, v23, v{pr}")
    k_("v_xor_b32 v31, 0x80000000, v31\nv_xor_b32 v32, 0x80000000, v30")
    UR, UI = 40, 56
    SF = [144, 192]
    def sreads(sg):
        fs = SF[sg & 1]; out = []
        for j in range(4):
            xb = (10 + j) if sg < 4 else (14 + j)
            out += [f"ds_read_b128 v[{fs+12*j}:{fs+12*j+3}], v{xb} offset:{(sg & 3)*CH}",
                    f"ds_read_b128 v[{fs+12*j+4}:{fs+12*j+7}], v{240+j} offset:{(sg % NR)*8192}",
                    f"ds_read_b128 v[{fs+12*j+8}:{fs+12*j+11}], v{240+j} offset:{(sg % NR)*8192+4096}"]
        return out
    def dots(fs):
        for j in range(4):
            for q in range(4): e(f"v_dot2c_f32_bf16 v37, v{fs+12*j+q}, v{fs+12*j+q}\nv_dot2c_f32_bf16 v36, s94, v{fs+12*j+q}")
        for q in range(4): e(f"v_dot2c_f32_bf16 v34, s94, v{fs+4+q}\nv_dot2c_f32_bf16 v35, s94, v{fs+8+q}")
    Z = []
    def z_(s): Z.extend(s.split("\n"))
    z_("v_mov_b32 v1, v36\nv_mov_b32 v2, v37\ns_nop 1")
    z_("v_permlane32_swap_b32 v36, v1\nv_permlane32_swap_b32 v37, v2\nv_permlane32_swap_b32 v34, v35\ns_nop 1")
    z_("v_add_f32 v34, v34, v35\nv_add_f32 v36, v36, v1\nv_add_f32 v37, v37, v2\nds_write_b32 v248, v34")
    z_("v_mul_f32 v36, 0x3b124925, v36\nv_mul_f32 v37, 0x3b124925, v37")
    z_("v_fma_f32 v37, -v36, v36, v37\nv_max_f32 v37, 0, v37\nv_cvt_pk_bf16_f32 v1, v37, v36")
    z_("v_and_b32 v36, 0xffff0000, v1\nv_lshlrev_b32 v37, 16, v1\nv_add_f32 v37, 0x3727c5ac, v37")
    z_("v_cvt_pk_bf16_f32 v37, v37, v37\nv_and_b32 v37, 0xffff0000, v37\nv_sqrt_f32 v37, v37\ns_nop 0")
    z_("v_cvt_pk_bf16_f32 v37, v37, v37\nv_and_b32 v37, 0xffff0000, v37\nv_rcp_f32 v37, v37\ns_nop 0")
    z_("v_cndmask_b32 v36, v36, v37, s[68:69]\nds_write_b32 v249, v36")
    e(f"s_lshl_b32 s30, s4, 2\ns_add_u32 s30, s30, {CSB}\nv_lshl_add_u32 v248, v0, 4, s30")
    tau_of_lane(e, 249, 2)
    e(f"s_lshl_b32 s30, s4, 7\ns_add_u32 s30, s30, {STAT}\nv_lshl_add_u32 v249, v249, 2, s30\nv_lshl_add_u32 v249, v21, 9, v249\nv_lshl_add_u32 v3, v21, 6, s30")
    e(f"v_and_b32 v250, 31, v0\nv_lshlrev_b32 v250, 4, v250\nv_add_u32 v250, {CSB}, v250")
    st(e, "b0")
    e("s_barrier")
    for x in sreads(0): e(x)
    for sg in range(7):
        fs = SF[sg & 1]
        if sg == 1:
            e.vm_wait({"par"})
            e("v_readfirstlane_b32 s84, v247\ns_add_u32 s84, s84, 1\ns_max_u32 s84, s84, 1")
        e.lg0()
        if sg == 6: dots(fs)
        st(e, f"b{sg+1}")
        e("s_barrier")
        rd = sreads(sg + 1) if sg < 6 else []
        for j in range(4):
            for acc, o in ((UR, 4), (UI, 8)):
                e(mfma(acc, fs+12*j, fs+12*j+o, sg == 0 and j == 0))
                for x in rd[:2]: e(x)
                nk = kint if rd else 4
                rd = rd[2:]
                for _ in range(nk):
                    if sg == 6:
                        if Z: e(Z.pop(0))
                    elif sg >= 1 and K: e(K.pop(0))
        if sg < 6: dots(fs)
    for x in Z: e(x)
    gen = [0]
    def ssync(extra=None):
        gen[0] += 1
        e("s_mov_b64 exec, 1\nds_add_u32 v18, v19 offset:80\ns_mov_b64 exec, -1")
        def body():
            e("ds_read_b32 v1, v18 offset:80")
            if extra: extra()
            e("s_waitcnt lgkmcnt(0)\nv_readfirstlane_b32 s82, v1")
        spin(e, body, f"s_cmp_ge_u32 s82, {4*gen[0]}", sleep=0)
        e.lg = []
    def wait_prog(n):
        def body():
            e("ds_read_b128 v[4:7], v18\ns_waitcnt lgkmcnt(0)\nv_min_u32 v4, v4, v5\nv_min3_u32 v4, v4, v6, v7\ns_nop 0\nv_readfirstlane_b32 s82, v4")
        spin(e, body, f"s_cmp_ge_u32 s82, {n}", sleep=1)
        e.lg = []
    M, R = 72, 88
    e(f"s_setprio {sprio2}")
    if sidle:
        def body():
            e("s_sleep 8\nds_read_b128 v[4:7], v18\ns_waitcnt lgkmcnt(0)\nv_min_u32 v4, v4, v5\nv_min3_u32 v4, v4, v6, v7\ns_nop 0\nv_readfirstlane_b32 s82, v4")
        spin(e, body, "s_cmp_ge_u32 s82, 7", sleep=1)
    TMP = 192
    for q in range(4): e(f"ds_read_b128 v[{M+4*q}:{M+4*q+3}], v3 offset:{16*q}")
    for q in range(4): e(f"ds_read_b128 v[{R+4*q}:{R+4*q+3}], v3 offset:{512+16*q}")
    e(f"s_lshl_b32 s30, s4, 9\ns_add_u32 s30, s30, {SUB}\nv_lshl_add_u32 v2, v0, 3, s30\nv_add_u32 v3, {7*256}, v2")
    ssync(lambda: e(f"ds_read_b128 v[{TMP}:{TMP+3}], v250\nds_read_b128 v[{TMP+4}:{TMP+7}], v250 offset:512"))
    st(e, "ss1")
    t = TMP
    e(f"v_add_f32 v{t}, v{t}, v{t+1}\nv_add_f32 v{t+2}, v{t+2}, v{t+3}\nv_add_f32 v{t+4}, v{t+4}, v{t+5}\nv_add_f32 v{t+6}, v{t+6}, v{t+7}\nv_add_f32 v34, -v{t}, -v{t+2}\nv_add_f32 v35, -v{t+4}, -v{t+6}")
    for j in range(16): e(f"v_fmac_f32 v{UR+j}, v34, v{M+j}\nv_fmac_f32 v{UI+j}, v35, v{M+j}")
    for j in range(16): e(f"v_mul_f32 v{UR+j}, v{UR+j}, v{R+j}\nv_mul_f32 v{UI+j}, v{UI+j}, v{R+j}")
    st(e, "fold")
    for j in range(1, 16):
        e(f"v_fmac_f32 v{UR+j}, v22, v{UR+j-1}\nv_fmac_f32 v{UI+j}, v22, v{UI+j-1}\nv_fmac_f32 v{UR+j}, v33, v{UI+j-1}\nv_fmac_f32 v{UI+j}, v23, v{UR+j-1}")
    st(e, "scan")
    e(f"ds_write2_b32 v3, v{UR+15}, v{UI+15} offset1:1")
    def step(dr, di, hr, hi, ur, ui, lr, li):
        e(f"v_fma_f32 v{dr}, v{lr}, v{hr}, v{ur}\nv_fma_f32 v{di}, v{lr}, v{hi}, v{ui}")
        e(f"v_fma_f32 v{dr}, -v{li}, v{hi}, v{dr}\nv_fma_f32 v{di}, v{li}, v{hr}, v{di}")
    def rdsub():
        for d in range(7): e(f"ds_read_b64 v[{TMP+2*d}:{TMP+1+2*d}], v2 offset:{d*256}")
    ssync(rdsub)
    st(e, "ss")
    for d in range(1, 7):
        dd = (38, 39) if d == 6 else (TMP + 2*d, TMP + 1 + 2*d)
        step(dd[0], dd[1], TMP - 2 + 2*d, TMP - 1 + 2*d, TMP + 2*d, TMP + 1 + 2*d, 24, 25)
    e("s_cmp_lg_u32 s4, 3\ns_cbranch_scc1 K_nopub")
    step(TMP, TMP + 2, 38, 39, UR + 15, UI + 15, 24, 25)
    e(f"v_mov_b32 v{TMP+1}, s84\nv_mov_b32 v{TMP+3}, s84")
    e(f"s_lshl_b32 s30, s6, 4\ns_add_u32 s30, s30, s5\ns_lshl_b32 s30, s30, 9\ns_add_u32 s30, s30, {WS_AGG - 512}")
    e("v_lshlrev_b32 v1, 4, v0\ns_mov_b32 exec_lo, 0")
    e(f"buffer_store_dwordx4 v[{TMP}:{TMP+3}], v1, s[20:23], s30 offen sc1")
    e("s_mov_b32 exec_lo, -1")
    e.label("K_nopub")
    st(e, "pub")
    for x in K: e(x)
    GR, GI = 72, 88
    for j in range(16):
        e(f"v_mul_f32 v{GR+j}, v30, v{UR+j}\nv_mul_f32 v{GI+j}, v32, v{UI+j}\nv_fmac_f32 v{GR+j}, v31, v{UI+j}\nv_fmac_f32 v{GI+j}, v31, v{UR+j}")
    AG = 40
    st(e, "g")
    for i in range(8): e(f"v_mov_b32 v{AG+4*i}, 0\nv_mov_b32 v{AG+4*i+1}, s84\nv_mov_b32 v{AG+4*i+2}, 0\nv_mov_b32 v{AG+4*i+3}, s84")
    e(f"s_lshl_b32 s90, s6, 11\ns_lshl_b32 s30, s4, 8\ns_add_u32 s90, s90, s30\ns_add_u32 s90, s90, {WS_CS}")
    e("v_and_b32 v34, 31, v0\nv_lshlrev_b32 v34, 3, v34\nv_lshl_add_u32 v34, v21, 10, v34")
    e("buffer_load_dwordx2 v[8:9], v34, s[20:23], s90 offen sc1")
    e(f"s_lshl_b32 s92, s6, 4\ns_add_u32 s92, s92, s5\ns_lshl_b32 s92, s92, 9\ns_add_u32 s92, s92, {WS_AGG - 8192}\ns_add_u32 s93, s92, 4096\nv_lshlrev_b32 v3, 4, v0")
    def agg_loads():
        for i in range(8):
            l = e.newlabel("AL")
            e(f"s_cmp_lt_u32 s5, {15 - 2*i}\ns_cbranch_scc1 {l}")
            e(f"s_cmp_ge_u32 s5, {16 - 2*i}\ns_cselect_b32 exec_lo, -1, 0")
            e(f"buffer_load_dwordx4 v[{AG+4*i}:{AG+4*i+3}], v3, s[20:23], s{92 + (i >> 2)} offen offset:{1024*(i & 3)} sc1")
            e.label(l)
        e("s_mov_b32 exec_lo, -1")
    agg_loads()
    st(e, "aggi")
    SEL = 144
    tau_of_lane(e, 1, 2)
    e("v_lshlrev_b32 v2, 4, v21\nv_sub_u32 v1, v1, v2\nv_and_b32 v2, 1, v1\nv_lshlrev_b32 v2, 4, v2\nv_mov_b32 v4, 0x3f80\nv_lshlrev_b32 v2, v2, v4\nv_ashrrev_i32 v1, 1, v1")
    for q in range(0, 8, 2):
        e(f"v_cmp_eq_u32 vcc, {q}, v1\nv_cmp_eq_u32 s[30:31], {q+1}, v1\ns_nop 0\nv_cndmask_b32 v{SEL+q}, 0, v2, vcc\nv_cndmask_b32 v{SEL+q+1}, 0, v2, s[30:31]")
    e(f"s_mul_i32 s76, s5, {2*A_W}\ns_lshl_b32 s30, s6, 13\ns_add_u32 s76, s76, s30\ns_lshl_b32 s30, s4, 10\ns_add_u32 s76, s76, s30\ns_add_u32 s77, s76, {A_W}")
    def rnd(b):
        for r in range(0, 16, 2): e(f"v_cvt_pk_bf16_f32 v{b+r}, v{b+r}, v{b+r+1}")
        for r in range(0, 16, 2): e(f"v_and_b32 v{b+r+1}, 0xffff0000, v{b+r}\nv_lshlrev_b32 v{b+r}, 16, v{b+r}")
    e.vm0()
    st(e, "aggl")
    e("s_mov_b32 s95, 0")
    e.label("K_horner")
    e(f"v_min3_u32 v1, s84, v{AG+1}, v{AG+3}\nv_max3_u32 v2, s84, v{AG+1}, v{AG+3}")
    for i in range(1, 8):
        b = AG + 4*i
        src = (AG, AG + 2) if i == 1 else ((4, 5) if i % 2 == 0 else (6, 7))
        dst = (4, 5) if i % 2 == 1 else (6, 7)
        step(dst[0], dst[1], src[0], src[1], b, b + 2, 136, 137)
        e(f"v_min3_u32 v1, v1, v{b+1}, v{b+3}\nv_max3_u32 v2, v2, v{b+1}, v{b+3}")
    e("v_cmp_eq_u32 vcc, v1, v2\nv_mov_b32 v6, v4\nv_mov_b32 v7, v5\ns_cmp_eq_u64 vcc, -1\ns_cbranch_scc1 K_hok")
    e(f"s_add_u32 s95, s95, 1\ns_cmp_ge_u32 s95, {SPIN_MAX}\ns_cbranch_scc1 K_hok\ns_sleep 4")
    agg_loads()
    e("s_waitcnt vmcnt(0)\ns_branch K_horner")
    e.label("K_hok")
    st(e, "look")
    e("v_permlane32_swap_b32 v4, v6\nv_permlane32_swap_b32 v5, v7\ns_nop 0")
    step(6, 7, 4, 5, 6, 7, 26, 27)
    step(38, 39, 6, 7, 38, 39, 28, 29)
    e("v_xor_b32 v36, 0x80000000, v38\nv_xor_b32 v37, 0x80000000, v39")
    for j in range(0, 16, 2):
        for x in (j, j + 1):
            e(f"v_fmac_f32 v{GR+x}, v38, v{QR+x}\nv_fmac_f32 v{GI+x}, v37, v{QR+x}\nv_fmac_f32 v{GR+x}, v37, v{QI+x}\nv_fmac_f32 v{GI+x}, v36, v{QI+x}")
        e(f"v_cvt_pk_bf16_f32 v{40+j//2}, v{GR+j}, v{GR+j+1}\nv_cvt_pk_bf16_f32 v{48+j//2}, v{GI+j}, v{GI+j+1}")
    st(e, "fin")
    e("s_setprio 3")
    e(mfma(160, 40, SEL, True)); e(mfma(176, 48, SEL, True)); e(mfma(160, 44, SEL + 4)); e(mfma(176, 52, SEL + 4))
    e(f"s_setprio {sprio2}")
    e(f"s_lshl_b32 s78, s5, 1\ns_add_u32 s78, s78, s85\ns_lshl_b32 s78, s78, 10\ns_add_u32 s78, s78, {WS_FH}\ns_add_u32 s30, s76, 4096\ns_add_u32 s31, s77, 4096\ns_nop 3")
    for r in range(16): e(f"v_cvt_pk_bf16_f32 v{56+r}, v{160+2*r}, v{161+2*r}")
    st(e, "ht")
    stores([f"buffer_store_dwordx4 v[56:59], v3, s[20:23], s76 offen", "buffer_store_dwordx4 v[60:63], v3, s[20:23], s30 offen",
            f"buffer_store_dwordx4 v[64:67], v3, s[20:23], s77 offen", "buffer_store_dwordx4 v[68:71], v3, s[20:23], s31 offen"], "h")
    st(e, "hst")
    e("v_cmp_eq_u32 vcc, s84, v9\ns_nop 1\ns_cmp_eq_u64 vcc, -1\ns_cbranch_scc1 K_cs_ok")
    def body():
        e("buffer_load_dwordx2 v[8:9], v34, s[20:23], s90 offen sc1\ns_waitcnt vmcnt(0)\nv_cmp_eq_u32 vcc, s84, v9\ns_nop 1")
    spin(e, body, "s_cmp_eq_u64 vcc, -1", sleep=2)
    e.label("K_cs_ok")
    e(f"s_lshl_b32 s30, s4, 8\ns_add_u32 s30, s30, {CSW}\nv_lshl_add_u32 v1, v0, 2, s30")
    e("ds_write_b32 v1, v8\nds_write_b32 v20, v19 offset:16")
    e(f"s_lshl_b32 s30, s87, 14\ns_xor_b32 s31, s30, 0x4000\ns_and_b32 s29, s4, 1\ns_lshl_b32 s29, s29, 12\ns_sub_u32 s29, {SC}, s29\ns_add_u32 s30, s30, s29\ns_add_u32 s31, s31, s29\ns_lshl_b32 s29, s4, 5")
    for j in range(4): e(f"v_xor_b32 v{10+j}, s29, v{10+j}\nv_add_u32 v{14+j}, s31, v{10+j}\nv_add_u32 v{10+j}, s30, v{10+j}")
    e("s_lshl_b32 s30, s91, 7\ns_lshl_b32 s31, s4, 2\ns_add_u32 s31, s31, s30\nv_mov_b32 v4, s31\nv_mov_b32 v5, s84")
    e.vm_wait({"h"})
    e("s_mov_b64 exec, 1")
    stores(["buffer_store_dword v5, v4, s[20:23], s78 offen"], "fl")
    e("s_mov_b64 exec, -1")
    st(e, "hflag")
    e(f"s_lshl_b32 s92, s5, 1\ns_add_u32 s92, s92, s87\ns_mul_i32 s92, s92, {A_W}\ns_lshl_b32 s30, s85, 13\ns_add_u32 s93, s92, s30\ns_add_u32 s93, s93, {3*CH}\ns_lshl_b32 s30, s85, 16\ns_add_u32 s92, s92, s30")
    e("v_and_b32 v8, 7, v0\nv_min_u32 v8, 6, v8\nv_lshlrev_b32 v8, 7, v8\nv_and_b32 v1, 8, v0\nv_add_u32 v8, v8, v1\ns_and_b32 s30, s4, 1\ns_lshl_b32 s31, s30, 2\nv_add_u32 v8, s31, v8")
    e("s_lshl_b32 s30, s30, 10\ns_lshl_b32 s31, s85, 11\ns_add_u32 s30, s30, s31\nv_add_u32 v23, s30, v3\nv_xor_b32 v22, 0x800, v23")
    e(f"s_mul_i32 s76, s5, 7\ns_add_u32 s76, s76, s91\ns_lshl_b32 s76, s76, 1\ns_add_u32 s76, s76, s85\ns_lshl_b32 s76, s76, 15\ns_add_u32 s76, s76, s89\ns_xor_b32 s77, s76, 0x8000\ns_add_u32 s76, s76, {WS_PX}\ns_add_u32 s77, s77, {WS_PX}")
    def c_dma(r, parts=(0, 1)):
        for ip in range(4):
            if (ip >> 1) not in parts: continue
            e(f"s_add_u32 m0, s89, {SC + (ip >> 1)*CH + (ip & 1)*2048}\ns_add_u32 s83, s{71+r}, {ip*16*896}")
            e.vmem("buffer_load_dwordx4 v138, s[16:19], s83 offen lds", ("c", r))
            if pace: e(f"s_sleep {pace}")
            e.vmem("buffer_load_dwordx4 v139, s[16:19], s83 offen offset:1024 lds", ("c", r))
            if pace: e(f"s_sleep {pace}")
    def creg(k): return 144 + 8 * k
    def c_pull(r):
        for k in range(8*r, min(14, 8*r + 8)):
            if k == 12:
                for j in (0, 1, 4, 5): e(f"v_xor_b32 v{10+j}, s73, v{10+j}")
            for b in range(2):
                g = creg(k) + 4*b
                e(f"ds_read_b128 v[{g}:{g+3}], v{10 + 4*b + (k & 3)} offset:{((k >> 2) & 1)*4096}")
        e.lg0()
    wait_prog(4)
    c_dma(0, (0,))
    wait_prog(5)
    c_dma(0, (1,))
    e.vm0()
    ssync()
    c_pull(0)
    ssync()
    st(e, "c0")
    c_dma(1)
    def body():
        e("buffer_load_dword v9, v8, s[20:23], s78 offen sc1\ns_waitcnt vmcnt(0)\nv_cmp_eq_u32 vcc, s84, v9\ns_nop 1")
    spin(e, body, "s_cmp_eq_u64 vcc, -1", sleep=4)
    e.vm = []
    st(e, "hseen")
    NP = 10
    YA = [64, 96]
    def yreg(t): return 24 + 4*(t % NP)
    def yissue(t):
        k = t >> 1
        if (t & 1) == 0 and k > 0: e("s_mov_b32 s92, s93" if k == 12 else "s_add_u32 s92, s92, 4096")
        e.vmem(f"buffer_load_dwordx4 v[{yreg(t)}:{yreg(t)+3}], v{22 + (t & 1)}, s[20:23], s92 offen sc1", ("A", t))
    for t in range(ypre): yissue(t)
    ssync()
    c_pull(1)
    st(e, "c1")
    lds_wait(20, 32, "s_cmp_lg_u32 s82, 0", 1)
    st(e, "epid")
    e("s_setprio 3")
    for t in range(ypre, NP - 1): yissue(t)
    for t in range(28):
        k = t >> 1
        e.vm_wait({("A", t)})
        for b in range(2):
            e(mfma(YA[t & 1] + 16*b, yreg(t), creg(k) + 4*b, k == 0))
            if b == 0 and t + NP - 1 < 28: yissue(t + NP - 1)
    st(e, "yloop")
    e(f"s_add_u32 s31, s89, {SC}\nv_add_u32 v10, s31, v3\nv_xor_b32 v11, 0x2000, v10")
    ssync()
    for ps in range(2):
        for g in range(4): e(f"ds_write_b128 v10, v[{YA[ps]+16+4*g}:{YA[ps]+19+4*g}] offset:{ps*CH + g*1024}")
    ssync()
    for ps in range(2):
        for g in range(4): e(f"ds_read_b128 v[{YA[ps]+16+4*g}:{YA[ps]+19+4*g}], v11 offset:{ps*CH + g*1024}")
    e("s_waitcnt lgkmcnt(4)")
    Y = YA[0]
    for r in range(16): e(f"v_add_f32 v{Y+r}, v{Y+r}, v{Y+16+r}")
    for r in range(0, 16, 2): e(f"v_cvt_pk_bf16_f32 v{24+r}, v{Y+r}, v{Y+r+1}\nv_mov_b32 v{25+r}, s84")
    stores([f"buffer_store_dwordx4 v[{24+4*g}:{27+4*g}], v3, s[20:23], s77 offen offset:{g*1024}" for g in range(4)], "px")
    e("s_waitcnt lgkmcnt(0)\ns_mov_b64 exec, 1\nds_add_u32 v18, v19 offset:84\ns_mov_b64 exec, -1")
    st(e, "ysent")
    e("s_setprio 0")
    Y = YA[1]
    for r in range(16): e(f"v_add_f32 v{Y+r}, v{Y+r}, v{Y+16+r}")
    LN = 3; rsleep = 16
    e("s_waitcnt vmcnt(0)")
    recv_issue(144, 76)
    recv_finish(144, 76)
    st(e, "yrecv")
    for r in range(16): e(f"v_add_f32 v{Y+r}, v{Y+r}, v{144+r}")
    lds_wait(18, 84, "s_cmp_ge_u32 s82, 4", 1, sleep=0)
    for g in range(4): e(f"ds_write_b128 v10, v[{Y+4*g}:{Y+3+4*g}] offset:{g*1024}")
    e.lg0()
    if stamps: e("s_barrier")
    st.dump(e); info["S"] = st.names
    e("s_endpgm")

    e.vm = []; e.lg = []
    e.label("K_SPARE")
    st = Stamper(stamps, 143)
    e("s_getpc_b64 s[28:29]")
    e.label("K_PC")
    e(f"s_sub_u32 s28, s28, K_PC-{name}\ns_subb_u32 s29, s29, 0")
    e(f"v_lshlrev_b32 v7, 7, v2\nv_min_u32 v5, ALL_END-{name}-4, v7")
    e("s_cmp_lt_u32 s2, 248\ns_cbranch_scc1 K_sp0")
    e("global_load_dword v83, v5, s[28:29]")
    e.label("K_sp0")
    e("s_sub_u32 s4, s2, 224\ns_lshr_b32 s5, s4, 1\ns_and_b32 s6, s4, 1")
    e("v_lshrrev_b32 v3, 4, v2\nv_and_b32 v4, 15, v2\nv_mul_u32_u24 v5, 0xe00, v3\nv_lshl_add_u32 v5, v4, 4, v5")
    e(f"v_mov_b32 v6, 0\ns_mov_b32 s82, {WS_EP}\ns_lshl_b32 s28, s5, 8")
    e("s_cmp_eq_u32 s6, 0")
    e("s_waitcnt lgkmcnt(0)")
    e("s_cselect_b32 s16, s52, s54\ns_cselect_b32 s17, s53, s55")
    e(f"s_and_b32 s17, s17, 0xffff\ns_mov_b32 s18, {448*3584}\ns_mov_b32 s19, 0x20000")
    srd(e, 20, 62, WS_END)
    srd(e, 8, 56, 1792 * 896)
    srd(e, 64, 42, 448 * 896)
    srd(e, 68, 44, 448 * 896)
    e("s_cmp_ge_u32 s4, 28\ns_cbranch_scc1 K_sp4")
    e.vmem("buffer_load_dword v6, v6, s[20:23], s82 offen sc1", "ep")
    for i in range(14):
        e.vmem(f"buffer_load_dwordx4 v[{16+4*i}:{19+4*i}], v5, s[16:19], s28 offen", ("cs", i))
        if i < 13: e(f"s_add_u32 s28, s28, {32*3584}")
    for q in range(8): e(f"v_mov_b32 v{8+q}, 0")
    for i in range(14):
        e.vm_wait({("cs", i)})
        for q in range(4):
            e(f"v_lshlrev_b32 v72, 16, v{16+4*i+q}\nv_and_b32 v73, 0xffff0000, v{16+4*i+q}\nv_pk_add_f32 v[{8+2*q}:{9+2*q}], v[{8+2*q}:{9+2*q}], v[72:73]")
    e("v_lshlrev_b32 v3, 5, v2")
    e("ds_write_b128 v3, v[8:11]\nds_write_b128 v3, v[12:15] offset:16\ns_waitcnt lgkmcnt(0)")
    st(e, "acc")
    e("s_barrier")
    e("s_cmp_lg_u32 s3, 7\ns_cbranch_scc1 K_sp2")
    e("v_lshlrev_b32 v3, 3, v0\nv_add_u32 v9, 1, v6\nv_max_u32 v9, 1, v9\nv_mov_b32 v11, v9")
    for h in range(2):
        for i in range(16): e(f"ds_read_b64 v[{16+2*i}:{17+2*i}], v3 offset:{(16*h+i)*512}")
        e("s_waitcnt lgkmcnt(0)")
        if h == 0: e("v_mov_b32 v12, 0\nv_mov_b32 v13, 0")
        for i in range(16): e(f"v_pk_add_f32 v[12:13], v[12:13], v[{16+2*i}:{17+2*i}]")
    e(f"v_mov_b32 v8, v12\nv_mov_b32 v10, v13\nv_lshlrev_b32 v3, 4, v0\ns_lshl_b32 s30, s4, 10\ns_add_u32 s30, s30, {WS_CS}")
    e("buffer_store_dwordx4 v[8:11], v3, s[20:23], s30 offen sc1")
    e.label("K_sp2")
    e("s_barrier")
    e.label("K_sp4")
    if warm:
        e("s_lshr_b32 s28, s4, 3\ns_mul_i32 s28, s28, 100352\ns_bfe_u32 s29, s4, 0x10002\ns_mul_i32 s30, s29, 384\ns_add_u32 s28, s28, s30")
        e("v_lshrrev_b32 v3, 2, v2\nv_mul_u32_u24 v3, 0x380, v3\nv_and_b32 v4, 3, v2\nv_lshl_add_u32 v3, v4, 7, v3")
        e("s_cmp_eq_u32 s3, 7\ns_cbranch_scc1 K_sp5")
        e("buffer_load_dword v81, v3, s[64:67], s28 offen\nbuffer_load_dword v82, v3, s[68:71], s28 offen")
        e.label("K_sp5")
        e(f"s_mul_i32 s28, s29, {7*UNIT}\ns_lshr_b32 s30, s4, 3\ns_mul_i32 s30, s30, {7*UNIT//4}\ns_add_u32 s28, s28, s30")
        for q in range(3):
            e(f"buffer_load_dword v{84+q}, v7, s[8:11], s28 offen\ns_add_u32 s28, s28, 65536")
    e.label("K_sp3")
    st.dump(e); info["sp"] = st.names
    e.label("K_END")
    e("s_endpgm")
    e.label("ALL_END")
    return khead(name) + e.text(), kd(name, 256, 256), info

if __name__ == "__main__":
    import sys, json
    NAME = "recurrent_scan__ssm_conv_s5__glu_gated_reglu__prompt_kernel"
    stamps = "stamps" in sys.argv
    kw = {}
    for a in sys.argv[2:]:
        if "=" in a:
            k, v = a.split("="); kw[k] = int(v)
    b, d, info = gen_fused(NAME, stamps=stamps, **kw)
    hdr = open("recurrent_scan__ssm_conv_s5__glu_gated_reglu__prompt.s.ref").read().split("; Override")[0]
    txt = hdr + f"; @launch grid=(256,1,1) block=(512,1,1) lds={LDS_BYTES}\n"
    if stamps: txt += "; STAMPS " + json.dumps(info) + "\n"
    txt += '.amdgcn_target "amdgcn-amd-amdhsa--gfx950"\n' + b + d
    open(sys.argv[1], "w").write(txt)
```

```python
from asmlib import *
from layout7 import *
LDS_BYTES = 163840
RING = 114688
NR = 5
MISC = RING + NR * 8192
STAT = MISC
CSB = MISC + 1024
CSW = MISC + 2048
SUB = MISC + 3072
FLG = MISC + 7168
LOG2E = 0x3fb8aa3b
SPIN_MAX = 0x200000
UNIT = 114688
CH = 16384
SC = 3 * CH

def mfma(d, a, b, first=False):
    c = "0" if first else f"v[{d}:{d+15}]"
    return f"v_mfma_f32_32x32x16_bf16 v[{d}:{d+15}], v[{a}:{a+3}], v[{b}:{b+3}], {c}"

class Stamper:
    def __init__(self, on, vreg): self.on = on; self.n = 0; self.v = vreg; self.names = []
    def __call__(self, e, name=""):
        if not self.on: return
        e.lg0()
        e(f"v_writelane_b32 v{self.v}, s80, {self.n}\ns_memtime s[80:81]")
        self.n += 1; self.names.append(name)
        assert self.n <= 60
    def dump(self, e):
        if not self.on: return
        e("s_waitcnt vmcnt(0)")
        self(e, "end"); self(e)
        e("s_memrealtime s[80:81]\ns_waitcnt lgkmcnt(0)")
        e(f"v_writelane_b32 v{self.v}, s96, 62\nv_writelane_b32 v{self.v}, s80, 63\ns_mov_b32 s80, {self.n}\nv_writelane_b32 v{self.v}, s80, 61")
        e(f"s_mov_b32 s22, {WS_END + (1<<20)}")
        e("s_lshl_b32 s82, s2, 3\ns_add_u32 s82, s82, s3\ns_lshl_b32 s82, s82, 8")
        e(f"s_add_u32 s82, s82, {WS_END}")
        e("v_lshlrev_b32 v1, 2, v0")
        e(f"buffer_store_dword v{self.v}, v1, s[20:23], s82 offen")

def spin(e, body, cond_ok, sleep=1):
    l = e.newlabel("SP")
    e("s_mov_b32 s95, 0")
    e.label(l)
    body()
    e(cond_ok)
    e(f"s_cbranch_scc1 {l}_ok")
    if sleep: e(f"s_sleep {sleep}")
    e(f"s_add_u32 s95, s95, 1\ns_cmp_lt_u32 s95, {SPIN_MAX}\ns_cbranch_scc1 {l}")
    e.label(l + "_ok")

def tau_of_lane(e, d, t):
    e(f"v_bfe_u32 v{d}, v0, 2, 1\nv_lshlrev_b32 v{d}, 4, v{d}\nv_bfe_u32 v{t}, v0, 3, 2\nv_lshl_add_u32 v{d}, v{t}, 2, v{d}\nv_and_b32 v{t}, 3, v0\nv_add_u32 v{d}, v{d}, v{t}")

def plan_slots():
    wslot = {n: ("r", ((n + 2) % NR) * 8192) for n in range(5)}
    issue = {}
    nxt = 5
    free = []
    for n in range(28):
        if n in (5, 9, 13):
            c = (n >> 2) - 1
            free += [("c", c * CH), ("c", c * CH + 2048)]
        free.append(wslot[n])
        issue[n] = []
        while free and nxt < 28 and len(issue[n]) < 2:
            wslot[nxt] = free.pop(0); issue[n].append(nxt); nxt += 1
    last = max(n for n in issue if issue[n])
    used_after = {}
    inv = {}
    for n in range(28): inv[wslot[n]] = n
    order = sorted(inv.items(), key=lambda x: x[1])
    wd = [(sl, n + 1, 0) for sl, n in order]
    wd += [(("c", 5 * CH), 0, 6), (("c", 5 * CH + 2048), 0, 6), (("c", 6 * CH), 0, 7)]
    assert len(wd) == 14, len(wd)
    return wslot, issue, wd, last

def gen_fused(name, stamps=False, D0=3, pad=0, ra=2, kint=3, fine=1, sidle=0, sprio=3, sprio2=0, fprio=2, NA=16, pace=0, warm=1, ypre=0, dwarm=0, outfl='nt', force=0, bulk=0):
    e = Em2()
    info = {}
    wslot, wissue, wdslot, wlast = plan_slots()
    def stores(ins_list, tag):
        for x in ins_list: e.vmem(x + " sc1", tag)
    def dual(ins_list, tag, on=True):
        if not on: return stores(ins_list, tag)
        l = e.newlabel("DS")
        e(f"s_cmp_eq_u32 s97, 2\ns_cbranch_scc1 {l}_l")
        for x in ins_list: e(x + " sc1")
        e(f"s_branch {l}_e")
        e.label(l + "_l")
        for x in ins_list: e.vmem(x, tag)
        e.label(l + "_e")
    def wd_setup(va, sr):
        e(f"v_lshrrev_b32 v{va}, 3, v0\nv_mul_u32_u24 v{va}, 0x380, v{va}\nv_bfe_u32 v{va+1}, v0, 4, 1\nv_lshlrev_b32 v{va+1}, 2, v{va+1}")
        e(f"v_and_b32 v1, 7, v0\nv_xor_b32 v1, v1, v{va+1}\nv_lshl_add_u32 v{va}, v1, 4, v{va}\nv_add_u32 v{va+1}, {8*896-1024}, v{va}")
        srd(e, sr, 56, 1792 * 896)
        e("s_lshl_b32 s98, s99, 1")
        e(f"s_mul_i32 s88, s4, {32*896}\ns_lshl_b32 s82, s91, 7\ns_add_u32 s88, s88, s82\ns_mul_i32 s82, s85, {7*UNIT}\ns_add_u32 s88, s88, s82")
        e(f"s_mul_i32 s64, s98, {UNIT}\ns_add_u32 s64, s64, s88\ns_add_u32 s88, s88, {7*UNIT}")
        for u in range(1, 7):
            e(f"s_add_u32 s{64+u}, s{63+u}, {UNIT}\ns_cmp_ge_u32 s{64+u}, s88\ns_cselect_b32 s82, {7*UNIT}, 0\ns_sub_u32 s{64+u}, s{64+u}, s82")
    def wd_dma(k, va, sr):
        kind, off = wdslot[k][0]
        e(f"s_add_u32 m0, s{89 if kind == 'c' else 79}, {off}\ns_add_u32 s82, s{64+(k>>1)}, {(k&1)*16*896}")
        e.vmem(f"buffer_load_dwordx4 v{va}, s[{sr}:{sr+3}], s82 offen lds", ("wd", k))
        e.vmem(f"buffer_load_dwordx4 v{va+1}, s[{sr}:{sr+3}], s82 offen offset:1024 lds", ("wd", k))
    def wd_half(k, hf):
        kind, off = wdslot[k][0]
        e(f"s_add_u32 m0, s{89 if kind == 'c' else 79}, {off}\ns_add_u32 s82, s{64+(k>>1)}, {(k&1)*16*896}")
        e.vmem(f"buffer_load_dwordx4 v{2+hf}, s[12:15], s82 offen" + (" offset:1024" if hf else "") + " lds", ("wd", k))
    def lds_wait(addr, off, cond, tmp, sleep=1):
        def body(): e(f"ds_read_b32 v{tmp}, v{addr} offset:{off}\ns_waitcnt lgkmcnt(0)\nv_readfirstlane_b32 s82, v{tmp}")
        spin(e, body, cond, sleep=sleep)
        e.lg = []
    e("s_cmp_ge_u32 s2, 256")
    e("s_cbranch_scc1 K_END")
    if stamps: e("s_memrealtime s[96:97]\ns_memtime s[80:81]")
    elif pad: e("s_memrealtime s[96:97]")
    e("s_load_dwordx16 s[32:47], s[0:1], 0")
    e("s_load_dwordx16 s[48:63], s[0:1], 64")
    e("v_lshrrev_b32 v1, 6, v0\nv_mov_b32 v2, v0\nv_and_b32 v0, 63, v0\nv_readfirstlane_b32 s3, v1")
    e("s_cmp_ge_u32 s2, 224")
    e("s_cbranch_scc1 K_SPARE")
    e("s_and_b32 s4, s3, 3\ns_and_b32 s8, s2, 7\ns_lshr_b32 s9, s2, 3")
    e("s_and_b32 s5, s8, 3\ns_lshl_b32 s5, s5, 2\ns_and_b32 s99, s9, 3\ns_add_u32 s5, s5, s99")
    e("s_lshr_b32 s85, s8, 2\ns_lshr_b32 s91, s9, 2\ns_mul_i32 s6, s85, 7\ns_add_u32 s6, s6, s91")
    e("v_and_b32 v20, 31, v0\nv_lshrrev_b32 v21, 5, v0\nv_bfe_u32 v22, v0, 1, 3\nv_xor_b32 v22, v22, v21\nv_lshlrev_b32 v20, 7, v20")
    e(f"s_lshl_b32 s89, s4, 12\ns_lshl_b32 s79, s4, 11\ns_add_u32 s79, s79, {RING}")
    e("s_cmp_ge_u32 s3, 4")
    e("s_cbranch_scc1 K_S")

    st = Stamper(stamps, 127)
    e(f"s_setprio {fprio}")
    e(f"s_mul_i32 s10, s99, {ra}\ns_add_u32 s7, s91, s10")
    e("s_cmp_ge_u32 s7, 7\ns_cselect_b32 s10, 7, 0\ns_sub_u32 s7, s7, s10")
    e("s_lshl_b32 s64, s7, 7")
    for c in range(1, 7):
        e(f"s_add_u32 s{64+c}, s{63+c}, 128\ns_cmp_ge_u32 s{64+c}, 896\ns_cselect_b32 s{64+c}, 0, s{64+c}")
    e("v_lshrrev_b32 v8, 3, v0\nv_and_b32 v9, 7, v0\nv_lshrrev_b32 v7, 4, v0\nv_xor_b32 v9, v9, v7\nv_lshlrev_b32 v9, 4, v9\nv_xor_b32 v7, 64, v9")
    e("v_and_b32 v6, 3, v8\nv_lshl_add_u32 v5, v21, 4, v6\nv_lshl_add_u32 v6, v21, 3, v6\nv_mul_u32_u24 v5, 0x380, v5\nv_mul_u32_u24 v6, 0x380, v6")
    e("v_add_u32 v1, v5, v9\nv_add_u32 v2, v5, v7\nv_add_u32 v2, 2560, v2\nv_add_u32 v3, 5120, v1\nv_add_u32 v4, 5120, v2")
    e(f"v_add_u32 v5, v6, v9\nv_add_u32 v6, v6, v7\nv_add_u32 v6, {4*896-1024}, v6")
    e("s_lshl_b32 s28, s5, 7\ns_lshl_b32 s29, s4, 5\ns_add_u32 s28, s28, s29\ns_mul_i32 s28, s28, 896")
    e("s_lshl_b32 s29, s6, 5\ns_and_b32 s30, s4, 1\ns_lshl_b32 s30, s30, 4\ns_add_u32 s29, s29, s30\ns_mul_i32 s29, s29, 896")
    e(f"s_mov_b32 s10, {2048*896}\ns_mov_b32 s11, 0x20000\ns_mov_b32 s14, {448*896}\ns_mov_b32 s15, 0x20000")
    e("s_waitcnt lgkmcnt(0)")
    st(e, "karg")
    e("s_cmp_lt_u32 s4, 2")
    e("s_cselect_b32 s12, s38, s40\ns_cselect_b32 s13, s39, s41\ns_mov_b32 s8, s32\ns_and_b32 s9, s33, 0xffff\ns_and_b32 s13, s13, 0xffff")
    def xb_burst(c):
        e(f"s_add_u32 m0, s89, {c*CH}\ns_add_u32 s83, s28, s{64+c}")
        for ii in range(4):
            e.vmem(f"buffer_load_dwordx4 v{1+ii}, s[8:11], s83 offen" + (f" offset:{ii*1024}" if ii else "") + " lds", ("x", c))
        e(f"s_add_u32 m0, s79, {(c % NR)*8192}\ns_add_u32 s83, s29, s{64+c}")
        e.vmem("buffer_load_dwordx4 v5, s[12:15], s83 offen lds", ("x", c))
        e.vmem("buffer_load_dwordx4 v6, s[12:15], s83 offen offset:1024 lds", ("x", c))
    xb_burst(0)
    srd(e, 20, 62, WS_END)
    e(f"v_mov_b32 v120, 0\ns_mov_b32 s82, {WS_EP}")
    e.vmem("buffer_load_dword v120, v120, s[20:23], s82 offen sc1", "ep")
    e(f"v_mov_b32 v124, 0\nv_mov_b32 v125, 0\ns_lshl_b32 s31, s4, 9\ns_add_u32 s31, s31, {SUB}\nv_lshl_add_u32 v8, v0, 3, s31")
    e.lds("ds_write_b64 v8, v[124:125]")
    e(f"v_lshlrev_b32 v8, 2, v0\nv_add_u32 v8, {FLG}, v8")
    e.lds("ds_write_b32 v8, v124")
    for jj in range(4):
        e(f"v_xor_b32 v{10+jj}, {2*jj}, v22\nv_lshl_add_u32 v{10+jj}, v{10+jj}, 4, v20\nv_add_u32 v{14+jj}, 0x10000, v{10+jj}")
    if D0 > 1: xb_burst(1)
    srd(e, 16, 52, 448 * 3584)
    srd(e, 24, 54, 448 * 3584)
    e("s_lshl_b32 s31, s6, 8\ns_lshl_b32 s82, s4, 6\ns_add_u32 s31, s31, s82")
    for c in range(7): e(f"s_mul_i32 s{72+c}, s{64+c}, 1792\ns_add_u32 s{72+c}, s{72+c}, s31")
    e("v_lshrrev_b32 v7, 2, v0\nv_mul_u32_u24 v7, 0xe00, v7\nv_and_b32 v8, 3, v0\nv_lshl_add_u32 v7, v8, 4, v7")
    e("v_bfe_u32 v8, v0, 2, 2\nv_lshl_add_u32 v8, v21, 3, v8\nv_lshlrev_b32 v9, 6, v8")
    e("v_bfe_u32 v8, v0, 4, 1\nv_lshl_add_u32 v9, v8, 5, v9\nv_and_b32 v8, 3, v0\nv_lshl_add_u32 v9, v8, 3, v9\nv_add_u32 v125, s89, v9\nv_add_u32 v9, s79, v9")
    e("v_lshlrev_b32 v18, 4, v0")
    e(f"s_lshl_b32 s31, s4, 2\ns_add_u32 s31, s31, {FLG}\nv_mov_b32 v19, s31")
    e(f"s_lshl_b32 s31, s4, 8\ns_add_u32 s31, s31, {CSW}\nv_lshl_add_u32 v122, v21, 4, s31")
    tau_of_lane(e, 123, 8)
    e(f"v_lshlrev_b32 v123, 2, v123\nv_add_u32 v123, {STAT}, v123\nv_mov_b32 v8, {FLG}")
    e(f"s_lshl_b32 s92, s5, 2\ns_add_u32 s92, s92, s4\ns_mul_i32 s92, s92, {A_W}\ns_add_u32 s92, s92, {WS_AO}\ns_lshl_b32 s31, s6, 13\ns_add_u32 s86, s92, s31\ns_add_u32 s87, s86, 4096")
    for c in range(2, D0): xb_burst(c)
    def w_issue(n, mt):
        c, jj = n >> 2, n & 3
        kind, off = wslot[n]
        e(f"s_add_u32 m0, s{89 if kind == 'c' else 79}, {off + mt*1024}\ns_add_u32 s83, s{72+c}, {16*jj*3584}")
        e.vmem(f"buffer_load_dwordx4 v7, s[{16+8*mt}:{19+8*mt}], s83 offen lds", ("w", n))
    FS = [24, 48]
    def reads(n):
        fs = FS[n & 1]; c, jj = n >> 2, n & 3
        xb = (10 + jj) if c < 4 else (14 + jj)
        xo = (c & 3) * CH
        kind, wo = wslot[n]
        wb = 125 if kind == "c" else 9
        X = lambda rt: (f"ds_read_b128 v[{fs+4*rt}:{fs+4*rt+3}], v{xb} offset:{xo + rt*4096}", ("X", n, rt))
        Wr = lambda mt, u2: (f"ds_read_b64_tr_b16 v[{fs+16+4*mt+2*u2}:{fs+17+4*mt+2*u2}], v{wb} offset:{wo + mt*1024 + u2*256}", ("W", n))
        return [Wr(0, 0), Wr(0, 1), X(0), Wr(1, 0), Wr(1, 1), X(1), X(2), X(3)]
    for sg in range(8):
        tags = {("x", sg)}
        if sg == 1: tags.add("ep")
        e.vm_wait(tags)
        if sg == 0: e.lg0()
        if sg == 7:
            e.vm_wait({("w", 0)})
            for s, t in reads(0): e.lds(s, t)
        st(e, f"b{sg}")
        e("s_barrier")
        if sg + D0 < 7: xb_burst(sg + D0)
        if 3 <= sg < 7:
            w_issue(sg - 3, 0); w_issue(sg - 3, 1)
        if sg == 1: e("v_readfirstlane_b32 s84, v120\ns_add_u32 s84, s84, 1\ns_max_u32 s84, s84, 1")
        if sg == 5: wd_setup(2, 12)
    w_issue(4, 0); w_issue(4, 1)
    CS = 72; T = 104
    cs_rd = [("ds_read_b32 v121, v19 offset:16", "cs")] + [(f"ds_read_b32 v{20+rt}, v123 offset:{rt*128}", "cs") for rt in range(4)]
    cs_rd += [(f"ds_read_b128 v[{CS+16*mt+4*q}:{CS+16*mt+4*q+3}], v122 offset:{mt*128 + q*32}", "cs") for mt in range(2) for q in range(4)]
    p2 = []
    def p_(s): p2.extend(s.split("\n"))
    p_("v_bfe_u32 v112, v0, 2, 2\nv_lshrrev_b32 v113, 5, v0\nv_lshl_add_u32 v113, v113, 2, v112\nv_lshlrev_b32 v113, 7, v113")
    p_("s_lshr_b32 s31, s4, 1\nv_lshrrev_b32 v112, 1, v112\nv_xor_b32 v112, s31, v112\nv_lshl_add_u32 v113, v112, 6, v113")
    p_("v_bfe_u32 v112, v0, 4, 1\nv_lshl_add_u32 v113, v112, 5, v113\nv_and_b32 v112, 3, v0\nv_lshl_add_u32 v113, v112, 3, v113\nv_xor_b32 v112, 64, v113")
    p_(f"s_lshl_b32 s30, s31, 13\ns_lshl_b32 s31, s31, 12\ns_add_u32 s31, s31, {RING}")
    p_("v_add_u32 v108, s30, v113\nv_add_u32 v109, s30, v112\nv_add_u32 v110, s31, v113\nv_add_u32 v111, s31, v112\nv_add_u32 v112, 0x10000, v108\nv_add_u32 v113, 0x10000, v109")
    p_(f"s_lshl_b32 s93, s5, 1\ns_add_u32 s93, s93, s85\ns_lshl_b32 s93, s93, 10\ns_add_u32 s93, s93, {WS_FO}")
    p_(f"s_and_b32 s31, s4, 1\ns_mul_i32 s31, s31, {A_W}\ns_sub_u32 s92, s92, s31")
    p_(f"s_mul_i32 s31, s85, {7*8192}\ns_add_u32 s92, s92, s31\ns_xor_b32 s31, s85, 1\ns_lshl_b32 s31, s31, 11\ns_add_u32 s92, s92, s31")
    p_(f"s_lshl_b32 s90, s98, 13\ns_add_u32 s90, s90, s92\ns_add_u32 s92, s92, {7*8192}\ns_add_u32 s71, s90, {A_W}")
    p_("s_lshl_b32 s29, s85, 6\ns_and_b32 s31, s4, 1\ns_lshl_b32 s31, s31, 5\ns_add_u32 s29, s29, s31\ns_lshl_b32 s30, s5, 7\ns_add_u32 s30, s30, s29")
    p_(f"v_lshlrev_b32 v117, 4, v21\nv_add_u32 v114, s30, v117\ns_lshl_b32 s29, s29, 2\ns_add_u32 s29, s29, {STAT}\nv_lshl_add_u32 v117, v117, 2, s29")
    p_("s_lshl_b32 s29, s91, 6\ns_lshr_b32 s31, s4, 1\ns_lshl_b32 s31, s31, 5\ns_add_u32 s29, s29, s31\nv_and_b32 v115, 31, v0\nv_add_u32 v115, s29, v115")
    p_("v_mul_u32_u24 v114, 0x380, v114\nv_lshlrev_b32 v115, 1, v115\nv_add_u32 v114, v114, v115\nv_lshlrev_b32 v116, 1, v114")
    for q in range(1, 8): p_(f"s_movk_i32 s{32+q}, {q*3584}")
    p_(f"s_mul_i32 s40, s5, 7\ns_add_u32 s40, s40, s91\ns_lshl_b32 s40, s40, 1\ns_add_u32 s40, s40, s85\ns_lshl_b32 s40, s40, 15\ns_add_u32 s40, s40, s89\ns_xor_b32 s41, s40, 0x8000\ns_add_u32 s40, s40, {WS_PX + 16384}\ns_add_u32 s41, s41, {WS_PX + 16384}")
    slow = []; slow2 = []
    for n in range(28):
        fs = FS[n & 1]
        rd = reads(n + 1) if n < 27 else list(cs_rd)
        if n < 27: e.vm_wait({("w", n + 1)})
        dq = [("w", m, mt) for m in wissue[n] for mt in range(2)]
        for k in range(11):
            if wdslot[k][1] - 1 == n: dq += [("d", k, 0), ("d", k, 1)]
        gaps = (2, 5) if len(dq) <= 2 else (1, 3, 5, 7)
        for i in range(8):
            rt, mt = i >> 1, i & 1
            if i == 0: e.lg_wait({("W", n), ("X", n, 0)})
            elif mt == 0: e.lg_wait({("X", n, rt)})
            e(mfma(128 + 64*mt + 16*rt, fs + 16 + 4*mt, fs + 4*rt, n == 0))
            k = 1 if n < 27 else 2
            for s, t in rd[:k]: e.lds(s, t)
            rd = rd[k:]
            if n in (5, 9, 13) and i == 0:
                l = e.newlabel("PG")
                e(f"v_readfirstlane_b32 s82, v104\ns_cmp_lt_u32 s82, {n >> 2}\ns_cbranch_scc1 {l}")
                e.label(l + "_r")
                slow.append((l, n >> 2))
            if i in gaps and dq:
                kd_, a1, a2 = dq.pop(0)
                if kd_ == "w": w_issue(a1, a2)
                else: wd_half(a1, a2)
            if i == 6 and (n & 3) == 3:
                e(f"v_mov_b32 v126, {(n >> 2) + 1}")
                e.lds("ds_write_b32 v19, v126")
            if n in (4, 8, 12):
                if i == 2: e.lds("ds_read_b128 v[104:107], v8", "pg")
                if i == 6:
                    e.lg_wait({"pg"})
                    e("v_min_u32 v104, v104, v105\nv_min3_u32 v104, v104, v106, v107")
            if 11 <= n < 27 and i in (0, 1, 3, 4, 6, 7) and len(gaps) == 2:
                if p2: e(p2.pop(0))
        assert not rd and not dq
        if stamps and ((fine and (n & 3) == 3) or n == 27): st(e, f"k{n}")
    assert not p2
    e.lg0()
    e("v_readfirstlane_b32 s97, v121\ns_cmp_lg_u32 s97, 0\ns_cbranch_scc1 K_csok")
    def body():
        for s, t in cs_rd: e(s)
        e("s_waitcnt lgkmcnt(0)\nv_readfirstlane_b32 s97, v121")
    spin(e, body, "s_cmp_lg_u32 s97, 0")
    e.label("K_csok")
    st(e, "cs")
    for rt in range(4):
        G, U = 128 + 16*rt, 192 + 16*rt
        mp = 20 + (rt & 2)
        sel = ("op_sel:[0,1,0] op_sel_hi:[1,1,1]" if rt & 1 else "op_sel_hi:[1,0,1]") + " neg_lo:[1,0,0] neg_hi:[1,0,0]"
        for h in range(2):
            g = 2*rt + h
            tt = 24 + 4 * g
            rs = range(8*h, 8*h + 8, 2)
            if g == 1: e.lds("ds_read_b128 v[104:107], v8", "pg")
            for r in rs:
                e(f"v_pk_fma_f32 v[{G+r}:{G+r+1}], v[{CS+r}:{CS+r+1}], v[{mp}:{mp+1}], v[{G+r}:{G+r+1}] {sel}")
                e(f"v_pk_fma_f32 v[{U+r}:{U+r+1}], v[{CS+16+r}:{CS+17+r}], v[{mp}:{mp+1}], v[{U+r}:{U+r+1}] {sel}")
            for r in rs: e(f"v_max_f32 v{G+r}, 0, v{G+r}\nv_max_f32 v{G+r+1}, 0, v{G+r+1}")
            for r in rs: e(f"v_pk_mul_f32 v[{G+r}:{G+r+1}], v[{G+r}:{G+r+1}], v[{U+r}:{U+r+1}]")
            for r in rs: e(f"v_cvt_pk_bf16_f32 v{tt + ((r - 8*h) >> 1)}, v{G+r}, v{G+r+1}")
            dual([f"buffer_store_dwordx4 v[{tt}:{tt+3}], v18, s[20:23], s{86 + h} offen offset:{rt*1024}"], "hh", bulk & 1)
            if g == 1:
                e.lg0()
                l = e.newlabel("PG")
                e(f"v_min_u32 v104, v104, v105\nv_min3_u32 v104, v104, v106, v107\ns_nop 0\nv_readfirstlane_b32 s82, v104\ns_cmp_lt_u32 s82, 7\ns_cbranch_scc1 {l}")
                e.label(l + "_r")
                slow.append((l, 7))
            if g in (1, 2, 3): wd_dma(10 + g, 2, 12)
    e.lds("ds_write_b32 v19, v126 offset:32")
    st(e, "epi")
    e("s_setprio 0")
    XR, MR, RR = 56, 72, 88
    for r in range(16): e(f"v_mov_b32 v{XR+r}, 0")
    e("v_mov_b32 v118, 0")
    for q in range(4):
        e.lds(f"ds_read_b128 v[{MR+4*q}:{MR+4*q+3}], v117 offset:{16*q}")
        e.lds(f"ds_read_b128 v[{RR+4*q}:{RR+4*q+3}], v117 offset:{512+16*q}")
    e("s_and_b32 s31, s4, 1\ns_lshl_b32 s31, s31, 10\nv_add_u32 v10, s31, v18\nv_add_u32 v11, 0x1000, v10")
    e("s_lshl_b32 s31, s91, 7\ns_lshl_b32 s30, s4, 2\ns_add_u32 s31, s31, s30\nv_mov_b32 v16, s31\nv_mov_b32 v17, s84")
    e("v_and_b32 v14, 7, v0\nv_min_u32 v14, 6, v14\nv_lshlrev_b32 v14, 7, v14\nv_bfe_u32 v15, v0, 3, 1\nv_lshl_add_u32 v14, v15, 2, v14\ns_and_b32 s30, s30, 8\nv_add_u32 v14, s30, v14")
    e(f"s_add_u32 s31, s89, {SC}\nv_add_u32 v4, s31, v18\nv_xor_b32 v5, 0x2000, v4\nv_xor_b32 v6, 8, v19")
    srd(e, 16, 58, 2048 * 1792)
    e.vm_wait({"hh"})
    e("s_mov_b64 exec, 1")
    dual(["buffer_store_dword v17, v16, s[20:23], s93 offen"], "fl")
    e("s_mov_b64 exec, -1")
    st(e, "hhflag")
    def body():
        e("buffer_load_dword v17, v14, s[20:23], s93 offen sc1\ns_waitcnt vmcnt(0)\nv_cmp_eq_u32 vcc, s84, v17\ns_nop 1")
    spin(e, body, "s_cmp_eq_u64 vcc, -1", sleep=2)
    e.vm = []
    st(e, "hhseen")
    NT = 56
    def areg(t): return 192 + 4*(t % NA)
    def a_issue(t):
        sub = t & 3
        if sub == 0 and t > 0:
            e(f"s_add_u32 s90, s90, 8192\ns_cmp_ge_u32 s90, s92\ns_cselect_b32 s82, {7*8192}, 0\ns_sub_u32 s90, s90, s82")
            if t == 28: e("s_xor_b32 s90, s90, 0x800\ns_xor_b32 s92, s92, 0x800")
            e(f"s_add_u32 s71, s90, {A_W}")
        r = areg(t)
        e.vmem(f"buffer_load_dwordx4 v[{r}:{r+3}], v{10 + (sub & 1)}, s[20:23], s{71 if sub >> 1 else 90} offen sc1", ("A", t))
    def breg(t): return 24 + 8*(t % 4)
    def b_list(t):
        u = (t % 28) >> 2; sub = t & 3
        kind, off = wdslot[2*u + (sub & 1)][0]
        if kind == "r": bs = (110, 111); off += (sub >> 1) * 2048
        else:
            off += (sub >> 1) * 4096
            bs = (108, 109)
            if off >= 5*CH: bs = (112, 113); off -= 65536
        r = breg(t)
        return [(f"ds_read_b64_tr_b16 v[{r+4*b+2*u2}:{r+4*b+2*u2+1}], v{bs[b]} offset:{off + u2*1024}", ("B", t)) for b in range(2) for u2 in range(2)]
    for t in range(NA - 1): a_issue(t)
    for t in range(3):
        for s, tg in b_list(t): e.lds(s, tg)
    FO, OW = 128, 160
    side = []
    def S_(f): side.append(f)
    def xl(r):
        so = "0" if r < 4 else f"s{32 + (r >> 2)}"
        off = (r & 3) * 896
        e.vmem(f"buffer_load_short_d16_hi v{XR+r}, v114, s[8:11], {so} offen" + (f" offset:{off}" if off else ""), "xv")
    V = []
    def rndl(b):
        for r in range(0, 16, 2): V.append(f"v_cvt_pk_bf16_f32 v{b+r}, v{b+r}, v{b+r+1}")
        for r in range(0, 16, 2): V.extend([f"v_and_b32 v{b+r+1}, 0xffff0000, v{b+r}", f"v_lshlrev_b32 v{b+r}, 16, v{b+r}"])
    for r in range(16): V.append(f"v_sub_f32 v{MR+r}, v{XR+r}, v{MR+r}")
    rndl(MR)
    for r in range(16): V.append(f"v_mul_f32 v{MR+r}, v{MR+r}, v{RR+r}")
    rndl(MR)
    for r in range(16): V.append(f"v_mul_f32 v{MR+r}, v{MR+r}, v118")
    rndl(MR)
    for r in range(16): V.append(f"v_mul_f32 v{RR+r}, v{RR+r}, v{RR+r}")
    for t in range(NT):
        acc = FO if t < 28 else OW
        if t == 0:
            for r in range(16): S_(lambda r=r: xl(r))
            S_(lambda: e.vmem("global_load_short_d16_hi v118, v115, s[48:49]", "xv"))
        if t == 26: S_(lambda: e.lds("ds_read_b32 v121, v8 offset:84", "yx"))
        if t == 30:
            def chk():
                e.lg_wait({"yx"})
                l = e.newlabel("YX")
                e(f"v_readfirstlane_b32 s82, v121\ns_cmp_lt_u32 s82, 4\ns_cbranch_scc1 {l}")
                e.label(l + "_r")
                slow2.append((l, 8, 84, "s_cmp_ge_u32 s82, 4"))
            S_(chk)
            for g in range(4): S_(lambda g=g: e.lds(f"ds_write_b128 v4, v[{FO+16+4*g}:{FO+19+4*g}] offset:{CH + g*1024}"))
            S_(lambda: e.lds("ds_write_b32 v19, v126 offset:48"))
        if t == 36: S_(lambda: e.lds("ds_read_b32 v121, v6 offset:48", "px"))
        if t == 38:
            def chk2():
                e.lg_wait({"px"})
                l = e.newlabel("PX")
                e(f"v_readfirstlane_b32 s82, v121\ns_cmp_eq_u32 s82, 0\ns_cbranch_scc1 {l}")
                e.label(l + "_r")
                slow2.append((l, 6, 48, "s_cmp_lg_u32 s82, 0"))
            S_(chk2)
            for g in range(4): S_(lambda g=g: e.lds(f"ds_read_b128 v[{FO+16+4*g}:{FO+19+4*g}], v5 offset:{CH + g*1024}", "ex"))
        if t == 42:
            for g in range(4):
                def grp(g=g):
                    if g == 0: e.lg_wait({"ex"})
                    for r in range(4*g, 4*g + 4): e(f"v_add_f32 v{FO+r}, v{FO+r}, v{FO+16+r}")
                def grp2(g=g):
                    for r in (4*g, 4*g + 2): e(f"v_cvt_pk_bf16_f32 v{FO+16+r}, v{FO+r}, v{FO+r+1}\nv_mov_b32 v{FO+17+r}, s84")
                def grp3(g=g):
                    stores([f"buffer_store_dwordx4 v[{FO+16+4*g}:{FO+19+4*g}], v18, s[20:23], s41 offen offset:{g*1024}"], "px")
                S_(grp)
                if g == 0: S_(lambda: e.lds("ds_write_b32 v19, v126 offset:64"))
                S_(grp2); S_(grp3)
        if t == 52: S_(lambda: e.lds("ds_read_b32 v121, v6 offset:64", "rx"))
        e.vm_wait({("A", t)})
        e.lg_wait({("B", t)})
        bl = b_list(t + 3) if t + 3 < NT else []
        for b in range(2):
            e(mfma(acc + 16*b, areg(t), breg(t) + 4*b, t % 28 == 0))
            if b == 0 and t + NA - 1 < NT: a_issue(t + NA - 1)
            for s, tg in bl[2*b:2*b + 2]: e.lds(s, tg)
            if side: side.pop(0)()
            elif t >= 24:
                assert e.vm_need({"xv"}) is None
                for _ in range(4):
                    if V: e(V.pop(0))
        if t == 27: st(e, "ofor")
    assert not side
    for x in V: e(x)
    RV = 224
    def recv_issue():
        for g in range(8): e(f"buffer_load_dwordx4 v[{RV+4*g}:{RV+4*g+3}], v18, s[20:23], s{40 if g < 4 else 42} offen offset:{(g & 3)*1024} sc1")
    def recv_check():
        e("s_waitcnt vmcnt(0)")
        e(f"v_min3_u32 v1, s84, v{RV+1}, v{RV+3}\nv_max3_u32 v2, s84, v{RV+1}, v{RV+3}")
        for g in range(1, 8): e(f"v_min3_u32 v1, v1, v{RV+4*g+1}, v{RV+4*g+3}\nv_max3_u32 v2, v2, v{RV+4*g+1}, v{RV+4*g+3}")
        e("v_cmp_eq_u32 vcc, v1, v2\ns_nop 1")
    def recv_finish():
        l = e.newlabel("RV")
        recv_check()
        e(f"s_cmp_eq_u64 vcc, -1\ns_cbranch_scc1 {l}")
        def body():
            recv_issue(); recv_check()
        spin(e, body, "s_cmp_eq_u64 vcc, -1", sleep=1)
        e.label(l)
        e.vm = []
        for r in range(0, 32, 2): e(f"v_and_b32 v{RV+r+1}, 0xffff0000, v{RV+r}\nv_lshlrev_b32 v{RV+r}, 16, v{RV+r}")
    e("s_sub_u32 s42, s40, 16384")
    recv_issue()
    e.lg0()
    st(e, "oloop")
    l = e.newlabel("RX")
    e(f"v_readfirstlane_b32 s82, v121\ns_cmp_eq_u32 s82, 0\ns_cbranch_scc1 {l}")
    e.label(l + "_r")
    slow2.append((l, 6, 64, "s_cmp_lg_u32 s82, 0"))
    e("s_mov_b32 s28, 0xbfb8aa3b\ns_mov_b32 s29, 0xbfb8aa3b\ns_nop 1")
    for g in range(4): e(f"ds_write_b128 v4, v[{OW+16+4*g}:{OW+19+4*g}] offset:{CH + g*1024}")
    e.lg0()
    e("s_barrier")
    st(e, "fbar")
    for g in range(4): e(f"ds_read_b128 v[{FO+4*g}:{FO+3+4*g}], v5 offset:{CH + g*1024}")
    for g in range(4): e(f"ds_read_b128 v[{24+4*g}:{27+4*g}], v4 offset:{g*1024}")
    pk = lambda op, d, a, b, x="": e(f"v_pk_{op}_f32 v[{d}:{d+1}], v[{a}:{a+1}], {b} {x}".rstrip())
    R2 = range(0, 16, 2)
    O, PB = OW, OW + 16
    e("s_waitcnt lgkmcnt(4)")
    for r in R2: pk("add", O+r, O+r, f"v[{FO+r}:{FO+r+1}]")
    e("s_waitcnt lgkmcnt(0)")
    for r in R2: pk("add", MR+r, MR+r, f"v[{24+r}:{25+r}]")
    recv_finish()
    st(e, "orecv")
    for r in R2: pk("add", O+r, O+r, f"v[{RV+r}:{RV+r+1}]")
    for r in R2: pk("mul", O+r, O+r, f"v[{RR+r}:{RR+r+1}]")
    for r in R2: pk("mul", PB+r, O+r, "s[28:29]")
    for r in range(16): e(f"v_exp_f32 v{PB+r}, v{PB+r}")
    for r in R2: pk("add", MR+r, MR+r, f"v[{RV+16+r}:{RV+17+r}]")
    for r in R2: pk("add", PB+r, PB+r, "1.0", "op_sel_hi:[1,0]")
    for r in range(16): e(f"v_rcp_f32 v{PB+r}, v{PB+r}")
    for r in R2: pk("mul", O+r, O+r, f"v[{MR+r}:{MR+r+1}]")
    for r in R2:
        e(f"v_pk_fma_f32 v[{PB+r}:{PB+r+1}], v[{PB+r}:{PB+r+1}], v[{O+r}:{O+r+1}], v[{XR+r}:{XR+r+1}]")
        for rr in (r, r + 1):
            so = "0" if rr < 2 else f"s{32 + (rr >> 1)}"
            off = (rr & 1) * 1792
            e(f"buffer_store_dword v{PB+rr}, v116, s[16:19], {so} offen" + (f" offset:{off}" if off else "") + " " + outfl)
    e("s_cmp_lg_u32 s5, 15\ns_cbranch_scc1 K_nobump\ns_or_b32 s28, s6, s4\ns_cmp_lg_u32 s28, 0\ns_cbranch_scc1 K_nobump")
    e(f"v_mov_b32 v8, 0\nv_mov_b32 v9, s84\ns_mov_b32 s28, {WS_EP}\ns_mov_b64 exec, 1")
    e("buffer_store_dword v9, v8, s[20:23], s28 offen sc1")
    e("s_mov_b64 exec, -1")
    e.label("K_nobump")
    if pad:
        e.label("K_pad")
        e(f"s_memrealtime s[28:29]\ns_waitcnt lgkmcnt(0)\ns_sub_u32 s28, s28, s96\ns_cmp_lt_u32 s28, {pad}\ns_cbranch_scc1 K_pad")
    st.dump(e); info["F"] = st.names
    e("s_endpgm")
    for l, addr, off, cond in slow2:
        e.label(l)
        lds_wait(addr, off, cond, 121, sleep=0)
        e(f"s_branch {l}_r")
    for l, need in slow:
        e.label(l)
        def body():
            e("ds_read_b128 v[104:107], v8\ns_waitcnt lgkmcnt(0)\nv_min_u32 v104, v104, v105\nv_min3_u32 v104, v104, v106, v107\ns_nop 0\nv_readfirstlane_b32 s82, v104")
        spin(e, body, f"s_cmp_ge_u32 s82, {need}", sleep=0)
        e(f"s_branch {l}_r")

    e.vm = []; e.lg = []
    e.label("K_S")
    st = Stamper(stamps, 143)
    e(f"s_setprio {sprio}")
    e("v_and_b32 v1, 19, v0\nv_bfe_u32 v2, v0, 2, 1\nv_lshl_add_u32 v1, v2, 3, v1\nv_bfe_u32 v2, v0, 3, 1\nv_lshl_add_u32 v1, v2, 2, v1\ns_lshl_b32 s30, s6, 5\nv_add_u32 v1, s30, v1\nv_lshlrev_b32 v1, 1, v1")
    e("v_mov_b32 v244, 0\nv_mov_b32 v245, 0\nv_mov_b32 v246, 0\nv_mov_b32 v247, 0")
    e(f"v_add_u32 v23, s89, v20\nv_add_u32 v24, {RING}, v20")
    e("s_lshl_b32 s31, s4, 1\nv_xor_b32 v6, s31, v22")
    for jj in range(4):
        e(f"v_xor_b32 v5, {2*jj}, v6\nv_lshl_add_u32 v{10+jj}, v5, 4, v23\nv_add_u32 v{14+jj}, 0x10000, v{10+jj}\nv_lshl_add_u32 v{240+jj}, v5, 4, v24")
    e("s_mov_b32 s94, 0x3f803f80\nv_mov_b32 v34, 0\nv_mov_b32 v35, 0\nv_mov_b32 v36, 0\nv_mov_b32 v37, 0")
    e(f"s_mov_b32 s22, {WS_END}\ns_mov_b32 s23, 0x20000\ns_mov_b32 s82, {WS_EP}")
    e(f"v_mov_b32 v18, {FLG}\nv_mov_b32 v19, 1\ns_lshl_b32 s30, s4, 2\ns_add_u32 s30, s30, {FLG}\nv_mov_b32 v20, s30")
    e("v_lshrrev_b32 v4, 3, v0\nv_mul_u32_u24 v4, 0x380, v4\nv_and_b32 v2, 7, v0\nv_lshrrev_b32 v3, 4, v0\nv_xor_b32 v2, v2, v3\nv_lshlrev_b32 v2, 4, v2")
    e(f"v_add_u32 v138, v4, v2\nv_xor_b32 v2, 64, v2\nv_add_u32 v139, v4, v2\nv_add_u32 v139, {8*896-1024}, v139")
    e("s_waitcnt lgkmcnt(0)")
    e.vmem("global_load_short_d16_hi v244, v1, s[34:35]", "par")
    e.vmem("global_load_short_d16_hi v245, v1, s[36:37]", "par")
    e.vmem("global_load_short_d16_hi v246, v1, s[46:47]", "par")
    e("s_mov_b32 s20, s62\ns_and_b32 s21, s63, 0xffff")
    e.vmem("buffer_load_dword v247, v247, s[20:23], s82 offen sc1", "par")
    e("s_bitcmp1_b32 s4, 0\ns_cselect_b64 s[64:65], -1, 0")
    e("s_bitcmp1_b32 s4, 1\ns_cselect_b32 s16, s44, s42\ns_cselect_b32 s17, s45, s43\ns_cselect_b64 s[66:67], -1, 0\ns_mov_b32 s68, 0\ns_mov_b32 s69, -1")
    e(f"s_and_b32 s17, s17, 0xffff\ns_mov_b32 s18, {448*896}\ns_mov_b32 s19, 0x20000")
    e(f"s_lshr_b32 s87, s4, 1\ns_mul_i32 s86, s91, {64*896}\ns_and_b32 s30, s4, 1\ns_lshl_b32 s71, s85, 2\ns_add_u32 s72, s71, 2\ns_add_u32 s71, s71, s30\ns_cmp_eq_u32 s30, 0\ns_cselect_b32 s72, s72, 3")
    e("s_lshl_b32 s71, s71, 7\ns_add_u32 s71, s71, s86\ns_lshl_b32 s72, s72, 7\ns_add_u32 s72, s72, s86\ns_lshl_b32 s73, s85, 6")
    K = []
    def k_(s): K.extend(s.split("\n"))
    k_(f"v_mul_f32 v246, {LOG2E}, v246\nv_exp_f32 v246, v246\ns_nop 0\nv_cvt_pk_bf16_f32 v246, v246, v246\nv_and_b32 v246, 0xffff0000, v246")
    k_(f"v_mul_f32 v5, v246, v244\nv_mul_f32 v6, v246, v245\nv_mul_f32 v5, {LOG2E}, v5\nv_exp_f32 v5, v5")
    k_("v_mul_f32 v6, 0.15915494, v6\nv_rndne_f32 v9, v6\nv_sub_f32 v6, v6, v9\nv_cos_f32 v22, v6\nv_sin_f32 v23, v6\ns_nop 0")
    k_("v_mul_f32 v22, v22, v5\nv_mul_f32 v23, v23, v5")
    k_("v_mul_f32 v5, v244, v244\nv_fma_f32 v5, v245, v245, v5\nv_rcp_f32 v5, v5\nv_add_f32 v6, -1.0, v22")
    k_("v_mul_f32 v30, v6, v244\nv_fma_f32 v30, v23, v245, v30\nv_mul_f32 v31, v23, v244\nv_fma_f32 v31, -v6, v245, v31")
    k_("v_add_f32 v5, v5, v5\nv_mul_f32 v30, v30, v5\nv_mul_f32 v31, v31, v5\nv_xor_b32 v33, 0x80000000, v23")
    def csq(d, s): k_(f"v_mul_f32 v9, v{s}, v{s+1}\nv_mul_f32 v{d}, v{s}, v{s}\nv_fma_f32 v{d}, -v{s+1}, v{s+1}, v{d}\nv_add_f32 v{d+1}, v9, v9")
    def pwmul(mask):
        k_(f"v_cndmask_b32 v5, 1.0, v26, {mask}\nv_cndmask_b32 v6, 0, v27, {mask}")
        k_("v_mul_f32 v9, v28, v6\nv_mul_f32 v28, v28, v5\nv_fma_f32 v28, -v29, v6, v28\nv_fma_f32 v29, v29, v5, v9")
    csq(24, 22); csq(24, 24); csq(24, 24); csq(24, 24)
    k_("v_cndmask_b32 v28, 1.0, v24, s[68:69]\nv_cndmask_b32 v29, 0, v25, s[68:69]")
    csq(26, 24); pwmul("s[64:65]"); csq(26, 26); pwmul("s[66:67]"); csq(26, 26); csq(136, 26)
    QR, QI = 104, 120
    for j in range(16):
        pr, pi = (30, 31) if j == 0 else (QR + j - 1, QI + j - 1)
        k_(f"v_mul_f32 v{QR+j}, v22, v{pr}\nv_mul_f32 v{QI+j}, v22, v{pi}\nv_fmac_f32 v{QR+j}, v33, v{pi}\nv_fmac_f32 v{QI+j}, v23, v{pr}")
    k_("v_xor_b32 v31, 0x80000000, v31\nv_xor_b32 v32, 0x80000000, v30")
    UR, UI = 40, 56
    SF = [144, 192]
    def sreads(sg):
        fs = SF[sg & 1]; out = []
        for j in range(4):
            xb = (10 + j) if sg < 4 else (14 + j)
            out += [f"ds_read_b128 v[{fs+12*j}:{fs+12*j+3}], v{xb} offset:{(sg & 3)*CH}",
                    f"ds_read_b128 v[{fs+12*j+4}:{fs+12*j+7}], v{240+j} offset:{(sg % NR)*8192}",
                    f"ds_read_b128 v[{fs+12*j+8}:{fs+12*j+11}], v{240+j} offset:{(sg % NR)*8192+4096}"]
        return out
    def dots(fs):
        for j in range(4):
            for q in range(4): e(f"v_dot2c_f32_bf16 v37, v{fs+12*j+q}, v{fs+12*j+q}\nv_dot2c_f32_bf16 v36, s94, v{fs+12*j+q}")
        for q in range(4): e(f"v_dot2c_f32_bf16 v34, s94, v{fs+4+q}\nv_dot2c_f32_bf16 v35, s94, v{fs+8+q}")
    Z = []
    def z_(s): Z.extend(s.split("\n"))
    z_("v_mov_b32 v1, v36\nv_mov_b32 v2, v37\ns_nop 1")
    z_("v_permlane32_swap_b32 v36, v1\nv_permlane32_swap_b32 v37, v2\nv_permlane32_swap_b32 v34, v35\ns_nop 1")
    z_("v_add_f32 v34, v34, v35\nv_add_f32 v36, v36, v1\nv_add_f32 v37, v37, v2\nds_write_b32 v248, v34")
    z_("v_mul_f32 v36, 0x3b124925, v36\nv_mul_f32 v37, 0x3b124925, v37")
    z_("v_fma_f32 v37, -v36, v36, v37\nv_max_f32 v37, 0, v37\nv_cvt_pk_bf16_f32 v1, v37, v36")
    z_("v_and_b32 v36, 0xffff0000, v1\nv_lshlrev_b32 v37, 16, v1\nv_add_f32 v37, 0x3727c5ac, v37")
    z_("v_cvt_pk_bf16_f32 v37, v37, v37\nv_and_b32 v37, 0xffff0000, v37\nv_sqrt_f32 v37, v37\ns_nop 0")
    z_("v_cvt_pk_bf16_f32 v37, v37, v37\nv_and_b32 v37, 0xffff0000, v37\nv_rcp_f32 v37, v37\ns_nop 0")
    z_("v_cndmask_b32 v36, v36, v37, s[68:69]\nds_write_b32 v249, v36")
    e(f"s_lshl_b32 s30, s4, 2\ns_add_u32 s30, s30, {CSB}\nv_lshl_add_u32 v248, v0, 4, s30")
    tau_of_lane(e, 249, 2)
    e(f"s_lshl_b32 s30, s4, 7\ns_add_u32 s30, s30, {STAT}\nv_lshl_add_u32 v249, v249, 2, s30\nv_lshl_add_u32 v249, v21, 9, v249\nv_lshl_add_u32 v3, v21, 6, s30")
    e(f"v_and_b32 v250, 31, v0\nv_lshlrev_b32 v250, 4, v250\nv_add_u32 v250, {CSB}, v250")
    if dwarm:
        e("s_cmp_eq_u32 s4, 0\ns_cselect_b32 s24, s52, s54\ns_cselect_b32 s25, s53, s55\ns_cmp_eq_u32 s4, 2\ns_cselect_b32 s24, s56, s24\ns_cselect_b32 s25, s57, s25")
        e(f"s_mov_b32 s26, {448*3584}\ns_movk_i32 s28, 7168\ns_cmp_eq_u32 s4, 3\ns_cselect_b32 s24, s42, s24\ns_cselect_b32 s25, s43, s25\ns_cselect_b32 s26, {448*896}, s26\ns_cselect_b32 s28, 1792, s28\ns_cselect_b32 s29, 13, 55")
        e("s_and_b32 s25, s25, 0xffff\ns_mov_b32 s27, 0x20000\ns_mul_i32 s28, s28, s2\nv_min_u32 v251, s29, v0\nv_lshlrev_b32 v251, 7, v251")
    st(e, "b0")
    e("s_barrier")
    for x in sreads(0): e(x)
    e.vm_wait({"par"})
    if dwarm:
        e("buffer_load_dword v252, v251, s[24:27], s28 offen")
        e("s_cmp_lg_u32 s4, 3\ns_cbranch_scc1 K_nw")
        e("buffer_load_dword v253, v251, s[16:19], s28 offen")
        e.label("K_nw")
    for sg in range(7):
        fs = SF[sg & 1]
        if sg == 1:
            e("v_readfirstlane_b32 s84, v247\ns_add_u32 s84, s84, 1\ns_max_u32 s84, s84, 1")
            e(f"s_getreg_b32 s74, hwreg(HW_REG_XCC_ID, 0, 4)\ns_lshl_b32 s78, s5, 1\ns_add_u32 s78, s78, s85\ns_lshl_b32 s78, s78, 10\ns_add_u32 s78, s78, {WS_FH}\ns_add_u32 s75, s78, {WS_XID - WS_FH}")
            e("s_cmp_lg_u32 s4, 0\ns_cbranch_scc1 K_noxid")
            e("s_lshl_b32 s31, s91, 7\nv_mov_b32 v251, s31\nv_mov_b32 v252, s74\nv_mov_b32 v253, s84\ns_mov_b64 exec, 1")
            e("buffer_store_dwordx2 v[252:253], v251, s[20:23], s75 offen sc1\ns_mov_b64 exec, -1")
            e.label("K_noxid")
        e.lg0()
        if sg == 6: dots(fs)
        st(e, f"b{sg+1}")
        e("s_barrier")
        rd = sreads(sg + 1) if sg < 6 else []
        for j in range(4):
            for acc, o in ((UR, 4), (UI, 8)):
                e(mfma(acc, fs+12*j, fs+12*j+o, sg == 0 and j == 0))
                for x in rd[:2]: e(x)
                nk = kint if rd else 4
                rd = rd[2:]
                for _ in range(nk):
                    if sg == 6:
                        if Z: e(Z.pop(0))
                    elif sg >= 1 and K: e(K.pop(0))
        if sg < 6: dots(fs)
    for x in Z: e(x)
    gen = [0]
    def ssync(extra=None):
        gen[0] += 1
        e("s_mov_b64 exec, 1\nds_add_u32 v18, v19 offset:80\ns_mov_b64 exec, -1")
        def body():
            e("ds_read_b32 v1, v18 offset:80")
            if extra: extra()
            e("s_waitcnt lgkmcnt(0)\nv_readfirstlane_b32 s82, v1")
        spin(e, body, f"s_cmp_ge_u32 s82, {4*gen[0]}", sleep=0)
        e.lg = []
    def wait_prog(n):
        def body():
            e("ds_read_b128 v[4:7], v18\ns_waitcnt lgkmcnt(0)\nv_min_u32 v4, v4, v5\nv_min3_u32 v4, v4, v6, v7\ns_nop 0\nv_readfirstlane_b32 s82, v4")
        spin(e, body, f"s_cmp_ge_u32 s82, {n}", sleep=1)
        e.lg = []
    M, R = 72, 88
    e(f"s_setprio {sprio2}")
    if sidle:
        def body():
            e("s_sleep 8\nds_read_b128 v[4:7], v18\ns_waitcnt lgkmcnt(0)\nv_min_u32 v4, v4, v5\nv_min3_u32 v4, v4, v6, v7\ns_nop 0\nv_readfirstlane_b32 s82, v4")
        spin(e, body, "s_cmp_ge_u32 s82, 7", sleep=1)
    TMP = 192
    for q in range(4): e(f"ds_read_b128 v[{M+4*q}:{M+4*q+3}], v3 offset:{16*q}")
    for q in range(4): e(f"ds_read_b128 v[{R+4*q}:{R+4*q+3}], v3 offset:{512+16*q}")
    e(f"s_lshl_b32 s30, s4, 9\ns_add_u32 s30, s30, {SUB}\nv_lshl_add_u32 v2, v0, 3, s30\nv_add_u32 v3, {7*256}, v2")
    ssync(lambda: e(f"ds_read_b128 v[{TMP}:{TMP+3}], v250\nds_read_b128 v[{TMP+4}:{TMP+7}], v250 offset:512"))
    st(e, "ss1")
    t = TMP
    e(f"v_add_f32 v{t}, v{t}, v{t+1}\nv_add_f32 v{t+2}, v{t+2}, v{t+3}\nv_add_f32 v{t+4}, v{t+4}, v{t+5}\nv_add_f32 v{t+6}, v{t+6}, v{t+7}\nv_add_f32 v34, -v{t}, -v{t+2}\nv_add_f32 v35, -v{t+4}, -v{t+6}")
    for j in range(16): e(f"v_fmac_f32 v{UR+j}, v34, v{M+j}\nv_fmac_f32 v{UI+j}, v35, v{M+j}")
    for j in range(16): e(f"v_mul_f32 v{UR+j}, v{UR+j}, v{R+j}\nv_mul_f32 v{UI+j}, v{UI+j}, v{R+j}")
    st(e, "fold")
    for j in range(1, 16):
        e(f"v_fmac_f32 v{UR+j}, v22, v{UR+j-1}\nv_fmac_f32 v{UI+j}, v22, v{UI+j-1}\nv_fmac_f32 v{UR+j}, v33, v{UI+j-1}\nv_fmac_f32 v{UI+j}, v23, v{UR+j-1}")
    st(e, "scan")
    e(f"ds_write2_b32 v3, v{UR+15}, v{UI+15} offset1:1")
    def step(dr, di, hr, hi, ur, ui, lr, li):
        e(f"v_fma_f32 v{dr}, v{lr}, v{hr}, v{ur}\nv_fma_f32 v{di}, v{lr}, v{hi}, v{ui}")
        e(f"v_fma_f32 v{dr}, -v{li}, v{hi}, v{dr}\nv_fma_f32 v{di}, v{li}, v{hr}, v{di}")
    def rdsub():
        for d in range(7): e(f"ds_read_b64 v[{TMP+2*d}:{TMP+1+2*d}], v2 offset:{d*256}")
    ssync(rdsub)
    st(e, "ss")
    for d in range(1, 7):
        dd = (38, 39) if d == 6 else (TMP + 2*d, TMP + 1 + 2*d)
        step(dd[0], dd[1], TMP - 2 + 2*d, TMP - 1 + 2*d, TMP + 2*d, TMP + 1 + 2*d, 24, 25)
    e("s_cmp_lg_u32 s4, 3\ns_cbranch_scc1 K_nopub")
    step(TMP, TMP + 2, 38, 39, UR + 15, UI + 15, 24, 25)
    e(f"v_mov_b32 v{TMP+1}, s84\nv_mov_b32 v{TMP+3}, s84")
    e(f"s_lshl_b32 s30, s6, 4\ns_add_u32 s30, s30, s5\ns_lshl_b32 s30, s30, 9\ns_add_u32 s30, s30, {WS_AGG - 512}")
    e("v_lshlrev_b32 v1, 4, v0\ns_mov_b32 exec_lo, 0")
    e(f"buffer_store_dwordx4 v[{TMP}:{TMP+3}], v1, s[20:23], s30 offen sc1")
    e("s_mov_b32 exec_lo, -1")
    e.label("K_nopub")
    st(e, "pub")
    for x in K: e(x)
    GR, GI = 72, 88
    for j in range(16):
        e(f"v_mul_f32 v{GR+j}, v30, v{UR+j}\nv_mul_f32 v{GI+j}, v32, v{UI+j}\nv_fmac_f32 v{GR+j}, v31, v{UI+j}\nv_fmac_f32 v{GI+j}, v31, v{UR+j}")
    AG = 40
    st(e, "g")
    for i in range(8): e(f"v_mov_b32 v{AG+4*i}, 0\nv_mov_b32 v{AG+4*i+1}, s84\nv_mov_b32 v{AG+4*i+2}, 0\nv_mov_b32 v{AG+4*i+3}, s84")
    e(f"s_lshl_b32 s90, s6, 11\ns_lshl_b32 s30, s4, 8\ns_add_u32 s90, s90, s30\ns_add_u32 s90, s90, {WS_CS}")
    e("v_and_b32 v34, 31, v0\nv_lshlrev_b32 v34, 3, v34\nv_lshl_add_u32 v34, v21, 10, v34")
    def cs_loads():
        e("buffer_load_dwordx2 v[8:9], v34, s[20:23], s90 offen sc1\nbuffer_load_dwordx2 v[140:141], v35, s[20:23], s75 offen sc1")
    cs_chk = "v_cmp_eq_u32 vcc, s84, v9\nv_cmp_eq_u32 s[28:29], s84, v141\ns_nop 1\ns_and_b64 vcc, vcc, s[28:29]"
    e("v_min_u32 v35, 6, v0\nv_lshlrev_b32 v35, 7, v35")
    cs_loads()
    e(f"s_lshl_b32 s30, s91, 7\ns_add_u32 s30, s30, s78\nv_mul_u32_u24 v1, {WS_FO - WS_FH}, v21")
    e("buffer_load_dword v142, v1, s[20:23], s30 offen sc1")
    e(f"s_lshl_b32 s92, s6, 4\ns_add_u32 s92, s92, s5\ns_lshl_b32 s92, s92, 9\ns_add_u32 s92, s92, {WS_AGG - 8192}\ns_add_u32 s93, s92, 4096\nv_lshlrev_b32 v3, 4, v0")
    def agg_loads():
        for i in range(8):
            l = e.newlabel("AL")
            e(f"s_cmp_lt_u32 s5, {15 - 2*i}\ns_cbranch_scc1 {l}")
            e(f"s_cmp_ge_u32 s5, {16 - 2*i}\ns_cselect_b32 exec_lo, -1, 0")
            e(f"buffer_load_dwordx4 v[{AG+4*i}:{AG+4*i+3}], v3, s[20:23], s{92 + (i >> 2)} offen offset:{1024*(i & 3)} sc1")
            e.label(l)
        e("s_mov_b32 exec_lo, -1")
    agg_loads()
    st(e, "aggi")
    SEL = 144
    tau_of_lane(e, 1, 2)
    e("v_lshlrev_b32 v2, 4, v21\nv_sub_u32 v1, v1, v2\nv_and_b32 v2, 1, v1\nv_lshlrev_b32 v2, 4, v2\nv_mov_b32 v4, 0x3f80\nv_lshlrev_b32 v2, v2, v4\nv_ashrrev_i32 v1, 1, v1")
    for q in range(0, 8, 2):
        e(f"v_cmp_eq_u32 vcc, {q}, v1\nv_cmp_eq_u32 s[30:31], {q+1}, v1\ns_nop 0\nv_cndmask_b32 v{SEL+q}, 0, v2, vcc\nv_cndmask_b32 v{SEL+q+1}, 0, v2, s[30:31]")
    e(f"s_mul_i32 s76, s5, {2*A_W}\ns_lshl_b32 s30, s6, 13\ns_add_u32 s76, s76, s30\ns_lshl_b32 s30, s4, 10\ns_add_u32 s76, s76, s30\ns_add_u32 s77, s76, {A_W}")
    def rnd(b):
        for r in range(0, 16, 2): e(f"v_cvt_pk_bf16_f32 v{b+r}, v{b+r}, v{b+r+1}")
        for r in range(0, 16, 2): e(f"v_and_b32 v{b+r+1}, 0xffff0000, v{b+r}\nv_lshlrev_b32 v{b+r}, 16, v{b+r}")
    e.vm0()
    st(e, "aggl")
    e("s_mov_b32 s95, 0")
    e.label("K_horner")
    e(f"v_min3_u32 v1, s84, v{AG+1}, v{AG+3}\nv_max3_u32 v2, s84, v{AG+1}, v{AG+3}")
    for i in range(1, 8):
        b = AG + 4*i
        src = (AG, AG + 2) if i == 1 else ((4, 5) if i % 2 == 0 else (6, 7))
        dst = (4, 5) if i % 2 == 1 else (6, 7)
        step(dst[0], dst[1], src[0], src[1], b, b + 2, 136, 137)
        e(f"v_min3_u32 v1, v1, v{b+1}, v{b+3}\nv_max3_u32 v2, v2, v{b+1}, v{b+3}")
    e("v_cmp_eq_u32 vcc, v1, v2\nv_mov_b32 v6, v4\nv_mov_b32 v7, v5\ns_cmp_eq_u64 vcc, -1\ns_cbranch_scc1 K_hok")
    e(f"s_add_u32 s95, s95, 1\ns_cmp_ge_u32 s95, {SPIN_MAX}\ns_cbranch_scc1 K_hok\ns_sleep 4")
    agg_loads()
    e("s_waitcnt vmcnt(0)\ns_branch K_horner")
    e.label("K_hok")
    st(e, "look")
    e("v_permlane32_swap_b32 v4, v6\nv_permlane32_swap_b32 v5, v7\ns_nop 0")
    step(6, 7, 4, 5, 6, 7, 26, 27)
    step(38, 39, 6, 7, 38, 39, 28, 29)
    e("v_xor_b32 v36, 0x80000000, v38\nv_xor_b32 v37, 0x80000000, v39")
    for j in range(0, 16, 2):
        for x in (j, j + 1):
            e(f"v_fmac_f32 v{GR+x}, v38, v{QR+x}\nv_fmac_f32 v{GI+x}, v37, v{QR+x}\nv_fmac_f32 v{GR+x}, v37, v{QI+x}\nv_fmac_f32 v{GI+x}, v36, v{QI+x}")
        e(f"v_cvt_pk_bf16_f32 v{40+j//2}, v{GR+j}, v{GR+j+1}\nv_cvt_pk_bf16_f32 v{48+j//2}, v{GI+j}, v{GI+j+1}")
    st(e, "fin")
    e("s_setprio 3")
    e(mfma(160, 40, SEL, True)); e(mfma(176, 48, SEL, True)); e(mfma(160, 44, SEL + 4)); e(mfma(176, 52, SEL + 4))
    e(f"s_setprio {sprio2}")
    e("s_add_u32 s30, s76, 4096\ns_add_u32 s31, s77, 4096\ns_nop 7")
    for r in range(16): e(f"v_cvt_pk_bf16_f32 v{56+r}, v{160+2*r}, v{161+2*r}")
    st(e, "ht")
    stores([f"buffer_store_dwordx4 v[56:59], v3, s[20:23], s76 offen", "buffer_store_dwordx4 v[60:63], v3, s[20:23], s30 offen",
            f"buffer_store_dwordx4 v[64:67], v3, s[20:23], s77 offen", "buffer_store_dwordx4 v[68:71], v3, s[20:23], s31 offen"], "h")
    st(e, "hst")
    e(cs_chk + "\ns_cmp_eq_u64 vcc, -1\ns_cbranch_scc1 K_cs_ok")
    def body():
        cs_loads()
        e("s_waitcnt vmcnt(0)\n" + cs_chk)
    spin(e, body, "s_cmp_eq_u64 vcc, -1", sleep=2)
    e.label("K_cs_ok")
    e("v_cmp_eq_u32 vcc, s74, v140")
    e(f"s_lshl_b32 s30, s4, 8\ns_add_u32 s30, s30, {CSW}\nv_lshl_add_u32 v1, v0, 2, s30")
    e("s_cmp_eq_u64 vcc, -1\ns_cselect_b32 s97, 2, 1")
    if force: e(f"s_mov_b32 s97, {force}")
    e("v_mov_b32 v2, s97\nds_write_b32 v1, v8\nds_write_b32 v20, v2 offset:16")
    e(f"s_lshl_b32 s30, s87, 14\ns_xor_b32 s31, s30, 0x4000\ns_and_b32 s29, s4, 1\ns_lshl_b32 s29, s29, 12\ns_sub_u32 s29, {SC}, s29\ns_add_u32 s30, s30, s29\ns_add_u32 s31, s31, s29\ns_lshl_b32 s29, s4, 5")
    for j in range(4): e(f"v_xor_b32 v{10+j}, s29, v{10+j}\nv_add_u32 v{14+j}, s31, v{10+j}\nv_add_u32 v{10+j}, s30, v{10+j}")
    e("s_lshl_b32 s30, s91, 7\ns_lshl_b32 s31, s4, 2\ns_add_u32 s31, s31, s30\nv_mov_b32 v4, s31\nv_mov_b32 v5, s84")
    e.vm_wait({"h"})
    e("s_mov_b64 exec, 1")
    dual(["buffer_store_dword v5, v4, s[20:23], s78 offen"], "fl")
    e("s_mov_b64 exec, -1")
    st(e, "hflag")
    e(f"s_lshl_b32 s92, s5, 1\ns_add_u32 s92, s92, s87\ns_mul_i32 s92, s92, {A_W}\ns_lshl_b32 s30, s85, 13\ns_add_u32 s93, s92, s30\ns_add_u32 s93, s93, {3*CH}\ns_lshl_b32 s30, s85, 16\ns_add_u32 s92, s92, s30")
    e("v_and_b32 v8, 7, v0\nv_min_u32 v8, 6, v8\nv_lshlrev_b32 v8, 7, v8\nv_and_b32 v1, 8, v0\nv_add_u32 v8, v8, v1\ns_and_b32 s30, s4, 1\ns_lshl_b32 s31, s30, 2\nv_add_u32 v8, s31, v8")
    e("s_lshl_b32 s30, s30, 10\ns_lshl_b32 s31, s85, 11\ns_add_u32 s30, s30, s31\nv_add_u32 v23, s30, v3\nv_xor_b32 v22, 0x800, v23")
    e(f"s_mul_i32 s76, s5, 7\ns_add_u32 s76, s76, s91\ns_lshl_b32 s76, s76, 1\ns_add_u32 s76, s76, s85\ns_lshl_b32 s76, s76, 15\ns_add_u32 s76, s76, s89\ns_xor_b32 s77, s76, 0x8000\ns_add_u32 s76, s76, {WS_PX}\ns_add_u32 s77, s77, {WS_PX}")
    def c_dma(r, parts=(0, 1)):
        for ip in range(4):
            if (ip >> 1) not in parts: continue
            e(f"s_add_u32 m0, s89, {SC + (ip >> 1)*CH + (ip & 1)*2048}\ns_add_u32 s83, s{71+r}, {ip*16*896}")
            e.vmem("buffer_load_dwordx4 v138, s[16:19], s83 offen lds", ("c", r))
            if pace: e(f"s_sleep {pace}")
            e.vmem("buffer_load_dwordx4 v139, s[16:19], s83 offen offset:1024 lds", ("c", r))
            if pace: e(f"s_sleep {pace}")
    def creg(k): return 144 + 8 * k
    def c_pull(r):
        for k in range(8*r, min(14, 8*r + 8)):
            if k == 12:
                for j in (0, 1, 4, 5): e(f"v_xor_b32 v{10+j}, s73, v{10+j}")
            for b in range(2):
                g = creg(k) + 4*b
                e(f"ds_read_b128 v[{g}:{g+3}], v{10 + 4*b + (k & 3)} offset:{((k >> 2) & 1)*4096}")
        e.lg0()
    wait_prog(4)
    c_dma(0, (0,))
    wait_prog(5)
    c_dma(0, (1,))
    e.vm0()
    ssync()
    c_pull(0)
    ssync()
    st(e, "c0")
    c_dma(1)
    def body():
        e("buffer_load_dword v9, v8, s[20:23], s78 offen sc1\ns_waitcnt vmcnt(0)\nv_cmp_eq_u32 vcc, s84, v9\ns_nop 1")
    spin(e, body, "s_cmp_eq_u64 vcc, -1", sleep=4)
    e.vm = []
    st(e, "hseen")
    NP = 10
    YA = [64, 96]
    def yreg(t): return 24 + 4*(t % NP)
    def yissue(t):
        k = t >> 1
        if (t & 1) == 0 and k > 0: e("s_mov_b32 s92, s93" if k == 12 else "s_add_u32 s92, s92, 4096")
        e.vmem(f"buffer_load_dwordx4 v[{yreg(t)}:{yreg(t)+3}], v{22 + (t & 1)}, s[20:23], s92 offen sc1", ("A", t))
    for t in range(ypre): yissue(t)
    ssync()
    c_pull(1)
    st(e, "c1")
    lds_wait(20, 32, "s_cmp_lg_u32 s82, 0", 1)
    st(e, "epid")
    e("s_setprio 3")
    for t in range(ypre, NP - 1): yissue(t)
    for t in range(28):
        k = t >> 1
        e.vm_wait({("A", t)})
        for b in range(2):
            e(mfma(YA[t & 1] + 16*b, yreg(t), creg(k) + 4*b, k == 0))
            if b == 0 and t + NP - 1 < 28: yissue(t + NP - 1)
    st(e, "yloop")
    e(f"s_add_u32 s31, s89, {SC}\nv_add_u32 v10, s31, v3\nv_xor_b32 v11, 0x2000, v10")
    ssync()
    for ps in range(2):
        for g in range(4): e(f"ds_write_b128 v10, v[{YA[ps]+16+4*g}:{YA[ps]+19+4*g}] offset:{ps*CH + g*1024}")
    ssync()
    for ps in range(2):
        for g in range(4): e(f"ds_read_b128 v[{YA[ps]+16+4*g}:{YA[ps]+19+4*g}], v11 offset:{ps*CH + g*1024}")
    e("s_waitcnt lgkmcnt(4)")
    Y = YA[0]
    for r in range(16): e(f"v_add_f32 v{Y+r}, v{Y+r}, v{Y+16+r}")
    for r in range(0, 16, 2): e(f"v_cvt_pk_bf16_f32 v{24+r}, v{Y+r}, v{Y+r+1}\nv_mov_b32 v{25+r}, s84")
    e("s_waitcnt lgkmcnt(0)\ns_mov_b64 exec, 1\nds_add_u32 v18, v19 offset:84\ns_mov_b64 exec, -1")
    e("s_setprio 0")
    Y = YA[1]
    for r in range(16): e(f"v_add_f32 v{Y+r}, v{Y+r}, v{Y+16+r}")
    lds_wait(18, 84, "s_cmp_ge_u32 s82, 4", 1, sleep=0)
    for g in range(4): e(f"ds_write_b128 v10, v[{Y+4*g}:{Y+3+4*g}] offset:{g*1024}")
    st(e, "ydone")
    lds_wait(20, 64, "s_cmp_lg_u32 s82, 0", 1, sleep=2)
    stores([f"buffer_store_dwordx4 v[{24+4*g}:{27+4*g}], v3, s[20:23], s77 offen offset:{g*1024}" for g in range(4)], "px")
    st(e, "ysent")
    e.lg0()
    e("s_barrier")
    st.dump(e); info["S"] = st.names
    e("s_endpgm")

    e.vm = []; e.lg = []
    e.label("K_SPARE")
    st = Stamper(stamps, 143)
    e("s_getpc_b64 s[28:29]")
    e.label("K_PC")
    e(f"s_sub_u32 s28, s28, K_PC-{name}\ns_subb_u32 s29, s29, 0")
    e(f"v_lshlrev_b32 v7, 7, v2\nv_min_u32 v5, ALL_END-{name}-4, v7")
    e("s_cmp_lt_u32 s2, 248\ns_cbranch_scc1 K_sp0")
    e("global_load_dword v83, v5, s[28:29]")
    e.label("K_sp0")
    e("s_sub_u32 s4, s2, 224\ns_lshr_b32 s5, s4, 1\ns_and_b32 s6, s4, 1")
    e("v_lshrrev_b32 v3, 4, v2\nv_and_b32 v4, 15, v2\nv_mul_u32_u24 v5, 0xe00, v3\nv_lshl_add_u32 v5, v4, 4, v5")
    e(f"v_mov_b32 v6, 0\ns_mov_b32 s82, {WS_EP}\ns_lshl_b32 s28, s5, 8")
    e("s_cmp_eq_u32 s6, 0")
    e("s_waitcnt lgkmcnt(0)")
    e("s_cselect_b32 s16, s52, s54\ns_cselect_b32 s17, s53, s55")
    e(f"s_and_b32 s17, s17, 0xffff\ns_mov_b32 s18, {448*3584}\ns_mov_b32 s19, 0x20000")
    srd(e, 20, 62, WS_END)
    srd(e, 8, 56, 1792 * 896)
    srd(e, 64, 42, 448 * 896)
    srd(e, 68, 44, 448 * 896)
    e("s_cmp_ge_u32 s4, 28\ns_cbranch_scc1 K_sp4")
    e.vmem("buffer_load_dword v6, v6, s[20:23], s82 offen sc1", "ep")
    for i in range(14):
        e.vmem(f"buffer_load_dwordx4 v[{16+4*i}:{19+4*i}], v5, s[16:19], s28 offen", ("cs", i))
        if i < 13: e(f"s_add_u32 s28, s28, {32*3584}")
    if warm:
        e("s_mul_i32 s28, s4, 57344\ns_mul_i32 s29, s4, 14336")
        e.vmem("buffer_load_dword v80, v7, s[8:11], s28 offen", "t")
        e("v_and_b32 v4, 0x3fff, v7\ns_cmp_lt_u32 s3, 2\ns_cselect_b32 s64, s64, s68\ns_cselect_b32 s65, s65, s69\ns_cmp_lt_u32 s3, 4\ns_cselect_b32 s66, s66, 0")
        e.vmem("buffer_load_dword v81, v4, s[64:67], s29 offen", "t")
    for q in range(8): e(f"v_mov_b32 v{8+q}, 0")
    for i in range(14):
        e.vm_wait({("cs", i)})
        for q in range(4):
            e(f"v_lshlrev_b32 v72, 16, v{16+4*i+q}\nv_and_b32 v73, 0xffff0000, v{16+4*i+q}\nv_pk_add_f32 v[{8+2*q}:{9+2*q}], v[{8+2*q}:{9+2*q}], v[72:73]")
    e("v_lshlrev_b32 v3, 5, v2")
    e("ds_write_b128 v3, v[8:11]\nds_write_b128 v3, v[12:15] offset:16\ns_waitcnt lgkmcnt(0)")
    st(e, "acc")
    e("s_barrier")
    e("s_cmp_lg_u32 s3, 7\ns_cbranch_scc1 K_sp2")
    e("v_lshlrev_b32 v3, 3, v0\nv_add_u32 v9, 1, v6\nv_max_u32 v9, 1, v9\nv_mov_b32 v11, v9")
    for h in range(2):
        for i in range(16): e(f"ds_read_b64 v[{16+2*i}:{17+2*i}], v3 offset:{(16*h+i)*512}")
        e("s_waitcnt lgkmcnt(0)")
        if h == 0: e("v_mov_b32 v12, 0\nv_mov_b32 v13, 0")
        for i in range(16): e(f"v_pk_add_f32 v[12:13], v[12:13], v[{16+2*i}:{17+2*i}]")
    e(f"v_mov_b32 v8, v12\nv_mov_b32 v10, v13\nv_lshlrev_b32 v3, 4, v0\ns_lshl_b32 s30, s4, 10\ns_add_u32 s30, s30, {WS_CS}")
    e("buffer_store_dwordx4 v[8:11], v3, s[20:23], s30 offen sc1")
    e.label("K_sp2")
    e("s_barrier")
    e.label("K_sp4")
    e.label("K_sp3")
    st.dump(e); info["sp"] = st.names
    e.label("K_END")
    e("s_endpgm")
    e.label("ALL_END")
    return khead(name) + e.text(), kd(name, 256, 256), info

if __name__ == "__main__":
    import sys, json
    NAME = "recurrent_scan__ssm_conv_s5__glu_gated_reglu__prompt_kernel"
    stamps = "stamps" in sys.argv
    kw = {}
    for a in sys.argv[2:]:
        if "=" in a:
            k, v = a.split("="); kw[k] = int(v) if v.lstrip("-").isdigit() else v
    b, d, info = gen_fused(NAME, stamps=stamps, **kw)
    hdr = open("recurrent_scan__ssm_conv_s5__glu_gated_reglu__prompt.s.ref").read().split("; Override")[0]
    txt = hdr + f"; @launch grid=(256,1,1) block=(512,1,1) lds={LDS_BYTES}\n"
    if stamps: txt += "; STAMPS " + json.dumps(info) + "\n"
    txt += '.amdgcn_target "amdgcn-amd-amdhsa--gfx950"\n' + b + d
    open(sys.argv[1], "w").write(txt)
```

```python
from asmlib import *
from layout7 import *
LDS_BYTES = 163840
RING = 114688
NR = 5
MISC = RING + NR * 8192
STAT = MISC
CSB = MISC + 1024
CSW = MISC + 2048
SUB = MISC + 3072
FLG = MISC + 7168
LOG2E = 0x3fb8aa3b
SPIN_MAX = 0x200000
UNIT = 114688
CH = 16384
SC = 2 * CH

def mfma(d, a, b, first=False):
    c = "0" if first else f"v[{d}:{d+15}]"
    return f"v_mfma_f32_32x32x16_bf16 v[{d}:{d+15}], v[{a}:{a+3}], v[{b}:{b+3}], {c}"

class Stamper:
    def __init__(self, on, vreg): self.on = on; self.n = 0; self.v = vreg; self.names = []
    def __call__(self, e, name=""):
        if not self.on: return
        e.lg0()
        e(f"v_writelane_b32 v{self.v}, s80, {self.n}\ns_memtime s[80:81]")
        self.n += 1; self.names.append(name)
        assert self.n <= 60
    def dump(self, e):
        if not self.on: return
        e("s_waitcnt vmcnt(0)")
        self(e, "end"); self(e)
        e("s_memrealtime s[80:81]\ns_waitcnt lgkmcnt(0)")
        e(f"v_writelane_b32 v{self.v}, s96, 62\nv_writelane_b32 v{self.v}, s80, 63\ns_mov_b32 s80, {self.n}\nv_writelane_b32 v{self.v}, s80, 61")
        e(f"s_mov_b32 s22, {WS_END + (1<<20)}")
        e("s_lshl_b32 s82, s2, 3\ns_add_u32 s82, s82, s3\ns_lshl_b32 s82, s82, 8")
        e(f"s_add_u32 s82, s82, {WS_END}")
        e("v_lshlrev_b32 v1, 2, v0")
        e(f"buffer_store_dword v{self.v}, v1, s[20:23], s82 offen")

def spin(e, body, cond_ok, sleep=1):
    l = e.newlabel("SP")
    e("s_mov_b32 s95, 0")
    e.label(l)
    body()
    e(cond_ok)
    e(f"s_cbranch_scc1 {l}_ok")
    if sleep: e(f"s_sleep {sleep}")
    e(f"s_add_u32 s95, s95, 1\ns_cmp_lt_u32 s95, {SPIN_MAX}\ns_cbranch_scc1 {l}")
    e.label(l + "_ok")

def tau_of_lane(e, d, t):
    e(f"v_bfe_u32 v{d}, v0, 2, 1\nv_lshlrev_b32 v{d}, 4, v{d}\nv_bfe_u32 v{t}, v0, 3, 2\nv_lshl_add_u32 v{d}, v{t}, 2, v{d}\nv_and_b32 v{t}, 3, v0\nv_add_u32 v{d}, v{d}, v{t}")

def plan_slots():
    wslot = {n: ("r", ((n + 2) % NR) * 8192) for n in range(5)}
    issue = {}
    nxt = 5
    free = []
    for n in range(28):
        if n in (5, 9):
            c = (n >> 2) - 1
            free += [("c", c * CH), ("c", c * CH + 2048)]
        free.append(wslot[n])
        issue[n] = []
        while free and nxt < 28 and len(issue[n]) < 2:
            wslot[nxt] = free.pop(0); issue[n].append(nxt); nxt += 1
    last = max(n for n in issue if issue[n])
    used_after = {}
    inv = {}
    for n in range(28): inv[wslot[n]] = n
    order = sorted(inv.items(), key=lambda x: x[1])
    wd = [(sl, n + 1, 0) for sl, n in order]
    wd = wd[:3] + [(("c", 4 * CH), 22, 5)] + wd[3:4] + [(("c", 4 * CH + 2048), 23, 5)] + wd[4:]
    wd += [(("c", 5 * CH), 0, 6), (("c", 5 * CH + 2048), 0, 6), (("c", 6 * CH), 0, 7)]
    assert len(wd) == 14, len(wd)
    return wslot, issue, wd, last

def gen_fused(name, stamps=False, D0=3, pad=0, ra=1, kint=3, fine=1, sidle=0, sprio=3, sprio2=0, fprio=2, NA=16, pace=0, warm=1, ypre=9, ssl=1, ysl=3, t0=29, dwarm=0, outfl='nt', force=0, bulk=0):
    e = Em2()
    info = {}
    wslot, wissue, wdslot, wlast = plan_slots()
    def stores(ins_list, tag):
        for x in ins_list: e.vmem(x + " sc1", tag)
    def dual(ins_list, tag, on=True):
        if not on: return stores(ins_list, tag)
        l = e.newlabel("DS")
        e(f"s_cmp_eq_u32 s97, 2\ns_cbranch_scc1 {l}_l")
        for x in ins_list: e(x + " sc1")
        e(f"s_branch {l}_e")
        e.label(l + "_l")
        for x in ins_list: e.vmem(x, tag)
        e.label(l + "_e")
    def wd_setup(va, sr):
        e(f"v_lshrrev_b32 v{va}, 3, v0\nv_mul_u32_u24 v{va}, 0x380, v{va}\nv_bfe_u32 v{va+1}, v0, 4, 1\nv_lshlrev_b32 v{va+1}, 2, v{va+1}")
        e(f"v_and_b32 v1, 7, v0\nv_xor_b32 v1, v1, v{va+1}\nv_lshl_add_u32 v{va}, v1, 4, v{va}\nv_add_u32 v{va+1}, {8*896-1024}, v{va}")
        srd(e, sr, 56, 1792 * 896)
        e("s_lshl_b32 s98, s99, 1")
        e(f"s_mul_i32 s88, s4, {32*896}\ns_lshl_b32 s82, s91, 7\ns_add_u32 s88, s88, s82\ns_mul_i32 s82, s85, {7*UNIT}\ns_add_u32 s88, s88, s82")
        e(f"s_mul_i32 s64, s98, {UNIT}\ns_add_u32 s64, s64, s88\ns_add_u32 s88, s88, {7*UNIT}")
        for u in range(1, 7):
            e(f"s_add_u32 s{64+u}, s{63+u}, {UNIT}\ns_cmp_ge_u32 s{64+u}, s88\ns_cselect_b32 s82, {7*UNIT}, 0\ns_sub_u32 s{64+u}, s{64+u}, s82")
    def wd_dma(k, va, sr):
        kind, off = wdslot[k][0]
        e(f"s_add_u32 m0, s{89 if kind == 'c' else 79}, {off}\ns_add_u32 s82, s{64+(k>>1)}, {(k&1)*16*896}")
        e.vmem(f"buffer_load_dwordx4 v{va}, s[{sr}:{sr+3}], s82 offen lds", ("wd", k))
        e.vmem(f"buffer_load_dwordx4 v{va+1}, s[{sr}:{sr+3}], s82 offen offset:1024 lds", ("wd", k))
    def wd_half(k, hf):
        kind, off = wdslot[k][0]
        e(f"s_add_u32 m0, s{89 if kind == 'c' else 79}, {off}\ns_add_u32 s82, s{64+(k>>1)}, {(k&1)*16*896}")
        e.vmem(f"buffer_load_dwordx4 v{2+hf}, s[12:15], s82 offen" + (" offset:1024" if hf else "") + " lds", ("wd", k))
    def lds_wait(addr, off, cond, tmp, sleep=1):
        def body(): e(f"ds_read_b32 v{tmp}, v{addr} offset:{off}\ns_waitcnt lgkmcnt(0)\nv_readfirstlane_b32 s82, v{tmp}")
        spin(e, body, cond, sleep=sleep)
        e.lg = []
    e("s_cmp_ge_u32 s2, 256")
    e("s_cbranch_scc1 K_END")
    if stamps: e("s_memrealtime s[96:97]\ns_memtime s[80:81]")
    elif pad: e("s_memrealtime s[96:97]")
    e("s_load_dwordx16 s[32:47], s[0:1], 0")
    e("s_load_dwordx16 s[48:63], s[0:1], 64")
    e("v_lshrrev_b32 v1, 6, v0\nv_mov_b32 v2, v0\nv_and_b32 v0, 63, v0\nv_readfirstlane_b32 s3, v1")
    e("s_cmp_ge_u32 s2, 224")
    e("s_cbranch_scc1 K_SPARE")
    e("s_and_b32 s4, s3, 3\ns_and_b32 s8, s2, 7\ns_lshr_b32 s9, s2, 3")
    e("s_and_b32 s5, s8, 3\ns_lshl_b32 s5, s5, 2\ns_and_b32 s99, s9, 3\ns_add_u32 s5, s5, s99")
    e("s_lshr_b32 s85, s8, 2\ns_lshr_b32 s91, s9, 2\ns_mul_i32 s6, s85, 7\ns_add_u32 s6, s6, s91")
    e("v_and_b32 v20, 31, v0\nv_lshrrev_b32 v21, 5, v0\nv_bfe_u32 v22, v0, 1, 3\nv_xor_b32 v22, v22, v21\nv_lshlrev_b32 v20, 7, v20")
    e(f"s_lshl_b32 s89, s4, 12\ns_lshl_b32 s79, s4, 11\ns_add_u32 s79, s79, {RING}")
    e("s_cmp_ge_u32 s3, 4")
    e("s_cbranch_scc1 K_S")

    st = Stamper(stamps, 127)
    e(f"s_setprio {fprio}")
    e(f"s_mul_i32 s10, s99, {ra}\ns_add_u32 s7, s91, s10")
    e("s_cmp_ge_u32 s7, 7\ns_cselect_b32 s10, 7, 0\ns_sub_u32 s7, s7, s10")
    e("s_lshl_b32 s64, s7, 7")
    for c in range(1, 7):
        e(f"s_add_u32 s{64+c}, s{63+c}, 128\ns_cmp_ge_u32 s{64+c}, 896\ns_cselect_b32 s{64+c}, 0, s{64+c}")
    e("v_lshrrev_b32 v8, 3, v0\nv_and_b32 v9, 7, v0\nv_lshrrev_b32 v7, 4, v0\nv_xor_b32 v9, v9, v7\nv_lshlrev_b32 v9, 4, v9\nv_xor_b32 v7, 64, v9")
    e("v_and_b32 v6, 3, v8\nv_lshl_add_u32 v5, v21, 4, v6\nv_lshl_add_u32 v6, v21, 3, v6\nv_mul_u32_u24 v5, 0x380, v5\nv_mul_u32_u24 v6, 0x380, v6")
    e("v_add_u32 v1, v5, v9\nv_add_u32 v2, v5, v7\nv_add_u32 v2, 2560, v2\nv_add_u32 v3, 5120, v1\nv_add_u32 v4, 5120, v2")
    e(f"v_add_u32 v5, v6, v9\nv_add_u32 v6, v6, v7\nv_add_u32 v6, {4*896-1024}, v6")
    e("s_lshl_b32 s28, s5, 7\ns_lshl_b32 s29, s4, 5\ns_add_u32 s28, s28, s29\ns_mul_i32 s28, s28, 896")
    e("s_lshl_b32 s29, s6, 5\ns_and_b32 s30, s4, 1\ns_lshl_b32 s30, s30, 4\ns_add_u32 s29, s29, s30\ns_mul_i32 s29, s29, 896")
    e(f"s_mov_b32 s10, {2048*896}\ns_mov_b32 s11, 0x20000\ns_mov_b32 s14, {448*896}\ns_mov_b32 s15, 0x20000")
    e("s_waitcnt lgkmcnt(0)")
    st(e, "karg")
    e("s_cmp_lt_u32 s4, 2")
    e("s_cselect_b32 s12, s38, s40\ns_cselect_b32 s13, s39, s41\ns_mov_b32 s8, s32\ns_and_b32 s9, s33, 0xffff\ns_and_b32 s13, s13, 0xffff")
    def xb_burst(c):
        e(f"s_add_u32 m0, s89, {c*CH}\ns_add_u32 s83, s28, s{64+c}")
        for ii in range(4):
            e.vmem(f"buffer_load_dwordx4 v{1+ii}, s[8:11], s83 offen" + (f" offset:{ii*1024}" if ii else "") + " lds", ("x", c))
        e(f"s_add_u32 m0, s79, {(c % NR)*8192}\ns_add_u32 s83, s29, s{64+c}")
        e.vmem("buffer_load_dwordx4 v5, s[12:15], s83 offen lds", ("x", c))
        e.vmem("buffer_load_dwordx4 v6, s[12:15], s83 offen offset:1024 lds", ("x", c))
    xb_burst(0)
    srd(e, 20, 62, WS_END)
    e(f"v_mov_b32 v120, 0\ns_mov_b32 s82, {WS_EP}")
    e("s_mov_b64 exec, 1")
    e.vmem("buffer_load_dword v120, v120, s[20:23], s82 offen sc1", "ep")
    e("s_mov_b64 exec, -1")
    e(f"v_mov_b32 v124, 0\nv_mov_b32 v125, 0\ns_lshl_b32 s31, s4, 9\ns_add_u32 s31, s31, {SUB}\nv_lshl_add_u32 v8, v0, 3, s31")
    e.lds("ds_write_b64 v8, v[124:125]")
    e(f"v_lshlrev_b32 v8, 2, v0\nv_add_u32 v8, {FLG}, v8")
    e.lds("ds_write_b32 v8, v124")
    for jj in range(4):
        e(f"v_xor_b32 v{10+jj}, {2*jj}, v22\nv_lshl_add_u32 v{10+jj}, v{10+jj}, 4, v20\nv_add_u32 v{14+jj}, 0x10000, v{10+jj}")
    if D0 > 1: xb_burst(1)
    srd(e, 16, 52, 448 * 3584)
    srd(e, 24, 54, 448 * 3584)
    e("s_lshl_b32 s31, s6, 8\ns_lshl_b32 s82, s4, 6\ns_add_u32 s31, s31, s82")
    for c in range(7): e(f"s_mul_i32 s{72+c}, s{64+c}, 1792\ns_add_u32 s{72+c}, s{72+c}, s31")
    e("v_lshrrev_b32 v7, 2, v0\nv_mul_u32_u24 v7, 0xe00, v7\nv_and_b32 v8, 3, v0\nv_lshl_add_u32 v7, v8, 4, v7")
    e("v_bfe_u32 v8, v0, 2, 2\nv_lshl_add_u32 v8, v21, 3, v8\nv_lshlrev_b32 v9, 6, v8")
    e("v_bfe_u32 v8, v0, 4, 1\nv_lshl_add_u32 v9, v8, 5, v9\nv_and_b32 v8, 3, v0\nv_lshl_add_u32 v9, v8, 3, v9\nv_add_u32 v125, s89, v9\nv_add_u32 v9, s79, v9")
    e("v_lshlrev_b32 v18, 4, v0")
    e(f"s_lshl_b32 s31, s4, 2\ns_add_u32 s31, s31, {FLG}\nv_mov_b32 v19, s31")
    e(f"s_lshl_b32 s31, s4, 8\ns_add_u32 s31, s31, {CSW}\nv_lshl_add_u32 v122, v21, 4, s31")
    tau_of_lane(e, 123, 8)
    e(f"v_lshlrev_b32 v123, 2, v123\nv_add_u32 v123, {STAT}, v123\nv_mov_b32 v8, {FLG}")
    e(f"s_lshl_b32 s92, s5, 2\ns_add_u32 s92, s92, s4\ns_mul_i32 s92, s92, {A_W}\ns_add_u32 s92, s92, {WS_AO}\ns_lshl_b32 s31, s6, 13\ns_add_u32 s86, s92, s31\ns_add_u32 s87, s86, 4096")
    for c in range(2, D0): xb_burst(c)
    def w_issue(n, mt):
        c, jj = n >> 2, n & 3
        kind, off = wslot[n]
        e(f"s_add_u32 m0, s{89 if kind == 'c' else 79}, {off + mt*1024}\ns_add_u32 s83, s{72+c}, {16*jj*3584}")
        e.vmem(f"buffer_load_dwordx4 v7, s[{16+8*mt}:{19+8*mt}], s83 offen lds", ("w", n))
    FS = [24, 48]
    def reads(n):
        fs = FS[n & 1]; c, jj = n >> 2, n & 3
        xb = (10 + jj) if c < 4 else (14 + jj)
        xo = (c & 3) * CH
        kind, wo = wslot[n]
        wb = 125 if kind == "c" else 9
        X = lambda rt: (f"ds_read_b128 v[{fs+4*rt}:{fs+4*rt+3}], v{xb} offset:{xo + rt*4096}", ("X", n, rt))
        Wr = lambda mt, u2: (f"ds_read_b64_tr_b16 v[{fs+16+4*mt+2*u2}:{fs+17+4*mt+2*u2}], v{wb} offset:{wo + mt*1024 + u2*256}", ("W", n))
        return [Wr(0, 0), Wr(0, 1), X(0), Wr(1, 0), Wr(1, 1), X(1), X(2), X(3)]
    for sg in range(8):
        tags = {("x", sg)}
        if sg == 1: tags.add("ep")
        e.vm_wait(tags)
        if sg == 0: e.lg0()
        if sg == 7:
            e.vm_wait({("w", 0)})
            for s, t in reads(0): e.lds(s, t)
        st(e, f"b{sg}")
        e("s_barrier")
        if sg + D0 < 7: xb_burst(sg + D0)
        if 3 <= sg < 7:
            w_issue(sg - 3, 0); w_issue(sg - 3, 1)
        if sg == 1: e("v_readfirstlane_b32 s84, v120\ns_add_u32 s84, s84, 1\ns_max_u32 s84, s84, 1")
        if sg == 5: wd_setup(2, 12)
    w_issue(4, 0); w_issue(4, 1)
    CS = 72; T = 104
    cs_rd = [("ds_read_b32 v121, v19 offset:16", "cs")] + [(f"ds_read_b32 v{20+rt}, v123 offset:{rt*128}", "cs") for rt in range(4)]
    cs_rd += [(f"ds_read_b128 v[{CS+16*mt+4*q}:{CS+16*mt+4*q+3}], v122 offset:{mt*128 + q*32}", "cs") for mt in range(2) for q in range(4)]
    p2 = []
    def p_(s): p2.extend(s.split("\n"))
    p_("v_bfe_u32 v112, v0, 2, 2\nv_lshrrev_b32 v113, 5, v0\nv_lshl_add_u32 v113, v113, 2, v112\nv_lshlrev_b32 v113, 7, v113")
    p_("s_lshr_b32 s31, s4, 1\nv_lshrrev_b32 v112, 1, v112\nv_xor_b32 v112, s31, v112\nv_lshl_add_u32 v113, v112, 6, v113")
    p_("v_bfe_u32 v112, v0, 4, 1\nv_lshl_add_u32 v113, v112, 5, v113\nv_and_b32 v112, 3, v0\nv_lshl_add_u32 v113, v112, 3, v113\nv_xor_b32 v112, 64, v113")
    p_(f"s_lshl_b32 s30, s31, 13\ns_lshl_b32 s31, s31, 12\ns_add_u32 s31, s31, {RING}")
    p_("v_add_u32 v108, s30, v113\nv_add_u32 v109, s30, v112\nv_add_u32 v110, s31, v113\nv_add_u32 v111, s31, v112\nv_add_u32 v112, 0x10000, v108\nv_add_u32 v113, 0x10000, v109")
    p_(f"s_lshl_b32 s93, s5, 1\ns_add_u32 s93, s93, s85\ns_lshl_b32 s93, s93, 10\ns_add_u32 s93, s93, {WS_FO}")
    p_(f"s_and_b32 s31, s4, 1\ns_mul_i32 s31, s31, {A_W}\ns_sub_u32 s92, s92, s31")
    p_(f"s_mul_i32 s31, s85, {7*8192}\ns_add_u32 s92, s92, s31\ns_xor_b32 s31, s85, 1\ns_lshl_b32 s31, s31, 11\ns_add_u32 s92, s92, s31")
    p_(f"s_lshl_b32 s90, s98, 13\ns_add_u32 s90, s90, s92\ns_add_u32 s92, s92, {7*8192}\ns_add_u32 s71, s90, {A_W}")
    p_("s_lshl_b32 s29, s85, 6\ns_and_b32 s31, s4, 1\ns_lshl_b32 s31, s31, 5\ns_add_u32 s29, s29, s31\ns_lshl_b32 s30, s5, 7\ns_add_u32 s30, s30, s29")
    p_(f"v_lshlrev_b32 v117, 4, v21\nv_add_u32 v114, s30, v117\ns_lshl_b32 s29, s29, 2\ns_add_u32 s29, s29, {STAT}\nv_lshl_add_u32 v117, v117, 2, s29")
    p_("s_lshl_b32 s29, s91, 6\ns_lshr_b32 s31, s4, 1\ns_lshl_b32 s31, s31, 5\ns_add_u32 s29, s29, s31\nv_and_b32 v115, 31, v0\nv_add_u32 v115, s29, v115")
    p_("v_mul_u32_u24 v114, 0x380, v114\nv_lshlrev_b32 v115, 1, v115\nv_add_u32 v114, v114, v115\nv_lshlrev_b32 v116, 1, v114")
    for q in range(1, 8): p_(f"s_movk_i32 s{32+q}, {q*3584}")
    p_(f"s_mul_i32 s40, s5, 7\ns_add_u32 s40, s40, s91\ns_lshl_b32 s40, s40, 1\ns_add_u32 s40, s40, s85\ns_lshl_b32 s40, s40, 15\ns_add_u32 s40, s40, s89\ns_xor_b32 s41, s40, 0x8000\ns_add_u32 s40, s40, {WS_PX + 16384}\ns_add_u32 s41, s41, {WS_PX + 16384}")
    slow = []; slow2 = []; slow3 = []
    for n in range(28):
        fs = FS[n & 1]
        rd = reads(n + 1) if n < 27 else list(cs_rd)
        if n < 27: e.vm_wait({("w", n + 1)})
        dq = [("w", m, mt) for m in wissue[n] for mt in range(2)]
        for k in range(11):
            if wdslot[k][1] - 1 == n: dq += [("d", k, 0), ("d", k, 1)]
        gaps = (2, 5) if len(dq) <= 2 else (1, 3, 5, 7)
        for i in range(8):
            rt, mt = i >> 1, i & 1
            if i == 0: e.lg_wait({("W", n), ("X", n, 0)})
            elif mt == 0: e.lg_wait({("X", n, rt)})
            e(mfma(128 + 64*mt + 16*rt, fs + 16 + 4*mt, fs + 4*rt, n == 0))
            k = 1 if n < 27 else 2
            for s, t in rd[:k]: e.lds(s, t)
            rd = rd[k:]
            if n in (5, 9, 21) and i == 0:
                l = e.newlabel("PG")
                e(f"v_readfirstlane_b32 s82, v104\ns_cmp_lt_u32 s82, {n >> 2}\ns_cbranch_scc1 {l}")
                e.label(l + "_r")
                slow.append((l, n >> 2))
            if i in gaps and dq:
                kd_, a1, a2 = dq.pop(0)
                if kd_ == "w": w_issue(a1, a2)
                else: wd_half(a1, a2)
            if i == 6 and (n & 3) == 3:
                e(f"v_mov_b32 v126, {(n >> 2) + 1}")
                e.lds("ds_write_b32 v19, v126")
            if n in (4, 8, 20):
                if i == 2: e.lds("ds_read_b128 v[104:107], v8", "pg")
                if i == 6:
                    e.lg_wait({"pg"})
                    e("v_min_u32 v104, v104, v105\nv_min3_u32 v104, v104, v106, v107")
            if 11 <= n < 27 and i in (0, 1, 3, 4, 6, 7) and len(gaps) == 2:
                if p2: e(p2.pop(0))
        assert not rd and not dq
        if stamps and ((fine and (n & 3) == 3) or n == 27): st(e, f"k{n}")
    assert not p2
    e.lg0()
    e("v_readfirstlane_b32 s97, v121\ns_cmp_lg_u32 s97, 0\ns_cbranch_scc1 K_csok")
    def body():
        for s, t in cs_rd: e(s)
        e("s_waitcnt lgkmcnt(0)\nv_readfirstlane_b32 s97, v121")
    spin(e, body, "s_cmp_lg_u32 s97, 0")
    e.label("K_csok")
    st(e, "cs")
    for rt in range(4):
        G, U = 128 + 16*rt, 192 + 16*rt
        mp = 20 + (rt & 2)
        sel = ("op_sel:[0,1,0] op_sel_hi:[1,1,1]" if rt & 1 else "op_sel_hi:[1,0,1]") + " neg_lo:[1,0,0] neg_hi:[1,0,0]"
        for h in range(2):
            g = 2*rt + h
            tt = 24 + 4 * g
            rs = range(8*h, 8*h + 8, 2)
            if g == 7: e.lds("ds_read_b128 v[104:107], v8", "pg")
            for r in rs:
                e(f"v_pk_fma_f32 v[{G+r}:{G+r+1}], v[{CS+r}:{CS+r+1}], v[{mp}:{mp+1}], v[{G+r}:{G+r+1}] {sel}")
                e(f"v_pk_fma_f32 v[{U+r}:{U+r+1}], v[{CS+16+r}:{CS+17+r}], v[{mp}:{mp+1}], v[{U+r}:{U+r+1}] {sel}")
            for r in rs: e(f"v_max_f32 v{G+r}, 0, v{G+r}\nv_max_f32 v{G+r+1}, 0, v{G+r+1}")
            for r in rs: e(f"v_pk_mul_f32 v[{G+r}:{G+r+1}], v[{G+r}:{G+r+1}], v[{U+r}:{U+r+1}]")
            for r in rs: e(f"v_cvt_pk_bf16_f32 v{tt + ((r - 8*h) >> 1)}, v{G+r}, v{G+r+1}")
            dual([f"buffer_store_dwordx4 v[{tt}:{tt+3}], v18, s[20:23], s{86 + h} offen offset:{rt*1024}"], "hh", bulk & 1)
            if g == 7:
                e.lds("ds_write_b32 v19, v126 offset:32")
                e.lg_wait({"pg"})
                l = e.newlabel("PG")
                e(f"v_min_u32 v104, v104, v105\nv_min3_u32 v104, v104, v106, v107\ns_nop 0\nv_readfirstlane_b32 s82, v104\ns_cmp_lt_u32 s82, 7\ns_cbranch_scc1 {l}")
                e.label(l + "_r")
                slow.append((l, 7))
    for k in (11, 12, 13): wd_dma(k, 2, 12)
    st(e, "epi")
    e("s_setprio 0")
    XR, MR, RR = 56, 72, 88
    for q in range(4):
        e.lds(f"ds_read_b128 v[{RR+4*q}:{RR+4*q+3}], v117 offset:{512+16*q}")
    e("s_and_b32 s31, s4, 1\ns_lshl_b32 s31, s31, 10\nv_add_u32 v10, s31, v18\nv_add_u32 v11, 0x1000, v10")
    e("s_lshl_b32 s31, s91, 7\ns_lshl_b32 s30, s4, 2\ns_add_u32 s31, s31, s30\nv_mov_b32 v16, s31\nv_mov_b32 v17, s84")
    e("v_and_b32 v14, 7, v0\nv_min_u32 v14, 6, v14\nv_lshlrev_b32 v14, 7, v14\nv_bfe_u32 v15, v0, 3, 1\nv_lshl_add_u32 v14, v15, 2, v14\ns_and_b32 s30, s30, 8\nv_add_u32 v14, s30, v14")
    e(f"s_add_u32 s31, s89, {SC}\nv_add_u32 v4, s31, v18\nv_xor_b32 v5, 0x2000, v4\nv_xor_b32 v6, 8, v19\nv_add_u32 v7, {6*CH + 2048 - SC}, v4")
    srd(e, 16, 58, 2048 * 1792)
    e.lg0()
    for r in range(16): e(f"v_mul_f32 v{RR+r}, v{RR+r}, v{RR+r}")
    e.vm0()
    e("s_mov_b64 exec, 1")
    dual(["buffer_store_dword v17, v16, s[20:23], s93 offen"], "fl")
    st(e, "hhflag")
    e("s_mov_b64 exec, 0xffff")
    def body():
        e("buffer_load_dword v17, v14, s[20:23], s93 offen sc1\ns_waitcnt vmcnt(0)\nv_cmp_eq_u32 vcc, s84, v17\ns_nop 1")
    spin(e, body, "s_cmp_eq_u64 vcc, exec", sleep=2)
    e("s_mov_b64 exec, -1")
    e.vm = []
    st(e, "hhseen")
    NT = 56
    def areg(t): return 192 + 4*(t % NA)
    def a_issue(t):
        sub = t & 3
        if sub == 0 and t > 0:
            e(f"s_add_u32 s90, s90, 8192\ns_cmp_ge_u32 s90, s92\ns_cselect_b32 s82, {7*8192}, 0\ns_sub_u32 s90, s90, s82")
            if t == 28: e("s_xor_b32 s90, s90, 0x800\ns_xor_b32 s92, s92, 0x800")
            e(f"s_add_u32 s71, s90, {A_W}")
        r = areg(t)
        e.vmem(f"buffer_load_dwordx4 v[{r}:{r+3}], v{10 + (sub & 1)}, s[20:23], s{71 if sub >> 1 else 90} offen sc1", ("A", t))
    def breg(t): return 24 + 8*(t % 4)
    def b_list(t):
        u = (t % 28) >> 2; sub = t & 3
        kind, off = wdslot[2*u + (sub & 1)][0]
        if kind == "r": bs = (110, 111); off += (sub >> 1) * 2048
        else:
            off += (sub >> 1) * 4096
            bs = (108, 109)
            if off >= 4*CH: bs = (112, 113); off -= 65536
        r = breg(t)
        return [(f"ds_read_b64_tr_b16 v[{r+4*b+2*u2}:{r+4*b+2*u2+1}], v{bs[b]} offset:{off + u2*1024}", ("B", t)) for b in range(2) for u2 in range(2)]
    for t in range(NA - 1): a_issue(t)
    for t in range(3):
        for s, tg in b_list(t): e.lds(s, tg)
    FO, OW = 128, 160
    side = []
    def S_(f): side.append(f)
    def both_wait(t):
        nv = e.vm_need({("A", t)})
        idx = [i for i, x in enumerate(e.lg) if x == ("B", t)]
        parts = []
        if nv is not None:
            parts.append(f"vmcnt({nv})"); e.vm = e.vm[len(e.vm) - nv:] if nv else []
        if idx:
            nl = min(15, len(e.lg) - 1 - idx[-1]); parts.append(f"lgkmcnt({nl})"); e.lg = e.lg[len(e.lg) - nl:] if nl else []
        if parts: e("s_waitcnt " + " ".join(parts))
    RV = 224
    def recv_one(g): e(f"buffer_load_dwordx4 v[{RV+4*g}:{RV+4*g+3}], v18, s[20:23], s{40 if g < 4 else 42} offen offset:{(g & 3)*1024} sc1")
    e("s_sub_u32 s42, s40, 16384")
    nop = lambda: None
    for t in range(NT):
        acc = FO if t < 28 else OW
        if t == 24: S_(lambda: e.lds("ds_read_b32 v121, v8 offset:84", "yx"))
        if t == 27:
            def chk():
                e.lg_wait({"yx"})
                l = e.newlabel("YX")
                e(f"v_readfirstlane_b32 s82, v121\ns_cmp_lt_u32 s82, 4\ns_cbranch_scc1 {l}")
                e.label(l + "_r")
                slow2.append((l, 8, 84, "s_cmp_ge_u32 s82, 4"))
            S_(chk)
        if t == t0:
            S_(nop)
            for g in range(0, 4, 2):
                def wr(g=g):
                    for gg in (g, g + 1): e.lds(f"ds_write_b128 v4, v[{FO+16+4*gg}:{FO+19+4*gg}] offset:{CH + gg*1024}")
                    if g == 2: e.lds("ds_write_b32 v19, v126 offset:48")
                S_(wr)
        if t == t0 + 3:
            def rdx():
                e.lds("ds_read_b32 v121, v6 offset:48", "ex")
                for g in range(4): e.lds(f"ds_read_b128 v[{FO+16+4*g}:{FO+19+4*g}], v5 offset:{CH + g*1024}", "ex")
            S_(rdx)
        if t == t0 + 5:
            def chk2():
                e.lg_wait({"ex"})
                l = e.newlabel("PX")
                e(f"v_readfirstlane_b32 s82, v121\ns_cmp_eq_u32 s82, 0\ns_cbranch_scc1 {l}")
                e.label(l + "_r")
                slow3.append(l)
                e.lds("ds_write_b32 v19, v126 offset:64")
            S_(chk2)
            for g in range(4):
                def grp(g=g):
                    for r in range(4*g, 4*g + 4): e(f"v_add_f32 v{FO+r}, v{FO+r}, v{FO+16+r}")
                def grp2(g=g):
                    for r in (4*g, 4*g + 2): e(f"v_cvt_pk_bf16_f32 v{FO+16+r}, v{FO+r}, v{FO+r+1}\nv_mov_b32 v{FO+17+r}, s84")
                def grp3(g=g):
                    stores([f"buffer_store_dwordx4 v[{FO+16+4*g}:{FO+19+4*g}], v18, s[20:23], s41 offen offset:{g*1024}"], "px")
                S_(grp); S_(grp2); S_(grp3); S_(nop)
        if t == 50: S_(lambda: e.lds("ds_read_b32 v121, v6 offset:64", "rx"))
        if t == 52:
            for g in range(8): S_(lambda g=g: (recv_one(g), e.vm.append("rv")))
        both_wait(t)
        bl = b_list(t + 3) if t + 3 < NT else []
        for b in range(2):
            e(mfma(acc + 16*b, areg(t), breg(t) + 4*b, t % 28 == 0))
            if b == 0 and t + NA - 1 < NT: a_issue(t + NA - 1)
            for s, tg in bl[2*b:2*b + 2]: e.lds(s, tg)
            if side: side.pop(0)()
        if t == 27: st(e, "ofor")
    assert not side
    def recv_issue():
        for g in range(8): recv_one(g)
    def recv_check():
        e("s_waitcnt vmcnt(0)")
        e(f"v_min3_u32 v1, s84, v{RV+1}, v{RV+3}\nv_max3_u32 v2, s84, v{RV+1}, v{RV+3}")
        for g in range(1, 8): e(f"v_min3_u32 v1, v1, v{RV+4*g+1}, v{RV+4*g+3}\nv_max3_u32 v2, v2, v{RV+4*g+1}, v{RV+4*g+3}")
        e("v_cmp_eq_u32 vcc, v1, v2\ns_nop 1")
    def recv_finish():
        l = e.newlabel("RV")
        recv_check()
        e(f"s_cmp_eq_u64 vcc, -1\ns_cbranch_scc1 {l}")
        def body():
            recv_issue(); recv_check()
        spin(e, body, "s_cmp_eq_u64 vcc, -1", sleep=1)
        e.label(l)
        e.vm = []
        for r in range(0, 32, 2): e(f"v_and_b32 v{RV+r+1}, 0xffff0000, v{RV+r}\nv_lshlrev_b32 v{RV+r}, 16, v{RV+r}")
    e.lg0()
    st(e, "oloop")
    l = e.newlabel("RX")
    e(f"v_readfirstlane_b32 s82, v121\ns_cmp_eq_u32 s82, 0\ns_cbranch_scc1 {l}")
    e.label(l + "_r")
    slow2.append((l, 6, 64, "s_cmp_lg_u32 s82, 0"))
    e("s_mov_b32 s28, 0xbfb8aa3b\ns_mov_b32 s29, 0xbfb8aa3b\ns_nop 4")
    for g in range(4): e(f"ds_write_b128 v4, v[{OW+16+4*g}:{OW+19+4*g}] offset:{CH + g*1024}")
    e.lg0()
    e("s_barrier")
    st(e, "fbar")
    for g in range(4): e(f"ds_read_b128 v[{FO+4*g}:{FO+3+4*g}], v5 offset:{CH + g*1024}")
    for g in range(4): e(f"ds_read_b128 v[{MR+4*g}:{MR+3+4*g}], v4 offset:{g*1024}")
    for g in range(2): e(f"ds_read_b128 v[{24+4*g}:{27+4*g}], v7 offset:{g*1024}")
    pk = lambda op, d, a, b, x="": e(f"v_pk_{op}_f32 v[{d}:{d+1}], v[{a}:{a+1}], {b} {x}".rstrip())
    R2 = range(0, 16, 2)
    O, PB = OW, OW + 16
    recv_finish()
    st(e, "orecv")
    e("s_waitcnt lgkmcnt(0)")
    for r in R2: pk("add", O+r, O+r, f"v[{FO+r}:{FO+r+1}]")
    for r in R2: pk("add", O+r, O+r, f"v[{RV+r}:{RV+r+1}]")
    for r in R2: pk("mul", O+r, O+r, f"v[{RR+r}:{RR+r+1}]")
    for r in R2: pk("mul", PB+r, O+r, "s[28:29]")
    for r in range(16): e(f"v_exp_f32 v{PB+r}, v{PB+r}")
    for r in R2: pk("add", MR+r, MR+r, f"v[{RV+16+r}:{RV+17+r}]")
    for r in range(8): e(f"v_lshlrev_b32 v{XR+2*r}, 16, v{24+r}\nv_and_b32 v{XR+2*r+1}, 0xffff0000, v{24+r}")
    for r in R2: pk("add", PB+r, PB+r, "1.0", "op_sel_hi:[1,0]")
    for r in range(16): e(f"v_rcp_f32 v{PB+r}, v{PB+r}")
    for r in R2: pk("mul", O+r, O+r, f"v[{MR+r}:{MR+r+1}]")
    for r in R2:
        e(f"v_pk_fma_f32 v[{PB+r}:{PB+r+1}], v[{PB+r}:{PB+r+1}], v[{O+r}:{O+r+1}], v[{XR+r}:{XR+r+1}]")
        for rr in (r, r + 1):
            so = "0" if rr < 2 else f"s{32 + (rr >> 1)}"
            off = (rr & 1) * 1792
            e(f"buffer_store_dword v{PB+rr}, v116, s[16:19], {so} offen" + (f" offset:{off}" if off else "") + " " + outfl)
    e("s_cmp_lg_u32 s5, 15\ns_cbranch_scc1 K_nobump\ns_or_b32 s28, s6, s4\ns_cmp_lg_u32 s28, 0\ns_cbranch_scc1 K_nobump")
    e(f"v_mov_b32 v8, 0\nv_mov_b32 v9, s84\ns_mov_b32 s28, {WS_EP}\ns_mov_b64 exec, 1")
    e("buffer_store_dword v9, v8, s[20:23], s28 offen sc1")
    e("s_mov_b64 exec, -1")
    e.label("K_nobump")
    if pad:
        e.label("K_pad")
        e(f"s_memrealtime s[28:29]\ns_waitcnt lgkmcnt(0)\ns_sub_u32 s28, s28, s96\ns_cmp_lt_u32 s28, {pad}\ns_cbranch_scc1 K_pad")
    st.dump(e); info["F"] = st.names
    e("s_endpgm")
    for l in slow3:
        e.label(l)
        lds_wait(6, 48, "s_cmp_lg_u32 s82, 0", 121, sleep=0)
        for g in range(4): e(f"ds_read_b128 v[{FO+16+4*g}:{FO+19+4*g}], v5 offset:{CH + g*1024}")
        e(f"s_waitcnt lgkmcnt(0)\ns_branch {l}_r")
    for l, addr, off, cond in slow2:
        e.label(l)
        lds_wait(addr, off, cond, 121, sleep=0)
        e(f"s_branch {l}_r")
    for l, need in slow:
        e.label(l)
        def body():
            e("ds_read_b128 v[104:107], v8\ns_waitcnt lgkmcnt(0)\nv_min_u32 v104, v104, v105\nv_min3_u32 v104, v104, v106, v107\ns_nop 0\nv_readfirstlane_b32 s82, v104")
        spin(e, body, f"s_cmp_ge_u32 s82, {need}", sleep=0)
        e(f"s_branch {l}_r")

    e.vm = []; e.lg = []
    e.label("K_S")
    st = Stamper(stamps, 143)
    e(f"s_setprio {sprio}")
    e("v_and_b32 v1, 19, v0\nv_bfe_u32 v2, v0, 2, 1\nv_lshl_add_u32 v1, v2, 3, v1\nv_bfe_u32 v2, v0, 3, 1\nv_lshl_add_u32 v1, v2, 2, v1\ns_lshl_b32 s30, s6, 5\nv_add_u32 v1, s30, v1\nv_lshlrev_b32 v1, 1, v1\nv_and_b32 v1, -4, v1")
    e("s_lshl_b32 s30, s91, 7\ns_and_b32 s31, s4, 2\ns_lshl_b32 s31, s31, 5\ns_add_u32 s30, s30, s31\nv_and_b32 v7, 30, v0\nv_lshl_add_u32 v7, v7, 1, s30\nv_mov_b32 v247, 0")
    e(f"v_add_u32 v23, s89, v20\nv_add_u32 v24, {RING}, v20")
    e("s_lshl_b32 s31, s4, 1\nv_xor_b32 v6, s31, v22")
    for jj in range(4):
        e(f"v_xor_b32 v5, {2*jj}, v6\nv_lshl_add_u32 v{10+jj}, v5, 4, v23\nv_add_u32 v{14+jj}, 0x10000, v{10+jj}\nv_lshl_add_u32 v{240+jj}, v5, 4, v24")
    e("s_mov_b32 s94, 0x3f803f80\nv_mov_b32 v34, 0\nv_mov_b32 v35, 0\nv_mov_b32 v36, 0\nv_mov_b32 v37, 0")
    e(f"s_mov_b32 s22, {WS_END}\ns_mov_b32 s23, 0x20000\ns_mov_b32 s82, {WS_EP}")
    e(f"v_mov_b32 v18, {FLG}\nv_mov_b32 v19, 1\ns_lshl_b32 s30, s4, 2\ns_add_u32 s30, s30, {FLG}\nv_mov_b32 v20, s30")
    e("v_lshrrev_b32 v4, 3, v0\nv_mul_u32_u24 v4, 0x380, v4\nv_and_b32 v2, 7, v0\nv_lshrrev_b32 v3, 4, v0\nv_xor_b32 v2, v2, v3\nv_lshlrev_b32 v2, 4, v2")
    e(f"v_add_u32 v138, v4, v2\nv_xor_b32 v2, 64, v2\nv_add_u32 v139, v4, v2\nv_add_u32 v139, {8*896-1024}, v139")
    e("s_waitcnt lgkmcnt(0)")
    e.vmem("global_load_dword v244, v1, s[34:35]", "par")
    e.vmem("global_load_dword v245, v1, s[36:37]", "par")
    e.vmem("global_load_dword v246, v1, s[46:47]", "par")
    e.vmem("global_load_dword v142, v7, s[48:49]", "par")
    e("s_mov_b32 s20, s62\ns_and_b32 s21, s63, 0xffff\ns_mov_b64 exec, 1")
    e.vmem("buffer_load_dword v247, v247, s[20:23], s82 offen sc1", "par")
    e("s_mov_b64 exec, -1")
    e(f"s_mul_i32 s30, s99, {ra}\ns_sub_u32 s30, 7, s30\ns_cmp_ge_u32 s30, 7\ns_cselect_b32 s30, 0, s30\ns_lshl_b32 s30, s30, 14\ns_lshl_b32 s31, s85, 13\ns_add_u32 s30, s30, s31\ns_and_b32 s31, s4, 1\ns_lshl_b32 s31, s31, 12\ns_add_u32 s30, s30, s31")
    e("v_bfe_u32 v4, v0, 2, 2\nv_lshl_add_u32 v4, v21, 2, v4\nv_lshrrev_b32 v5, 1, v4\nv_lshlrev_b32 v4, 7, v4\nv_bfe_u32 v7, v0, 4, 1\nv_lshlrev_b32 v7, 1, v7\nv_bfe_u32 v8, v0, 1, 1\nv_add_u32 v7, v7, v8")
    e("s_and_b32 s31, s4, 2\ns_lshl_b32 s31, s31, 1\nv_add_u32 v7, s31, v7\nv_xor_b32 v7, v7, v5\nv_lshl_add_u32 v4, v7, 4, v4\nv_and_b32 v7, 1, v0\nv_lshl_add_u32 v4, v7, 3, v4\nv_add_u32 v254, s30, v4\nv_xor_b32 v255, 64, v254")
    e("v_lshlrev_b32 v8, 4, v7\nv_xor_b32 v8, 16, v8")
    e("s_bitcmp1_b32 s4, 0\ns_cselect_b64 s[64:65], -1, 0")
    e("s_bitcmp1_b32 s4, 1\ns_cselect_b32 s16, s44, s42\ns_cselect_b32 s17, s45, s43\ns_cselect_b64 s[66:67], -1, 0\ns_mov_b32 s68, 0\ns_mov_b32 s69, -1")
    e(f"s_and_b32 s17, s17, 0xffff\ns_mov_b32 s18, {448*896}\ns_mov_b32 s19, 0x20000")
    e(f"s_lshr_b32 s87, s4, 1\ns_mul_i32 s86, s91, {64*896}\ns_and_b32 s30, s4, 1\ns_lshl_b32 s71, s85, 2\ns_add_u32 s72, s71, 2\ns_add_u32 s71, s71, s30\ns_cmp_eq_u32 s30, 0\ns_cselect_b32 s72, s72, 3")
    e("s_lshl_b32 s71, s71, 7\ns_add_u32 s71, s71, s86\ns_lshl_b32 s72, s72, 7\ns_add_u32 s72, s72, s86\ns_lshl_b32 s73, s85, 6")
    K = []
    def k_(s): K.extend(s.split("\n"))
    for r in (244, 245, 246, 142): k_(f"v_lshlrev_b32 v{r}, v8, v{r}\nv_and_b32 v{r}, 0xffff0000, v{r}")
    k_(f"v_mul_f32 v246, {LOG2E}, v246\nv_exp_f32 v246, v246\ns_nop 0\nv_cvt_pk_bf16_f32 v246, v246, v246\nv_and_b32 v246, 0xffff0000, v246")
    k_(f"v_mul_f32 v5, v246, v244\nv_mul_f32 v6, v246, v245\nv_mul_f32 v5, {LOG2E}, v5\nv_exp_f32 v5, v5")
    k_("v_mul_f32 v6, 0.15915494, v6\nv_rndne_f32 v9, v6\nv_sub_f32 v6, v6, v9\nv_cos_f32 v22, v6\nv_sin_f32 v23, v6\ns_nop 0")
    k_("v_mul_f32 v22, v22, v5\nv_mul_f32 v23, v23, v5")
    k_("v_mul_f32 v5, v244, v244\nv_fma_f32 v5, v245, v245, v5\nv_rcp_f32 v5, v5\nv_add_f32 v6, -1.0, v22")
    k_("v_mul_f32 v30, v6, v244\nv_fma_f32 v30, v23, v245, v30\nv_mul_f32 v31, v23, v244\nv_fma_f32 v31, -v6, v245, v31")
    k_("v_add_f32 v5, v5, v5\nv_mul_f32 v30, v30, v5\nv_mul_f32 v31, v31, v5\nv_xor_b32 v33, 0x80000000, v23")
    def csq(d, s): k_(f"v_mul_f32 v9, v{s}, v{s+1}\nv_mul_f32 v{d}, v{s}, v{s}\nv_fma_f32 v{d}, -v{s+1}, v{s+1}, v{d}\nv_add_f32 v{d+1}, v9, v9")
    def pwmul(mask):
        k_(f"v_cndmask_b32 v5, 1.0, v26, {mask}\nv_cndmask_b32 v6, 0, v27, {mask}")
        k_("v_mul_f32 v9, v28, v6\nv_mul_f32 v28, v28, v5\nv_fma_f32 v28, -v29, v6, v28\nv_fma_f32 v29, v29, v5, v9")
    csq(24, 22); csq(24, 24); csq(24, 24); csq(24, 24)
    k_("v_cndmask_b32 v28, 1.0, v24, s[68:69]\nv_cndmask_b32 v29, 0, v25, s[68:69]")
    csq(26, 24); pwmul("s[64:65]"); csq(26, 26); pwmul("s[66:67]"); csq(26, 26); csq(136, 26)
    QR, QI = 104, 120
    for j in range(16):
        pr, pi = (30, 31) if j == 0 else (QR + j - 1, QI + j - 1)
        k_(f"v_mul_f32 v{QR+j}, v22, v{pr}\nv_mul_f32 v{QI+j}, v22, v{pi}\nv_fmac_f32 v{QR+j}, v33, v{pi}\nv_fmac_f32 v{QI+j}, v23, v{pr}")
    k_("v_xor_b32 v31, 0x80000000, v31\nv_xor_b32 v32, 0x80000000, v30")
    UR, UI = 40, 56
    SF = [144, 192]
    def sreads(sg):
        fs = SF[sg & 1]; out = []
        for j in range(4):
            xb = (10 + j) if sg < 4 else (14 + j)
            out += [f"ds_read_b128 v[{fs+12*j}:{fs+12*j+3}], v{xb} offset:{(sg & 3)*CH}",
                    f"ds_read_b128 v[{fs+12*j+4}:{fs+12*j+7}], v{240+j} offset:{(sg % NR)*8192}",
                    f"ds_read_b128 v[{fs+12*j+8}:{fs+12*j+11}], v{240+j} offset:{(sg % NR)*8192+4096}"]
        return out
    def dots(fs):
        for j in range(4):
            for q in range(4): e(f"v_dot2c_f32_bf16 v37, v{fs+12*j+q}, v{fs+12*j+q}\nv_dot2c_f32_bf16 v36, s94, v{fs+12*j+q}")
        for q in range(4): e(f"v_dot2c_f32_bf16 v34, s94, v{fs+4+q}\nv_dot2c_f32_bf16 v35, s94, v{fs+8+q}")
    Z = []
    def z_(s): Z.extend(s.split("\n"))
    z_("v_mov_b32 v1, v36\nv_mov_b32 v2, v37\ns_nop 1")
    z_("v_permlane32_swap_b32 v36, v1\nv_permlane32_swap_b32 v37, v2\nv_permlane32_swap_b32 v34, v35\ns_nop 1")
    z_("v_add_f32 v34, v34, v35\nv_add_f32 v36, v36, v1\nv_add_f32 v37, v37, v2\nds_write_b32 v248, v34")
    z_("v_mul_f32 v36, 0x3b124925, v36\nv_mul_f32 v37, 0x3b124925, v37")
    z_("v_fma_f32 v37, -v36, v36, v37\nv_max_f32 v37, 0, v37\nv_cvt_pk_bf16_f32 v1, v37, v36")
    z_("v_and_b32 v36, 0xffff0000, v1\nv_lshlrev_b32 v37, 16, v1\nv_add_f32 v37, 0x3727c5ac, v37")
    z_("v_cvt_pk_bf16_f32 v37, v37, v37\nv_and_b32 v37, 0xffff0000, v37\nv_sqrt_f32 v37, v37\ns_nop 0")
    z_("v_cvt_pk_bf16_f32 v37, v37, v37\nv_and_b32 v37, 0xffff0000, v37\nv_rcp_f32 v37, v37\ns_nop 0")
    z_("v_cndmask_b32 v36, v36, v37, s[68:69]\nds_write_b32 v249, v36")
    e(f"s_lshl_b32 s30, s4, 2\ns_add_u32 s30, s30, {CSB}\nv_lshl_add_u32 v248, v0, 4, s30")
    tau_of_lane(e, 249, 2)
    e(f"s_lshl_b32 s30, s4, 7\ns_add_u32 s30, s30, {STAT}\nv_lshl_add_u32 v249, v249, 2, s30\nv_lshl_add_u32 v249, v21, 9, v249\nv_lshl_add_u32 v3, v21, 6, s30")
    e(f"v_and_b32 v250, 31, v0\nv_lshlrev_b32 v250, 4, v250\nv_add_u32 v250, {CSB}, v250")
    if dwarm:
        e("s_cmp_eq_u32 s4, 0\ns_cselect_b32 s24, s52, s54\ns_cselect_b32 s25, s53, s55\ns_cmp_eq_u32 s4, 2\ns_cselect_b32 s24, s56, s24\ns_cselect_b32 s25, s57, s25")
        e(f"s_mov_b32 s26, {448*3584}\ns_movk_i32 s28, 7168\ns_cmp_eq_u32 s4, 3\ns_cselect_b32 s24, s42, s24\ns_cselect_b32 s25, s43, s25\ns_cselect_b32 s26, {448*896}, s26\ns_cselect_b32 s28, 1792, s28\ns_cselect_b32 s29, 13, 55")
        e("s_and_b32 s25, s25, 0xffff\ns_mov_b32 s27, 0x20000\ns_mul_i32 s28, s28, s2\nv_min_u32 v251, s29, v0\nv_lshlrev_b32 v251, 7, v251")
    st(e, "b0")
    e("s_barrier")
    for x in sreads(0): e(x)
    e.vm_wait({"par"})
    if dwarm:
        e("buffer_load_dword v252, v251, s[24:27], s28 offen")
        e("s_cmp_lg_u32 s4, 3\ns_cbranch_scc1 K_nw")
        e("buffer_load_dword v253, v251, s[16:19], s28 offen")
        e.label("K_nw")
    for sg in range(7):
        fs = SF[sg & 1]
        if sg == 1:
            e("v_readfirstlane_b32 s84, v247\ns_add_u32 s84, s84, 1\ns_max_u32 s84, s84, 1")
            e(f"s_getreg_b32 s74, hwreg(HW_REG_XCC_ID, 0, 4)\ns_lshl_b32 s78, s5, 1\ns_add_u32 s78, s78, s85\ns_lshl_b32 s78, s78, 10\ns_add_u32 s78, s78, {WS_FH}\ns_add_u32 s75, s78, {WS_XID - WS_FH}")
            e("s_cmp_lg_u32 s4, 0\ns_cbranch_scc1 K_noxid")
            e("s_lshl_b32 s31, s91, 7\nv_mov_b32 v251, s31\nv_mov_b32 v252, s74\nv_mov_b32 v253, s84\ns_mov_b64 exec, 1")
            e("buffer_store_dwordx2 v[252:253], v251, s[20:23], s75 offen sc1\ns_mov_b64 exec, -1")
            e.label("K_noxid")
        e.lg0()
        if sg == 6:
            for j in range(4): e(f"ds_read_b64_tr_b16 v[{208+2*j}:{209+2*j}], v{254 + (j & 1)} offset:{j*1024}")
            dots(fs)
            e.lg0()
        st(e, f"b{sg+1}")
        e("s_barrier")
        rd = sreads(sg + 1) if sg < 6 else []
        for j in range(4):
            for acc, o in ((UR, 4), (UI, 8)):
                e(mfma(acc, fs+12*j, fs+12*j+o, sg == 0 and j == 0))
                for x in rd[:2]: e(x)
                nk = kint if rd else 4
                rd = rd[2:]
                for _ in range(nk):
                    if sg == 6:
                        if Z: e(Z.pop(0))
                    elif sg >= 1 and K: e(K.pop(0))
        if sg < 6: dots(fs)
    for x in Z: e(x)
    gen = [0]
    def ssync(extra=None):
        gen[0] += 1
        e("s_mov_b64 exec, 1\nds_add_u32 v18, v19 offset:80\ns_mov_b64 exec, -1")
        def body():
            e("ds_read_b32 v1, v18 offset:80")
            if extra: extra()
            e("s_waitcnt lgkmcnt(0)\nv_readfirstlane_b32 s82, v1")
        spin(e, body, f"s_cmp_ge_u32 s82, {4*gen[0]}", sleep=ssl)
        e.lg = []
    def wait_prog(n):
        def body():
            e("ds_read_b128 v[4:7], v18\ns_waitcnt lgkmcnt(0)\nv_min_u32 v4, v4, v5\nv_min3_u32 v4, v4, v6, v7\ns_nop 0\nv_readfirstlane_b32 s82, v4")
        spin(e, body, f"s_cmp_ge_u32 s82, {n}", sleep=1)
        e.lg = []
    M, R = 72, 88
    e(f"s_setprio {sprio2}")
    if sidle:
        def body():
            e("s_sleep 8\nds_read_b128 v[4:7], v18\ns_waitcnt lgkmcnt(0)\nv_min_u32 v4, v4, v5\nv_min3_u32 v4, v4, v6, v7\ns_nop 0\nv_readfirstlane_b32 s82, v4")
        spin(e, body, "s_cmp_ge_u32 s82, 7", sleep=1)
    TMP = 192
    for q in range(4): e(f"ds_read_b128 v[{M+4*q}:{M+4*q+3}], v3 offset:{16*q}")
    for q in range(4): e(f"ds_read_b128 v[{R+4*q}:{R+4*q+3}], v3 offset:{512+16*q}")
    e(f"s_lshl_b32 s30, s4, 9\ns_add_u32 s30, s30, {SUB}\nv_lshl_add_u32 v2, v0, 3, s30\nv_add_u32 v3, {7*256}, v2")
    ssync(lambda: e(f"ds_read_b128 v[{TMP}:{TMP+3}], v250\nds_read_b128 v[{TMP+4}:{TMP+7}], v250 offset:512"))
    st(e, "ss1")
    t = TMP
    e(f"v_add_f32 v{t}, v{t}, v{t+1}\nv_add_f32 v{t+2}, v{t+2}, v{t+3}\nv_add_f32 v{t+4}, v{t+4}, v{t+5}\nv_add_f32 v{t+6}, v{t+6}, v{t+7}\nv_add_f32 v34, -v{t}, -v{t+2}\nv_add_f32 v35, -v{t+4}, -v{t+6}")
    for j in range(16): e(f"v_fmac_f32 v{UR+j}, v34, v{M+j}\nv_fmac_f32 v{UI+j}, v35, v{M+j}")
    for j in range(16): e(f"v_mul_f32 v{UR+j}, v{UR+j}, v{R+j}\nv_mul_f32 v{UI+j}, v{UI+j}, v{R+j}")
    st(e, "fold")
    for j in range(1, 16):
        e(f"v_fmac_f32 v{UR+j}, v22, v{UR+j-1}\nv_fmac_f32 v{UI+j}, v22, v{UI+j-1}\nv_fmac_f32 v{UR+j}, v33, v{UI+j-1}\nv_fmac_f32 v{UI+j}, v23, v{UR+j-1}")
    st(e, "scan")
    e(f"ds_write2_b32 v3, v{UR+15}, v{UI+15} offset1:1")
    def step(dr, di, hr, hi, ur, ui, lr, li):
        e(f"v_fma_f32 v{dr}, v{lr}, v{hr}, v{ur}\nv_fma_f32 v{di}, v{lr}, v{hi}, v{ui}")
        e(f"v_fma_f32 v{dr}, -v{li}, v{hi}, v{dr}\nv_fma_f32 v{di}, v{li}, v{hr}, v{di}")
    def rdsub():
        for d in range(7): e(f"ds_read_b64 v[{TMP+2*d}:{TMP+1+2*d}], v2 offset:{d*256}")
    ssync(rdsub)
    st(e, "ss")
    for d in range(1, 7):
        dd = (38, 39) if d == 6 else (TMP + 2*d, TMP + 1 + 2*d)
        step(dd[0], dd[1], TMP - 2 + 2*d, TMP - 1 + 2*d, TMP + 2*d, TMP + 1 + 2*d, 24, 25)
    e("s_cmp_lg_u32 s4, 3\ns_cbranch_scc1 K_nopub")
    step(TMP, TMP + 2, 38, 39, UR + 15, UI + 15, 24, 25)
    e(f"v_mov_b32 v{TMP+1}, s84\nv_mov_b32 v{TMP+3}, s84")
    e(f"s_lshl_b32 s30, s6, 4\ns_add_u32 s30, s30, s5\ns_lshl_b32 s30, s30, 9\ns_add_u32 s30, s30, {WS_AGG - 512}")
    e("v_lshlrev_b32 v1, 4, v0\ns_mov_b32 exec_lo, 0")
    e(f"buffer_store_dwordx4 v[{TMP}:{TMP+3}], v1, s[20:23], s30 offen sc1")
    e("s_mov_b32 exec_lo, -1")
    e.label("K_nopub")
    st(e, "pub")
    for x in K: e(x)
    GR, GI = 72, 88
    for j in range(16):
        e(f"v_mul_f32 v{GR+j}, v30, v{UR+j}\nv_mul_f32 v{GI+j}, v32, v{UI+j}\nv_fmac_f32 v{GR+j}, v31, v{UI+j}\nv_fmac_f32 v{GI+j}, v31, v{UR+j}")
    AG = 40
    st(e, "g")
    for i in range(8): e(f"v_mov_b32 v{AG+4*i}, 0\nv_mov_b32 v{AG+4*i+1}, s84\nv_mov_b32 v{AG+4*i+2}, 0\nv_mov_b32 v{AG+4*i+3}, s84")
    e(f"s_lshl_b32 s90, s6, 11\ns_lshl_b32 s30, s4, 8\ns_add_u32 s90, s90, s30\ns_add_u32 s90, s90, {WS_CS}")
    e("v_and_b32 v34, 31, v0\nv_lshlrev_b32 v34, 3, v34\nv_lshl_add_u32 v34, v21, 10, v34")
    def cs_loads():
        e("buffer_load_dwordx2 v[8:9], v34, s[20:23], s90 offen sc1\nbuffer_load_dwordx2 v[140:141], v35, s[20:23], s75 offen sc1")
    cs_chk = "v_cmp_eq_u32 vcc, s84, v9\nv_cmp_eq_u32 s[28:29], s84, v141\ns_nop 1\ns_and_b64 vcc, vcc, s[28:29]"
    e("v_min_u32 v35, 6, v0\nv_lshlrev_b32 v35, 7, v35")
    cs_loads()
    e(f"s_lshl_b32 s30, s91, 7\ns_add_u32 s30, s30, s78\nv_mul_u32_u24 v1, {WS_FO - WS_FH}, v21")
    e("s_mov_b32 exec_lo, 1\ns_mov_b32 exec_hi, 1\nbuffer_load_dword v251, v1, s[20:23], s30 offen sc1\ns_mov_b64 exec, -1")
    e(f"s_lshl_b32 s92, s6, 4\ns_add_u32 s92, s92, s5\ns_lshl_b32 s92, s92, 9\ns_add_u32 s92, s92, {WS_AGG - 8192}\ns_add_u32 s93, s92, 4096\nv_lshlrev_b32 v3, 4, v0")
    def agg_loads():
        for i in range(8):
            l = e.newlabel("AL")
            e(f"s_cmp_lt_u32 s5, {15 - 2*i}\ns_cbranch_scc1 {l}")
            e(f"s_cmp_ge_u32 s5, {16 - 2*i}\ns_cselect_b32 exec_lo, -1, 0")
            e(f"buffer_load_dwordx4 v[{AG+4*i}:{AG+4*i+3}], v3, s[20:23], s{92 + (i >> 2)} offen offset:{1024*(i & 3)} sc1")
            e.label(l)
        e("s_mov_b32 exec_lo, -1")
    agg_loads()
    st(e, "aggi")
    SEL = 144
    tau_of_lane(e, 1, 2)
    e("v_lshlrev_b32 v2, 4, v21\nv_sub_u32 v1, v1, v2\nv_and_b32 v2, 1, v1\nv_lshlrev_b32 v2, 4, v2\nv_mov_b32 v4, 0x3f80\nv_lshlrev_b32 v2, v2, v4\nv_ashrrev_i32 v1, 1, v1")
    for q in range(0, 8, 2):
        e(f"v_cmp_eq_u32 vcc, {q}, v1\nv_cmp_eq_u32 s[30:31], {q+1}, v1\ns_nop 0\nv_cndmask_b32 v{SEL+q}, 0, v2, vcc\nv_cndmask_b32 v{SEL+q+1}, 0, v2, s[30:31]")
    e(f"s_mul_i32 s76, s5, {2*A_W}\ns_lshl_b32 s30, s6, 13\ns_add_u32 s76, s76, s30\ns_lshl_b32 s30, s4, 10\ns_add_u32 s76, s76, s30\ns_add_u32 s77, s76, {A_W}")
    def rnd(b):
        for r in range(0, 16, 2): e(f"v_cvt_pk_bf16_f32 v{b+r}, v{b+r}, v{b+r+1}")
        for r in range(0, 16, 2): e(f"v_and_b32 v{b+r+1}, 0xffff0000, v{b+r}\nv_lshlrev_b32 v{b+r}, 16, v{b+r}")
    e.vm0()
    st(e, "aggl")
    e("s_mov_b32 s95, 0")
    e.label("K_horner")
    e(f"v_min3_u32 v1, s84, v{AG+1}, v{AG+3}\nv_max3_u32 v2, s84, v{AG+1}, v{AG+3}")
    for i in range(1, 8):
        b = AG + 4*i
        src = (AG, AG + 2) if i == 1 else ((4, 5) if i % 2 == 0 else (6, 7))
        dst = (4, 5) if i % 2 == 1 else (6, 7)
        step(dst[0], dst[1], src[0], src[1], b, b + 2, 136, 137)
        e(f"v_min3_u32 v1, v1, v{b+1}, v{b+3}\nv_max3_u32 v2, v2, v{b+1}, v{b+3}")
    e("v_cmp_eq_u32 vcc, v1, v2\nv_mov_b32 v6, v4\nv_mov_b32 v7, v5\ns_cmp_eq_u64 vcc, -1\ns_cbranch_scc1 K_hok")
    e(f"s_add_u32 s95, s95, 1\ns_cmp_ge_u32 s95, {SPIN_MAX}\ns_cbranch_scc1 K_hok\ns_sleep 4")
    agg_loads()
    e("s_waitcnt vmcnt(0)\ns_branch K_horner")
    e.label("K_hok")
    st(e, "look")
    e("v_permlane32_swap_b32 v4, v6\nv_permlane32_swap_b32 v5, v7\ns_nop 0")
    step(6, 7, 4, 5, 6, 7, 26, 27)
    step(38, 39, 6, 7, 38, 39, 28, 29)
    e("v_xor_b32 v36, 0x80000000, v38\nv_xor_b32 v37, 0x80000000, v39")
    for j in range(0, 16, 2):
        for x in (j, j + 1):
            e(f"v_fmac_f32 v{GR+x}, v38, v{QR+x}\nv_fmac_f32 v{GI+x}, v37, v{QR+x}\nv_fmac_f32 v{GR+x}, v37, v{QI+x}\nv_fmac_f32 v{GI+x}, v36, v{QI+x}")
        e(f"v_cvt_pk_bf16_f32 v{40+j//2}, v{GR+j}, v{GR+j+1}\nv_cvt_pk_bf16_f32 v{48+j//2}, v{GI+j}, v{GI+j+1}")
    st(e, "fin")
    e("s_setprio 3")
    e(mfma(160, 40, SEL, True)); e(mfma(176, 48, SEL, True)); e(mfma(160, 44, SEL + 4)); e(mfma(176, 52, SEL + 4))
    e(f"s_setprio {sprio2}")
    e("s_add_u32 s30, s76, 4096\ns_add_u32 s31, s77, 4096\ns_nop 7")
    for r in range(16): e(f"v_cvt_pk_bf16_f32 v{56+r}, v{160+2*r}, v{161+2*r}")
    st(e, "ht")
    stores([f"buffer_store_dwordx4 v[56:59], v3, s[20:23], s76 offen", "buffer_store_dwordx4 v[60:63], v3, s[20:23], s30 offen",
            f"buffer_store_dwordx4 v[64:67], v3, s[20:23], s77 offen", "buffer_store_dwordx4 v[68:71], v3, s[20:23], s31 offen"], "h")
    st(e, "hst")
    e(cs_chk + "\ns_cmp_eq_u64 vcc, -1\ns_cbranch_scc1 K_cs_ok")
    def body():
        cs_loads()
        e("s_waitcnt vmcnt(0)\n" + cs_chk)
    spin(e, body, "s_cmp_eq_u64 vcc, -1", sleep=2)
    e.label("K_cs_ok")
    e("v_cmp_eq_u32 vcc, s74, v140")
    e(f"s_lshl_b32 s30, s4, 8\ns_add_u32 s30, s30, {CSW}\nv_lshl_add_u32 v1, v0, 2, s30")
    e("s_cmp_eq_u64 vcc, -1\ns_cselect_b32 s97, 2, 1")
    if force: e(f"s_mov_b32 s97, {force}")
    e("v_mov_b32 v2, s97\nds_write_b32 v1, v8\nds_write_b32 v20, v2 offset:16")
    e(f"s_lshl_b32 s30, s87, 14\ns_xor_b32 s31, s30, 0x4000\ns_and_b32 s29, s4, 1\ns_lshl_b32 s29, s29, 12\ns_sub_u32 s29, {SC}, s29\ns_add_u32 s30, s30, s29\ns_add_u32 s31, s31, s29\ns_lshl_b32 s29, s4, 5")
    for j in range(4): e(f"v_xor_b32 v{10+j}, s29, v{10+j}\nv_add_u32 v{14+j}, s31, v{10+j}\nv_add_u32 v{10+j}, s30, v{10+j}")
    e("s_lshl_b32 s30, s91, 7\ns_lshl_b32 s31, s4, 2\ns_add_u32 s31, s31, s30\nv_mov_b32 v4, s31\nv_mov_b32 v5, s84")
    e.vm_wait({"h"})
    e("s_mov_b64 exec, 1")
    dual(["buffer_store_dword v5, v4, s[20:23], s78 offen"], "fl")
    e("s_mov_b64 exec, -1")
    st(e, "hflag")
    e(f"s_lshl_b32 s92, s5, 1\ns_add_u32 s92, s92, s87\ns_mul_i32 s92, s92, {A_W}\ns_lshl_b32 s30, s85, 13\ns_add_u32 s93, s92, s30\ns_add_u32 s93, s93, {3*CH}\ns_lshl_b32 s30, s85, 16\ns_add_u32 s92, s92, s30")
    e("v_and_b32 v8, 7, v0\nv_min_u32 v8, 6, v8\nv_lshlrev_b32 v8, 7, v8\nv_and_b32 v1, 8, v0\nv_add_u32 v8, v8, v1\ns_and_b32 s30, s4, 1\ns_lshl_b32 s31, s30, 2\nv_add_u32 v8, s31, v8")
    e("s_lshl_b32 s30, s30, 10\ns_lshl_b32 s31, s85, 11\ns_add_u32 s30, s30, s31\nv_add_u32 v23, s30, v3\nv_xor_b32 v22, 0x800, v23")
    e(f"s_mul_i32 s76, s5, 7\ns_add_u32 s76, s76, s91\ns_lshl_b32 s76, s76, 1\ns_add_u32 s76, s76, s85\ns_lshl_b32 s76, s76, 15\ns_add_u32 s76, s76, s89\ns_xor_b32 s77, s76, 0x8000\ns_add_u32 s76, s76, {WS_PX}\ns_add_u32 s77, s77, {WS_PX}")
    def c_dma(r, parts=(0, 1)):
        for ip in range(4):
            if (ip >> 1) not in parts: continue
            e(f"s_add_u32 m0, s89, {SC + (ip >> 1)*CH + (ip & 1)*2048}\ns_add_u32 s83, s{71+r}, {ip*16*896}")
            e.vmem("buffer_load_dwordx4 v138, s[16:19], s83 offen lds", ("c", r))
            if pace: e(f"s_sleep {pace}")
            e.vmem("buffer_load_dwordx4 v139, s[16:19], s83 offen offset:1024 lds", ("c", r))
            if pace: e(f"s_sleep {pace}")
    def creg(k): return 144 + 8 * k
    def c_pull(r):
        for k in range(8*r, min(14, 8*r + 8)):
            if k == 12:
                for j in (0, 1, 4, 5): e(f"v_xor_b32 v{10+j}, s73, v{10+j}")
            for b in range(2):
                g = creg(k) + 4*b
                e(f"ds_read_b128 v[{g}:{g+3}], v{10 + 4*b + (k & 3)} offset:{((k >> 2) & 1)*4096}")
        e.lg0()
    wait_prog(4)
    c_dma(0)
    XR, MR, RR = 64, 80, 96
    e(f"s_lshl_b32 s29, s85, 6\ns_and_b32 s31, s4, 1\ns_lshl_b32 s31, s31, 5\ns_add_u32 s29, s29, s31\ns_lshl_b32 s29, s29, 2\ns_add_u32 s29, s29, {STAT}\nv_lshl_add_u32 v4, v21, 6, s29")
    for q in range(4):
        e(f"ds_read_b128 v[{MR+4*q}:{MR+4*q+3}], v4 offset:{16*q}\nds_read_b128 v[{RR+4*q}:{RR+4*q+3}], v4 offset:{512+16*q}")
    for r in range(8): e(f"v_mov_b32 v{56+r}, v{208+r}\nv_lshlrev_b32 v{XR+2*r}, 16, v{208+r}\nv_and_b32 v{XR+2*r+1}, 0xffff0000, v{208+r}")
    e.lg0()
    for r in range(16): e(f"v_sub_f32 v{MR+r}, v{XR+r}, v{MR+r}")
    rnd(MR)
    for r in range(16): e(f"v_mul_f32 v{MR+r}, v{MR+r}, v{RR+r}")
    e.vm_wait({("c", 0)})
    ssync()
    c_pull(0)
    ssync()
    st(e, "c0")
    c_dma(1)
    rnd(MR)
    for r in range(16): e(f"v_mul_f32 v{MR+r}, v{MR+r}, v142")
    for r in range(8): e(f"v_cvt_pk_bf16_f32 v{128+r}, v{MR+2*r}, v{MR+2*r+1}")
    e("s_mov_b64 exec, 0xffff")
    def body():
        e("buffer_load_dword v9, v8, s[20:23], s78 offen sc1\ns_waitcnt vmcnt(0)\nv_cmp_eq_u32 vcc, s84, v9\ns_nop 1")
    spin(e, body, "s_cmp_eq_u64 vcc, exec", sleep=4)
    e("s_mov_b64 exec, -1")
    e.vm = []
    st(e, "hseen")
    NP = 8
    ypre = min(ypre, NP - 1)
    YA = [64, 96]
    def yreg(t): return 24 + 4*(t % NP)
    def yissue(t):
        k = t >> 1
        if (t & 1) == 0 and k > 0: e("s_mov_b32 s92, s93" if k == 12 else "s_add_u32 s92, s92, 4096")
        e.vmem(f"buffer_load_dwordx4 v[{yreg(t)}:{yreg(t)+3}], v{22 + (t & 1)}, s[20:23], s92 offen sc1", ("A", t))
    for t in range(ypre): yissue(t)
    ssync()
    c_pull(1)
    st(e, "c1")
    lds_wait(20, 32, "s_cmp_lg_u32 s82, 0", 1)
    st(e, "epid")
    e("s_setprio 3")
    for t in range(ypre, NP - 1): yissue(t)
    for t in range(28):
        k = t >> 1
        e.vm_wait({("A", t)})
        for b in range(2):
            e(mfma(YA[t & 1] + 16*b, yreg(t), creg(k) + 4*b, k == 0))
            if b == 0 and t + NP - 1 < 28: yissue(t + NP - 1)
    st(e, "yloop")
    e(f"s_add_u32 s31, s89, {SC}\nv_add_u32 v10, s31, v3\nv_xor_b32 v11, 0x2000, v10")
    ssync()
    for ps in range(2):
        for g in range(4): e(f"ds_write_b128 v10, v[{YA[ps]+16+4*g}:{YA[ps]+19+4*g}] offset:{ps*CH + g*1024}")
    ssync()
    for ps in range(2):
        for g in range(4): e(f"ds_read_b128 v[{YA[ps]+16+4*g}:{YA[ps]+19+4*g}], v11 offset:{ps*CH + g*1024}")
    e("s_waitcnt lgkmcnt(4)")
    Y = YA[0]
    for r in range(16): e(f"v_add_f32 v{Y+r}, v{Y+r}, v{Y+16+r}")
    for r in range(0, 16, 2): e(f"v_cvt_pk_bf16_f32 v{24+r}, v{Y+r}, v{Y+r+1}\nv_mov_b32 v{25+r}, s84")
    e("s_waitcnt lgkmcnt(0)\ns_mov_b64 exec, 1\nds_add_u32 v18, v19 offset:84\ns_mov_b64 exec, -1")
    e("s_setprio 0")
    Y = YA[1]
    def ysend(g): stores([f"buffer_store_dwordx4 v[{24+4*g}:{27+4*g}], v3, s[20:23], s77 offen offset:{g*1024}"], "px")
    ysend(0)
    for r in range(16): e(f"v_add_f32 v{Y+r}, v{Y+r}, v{Y+16+r}")
    for r in range(8): e(f"v_lshlrev_b32 v{Y+16+2*r}, 16, v{128+r}\nv_and_b32 v{Y+17+2*r}, 0xffff0000, v{128+r}")
    ysend(1)
    for r in range(16): e(f"v_add_f32 v{Y+r}, v{Y+r}, v{Y+16+r}")
    lds_wait(18, 84, "s_cmp_ge_u32 s82, 4", 1, sleep=1)
    ysend(2)
    for g in range(4): e(f"ds_write_b128 v10, v[{Y+4*g}:{Y+3+4*g}] offset:{g*1024}")
    e(f"v_add_u32 v11, {6*CH + 2048 - SC}, v10")
    for g in range(2): e(f"ds_write_b128 v11, v[{56+4*g}:{59+4*g}] offset:{g*1024}")
    e.lg0()
    ysend(3)
    st(e, "ydone")
    e.lg0()
    e("s_barrier")
    st.dump(e); info["S"] = st.names
    e("s_endpgm")

    e.vm = []; e.lg = []
    e.label("K_SPARE")
    st = Stamper(stamps, 143)
    e("s_getpc_b64 s[28:29]")
    e.label("K_PC")
    e(f"s_sub_u32 s28, s28, K_PC-{name}\ns_subb_u32 s29, s29, 0")
    e(f"v_lshlrev_b32 v7, 7, v2\nv_min_u32 v5, ALL_END-{name}-4, v7")
    e("s_cmp_lt_u32 s2, 248\ns_cbranch_scc1 K_sp0")
    e("global_load_dword v83, v5, s[28:29]")
    e.label("K_sp0")
    e("s_sub_u32 s4, s2, 224\ns_lshr_b32 s5, s4, 1\ns_and_b32 s6, s4, 1")
    e("v_lshrrev_b32 v3, 4, v2\nv_and_b32 v4, 15, v2\nv_mul_u32_u24 v5, 0xe00, v3\nv_lshl_add_u32 v5, v4, 4, v5")
    e(f"v_mov_b32 v6, 0\ns_mov_b32 s82, {WS_EP}\ns_lshl_b32 s28, s5, 8")
    e("s_cmp_eq_u32 s6, 0")
    e("s_waitcnt lgkmcnt(0)")
    e("s_cselect_b32 s16, s52, s54\ns_cselect_b32 s17, s53, s55")
    e(f"s_and_b32 s17, s17, 0xffff\ns_mov_b32 s18, {448*3584}\ns_mov_b32 s19, 0x20000")
    srd(e, 20, 62, WS_END)
    srd(e, 8, 56, 1792 * 896)
    srd(e, 64, 42, 448 * 896)
    srd(e, 68, 44, 448 * 896)
    e("s_cmp_ge_u32 s4, 28\ns_cbranch_scc1 K_sp4")
    e.vmem("buffer_load_dword v6, v6, s[20:23], s82 offen sc1", "ep")
    for i in range(14):
        e.vmem(f"buffer_load_dwordx4 v[{16+4*i}:{19+4*i}], v5, s[16:19], s28 offen", ("cs", i))
        if i < 13: e(f"s_add_u32 s28, s28, {32*3584}")
    if warm:
        e("s_mul_i32 s28, s4, 57344\ns_mul_i32 s29, s4, 14336")
        e.vmem("buffer_load_dword v80, v7, s[8:11], s28 offen", "t")
        e("v_and_b32 v4, 0x3fff, v7\ns_cmp_lt_u32 s3, 2\ns_cselect_b32 s64, s64, s68\ns_cselect_b32 s65, s65, s69\ns_cmp_lt_u32 s3, 4\ns_cselect_b32 s66, s66, 0")
        e.vmem("buffer_load_dword v81, v4, s[64:67], s29 offen", "t")
    for q in range(8): e(f"v_mov_b32 v{8+q}, 0")
    for i in range(14):
        e.vm_wait({("cs", i)})
        for q in range(4):
            e(f"v_lshlrev_b32 v72, 16, v{16+4*i+q}\nv_and_b32 v73, 0xffff0000, v{16+4*i+q}\nv_pk_add_f32 v[{8+2*q}:{9+2*q}], v[{8+2*q}:{9+2*q}], v[72:73]")
    e("v_lshlrev_b32 v3, 5, v2")
    e("ds_write_b128 v3, v[8:11]\nds_write_b128 v3, v[12:15] offset:16\ns_waitcnt lgkmcnt(0)")
    st(e, "acc")
    e("s_barrier")
    e("s_cmp_lg_u32 s3, 7\ns_cbranch_scc1 K_sp2")
    e("v_lshlrev_b32 v3, 3, v0\nv_add_u32 v9, 1, v6\nv_max_u32 v9, 1, v9\nv_mov_b32 v11, v9")
    for h in range(2):
        for i in range(16): e(f"ds_read_b64 v[{16+2*i}:{17+2*i}], v3 offset:{(16*h+i)*512}")
        e("s_waitcnt lgkmcnt(0)")
        if h == 0: e("v_mov_b32 v12, 0\nv_mov_b32 v13, 0")
        for i in range(16): e(f"v_pk_add_f32 v[12:13], v[12:13], v[{16+2*i}:{17+2*i}]")
    e(f"v_mov_b32 v8, v12\nv_mov_b32 v10, v13\nv_lshlrev_b32 v3, 4, v0\ns_lshl_b32 s30, s4, 10\ns_add_u32 s30, s30, {WS_CS}")
    e("buffer_store_dwordx4 v[8:11], v3, s[20:23], s30 offen sc1")
    e.label("K_sp2")
    e("s_barrier")
    e.label("K_sp4")
    e.label("K_sp3")
    st.dump(e); info["sp"] = st.names
    e.label("K_END")
    e("s_endpgm")
    e.label("ALL_END")
    return khead(name) + e.text(), kd(name, 256, 256), info

if __name__ == "__main__":
    import sys, json
    NAME = "recurrent_scan__ssm_conv_s5__glu_gated_reglu__prompt_kernel"
    stamps = "stamps" in sys.argv
    kw = {}
    for a in sys.argv[2:]:
        if "=" in a:
            k, v = a.split("="); kw[k] = int(v) if v.lstrip("-").isdigit() else v
    b, d, info = gen_fused(NAME, stamps=stamps, **kw)
    hdr = open("recurrent_scan__ssm_conv_s5__glu_gated_reglu__prompt.s.ref").read().split("; Override")[0]
    txt = hdr + f"; @launch grid=(256,1,1) block=(512,1,1) lds={LDS_BYTES}\n"
    if stamps: txt += "; STAMPS " + json.dumps(info) + "\n"
    txt += '.amdgcn_target "amdgcn-amd-amdhsa--gfx950"\n' + b + d
    open(sys.argv[1], "w").write(txt)
```

```python
from asmlib import *
from layout7 import *
LDS_BYTES = 163840
RING = 114688
NR = 5
MISC = RING + NR * 8192
STAT = MISC
CSB = MISC + 1024
CSW = MISC + 2048
SUB = MISC + 3072
FLG = MISC + 7168
LOG2E = 0x3fb8aa3b
SPIN_MAX = 0x200000
UNIT = 114688
CH = 16384
import sys
TIMER = 's_memrealtime' if 'rt' in sys.argv else 's_memtime'
C0 = 2 * CH
SC = 4 * CH

def mfma(d, a, b, first=False):
    c = "0" if first else f"v[{d}:{d+15}]"
    return f"v_mfma_f32_32x32x16_bf16 v[{d}:{d+15}], v[{a}:{a+3}], v[{b}:{b+3}], {c}"

class Stamper:
    def __init__(self, on, vreg): self.on = on; self.n = 0; self.v = vreg; self.names = []
    def __call__(self, e, name=""):
        if not self.on: return
        e.lg0()
        e(f"v_writelane_b32 v{self.v}, s80, {self.n}\n{TIMER} s[80:81]")
        self.n += 1; self.names.append(name)
        assert self.n <= 60
    def dump(self, e):
        if not self.on: return
        e("s_waitcnt vmcnt(0)")
        self(e, "end"); self(e)
        e("s_memrealtime s[80:81]\ns_waitcnt lgkmcnt(0)")
        e(f"v_writelane_b32 v{self.v}, s96, 62\nv_writelane_b32 v{self.v}, s80, 63\ns_mov_b32 s80, {self.n}\nv_writelane_b32 v{self.v}, s80, 61")
        e(f"s_mov_b32 s22, {WS_END + (1<<20)}")
        e("s_lshl_b32 s82, s2, 3\ns_add_u32 s82, s82, s3\ns_lshl_b32 s82, s82, 8")
        e(f"s_add_u32 s82, s82, {WS_END}")
        e("v_lshlrev_b32 v1, 2, v0")
        e(f"buffer_store_dword v{self.v}, v1, s[20:23], s82 offen")

def spin(e, body, cond_ok, sleep=1):
    l = e.newlabel("SP")
    e("s_mov_b32 s95, 0")
    e.label(l)
    body()
    e(cond_ok)
    e(f"s_cbranch_scc1 {l}_ok")
    if sleep: e(f"s_sleep {sleep}")
    e(f"s_add_u32 s95, s95, 1\ns_cmp_lt_u32 s95, {SPIN_MAX}\ns_cbranch_scc1 {l}")
    e.label(l + "_ok")

def tau_of_lane(e, d, t):
    e(f"v_bfe_u32 v{d}, v0, 2, 1\nv_lshlrev_b32 v{d}, 4, v{d}\nv_bfe_u32 v{t}, v0, 3, 2\nv_lshl_add_u32 v{d}, v{t}, 2, v{d}\nv_and_b32 v{t}, 3, v0\nv_add_u32 v{d}, v{d}, v{t}")

def plan_slots():
    wslot = {n: ("r", ((n + 2) % NR) * 8192) for n in range(5)}
    issue = {}
    nxt = 5
    free = []
    for n in range(28):
        if n in (5, 9):
            c = (n >> 2) - 1
            free += [("c", c * CH), ("c", c * CH + 2048)]
        free.append(wslot[n])
        issue[n] = []
        while free and nxt < 28 and len(issue[n]) < 2:
            wslot[nxt] = free.pop(0); issue[n].append(nxt); nxt += 1
    last = max(n for n in issue if issue[n])
    used_after = {}
    inv = {}
    for n in range(28): inv[wslot[n]] = n
    order = sorted(inv.items(), key=lambda x: x[1])
    wd = [(sl, n + 1, 0) for sl, n in order]
    wd += [(("c", 6 * CH), 0, 7)] + [(("c", C0 + (i >> 1) * CH + (i & 1) * 2048), 0, 0) for i in range(4)]
    assert len(wd) == 14, len(wd)
    return wslot, issue, wd, last

def gen_fused(name, stamps=False, D0=3, pad=0, ra=1, kint=3, fine=1, sidle=0, sprio=3, sprio2=0, fprio=2, NA=16, pace=0, warm=1, ypre=9, ssl=1, ysl=3, t0=29, ywait=7, wsl=1, padwg=-1, tr=50, gap=0, pt=0, pt0=15, ptn=7, noc=0, nowd=0, dwarm=0, outfl='nt', force=0, bulk=0):
    e = Em2()
    info = {}
    wslot, wissue, wdslot, wlast = plan_slots()
    def stores(ins_list, tag):
        for x in ins_list: e.vmem(x + " sc1", tag)
    def dual(ins_list, tag, on=True):
        if not on: return stores(ins_list, tag)
        l = e.newlabel("DS")
        e(f"s_cmp_eq_u32 s97, 2\ns_cbranch_scc1 {l}_l")
        for x in ins_list: e(x + " sc1")
        e(f"s_branch {l}_e")
        e.label(l + "_l")
        for x in ins_list: e.vmem(x, tag)
        e.label(l + "_e")
    def wd_setup(va, sr):
        e(f"v_lshrrev_b32 v{va}, 3, v0\nv_mul_u32_u24 v{va}, 0x380, v{va}\nv_bfe_u32 v{va+1}, v0, 4, 1\nv_lshlrev_b32 v{va+1}, 2, v{va+1}")
        e(f"v_and_b32 v1, 7, v0\nv_xor_b32 v1, v1, v{va+1}\nv_lshl_add_u32 v{va}, v1, 4, v{va}\nv_add_u32 v{va+1}, {8*896-1024}, v{va}")
        srd(e, sr, 56, 1792 * 896)
        e("s_lshl_b32 s98, s99, 1")
        e(f"s_mul_i32 s88, s4, {32*896}\ns_lshl_b32 s82, s91, 7\ns_add_u32 s88, s88, s82\ns_mul_i32 s82, s85, {7*UNIT}\ns_add_u32 s88, s88, s82")
        e(f"s_mul_i32 s64, s98, {UNIT}\ns_add_u32 s64, s64, s88\ns_add_u32 s88, s88, {7*UNIT}")
        for u in range(1, 7):
            e(f"s_add_u32 s{64+u}, s{63+u}, {UNIT}\ns_cmp_ge_u32 s{64+u}, s88\ns_cselect_b32 s82, {7*UNIT}, 0\ns_sub_u32 s{64+u}, s{64+u}, s82")
    def wd_dma(k, va, sr):
        kind, off = wdslot[k][0]
        e(f"s_add_u32 m0, s{89 if kind == 'c' else 79}, {off}\ns_add_u32 s82, s{64+(k>>1)}, {(k&1)*16*896}")
        e.vmem(f"buffer_load_dwordx4 v{va}, s[{sr}:{sr+3}], s82 offen lds", ("wd", k))
        e.vmem(f"buffer_load_dwordx4 v{va+1}, s[{sr}:{sr+3}], s82 offen offset:1024 lds", ("wd", k))
    def wd_half(k, hf):
        kind, off = wdslot[k][0]
        e(f"s_add_u32 m0, s{89 if kind == 'c' else 79}, {off}\ns_add_u32 s82, s{64+(k>>1)}, {(k&1)*16*896}")
        e.vmem(f"buffer_load_dwordx4 v{2+hf}, s[12:15], s82 offen" + (" offset:1024" if hf else "") + " lds", ("wd", k))
    def lds_wait(addr, off, cond, tmp, sleep=1):
        def body(): e(f"ds_read_b32 v{tmp}, v{addr} offset:{off}\ns_waitcnt lgkmcnt(0)\nv_readfirstlane_b32 s82, v{tmp}")
        spin(e, body, cond, sleep=sleep)
        e.lg = []
    e("s_cmp_ge_u32 s2, 256")
    e("s_cbranch_scc1 K_END")
    if stamps: e(f"s_memrealtime s[96:97]\n{TIMER} s[80:81]")
    elif pad: e("s_memrealtime s[96:97]")
    e("s_load_dwordx16 s[32:47], s[0:1], 0")
    e("s_load_dwordx16 s[48:63], s[0:1], 64")
    e("v_lshrrev_b32 v1, 6, v0\nv_mov_b32 v2, v0\nv_and_b32 v0, 63, v0\nv_readfirstlane_b32 s3, v1")
    e("s_cmp_ge_u32 s2, 224")
    e("s_cbranch_scc1 K_SPARE")
    e("s_and_b32 s4, s3, 3\ns_and_b32 s8, s2, 7\ns_lshr_b32 s9, s2, 3")
    e("s_and_b32 s5, s8, 3\ns_lshl_b32 s5, s5, 2\ns_and_b32 s99, s9, 3\ns_add_u32 s5, s5, s99")
    e("s_lshr_b32 s85, s8, 2\ns_lshr_b32 s91, s9, 2\ns_mul_i32 s6, s85, 7\ns_add_u32 s6, s6, s91")
    e("v_and_b32 v20, 31, v0\nv_lshrrev_b32 v21, 5, v0\nv_bfe_u32 v22, v0, 1, 3\nv_xor_b32 v22, v22, v21\nv_lshlrev_b32 v20, 7, v20")
    e(f"s_lshl_b32 s89, s4, 12\ns_lshl_b32 s79, s4, 11\ns_add_u32 s79, s79, {RING}")
    e("s_cmp_ge_u32 s3, 4")
    e("s_cbranch_scc1 K_S")

    st = Stamper(stamps, 127)
    e(f"s_setprio {fprio}")
    e(f"s_mul_i32 s10, s99, {ra}\ns_add_u32 s7, s91, s10")
    e("s_cmp_ge_u32 s7, 7\ns_cselect_b32 s10, 7, 0\ns_sub_u32 s7, s7, s10")
    e("s_lshl_b32 s64, s7, 7")
    for c in range(1, 7):
        e(f"s_add_u32 s{64+c}, s{63+c}, 128\ns_cmp_ge_u32 s{64+c}, 896\ns_cselect_b32 s{64+c}, 0, s{64+c}")
    e("v_lshrrev_b32 v8, 3, v0\nv_and_b32 v9, 7, v0\nv_lshrrev_b32 v7, 4, v0\nv_xor_b32 v9, v9, v7\nv_lshlrev_b32 v9, 4, v9\nv_xor_b32 v7, 64, v9")
    e("v_and_b32 v6, 3, v8\nv_lshl_add_u32 v5, v21, 4, v6\nv_lshl_add_u32 v6, v21, 3, v6\nv_mul_u32_u24 v5, 0x380, v5\nv_mul_u32_u24 v6, 0x380, v6")
    e("v_add_u32 v1, v5, v9\nv_add_u32 v2, v5, v7\nv_add_u32 v2, 2560, v2\nv_add_u32 v3, 5120, v1\nv_add_u32 v4, 5120, v2")
    e(f"v_add_u32 v5, v6, v9\nv_add_u32 v6, v6, v7\nv_add_u32 v6, {4*896-1024}, v6")
    e("s_lshl_b32 s28, s5, 7\ns_lshl_b32 s29, s4, 5\ns_add_u32 s28, s28, s29\ns_mul_i32 s28, s28, 896")
    e("s_lshl_b32 s29, s6, 5\ns_and_b32 s30, s4, 1\ns_lshl_b32 s30, s30, 4\ns_add_u32 s29, s29, s30\ns_mul_i32 s29, s29, 896")
    e(f"s_mov_b32 s10, {2048*896}\ns_mov_b32 s11, 0x20000\ns_mov_b32 s14, {448*896}\ns_mov_b32 s15, 0x20000")
    e("s_waitcnt lgkmcnt(0)")
    st(e, "karg")
    e("s_cmp_lt_u32 s4, 2")
    e("s_cselect_b32 s12, s38, s40\ns_cselect_b32 s13, s39, s41\ns_mov_b32 s8, s32\ns_and_b32 s9, s33, 0xffff\ns_and_b32 s13, s13, 0xffff")
    def xb_burst(c):
        e(f"s_add_u32 m0, s89, {c*CH}\ns_add_u32 s83, s28, s{64+c}")
        for ii in range(4):
            e.vmem(f"buffer_load_dwordx4 v{1+ii}, s[8:11], s83 offen" + (f" offset:{ii*1024}" if ii else "") + " lds", ("x", c))
        e(f"s_add_u32 m0, s79, {(c % NR)*8192}\ns_add_u32 s83, s29, s{64+c}")
        e.vmem("buffer_load_dwordx4 v5, s[12:15], s83 offen lds", ("x", c))
        e.vmem("buffer_load_dwordx4 v6, s[12:15], s83 offen offset:1024 lds", ("x", c))
    xb_burst(0)
    srd(e, 20, 62, WS_END)
    e(f"v_mov_b32 v120, 0\ns_mov_b32 s82, {WS_EP}")
    e("s_mov_b64 exec, 1")
    e.vmem("buffer_load_dword v120, v120, s[20:23], s82 offen sc1", "ep")
    e("s_mov_b64 exec, -1")
    e(f"v_mov_b32 v124, 0\nv_mov_b32 v125, 0\ns_lshl_b32 s31, s4, 9\ns_add_u32 s31, s31, {SUB}\nv_lshl_add_u32 v8, v0, 3, s31")
    e.lds("ds_write_b64 v8, v[124:125]")
    e(f"v_lshlrev_b32 v8, 2, v0\nv_add_u32 v8, {FLG}, v8")
    e.lds("ds_write_b32 v8, v124")
    for jj in range(4):
        e(f"v_xor_b32 v{10+jj}, {2*jj}, v22\nv_lshl_add_u32 v{10+jj}, v{10+jj}, 4, v20\nv_add_u32 v{14+jj}, 0x10000, v{10+jj}")
    if D0 > 1: xb_burst(1)
    srd(e, 16, 52, 448 * 3584)
    srd(e, 24, 54, 448 * 3584)
    e("s_lshl_b32 s31, s6, 8\ns_lshl_b32 s82, s4, 6\ns_add_u32 s31, s31, s82")
    for c in range(7): e(f"s_mul_i32 s{72+c}, s{64+c}, 1792\ns_add_u32 s{72+c}, s{72+c}, s31")
    e("v_lshrrev_b32 v7, 2, v0\nv_mul_u32_u24 v7, 0xe00, v7\nv_and_b32 v8, 3, v0\nv_lshl_add_u32 v7, v8, 4, v7")
    e("v_bfe_u32 v8, v0, 2, 2\nv_lshl_add_u32 v8, v21, 3, v8\nv_lshlrev_b32 v9, 6, v8")
    e("v_bfe_u32 v8, v0, 4, 1\nv_lshl_add_u32 v9, v8, 5, v9\nv_and_b32 v8, 3, v0\nv_lshl_add_u32 v9, v8, 3, v9\nv_add_u32 v125, s89, v9\nv_add_u32 v9, s79, v9")
    e("v_lshlrev_b32 v18, 4, v0")
    e(f"s_lshl_b32 s31, s4, 2\ns_add_u32 s31, s31, {FLG}\nv_mov_b32 v19, s31")
    e(f"s_lshl_b32 s31, s4, 8\ns_add_u32 s31, s31, {CSW}\nv_lshl_add_u32 v122, v21, 4, s31")
    tau_of_lane(e, 123, 8)
    e(f"v_lshlrev_b32 v123, 2, v123\nv_add_u32 v123, {STAT}, v123\nv_mov_b32 v8, {FLG}")
    e(f"s_lshl_b32 s92, s5, 2\ns_add_u32 s92, s92, s4\ns_mul_i32 s92, s92, {A_W}\ns_add_u32 s92, s92, {WS_AO}\ns_lshl_b32 s31, s6, 13\ns_add_u32 s86, s92, s31\ns_add_u32 s87, s86, 4096")
    for c in range(2, D0): xb_burst(c)
    ptl = list(range(64)) if pt else []
    def pretouch(n):
        for _ in range(n):
            if ptl: e(f"s_load_dword s100, s[46:47], {ptl.pop(0) * 128}")
    if pt:
        e.lg0()
        e("s_add_u32 s46, s62, s86\ns_addc_u32 s47, s63, 0")
        pretouch(pt0)
    def w_issue(n, mt):
        c, jj = n >> 2, n & 3
        kind, off = wslot[n]
        e(f"s_add_u32 m0, s{89 if kind == 'c' else 79}, {off + mt*1024}\ns_add_u32 s83, s{72+c}, {16*jj*3584}")
        e.vmem(f"buffer_load_dwordx4 v7, s[{16+8*mt}:{19+8*mt}], s83 offen lds", ("w", n))
    FS = [24, 48]
    def reads(n):
        fs = FS[n & 1]; c, jj = n >> 2, n & 3
        xb = (10 + jj) if c < 4 else (14 + jj)
        xo = (c & 3) * CH
        kind, wo = wslot[n]
        wb = 125 if kind == "c" else 9
        X = lambda rt: (f"ds_read_b128 v[{fs+4*rt}:{fs+4*rt+3}], v{xb} offset:{xo + rt*4096}", ("X", n, rt))
        Wr = lambda mt, u2: (f"ds_read_b64_tr_b16 v[{fs+16+4*mt+2*u2}:{fs+17+4*mt+2*u2}], v{wb} offset:{wo + mt*1024 + u2*256}", ("W", n))
        return [Wr(0, 0), Wr(0, 1), X(0), Wr(1, 0), Wr(1, 1), X(1), X(2), X(3)]
    for sg in range(8):
        tags = {("x", sg)}
        if sg == 1: tags.add("ep")
        e.vm_wait(tags)
        if sg == 0 and not pt: e.lg0()
        if sg == 7:
            e.vm_wait({("w", 0)})
            for s, t in reads(0): e.lds(s, t)
        if not pt or sg == 7: st(e, f"b{sg}")
        e("s_barrier")
        if sg + D0 < 7: xb_burst(sg + D0)
        if 3 <= sg < 7:
            w_issue(sg - 3, 0); w_issue(sg - 3, 1)
        if sg == 1: e("v_readfirstlane_b32 s84, v120\ns_add_u32 s84, s84, 1\ns_max_u32 s84, s84, 1")
        if sg < 7: pretouch(ptn)
        if sg == 5: wd_setup(2, 12)
        if sg == 6:
            e(f"s_bitcmp1_b32 s4, 1\ns_cselect_b32 s8, s44, s42\ns_cselect_b32 s9, s45, s43\ns_and_b32 s9, s9, 0xffff\ns_mov_b32 s10, {448*896}")
            e(f"s_mul_i32 s29, s91, {64*896}\ns_and_b32 s30, s4, 1\ns_lshl_b32 s28, s85, 2\ns_add_u32 s94, s28, 2\ns_add_u32 s28, s28, s30\ns_cmp_eq_u32 s30, 0\ns_cselect_b32 s94, s94, 3")
            e("s_lshl_b32 s28, s28, 7\ns_add_u32 s28, s28, s29\ns_lshl_b32 s94, s94, 7\ns_add_u32 s94, s94, s29")
            e("v_lshrrev_b32 v4, 3, v0\nv_mul_u32_u24 v4, 0x380, v4\nv_and_b32 v5, 7, v0\nv_lshrrev_b32 v6, 4, v0\nv_xor_b32 v5, v5, v6\nv_lshlrev_b32 v5, 4, v5")
            e(f"v_xor_b32 v6, 64, v5\nv_add_u32 v5, v4, v5\nv_add_u32 v6, v4, v6\nv_add_u32 v6, {8*896-1024}, v6")
    assert not ptl
    w_issue(4, 0); w_issue(4, 1)
    CS = 72; T = 104
    cs_rd = [("ds_read_b32 v121, v19 offset:16", "cs")] + [(f"ds_read_b32 v{20+rt}, v123 offset:{rt*128}", "cs") for rt in range(4)]
    cs_rd += [(f"ds_read_b128 v[{CS+16*mt+4*q}:{CS+16*mt+4*q+3}], v122 offset:{mt*128 + q*32}", "cs") for mt in range(2) for q in range(4)]
    p2 = []
    def p_(s): p2.extend(s.split("\n"))
    p_("v_bfe_u32 v112, v0, 2, 2\nv_lshrrev_b32 v113, 5, v0\nv_lshl_add_u32 v113, v113, 2, v112\nv_lshlrev_b32 v113, 7, v113")
    p_("s_lshr_b32 s31, s4, 1\nv_lshrrev_b32 v112, 1, v112\nv_xor_b32 v112, s31, v112\nv_lshl_add_u32 v113, v112, 6, v113")
    p_("v_bfe_u32 v112, v0, 4, 1\nv_lshl_add_u32 v113, v112, 5, v113\nv_and_b32 v112, 3, v0\nv_lshl_add_u32 v113, v112, 3, v113\nv_xor_b32 v112, 64, v113")
    p_(f"s_lshl_b32 s30, s31, 13\ns_lshl_b32 s31, s31, 12\ns_add_u32 s31, s31, {RING}")
    p_("v_add_u32 v108, s30, v113\nv_add_u32 v109, s30, v112\nv_add_u32 v110, s31, v113\nv_add_u32 v111, s31, v112\nv_add_u32 v112, 0x10000, v108\nv_add_u32 v113, 0x10000, v109")
    p_(f"s_lshl_b32 s93, s5, 1\ns_add_u32 s93, s93, s85\ns_lshl_b32 s93, s93, 10\ns_add_u32 s93, s93, {WS_FO}")
    p_(f"s_and_b32 s31, s4, 1\ns_mul_i32 s31, s31, {A_W}\ns_sub_u32 s92, s92, s31")
    p_(f"s_mul_i32 s31, s85, {7*8192}\ns_add_u32 s92, s92, s31\ns_xor_b32 s31, s85, 1\ns_lshl_b32 s31, s31, 11\ns_add_u32 s92, s92, s31")
    p_(f"s_lshl_b32 s90, s98, 13\ns_add_u32 s90, s90, s92\ns_add_u32 s92, s92, {7*8192}\ns_add_u32 s71, s90, {A_W}")
    p_("s_lshl_b32 s29, s85, 6\ns_and_b32 s31, s4, 1\ns_lshl_b32 s31, s31, 5\ns_add_u32 s29, s29, s31\ns_lshl_b32 s30, s5, 7\ns_add_u32 s30, s30, s29")
    p_(f"v_lshlrev_b32 v117, 4, v21\nv_add_u32 v114, s30, v117\ns_lshl_b32 s29, s29, 2\ns_add_u32 s29, s29, {STAT}\nv_lshl_add_u32 v117, v117, 2, s29")
    p_("s_lshl_b32 s29, s91, 6\ns_lshr_b32 s31, s4, 1\ns_lshl_b32 s31, s31, 5\ns_add_u32 s29, s29, s31\nv_and_b32 v115, 31, v0\nv_add_u32 v115, s29, v115")
    p_("v_mul_u32_u24 v114, 0x380, v114\nv_lshlrev_b32 v115, 1, v115\nv_add_u32 v114, v114, v115\nv_lshlrev_b32 v116, 1, v114")
    for q in range(1, 8): p_(f"s_movk_i32 s{32+q}, {q*3584}")
    p_(f"s_mul_i32 s40, s5, 7\ns_add_u32 s40, s40, s91\ns_lshl_b32 s40, s40, 1\ns_add_u32 s40, s40, s85\ns_lshl_b32 s40, s40, 15\ns_add_u32 s40, s40, s89\ns_xor_b32 s41, s40, 0x8000\ns_add_u32 s40, s40, {WS_PX + 16384}\ns_add_u32 s41, s41, {WS_PX + 16384}")
    slow = []; slow2 = []; slow3 = []
    for n in range(28):
        fs = FS[n & 1]
        rd = reads(n + 1) if n < 27 else list(cs_rd)
        if n < 27: e.vm_wait({("w", n + 1)})
        dq = [("w", m, mt) for m in wissue[n] for mt in range(2)]
        for k in range(9):
            if wdslot[k][1] - 1 == n: dq += [("d", k, 0), ("d", k, 1)]
        if nowd: dq = [x for x in dq if x[0] != "d"]
        if 13 <= n <= 26 and not noc: dq.append(("c", n - 13, 0))
        if n == 27 and not noc: dq += [("c", 14, 0), ("c", 15, 0)]
        gaps = {0: (), 1: (4,), 2: (2, 5), 3: (1, 4, 7), 4: (1, 3, 5, 7)}[len(dq)]
        for i in range(8):
            rt, mt = i >> 1, i & 1
            if i == 0: e.lg_wait({("W", n), ("X", n, 0)})
            elif mt == 0: e.lg_wait({("X", n, rt)})
            e(mfma(128 + 64*mt + 16*rt, fs + 16 + 4*mt, fs + 4*rt, n == 0))
            k = 1 if n < 27 else 2
            for s, t in rd[:k]: e.lds(s, t)
            rd = rd[k:]
            if n in (5, 9, 13, 17, 21, 25) and i == 0:
                l = e.newlabel("PG")
                e(f"v_readfirstlane_b32 s82, v104\ns_cmp_lt_u32 s82, {n >> 2}\ns_cbranch_scc1 {l}")
                e.label(l + "_r")
                slow.append((l, n >> 2))
            if i in gaps and dq:
                kd_, a1, a2 = dq.pop(0)
                if kd_ == "w": w_issue(a1, a2)
                elif kd_ == "d": wd_half(a1, a2)
                else:
                    e(f"s_add_u32 m0, s89, {C0 + (a1 >> 2)*CH + (a1 & 2)*1024}\ns_add_u32 s83, s{28 if a1 < 8 else 94}, {((a1 & 7) >> 1)*16*896}")
                    e.vmem(f"buffer_load_dwordx4 v{5 + (a1 & 1)}, s[8:11], s83 offen" + (" offset:1024" if a1 & 1 else "") + " lds", ("c", a1 >> 3))
            if i == 6 and (n & 3) == 3:
                if n == 23: e.vm_wait({("c", 0)})
                e(f"v_mov_b32 v126, {(n >> 2) + 1}")
                e.lds("ds_write_b32 v19, v126")
            if n in (4, 8, 12, 16, 20, 24):
                if i == 2: e.lds("ds_read_b128 v[104:107], v8", "pg")
                if i == 6:
                    e.lg_wait({"pg"})
                    e("v_min_u32 v104, v104, v105\nv_min3_u32 v104, v104, v106, v107")
            if 1 <= n < 27 and i not in gaps and i != 0 and len(gaps) < 4:
                if p2: e(p2.pop(0))
        assert not rd and not dq
        if stamps and ((fine and (n & 3) == 3) or n == 27): st(e, f"k{n}")
    assert not p2
    e.lg0()
    e("v_readfirstlane_b32 s97, v121\ns_cmp_lg_u32 s97, 0\ns_cbranch_scc1 K_csok")
    def body():
        for s, t in cs_rd: e(s)
        e("s_waitcnt lgkmcnt(0)\nv_readfirstlane_b32 s97, v121")
    spin(e, body, "s_cmp_lg_u32 s97, 0")
    e.label("K_csok")
    st(e, "cs")
    for rt in range(4):
        G, U = 128 + 16*rt, 192 + 16*rt
        mp = 20 + (rt & 2)
        sel = ("op_sel:[0,1,0] op_sel_hi:[1,1,1]" if rt & 1 else "op_sel_hi:[1,0,1]") + " neg_lo:[1,0,0] neg_hi:[1,0,0]"
        for h in range(2):
            g = 2*rt + h
            tt = 24 + 4 * g
            rs = range(8*h, 8*h + 8, 2)
            if g == 7:
                e.lds("ds_read_b128 v[104:107], v8", "pg")
                e.lds("ds_read_b32 v121, v8 offset:88", "pg")
            for r in rs:
                e(f"v_pk_fma_f32 v[{G+r}:{G+r+1}], v[{CS+r}:{CS+r+1}], v[{mp}:{mp+1}], v[{G+r}:{G+r+1}] {sel}")
                e(f"v_pk_fma_f32 v[{U+r}:{U+r+1}], v[{CS+16+r}:{CS+17+r}], v[{mp}:{mp+1}], v[{U+r}:{U+r+1}] {sel}")
            for r in rs: e(f"v_max_f32 v{G+r}, 0, v{G+r}\nv_max_f32 v{G+r+1}, 0, v{G+r+1}")
            for r in rs: e(f"v_pk_mul_f32 v[{G+r}:{G+r+1}], v[{G+r}:{G+r+1}], v[{U+r}:{U+r+1}]")
            for r in rs: e(f"v_cvt_pk_bf16_f32 v{tt + ((r - 8*h) >> 1)}, v{G+r}, v{G+r+1}")
            dual([f"buffer_store_dwordx4 v[{tt}:{tt+3}], v18, s[20:23], s{86 + h} offen offset:{rt*1024}"], "hh", bulk & 1)
            if g == 7:
                e.vm_wait({("c", 1)})
                e.lds("ds_write_b32 v19, v126 offset:32")
                e.lg_wait({"pg"})
                l = e.newlabel("PG")
                e(f"v_min_u32 v104, v104, v105\nv_min3_u32 v104, v104, v106, v107\ns_nop 0\nv_readfirstlane_b32 s82, v104\ns_cmp_lt_u32 s82, 7\ns_cbranch_scc1 {l}")
                e.label(l + "_r")
                slow.append((l, 7))
    l = e.newlabel("CP")
    e(f"v_readfirstlane_b32 s82, v121\ns_cmp_lt_u32 s82, 4\ns_cbranch_scc1 {l}")
    e.label(l + "_r")
    slow2.append((l, 8, 88, "s_cmp_ge_u32 s82, 4"))
    st(e, "epi")
    e("s_setprio 0")
    XR, MR, RR = 56, 72, 88
    for q in range(4):
        e.lds(f"ds_read_b128 v[{RR+4*q}:{RR+4*q+3}], v117 offset:{512+16*q}")
    e("s_and_b32 s31, s4, 1\ns_lshl_b32 s31, s31, 10\nv_add_u32 v10, s31, v18\nv_add_u32 v11, 0x1000, v10")
    e("s_lshl_b32 s31, s91, 7\ns_lshl_b32 s30, s4, 2\ns_add_u32 s31, s31, s30\nv_mov_b32 v16, s31\nv_mov_b32 v17, s84")
    e("v_and_b32 v14, 7, v0\nv_min_u32 v14, 6, v14\nv_lshlrev_b32 v14, 7, v14\nv_bfe_u32 v15, v0, 3, 1\nv_lshl_add_u32 v14, v15, 2, v14\ns_and_b32 s30, s30, 8\nv_add_u32 v14, s30, v14")
    e(f"s_add_u32 s31, s89, {SC}\nv_add_u32 v4, s31, v18\nv_xor_b32 v5, 0x2000, v4\nv_xor_b32 v6, 8, v19\nv_xor_b32 v9, 4, v19\nv_add_u32 v7, {6*CH + 2048 - SC}, v4")
    srd(e, 16, 58, 2048 * 1792)
    e.lg0()
    for r in range(16): e(f"v_mul_f32 v{RR+r}, v{RR+r}, v{RR+r}")
    e.vm0()
    e("s_mov_b64 exec, 1")
    dual(["buffer_store_dword v17, v16, s[20:23], s93 offen"], "fl")
    e("s_mov_b64 exec, -1")
    st(e, "hhflag")
    for k in range(9, 14): wd_dma(k, 2, 12)
    e("s_mov_b64 exec, 0xffff")
    def body():
        e("buffer_load_dword v17, v14, s[20:23], s93 offen sc1\ns_waitcnt vmcnt(0)\nv_cmp_eq_u32 vcc, s84, v17\ns_nop 1")
    spin(e, body, "s_cmp_eq_u64 vcc, exec", sleep=2)
    e("s_mov_b64 exec, -1")
    e.vm = []
    e.lds("ds_write_b32 v19, v126 offset:112")
    st(e, "hhseen")
    NT = 56
    def areg(t): return 192 + 4*(t % NA)
    def a_issue(t):
        sub = t & 3
        if sub == 0 and t > 0:
            e(f"s_add_u32 s90, s90, 8192\ns_cmp_ge_u32 s90, s92\ns_cselect_b32 s82, {7*8192}, 0\ns_sub_u32 s90, s90, s82")
            if t == 28: e("s_xor_b32 s90, s90, 0x800\ns_xor_b32 s92, s92, 0x800")
            e(f"s_add_u32 s71, s90, {A_W}")
        r = areg(t)
        e.vmem(f"buffer_load_dwordx4 v[{r}:{r+3}], v{10 + (sub & 1)}, s[20:23], s{71 if sub >> 1 else 90} offen sc1", ("A", t))
    def breg(t): return 24 + 8*(t % 4)
    def b_list(t):
        u = (t % 28) >> 2; sub = t & 3
        kind, off = wdslot[2*u + (sub & 1)][0]
        if kind == "r": bs = (110, 111); off += (sub >> 1) * 2048
        else:
            off += (sub >> 1) * 4096
            bs = (108, 109)
            if off >= 4*CH: bs = (112, 113); off -= 65536
        r = breg(t)
        return [(f"ds_read_b64_tr_b16 v[{r+4*b+2*u2}:{r+4*b+2*u2+1}], v{bs[b]} offset:{off + u2*1024}", ("B", t)) for b in range(2) for u2 in range(2)]
    for t in range(NA - 1): a_issue(t)
    for t in range(3):
        for s, tg in b_list(t): e.lds(s, tg)
    FO, OW = 128, 160
    side = []
    def S_(f): side.append(f)
    def both_wait(t):
        nv = e.vm_need({("A", t)})
        idx = [i for i, x in enumerate(e.lg) if x == ("B", t)]
        parts = []
        if nv is not None:
            parts.append(f"vmcnt({nv})"); e.vm = e.vm[len(e.vm) - nv:] if nv else []
        if idx:
            nl = min(15, len(e.lg) - 1 - idx[-1]); parts.append(f"lgkmcnt({nl})"); e.lg = e.lg[len(e.lg) - nl:] if nl else []
        if parts: e("s_waitcnt " + " ".join(parts))
    RV = 224
    YV = FO
    def recv_one(g, dst, sb): e(f"buffer_load_dwordx4 v[{dst+4*g}:{dst+4*g+3}], v18, s[20:23], s{sb} offen offset:{g*1024} sc1")
    e("s_sub_u32 s42, s40, 16384")
    nop = lambda: None
    for t in range(NT):
        acc = FO if t < 28 else OW
        def mkchk(tag, pfx, cond_bad, addr, off, cond_ok):
            def chk():
                e.lg_wait({tag})
                l = e.newlabel(pfx)
                e(f"v_readfirstlane_b32 s82, v121\n{cond_bad}\ns_cbranch_scc1 {l}")
                e.label(l + "_r")
                slow2.append((l, addr, off, cond_ok))
            return chk
        if t == 10: S_(lambda: e.lds("ds_read_b32 v121, v9 offset:112", "wl"))
        if t == 13: S_(mkchk("wl", "WL", "s_cmp_eq_u32 s82, 0", 9, 112, "s_cmp_lg_u32 s82, 0"))
        if t == 24: S_(lambda: e.lds("ds_read_b32 v121, v8 offset:84", "yx"))
        if t == 27:
            def chk():
                e.lg_wait({"yx"})
                l = e.newlabel("YX")
                e(f"v_readfirstlane_b32 s82, v121\ns_cmp_lt_u32 s82, 4\ns_cbranch_scc1 {l}")
                e.label(l + "_r")
                slow2.append((l, 8, 84, "s_cmp_ge_u32 s82, 4"))
            S_(chk)
        if t == t0:
            S_(nop)
            for g in range(0, 4, 2):
                def wr(g=g):
                    for gg in (g, g + 1): e.lds(f"ds_write_b128 v4, v[{FO+16+4*gg}:{FO+19+4*gg}] offset:{CH + gg*1024}")
                    if g == 2: e.lds("ds_write_b32 v19, v126 offset:48")
                S_(wr)
        if t == t0 + 3:
            def rdx():
                e.lds("ds_read_b32 v121, v6 offset:48", "ex")
                for g in range(4): e.lds(f"ds_read_b128 v[{FO+16+4*g}:{FO+19+4*g}], v5 offset:{CH + g*1024}", "ex")
            S_(rdx)
        if t == t0 + 5:
            def chk2():
                e.lg_wait({"ex"})
                l = e.newlabel("PX")
                e(f"v_readfirstlane_b32 s82, v121\ns_cmp_eq_u32 s82, 0\ns_cbranch_scc1 {l}")
                e.label(l + "_r")
                slow3.append(l)
                e.lds("ds_write_b32 v19, v126 offset:64")
            S_(chk2)
            for g in range(4):
                def grp(g=g):
                    for r in range(4*g, 4*g + 4): e(f"v_add_f32 v{FO+r}, v{FO+r}, v{FO+16+r}")
                def grp2(g=g):
                    for r in (4*g, 4*g + 2): e(f"v_cvt_pk_bf16_f32 v{FO+16+r}, v{FO+r}, v{FO+r+1}\nv_mov_b32 v{FO+17+r}, s84")
                def grp3(g=g):
                    stores([f"buffer_store_dwordx4 v[{FO+16+4*g}:{FO+19+4*g}], v18, s[20:23], s41 offen offset:{g*1024}"], "px")
                S_(grp); S_(lambda g=g, a=grp2, b=grp3: (a(), b()))
                for _ in range(gap): S_(nop)
        if t == 40:
            S_(lambda: e.lds("ds_read_b32 v121, v19 offset:128", "yd"))
            for g in range(0, 4, 2): S_(lambda g=g: [(recv_one(gg, YV, 42), e.vm.append("ry")) for gg in (g, g + 1)])
            S_(mkchk("yd", "YD", "s_cmp_eq_u32 s82, 0", 19, 128, "s_cmp_lg_u32 s82, 0"))
            S_(lambda: [e.lds(f"ds_read_b128 v[{MR+4*g}:{MR+3+4*g}], v4 offset:{g*1024}", "sx") for g in range(4)])
            S_(lambda: [e.lds(f"ds_read_b128 v[{104+4*g if g == 0 else 12}:{107+4*g if g == 0 else 15}], v7 offset:{g*1024}", "sx") for g in range(2)])
            S_(lambda: e.lds("ds_read_b32 v121, v6 offset:64", "sx"))
            S_(nop)
            for g in range(4):
                def ux(g=g):
                    if g == 0: e.lg_wait({"sx"})
                    for r in (2*g, 2*g + 1):
                        src = 104 + r if r < 4 else 12 + r - 4
                        e(f"v_lshlrev_b32 v{XR+2*r}, 16, v{src}\nv_and_b32 v{XR+2*r+1}, 0xffff0000, v{src}")
                S_(ux)
        if t == tr:
            for g in range(0, 4, 2): S_(lambda g=g: [(recv_one(gg, RV, 40), e.vm.append("rv")) for gg in (g, g + 1)])
        both_wait(t)
        bl = b_list(t + 3) if t + 3 < NT else []
        for b in range(2):
            e(mfma(acc + 16*b, areg(t), breg(t) + 4*b, t % 28 == 0))
            if b == 0 and t + NA - 1 < NT: a_issue(t + NA - 1)
            for s, tg in bl[2*b:2*b + 2]: e.lds(s, tg)
            if side: side.pop(0)()
        if t == 27: st(e, "ofor")
    assert not side
    def recv_check(dst):
        e(f"v_min3_u32 v1, s84, v{dst+1}, v{dst+3}\nv_max3_u32 v2, s84, v{dst+1}, v{dst+3}")
        for g in range(1, 4): e(f"v_min3_u32 v1, v1, v{dst+4*g+1}, v{dst+4*g+3}\nv_max3_u32 v2, v2, v{dst+4*g+1}, v{dst+4*g+3}")
        e("v_cmp_eq_u32 vcc, v1, v2\ns_nop 1")
    def recv_finish(dst, sb, tag):
        l = e.newlabel("RV")
        e.vm_wait({tag})
        recv_check(dst)
        e(f"s_cmp_eq_u64 vcc, -1\ns_cbranch_scc1 {l}")
        def body():
            for g in range(4): recv_one(g, dst, sb)
            e("s_waitcnt vmcnt(0)")
            recv_check(dst)
        spin(e, body, "s_cmp_eq_u64 vcc, -1", sleep=1)
        e.label(l)
        for r in range(0, 16, 2): e(f"v_and_b32 v{dst+r+1}, 0xffff0000, v{dst+r}\nv_lshlrev_b32 v{dst+r}, 16, v{dst+r}")
    e.lg0()
    st(e, "oloop")
    l = e.newlabel("RX")
    e(f"v_readfirstlane_b32 s82, v121\ns_cmp_eq_u32 s82, 0\ns_cbranch_scc1 {l}")
    e.label(l + "_r")
    slow2.append((l, 6, 64, "s_cmp_lg_u32 s82, 0"))
    e("s_mov_b32 s28, 0xbfb8aa3b\ns_mov_b32 s29, 0xbfb8aa3b\ns_nop 5")
    for g in range(4): e(f"ds_write_b128 v4, v[{OW+16+4*g}:{OW+19+4*g}] offset:{CH + g*1024}")
    pk = lambda op, d, a, b, x="": e(f"v_pk_{op}_f32 v[{d}:{d+1}], v[{a}:{a+1}], {b} {x}".rstrip())
    R2 = range(0, 16, 2)
    O, PB, EX = OW, OW + 16, 24
    recv_finish(YV, 42, "ry")
    for r in R2: pk("add", MR+r, MR+r, f"v[{YV+r}:{YV+r+1}]")
    e.lg0()
    e("s_barrier")
    st(e, "fbar")
    for g in range(4): e(f"ds_read_b128 v[{EX+4*g}:{EX+3+4*g}], v5 offset:{CH + g*1024}")
    recv_finish(RV, 40, "rv")
    st(e, "orecv")
    for r in R2: pk("add", O+r, O+r, f"v[{RV+r}:{RV+r+1}]")
    e("s_waitcnt lgkmcnt(0)")
    for r in R2: pk("add", O+r, O+r, f"v[{EX+r}:{EX+r+1}]")
    for r in R2: pk("mul", O+r, O+r, f"v[{RR+r}:{RR+r+1}]")
    for r in R2: pk("mul", PB+r, O+r, "s[28:29]")
    for r in range(16): e(f"v_exp_f32 v{PB+r}, v{PB+r}")
    for r in R2: pk("mul", O+r, O+r, f"v[{MR+r}:{MR+r+1}]")
    for r in R2: pk("add", PB+r, PB+r, "1.0", "op_sel_hi:[1,0]")
    for r in range(16): e(f"v_rcp_f32 v{PB+r}, v{PB+r}")
    for r in R2:
        e(f"v_pk_fma_f32 v[{PB+r}:{PB+r+1}], v[{PB+r}:{PB+r+1}], v[{O+r}:{O+r+1}], v[{XR+r}:{XR+r+1}]")
        for rr in (r, r + 1):
            so = "0" if rr < 2 else f"s{32 + (rr >> 1)}"
            off = (rr & 1) * 1792
            e(f"buffer_store_dword v{PB+rr}, v116, s[16:19], {so} offen" + (f" offset:{off}" if off else "") + " " + outfl)
    e("s_cmp_lg_u32 s5, 15\ns_cbranch_scc1 K_nobump\ns_or_b32 s28, s6, s4\ns_cmp_lg_u32 s28, 0\ns_cbranch_scc1 K_nobump")
    e(f"v_mov_b32 v8, 0\nv_mov_b32 v9, s84\ns_mov_b32 s28, {WS_EP}\ns_mov_b64 exec, 1")
    e("buffer_store_dword v9, v8, s[20:23], s28 offen sc1")
    e("s_mov_b64 exec, -1")
    e.label("K_nobump")
    if pad:
        if padwg >= 0: e(f"s_cmp_lg_u32 s2, {padwg}\ns_cbranch_scc1 K_END")
        e.label("K_pad")
        e(f"s_memrealtime s[28:29]\ns_waitcnt lgkmcnt(0)\ns_sub_u32 s28, s28, s96\ns_cmp_lt_u32 s28, {pad}\ns_cbranch_scc1 K_pad")
    st.dump(e); info["F"] = st.names
    e("s_endpgm")
    for l in slow3:
        e.label(l)
        lds_wait(6, 48, "s_cmp_lg_u32 s82, 0", 121, sleep=0)
        for g in range(4): e(f"ds_read_b128 v[{FO+16+4*g}:{FO+19+4*g}], v5 offset:{CH + g*1024}")
        e(f"s_waitcnt lgkmcnt(0)\ns_branch {l}_r")
    for l, addr, off, cond in slow2:
        e.label(l)
        lds_wait(addr, off, cond, 121, sleep=0)
        e(f"s_branch {l}_r")
    for l, need in slow:
        e.label(l)
        def body():
            e("ds_read_b128 v[104:107], v8\ns_waitcnt lgkmcnt(0)\nv_min_u32 v104, v104, v105\nv_min3_u32 v104, v104, v106, v107\ns_nop 0\nv_readfirstlane_b32 s82, v104")
        spin(e, body, f"s_cmp_ge_u32 s82, {need}", sleep=0)
        e(f"s_branch {l}_r")

    e.vm = []; e.lg = []
    e.label("K_S")
    st = Stamper(stamps, 143)
    e(f"s_setprio {sprio}")
    e("v_and_b32 v1, 19, v0\nv_bfe_u32 v2, v0, 2, 1\nv_lshl_add_u32 v1, v2, 3, v1\nv_bfe_u32 v2, v0, 3, 1\nv_lshl_add_u32 v1, v2, 2, v1\ns_lshl_b32 s30, s6, 5\nv_add_u32 v1, s30, v1\nv_lshlrev_b32 v1, 1, v1\nv_and_b32 v1, -4, v1")
    e("s_lshl_b32 s30, s91, 7\ns_and_b32 s31, s4, 2\ns_lshl_b32 s31, s31, 5\ns_add_u32 s30, s30, s31\nv_and_b32 v7, 30, v0\nv_lshl_add_u32 v7, v7, 1, s30\nv_mov_b32 v247, 0")
    e(f"v_add_u32 v23, s89, v20\nv_add_u32 v24, {RING}, v20")
    e("s_lshl_b32 s31, s4, 1\nv_xor_b32 v6, s31, v22")
    for jj in range(4):
        e(f"v_xor_b32 v5, {2*jj}, v6\nv_lshl_add_u32 v{10+jj}, v5, 4, v23\nv_add_u32 v{14+jj}, 0x10000, v{10+jj}\nv_lshl_add_u32 v{240+jj}, v5, 4, v24")
    e("s_mov_b32 s94, 0x3f803f80\nv_mov_b32 v34, 0\nv_mov_b32 v35, 0\nv_mov_b32 v36, 0\nv_mov_b32 v37, 0")
    e(f"s_mov_b32 s22, {WS_END}\ns_mov_b32 s23, 0x20000\ns_mov_b32 s82, {WS_EP}")
    e(f"v_mov_b32 v18, {FLG}\nv_mov_b32 v19, 1\ns_lshl_b32 s30, s4, 2\ns_add_u32 s30, s30, {FLG}\nv_mov_b32 v20, s30")
    e("s_waitcnt lgkmcnt(0)")
    e.vmem("global_load_dword v244, v1, s[34:35]", "par")
    e.vmem("global_load_dword v245, v1, s[36:37]", "par")
    e.vmem("global_load_dword v246, v1, s[46:47]", "par")
    e.vmem("global_load_dword v142, v7, s[48:49]", "par")
    e("s_mov_b32 s20, s62\ns_and_b32 s21, s63, 0xffff\ns_mov_b64 exec, 1")
    e.vmem("buffer_load_dword v247, v247, s[20:23], s82 offen sc1", "par")
    e("s_mov_b64 exec, -1")
    e(f"s_mul_i32 s30, s99, {ra}\ns_sub_u32 s30, 7, s30\ns_cmp_ge_u32 s30, 7\ns_cselect_b32 s30, 0, s30\ns_lshl_b32 s30, s30, 14\ns_lshl_b32 s31, s85, 13\ns_add_u32 s30, s30, s31\ns_and_b32 s31, s4, 1\ns_lshl_b32 s31, s31, 12\ns_add_u32 s30, s30, s31")
    e("v_bfe_u32 v4, v0, 2, 2\nv_lshl_add_u32 v4, v21, 2, v4\nv_lshrrev_b32 v5, 1, v4\nv_lshlrev_b32 v4, 7, v4\nv_bfe_u32 v7, v0, 4, 1\nv_lshlrev_b32 v7, 1, v7\nv_bfe_u32 v8, v0, 1, 1\nv_add_u32 v7, v7, v8")
    e("s_and_b32 s31, s4, 2\ns_lshl_b32 s31, s31, 1\nv_add_u32 v7, s31, v7\nv_xor_b32 v7, v7, v5\nv_lshl_add_u32 v4, v7, 4, v4\nv_and_b32 v7, 1, v0\nv_lshl_add_u32 v4, v7, 3, v4\nv_add_u32 v254, s30, v4\nv_xor_b32 v255, 64, v254")
    e("v_lshlrev_b32 v8, 4, v7\nv_xor_b32 v8, 16, v8")
    e("s_bitcmp1_b32 s4, 0\ns_cselect_b64 s[64:65], -1, 0")
    e("s_bitcmp1_b32 s4, 1\ns_cselect_b64 s[66:67], -1, 0\ns_mov_b32 s68, 0\ns_mov_b32 s69, -1")
    e("s_lshr_b32 s87, s4, 1\ns_lshl_b32 s73, s85, 6")
    K = []
    def k_(s): K.extend(s.split("\n"))
    for r in (244, 245, 246, 142): k_(f"v_lshlrev_b32 v{r}, v8, v{r}\nv_and_b32 v{r}, 0xffff0000, v{r}")
    k_(f"v_mul_f32 v246, {LOG2E}, v246\nv_exp_f32 v246, v246\ns_nop 0\nv_cvt_pk_bf16_f32 v246, v246, v246\nv_and_b32 v246, 0xffff0000, v246")
    k_(f"v_mul_f32 v5, v246, v244\nv_mul_f32 v6, v246, v245\nv_mul_f32 v5, {LOG2E}, v5\nv_exp_f32 v5, v5")
    k_("v_mul_f32 v6, 0.15915494, v6\nv_rndne_f32 v9, v6\nv_sub_f32 v6, v6, v9\nv_cos_f32 v22, v6\nv_sin_f32 v23, v6\ns_nop 0")
    k_("v_mul_f32 v22, v22, v5\nv_mul_f32 v23, v23, v5")
    k_("v_mul_f32 v5, v244, v244\nv_fma_f32 v5, v245, v245, v5\nv_rcp_f32 v5, v5\nv_add_f32 v6, -1.0, v22")
    k_("v_mul_f32 v30, v6, v244\nv_fma_f32 v30, v23, v245, v30\nv_mul_f32 v31, v23, v244\nv_fma_f32 v31, -v6, v245, v31")
    k_("v_add_f32 v5, v5, v5\nv_mul_f32 v30, v30, v5\nv_mul_f32 v31, v31, v5\nv_xor_b32 v33, 0x80000000, v23")
    def csq(d, s): k_(f"v_mul_f32 v9, v{s}, v{s+1}\nv_mul_f32 v{d}, v{s}, v{s}\nv_fma_f32 v{d}, -v{s+1}, v{s+1}, v{d}\nv_add_f32 v{d+1}, v9, v9")
    def pwmul(mask):
        k_(f"v_cndmask_b32 v5, 1.0, v26, {mask}\nv_cndmask_b32 v6, 0, v27, {mask}")
        k_("v_mul_f32 v9, v28, v6\nv_mul_f32 v28, v28, v5\nv_fma_f32 v28, -v29, v6, v28\nv_fma_f32 v29, v29, v5, v9")
    csq(24, 22); csq(24, 24); csq(24, 24); csq(24, 24)
    k_("v_cndmask_b32 v28, 1.0, v24, s[68:69]\nv_cndmask_b32 v29, 0, v25, s[68:69]")
    csq(26, 24); pwmul("s[64:65]"); csq(26, 26); pwmul("s[66:67]"); csq(26, 26); csq(136, 26)
    QR, QI = 104, 120
    for j in range(16):
        pr, pi = (30, 31) if j == 0 else (QR + j - 1, QI + j - 1)
        k_(f"v_mul_f32 v{QR+j}, v22, v{pr}\nv_mul_f32 v{QI+j}, v22, v{pi}\nv_fmac_f32 v{QR+j}, v33, v{pi}\nv_fmac_f32 v{QI+j}, v23, v{pr}")
    k_("v_xor_b32 v31, 0x80000000, v31\nv_xor_b32 v32, 0x80000000, v30")
    UR, UI = 40, 56
    SF = [144, 192]
    def sreads(sg):
        fs = SF[sg & 1]; out = []
        for j in range(4):
            xb = (10 + j) if sg < 4 else (14 + j)
            out += [f"ds_read_b128 v[{fs+12*j}:{fs+12*j+3}], v{xb} offset:{(sg & 3)*CH}",
                    f"ds_read_b128 v[{fs+12*j+4}:{fs+12*j+7}], v{240+j} offset:{(sg % NR)*8192}",
                    f"ds_read_b128 v[{fs+12*j+8}:{fs+12*j+11}], v{240+j} offset:{(sg % NR)*8192+4096}"]
        return out
    def dots(fs):
        for j in range(4):
            for q in range(4): e(f"v_dot2c_f32_bf16 v37, v{fs+12*j+q}, v{fs+12*j+q}\nv_dot2c_f32_bf16 v36, s94, v{fs+12*j+q}")
        for q in range(4): e(f"v_dot2c_f32_bf16 v34, s94, v{fs+4+q}\nv_dot2c_f32_bf16 v35, s94, v{fs+8+q}")
    Z = []
    def z_(s): Z.extend(s.split("\n"))
    z_("v_mov_b32 v1, v36\nv_mov_b32 v2, v37\ns_nop 1")
    z_("v_permlane32_swap_b32 v36, v1\nv_permlane32_swap_b32 v37, v2\nv_permlane32_swap_b32 v34, v35\ns_nop 1")
    z_("v_add_f32 v34, v34, v35\nv_add_f32 v36, v36, v1\nv_add_f32 v37, v37, v2\nds_write_b32 v248, v34")
    z_("v_mul_f32 v36, 0x3b124925, v36\nv_mul_f32 v37, 0x3b124925, v37")
    z_("v_fma_f32 v37, -v36, v36, v37\nv_max_f32 v37, 0, v37\nv_cvt_pk_bf16_f32 v1, v37, v36")
    z_("v_and_b32 v36, 0xffff0000, v1\nv_lshlrev_b32 v37, 16, v1\nv_add_f32 v37, 0x3727c5ac, v37")
    z_("v_cvt_pk_bf16_f32 v37, v37, v37\nv_and_b32 v37, 0xffff0000, v37\nv_sqrt_f32 v37, v37\ns_nop 0")
    z_("v_cvt_pk_bf16_f32 v37, v37, v37\nv_and_b32 v37, 0xffff0000, v37\nv_rcp_f32 v37, v37\ns_nop 0")
    z_("v_cndmask_b32 v36, v36, v37, s[68:69]\nds_write_b32 v249, v36")
    e(f"s_lshl_b32 s30, s4, 2\ns_add_u32 s30, s30, {CSB}\nv_lshl_add_u32 v248, v0, 4, s30")
    tau_of_lane(e, 249, 2)
    e(f"s_lshl_b32 s30, s4, 7\ns_add_u32 s30, s30, {STAT}\nv_lshl_add_u32 v249, v249, 2, s30\nv_lshl_add_u32 v249, v21, 9, v249\nv_lshl_add_u32 v3, v21, 6, s30")
    e(f"v_and_b32 v250, 31, v0\nv_lshlrev_b32 v250, 4, v250\nv_add_u32 v250, {CSB}, v250")
    st(e, "b0")
    e("s_barrier")
    for x in sreads(0): e(x)
    e.vm_wait({"par"})
    for sg in range(7):
        fs = SF[sg & 1]
        if sg == 1:
            e("v_readfirstlane_b32 s84, v247\ns_add_u32 s84, s84, 1\ns_max_u32 s84, s84, 1")
            e(f"s_getreg_b32 s74, hwreg(HW_REG_XCC_ID, 0, 4)\ns_lshl_b32 s78, s5, 1\ns_add_u32 s78, s78, s85\ns_lshl_b32 s78, s78, 10\ns_add_u32 s78, s78, {WS_FH}\ns_add_u32 s75, s78, {WS_XID - WS_FH}")
            e("s_cmp_lg_u32 s4, 0\ns_cbranch_scc1 K_noxid")
            e("s_lshl_b32 s31, s91, 7\nv_mov_b32 v251, s31\nv_mov_b32 v252, s74\nv_mov_b32 v253, s84\ns_mov_b64 exec, 1")
            e("buffer_store_dwordx2 v[252:253], v251, s[20:23], s75 offen sc1\ns_mov_b64 exec, -1")
            e.label("K_noxid")
        e.lg0()
        if sg == 6:
            for j in range(4): e(f"ds_read_b64_tr_b16 v[{208+2*j}:{209+2*j}], v{254 + (j & 1)} offset:{j*1024}")
            dots(fs)
            e.lg0()
        st(e, f"b{sg+1}")
        e("s_barrier")
        rd = sreads(sg + 1) if sg < 6 else []
        for j in range(4):
            for acc, o in ((UR, 4), (UI, 8)):
                e(mfma(acc, fs+12*j, fs+12*j+o, sg == 0 and j == 0))
                for x in rd[:2]: e(x)
                nk = kint if rd else 4
                rd = rd[2:]
                for _ in range(nk):
                    if sg == 6:
                        if Z: e(Z.pop(0))
                    elif sg >= 1 and K: e(K.pop(0))
        if sg < 6: dots(fs)
    for x in Z: e(x)
    gen = [0]
    def ssync(extra=None):
        gen[0] += 1
        e("s_mov_b64 exec, 1\nds_add_u32 v18, v19 offset:80\ns_mov_b64 exec, -1")
        def body():
            e("ds_read_b32 v1, v18 offset:80")
            if extra: extra()
            e("s_waitcnt lgkmcnt(0)\nv_readfirstlane_b32 s82, v1")
        spin(e, body, f"s_cmp_ge_u32 s82, {4*gen[0]}", sleep=ssl)
        e.lg = []
    def wait_prog(n):
        def body():
            e("ds_read_b128 v[4:7], v18\ns_waitcnt lgkmcnt(0)\nv_min_u32 v4, v4, v5\nv_min3_u32 v4, v4, v6, v7\ns_nop 0\nv_readfirstlane_b32 s82, v4")
        spin(e, body, f"s_cmp_ge_u32 s82, {n}", sleep=wsl)
        e.lg = []
    M, R = 72, 88
    e(f"s_setprio {sprio2}")
    if sidle:
        def body():
            e("s_sleep 8\nds_read_b128 v[4:7], v18\ns_waitcnt lgkmcnt(0)\nv_min_u32 v4, v4, v5\nv_min3_u32 v4, v4, v6, v7\ns_nop 0\nv_readfirstlane_b32 s82, v4")
        spin(e, body, "s_cmp_ge_u32 s82, 7", sleep=1)
    TMP = 192
    for q in range(4): e(f"ds_read_b128 v[{M+4*q}:{M+4*q+3}], v3 offset:{16*q}")
    for q in range(4): e(f"ds_read_b128 v[{R+4*q}:{R+4*q+3}], v3 offset:{512+16*q}")
    e(f"s_lshl_b32 s30, s4, 9\ns_add_u32 s30, s30, {SUB}\nv_lshl_add_u32 v2, v0, 3, s30\nv_add_u32 v3, {7*256}, v2")
    ssync(lambda: e(f"ds_read_b128 v[{TMP}:{TMP+3}], v250\nds_read_b128 v[{TMP+4}:{TMP+7}], v250 offset:512"))
    st(e, "ss1")
    t = TMP
    e(f"v_add_f32 v{t}, v{t}, v{t+1}\nv_add_f32 v{t+2}, v{t+2}, v{t+3}\nv_add_f32 v{t+4}, v{t+4}, v{t+5}\nv_add_f32 v{t+6}, v{t+6}, v{t+7}\nv_add_f32 v34, -v{t}, -v{t+2}\nv_add_f32 v35, -v{t+4}, -v{t+6}")
    for j in range(16): e(f"v_fmac_f32 v{UR+j}, v34, v{M+j}\nv_fmac_f32 v{UI+j}, v35, v{M+j}")
    for j in range(16): e(f"v_mul_f32 v{UR+j}, v{UR+j}, v{R+j}\nv_mul_f32 v{UI+j}, v{UI+j}, v{R+j}")
    st(e, "fold")
    for j in range(1, 16):
        e(f"v_fmac_f32 v{UR+j}, v22, v{UR+j-1}\nv_fmac_f32 v{UI+j}, v22, v{UI+j-1}\nv_fmac_f32 v{UR+j}, v33, v{UI+j-1}\nv_fmac_f32 v{UI+j}, v23, v{UR+j-1}")
    st(e, "scan")
    e(f"ds_write2_b32 v3, v{UR+15}, v{UI+15} offset1:1")
    def step(dr, di, hr, hi, ur, ui, lr, li):
        e(f"v_fma_f32 v{dr}, v{lr}, v{hr}, v{ur}\nv_fma_f32 v{di}, v{lr}, v{hi}, v{ui}")
        e(f"v_fma_f32 v{dr}, -v{li}, v{hi}, v{dr}\nv_fma_f32 v{di}, v{li}, v{hr}, v{di}")
    def rdsub():
        for d in range(7): e(f"ds_read_b64 v[{TMP+2*d}:{TMP+1+2*d}], v2 offset:{d*256}")
    ssync(rdsub)
    st(e, "ss")
    for d in range(1, 7):
        dd = (38, 39) if d == 6 else (TMP + 2*d, TMP + 1 + 2*d)
        step(dd[0], dd[1], TMP - 2 + 2*d, TMP - 1 + 2*d, TMP + 2*d, TMP + 1 + 2*d, 24, 25)
    e("s_cmp_lg_u32 s4, 3\ns_cbranch_scc1 K_nopub")
    step(TMP, TMP + 2, 38, 39, UR + 15, UI + 15, 24, 25)
    e(f"v_mov_b32 v{TMP+1}, s84\nv_mov_b32 v{TMP+3}, s84")
    e(f"s_lshl_b32 s30, s6, 4\ns_add_u32 s30, s30, s5\ns_lshl_b32 s30, s30, 9\ns_add_u32 s30, s30, {WS_AGG - 512}")
    e("v_lshlrev_b32 v1, 4, v0\ns_mov_b32 exec_lo, 0")
    e(f"buffer_store_dwordx4 v[{TMP}:{TMP+3}], v1, s[20:23], s30 offen sc1")
    e("s_mov_b32 exec_lo, -1")
    e.label("K_nopub")
    st(e, "pub")
    for x in K: e(x)
    GR, GI = 72, 88
    for j in range(16):
        e(f"v_mul_f32 v{GR+j}, v30, v{UR+j}\nv_mul_f32 v{GI+j}, v32, v{UI+j}\nv_fmac_f32 v{GR+j}, v31, v{UI+j}\nv_fmac_f32 v{GI+j}, v31, v{UR+j}")
    AG = 40
    st(e, "g")
    for i in range(8): e(f"v_mov_b32 v{AG+4*i}, 0\nv_mov_b32 v{AG+4*i+1}, s84\nv_mov_b32 v{AG+4*i+2}, 0\nv_mov_b32 v{AG+4*i+3}, s84")
    e(f"s_lshl_b32 s90, s6, 11\ns_lshl_b32 s30, s4, 8\ns_add_u32 s90, s90, s30\ns_add_u32 s90, s90, {WS_CS}")
    e("v_and_b32 v34, 31, v0\nv_lshlrev_b32 v34, 3, v34\nv_lshl_add_u32 v34, v21, 10, v34")
    def cs_loads():
        e("buffer_load_dwordx2 v[8:9], v34, s[20:23], s90 offen sc1\nbuffer_load_dwordx2 v[140:141], v35, s[20:23], s75 offen sc1")
    cs_chk = "v_cmp_eq_u32 vcc, s84, v9\nv_cmp_eq_u32 s[28:29], s84, v141\ns_nop 1\ns_and_b64 vcc, vcc, s[28:29]"
    e("v_min_u32 v35, 6, v0\nv_lshlrev_b32 v35, 7, v35")
    cs_loads()
    e(f"s_lshl_b32 s30, s91, 7\ns_add_u32 s30, s30, s78\nv_mul_u32_u24 v1, {WS_FO - WS_FH}, v21")
    e("s_mov_b32 exec_lo, 1\ns_mov_b32 exec_hi, 1\nbuffer_load_dword v251, v1, s[20:23], s30 offen sc1\ns_mov_b64 exec, -1")
    e(f"s_lshl_b32 s92, s6, 4\ns_add_u32 s92, s92, s5\ns_lshl_b32 s92, s92, 9\ns_add_u32 s92, s92, {WS_AGG - 8192}\ns_add_u32 s93, s92, 4096\nv_lshlrev_b32 v3, 4, v0")
    def agg_loads():
        for i in range(8):
            l = e.newlabel("AL")
            e(f"s_cmp_lt_u32 s5, {15 - 2*i}\ns_cbranch_scc1 {l}")
            e(f"s_cmp_ge_u32 s5, {16 - 2*i}\ns_cselect_b32 exec_lo, -1, 0")
            e(f"buffer_load_dwordx4 v[{AG+4*i}:{AG+4*i+3}], v3, s[20:23], s{92 + (i >> 2)} offen offset:{1024*(i & 3)} sc1")
            e.label(l)
        e("s_mov_b32 exec_lo, -1")
    agg_loads()
    st(e, "aggi")
    SEL = 144
    tau_of_lane(e, 1, 2)
    e("v_lshlrev_b32 v2, 4, v21\nv_sub_u32 v1, v1, v2\nv_and_b32 v2, 1, v1\nv_lshlrev_b32 v2, 4, v2\nv_mov_b32 v4, 0x3f80\nv_lshlrev_b32 v2, v2, v4\nv_ashrrev_i32 v1, 1, v1")
    for q in range(0, 8, 2):
        e(f"v_cmp_eq_u32 vcc, {q}, v1\nv_cmp_eq_u32 s[30:31], {q+1}, v1\ns_nop 0\nv_cndmask_b32 v{SEL+q}, 0, v2, vcc\nv_cndmask_b32 v{SEL+q+1}, 0, v2, s[30:31]")
    e(f"s_mul_i32 s76, s5, {2*A_W}\ns_lshl_b32 s30, s6, 13\ns_add_u32 s76, s76, s30\ns_lshl_b32 s30, s4, 10\ns_add_u32 s76, s76, s30\ns_add_u32 s77, s76, {A_W}")
    def rnd(b):
        for r in range(0, 16, 2): e(f"v_cvt_pk_bf16_f32 v{b+r}, v{b+r}, v{b+r+1}")
        for r in range(0, 16, 2): e(f"v_and_b32 v{b+r+1}, 0xffff0000, v{b+r}\nv_lshlrev_b32 v{b+r}, 16, v{b+r}")
    e.vm0()
    st(e, "aggl")
    e("s_mov_b32 s95, 0")
    e.label("K_horner")
    e(f"v_min3_u32 v1, s84, v{AG+1}, v{AG+3}\nv_max3_u32 v2, s84, v{AG+1}, v{AG+3}")
    for i in range(1, 8):
        b = AG + 4*i
        src = (AG, AG + 2) if i == 1 else ((4, 5) if i % 2 == 0 else (6, 7))
        dst = (4, 5) if i % 2 == 1 else (6, 7)
        step(dst[0], dst[1], src[0], src[1], b, b + 2, 136, 137)
        e(f"v_min3_u32 v1, v1, v{b+1}, v{b+3}\nv_max3_u32 v2, v2, v{b+1}, v{b+3}")
    e("v_cmp_eq_u32 vcc, v1, v2\nv_mov_b32 v6, v4\nv_mov_b32 v7, v5\ns_cmp_eq_u64 vcc, -1\ns_cbranch_scc1 K_hok")
    e(f"s_add_u32 s95, s95, 1\ns_cmp_ge_u32 s95, {SPIN_MAX}\ns_cbranch_scc1 K_hok\ns_sleep 4")
    agg_loads()
    e("s_waitcnt vmcnt(0)\ns_branch K_horner")
    e.label("K_hok")
    st(e, "look")
    e("v_permlane32_swap_b32 v4, v6\nv_permlane32_swap_b32 v5, v7\ns_nop 0")
    step(6, 7, 4, 5, 6, 7, 26, 27)
    step(38, 39, 6, 7, 38, 39, 28, 29)
    e("v_xor_b32 v36, 0x80000000, v38\nv_xor_b32 v37, 0x80000000, v39")
    for j in range(0, 16, 2):
        for x in (j, j + 1):
            e(f"v_fmac_f32 v{GR+x}, v38, v{QR+x}\nv_fmac_f32 v{GI+x}, v37, v{QR+x}\nv_fmac_f32 v{GR+x}, v37, v{QI+x}\nv_fmac_f32 v{GI+x}, v36, v{QI+x}")
        e(f"v_cvt_pk_bf16_f32 v{40+j//2}, v{GR+j}, v{GR+j+1}\nv_cvt_pk_bf16_f32 v{48+j//2}, v{GI+j}, v{GI+j+1}")
    st(e, "fin")
    e("s_setprio 3")
    e(mfma(160, 40, SEL, True)); e(mfma(176, 48, SEL, True)); e(mfma(160, 44, SEL + 4)); e(mfma(176, 52, SEL + 4))
    e(f"s_setprio {sprio2}")
    e("s_add_u32 s30, s76, 4096\ns_add_u32 s31, s77, 4096\ns_nop 7")
    for r in range(16): e(f"v_cvt_pk_bf16_f32 v{56+r}, v{160+2*r}, v{161+2*r}")
    st(e, "ht")
    stores([f"buffer_store_dwordx4 v[56:59], v3, s[20:23], s76 offen", "buffer_store_dwordx4 v[60:63], v3, s[20:23], s30 offen",
            f"buffer_store_dwordx4 v[64:67], v3, s[20:23], s77 offen", "buffer_store_dwordx4 v[68:71], v3, s[20:23], s31 offen"], "h")
    st(e, "hst")
    e(cs_chk + "\ns_cmp_eq_u64 vcc, -1\ns_cbranch_scc1 K_cs_ok")
    def body():
        cs_loads()
        e("s_waitcnt vmcnt(0)\n" + cs_chk)
    spin(e, body, "s_cmp_eq_u64 vcc, -1", sleep=2)
    e.label("K_cs_ok")
    e("v_cmp_eq_u32 vcc, s74, v140")
    e(f"s_lshl_b32 s30, s4, 8\ns_add_u32 s30, s30, {CSW}\nv_lshl_add_u32 v1, v0, 2, s30")
    e("s_cmp_eq_u64 vcc, -1\ns_cselect_b32 s97, 2, 1")
    if force: e(f"s_mov_b32 s97, {force}")
    e("v_mov_b32 v2, s97\nds_write_b32 v1, v8\nds_write_b32 v20, v2 offset:16")
    e(f"s_lshl_b32 s30, s87, 14\ns_xor_b32 s31, s30, 0x4000\ns_and_b32 s29, s4, 1\ns_lshl_b32 s29, s29, 12\ns_sub_u32 s29, {C0}, s29\ns_add_u32 s30, s30, s29\ns_add_u32 s31, s31, s29\ns_lshl_b32 s29, s4, 5")
    for j in range(4): e(f"v_xor_b32 v{10+j}, s29, v{10+j}\nv_add_u32 v{14+j}, s31, v{10+j}\nv_add_u32 v{10+j}, s30, v{10+j}")
    e("s_lshl_b32 s30, s91, 7\ns_lshl_b32 s31, s4, 2\ns_add_u32 s31, s31, s30\nv_mov_b32 v4, s31\nv_mov_b32 v5, s84")
    e.vm_wait({"h"})
    e("s_mov_b64 exec, 1")
    dual(["buffer_store_dword v5, v4, s[20:23], s78 offen"], "fl")
    e("s_mov_b64 exec, -1")
    st(e, "hflag")
    e(f"s_lshl_b32 s92, s5, 1\ns_add_u32 s92, s92, s87\ns_mul_i32 s92, s92, {A_W}\ns_lshl_b32 s30, s85, 13\ns_add_u32 s93, s92, s30\ns_add_u32 s93, s93, {3*CH}\ns_lshl_b32 s30, s85, 16\ns_add_u32 s92, s92, s30")
    e("v_and_b32 v8, 7, v0\nv_min_u32 v8, 6, v8\nv_lshlrev_b32 v8, 7, v8\nv_and_b32 v1, 8, v0\nv_add_u32 v8, v8, v1\ns_and_b32 s30, s4, 1\ns_lshl_b32 s31, s30, 2\nv_add_u32 v8, s31, v8")
    e("s_lshl_b32 s30, s30, 10\ns_lshl_b32 s31, s85, 11\ns_add_u32 s30, s30, s31\nv_add_u32 v23, s30, v3\nv_xor_b32 v22, 0x800, v23")
    e(f"s_mul_i32 s76, s5, 7\ns_add_u32 s76, s76, s91\ns_lshl_b32 s76, s76, 1\ns_add_u32 s76, s76, s85\ns_lshl_b32 s76, s76, 15\ns_add_u32 s76, s76, s89\ns_xor_b32 s77, s76, 0x8000\ns_add_u32 s76, s76, {WS_PX}\ns_add_u32 s77, s77, {WS_PX}")
    def creg(k): return 144 + 8 * k
    def c_list(r):
        out = []
        for k in range(8*r, min(14, 8*r + 8)):
            if k == 12: out += [f"v_xor_b32 v{10+j}, s73, v{10+j}" for j in (0, 1, 4, 5)]
            for b in range(2):
                g = creg(k) + 4*b
                out.append(f"ds_read_b128 v[{g}:{g+3}], v{10 + 4*b + (k & 3)} offset:{r*2*CH + ((k >> 2) & 1)*4096}")
        return out
    XR, MR, RR = 64, 80, 96
    e(f"s_lshl_b32 s29, s85, 6\ns_and_b32 s31, s4, 1\ns_lshl_b32 s31, s31, 5\ns_add_u32 s29, s29, s31\ns_lshl_b32 s29, s29, 2\ns_add_u32 s29, s29, {STAT}\nv_lshl_add_u32 v4, v21, 6, s29")
    for q in range(4):
        e(f"ds_read_b128 v[{MR+4*q}:{MR+4*q+3}], v4 offset:{16*q}\nds_read_b128 v[{RR+4*q}:{RR+4*q+3}], v4 offset:{512+16*q}")
    for r in range(8): e(f"v_mov_b32 v{56+r}, v{208+r}\nv_lshlrev_b32 v{XR+2*r}, 16, v{208+r}\nv_and_b32 v{XR+2*r+1}, 0xffff0000, v{208+r}")
    e.lg0()
    for r in range(16): e(f"v_sub_f32 v{MR+r}, v{XR+r}, v{MR+r}")
    rnd(MR)
    for r in range(16): e(f"v_mul_f32 v{MR+r}, v{MR+r}, v{RR+r}")
    rnd(MR)
    for r in range(16): e(f"v_mul_f32 v{MR+r}, v{MR+r}, v142")
    for r in range(8): e(f"v_cvt_pk_bf16_f32 v{128+r}, v{MR+2*r}, v{MR+2*r+1}")
    st(e, "xn")
    wait_prog(6)
    for x in c_list(0): e(x)
    e("s_waitcnt lgkmcnt(0)\ns_mov_b64 exec, 1\nds_add_u32 v18, v19 offset:88")
    st(e, "c0")
    e("s_mov_b64 exec, 0xffff")
    def body():
        e("buffer_load_dword v9, v8, s[20:23], s78 offen sc1\ns_waitcnt vmcnt(0)\nv_cmp_eq_u32 vcc, s84, v9\ns_nop 1")
    spin(e, body, "s_cmp_eq_u64 vcc, exec", sleep=4)
    e("s_mov_b64 exec, -1")
    e.vm = []
    st(e, "hseen")
    NP = 8
    ypre = min(ypre, NP - 1)
    YA = [64, 96]
    def yreg(t): return 24 + 4*(t % NP)
    def yissue(t):
        k = t >> 1
        if (t & 1) == 0 and k > 0: e("s_mov_b32 s92, s93" if k == 12 else "s_add_u32 s92, s92, 4096")
        e.vmem(f"buffer_load_dwordx4 v[{yreg(t)}:{yreg(t)+3}], v{22 + (t & 1)}, s[20:23], s92 offen sc1", ("A", t))
    if ypre:
        if ywait > 6: wait_prog(ywait)
        for t in range(ypre): yissue(t)
    def body():
        e("ds_read_b128 v[4:7], v18 offset:32\ns_waitcnt lgkmcnt(0)\nv_min_u32 v4, v4, v5\nv_min3_u32 v4, v4, v6, v7\ns_nop 0\nv_readfirstlane_b32 s82, v4")
    spin(e, body, "s_cmp_lg_u32 s82, 0", sleep=1)
    st(e, "epid")
    e("s_setprio 3")
    for t in range(ypre, NP - 1): yissue(t)
    for x in c_list(1): e(x)
    e(f"s_add_u32 s31, s89, {SC}\nv_add_u32 v136, s31, v3\nv_xor_b32 v137, 0x2000, v136\nv_xor_b32 v138, 8, v20")
    for t in range(28):
        k = t >> 1
        if t == 8: e("s_waitcnt lgkmcnt(0)\ns_mov_b64 exec, 1\nds_add_u32 v18, v19 offset:92\ns_mov_b64 exec, -1")
        if t == 24: e("ds_read_b32 v1, v18 offset:92")
        e.vm_wait({("A", t)})
        for b in range(2):
            e(mfma(YA[t & 1] + 16*b, yreg(t), creg(k) + 4*b, k == 0))
            if b == 0 and t + NP - 1 < 28: yissue(t + NP - 1)
    st(e, "yloop")
    e("s_waitcnt lgkmcnt(0)\nv_readfirstlane_b32 s82, v1\ns_cmp_ge_u32 s82, 4\ns_cbranch_scc1 K_c1ok")
    lds_wait(18, 92, "s_cmp_ge_u32 s82, 4", 1, sleep=0)
    e.label("K_c1ok")
    e("s_nop 5")
    for ps in range(2):
        for g in range(4): e(f"ds_write_b128 v136, v[{YA[ps]+16+4*g}:{YA[ps]+19+4*g}] offset:{ps*CH + g*1024}")
    e("ds_write_b32 v20, v19 offset:96")
    lds_wait(138, 96, "s_cmp_lg_u32 s82, 0", 1, sleep=0)
    st(e, "yw")
    for ps in range(2):
        for g in range(4): e(f"ds_read_b128 v[{YA[ps]+16+4*g}:{YA[ps]+19+4*g}], v137 offset:{ps*CH + g*1024}")
    e("s_waitcnt lgkmcnt(4)")
    Y = YA[0]
    for r in range(16): e(f"v_add_f32 v{Y+r}, v{Y+r}, v{Y+16+r}")
    for r in range(0, 16, 2): e(f"v_cvt_pk_bf16_f32 v{24+r}, v{Y+r}, v{Y+r+1}\nv_mov_b32 v{25+r}, s84")
    e("s_waitcnt lgkmcnt(0)\ns_mov_b64 exec, 1\nds_add_u32 v18, v19 offset:84\ns_mov_b64 exec, -1")
    st(e, "yx")
    e("s_setprio 0")
    Y = YA[1]
    def ysend(g): stores([f"buffer_store_dwordx4 v[{24+4*g}:{27+4*g}], v3, s[20:23], s77 offen offset:{g*1024}"], "px")
    ysend(0)
    for r in range(16): e(f"v_add_f32 v{Y+r}, v{Y+r}, v{Y+16+r}")
    for r in range(8): e(f"v_lshlrev_b32 v{Y+16+2*r}, 16, v{128+r}\nv_and_b32 v{Y+17+2*r}, 0xffff0000, v{128+r}")
    ysend(1)
    for r in range(16): e(f"v_add_f32 v{Y+r}, v{Y+r}, v{Y+16+r}")
    lds_wait(18, 84, "s_cmp_ge_u32 s82, 4", 1, sleep=1)
    ysend(2)
    for g in range(4): e(f"ds_write_b128 v136, v[{Y+4*g}:{Y+3+4*g}] offset:{g*1024}")
    e(f"v_add_u32 v11, {6*CH + 2048 - SC}, v136")
    for g in range(2): e(f"ds_write_b128 v11, v[{56+4*g}:{59+4*g}] offset:{g*1024}")
    e("ds_write_b32 v20, v19 offset:128")
    e.lg0()
    ysend(3)
    st(e, "ydone")
    e.lg0()
    e("s_barrier")
    st.dump(e); info["S"] = st.names
    e("s_endpgm")

    e.vm = []; e.lg = []
    e.label("K_SPARE")
    st = Stamper(stamps, 143)
    e("s_getpc_b64 s[28:29]")
    e.label("K_PC")
    e(f"s_sub_u32 s28, s28, K_PC-{name}\ns_subb_u32 s29, s29, 0")
    e(f"v_lshlrev_b32 v7, 7, v2\nv_min_u32 v5, ALL_END-{name}-4, v7")
    e("s_cmp_lt_u32 s2, 248\ns_cbranch_scc1 K_sp0")
    e("global_load_dword v83, v5, s[28:29]")
    e.label("K_sp0")
    e("s_sub_u32 s4, s2, 224\ns_lshr_b32 s5, s4, 1\ns_and_b32 s6, s4, 1")
    e("v_lshrrev_b32 v3, 4, v2\nv_and_b32 v4, 15, v2\nv_mul_u32_u24 v5, 0xe00, v3\nv_lshl_add_u32 v5, v4, 4, v5")
    e(f"v_mov_b32 v6, 0\ns_mov_b32 s82, {WS_EP}\ns_lshl_b32 s28, s5, 8")
    e("s_cmp_eq_u32 s6, 0")
    e("s_waitcnt lgkmcnt(0)")
    e("s_cselect_b32 s16, s52, s54\ns_cselect_b32 s17, s53, s55")
    e(f"s_and_b32 s17, s17, 0xffff\ns_mov_b32 s18, {448*3584}\ns_mov_b32 s19, 0x20000")
    srd(e, 20, 62, WS_END)
    srd(e, 8, 56, 1792 * 896)
    srd(e, 64, 42, 448 * 896)
    srd(e, 68, 44, 448 * 896)
    e("s_cmp_ge_u32 s4, 28\ns_cbranch_scc1 K_sp4")
    e.vmem("buffer_load_dword v6, v6, s[20:23], s82 offen sc1", "ep")
    for i in range(14):
        e.vmem(f"buffer_load_dwordx4 v[{16+4*i}:{19+4*i}], v5, s[16:19], s28 offen", ("cs", i))
        if i < 13: e(f"s_add_u32 s28, s28, {32*3584}")
    if warm:
        e("s_mul_i32 s28, s4, 57344\ns_mul_i32 s29, s4, 14336")
        e.vmem("buffer_load_dword v80, v7, s[8:11], s28 offen", "t")
        e("v_and_b32 v4, 0x3fff, v7\ns_cmp_lt_u32 s3, 2\ns_cselect_b32 s64, s64, s68\ns_cselect_b32 s65, s65, s69\ns_cmp_lt_u32 s3, 4\ns_cselect_b32 s66, s66, 0")
        e.vmem("buffer_load_dword v81, v4, s[64:67], s29 offen", "t")
    for q in range(8): e(f"v_mov_b32 v{8+q}, 0")
    for i in range(14):
        e.vm_wait({("cs", i)})
        for q in range(4):
            e(f"v_lshlrev_b32 v72, 16, v{16+4*i+q}\nv_and_b32 v73, 0xffff0000, v{16+4*i+q}\nv_pk_add_f32 v[{8+2*q}:{9+2*q}], v[{8+2*q}:{9+2*q}], v[72:73]")
    e("v_lshlrev_b32 v3, 5, v2")
    e("ds_write_b128 v3, v[8:11]\nds_write_b128 v3, v[12:15] offset:16\ns_waitcnt lgkmcnt(0)")
    st(e, "acc")
    e("s_barrier")
    e("s_cmp_lg_u32 s3, 7\ns_cbranch_scc1 K_sp2")
    e("v_lshlrev_b32 v3, 3, v0\nv_add_u32 v9, 1, v6\nv_max_u32 v9, 1, v9\nv_mov_b32 v11, v9")
    for h in range(2):
        for i in range(16): e(f"ds_read_b64 v[{16+2*i}:{17+2*i}], v3 offset:{(16*h+i)*512}")
        e("s_waitcnt lgkmcnt(0)")
        if h == 0: e("v_mov_b32 v12, 0\nv_mov_b32 v13, 0")
        for i in range(16): e(f"v_pk_add_f32 v[12:13], v[12:13], v[{16+2*i}:{17+2*i}]")
    e(f"v_mov_b32 v8, v12\nv_mov_b32 v10, v13\nv_lshlrev_b32 v3, 4, v0\ns_lshl_b32 s30, s4, 10\ns_add_u32 s30, s30, {WS_CS}")
    e("buffer_store_dwordx4 v[8:11], v3, s[20:23], s30 offen sc1")
    e.label("K_sp2")
    e("s_barrier")
    e.label("K_sp4")
    e.label("K_sp3")
    st.dump(e); info["sp"] = st.names
    e.label("K_END")
    e("s_endpgm")
    e.label("ALL_END")
    return khead(name) + e.text(), kd(name, 256, 256), info

if __name__ == "__main__":
    import sys, json
    NAME = "recurrent_scan__ssm_conv_s5__glu_gated_reglu__prompt_kernel"
    stamps = "stamps" in sys.argv
    kw = {}
    for a in sys.argv[2:]:
        if "=" in a:
            k, v = a.split("="); kw[k] = int(v) if v.lstrip("-").isdigit() else v
    b, d, info = gen_fused(NAME, stamps=stamps, **kw)
    hdr = open("recurrent_scan__ssm_conv_s5__glu_gated_reglu__prompt.s.ref").read().split("; Override")[0]
    txt = hdr + f"; @launch grid=(256,1,1) block=(512,1,1) lds={LDS_BYTES}\n"
    if stamps and "rt" in sys.argv: txt += "; RT\n"
    if stamps: txt += "; STAMPS " + json.dumps(info) + "\n"
    txt += '.amdgcn_target "amdgcn-amd-amdhsa--gfx950"\n' + b + d
    open(sys.argv[1], "w").write(txt)
```

```python
from asmlib import *
from layout7 import *
LDS_BYTES = 163840
RING = 114688
NR = 5
MISC = RING + NR * 8192
STAT = MISC
CSB = MISC + 1024
CSW = MISC + 2048
SUB = MISC + 3072
FLG = MISC + 7168
LOG2E = 0x3fb8aa3b
SPIN_MAX = 0x200000
UNIT = 114688
CH = 16384
import sys
PADAT = ([a[6:] for a in sys.argv if a.startswith('padat=')] + [''])[0]
TIMER = 's_memrealtime' if 'rt' in sys.argv else 's_memtime'
C0 = 2 * CH
SC = 4 * CH

def mfma(d, a, b, first=False):
    c = "0" if first else f"v[{d}:{d+15}]"
    return f"v_mfma_f32_32x32x16_bf16 v[{d}:{d+15}], v[{a}:{a+3}], v[{b}:{b+3}], {c}"

class Stamper:
    def __init__(self, on, vreg): self.on = on; self.n = 0; self.v = vreg; self.names = []
    def __call__(self, e, name=""):
        if PADAT and name == PADAT and self.v == 127: e("s_memrealtime s[100:101]")
        if not self.on: return
        e.lg0()
        e(f"v_writelane_b32 v{self.v}, s80, {self.n}\n{TIMER} s[80:81]")
        self.n += 1; self.names.append(name)
        assert self.n <= 60
    def dump(self, e):
        if not self.on: return
        e("s_waitcnt vmcnt(0)")
        self(e, "end"); self(e)
        e("s_memrealtime s[80:81]\ns_waitcnt lgkmcnt(0)")
        e(f"v_writelane_b32 v{self.v}, s96, 62\nv_writelane_b32 v{self.v}, s80, 63\ns_mov_b32 s80, {self.n}\nv_writelane_b32 v{self.v}, s80, 61")
        e(f"s_mov_b32 s22, {WS_END + (1<<20)}")
        e("s_lshl_b32 s82, s2, 3\ns_add_u32 s82, s82, s3\ns_lshl_b32 s82, s82, 8")
        e(f"s_add_u32 s82, s82, {WS_END}")
        e("v_lshlrev_b32 v1, 2, v0")
        e(f"buffer_store_dword v{self.v}, v1, s[20:23], s82 offen")

def spin(e, body, cond_ok, sleep=1):
    l = e.newlabel("SP")
    e("s_mov_b32 s95, 0")
    e.label(l)
    body()
    e(cond_ok)
    e(f"s_cbranch_scc1 {l}_ok")
    if sleep: e(f"s_sleep {sleep}")
    e(f"s_add_u32 s95, s95, 1\ns_cmp_lt_u32 s95, {SPIN_MAX}\ns_cbranch_scc1 {l}")
    e.label(l + "_ok")

def tau_of_lane(e, d, t):
    e(f"v_bfe_u32 v{d}, v0, 2, 1\nv_lshlrev_b32 v{d}, 4, v{d}\nv_bfe_u32 v{t}, v0, 3, 2\nv_lshl_add_u32 v{d}, v{t}, 2, v{d}\nv_and_b32 v{t}, 3, v0\nv_add_u32 v{d}, v{d}, v{t}")

def plan_slots():
    wslot = {n: ("r", ((n + 2) % NR) * 8192) for n in range(5)}
    issue = {}
    nxt = 5
    free = []
    for n in range(28):
        if n in (5, 9):
            c = (n >> 2) - 1
            free += [("c", c * CH), ("c", c * CH + 2048)]
        free.append(wslot[n])
        issue[n] = []
        while free and nxt < 28 and len(issue[n]) < 2:
            wslot[nxt] = free.pop(0); issue[n].append(nxt); nxt += 1
    last = max(n for n in issue if issue[n])
    used_after = {}
    inv = {}
    for n in range(28): inv[wslot[n]] = n
    order = sorted(inv.items(), key=lambda x: x[1])
    wd = [(sl, n + 1, 0) for sl, n in order]
    wd += [(("c", 6 * CH), 0, 7)] + [(("c", C0 + (i >> 1) * CH + (i & 1) * 2048), 0, 0) for i in range(4)]
    assert len(wd) == 14, len(wd)
    return wslot, issue, wd, last

def gen_fused(name, stamps=False, D0=3, pad=0, ra=1, kint=3, fine=1, sidle=0, sprio=3, sprio2=0, fprio=2, NA=16, pace=0, warm=1, ypre=9, ssl=1, ysl=3, t0=29, ywait=7, wsl=1, padwg=-1, padat='', tr=50, gap=0, pt=0, pt0=15, ptn=7, noc=0, nowd=0, dwarm=0, outfl='nt', force=0, bulk=0):
    e = Em2()
    info = {}
    wslot, wissue, wdslot, wlast = plan_slots()
    def stores(ins_list, tag):
        for x in ins_list: e.vmem(x + " sc1", tag)
    def dual(ins_list, tag, on=True):
        if not on: return stores(ins_list, tag)
        l = e.newlabel("DS")
        e(f"s_cmp_eq_u32 s97, 2\ns_cbranch_scc1 {l}_l")
        for x in ins_list: e(x + " sc1")
        e(f"s_branch {l}_e")
        e.label(l + "_l")
        for x in ins_list: e.vmem(x, tag)
        e.label(l + "_e")
    def wd_setup(va, sr):
        e(f"v_lshrrev_b32 v{va}, 3, v0\nv_mul_u32_u24 v{va}, 0x380, v{va}\nv_bfe_u32 v{va+1}, v0, 4, 1\nv_lshlrev_b32 v{va+1}, 2, v{va+1}")
        e(f"v_and_b32 v1, 7, v0\nv_xor_b32 v1, v1, v{va+1}\nv_lshl_add_u32 v{va}, v1, 4, v{va}\nv_add_u32 v{va+1}, {8*896-1024}, v{va}")
        srd(e, sr, 56, 1792 * 896)
        e("s_lshl_b32 s98, s99, 1")
        e(f"s_mul_i32 s88, s4, {32*896}\ns_lshl_b32 s82, s91, 7\ns_add_u32 s88, s88, s82\ns_mul_i32 s82, s85, {7*UNIT}\ns_add_u32 s88, s88, s82")
        e(f"s_mul_i32 s64, s98, {UNIT}\ns_add_u32 s64, s64, s88\ns_add_u32 s88, s88, {7*UNIT}")
        for u in range(1, 7):
            e(f"s_add_u32 s{64+u}, s{63+u}, {UNIT}\ns_cmp_ge_u32 s{64+u}, s88\ns_cselect_b32 s82, {7*UNIT}, 0\ns_sub_u32 s{64+u}, s{64+u}, s82")
    def wd_dma(k, va, sr):
        kind, off = wdslot[k][0]
        e(f"s_add_u32 m0, s{89 if kind == 'c' else 79}, {off}\ns_add_u32 s82, s{64+(k>>1)}, {(k&1)*16*896}")
        e.vmem(f"buffer_load_dwordx4 v{va}, s[{sr}:{sr+3}], s82 offen lds", ("wd", k))
        e.vmem(f"buffer_load_dwordx4 v{va+1}, s[{sr}:{sr+3}], s82 offen offset:1024 lds", ("wd", k))
    def wd_half(k, hf):
        kind, off = wdslot[k][0]
        e(f"s_add_u32 m0, s{89 if kind == 'c' else 79}, {off}\ns_add_u32 s82, s{64+(k>>1)}, {(k&1)*16*896}")
        e.vmem(f"buffer_load_dwordx4 v{2+hf}, s[12:15], s82 offen" + (" offset:1024" if hf else "") + " lds", ("wd", k))
    def lds_wait(addr, off, cond, tmp, sleep=1):
        def body(): e(f"ds_read_b32 v{tmp}, v{addr} offset:{off}\ns_waitcnt lgkmcnt(0)\nv_readfirstlane_b32 s82, v{tmp}")
        spin(e, body, cond, sleep=sleep)
        e.lg = []
    e("s_cmp_ge_u32 s2, 256")
    e("s_cbranch_scc1 K_END")
    if stamps: e(f"s_memrealtime s[96:97]\n{TIMER} s[80:81]")
    elif pad: e("s_memrealtime s[96:97]")
    e("s_load_dwordx16 s[32:47], s[0:1], 0")
    e("s_load_dwordx16 s[48:63], s[0:1], 64")
    e("v_lshrrev_b32 v1, 6, v0\nv_mov_b32 v2, v0\nv_and_b32 v0, 63, v0\nv_readfirstlane_b32 s3, v1")
    e("s_cmp_ge_u32 s2, 224")
    e("s_cbranch_scc1 K_SPARE")
    e("s_and_b32 s4, s3, 3\ns_and_b32 s8, s2, 7\ns_lshr_b32 s9, s2, 3")
    e("s_and_b32 s5, s8, 3\ns_lshl_b32 s5, s5, 2\ns_and_b32 s99, s9, 3\ns_add_u32 s5, s5, s99")
    e("s_lshr_b32 s85, s8, 2\ns_lshr_b32 s91, s9, 2\ns_mul_i32 s6, s85, 7\ns_add_u32 s6, s6, s91")
    e("v_and_b32 v20, 31, v0\nv_lshrrev_b32 v21, 5, v0\nv_bfe_u32 v22, v0, 1, 3\nv_xor_b32 v22, v22, v21\nv_lshlrev_b32 v20, 7, v20")
    e(f"s_lshl_b32 s89, s4, 12\ns_lshl_b32 s79, s4, 11\ns_add_u32 s79, s79, {RING}")
    e("s_cmp_ge_u32 s3, 4")
    e("s_cbranch_scc1 K_S")

    st = Stamper(stamps, 127)
    e(f"s_setprio {fprio}")
    e(f"s_mul_i32 s10, s99, {ra}\ns_add_u32 s7, s91, s10")
    e("s_cmp_ge_u32 s7, 7\ns_cselect_b32 s10, 7, 0\ns_sub_u32 s7, s7, s10")
    e("s_lshl_b32 s64, s7, 7")
    for c in range(1, 7):
        e(f"s_add_u32 s{64+c}, s{63+c}, 128\ns_cmp_ge_u32 s{64+c}, 896\ns_cselect_b32 s{64+c}, 0, s{64+c}")
    e("v_lshrrev_b32 v8, 3, v0\nv_and_b32 v9, 7, v0\nv_lshrrev_b32 v7, 4, v0\nv_xor_b32 v9, v9, v7\nv_lshlrev_b32 v9, 4, v9\nv_xor_b32 v7, 64, v9")
    e("v_and_b32 v6, 3, v8\nv_lshl_add_u32 v5, v21, 4, v6\nv_lshl_add_u32 v6, v21, 3, v6\nv_mul_u32_u24 v5, 0x380, v5\nv_mul_u32_u24 v6, 0x380, v6")
    e("v_add_u32 v1, v5, v9\nv_add_u32 v2, v5, v7\nv_add_u32 v2, 2560, v2\nv_add_u32 v3, 5120, v1\nv_add_u32 v4, 5120, v2")
    e(f"v_add_u32 v5, v6, v9\nv_add_u32 v6, v6, v7\nv_add_u32 v6, {4*896-1024}, v6")
    e("s_lshl_b32 s28, s5, 7\ns_lshl_b32 s29, s4, 5\ns_add_u32 s28, s28, s29\ns_mul_i32 s28, s28, 896")
    e("s_lshl_b32 s29, s6, 5\ns_and_b32 s30, s4, 1\ns_lshl_b32 s30, s30, 4\ns_add_u32 s29, s29, s30\ns_mul_i32 s29, s29, 896")
    e(f"s_mov_b32 s10, {2048*896}\ns_mov_b32 s11, 0x20000\ns_mov_b32 s14, {448*896}\ns_mov_b32 s15, 0x20000")
    e("s_waitcnt lgkmcnt(0)")
    st(e, "karg")
    e("s_cmp_lt_u32 s4, 2")
    e("s_cselect_b32 s12, s38, s40\ns_cselect_b32 s13, s39, s41\ns_mov_b32 s8, s32\ns_and_b32 s9, s33, 0xffff\ns_and_b32 s13, s13, 0xffff")
    def xb_burst(c):
        e(f"s_add_u32 m0, s89, {c*CH}\ns_add_u32 s83, s28, s{64+c}")
        for ii in range(4):
            e.vmem(f"buffer_load_dwordx4 v{1+ii}, s[8:11], s83 offen" + (f" offset:{ii*1024}" if ii else "") + " lds", ("x", c))
        e(f"s_add_u32 m0, s79, {(c % NR)*8192}\ns_add_u32 s83, s29, s{64+c}")
        e.vmem("buffer_load_dwordx4 v5, s[12:15], s83 offen lds", ("x", c))
        e.vmem("buffer_load_dwordx4 v6, s[12:15], s83 offen offset:1024 lds", ("x", c))
    xb_burst(0)
    srd(e, 20, 62, WS_END)
    e(f"v_mov_b32 v120, 0\ns_mov_b32 s82, {WS_EP}")
    e("s_mov_b64 exec, 1")
    e.vmem("buffer_load_dword v120, v120, s[20:23], s82 offen sc1", "ep")
    e("s_mov_b64 exec, -1")
    e(f"v_mov_b32 v124, 0\nv_mov_b32 v125, 0\ns_lshl_b32 s31, s4, 9\ns_add_u32 s31, s31, {SUB}\nv_lshl_add_u32 v8, v0, 3, s31")
    e.lds("ds_write_b64 v8, v[124:125]")
    e(f"v_lshlrev_b32 v8, 2, v0\nv_add_u32 v8, {FLG}, v8")
    e.lds("ds_write_b32 v8, v124")
    for jj in range(4):
        e(f"v_xor_b32 v{10+jj}, {2*jj}, v22\nv_lshl_add_u32 v{10+jj}, v{10+jj}, 4, v20\nv_add_u32 v{14+jj}, 0x10000, v{10+jj}")
    if D0 > 1: xb_burst(1)
    srd(e, 16, 52, 448 * 3584)
    srd(e, 24, 54, 448 * 3584)
    e("s_lshl_b32 s31, s6, 8\ns_lshl_b32 s82, s4, 6\ns_add_u32 s31, s31, s82")
    for c in range(7): e(f"s_mul_i32 s{72+c}, s{64+c}, 1792\ns_add_u32 s{72+c}, s{72+c}, s31")
    e("v_lshrrev_b32 v7, 2, v0\nv_mul_u32_u24 v7, 0xe00, v7\nv_and_b32 v8, 3, v0\nv_lshl_add_u32 v7, v8, 4, v7")
    e("v_bfe_u32 v8, v0, 2, 2\nv_lshl_add_u32 v8, v21, 3, v8\nv_lshlrev_b32 v9, 6, v8")
    e("v_bfe_u32 v8, v0, 4, 1\nv_lshl_add_u32 v9, v8, 5, v9\nv_and_b32 v8, 3, v0\nv_lshl_add_u32 v9, v8, 3, v9\nv_add_u32 v125, s89, v9\nv_add_u32 v9, s79, v9")
    e("v_lshlrev_b32 v18, 4, v0")
    e(f"s_lshl_b32 s31, s4, 2\ns_add_u32 s31, s31, {FLG}\nv_mov_b32 v19, s31")
    e(f"s_lshl_b32 s31, s4, 8\ns_add_u32 s31, s31, {CSW}\nv_lshl_add_u32 v122, v21, 4, s31")
    tau_of_lane(e, 123, 8)
    e(f"v_lshlrev_b32 v123, 2, v123\nv_add_u32 v123, {STAT}, v123\nv_mov_b32 v8, {FLG}")
    e(f"s_lshl_b32 s92, s5, 2\ns_add_u32 s92, s92, s4\ns_mul_i32 s92, s92, {A_W}\ns_add_u32 s92, s92, {WS_AO}\ns_lshl_b32 s31, s6, 13\ns_add_u32 s86, s92, s31\ns_add_u32 s87, s86, 4096")
    for c in range(2, D0): xb_burst(c)
    ptl = list(range(64)) if pt else []
    def pretouch(n):
        for _ in range(n):
            if ptl: e(f"s_load_dword s100, s[46:47], {ptl.pop(0) * 128}")
    if pt:
        e.lg0()
        e("s_add_u32 s46, s62, s86\ns_addc_u32 s47, s63, 0")
        pretouch(pt0)
    def w_issue(n, mt):
        c, jj = n >> 2, n & 3
        kind, off = wslot[n]
        e(f"s_add_u32 m0, s{89 if kind == 'c' else 79}, {off + mt*1024}\ns_add_u32 s83, s{72+c}, {16*jj*3584}")
        e.vmem(f"buffer_load_dwordx4 v7, s[{16+8*mt}:{19+8*mt}], s83 offen lds", ("w", n))
    FS = [24, 48]
    def reads(n):
        fs = FS[n & 1]; c, jj = n >> 2, n & 3
        xb = (10 + jj) if c < 4 else (14 + jj)
        xo = (c & 3) * CH
        kind, wo = wslot[n]
        wb = 125 if kind == "c" else 9
        X = lambda rt: (f"ds_read_b128 v[{fs+4*rt}:{fs+4*rt+3}], v{xb} offset:{xo + rt*4096}", ("X", n, rt))
        Wr = lambda mt, u2: (f"ds_read_b64_tr_b16 v[{fs+16+4*mt+2*u2}:{fs+17+4*mt+2*u2}], v{wb} offset:{wo + mt*1024 + u2*256}", ("W", n))
        return [Wr(0, 0), Wr(0, 1), X(0), Wr(1, 0), Wr(1, 1), X(1), X(2), X(3)]
    for sg in range(8):
        tags = {("x", sg)}
        if sg == 1: tags.add("ep")
        e.vm_wait(tags)
        if sg == 0 and not pt: e.lg0()
        if sg == 7:
            e.vm_wait({("w", 0)})
            for s, t in reads(0): e.lds(s, t)
        if not pt or sg == 7: st(e, f"b{sg}")
        e("s_barrier")
        if sg + D0 < 7: xb_burst(sg + D0)
        if 3 <= sg < 7:
            w_issue(sg - 3, 0); w_issue(sg - 3, 1)
        if sg == 1: e("v_readfirstlane_b32 s84, v120\ns_add_u32 s84, s84, 1\ns_max_u32 s84, s84, 1")
        if sg < 7: pretouch(ptn)
        if sg == 5: wd_setup(2, 12)
        if sg == 6:
            e(f"s_bitcmp1_b32 s4, 1\ns_cselect_b32 s8, s44, s42\ns_cselect_b32 s9, s45, s43\ns_and_b32 s9, s9, 0xffff\ns_mov_b32 s10, {448*896}")
            e(f"s_mul_i32 s29, s91, {64*896}\ns_and_b32 s30, s4, 1\ns_lshl_b32 s28, s85, 2\ns_add_u32 s94, s28, 2\ns_add_u32 s28, s28, s30\ns_cmp_eq_u32 s30, 0\ns_cselect_b32 s94, s94, 3")
            e("s_lshl_b32 s28, s28, 7\ns_add_u32 s28, s28, s29\ns_lshl_b32 s94, s94, 7\ns_add_u32 s94, s94, s29")
            e("v_lshrrev_b32 v4, 3, v0\nv_mul_u32_u24 v4, 0x380, v4\nv_and_b32 v5, 7, v0\nv_lshrrev_b32 v6, 4, v0\nv_xor_b32 v5, v5, v6\nv_lshlrev_b32 v5, 4, v5")
            e(f"v_xor_b32 v6, 64, v5\nv_add_u32 v5, v4, v5\nv_add_u32 v6, v4, v6\nv_add_u32 v6, {8*896-1024}, v6")
    assert not ptl
    w_issue(4, 0); w_issue(4, 1)
    CS = 72; T = 104
    cs_rd = [("ds_read_b32 v121, v19 offset:16", "cs")] + [(f"ds_read_b32 v{20+rt}, v123 offset:{rt*128}", "cs") for rt in range(4)]
    cs_rd += [(f"ds_read_b128 v[{CS+16*mt+4*q}:{CS+16*mt+4*q+3}], v122 offset:{mt*128 + q*32}", "cs") for mt in range(2) for q in range(4)]
    p2 = []
    def p_(s): p2.extend(s.split("\n"))
    p_("v_bfe_u32 v112, v0, 2, 2\nv_lshrrev_b32 v113, 5, v0\nv_lshl_add_u32 v113, v113, 2, v112\nv_lshlrev_b32 v113, 7, v113")
    p_("s_lshr_b32 s31, s4, 1\nv_lshrrev_b32 v112, 1, v112\nv_xor_b32 v112, s31, v112\nv_lshl_add_u32 v113, v112, 6, v113")
    p_("v_bfe_u32 v112, v0, 4, 1\nv_lshl_add_u32 v113, v112, 5, v113\nv_and_b32 v112, 3, v0\nv_lshl_add_u32 v113, v112, 3, v113\nv_xor_b32 v112, 64, v113")
    p_(f"s_lshl_b32 s30, s31, 13\ns_lshl_b32 s31, s31, 12\ns_add_u32 s31, s31, {RING}")
    p_("v_add_u32 v108, s30, v113\nv_add_u32 v109, s30, v112\nv_add_u32 v110, s31, v113\nv_add_u32 v111, s31, v112\nv_add_u32 v112, 0x10000, v108\nv_add_u32 v113, 0x10000, v109")
    p_(f"s_lshl_b32 s93, s5, 1\ns_add_u32 s93, s93, s85\ns_lshl_b32 s93, s93, 10\ns_add_u32 s93, s93, {WS_FO}")
    p_(f"s_and_b32 s31, s4, 1\ns_mul_i32 s31, s31, {A_W}\ns_sub_u32 s92, s92, s31")
    p_(f"s_mul_i32 s31, s85, {7*8192}\ns_add_u32 s92, s92, s31\ns_xor_b32 s31, s85, 1\ns_lshl_b32 s31, s31, 11\ns_add_u32 s92, s92, s31")
    p_(f"s_lshl_b32 s90, s98, 13\ns_add_u32 s90, s90, s92\ns_add_u32 s92, s92, {7*8192}\ns_add_u32 s71, s90, {A_W}")
    p_("s_lshl_b32 s29, s85, 6\ns_and_b32 s31, s4, 1\ns_lshl_b32 s31, s31, 5\ns_add_u32 s29, s29, s31\ns_lshl_b32 s30, s5, 7\ns_add_u32 s30, s30, s29")
    p_(f"v_lshlrev_b32 v117, 4, v21\nv_add_u32 v114, s30, v117\ns_lshl_b32 s29, s29, 2\ns_add_u32 s29, s29, {STAT}\nv_lshl_add_u32 v117, v117, 2, s29")
    p_("s_lshl_b32 s29, s91, 6\ns_lshr_b32 s31, s4, 1\ns_lshl_b32 s31, s31, 5\ns_add_u32 s29, s29, s31\nv_and_b32 v115, 31, v0\nv_add_u32 v115, s29, v115")
    p_("v_mul_u32_u24 v114, 0x380, v114\nv_lshlrev_b32 v115, 1, v115\nv_add_u32 v114, v114, v115\nv_lshlrev_b32 v116, 1, v114")
    for q in range(1, 8): p_(f"s_movk_i32 s{32+q}, {q*3584}")
    p_(f"s_mul_i32 s40, s5, 7\ns_add_u32 s40, s40, s91\ns_lshl_b32 s40, s40, 1\ns_add_u32 s40, s40, s85\ns_lshl_b32 s40, s40, 15\ns_add_u32 s40, s40, s89\ns_xor_b32 s41, s40, 0x8000\ns_add_u32 s40, s40, {WS_PX + 16384}\ns_add_u32 s41, s41, {WS_PX + 16384}")
    slow = []; slow2 = []; slow3 = []
    for n in range(28):
        fs = FS[n & 1]
        rd = reads(n + 1) if n < 27 else list(cs_rd)
        if n < 27: e.vm_wait({("w", n + 1)})
        dq = [("w", m, mt) for m in wissue[n] for mt in range(2)]
        for k in range(9):
            if wdslot[k][1] - 1 == n: dq += [("d", k, 0), ("d", k, 1)]
        if nowd: dq = [x for x in dq if x[0] != "d"]
        if 13 <= n <= 26 and not noc: dq.append(("c", n - 13, 0))
        if n == 27 and not noc: dq += [("c", 14, 0), ("c", 15, 0)]
        gaps = {0: (), 1: (4,), 2: (2, 5), 3: (1, 4, 7), 4: (1, 3, 5, 7)}[len(dq)]
        for i in range(8):
            rt, mt = i >> 1, i & 1
            if i == 0: e.lg_wait({("W", n), ("X", n, 0)})
            elif mt == 0: e.lg_wait({("X", n, rt)})
            e(mfma(128 + 64*mt + 16*rt, fs + 16 + 4*mt, fs + 4*rt, n == 0))
            k = 1 if n < 27 else 2
            for s, t in rd[:k]: e.lds(s, t)
            rd = rd[k:]
            if n in (5, 9, 13, 17, 21, 25) and i == 0:
                l = e.newlabel("PG")
                e(f"v_readfirstlane_b32 s82, v104\ns_cmp_lt_u32 s82, {n >> 2}\ns_cbranch_scc1 {l}")
                e.label(l + "_r")
                slow.append((l, n >> 2))
            if i in gaps and dq:
                kd_, a1, a2 = dq.pop(0)
                if kd_ == "w": w_issue(a1, a2)
                elif kd_ == "d": wd_half(a1, a2)
                else:
                    e(f"s_add_u32 m0, s89, {C0 + (a1 >> 2)*CH + (a1 & 2)*1024}\ns_add_u32 s83, s{28 if a1 < 8 else 94}, {((a1 & 7) >> 1)*16*896}")
                    e.vmem(f"buffer_load_dwordx4 v{5 + (a1 & 1)}, s[8:11], s83 offen" + (" offset:1024" if a1 & 1 else "") + " lds", ("c", a1 >> 3))
            if i == 6 and (n & 3) == 3:
                if n == 23: e.vm_wait({("c", 0)})
                e(f"v_mov_b32 v126, {(n >> 2) + 1}")
                e.lds("ds_write_b32 v19, v126")
            if n in (4, 8, 12, 16, 20, 24):
                if i == 2: e.lds("ds_read_b128 v[104:107], v8", "pg")
                if i == 6:
                    e.lg_wait({"pg"})
                    e("v_min_u32 v104, v104, v105\nv_min3_u32 v104, v104, v106, v107")
            if 1 <= n < 27 and i not in gaps and i != 0 and len(gaps) < 4:
                if p2: e(p2.pop(0))
        assert not rd and not dq
        if (fine and (n & 3) == 3) or n == 27: st(e, f"k{n}")
    assert not p2
    e.lg0()
    e("v_readfirstlane_b32 s97, v121\ns_cmp_lg_u32 s97, 0\ns_cbranch_scc1 K_csok")
    def body():
        for s, t in cs_rd: e(s)
        e("s_waitcnt lgkmcnt(0)\nv_readfirstlane_b32 s97, v121")
    spin(e, body, "s_cmp_lg_u32 s97, 0")
    e.label("K_csok")
    st(e, "cs")
    for rt in range(4):
        G, U = 128 + 16*rt, 192 + 16*rt
        mp = 20 + (rt & 2)
        sel = ("op_sel:[0,1,0] op_sel_hi:[1,1,1]" if rt & 1 else "op_sel_hi:[1,0,1]") + " neg_lo:[1,0,0] neg_hi:[1,0,0]"
        for h in range(2):
            g = 2*rt + h
            tt = 24 + 4 * g
            rs = range(8*h, 8*h + 8, 2)
            if g == 7:
                e.lds("ds_read_b128 v[104:107], v8", "pg")
                e.lds("ds_read_b32 v121, v8 offset:88", "pg")
            for r in rs:
                e(f"v_pk_fma_f32 v[{G+r}:{G+r+1}], v[{CS+r}:{CS+r+1}], v[{mp}:{mp+1}], v[{G+r}:{G+r+1}] {sel}")
                e(f"v_pk_fma_f32 v[{U+r}:{U+r+1}], v[{CS+16+r}:{CS+17+r}], v[{mp}:{mp+1}], v[{U+r}:{U+r+1}] {sel}")
            for r in rs: e(f"v_max_f32 v{G+r}, 0, v{G+r}\nv_max_f32 v{G+r+1}, 0, v{G+r+1}")
            for r in rs: e(f"v_pk_mul_f32 v[{G+r}:{G+r+1}], v[{G+r}:{G+r+1}], v[{U+r}:{U+r+1}]")
            for r in rs: e(f"v_cvt_pk_bf16_f32 v{tt + ((r - 8*h) >> 1)}, v{G+r}, v{G+r+1}")
            dual([f"buffer_store_dwordx4 v[{tt}:{tt+3}], v18, s[20:23], s{86 + h} offen offset:{rt*1024}"], "hh", bulk & 1)
            if g == 7:
                e.vm_wait({("c", 1)})
                e.lds("ds_write_b32 v19, v126 offset:32")
                e.lg_wait({"pg"})
                l = e.newlabel("PG")
                e(f"v_min_u32 v104, v104, v105\nv_min3_u32 v104, v104, v106, v107\ns_nop 0\nv_readfirstlane_b32 s82, v104\ns_cmp_lt_u32 s82, 7\ns_cbranch_scc1 {l}")
                e.label(l + "_r")
                slow.append((l, 7))
    l = e.newlabel("CP")
    e(f"v_readfirstlane_b32 s82, v121\ns_cmp_lt_u32 s82, 4\ns_cbranch_scc1 {l}")
    e.label(l + "_r")
    slow2.append((l, 8, 88, "s_cmp_ge_u32 s82, 4"))
    st(e, "epi")
    e("s_setprio 0")
    XR, MR, RR = 56, 72, 88
    for q in range(4):
        e.lds(f"ds_read_b128 v[{RR+4*q}:{RR+4*q+3}], v117 offset:{512+16*q}")
    e("s_and_b32 s31, s4, 1\ns_lshl_b32 s31, s31, 10\nv_add_u32 v10, s31, v18\nv_add_u32 v11, 0x1000, v10")
    e("s_lshl_b32 s31, s91, 7\ns_lshl_b32 s30, s4, 2\ns_add_u32 s31, s31, s30\nv_mov_b32 v16, s31\nv_mov_b32 v17, s84")
    e("v_and_b32 v14, 7, v0\nv_min_u32 v14, 6, v14\nv_lshlrev_b32 v14, 7, v14\nv_bfe_u32 v15, v0, 3, 1\nv_lshl_add_u32 v14, v15, 2, v14\ns_and_b32 s30, s30, 8\nv_add_u32 v14, s30, v14")
    e(f"s_add_u32 s31, s89, {SC}\nv_add_u32 v4, s31, v18\nv_xor_b32 v5, 0x2000, v4\nv_xor_b32 v6, 8, v19\nv_xor_b32 v9, 4, v19\nv_add_u32 v7, {6*CH + 2048 - SC}, v4")
    srd(e, 16, 58, 2048 * 1792)
    e.lg0()
    for r in range(16): e(f"v_mul_f32 v{RR+r}, v{RR+r}, v{RR+r}")
    e.vm0()
    e("s_mov_b64 exec, 1")
    dual(["buffer_store_dword v17, v16, s[20:23], s93 offen"], "fl")
    e("s_mov_b64 exec, -1")
    st(e, "hhflag")
    for k in range(9, 14): wd_dma(k, 2, 12)
    e("s_mov_b64 exec, 0xffff")
    def body():
        e("buffer_load_dword v17, v14, s[20:23], s93 offen sc1\ns_waitcnt vmcnt(0)\nv_cmp_eq_u32 vcc, s84, v17\ns_nop 1")
    spin(e, body, "s_cmp_eq_u64 vcc, exec", sleep=2)
    e("s_mov_b64 exec, -1")
    e.vm = []
    e.lds("ds_write_b32 v19, v126 offset:112")
    st(e, "hhseen")
    NT = 56
    def areg(t): return 192 + 4*(t % NA)
    def a_issue(t):
        sub = t & 3
        if sub == 0 and t > 0:
            e(f"s_add_u32 s90, s90, 8192\ns_cmp_ge_u32 s90, s92\ns_cselect_b32 s82, {7*8192}, 0\ns_sub_u32 s90, s90, s82")
            if t == 28: e("s_xor_b32 s90, s90, 0x800\ns_xor_b32 s92, s92, 0x800")
            e(f"s_add_u32 s71, s90, {A_W}")
        r = areg(t)
        e.vmem(f"buffer_load_dwordx4 v[{r}:{r+3}], v{10 + (sub & 1)}, s[20:23], s{71 if sub >> 1 else 90} offen sc1", ("A", t))
    def breg(t): return 24 + 8*(t % 4)
    def b_list(t):
        u = (t % 28) >> 2; sub = t & 3
        kind, off = wdslot[2*u + (sub & 1)][0]
        if kind == "r": bs = (110, 111); off += (sub >> 1) * 2048
        else:
            off += (sub >> 1) * 4096
            bs = (108, 109)
            if off >= 4*CH: bs = (112, 113); off -= 65536
        r = breg(t)
        return [(f"ds_read_b64_tr_b16 v[{r+4*b+2*u2}:{r+4*b+2*u2+1}], v{bs[b]} offset:{off + u2*1024}", ("B", t)) for b in range(2) for u2 in range(2)]
    for t in range(NA - 1): a_issue(t)
    for t in range(3):
        for s, tg in b_list(t): e.lds(s, tg)
    FO, OW = 128, 160
    side = []
    def S_(f): side.append(f)
    def both_wait(t):
        nv = e.vm_need({("A", t)})
        idx = [i for i, x in enumerate(e.lg) if x == ("B", t)]
        parts = []
        if nv is not None:
            parts.append(f"vmcnt({nv})"); e.vm = e.vm[len(e.vm) - nv:] if nv else []
        if idx:
            nl = min(15, len(e.lg) - 1 - idx[-1]); parts.append(f"lgkmcnt({nl})"); e.lg = e.lg[len(e.lg) - nl:] if nl else []
        if parts: e("s_waitcnt " + " ".join(parts))
    RV = 224
    YV = FO
    def recv_one(g, dst, sb): e(f"buffer_load_dwordx4 v[{dst+4*g}:{dst+4*g+3}], v18, s[20:23], s{sb} offen offset:{g*1024} sc1")
    e("s_sub_u32 s42, s40, 16384")
    nop = lambda: None
    for t in range(NT):
        acc = FO if t < 28 else OW
        def mkchk(tag, pfx, cond_bad, addr, off, cond_ok):
            def chk():
                e.lg_wait({tag})
                l = e.newlabel(pfx)
                e(f"v_readfirstlane_b32 s82, v121\n{cond_bad}\ns_cbranch_scc1 {l}")
                e.label(l + "_r")
                slow2.append((l, addr, off, cond_ok))
            return chk
        if t == 10: S_(lambda: e.lds("ds_read_b32 v121, v9 offset:112", "wl"))
        if t == 13: S_(mkchk("wl", "WL", "s_cmp_eq_u32 s82, 0", 9, 112, "s_cmp_lg_u32 s82, 0"))
        if t == 24: S_(lambda: e.lds("ds_read_b32 v121, v8 offset:84", "yx"))
        if t == 27:
            def chk():
                e.lg_wait({"yx"})
                l = e.newlabel("YX")
                e(f"v_readfirstlane_b32 s82, v121\ns_cmp_lt_u32 s82, 4\ns_cbranch_scc1 {l}")
                e.label(l + "_r")
                slow2.append((l, 8, 84, "s_cmp_ge_u32 s82, 4"))
            S_(chk)
        if t == t0:
            S_(nop)
            for g in range(0, 4, 2):
                def wr(g=g):
                    for gg in (g, g + 1): e.lds(f"ds_write_b128 v4, v[{FO+16+4*gg}:{FO+19+4*gg}] offset:{CH + gg*1024}")
                    if g == 2: e.lds("ds_write_b32 v19, v126 offset:48")
                S_(wr)
        if t == t0 + 3:
            def rdx():
                e.lds("ds_read_b32 v121, v6 offset:48", "ex")
                for g in range(4): e.lds(f"ds_read_b128 v[{FO+16+4*g}:{FO+19+4*g}], v5 offset:{CH + g*1024}", "ex")
            S_(rdx)
        if t == t0 + 5:
            def chk2():
                e.lg_wait({"ex"})
                l = e.newlabel("PX")
                e(f"v_readfirstlane_b32 s82, v121\ns_cmp_eq_u32 s82, 0\ns_cbranch_scc1 {l}")
                e.label(l + "_r")
                slow3.append(l)
                e.lds("ds_write_b32 v19, v126 offset:64")
            S_(chk2)
            for g in range(4):
                def grp(g=g):
                    for r in range(4*g, 4*g + 4): e(f"v_add_f32 v{FO+r}, v{FO+r}, v{FO+16+r}")
                def grp2(g=g):
                    for r in (4*g, 4*g + 2): e(f"v_cvt_pk_bf16_f32 v{FO+16+r}, v{FO+r}, v{FO+r+1}\nv_mov_b32 v{FO+17+r}, s84")
                def grp3(g=g):
                    stores([f"buffer_store_dwordx4 v[{FO+16+4*g}:{FO+19+4*g}], v18, s[20:23], s41 offen offset:{g*1024}"], "px")
                S_(grp); S_(lambda g=g, a=grp2, b=grp3: (a(), b()))
                for _ in range(gap): S_(nop)
        if t == 40:
            S_(lambda: e.lds("ds_read_b32 v121, v19 offset:128", "yd"))
            for g in range(0, 4, 2): S_(lambda g=g: [(recv_one(gg, YV, 42), e.vm.append("ry")) for gg in (g, g + 1)])
            S_(mkchk("yd", "YD", "s_cmp_eq_u32 s82, 0", 19, 128, "s_cmp_lg_u32 s82, 0"))
            S_(lambda: [e.lds(f"ds_read_b128 v[{MR+4*g}:{MR+3+4*g}], v4 offset:{g*1024}", "sx") for g in range(4)])
            S_(lambda: [e.lds(f"ds_read_b128 v[{104+4*g if g == 0 else 12}:{107+4*g if g == 0 else 15}], v7 offset:{g*1024}", "sx") for g in range(2)])
            S_(lambda: e.lds("ds_read_b32 v121, v6 offset:64", "sx"))
            S_(nop)
            for g in range(4):
                def ux(g=g):
                    if g == 0: e.lg_wait({"sx"})
                    for r in (2*g, 2*g + 1):
                        src = 104 + r if r < 4 else 12 + r - 4
                        e(f"v_lshlrev_b32 v{XR+2*r}, 16, v{src}\nv_and_b32 v{XR+2*r+1}, 0xffff0000, v{src}")
                S_(ux)
        if t == tr:
            for g in range(0, 4, 2): S_(lambda g=g: [(recv_one(gg, RV, 40), e.vm.append("rv")) for gg in (g, g + 1)])
        both_wait(t)
        bl = b_list(t + 3) if t + 3 < NT else []
        for b in range(2):
            e(mfma(acc + 16*b, areg(t), breg(t) + 4*b, t % 28 == 0))
            if b == 0 and t + NA - 1 < NT: a_issue(t + NA - 1)
            for s, tg in bl[2*b:2*b + 2]: e.lds(s, tg)
            if side: side.pop(0)()
        if t == 27: st(e, "ofor")
    assert not side
    def recv_check(dst):
        e(f"v_min3_u32 v1, s84, v{dst+1}, v{dst+3}\nv_max3_u32 v2, s84, v{dst+1}, v{dst+3}")
        for g in range(1, 4): e(f"v_min3_u32 v1, v1, v{dst+4*g+1}, v{dst+4*g+3}\nv_max3_u32 v2, v2, v{dst+4*g+1}, v{dst+4*g+3}")
        e("v_cmp_eq_u32 vcc, v1, v2\ns_nop 1")
    def recv_finish(dst, sb, tag):
        l = e.newlabel("RV")
        e.vm_wait({tag})
        recv_check(dst)
        e(f"s_cmp_eq_u64 vcc, -1\ns_cbranch_scc1 {l}")
        def body():
            for g in range(4): recv_one(g, dst, sb)
            e("s_waitcnt vmcnt(0)")
            recv_check(dst)
        spin(e, body, "s_cmp_eq_u64 vcc, -1", sleep=1)
        e.label(l)
        for r in range(0, 16, 2): e(f"v_and_b32 v{dst+r+1}, 0xffff0000, v{dst+r}\nv_lshlrev_b32 v{dst+r}, 16, v{dst+r}")
    e.lg0()
    st(e, "oloop")
    l = e.newlabel("RX")
    e(f"v_readfirstlane_b32 s82, v121\ns_cmp_eq_u32 s82, 0\ns_cbranch_scc1 {l}")
    e.label(l + "_r")
    slow2.append((l, 6, 64, "s_cmp_lg_u32 s82, 0"))
    e("s_mov_b32 s28, 0xbfb8aa3b\ns_mov_b32 s29, 0xbfb8aa3b\ns_nop 5")
    for g in range(4): e(f"ds_write_b128 v4, v[{OW+16+4*g}:{OW+19+4*g}] offset:{CH + g*1024}")
    pk = lambda op, d, a, b, x="": e(f"v_pk_{op}_f32 v[{d}:{d+1}], v[{a}:{a+1}], {b} {x}".rstrip())
    R2 = range(0, 16, 2)
    O, PB, EX = OW, OW + 16, 24
    recv_finish(YV, 42, "ry")
    for r in R2: pk("add", MR+r, MR+r, f"v[{YV+r}:{YV+r+1}]")
    e.lg0()
    e("s_barrier")
    st(e, "fbar")
    for g in range(4): e(f"ds_read_b128 v[{EX+4*g}:{EX+3+4*g}], v5 offset:{CH + g*1024}")
    recv_finish(RV, 40, "rv")
    st(e, "orecv")
    for r in R2: pk("add", O+r, O+r, f"v[{RV+r}:{RV+r+1}]")
    e("s_waitcnt lgkmcnt(0)")
    for r in R2: pk("add", O+r, O+r, f"v[{EX+r}:{EX+r+1}]")
    for r in R2: pk("mul", O+r, O+r, f"v[{RR+r}:{RR+r+1}]")
    for r in R2: pk("mul", PB+r, O+r, "s[28:29]")
    for r in range(16): e(f"v_exp_f32 v{PB+r}, v{PB+r}")
    for r in R2: pk("mul", O+r, O+r, f"v[{MR+r}:{MR+r+1}]")
    for r in R2: pk("add", PB+r, PB+r, "1.0", "op_sel_hi:[1,0]")
    for r in range(16): e(f"v_rcp_f32 v{PB+r}, v{PB+r}")
    for r in R2:
        e(f"v_pk_fma_f32 v[{PB+r}:{PB+r+1}], v[{PB+r}:{PB+r+1}], v[{O+r}:{O+r+1}], v[{XR+r}:{XR+r+1}]")
        for rr in (r, r + 1):
            so = "0" if rr < 2 else f"s{32 + (rr >> 1)}"
            off = (rr & 1) * 1792
            e(f"buffer_store_dword v{PB+rr}, v116, s[16:19], {so} offen" + (f" offset:{off}" if off else "") + " " + outfl)
    e("s_cmp_lg_u32 s5, 15\ns_cbranch_scc1 K_nobump\ns_or_b32 s28, s6, s4\ns_cmp_lg_u32 s28, 0\ns_cbranch_scc1 K_nobump")
    e(f"v_mov_b32 v8, 0\nv_mov_b32 v9, s84\ns_mov_b32 s28, {WS_EP}\ns_mov_b64 exec, 1")
    e("buffer_store_dword v9, v8, s[20:23], s28 offen sc1")
    e("s_mov_b64 exec, -1")
    e.label("K_nobump")
    if pad:
        if padwg >= 0: e(f"s_cmp_lg_u32 s2, {padwg}\ns_cbranch_scc1 K_END")
        e.label("K_pad")
        e(f"s_memrealtime s[28:29]\ns_waitcnt lgkmcnt(0)\ns_sub_u32 s28, s28, s{100 if PADAT else 96}\ns_cmp_lt_u32 s28, {pad}\ns_cbranch_scc1 K_pad")
    st.dump(e); info["F"] = st.names
    e("s_endpgm")
    for l in slow3:
        e.label(l)
        lds_wait(6, 48, "s_cmp_lg_u32 s82, 0", 121, sleep=0)
        for g in range(4): e(f"ds_read_b128 v[{FO+16+4*g}:{FO+19+4*g}], v5 offset:{CH + g*1024}")
        e(f"s_waitcnt lgkmcnt(0)\ns_branch {l}_r")
    for l, addr, off, cond in slow2:
        e.label(l)
        lds_wait(addr, off, cond, 121, sleep=0)
        e(f"s_branch {l}_r")
    for l, need in slow:
        e.label(l)
        def body():
            e("ds_read_b128 v[104:107], v8\ns_waitcnt lgkmcnt(0)\nv_min_u32 v104, v104, v105\nv_min3_u32 v104, v104, v106, v107\ns_nop 0\nv_readfirstlane_b32 s82, v104")
        spin(e, body, f"s_cmp_ge_u32 s82, {need}", sleep=0)
        e(f"s_branch {l}_r")

    e.vm = []; e.lg = []
    e.label("K_S")
    st = Stamper(stamps, 143)
    e(f"s_setprio {sprio}")
    e("v_and_b32 v1, 19, v0\nv_bfe_u32 v2, v0, 2, 1\nv_lshl_add_u32 v1, v2, 3, v1\nv_bfe_u32 v2, v0, 3, 1\nv_lshl_add_u32 v1, v2, 2, v1\ns_lshl_b32 s30, s6, 5\nv_add_u32 v1, s30, v1\nv_lshlrev_b32 v1, 1, v1\nv_and_b32 v1, -4, v1")
    e("s_lshl_b32 s30, s91, 7\ns_and_b32 s31, s4, 2\ns_lshl_b32 s31, s31, 5\ns_add_u32 s30, s30, s31\nv_and_b32 v7, 30, v0\nv_lshl_add_u32 v7, v7, 1, s30\nv_mov_b32 v247, 0")
    e(f"v_add_u32 v23, s89, v20\nv_add_u32 v24, {RING}, v20")
    e("s_lshl_b32 s31, s4, 1\nv_xor_b32 v6, s31, v22")
    for jj in range(4):
        e(f"v_xor_b32 v5, {2*jj}, v6\nv_lshl_add_u32 v{10+jj}, v5, 4, v23\nv_add_u32 v{14+jj}, 0x10000, v{10+jj}\nv_lshl_add_u32 v{240+jj}, v5, 4, v24")
    e("s_mov_b32 s94, 0x3f803f80\nv_mov_b32 v34, 0\nv_mov_b32 v35, 0\nv_mov_b32 v36, 0\nv_mov_b32 v37, 0")
    e(f"s_mov_b32 s22, {WS_END}\ns_mov_b32 s23, 0x20000\ns_mov_b32 s82, {WS_EP}")
    e(f"v_mov_b32 v18, {FLG}\nv_mov_b32 v19, 1\ns_lshl_b32 s30, s4, 2\ns_add_u32 s30, s30, {FLG}\nv_mov_b32 v20, s30")
    e("s_waitcnt lgkmcnt(0)")
    e.vmem("global_load_dword v244, v1, s[34:35]", "par")
    e.vmem("global_load_dword v245, v1, s[36:37]", "par")
    e.vmem("global_load_dword v246, v1, s[46:47]", "par")
    e.vmem("global_load_dword v142, v7, s[48:49]", "par")
    e("s_mov_b32 s20, s62\ns_and_b32 s21, s63, 0xffff\ns_mov_b64 exec, 1")
    e.vmem("buffer_load_dword v247, v247, s[20:23], s82 offen sc1", "par")
    e("s_mov_b64 exec, -1")
    e(f"s_mul_i32 s30, s99, {ra}\ns_sub_u32 s30, 7, s30\ns_cmp_ge_u32 s30, 7\ns_cselect_b32 s30, 0, s30\ns_lshl_b32 s30, s30, 14\ns_lshl_b32 s31, s85, 13\ns_add_u32 s30, s30, s31\ns_and_b32 s31, s4, 1\ns_lshl_b32 s31, s31, 12\ns_add_u32 s30, s30, s31")
    e("v_bfe_u32 v4, v0, 2, 2\nv_lshl_add_u32 v4, v21, 2, v4\nv_lshrrev_b32 v5, 1, v4\nv_lshlrev_b32 v4, 7, v4\nv_bfe_u32 v7, v0, 4, 1\nv_lshlrev_b32 v7, 1, v7\nv_bfe_u32 v8, v0, 1, 1\nv_add_u32 v7, v7, v8")
    e("s_and_b32 s31, s4, 2\ns_lshl_b32 s31, s31, 1\nv_add_u32 v7, s31, v7\nv_xor_b32 v7, v7, v5\nv_lshl_add_u32 v4, v7, 4, v4\nv_and_b32 v7, 1, v0\nv_lshl_add_u32 v4, v7, 3, v4\nv_add_u32 v254, s30, v4\nv_xor_b32 v255, 64, v254")
    e("v_lshlrev_b32 v8, 4, v7\nv_xor_b32 v8, 16, v8")
    e("s_bitcmp1_b32 s4, 0\ns_cselect_b64 s[64:65], -1, 0")
    e("s_bitcmp1_b32 s4, 1\ns_cselect_b64 s[66:67], -1, 0\ns_mov_b32 s68, 0\ns_mov_b32 s69, -1")
    e("s_lshr_b32 s87, s4, 1\ns_lshl_b32 s73, s85, 6")
    K = []
    def k_(s): K.extend(s.split("\n"))
    for r in (244, 245, 246, 142): k_(f"v_lshlrev_b32 v{r}, v8, v{r}\nv_and_b32 v{r}, 0xffff0000, v{r}")
    k_(f"v_mul_f32 v246, {LOG2E}, v246\nv_exp_f32 v246, v246\ns_nop 0\nv_cvt_pk_bf16_f32 v246, v246, v246\nv_and_b32 v246, 0xffff0000, v246")
    k_(f"v_mul_f32 v5, v246, v244\nv_mul_f32 v6, v246, v245\nv_mul_f32 v5, {LOG2E}, v5\nv_exp_f32 v5, v5")
    k_("v_mul_f32 v6, 0.15915494, v6\nv_rndne_f32 v9, v6\nv_sub_f32 v6, v6, v9\nv_cos_f32 v22, v6\nv_sin_f32 v23, v6\ns_nop 0")
    k_("v_mul_f32 v22, v22, v5\nv_mul_f32 v23, v23, v5")
    k_("v_mul_f32 v5, v244, v244\nv_fma_f32 v5, v245, v245, v5\nv_rcp_f32 v5, v5\nv_add_f32 v6, -1.0, v22")
    k_("v_mul_f32 v30, v6, v244\nv_fma_f32 v30, v23, v245, v30\nv_mul_f32 v31, v23, v244\nv_fma_f32 v31, -v6, v245, v31")
    k_("v_add_f32 v5, v5, v5\nv_mul_f32 v30, v30, v5\nv_mul_f32 v31, v31, v5\nv_xor_b32 v33, 0x80000000, v23")
    def csq(d, s): k_(f"v_mul_f32 v9, v{s}, v{s+1}\nv_mul_f32 v{d}, v{s}, v{s}\nv_fma_f32 v{d}, -v{s+1}, v{s+1}, v{d}\nv_add_f32 v{d+1}, v9, v9")
    def pwmul(mask):
        k_(f"v_cndmask_b32 v5, 1.0, v26, {mask}\nv_cndmask_b32 v6, 0, v27, {mask}")
        k_("v_mul_f32 v9, v28, v6\nv_mul_f32 v28, v28, v5\nv_fma_f32 v28, -v29, v6, v28\nv_fma_f32 v29, v29, v5, v9")
    csq(24, 22); csq(24, 24); csq(24, 24); csq(24, 24)
    k_("v_cndmask_b32 v28, 1.0, v24, s[68:69]\nv_cndmask_b32 v29, 0, v25, s[68:69]")
    csq(26, 24); pwmul("s[64:65]"); csq(26, 26); pwmul("s[66:67]"); csq(26, 26); csq(136, 26)
    QR, QI = 104, 120
    for j in range(16):
        pr, pi = (30, 31) if j == 0 else (QR + j - 1, QI + j - 1)
        k_(f"v_mul_f32 v{QR+j}, v22, v{pr}\nv_mul_f32 v{QI+j}, v22, v{pi}\nv_fmac_f32 v{QR+j}, v33, v{pi}\nv_fmac_f32 v{QI+j}, v23, v{pr}")
    k_("v_xor_b32 v31, 0x80000000, v31\nv_xor_b32 v32, 0x80000000, v30")
    UR, UI = 40, 56
    SF = [144, 192]
    def sreads(sg):
        fs = SF[sg & 1]; out = []
        for j in range(4):
            xb = (10 + j) if sg < 4 else (14 + j)
            out += [f"ds_read_b128 v[{fs+12*j}:{fs+12*j+3}], v{xb} offset:{(sg & 3)*CH}",
                    f"ds_read_b128 v[{fs+12*j+4}:{fs+12*j+7}], v{240+j} offset:{(sg % NR)*8192}",
                    f"ds_read_b128 v[{fs+12*j+8}:{fs+12*j+11}], v{240+j} offset:{(sg % NR)*8192+4096}"]
        return out
    def dots(fs):
        for j in range(4):
            for q in range(4): e(f"v_dot2c_f32_bf16 v37, v{fs+12*j+q}, v{fs+12*j+q}\nv_dot2c_f32_bf16 v36, s94, v{fs+12*j+q}")
        for q in range(4): e(f"v_dot2c_f32_bf16 v34, s94, v{fs+4+q}\nv_dot2c_f32_bf16 v35, s94, v{fs+8+q}")
    Z = []
    def z_(s): Z.extend(s.split("\n"))
    z_("v_mov_b32 v1, v36\nv_mov_b32 v2, v37\ns_nop 1")
    z_("v_permlane32_swap_b32 v36, v1\nv_permlane32_swap_b32 v37, v2\nv_permlane32_swap_b32 v34, v35\ns_nop 1")
    z_("v_add_f32 v34, v34, v35\nv_add_f32 v36, v36, v1\nv_add_f32 v37, v37, v2\nds_write_b32 v248, v34")
    z_("v_mul_f32 v36, 0x3b124925, v36\nv_mul_f32 v37, 0x3b124925, v37")
    z_("v_fma_f32 v37, -v36, v36, v37\nv_max_f32 v37, 0, v37\nv_cvt_pk_bf16_f32 v1, v37, v36")
    z_("v_and_b32 v36, 0xffff0000, v1\nv_lshlrev_b32 v37, 16, v1\nv_add_f32 v37, 0x3727c5ac, v37")
    z_("v_cvt_pk_bf16_f32 v37, v37, v37\nv_and_b32 v37, 0xffff0000, v37\nv_sqrt_f32 v37, v37\ns_nop 0")
    z_("v_cvt_pk_bf16_f32 v37, v37, v37\nv_and_b32 v37, 0xffff0000, v37\nv_rcp_f32 v37, v37\ns_nop 0")
    z_("v_cndmask_b32 v36, v36, v37, s[68:69]\nds_write_b32 v249, v36")
    e(f"s_lshl_b32 s30, s4, 2\ns_add_u32 s30, s30, {CSB}\nv_lshl_add_u32 v248, v0, 4, s30")
    tau_of_lane(e, 249, 2)
    e(f"s_lshl_b32 s30, s4, 7\ns_add_u32 s30, s30, {STAT}\nv_lshl_add_u32 v249, v249, 2, s30\nv_lshl_add_u32 v249, v21, 9, v249\nv_lshl_add_u32 v3, v21, 6, s30")
    e(f"v_and_b32 v250, 31, v0\nv_lshlrev_b32 v250, 4, v250\nv_add_u32 v250, {CSB}, v250")
    st(e, "b0")
    e("s_barrier")
    for x in sreads(0): e(x)
    e.vm_wait({"par"})
    for sg in range(7):
        fs = SF[sg & 1]
        if sg == 1:
            e("v_readfirstlane_b32 s84, v247\ns_add_u32 s84, s84, 1\ns_max_u32 s84, s84, 1")
            e(f"s_getreg_b32 s74, hwreg(HW_REG_XCC_ID, 0, 4)\ns_lshl_b32 s78, s5, 1\ns_add_u32 s78, s78, s85\ns_lshl_b32 s78, s78, 10\ns_add_u32 s78, s78, {WS_FH}\ns_add_u32 s75, s78, {WS_XID - WS_FH}")
            e("s_cmp_lg_u32 s4, 0\ns_cbranch_scc1 K_noxid")
            e("s_lshl_b32 s31, s91, 7\nv_mov_b32 v251, s31\nv_mov_b32 v252, s74\nv_mov_b32 v253, s84\ns_mov_b64 exec, 1")
            e("buffer_store_dwordx2 v[252:253], v251, s[20:23], s75 offen sc1\ns_mov_b64 exec, -1")
            e.label("K_noxid")
        e.lg0()
        if sg == 6:
            for j in range(4): e(f"ds_read_b64_tr_b16 v[{208+2*j}:{209+2*j}], v{254 + (j & 1)} offset:{j*1024}")
            dots(fs)
            e.lg0()
        st(e, f"b{sg+1}")
        e("s_barrier")
        rd = sreads(sg + 1) if sg < 6 else []
        for j in range(4):
            for acc, o in ((UR, 4), (UI, 8)):
                e(mfma(acc, fs+12*j, fs+12*j+o, sg == 0 and j == 0))
                for x in rd[:2]: e(x)
                nk = kint if rd else 4
                rd = rd[2:]
                for _ in range(nk):
                    if sg == 6:
                        if Z: e(Z.pop(0))
                    elif sg >= 1 and K: e(K.pop(0))
        if sg < 6: dots(fs)
    for x in Z: e(x)
    gen = [0]
    def ssync(extra=None):
        gen[0] += 1
        e("s_mov_b64 exec, 1\nds_add_u32 v18, v19 offset:80\ns_mov_b64 exec, -1")
        def body():
            e("ds_read_b32 v1, v18 offset:80")
            if extra: extra()
            e("s_waitcnt lgkmcnt(0)\nv_readfirstlane_b32 s82, v1")
        spin(e, body, f"s_cmp_ge_u32 s82, {4*gen[0]}", sleep=ssl)
        e.lg = []
    def wait_prog(n):
        def body():
            e("ds_read_b128 v[4:7], v18\ns_waitcnt lgkmcnt(0)\nv_min_u32 v4, v4, v5\nv_min3_u32 v4, v4, v6, v7\ns_nop 0\nv_readfirstlane_b32 s82, v4")
        spin(e, body, f"s_cmp_ge_u32 s82, {n}", sleep=wsl)
        e.lg = []
    M, R = 72, 88
    e(f"s_setprio {sprio2}")
    if sidle:
        def body():
            e("s_sleep 8\nds_read_b128 v[4:7], v18\ns_waitcnt lgkmcnt(0)\nv_min_u32 v4, v4, v5\nv_min3_u32 v4, v4, v6, v7\ns_nop 0\nv_readfirstlane_b32 s82, v4")
        spin(e, body, "s_cmp_ge_u32 s82, 7", sleep=1)
    TMP = 192
    for q in range(4): e(f"ds_read_b128 v[{M+4*q}:{M+4*q+3}], v3 offset:{16*q}")
    for q in range(4): e(f"ds_read_b128 v[{R+4*q}:{R+4*q+3}], v3 offset:{512+16*q}")
    e(f"s_lshl_b32 s30, s4, 9\ns_add_u32 s30, s30, {SUB}\nv_lshl_add_u32 v2, v0, 3, s30\nv_add_u32 v3, {7*256}, v2")
    ssync(lambda: e(f"ds_read_b128 v[{TMP}:{TMP+3}], v250\nds_read_b128 v[{TMP+4}:{TMP+7}], v250 offset:512"))
    st(e, "ss1")
    t = TMP
    e(f"v_add_f32 v{t}, v{t}, v{t+1}\nv_add_f32 v{t+2}, v{t+2}, v{t+3}\nv_add_f32 v{t+4}, v{t+4}, v{t+5}\nv_add_f32 v{t+6}, v{t+6}, v{t+7}\nv_add_f32 v34, -v{t}, -v{t+2}\nv_add_f32 v35, -v{t+4}, -v{t+6}")
    for j in range(16): e(f"v_fmac_f32 v{UR+j}, v34, v{M+j}\nv_fmac_f32 v{UI+j}, v35, v{M+j}")
    for j in range(16): e(f"v_mul_f32 v{UR+j}, v{UR+j}, v{R+j}\nv_mul_f32 v{UI+j}, v{UI+j}, v{R+j}")
    st(e, "fold")
    for j in range(1, 16):
        e(f"v_fmac_f32 v{UR+j}, v22, v{UR+j-1}\nv_fmac_f32 v{UI+j}, v22, v{UI+j-1}\nv_fmac_f32 v{UR+j}, v33, v{UI+j-1}\nv_fmac_f32 v{UI+j}, v23, v{UR+j-1}")
    st(e, "scan")
    e(f"ds_write2_b32 v3, v{UR+15}, v{UI+15} offset1:1")
    def step(dr, di, hr, hi, ur, ui, lr, li):
        e(f"v_fma_f32 v{dr}, v{lr}, v{hr}, v{ur}\nv_fma_f32 v{di}, v{lr}, v{hi}, v{ui}")
        e(f"v_fma_f32 v{dr}, -v{li}, v{hi}, v{dr}\nv_fma_f32 v{di}, v{li}, v{hr}, v{di}")
    def rdsub():
        for d in range(7): e(f"ds_read_b64 v[{TMP+2*d}:{TMP+1+2*d}], v2 offset:{d*256}")
    ssync(rdsub)
    st(e, "ss")
    for d in range(1, 7):
        dd = (38, 39) if d == 6 else (TMP + 2*d, TMP + 1 + 2*d)
        step(dd[0], dd[1], TMP - 2 + 2*d, TMP - 1 + 2*d, TMP + 2*d, TMP + 1 + 2*d, 24, 25)
    e("s_cmp_lg_u32 s4, 3\ns_cbranch_scc1 K_nopub")
    step(TMP, TMP + 2, 38, 39, UR + 15, UI + 15, 24, 25)
    e(f"v_mov_b32 v{TMP+1}, s84\nv_mov_b32 v{TMP+3}, s84")
    e(f"s_lshl_b32 s30, s6, 4\ns_add_u32 s30, s30, s5\ns_lshl_b32 s30, s30, 9\ns_add_u32 s30, s30, {WS_AGG - 512}")
    e("v_lshlrev_b32 v1, 4, v0\ns_mov_b32 exec_lo, 0")
    e(f"buffer_store_dwordx4 v[{TMP}:{TMP+3}], v1, s[20:23], s30 offen sc1")
    e("s_mov_b32 exec_lo, -1")
    e.label("K_nopub")
    st(e, "pub")
    for x in K: e(x)
    GR, GI = 72, 88
    for j in range(16):
        e(f"v_mul_f32 v{GR+j}, v30, v{UR+j}\nv_mul_f32 v{GI+j}, v32, v{UI+j}\nv_fmac_f32 v{GR+j}, v31, v{UI+j}\nv_fmac_f32 v{GI+j}, v31, v{UR+j}")
    AG = 40
    st(e, "g")
    for i in range(8): e(f"v_mov_b32 v{AG+4*i}, 0\nv_mov_b32 v{AG+4*i+1}, s84\nv_mov_b32 v{AG+4*i+2}, 0\nv_mov_b32 v{AG+4*i+3}, s84")
    e(f"s_lshl_b32 s90, s6, 11\ns_lshl_b32 s30, s4, 8\ns_add_u32 s90, s90, s30\ns_add_u32 s90, s90, {WS_CS}")
    e("v_and_b32 v34, 31, v0\nv_lshlrev_b32 v34, 3, v34\nv_lshl_add_u32 v34, v21, 10, v34")
    def cs_loads():
        e("buffer_load_dwordx2 v[8:9], v34, s[20:23], s90 offen sc1\nbuffer_load_dwordx2 v[140:141], v35, s[20:23], s75 offen sc1")
    cs_chk = "v_cmp_eq_u32 vcc, s84, v9\nv_cmp_eq_u32 s[28:29], s84, v141\ns_nop 1\ns_and_b64 vcc, vcc, s[28:29]"
    e("v_min_u32 v35, 6, v0\nv_lshlrev_b32 v35, 7, v35")
    cs_loads()
    e(f"s_lshl_b32 s30, s91, 7\ns_add_u32 s30, s30, s78\nv_mul_u32_u24 v1, {WS_FO - WS_FH}, v21")
    e("s_mov_b32 exec_lo, 1\ns_mov_b32 exec_hi, 1\nbuffer_load_dword v251, v1, s[20:23], s30 offen sc1\ns_mov_b64 exec, -1")
    e(f"s_lshl_b32 s92, s6, 4\ns_add_u32 s92, s92, s5\ns_lshl_b32 s92, s92, 9\ns_add_u32 s92, s92, {WS_AGG - 8192}\ns_add_u32 s93, s92, 4096\nv_lshlrev_b32 v3, 4, v0")
    def agg_loads():
        for i in range(8):
            l = e.newlabel("AL")
            e(f"s_cmp_lt_u32 s5, {15 - 2*i}\ns_cbranch_scc1 {l}")
            e(f"s_cmp_ge_u32 s5, {16 - 2*i}\ns_cselect_b32 exec_lo, -1, 0")
            e(f"buffer_load_dwordx4 v[{AG+4*i}:{AG+4*i+3}], v3, s[20:23], s{92 + (i >> 2)} offen offset:{1024*(i & 3)} sc1")
            e.label(l)
        e("s_mov_b32 exec_lo, -1")
    agg_loads()
    st(e, "aggi")
    SEL = 144
    tau_of_lane(e, 1, 2)
    e("v_lshlrev_b32 v2, 4, v21\nv_sub_u32 v1, v1, v2\nv_and_b32 v2, 1, v1\nv_lshlrev_b32 v2, 4, v2\nv_mov_b32 v4, 0x3f80\nv_lshlrev_b32 v2, v2, v4\nv_ashrrev_i32 v1, 1, v1")
    for q in range(0, 8, 2):
        e(f"v_cmp_eq_u32 vcc, {q}, v1\nv_cmp_eq_u32 s[30:31], {q+1}, v1\ns_nop 0\nv_cndmask_b32 v{SEL+q}, 0, v2, vcc\nv_cndmask_b32 v{SEL+q+1}, 0, v2, s[30:31]")
    e(f"s_mul_i32 s76, s5, {2*A_W}\ns_lshl_b32 s30, s6, 13\ns_add_u32 s76, s76, s30\ns_lshl_b32 s30, s4, 10\ns_add_u32 s76, s76, s30\ns_add_u32 s77, s76, {A_W}")
    def rnd(b):
        for r in range(0, 16, 2): e(f"v_cvt_pk_bf16_f32 v{b+r}, v{b+r}, v{b+r+1}")
        for r in range(0, 16, 2): e(f"v_and_b32 v{b+r+1}, 0xffff0000, v{b+r}\nv_lshlrev_b32 v{b+r}, 16, v{b+r}")
    e.vm0()
    st(e, "aggl")
    e("s_mov_b32 s95, 0")
    e.label("K_horner")
    e(f"v_min3_u32 v1, s84, v{AG+1}, v{AG+3}\nv_max3_u32 v2, s84, v{AG+1}, v{AG+3}")
    for i in range(1, 8):
        b = AG + 4*i
        src = (AG, AG + 2) if i == 1 else ((4, 5) if i % 2 == 0 else (6, 7))
        dst = (4, 5) if i % 2 == 1 else (6, 7)
        step(dst[0], dst[1], src[0], src[1], b, b + 2, 136, 137)
        e(f"v_min3_u32 v1, v1, v{b+1}, v{b+3}\nv_max3_u32 v2, v2, v{b+1}, v{b+3}")
    e("v_cmp_eq_u32 vcc, v1, v2\nv_mov_b32 v6, v4\nv_mov_b32 v7, v5\ns_cmp_eq_u64 vcc, -1\ns_cbranch_scc1 K_hok")
    e(f"s_add_u32 s95, s95, 1\ns_cmp_ge_u32 s95, {SPIN_MAX}\ns_cbranch_scc1 K_hok\ns_sleep 4")
    agg_loads()
    e("s_waitcnt vmcnt(0)\ns_branch K_horner")
    e.label("K_hok")
    st(e, "look")
    e("v_permlane32_swap_b32 v4, v6\nv_permlane32_swap_b32 v5, v7\ns_nop 0")
    step(6, 7, 4, 5, 6, 7, 26, 27)
    step(38, 39, 6, 7, 38, 39, 28, 29)
    e("v_xor_b32 v36, 0x80000000, v38\nv_xor_b32 v37, 0x80000000, v39")
    for j in range(0, 16, 2):
        for x in (j, j + 1):
            e(f"v_fmac_f32 v{GR+x}, v38, v{QR+x}\nv_fmac_f32 v{GI+x}, v37, v{QR+x}\nv_fmac_f32 v{GR+x}, v37, v{QI+x}\nv_fmac_f32 v{GI+x}, v36, v{QI+x}")
        e(f"v_cvt_pk_bf16_f32 v{40+j//2}, v{GR+j}, v{GR+j+1}\nv_cvt_pk_bf16_f32 v{48+j//2}, v{GI+j}, v{GI+j+1}")
    st(e, "fin")
    e("s_setprio 3")
    e(mfma(160, 40, SEL, True)); e(mfma(176, 48, SEL, True)); e(mfma(160, 44, SEL + 4)); e(mfma(176, 52, SEL + 4))
    e(f"s_setprio {sprio2}")
    e("s_add_u32 s30, s76, 4096\ns_add_u32 s31, s77, 4096\ns_nop 7")
    for r in range(16): e(f"v_cvt_pk_bf16_f32 v{56+r}, v{160+2*r}, v{161+2*r}")
    st(e, "ht")
    stores([f"buffer_store_dwordx4 v[56:59], v3, s[20:23], s76 offen", "buffer_store_dwordx4 v[60:63], v3, s[20:23], s30 offen",
            f"buffer_store_dwordx4 v[64:67], v3, s[20:23], s77 offen", "buffer_store_dwordx4 v[68:71], v3, s[20:23], s31 offen"], "h")
    st(e, "hst")
    e(cs_chk + "\ns_cmp_eq_u64 vcc, -1\ns_cbranch_scc1 K_cs_ok")
    def body():
        cs_loads()
        e("s_waitcnt vmcnt(0)\n" + cs_chk)
    spin(e, body, "s_cmp_eq_u64 vcc, -1", sleep=2)
    e.label("K_cs_ok")
    e("v_cmp_eq_u32 vcc, s74, v140")
    e(f"s_lshl_b32 s30, s4, 8\ns_add_u32 s30, s30, {CSW}\nv_lshl_add_u32 v1, v0, 2, s30")
    e("s_cmp_eq_u64 vcc, -1\ns_cselect_b32 s97, 2, 1")
    if force: e(f"s_mov_b32 s97, {force}")
    e("v_mov_b32 v2, s97\nds_write_b32 v1, v8\nds_write_b32 v20, v2 offset:16")
    e(f"s_lshl_b32 s30, s87, 14\ns_xor_b32 s31, s30, 0x4000\ns_and_b32 s29, s4, 1\ns_lshl_b32 s29, s29, 12\ns_sub_u32 s29, {C0}, s29\ns_add_u32 s30, s30, s29\ns_add_u32 s31, s31, s29\ns_lshl_b32 s29, s4, 5")
    for j in range(4): e(f"v_xor_b32 v{10+j}, s29, v{10+j}\nv_add_u32 v{14+j}, s31, v{10+j}\nv_add_u32 v{10+j}, s30, v{10+j}")
    e("s_lshl_b32 s30, s91, 7\ns_lshl_b32 s31, s4, 2\ns_add_u32 s31, s31, s30\nv_mov_b32 v4, s31\nv_mov_b32 v5, s84")
    e.vm_wait({"h"})
    e("s_mov_b64 exec, 1")
    dual(["buffer_store_dword v5, v4, s[20:23], s78 offen"], "fl")
    e("s_mov_b64 exec, -1")
    st(e, "hflag")
    e(f"s_lshl_b32 s92, s5, 1\ns_add_u32 s92, s92, s87\ns_mul_i32 s92, s92, {A_W}\ns_lshl_b32 s30, s85, 13\ns_add_u32 s93, s92, s30\ns_add_u32 s93, s93, {3*CH}\ns_lshl_b32 s30, s85, 16\ns_add_u32 s92, s92, s30")
    e("v_and_b32 v8, 7, v0\nv_min_u32 v8, 6, v8\nv_lshlrev_b32 v8, 7, v8\nv_and_b32 v1, 8, v0\nv_add_u32 v8, v8, v1\ns_and_b32 s30, s4, 1\ns_lshl_b32 s31, s30, 2\nv_add_u32 v8, s31, v8")
    e("s_lshl_b32 s30, s30, 10\ns_lshl_b32 s31, s85, 11\ns_add_u32 s30, s30, s31\nv_add_u32 v23, s30, v3\nv_xor_b32 v22, 0x800, v23")
    e(f"s_mul_i32 s76, s5, 7\ns_add_u32 s76, s76, s91\ns_lshl_b32 s76, s76, 1\ns_add_u32 s76, s76, s85\ns_lshl_b32 s76, s76, 15\ns_add_u32 s76, s76, s89\ns_xor_b32 s77, s76, 0x8000\ns_add_u32 s76, s76, {WS_PX}\ns_add_u32 s77, s77, {WS_PX}")
    def creg(k): return 144 + 8 * k
    def c_list(r):
        out = []
        for k in range(8*r, min(14, 8*r + 8)):
            if k == 12: out += [f"v_xor_b32 v{10+j}, s73, v{10+j}" for j in (0, 1, 4, 5)]
            for b in range(2):
                g = creg(k) + 4*b
                out.append(f"ds_read_b128 v[{g}:{g+3}], v{10 + 4*b + (k & 3)} offset:{r*2*CH + ((k >> 2) & 1)*4096}")
        return out
    XR, MR, RR = 64, 80, 96
    e(f"s_lshl_b32 s29, s85, 6\ns_and_b32 s31, s4, 1\ns_lshl_b32 s31, s31, 5\ns_add_u32 s29, s29, s31\ns_lshl_b32 s29, s29, 2\ns_add_u32 s29, s29, {STAT}\nv_lshl_add_u32 v4, v21, 6, s29")
    for q in range(4):
        e(f"ds_read_b128 v[{MR+4*q}:{MR+4*q+3}], v4 offset:{16*q}\nds_read_b128 v[{RR+4*q}:{RR+4*q+3}], v4 offset:{512+16*q}")
    for r in range(8): e(f"v_mov_b32 v{56+r}, v{208+r}\nv_lshlrev_b32 v{XR+2*r}, 16, v{208+r}\nv_and_b32 v{XR+2*r+1}, 0xffff0000, v{208+r}")
    e.lg0()
    for r in range(16): e(f"v_sub_f32 v{MR+r}, v{XR+r}, v{MR+r}")
    rnd(MR)
    for r in range(16): e(f"v_mul_f32 v{MR+r}, v{MR+r}, v{RR+r}")
    rnd(MR)
    for r in range(16): e(f"v_mul_f32 v{MR+r}, v{MR+r}, v142")
    for r in range(8): e(f"v_cvt_pk_bf16_f32 v{128+r}, v{MR+2*r}, v{MR+2*r+1}")
    st(e, "xn")
    wait_prog(6)
    for x in c_list(0): e(x)
    e("s_waitcnt lgkmcnt(0)\ns_mov_b64 exec, 1\nds_add_u32 v18, v19 offset:88")
    st(e, "c0")
    e("s_mov_b64 exec, 0xffff")
    def body():
        e("buffer_load_dword v9, v8, s[20:23], s78 offen sc1\ns_waitcnt vmcnt(0)\nv_cmp_eq_u32 vcc, s84, v9\ns_nop 1")
    spin(e, body, "s_cmp_eq_u64 vcc, exec", sleep=4)
    e("s_mov_b64 exec, -1")
    e.vm = []
    st(e, "hseen")
    NP = 8
    ypre = min(ypre, NP - 1)
    YA = [64, 96]
    def yreg(t): return 24 + 4*(t % NP)
    def yissue(t):
        k = t >> 1
        if (t & 1) == 0 and k > 0: e("s_mov_b32 s92, s93" if k == 12 else "s_add_u32 s92, s92, 4096")
        e.vmem(f"buffer_load_dwordx4 v[{yreg(t)}:{yreg(t)+3}], v{22 + (t & 1)}, s[20:23], s92 offen sc1", ("A", t))
    if ypre:
        if ywait > 6: wait_prog(ywait)
        for t in range(ypre): yissue(t)
    def body():
        e("ds_read_b128 v[4:7], v18 offset:32\ns_waitcnt lgkmcnt(0)\nv_min_u32 v4, v4, v5\nv_min3_u32 v4, v4, v6, v7\ns_nop 0\nv_readfirstlane_b32 s82, v4")
    spin(e, body, "s_cmp_lg_u32 s82, 0", sleep=1)
    st(e, "epid")
    e("s_setprio 3")
    for t in range(ypre, NP - 1): yissue(t)
    for x in c_list(1): e(x)
    e(f"s_add_u32 s31, s89, {SC}\nv_add_u32 v136, s31, v3\nv_xor_b32 v137, 0x2000, v136\nv_xor_b32 v138, 8, v20")
    for t in range(28):
        k = t >> 1
        if t == 8: e("s_waitcnt lgkmcnt(0)\ns_mov_b64 exec, 1\nds_add_u32 v18, v19 offset:92\ns_mov_b64 exec, -1")
        if t == 24: e("ds_read_b32 v1, v18 offset:92")
        e.vm_wait({("A", t)})
        for b in range(2):
            e(mfma(YA[t & 1] + 16*b, yreg(t), creg(k) + 4*b, k == 0))
            if b == 0 and t + NP - 1 < 28: yissue(t + NP - 1)
    st(e, "yloop")
    e("s_waitcnt lgkmcnt(0)\nv_readfirstlane_b32 s82, v1\ns_cmp_ge_u32 s82, 4\ns_cbranch_scc1 K_c1ok")
    lds_wait(18, 92, "s_cmp_ge_u32 s82, 4", 1, sleep=0)
    e.label("K_c1ok")
    e("s_nop 5")
    for ps in range(2):
        for g in range(4): e(f"ds_write_b128 v136, v[{YA[ps]+16+4*g}:{YA[ps]+19+4*g}] offset:{ps*CH + g*1024}")
    e("ds_write_b32 v20, v19 offset:96")
    lds_wait(138, 96, "s_cmp_lg_u32 s82, 0", 1, sleep=0)
    st(e, "yw")
    for ps in range(2):
        for g in range(4): e(f"ds_read_b128 v[{YA[ps]+16+4*g}:{YA[ps]+19+4*g}], v137 offset:{ps*CH + g*1024}")
    e("s_waitcnt lgkmcnt(4)")
    Y = YA[0]
    for r in range(16): e(f"v_add_f32 v{Y+r}, v{Y+r}, v{Y+16+r}")
    for r in range(0, 16, 2): e(f"v_cvt_pk_bf16_f32 v{24+r}, v{Y+r}, v{Y+r+1}\nv_mov_b32 v{25+r}, s84")
    e("s_waitcnt lgkmcnt(0)\ns_mov_b64 exec, 1\nds_add_u32 v18, v19 offset:84\ns_mov_b64 exec, -1")
    st(e, "yx")
    e("s_setprio 0")
    Y = YA[1]
    def ysend(g): stores([f"buffer_store_dwordx4 v[{24+4*g}:{27+4*g}], v3, s[20:23], s77 offen offset:{g*1024}"], "px")
    ysend(0)
    for r in range(16): e(f"v_add_f32 v{Y+r}, v{Y+r}, v{Y+16+r}")
    for r in range(8): e(f"v_lshlrev_b32 v{Y+16+2*r}, 16, v{128+r}\nv_and_b32 v{Y+17+2*r}, 0xffff0000, v{128+r}")
    ysend(1)
    for r in range(16): e(f"v_add_f32 v{Y+r}, v{Y+r}, v{Y+16+r}")
    lds_wait(18, 84, "s_cmp_ge_u32 s82, 4", 1, sleep=1)
    ysend(2)
    for g in range(4): e(f"ds_write_b128 v136, v[{Y+4*g}:{Y+3+4*g}] offset:{g*1024}")
    e(f"v_add_u32 v11, {6*CH + 2048 - SC}, v136")
    for g in range(2): e(f"ds_write_b128 v11, v[{56+4*g}:{59+4*g}] offset:{g*1024}")
    e("ds_write_b32 v20, v19 offset:128")
    e.lg0()
    ysend(3)
    st(e, "ydone")
    e.lg0()
    e("s_barrier")
    st.dump(e); info["S"] = st.names
    e("s_endpgm")

    e.vm = []; e.lg = []
    e.label("K_SPARE")
    st = Stamper(stamps, 143)
    e("s_getpc_b64 s[28:29]")
    e.label("K_PC")
    e(f"s_sub_u32 s28, s28, K_PC-{name}\ns_subb_u32 s29, s29, 0")
    e(f"v_lshlrev_b32 v7, 7, v2\nv_min_u32 v5, ALL_END-{name}-4, v7")
    e("s_cmp_lt_u32 s2, 248\ns_cbranch_scc1 K_sp0")
    e("global_load_dword v83, v5, s[28:29]")
    e.label("K_sp0")
    e("s_sub_u32 s4, s2, 224\ns_lshr_b32 s5, s4, 1\ns_and_b32 s6, s4, 1")
    e("v_lshrrev_b32 v3, 4, v2\nv_and_b32 v4, 15, v2\nv_mul_u32_u24 v5, 0xe00, v3\nv_lshl_add_u32 v5, v4, 4, v5")
    e(f"v_mov_b32 v6, 0\ns_mov_b32 s82, {WS_EP}\ns_lshl_b32 s28, s5, 8")
    e("s_cmp_eq_u32 s6, 0")
    e("s_waitcnt lgkmcnt(0)")
    e("s_cselect_b32 s16, s52, s54\ns_cselect_b32 s17, s53, s55")
    e(f"s_and_b32 s17, s17, 0xffff\ns_mov_b32 s18, {448*3584}\ns_mov_b32 s19, 0x20000")
    srd(e, 20, 62, WS_END)
    srd(e, 8, 56, 1792 * 896)
    srd(e, 64, 42, 448 * 896)
    srd(e, 68, 44, 448 * 896)
    e("s_cmp_ge_u32 s4, 28\ns_cbranch_scc1 K_sp4")
    e.vmem("buffer_load_dword v6, v6, s[20:23], s82 offen sc1", "ep")
    for i in range(14):
        e.vmem(f"buffer_load_dwordx4 v[{16+4*i}:{19+4*i}], v5, s[16:19], s28 offen", ("cs", i))
        if i < 13: e(f"s_add_u32 s28, s28, {32*3584}")
    if warm:
        e("s_mul_i32 s28, s4, 57344\ns_mul_i32 s29, s4, 14336")
        e.vmem("buffer_load_dword v80, v7, s[8:11], s28 offen", "t")
        e("v_and_b32 v4, 0x3fff, v7\ns_cmp_lt_u32 s3, 2\ns_cselect_b32 s64, s64, s68\ns_cselect_b32 s65, s65, s69\ns_cmp_lt_u32 s3, 4\ns_cselect_b32 s66, s66, 0")
        e.vmem("buffer_load_dword v81, v4, s[64:67], s29 offen", "t")
    for q in range(8): e(f"v_mov_b32 v{8+q}, 0")
    for i in range(14):
        e.vm_wait({("cs", i)})
        for q in range(4):
            e(f"v_lshlrev_b32 v72, 16, v{16+4*i+q}\nv_and_b32 v73, 0xffff0000, v{16+4*i+q}\nv_pk_add_f32 v[{8+2*q}:{9+2*q}], v[{8+2*q}:{9+2*q}], v[72:73]")
    e("v_lshlrev_b32 v3, 5, v2")
    e("ds_write_b128 v3, v[8:11]\nds_write_b128 v3, v[12:15] offset:16\ns_waitcnt lgkmcnt(0)")
    st(e, "acc")
    e("s_barrier")
    e("s_cmp_lg_u32 s3, 7\ns_cbranch_scc1 K_sp2")
    e("v_lshlrev_b32 v3, 3, v0\nv_add_u32 v9, 1, v6\nv_max_u32 v9, 1, v9\nv_mov_b32 v11, v9")
    for h in range(2):
        for i in range(16): e(f"ds_read_b64 v[{16+2*i}:{17+2*i}], v3 offset:{(16*h+i)*512}")
        e("s_waitcnt lgkmcnt(0)")
        if h == 0: e("v_mov_b32 v12, 0\nv_mov_b32 v13, 0")
        for i in range(16): e(f"v_pk_add_f32 v[12:13], v[12:13], v[{16+2*i}:{17+2*i}]")
    e(f"v_mov_b32 v8, v12\nv_mov_b32 v10, v13\nv_lshlrev_b32 v3, 4, v0\ns_lshl_b32 s30, s4, 10\ns_add_u32 s30, s30, {WS_CS}")
    e("buffer_store_dwordx4 v[8:11], v3, s[20:23], s30 offen sc1")
    e.label("K_sp2")
    e("s_barrier")
    e.label("K_sp4")
    e.label("K_sp3")
    st.dump(e); info["sp"] = st.names
    e.label("K_END")
    e("s_endpgm")
    e.label("ALL_END")
    return khead(name) + e.text(), kd(name, 256, 256), info

if __name__ == "__main__":
    import sys, json
    NAME = "recurrent_scan__ssm_conv_s5__glu_gated_reglu__prompt_kernel"
    stamps = "stamps" in sys.argv
    kw = {}
    for a in sys.argv[2:]:
        if "=" in a:
            k, v = a.split("="); kw[k] = int(v) if v.lstrip("-").isdigit() else v
    b, d, info = gen_fused(NAME, stamps=stamps, **kw)
    hdr = open("recurrent_scan__ssm_conv_s5__glu_gated_reglu__prompt.s.ref").read().split("; Override")[0]
    txt = hdr + f"; @launch grid=(256,1,1) block=(512,1,1) lds={LDS_BYTES}\n"
    if stamps and "rt" in sys.argv: txt += "; RT\n"
    if stamps: txt += "; STAMPS " + json.dumps(info) + "\n"
    txt += '.amdgcn_target "amdgcn-amd-amdhsa--gfx950"\n' + b + d
    open(sys.argv[1], "w").write(txt)
```

```python
from asmlib import *
from layout7 import *
LDS_BYTES = 163840
RING = 114688
NR = 5
MISC = RING + NR * 8192
STAT = MISC
CSB = MISC + 1024
CSW = MISC + 2048
SUB = MISC + 3072
FLG = MISC + 7168
LOG2E = 0x3fb8aa3b
SPIN_MAX = 0x200000
UNIT = 114688
CH = 16384
import sys
PADAT = ([a[6:] for a in sys.argv if a.startswith('padat=')] + [''])[0]
TIMER = 's_memrealtime' if 'rt' in sys.argv else 's_memtime'
C0 = 2 * CH
SC = 4 * CH

def mfma(d, a, b, first=False):
    c = "0" if first else f"v[{d}:{d+15}]"
    return f"v_mfma_f32_32x32x16_bf16 v[{d}:{d+15}], v[{a}:{a+3}], v[{b}:{b+3}], {c}"

class Stamper:
    def __init__(self, on, vreg): self.on = on; self.n = 0; self.v = vreg; self.names = []
    def __call__(self, e, name=""):
        if PADAT and name == PADAT and self.v == 127: e("s_memrealtime s[100:101]")
        if not self.on: return
        e.lg0()
        e(f"v_writelane_b32 v{self.v}, s80, {self.n}\n{TIMER} s[80:81]")
        self.n += 1; self.names.append(name)
        assert self.n <= 60
    def dump(self, e):
        if not self.on: return
        e("s_waitcnt vmcnt(0)")
        self(e, "end"); self(e)
        e("s_memrealtime s[80:81]\ns_waitcnt lgkmcnt(0)")
        e(f"v_writelane_b32 v{self.v}, s96, 62\nv_writelane_b32 v{self.v}, s80, 63\ns_mov_b32 s80, {self.n}\nv_writelane_b32 v{self.v}, s80, 61")
        e(f"s_mov_b32 s22, {WS_END + (1<<20)}")
        e("s_lshl_b32 s82, s2, 3\ns_add_u32 s82, s82, s3\ns_lshl_b32 s82, s82, 8")
        e(f"s_add_u32 s82, s82, {WS_END}")
        e("v_lshlrev_b32 v1, 2, v0")
        e(f"buffer_store_dword v{self.v}, v1, s[20:23], s82 offen")

def spin(e, body, cond_ok, sleep=1):
    l = e.newlabel("SP")
    e("s_mov_b32 s95, 0")
    e.label(l)
    body()
    e(cond_ok)
    e(f"s_cbranch_scc1 {l}_ok")
    if sleep: e(f"s_sleep {sleep}")
    e(f"s_add_u32 s95, s95, 1\ns_cmp_lt_u32 s95, {SPIN_MAX}\ns_cbranch_scc1 {l}")
    e.label(l + "_ok")

def tau_of_lane(e, d, t):
    e(f"v_bfe_u32 v{d}, v0, 2, 1\nv_lshlrev_b32 v{d}, 4, v{d}\nv_bfe_u32 v{t}, v0, 3, 2\nv_lshl_add_u32 v{d}, v{t}, 2, v{d}\nv_and_b32 v{t}, 3, v0\nv_add_u32 v{d}, v{d}, v{t}")

def plan_slots():
    wslot = {n: ("r", ((n + 2) % NR) * 8192) for n in range(5)}
    issue = {}
    nxt = 5
    free = []
    for n in range(28):
        if n in (5, 9):
            c = (n >> 2) - 1
            free += [("c", c * CH), ("c", c * CH + 2048)]
        free.append(wslot[n])
        issue[n] = []
        while free and nxt < 28 and len(issue[n]) < 2:
            wslot[nxt] = free.pop(0); issue[n].append(nxt); nxt += 1
    last = max(n for n in issue if issue[n])
    used_after = {}
    inv = {}
    for n in range(28): inv[wslot[n]] = n
    order = sorted(inv.items(), key=lambda x: x[1])
    wd = [(sl, n + 1, 0) for sl, n in order]
    wd += [(("c", 6 * CH), 0, 7)] + [(("c", C0 + (i >> 1) * CH + (i & 1) * 2048), 0, 0) for i in range(4)]
    assert len(wd) == 14, len(wd)
    return wslot, issue, wd, last

def gen_fused(name, stamps=False, D0=3, pad=0, ra=1, kint=3, fine=1, sidle=0, sprio=3, sprio2=0, fprio=2, NA=16, pace=0, warm=1, ypre=9, ssl=1, ysl=3, t0=29, ywait=7, wsl=1, rb_o=0, rb_y=0, padwg=-1, padat='', tr=50, gap=0, pt=0, pt0=15, ptn=7, noc=0, nowd=0, dwarm=0, outfl='nt', force=0, bulk=0):
    e = Em2()
    info = {}
    wslot, wissue, wdslot, wlast = plan_slots()
    def stores(ins_list, tag):
        for x in ins_list: e.vmem(x + " sc1", tag)
    def dual(ins_list, tag, on=True):
        if not on: return stores(ins_list, tag)
        l = e.newlabel("DS")
        e(f"s_cmp_eq_u32 s97, 2\ns_cbranch_scc1 {l}_l")
        for x in ins_list: e(x + " sc1")
        e(f"s_branch {l}_e")
        e.label(l + "_l")
        for x in ins_list: e.vmem(x, tag)
        e.label(l + "_e")
    def wd_setup(va, sr):
        e(f"v_lshrrev_b32 v{va}, 3, v0\nv_mul_u32_u24 v{va}, 0x380, v{va}\nv_bfe_u32 v{va+1}, v0, 4, 1\nv_lshlrev_b32 v{va+1}, 2, v{va+1}")
        e(f"v_and_b32 v1, 7, v0\nv_xor_b32 v1, v1, v{va+1}\nv_lshl_add_u32 v{va}, v1, 4, v{va}\nv_add_u32 v{va+1}, {8*896-1024}, v{va}")
        srd(e, sr, 56, 1792 * 896)
        e("s_lshl_b32 s98, s99, 1")
        e(f"s_mul_i32 s88, s4, {32*896}\ns_lshl_b32 s82, s91, 7\ns_add_u32 s88, s88, s82\ns_mul_i32 s82, s85, {7*UNIT}\ns_add_u32 s88, s88, s82")
        e(f"s_mul_i32 s64, s98, {UNIT}\ns_add_u32 s64, s64, s88\ns_add_u32 s88, s88, {7*UNIT}")
        for u in range(1, 7):
            e(f"s_add_u32 s{64+u}, s{63+u}, {UNIT}\ns_cmp_ge_u32 s{64+u}, s88\ns_cselect_b32 s82, {7*UNIT}, 0\ns_sub_u32 s{64+u}, s{64+u}, s82")
    def wd_dma(k, va, sr):
        kind, off = wdslot[k][0]
        e(f"s_add_u32 m0, s{89 if kind == 'c' else 79}, {off}\ns_add_u32 s82, s{64+(k>>1)}, {(k&1)*16*896}")
        e.vmem(f"buffer_load_dwordx4 v{va}, s[{sr}:{sr+3}], s82 offen lds", ("wd", k))
        e.vmem(f"buffer_load_dwordx4 v{va+1}, s[{sr}:{sr+3}], s82 offen offset:1024 lds", ("wd", k))
    def wd_half(k, hf):
        kind, off = wdslot[k][0]
        e(f"s_add_u32 m0, s{89 if kind == 'c' else 79}, {off}\ns_add_u32 s82, s{64+(k>>1)}, {(k&1)*16*896}")
        e.vmem(f"buffer_load_dwordx4 v{2+hf}, s[12:15], s82 offen" + (" offset:1024" if hf else "") + " lds", ("wd", k))
    def lds_wait(addr, off, cond, tmp, sleep=1):
        def body(): e(f"ds_read_b32 v{tmp}, v{addr} offset:{off}\ns_waitcnt lgkmcnt(0)\nv_readfirstlane_b32 s82, v{tmp}")
        spin(e, body, cond, sleep=sleep)
        e.lg = []
    e("s_cmp_ge_u32 s2, 256")
    e("s_cbranch_scc1 K_END")
    if stamps: e(f"s_memrealtime s[96:97]\n{TIMER} s[80:81]")
    elif pad: e("s_memrealtime s[96:97]")
    e("s_load_dwordx16 s[32:47], s[0:1], 0")
    e("s_load_dwordx16 s[48:63], s[0:1], 64")
    e("v_lshrrev_b32 v1, 6, v0\nv_mov_b32 v2, v0\nv_and_b32 v0, 63, v0\nv_readfirstlane_b32 s3, v1")
    e("s_cmp_ge_u32 s2, 224")
    e("s_cbranch_scc1 K_SPARE")
    e("s_and_b32 s4, s3, 3\ns_and_b32 s8, s2, 7\ns_lshr_b32 s9, s2, 3")
    e("s_and_b32 s5, s8, 3\ns_lshl_b32 s5, s5, 2\ns_and_b32 s99, s9, 3\ns_add_u32 s5, s5, s99")
    e("s_lshr_b32 s85, s8, 2\ns_lshr_b32 s91, s9, 2\ns_mul_i32 s6, s85, 7\ns_add_u32 s6, s6, s91")
    e("v_and_b32 v20, 31, v0\nv_lshrrev_b32 v21, 5, v0\nv_bfe_u32 v22, v0, 1, 3\nv_xor_b32 v22, v22, v21\nv_lshlrev_b32 v20, 7, v20")
    e(f"s_lshl_b32 s89, s4, 12\ns_lshl_b32 s79, s4, 11\ns_add_u32 s79, s79, {RING}")
    e("s_cmp_ge_u32 s3, 4")
    e("s_cbranch_scc1 K_S")

    st = Stamper(stamps, 127)
    e(f"s_setprio {fprio}")
    e(f"s_mul_i32 s10, s99, {ra}\ns_add_u32 s7, s91, s10")
    e("s_cmp_ge_u32 s7, 7\ns_cselect_b32 s10, 7, 0\ns_sub_u32 s7, s7, s10")
    e("s_lshl_b32 s64, s7, 7")
    for c in range(1, 7):
        e(f"s_add_u32 s{64+c}, s{63+c}, 128\ns_cmp_ge_u32 s{64+c}, 896\ns_cselect_b32 s{64+c}, 0, s{64+c}")
    e("v_lshrrev_b32 v8, 3, v0\nv_and_b32 v9, 7, v0\nv_lshrrev_b32 v7, 4, v0\nv_xor_b32 v9, v9, v7\nv_lshlrev_b32 v9, 4, v9\nv_xor_b32 v7, 64, v9")
    e("v_and_b32 v6, 3, v8\nv_lshl_add_u32 v5, v21, 4, v6\nv_lshl_add_u32 v6, v21, 3, v6\nv_mul_u32_u24 v5, 0x380, v5\nv_mul_u32_u24 v6, 0x380, v6")
    e("v_add_u32 v1, v5, v9\nv_add_u32 v2, v5, v7\nv_add_u32 v2, 2560, v2\nv_add_u32 v3, 5120, v1\nv_add_u32 v4, 5120, v2")
    e(f"v_add_u32 v5, v6, v9\nv_add_u32 v6, v6, v7\nv_add_u32 v6, {4*896-1024}, v6")
    e("s_lshl_b32 s28, s5, 7\ns_lshl_b32 s29, s4, 5\ns_add_u32 s28, s28, s29\ns_mul_i32 s28, s28, 896")
    e("s_lshl_b32 s29, s6, 5\ns_and_b32 s30, s4, 1\ns_lshl_b32 s30, s30, 4\ns_add_u32 s29, s29, s30\ns_mul_i32 s29, s29, 896")
    e(f"s_mov_b32 s10, {2048*896}\ns_mov_b32 s11, 0x20000\ns_mov_b32 s14, {448*896}\ns_mov_b32 s15, 0x20000")
    e("s_waitcnt lgkmcnt(0)")
    st(e, "karg")
    e("s_cmp_lt_u32 s4, 2")
    e("s_cselect_b32 s12, s38, s40\ns_cselect_b32 s13, s39, s41\ns_mov_b32 s8, s32\ns_and_b32 s9, s33, 0xffff\ns_and_b32 s13, s13, 0xffff")
    def xb_burst(c):
        e(f"s_add_u32 m0, s89, {c*CH}\ns_add_u32 s83, s28, s{64+c}")
        for ii in range(4):
            e.vmem(f"buffer_load_dwordx4 v{1+ii}, s[8:11], s83 offen" + (f" offset:{ii*1024}" if ii else "") + " lds", ("x", c))
        e(f"s_add_u32 m0, s79, {(c % NR)*8192}\ns_add_u32 s83, s29, s{64+c}")
        e.vmem("buffer_load_dwordx4 v5, s[12:15], s83 offen lds", ("x", c))
        e.vmem("buffer_load_dwordx4 v6, s[12:15], s83 offen offset:1024 lds", ("x", c))
    xb_burst(0)
    srd(e, 20, 62, WS_END)
    e(f"v_mov_b32 v120, 0\ns_mov_b32 s82, {WS_EP}")
    e("s_mov_b64 exec, 1")
    e.vmem("buffer_load_dword v120, v120, s[20:23], s82 offen sc1", "ep")
    e("s_mov_b64 exec, -1")
    e(f"v_mov_b32 v124, 0\nv_mov_b32 v125, 0\ns_lshl_b32 s31, s4, 9\ns_add_u32 s31, s31, {SUB}\nv_lshl_add_u32 v8, v0, 3, s31")
    e.lds("ds_write_b64 v8, v[124:125]")
    e(f"v_lshlrev_b32 v8, 2, v0\nv_add_u32 v8, {FLG}, v8")
    e.lds("ds_write_b32 v8, v124")
    for jj in range(4):
        e(f"v_xor_b32 v{10+jj}, {2*jj}, v22\nv_lshl_add_u32 v{10+jj}, v{10+jj}, 4, v20\nv_add_u32 v{14+jj}, 0x10000, v{10+jj}")
    if D0 > 1: xb_burst(1)
    srd(e, 16, 52, 448 * 3584)
    srd(e, 24, 54, 448 * 3584)
    e("s_lshl_b32 s31, s6, 8\ns_lshl_b32 s82, s4, 6\ns_add_u32 s31, s31, s82")
    for c in range(7): e(f"s_mul_i32 s{72+c}, s{64+c}, 1792\ns_add_u32 s{72+c}, s{72+c}, s31")
    e("v_lshrrev_b32 v7, 2, v0\nv_mul_u32_u24 v7, 0xe00, v7\nv_and_b32 v8, 3, v0\nv_lshl_add_u32 v7, v8, 4, v7")
    e("v_bfe_u32 v8, v0, 2, 2\nv_lshl_add_u32 v8, v21, 3, v8\nv_lshlrev_b32 v9, 6, v8")
    e("v_bfe_u32 v8, v0, 4, 1\nv_lshl_add_u32 v9, v8, 5, v9\nv_and_b32 v8, 3, v0\nv_lshl_add_u32 v9, v8, 3, v9\nv_add_u32 v125, s89, v9\nv_add_u32 v9, s79, v9")
    e("v_lshlrev_b32 v18, 4, v0")
    e(f"s_lshl_b32 s31, s4, 2\ns_add_u32 s31, s31, {FLG}\nv_mov_b32 v19, s31")
    e(f"s_lshl_b32 s31, s4, 8\ns_add_u32 s31, s31, {CSW}\nv_lshl_add_u32 v122, v21, 4, s31")
    tau_of_lane(e, 123, 8)
    e(f"v_lshlrev_b32 v123, 2, v123\nv_add_u32 v123, {STAT}, v123\nv_mov_b32 v8, {FLG}")
    e(f"s_lshl_b32 s92, s5, 2\ns_add_u32 s92, s92, s4\ns_mul_i32 s92, s92, {A_W}\ns_add_u32 s92, s92, {WS_AO}\ns_lshl_b32 s31, s6, 13\ns_add_u32 s86, s92, s31\ns_add_u32 s87, s86, 4096")
    for c in range(2, D0): xb_burst(c)
    ptl = list(range(64)) if pt else []
    def pretouch(n):
        for _ in range(n):
            if ptl: e(f"s_load_dword s100, s[46:47], {ptl.pop(0) * 128}")
    if pt:
        e.lg0()
        e("s_add_u32 s46, s62, s86\ns_addc_u32 s47, s63, 0")
        pretouch(pt0)
    def w_issue(n, mt):
        c, jj = n >> 2, n & 3
        kind, off = wslot[n]
        e(f"s_add_u32 m0, s{89 if kind == 'c' else 79}, {off + mt*1024}\ns_add_u32 s83, s{72+c}, {16*jj*3584}")
        e.vmem(f"buffer_load_dwordx4 v7, s[{16+8*mt}:{19+8*mt}], s83 offen lds", ("w", n))
    FS = [24, 48]
    def reads(n):
        fs = FS[n & 1]; c, jj = n >> 2, n & 3
        xb = (10 + jj) if c < 4 else (14 + jj)
        xo = (c & 3) * CH
        kind, wo = wslot[n]
        wb = 125 if kind == "c" else 9
        X = lambda rt: (f"ds_read_b128 v[{fs+4*rt}:{fs+4*rt+3}], v{xb} offset:{xo + rt*4096}", ("X", n, rt))
        Wr = lambda mt, u2: (f"ds_read_b64_tr_b16 v[{fs+16+4*mt+2*u2}:{fs+17+4*mt+2*u2}], v{wb} offset:{wo + mt*1024 + u2*256}", ("W", n))
        return [Wr(0, 0), Wr(0, 1), X(0), Wr(1, 0), Wr(1, 1), X(1), X(2), X(3)]
    for sg in range(8):
        tags = {("x", sg)}
        if sg == 1: tags.add("ep")
        e.vm_wait(tags)
        if sg == 0 and not pt: e.lg0()
        if sg == 7:
            e.vm_wait({("w", 0)})
            for s, t in reads(0): e.lds(s, t)
        if not pt or sg == 7: st(e, f"b{sg}")
        e("s_barrier")
        if sg + D0 < 7: xb_burst(sg + D0)
        if 3 <= sg < 7:
            w_issue(sg - 3, 0); w_issue(sg - 3, 1)
        if sg == 1: e("v_readfirstlane_b32 s84, v120\ns_add_u32 s84, s84, 1\ns_max_u32 s84, s84, 1")
        if sg < 7: pretouch(ptn)
        if sg == 5: wd_setup(2, 12)
        if sg == 6:
            e(f"s_bitcmp1_b32 s4, 1\ns_cselect_b32 s8, s44, s42\ns_cselect_b32 s9, s45, s43\ns_and_b32 s9, s9, 0xffff\ns_mov_b32 s10, {448*896}")
            e(f"s_mul_i32 s29, s91, {64*896}\ns_and_b32 s30, s4, 1\ns_lshl_b32 s28, s85, 2\ns_add_u32 s94, s28, 2\ns_add_u32 s28, s28, s30\ns_cmp_eq_u32 s30, 0\ns_cselect_b32 s94, s94, 3")
            e("s_lshl_b32 s28, s28, 7\ns_add_u32 s28, s28, s29\ns_lshl_b32 s94, s94, 7\ns_add_u32 s94, s94, s29")
            e("v_lshrrev_b32 v4, 3, v0\nv_mul_u32_u24 v4, 0x380, v4\nv_and_b32 v5, 7, v0\nv_lshrrev_b32 v6, 4, v0\nv_xor_b32 v5, v5, v6\nv_lshlrev_b32 v5, 4, v5")
            e(f"v_xor_b32 v6, 64, v5\nv_add_u32 v5, v4, v5\nv_add_u32 v6, v4, v6\nv_add_u32 v6, {8*896-1024}, v6")
    assert not ptl
    w_issue(4, 0); w_issue(4, 1)
    CS = 72; T = 104
    cs_rd = [("ds_read_b32 v121, v19 offset:16", "cs")] + [(f"ds_read_b32 v{20+rt}, v123 offset:{rt*128}", "cs") for rt in range(4)]
    cs_rd += [(f"ds_read_b128 v[{CS+16*mt+4*q}:{CS+16*mt+4*q+3}], v122 offset:{mt*128 + q*32}", "cs") for mt in range(2) for q in range(4)]
    p2 = []
    def p_(s): p2.extend(s.split("\n"))
    p_("v_bfe_u32 v112, v0, 2, 2\nv_lshrrev_b32 v113, 5, v0\nv_lshl_add_u32 v113, v113, 2, v112\nv_lshlrev_b32 v113, 7, v113")
    p_("s_lshr_b32 s31, s4, 1\nv_lshrrev_b32 v112, 1, v112\nv_xor_b32 v112, s31, v112\nv_lshl_add_u32 v113, v112, 6, v113")
    p_("v_bfe_u32 v112, v0, 4, 1\nv_lshl_add_u32 v113, v112, 5, v113\nv_and_b32 v112, 3, v0\nv_lshl_add_u32 v113, v112, 3, v113\nv_xor_b32 v112, 64, v113")
    p_(f"s_lshl_b32 s30, s31, 13\ns_lshl_b32 s31, s31, 12\ns_add_u32 s31, s31, {RING}")
    p_("v_add_u32 v108, s30, v113\nv_add_u32 v109, s30, v112\nv_add_u32 v110, s31, v113\nv_add_u32 v111, s31, v112\nv_add_u32 v112, 0x10000, v108\nv_add_u32 v113, 0x10000, v109")
    p_(f"s_lshl_b32 s93, s5, 1\ns_add_u32 s93, s93, s85\ns_lshl_b32 s93, s93, 10\ns_add_u32 s93, s93, {WS_FO}")
    p_(f"s_and_b32 s31, s4, 1\ns_mul_i32 s31, s31, {A_W}\ns_sub_u32 s92, s92, s31")
    p_(f"s_mul_i32 s31, s85, {7*8192}\ns_add_u32 s92, s92, s31\ns_xor_b32 s31, s85, 1\ns_lshl_b32 s31, s31, 11\ns_add_u32 s92, s92, s31")
    p_(f"s_lshl_b32 s90, s98, 13\ns_add_u32 s90, s90, s92\ns_add_u32 s92, s92, {7*8192}\ns_add_u32 s71, s90, {A_W}")
    p_("s_lshl_b32 s29, s85, 6\ns_and_b32 s31, s4, 1\ns_lshl_b32 s31, s31, 5\ns_add_u32 s29, s29, s31\ns_lshl_b32 s30, s5, 7\ns_add_u32 s30, s30, s29")
    p_(f"v_lshlrev_b32 v117, 4, v21\nv_add_u32 v114, s30, v117\ns_lshl_b32 s29, s29, 2\ns_add_u32 s29, s29, {STAT}\nv_lshl_add_u32 v117, v117, 2, s29")
    p_("s_lshl_b32 s29, s91, 6\ns_lshr_b32 s31, s4, 1\ns_lshl_b32 s31, s31, 5\ns_add_u32 s29, s29, s31\nv_and_b32 v115, 31, v0\nv_add_u32 v115, s29, v115")
    p_("v_mul_u32_u24 v114, 0x380, v114\nv_lshlrev_b32 v115, 1, v115\nv_add_u32 v114, v114, v115\nv_lshlrev_b32 v116, 1, v114")
    for q in range(1, 8): p_(f"s_movk_i32 s{32+q}, {q*3584}")
    p_(f"s_mul_i32 s40, s5, 7\ns_add_u32 s40, s40, s91\ns_lshl_b32 s40, s40, 1\ns_add_u32 s40, s40, s85\ns_lshl_b32 s40, s40, 15\ns_add_u32 s40, s40, s89\ns_xor_b32 s41, s40, 0x8000\ns_add_u32 s40, s40, {WS_PX + 16384}\ns_add_u32 s41, s41, {WS_PX + 16384}")
    slow = []; slow2 = []; slow3 = []
    for n in range(28):
        fs = FS[n & 1]
        rd = reads(n + 1) if n < 27 else list(cs_rd)
        if n < 27: e.vm_wait({("w", n + 1)})
        dq = [("w", m, mt) for m in wissue[n] for mt in range(2)]
        for k in range(9):
            if wdslot[k][1] - 1 == n: dq += [("d", k, 0), ("d", k, 1)]
        if nowd: dq = [x for x in dq if x[0] != "d"]
        if 13 <= n <= 26 and not noc: dq.append(("c", n - 13, 0))
        if n == 27 and not noc: dq += [("c", 14, 0), ("c", 15, 0)]
        gaps = {0: (), 1: (4,), 2: (2, 5), 3: (1, 4, 7), 4: (1, 3, 5, 7)}[len(dq)]
        for i in range(8):
            rt, mt = i >> 1, i & 1
            if i == 0: e.lg_wait({("W", n), ("X", n, 0)})
            elif mt == 0: e.lg_wait({("X", n, rt)})
            e(mfma(128 + 64*mt + 16*rt, fs + 16 + 4*mt, fs + 4*rt, n == 0))
            k = 1 if n < 27 else 2
            for s, t in rd[:k]: e.lds(s, t)
            rd = rd[k:]
            if n in (5, 9, 13, 17, 21, 25) and i == 0:
                l = e.newlabel("PG")
                e(f"v_readfirstlane_b32 s82, v104\ns_cmp_lt_u32 s82, {n >> 2}\ns_cbranch_scc1 {l}")
                e.label(l + "_r")
                slow.append((l, n >> 2))
            if i in gaps and dq:
                kd_, a1, a2 = dq.pop(0)
                if kd_ == "w": w_issue(a1, a2)
                elif kd_ == "d": wd_half(a1, a2)
                else:
                    e(f"s_add_u32 m0, s89, {C0 + (a1 >> 2)*CH + (a1 & 2)*1024}\ns_add_u32 s83, s{28 if a1 < 8 else 94}, {((a1 & 7) >> 1)*16*896}")
                    e.vmem(f"buffer_load_dwordx4 v{5 + (a1 & 1)}, s[8:11], s83 offen" + (" offset:1024" if a1 & 1 else "") + " lds", ("c", a1 >> 3))
            if i == 6 and (n & 3) == 3:
                if n == 23: e.vm_wait({("c", 0)})
                e(f"v_mov_b32 v126, {(n >> 2) + 1}")
                e.lds("ds_write_b32 v19, v126")
            if n in (4, 8, 12, 16, 20, 24):
                if i == 2: e.lds("ds_read_b128 v[104:107], v8", "pg")
                if i == 6:
                    e.lg_wait({"pg"})
                    e("v_min_u32 v104, v104, v105\nv_min3_u32 v104, v104, v106, v107")
            if 1 <= n < 27 and i not in gaps and i != 0 and len(gaps) < 4:
                if p2: e(p2.pop(0))
        assert not rd and not dq
        if (fine and (n & 3) == 3) or n == 27: st(e, f"k{n}")
    assert not p2
    e.lg0()
    e("v_readfirstlane_b32 s97, v121\ns_cmp_lg_u32 s97, 0\ns_cbranch_scc1 K_csok")
    def body():
        for s, t in cs_rd: e(s)
        e("s_waitcnt lgkmcnt(0)\nv_readfirstlane_b32 s97, v121")
    spin(e, body, "s_cmp_lg_u32 s97, 0")
    e.label("K_csok")
    st(e, "cs")
    for rt in range(4):
        G, U = 128 + 16*rt, 192 + 16*rt
        mp = 20 + (rt & 2)
        sel = ("op_sel:[0,1,0] op_sel_hi:[1,1,1]" if rt & 1 else "op_sel_hi:[1,0,1]") + " neg_lo:[1,0,0] neg_hi:[1,0,0]"
        for h in range(2):
            g = 2*rt + h
            tt = 24 + 4 * g
            rs = range(8*h, 8*h + 8, 2)
            if g == 7:
                e.lds("ds_read_b128 v[104:107], v8", "pg")
                e.lds("ds_read_b32 v121, v8 offset:88", "pg")
            for r in rs:
                e(f"v_pk_fma_f32 v[{G+r}:{G+r+1}], v[{CS+r}:{CS+r+1}], v[{mp}:{mp+1}], v[{G+r}:{G+r+1}] {sel}")
                e(f"v_pk_fma_f32 v[{U+r}:{U+r+1}], v[{CS+16+r}:{CS+17+r}], v[{mp}:{mp+1}], v[{U+r}:{U+r+1}] {sel}")
            for r in rs: e(f"v_max_f32 v{G+r}, 0, v{G+r}\nv_max_f32 v{G+r+1}, 0, v{G+r+1}")
            for r in rs: e(f"v_pk_mul_f32 v[{G+r}:{G+r+1}], v[{G+r}:{G+r+1}], v[{U+r}:{U+r+1}]")
            for r in rs: e(f"v_cvt_pk_bf16_f32 v{tt + ((r - 8*h) >> 1)}, v{G+r}, v{G+r+1}")
            dual([f"buffer_store_dwordx4 v[{tt}:{tt+3}], v18, s[20:23], s{86 + h} offen offset:{rt*1024}"], "hh", bulk & 1)
            if g == 7:
                e.vm_wait({("c", 1)})
                e.lds("ds_write_b32 v19, v126 offset:32")
                e.lg_wait({"pg"})
                l = e.newlabel("PG")
                e(f"v_min_u32 v104, v104, v105\nv_min3_u32 v104, v104, v106, v107\ns_nop 0\nv_readfirstlane_b32 s82, v104\ns_cmp_lt_u32 s82, 7\ns_cbranch_scc1 {l}")
                e.label(l + "_r")
                slow.append((l, 7))
    l = e.newlabel("CP")
    e(f"v_readfirstlane_b32 s82, v121\ns_cmp_lt_u32 s82, 4\ns_cbranch_scc1 {l}")
    e.label(l + "_r")
    slow2.append((l, 8, 88, "s_cmp_ge_u32 s82, 4"))
    st(e, "epi")
    e("s_setprio 0")
    XR, MR, RR = 56, 72, 88
    for q in range(4):
        e.lds(f"ds_read_b128 v[{RR+4*q}:{RR+4*q+3}], v117 offset:{512+16*q}")
    e("s_and_b32 s31, s4, 1\ns_lshl_b32 s31, s31, 10\nv_add_u32 v10, s31, v18\nv_add_u32 v11, 0x1000, v10")
    e("s_lshl_b32 s31, s91, 7\ns_lshl_b32 s30, s4, 2\ns_add_u32 s31, s31, s30\nv_mov_b32 v16, s31\nv_mov_b32 v17, s84")
    e("v_and_b32 v14, 7, v0\nv_min_u32 v14, 6, v14\nv_lshlrev_b32 v14, 7, v14\nv_bfe_u32 v15, v0, 3, 1\nv_lshl_add_u32 v14, v15, 2, v14\ns_and_b32 s30, s30, 8\nv_add_u32 v14, s30, v14")
    e(f"s_add_u32 s31, s89, {SC}\nv_add_u32 v4, s31, v18\nv_xor_b32 v5, 0x2000, v4\nv_xor_b32 v6, 8, v19\nv_xor_b32 v9, 4, v19\nv_add_u32 v7, {6*CH + 2048 - SC}, v4")
    srd(e, 16, 58, 2048 * 1792)
    e.lg0()
    for r in range(16): e(f"v_mul_f32 v{RR+r}, v{RR+r}, v{RR+r}")
    e.vm0()
    e("s_mov_b64 exec, 1")
    dual(["buffer_store_dword v17, v16, s[20:23], s93 offen"], "fl")
    e("s_mov_b64 exec, -1")
    st(e, "hhflag")
    if rb_o:
        for g in range(8): e(f"buffer_load_dwordx4 v[{192+4*g}:{195+4*g}], v18, s[20:23], s{86 + (g >> 2)} offen offset:{(g & 3)*1024} sc1")
    for k in range(9, 14): wd_dma(k, 2, 12)
    e("s_mov_b64 exec, 0xffff")
    def body():
        e("buffer_load_dword v17, v14, s[20:23], s93 offen sc1\ns_waitcnt vmcnt(0)\nv_cmp_eq_u32 vcc, s84, v17\ns_nop 1")
    spin(e, body, "s_cmp_eq_u64 vcc, exec", sleep=2)
    e("s_mov_b64 exec, -1")
    e.vm = []
    e.lds("ds_write_b32 v19, v126 offset:112")
    st(e, "hhseen")
    NT = 56
    def areg(t): return 192 + 4*(t % NA)
    def a_issue(t):
        sub = t & 3
        if sub == 0 and t > 0:
            e(f"s_add_u32 s90, s90, 8192\ns_cmp_ge_u32 s90, s92\ns_cselect_b32 s82, {7*8192}, 0\ns_sub_u32 s90, s90, s82")
            if t == 28: e("s_xor_b32 s90, s90, 0x800\ns_xor_b32 s92, s92, 0x800")
            e(f"s_add_u32 s71, s90, {A_W}")
        r = areg(t)
        e.vmem(f"buffer_load_dwordx4 v[{r}:{r+3}], v{10 + (sub & 1)}, s[20:23], s{71 if sub >> 1 else 90} offen sc1", ("A", t))
    def breg(t): return 24 + 8*(t % 4)
    def b_list(t):
        u = (t % 28) >> 2; sub = t & 3
        kind, off = wdslot[2*u + (sub & 1)][0]
        if kind == "r": bs = (110, 111); off += (sub >> 1) * 2048
        else:
            off += (sub >> 1) * 4096
            bs = (108, 109)
            if off >= 4*CH: bs = (112, 113); off -= 65536
        r = breg(t)
        return [(f"ds_read_b64_tr_b16 v[{r+4*b+2*u2}:{r+4*b+2*u2+1}], v{bs[b]} offset:{off + u2*1024}", ("B", t)) for b in range(2) for u2 in range(2)]
    for t in range(NA - 1): a_issue(t)
    for t in range(3):
        for s, tg in b_list(t): e.lds(s, tg)
    FO, OW = 128, 160
    side = []
    def S_(f): side.append(f)
    def both_wait(t):
        nv = e.vm_need({("A", t)})
        idx = [i for i, x in enumerate(e.lg) if x == ("B", t)]
        parts = []
        if nv is not None:
            parts.append(f"vmcnt({nv})"); e.vm = e.vm[len(e.vm) - nv:] if nv else []
        if idx:
            nl = min(15, len(e.lg) - 1 - idx[-1]); parts.append(f"lgkmcnt({nl})"); e.lg = e.lg[len(e.lg) - nl:] if nl else []
        if parts: e("s_waitcnt " + " ".join(parts))
    RV = 224
    YV = FO
    def recv_one(g, dst, sb): e(f"buffer_load_dwordx4 v[{dst+4*g}:{dst+4*g+3}], v18, s[20:23], s{sb} offen offset:{g*1024} sc1")
    e("s_sub_u32 s42, s40, 16384")
    nop = lambda: None
    for t in range(NT):
        acc = FO if t < 28 else OW
        def mkchk(tag, pfx, cond_bad, addr, off, cond_ok):
            def chk():
                e.lg_wait({tag})
                l = e.newlabel(pfx)
                e(f"v_readfirstlane_b32 s82, v121\n{cond_bad}\ns_cbranch_scc1 {l}")
                e.label(l + "_r")
                slow2.append((l, addr, off, cond_ok))
            return chk
        if t == 10: S_(lambda: e.lds("ds_read_b32 v121, v9 offset:112", "wl"))
        if t == 13: S_(mkchk("wl", "WL", "s_cmp_eq_u32 s82, 0", 9, 112, "s_cmp_lg_u32 s82, 0"))
        if t == 24: S_(lambda: e.lds("ds_read_b32 v121, v8 offset:84", "yx"))
        if t == 27:
            def chk():
                e.lg_wait({"yx"})
                l = e.newlabel("YX")
                e(f"v_readfirstlane_b32 s82, v121\ns_cmp_lt_u32 s82, 4\ns_cbranch_scc1 {l}")
                e.label(l + "_r")
                slow2.append((l, 8, 84, "s_cmp_ge_u32 s82, 4"))
            S_(chk)
        if t == t0:
            S_(nop)
            for g in range(0, 4, 2):
                def wr(g=g):
                    for gg in (g, g + 1): e.lds(f"ds_write_b128 v4, v[{FO+16+4*gg}:{FO+19+4*gg}] offset:{CH + gg*1024}")
                    if g == 2: e.lds("ds_write_b32 v19, v126 offset:48")
                S_(wr)
        if t == t0 + 3:
            def rdx():
                e.lds("ds_read_b32 v121, v6 offset:48", "ex")
                for g in range(4): e.lds(f"ds_read_b128 v[{FO+16+4*g}:{FO+19+4*g}], v5 offset:{CH + g*1024}", "ex")
            S_(rdx)
        if t == t0 + 5:
            def chk2():
                e.lg_wait({"ex"})
                l = e.newlabel("PX")
                e(f"v_readfirstlane_b32 s82, v121\ns_cmp_eq_u32 s82, 0\ns_cbranch_scc1 {l}")
                e.label(l + "_r")
                slow3.append(l)
                e.lds("ds_write_b32 v19, v126 offset:64")
            S_(chk2)
            for g in range(4):
                def grp(g=g):
                    for r in range(4*g, 4*g + 4): e(f"v_add_f32 v{FO+r}, v{FO+r}, v{FO+16+r}")
                def grp2(g=g):
                    for r in (4*g, 4*g + 2): e(f"v_cvt_pk_bf16_f32 v{FO+16+r}, v{FO+r}, v{FO+r+1}\nv_mov_b32 v{FO+17+r}, s84")
                def grp3(g=g):
                    stores([f"buffer_store_dwordx4 v[{FO+16+4*g}:{FO+19+4*g}], v18, s[20:23], s41 offen offset:{g*1024}"], "px")
                S_(grp); S_(lambda g=g, a=grp2, b=grp3: (a(), b()))
                for _ in range(gap): S_(nop)
        if t == 40:
            S_(lambda: e.lds("ds_read_b32 v121, v19 offset:128", "yd"))
            for g in range(0, 4, 2): S_(lambda g=g: [(recv_one(gg, YV, 42), e.vm.append("ry")) for gg in (g, g + 1)])
            S_(mkchk("yd", "YD", "s_cmp_eq_u32 s82, 0", 19, 128, "s_cmp_lg_u32 s82, 0"))
            S_(lambda: [e.lds(f"ds_read_b128 v[{MR+4*g}:{MR+3+4*g}], v4 offset:{g*1024}", "sx") for g in range(4)])
            S_(lambda: [e.lds(f"ds_read_b128 v[{104+4*g if g == 0 else 12}:{107+4*g if g == 0 else 15}], v7 offset:{g*1024}", "sx") for g in range(2)])
            S_(lambda: e.lds("ds_read_b32 v121, v6 offset:64", "sx"))
            S_(nop)
            for g in range(4):
                def ux(g=g):
                    if g == 0: e.lg_wait({"sx"})
                    for r in (2*g, 2*g + 1):
                        src = 104 + r if r < 4 else 12 + r - 4
                        e(f"v_lshlrev_b32 v{XR+2*r}, 16, v{src}\nv_and_b32 v{XR+2*r+1}, 0xffff0000, v{src}")
                S_(ux)
        if t == tr:
            for g in range(0, 4, 2): S_(lambda g=g: [(recv_one(gg, RV, 40), e.vm.append("rv")) for gg in (g, g + 1)])
        both_wait(t)
        bl = b_list(t + 3) if t + 3 < NT else []
        for b in range(2):
            e(mfma(acc + 16*b, areg(t), breg(t) + 4*b, t % 28 == 0))
            if b == 0 and t + NA - 1 < NT: a_issue(t + NA - 1)
            for s, tg in bl[2*b:2*b + 2]: e.lds(s, tg)
            if side: side.pop(0)()
        if t == 27: st(e, "ofor")
        if fine > 1 and t in (0, 6, 13, 20, 34, 39, 44, 50): st(e, f"t{t}")
    assert not side
    def recv_check(dst):
        e(f"v_min3_u32 v1, s84, v{dst+1}, v{dst+3}\nv_max3_u32 v2, s84, v{dst+1}, v{dst+3}")
        for g in range(1, 4): e(f"v_min3_u32 v1, v1, v{dst+4*g+1}, v{dst+4*g+3}\nv_max3_u32 v2, v2, v{dst+4*g+1}, v{dst+4*g+3}")
        e("v_cmp_eq_u32 vcc, v1, v2\ns_nop 1")
    def recv_finish(dst, sb, tag):
        l = e.newlabel("RV")
        e.vm_wait({tag})
        recv_check(dst)
        e(f"s_cmp_eq_u64 vcc, -1\ns_cbranch_scc1 {l}")
        def body():
            for g in range(4): recv_one(g, dst, sb)
            e("s_waitcnt vmcnt(0)")
            recv_check(dst)
        spin(e, body, "s_cmp_eq_u64 vcc, -1", sleep=1)
        e.label(l)
        for r in range(0, 16, 2): e(f"v_and_b32 v{dst+r+1}, 0xffff0000, v{dst+r}\nv_lshlrev_b32 v{dst+r}, 16, v{dst+r}")
    e.lg0()
    st(e, "oloop")
    l = e.newlabel("RX")
    e(f"v_readfirstlane_b32 s82, v121\ns_cmp_eq_u32 s82, 0\ns_cbranch_scc1 {l}")
    e.label(l + "_r")
    slow2.append((l, 6, 64, "s_cmp_lg_u32 s82, 0"))
    e("s_mov_b32 s28, 0xbfb8aa3b\ns_mov_b32 s29, 0xbfb8aa3b\ns_nop 5")
    for g in range(4): e(f"ds_write_b128 v4, v[{OW+16+4*g}:{OW+19+4*g}] offset:{CH + g*1024}")
    pk = lambda op, d, a, b, x="": e(f"v_pk_{op}_f32 v[{d}:{d+1}], v[{a}:{a+1}], {b} {x}".rstrip())
    R2 = range(0, 16, 2)
    O, PB, EX = OW, OW + 16, 24
    recv_finish(YV, 42, "ry")
    for r in R2: pk("add", MR+r, MR+r, f"v[{YV+r}:{YV+r+1}]")
    e.lg0()
    e("s_barrier")
    st(e, "fbar")
    for g in range(4): e(f"ds_read_b128 v[{EX+4*g}:{EX+3+4*g}], v5 offset:{CH + g*1024}")
    recv_finish(RV, 40, "rv")
    st(e, "orecv")
    for r in R2: pk("add", O+r, O+r, f"v[{RV+r}:{RV+r+1}]")
    e("s_waitcnt lgkmcnt(0)")
    for r in R2: pk("add", O+r, O+r, f"v[{EX+r}:{EX+r+1}]")
    for r in R2: pk("mul", O+r, O+r, f"v[{RR+r}:{RR+r+1}]")
    for r in R2: pk("mul", PB+r, O+r, "s[28:29]")
    for r in range(16): e(f"v_exp_f32 v{PB+r}, v{PB+r}")
    for r in R2: pk("mul", O+r, O+r, f"v[{MR+r}:{MR+r+1}]")
    for r in R2: pk("add", PB+r, PB+r, "1.0", "op_sel_hi:[1,0]")
    for r in range(16): e(f"v_rcp_f32 v{PB+r}, v{PB+r}")
    for r in R2:
        e(f"v_pk_fma_f32 v[{PB+r}:{PB+r+1}], v[{PB+r}:{PB+r+1}], v[{O+r}:{O+r+1}], v[{XR+r}:{XR+r+1}]")
        for rr in (r, r + 1):
            so = "0" if rr < 2 else f"s{32 + (rr >> 1)}"
            off = (rr & 1) * 1792
            e(f"buffer_store_dword v{PB+rr}, v116, s[16:19], {so} offen" + (f" offset:{off}" if off else "") + " " + outfl)
    e("s_cmp_lg_u32 s5, 15\ns_cbranch_scc1 K_nobump\ns_or_b32 s28, s6, s4\ns_cmp_lg_u32 s28, 0\ns_cbranch_scc1 K_nobump")
    e(f"v_mov_b32 v8, 0\nv_mov_b32 v9, s84\ns_mov_b32 s28, {WS_EP}\ns_mov_b64 exec, 1")
    e("buffer_store_dword v9, v8, s[20:23], s28 offen sc1")
    e("s_mov_b64 exec, -1")
    e.label("K_nobump")
    if pad:
        if padwg >= 0: e(f"s_cmp_lg_u32 s2, {padwg}\ns_cbranch_scc1 K_END")
        e.label("K_pad")
        e(f"s_memrealtime s[28:29]\ns_waitcnt lgkmcnt(0)\ns_sub_u32 s28, s28, s{100 if PADAT else 96}\ns_cmp_lt_u32 s28, {pad}\ns_cbranch_scc1 K_pad")
    st.dump(e); info["F"] = st.names
    e("s_endpgm")
    for l in slow3:
        e.label(l)
        lds_wait(6, 48, "s_cmp_lg_u32 s82, 0", 121, sleep=0)
        for g in range(4): e(f"ds_read_b128 v[{FO+16+4*g}:{FO+19+4*g}], v5 offset:{CH + g*1024}")
        e(f"s_waitcnt lgkmcnt(0)\ns_branch {l}_r")
    for l, addr, off, cond in slow2:
        e.label(l)
        lds_wait(addr, off, cond, 121, sleep=0)
        e(f"s_branch {l}_r")
    for l, need in slow:
        e.label(l)
        def body():
            e("ds_read_b128 v[104:107], v8\ns_waitcnt lgkmcnt(0)\nv_min_u32 v104, v104, v105\nv_min3_u32 v104, v104, v106, v107\ns_nop 0\nv_readfirstlane_b32 s82, v104")
        spin(e, body, f"s_cmp_ge_u32 s82, {need}", sleep=0)
        e(f"s_branch {l}_r")

    e.vm = []; e.lg = []
    e.label("K_S")
    st = Stamper(stamps, 143)
    e(f"s_setprio {sprio}")
    e("v_and_b32 v1, 19, v0\nv_bfe_u32 v2, v0, 2, 1\nv_lshl_add_u32 v1, v2, 3, v1\nv_bfe_u32 v2, v0, 3, 1\nv_lshl_add_u32 v1, v2, 2, v1\ns_lshl_b32 s30, s6, 5\nv_add_u32 v1, s30, v1\nv_lshlrev_b32 v1, 1, v1\nv_and_b32 v1, -4, v1")
    e("s_lshl_b32 s30, s91, 7\ns_and_b32 s31, s4, 2\ns_lshl_b32 s31, s31, 5\ns_add_u32 s30, s30, s31\nv_and_b32 v7, 30, v0\nv_lshl_add_u32 v7, v7, 1, s30\nv_mov_b32 v247, 0")
    e(f"v_add_u32 v23, s89, v20\nv_add_u32 v24, {RING}, v20")
    e("s_lshl_b32 s31, s4, 1\nv_xor_b32 v6, s31, v22")
    for jj in range(4):
        e(f"v_xor_b32 v5, {2*jj}, v6\nv_lshl_add_u32 v{10+jj}, v5, 4, v23\nv_add_u32 v{14+jj}, 0x10000, v{10+jj}\nv_lshl_add_u32 v{240+jj}, v5, 4, v24")
    e("s_mov_b32 s94, 0x3f803f80\nv_mov_b32 v34, 0\nv_mov_b32 v35, 0\nv_mov_b32 v36, 0\nv_mov_b32 v37, 0")
    e(f"s_mov_b32 s22, {WS_END}\ns_mov_b32 s23, 0x20000\ns_mov_b32 s82, {WS_EP}")
    e(f"v_mov_b32 v18, {FLG}\nv_mov_b32 v19, 1\ns_lshl_b32 s30, s4, 2\ns_add_u32 s30, s30, {FLG}\nv_mov_b32 v20, s30")
    e("s_waitcnt lgkmcnt(0)")
    e.vmem("global_load_dword v244, v1, s[34:35]", "par")
    e.vmem("global_load_dword v245, v1, s[36:37]", "par")
    e.vmem("global_load_dword v246, v1, s[46:47]", "par")
    e.vmem("global_load_dword v142, v7, s[48:49]", "par")
    e("s_mov_b32 s20, s62\ns_and_b32 s21, s63, 0xffff\ns_mov_b64 exec, 1")
    e.vmem("buffer_load_dword v247, v247, s[20:23], s82 offen sc1", "par")
    e("s_mov_b64 exec, -1")
    e(f"s_mul_i32 s30, s99, {ra}\ns_sub_u32 s30, 7, s30\ns_cmp_ge_u32 s30, 7\ns_cselect_b32 s30, 0, s30\ns_lshl_b32 s30, s30, 14\ns_lshl_b32 s31, s85, 13\ns_add_u32 s30, s30, s31\ns_and_b32 s31, s4, 1\ns_lshl_b32 s31, s31, 12\ns_add_u32 s30, s30, s31")
    e("v_bfe_u32 v4, v0, 2, 2\nv_lshl_add_u32 v4, v21, 2, v4\nv_lshrrev_b32 v5, 1, v4\nv_lshlrev_b32 v4, 7, v4\nv_bfe_u32 v7, v0, 4, 1\nv_lshlrev_b32 v7, 1, v7\nv_bfe_u32 v8, v0, 1, 1\nv_add_u32 v7, v7, v8")
    e("s_and_b32 s31, s4, 2\ns_lshl_b32 s31, s31, 1\nv_add_u32 v7, s31, v7\nv_xor_b32 v7, v7, v5\nv_lshl_add_u32 v4, v7, 4, v4\nv_and_b32 v7, 1, v0\nv_lshl_add_u32 v4, v7, 3, v4\nv_add_u32 v254, s30, v4\nv_xor_b32 v255, 64, v254")
    e("v_lshlrev_b32 v8, 4, v7\nv_xor_b32 v8, 16, v8")
    e("s_bitcmp1_b32 s4, 0\ns_cselect_b64 s[64:65], -1, 0")
    e("s_bitcmp1_b32 s4, 1\ns_cselect_b64 s[66:67], -1, 0\ns_mov_b32 s68, 0\ns_mov_b32 s69, -1")
    e("s_lshr_b32 s87, s4, 1\ns_lshl_b32 s73, s85, 6")
    K = []
    def k_(s): K.extend(s.split("\n"))
    for r in (244, 245, 246, 142): k_(f"v_lshlrev_b32 v{r}, v8, v{r}\nv_and_b32 v{r}, 0xffff0000, v{r}")
    k_(f"v_mul_f32 v246, {LOG2E}, v246\nv_exp_f32 v246, v246\ns_nop 0\nv_cvt_pk_bf16_f32 v246, v246, v246\nv_and_b32 v246, 0xffff0000, v246")
    k_(f"v_mul_f32 v5, v246, v244\nv_mul_f32 v6, v246, v245\nv_mul_f32 v5, {LOG2E}, v5\nv_exp_f32 v5, v5")
    k_("v_mul_f32 v6, 0.15915494, v6\nv_rndne_f32 v9, v6\nv_sub_f32 v6, v6, v9\nv_cos_f32 v22, v6\nv_sin_f32 v23, v6\ns_nop 0")
    k_("v_mul_f32 v22, v22, v5\nv_mul_f32 v23, v23, v5")
    k_("v_mul_f32 v5, v244, v244\nv_fma_f32 v5, v245, v245, v5\nv_rcp_f32 v5, v5\nv_add_f32 v6, -1.0, v22")
    k_("v_mul_f32 v30, v6, v244\nv_fma_f32 v30, v23, v245, v30\nv_mul_f32 v31, v23, v244\nv_fma_f32 v31, -v6, v245, v31")
    k_("v_add_f32 v5, v5, v5\nv_mul_f32 v30, v30, v5\nv_mul_f32 v31, v31, v5\nv_xor_b32 v33, 0x80000000, v23")
    def csq(d, s): k_(f"v_mul_f32 v9, v{s}, v{s+1}\nv_mul_f32 v{d}, v{s}, v{s}\nv_fma_f32 v{d}, -v{s+1}, v{s+1}, v{d}\nv_add_f32 v{d+1}, v9, v9")
    def pwmul(mask):
        k_(f"v_cndmask_b32 v5, 1.0, v26, {mask}\nv_cndmask_b32 v6, 0, v27, {mask}")
        k_("v_mul_f32 v9, v28, v6\nv_mul_f32 v28, v28, v5\nv_fma_f32 v28, -v29, v6, v28\nv_fma_f32 v29, v29, v5, v9")
    csq(24, 22); csq(24, 24); csq(24, 24); csq(24, 24)
    k_("v_cndmask_b32 v28, 1.0, v24, s[68:69]\nv_cndmask_b32 v29, 0, v25, s[68:69]")
    csq(26, 24); pwmul("s[64:65]"); csq(26, 26); pwmul("s[66:67]"); csq(26, 26); csq(136, 26)
    QR, QI = 104, 120
    for j in range(16):
        pr, pi = (30, 31) if j == 0 else (QR + j - 1, QI + j - 1)
        k_(f"v_mul_f32 v{QR+j}, v22, v{pr}\nv_mul_f32 v{QI+j}, v22, v{pi}\nv_fmac_f32 v{QR+j}, v33, v{pi}\nv_fmac_f32 v{QI+j}, v23, v{pr}")
    k_("v_xor_b32 v31, 0x80000000, v31\nv_xor_b32 v32, 0x80000000, v30")
    UR, UI = 40, 56
    SF = [144, 192]
    def sreads(sg):
        fs = SF[sg & 1]; out = []
        for j in range(4):
            xb = (10 + j) if sg < 4 else (14 + j)
            out += [f"ds_read_b128 v[{fs+12*j}:{fs+12*j+3}], v{xb} offset:{(sg & 3)*CH}",
                    f"ds_read_b128 v[{fs+12*j+4}:{fs+12*j+7}], v{240+j} offset:{(sg % NR)*8192}",
                    f"ds_read_b128 v[{fs+12*j+8}:{fs+12*j+11}], v{240+j} offset:{(sg % NR)*8192+4096}"]
        return out
    def dots(fs):
        for j in range(4):
            for q in range(4): e(f"v_dot2c_f32_bf16 v37, v{fs+12*j+q}, v{fs+12*j+q}\nv_dot2c_f32_bf16 v36, s94, v{fs+12*j+q}")
        for q in range(4): e(f"v_dot2c_f32_bf16 v34, s94, v{fs+4+q}\nv_dot2c_f32_bf16 v35, s94, v{fs+8+q}")
    Z = []
    def z_(s): Z.extend(s.split("\n"))
    z_("v_mov_b32 v1, v36\nv_mov_b32 v2, v37\ns_nop 1")
    z_("v_permlane32_swap_b32 v36, v1\nv_permlane32_swap_b32 v37, v2\nv_permlane32_swap_b32 v34, v35\ns_nop 1")
    z_("v_add_f32 v34, v34, v35\nv_add_f32 v36, v36, v1\nv_add_f32 v37, v37, v2\nds_write_b32 v248, v34")
    z_("v_mul_f32 v36, 0x3b124925, v36\nv_mul_f32 v37, 0x3b124925, v37")
    z_("v_fma_f32 v37, -v36, v36, v37\nv_max_f32 v37, 0, v37\nv_cvt_pk_bf16_f32 v1, v37, v36")
    z_("v_and_b32 v36, 0xffff0000, v1\nv_lshlrev_b32 v37, 16, v1\nv_add_f32 v37, 0x3727c5ac, v37")
    z_("v_cvt_pk_bf16_f32 v37, v37, v37\nv_and_b32 v37, 0xffff0000, v37\nv_sqrt_f32 v37, v37\ns_nop 0")
    z_("v_cvt_pk_bf16_f32 v37, v37, v37\nv_and_b32 v37, 0xffff0000, v37\nv_rcp_f32 v37, v37\ns_nop 0")
    z_("v_cndmask_b32 v36, v36, v37, s[68:69]\nds_write_b32 v249, v36")
    e(f"s_lshl_b32 s30, s4, 2\ns_add_u32 s30, s30, {CSB}\nv_lshl_add_u32 v248, v0, 4, s30")
    tau_of_lane(e, 249, 2)
    e(f"s_lshl_b32 s30, s4, 7\ns_add_u32 s30, s30, {STAT}\nv_lshl_add_u32 v249, v249, 2, s30\nv_lshl_add_u32 v249, v21, 9, v249\nv_lshl_add_u32 v3, v21, 6, s30")
    e(f"v_and_b32 v250, 31, v0\nv_lshlrev_b32 v250, 4, v250\nv_add_u32 v250, {CSB}, v250")
    st(e, "b0")
    e("s_barrier")
    for x in sreads(0): e(x)
    e.vm_wait({"par"})
    for sg in range(7):
        fs = SF[sg & 1]
        if sg == 1:
            e("v_readfirstlane_b32 s84, v247\ns_add_u32 s84, s84, 1\ns_max_u32 s84, s84, 1")
            e(f"s_getreg_b32 s74, hwreg(HW_REG_XCC_ID, 0, 4)\ns_lshl_b32 s78, s5, 1\ns_add_u32 s78, s78, s85\ns_lshl_b32 s78, s78, 10\ns_add_u32 s78, s78, {WS_FH}\ns_add_u32 s75, s78, {WS_XID - WS_FH}")
            e("s_cmp_lg_u32 s4, 0\ns_cbranch_scc1 K_noxid")
            e("s_lshl_b32 s31, s91, 7\nv_mov_b32 v251, s31\nv_mov_b32 v252, s74\nv_mov_b32 v253, s84\ns_mov_b64 exec, 1")
            e("buffer_store_dwordx2 v[252:253], v251, s[20:23], s75 offen sc1\ns_mov_b64 exec, -1")
            e.label("K_noxid")
        e.lg0()
        if sg == 6:
            for j in range(4): e(f"ds_read_b64_tr_b16 v[{208+2*j}:{209+2*j}], v{254 + (j & 1)} offset:{j*1024}")
            dots(fs)
            e.lg0()
        st(e, f"b{sg+1}")
        e("s_barrier")
        rd = sreads(sg + 1) if sg < 6 else []
        for j in range(4):
            for acc, o in ((UR, 4), (UI, 8)):
                e(mfma(acc, fs+12*j, fs+12*j+o, sg == 0 and j == 0))
                for x in rd[:2]: e(x)
                nk = kint if rd else 4
                rd = rd[2:]
                for _ in range(nk):
                    if sg == 6:
                        if Z: e(Z.pop(0))
                    elif sg >= 1 and K: e(K.pop(0))
        if sg < 6: dots(fs)
    for x in Z: e(x)
    gen = [0]
    def ssync(extra=None):
        gen[0] += 1
        e("s_mov_b64 exec, 1\nds_add_u32 v18, v19 offset:80\ns_mov_b64 exec, -1")
        def body():
            e("ds_read_b32 v1, v18 offset:80")
            if extra: extra()
            e("s_waitcnt lgkmcnt(0)\nv_readfirstlane_b32 s82, v1")
        spin(e, body, f"s_cmp_ge_u32 s82, {4*gen[0]}", sleep=ssl)
        e.lg = []
    def wait_prog(n):
        def body():
            e("ds_read_b128 v[4:7], v18\ns_waitcnt lgkmcnt(0)\nv_min_u32 v4, v4, v5\nv_min3_u32 v4, v4, v6, v7\ns_nop 0\nv_readfirstlane_b32 s82, v4")
        spin(e, body, f"s_cmp_ge_u32 s82, {n}", sleep=wsl)
        e.lg = []
    M, R = 72, 88
    e(f"s_setprio {sprio2}")
    if sidle:
        def body():
            e("s_sleep 8\nds_read_b128 v[4:7], v18\ns_waitcnt lgkmcnt(0)\nv_min_u32 v4, v4, v5\nv_min3_u32 v4, v4, v6, v7\ns_nop 0\nv_readfirstlane_b32 s82, v4")
        spin(e, body, "s_cmp_ge_u32 s82, 7", sleep=1)
    TMP = 192
    for q in range(4): e(f"ds_read_b128 v[{M+4*q}:{M+4*q+3}], v3 offset:{16*q}")
    for q in range(4): e(f"ds_read_b128 v[{R+4*q}:{R+4*q+3}], v3 offset:{512+16*q}")
    e(f"s_lshl_b32 s30, s4, 9\ns_add_u32 s30, s30, {SUB}\nv_lshl_add_u32 v2, v0, 3, s30\nv_add_u32 v3, {7*256}, v2")
    ssync(lambda: e(f"ds_read_b128 v[{TMP}:{TMP+3}], v250\nds_read_b128 v[{TMP+4}:{TMP+7}], v250 offset:512"))
    st(e, "ss1")
    t = TMP
    e(f"v_add_f32 v{t}, v{t}, v{t+1}\nv_add_f32 v{t+2}, v{t+2}, v{t+3}\nv_add_f32 v{t+4}, v{t+4}, v{t+5}\nv_add_f32 v{t+6}, v{t+6}, v{t+7}\nv_add_f32 v34, -v{t}, -v{t+2}\nv_add_f32 v35, -v{t+4}, -v{t+6}")
    for j in range(16): e(f"v_fmac_f32 v{UR+j}, v34, v{M+j}\nv_fmac_f32 v{UI+j}, v35, v{M+j}")
    for j in range(16): e(f"v_mul_f32 v{UR+j}, v{UR+j}, v{R+j}\nv_mul_f32 v{UI+j}, v{UI+j}, v{R+j}")
    st(e, "fold")
    for j in range(1, 16):
        e(f"v_fmac_f32 v{UR+j}, v22, v{UR+j-1}\nv_fmac_f32 v{UI+j}, v22, v{UI+j-1}\nv_fmac_f32 v{UR+j}, v33, v{UI+j-1}\nv_fmac_f32 v{UI+j}, v23, v{UR+j-1}")
    st(e, "scan")
    e(f"ds_write2_b32 v3, v{UR+15}, v{UI+15} offset1:1")
    def step(dr, di, hr, hi, ur, ui, lr, li):
        e(f"v_fma_f32 v{dr}, v{lr}, v{hr}, v{ur}\nv_fma_f32 v{di}, v{lr}, v{hi}, v{ui}")
        e(f"v_fma_f32 v{dr}, -v{li}, v{hi}, v{dr}\nv_fma_f32 v{di}, v{li}, v{hr}, v{di}")
    def rdsub():
        for d in range(7): e(f"ds_read_b64 v[{TMP+2*d}:{TMP+1+2*d}], v2 offset:{d*256}")
    ssync(rdsub)
    st(e, "ss")
    for d in range(1, 7):
        dd = (38, 39) if d == 6 else (TMP + 2*d, TMP + 1 + 2*d)
        step(dd[0], dd[1], TMP - 2 + 2*d, TMP - 1 + 2*d, TMP + 2*d, TMP + 1 + 2*d, 24, 25)
    e("s_cmp_lg_u32 s4, 3\ns_cbranch_scc1 K_nopub")
    step(TMP, TMP + 2, 38, 39, UR + 15, UI + 15, 24, 25)
    e(f"v_mov_b32 v{TMP+1}, s84\nv_mov_b32 v{TMP+3}, s84")
    e(f"s_lshl_b32 s30, s6, 4\ns_add_u32 s30, s30, s5\ns_lshl_b32 s30, s30, 9\ns_add_u32 s30, s30, {WS_AGG - 512}")
    e("v_lshlrev_b32 v1, 4, v0\ns_mov_b32 exec_lo, 0")
    e(f"buffer_store_dwordx4 v[{TMP}:{TMP+3}], v1, s[20:23], s30 offen sc1")
    e("s_mov_b32 exec_lo, -1")
    e.label("K_nopub")
    st(e, "pub")
    for x in K: e(x)
    GR, GI = 72, 88
    for j in range(16):
        e(f"v_mul_f32 v{GR+j}, v30, v{UR+j}\nv_mul_f32 v{GI+j}, v32, v{UI+j}\nv_fmac_f32 v{GR+j}, v31, v{UI+j}\nv_fmac_f32 v{GI+j}, v31, v{UR+j}")
    AG = 40
    st(e, "g")
    for i in range(8): e(f"v_mov_b32 v{AG+4*i}, 0\nv_mov_b32 v{AG+4*i+1}, s84\nv_mov_b32 v{AG+4*i+2}, 0\nv_mov_b32 v{AG+4*i+3}, s84")
    e(f"s_lshl_b32 s90, s6, 11\ns_lshl_b32 s30, s4, 8\ns_add_u32 s90, s90, s30\ns_add_u32 s90, s90, {WS_CS}")
    e("v_and_b32 v34, 31, v0\nv_lshlrev_b32 v34, 3, v34\nv_lshl_add_u32 v34, v21, 10, v34")
    def cs_loads():
        e("buffer_load_dwordx2 v[8:9], v34, s[20:23], s90 offen sc1\nbuffer_load_dwordx2 v[140:141], v35, s[20:23], s75 offen sc1")
    cs_chk = "v_cmp_eq_u32 vcc, s84, v9\nv_cmp_eq_u32 s[28:29], s84, v141\ns_nop 1\ns_and_b64 vcc, vcc, s[28:29]"
    e("v_min_u32 v35, 6, v0\nv_lshlrev_b32 v35, 7, v35")
    cs_loads()
    e(f"s_lshl_b32 s30, s91, 7\ns_add_u32 s30, s30, s78\nv_mul_u32_u24 v1, {WS_FO - WS_FH}, v21")
    e("s_mov_b32 exec_lo, 1\ns_mov_b32 exec_hi, 1\nbuffer_load_dword v251, v1, s[20:23], s30 offen sc1\ns_mov_b64 exec, -1")
    e(f"s_lshl_b32 s92, s6, 4\ns_add_u32 s92, s92, s5\ns_lshl_b32 s92, s92, 9\ns_add_u32 s92, s92, {WS_AGG - 8192}\ns_add_u32 s93, s92, 4096\nv_lshlrev_b32 v3, 4, v0")
    def agg_loads():
        for i in range(8):
            l = e.newlabel("AL")
            e(f"s_cmp_lt_u32 s5, {15 - 2*i}\ns_cbranch_scc1 {l}")
            e(f"s_cmp_ge_u32 s5, {16 - 2*i}\ns_cselect_b32 exec_lo, -1, 0")
            e(f"buffer_load_dwordx4 v[{AG+4*i}:{AG+4*i+3}], v3, s[20:23], s{92 + (i >> 2)} offen offset:{1024*(i & 3)} sc1")
            e.label(l)
        e("s_mov_b32 exec_lo, -1")
    agg_loads()
    st(e, "aggi")
    SEL = 144
    tau_of_lane(e, 1, 2)
    e("v_lshlrev_b32 v2, 4, v21\nv_sub_u32 v1, v1, v2\nv_and_b32 v2, 1, v1\nv_lshlrev_b32 v2, 4, v2\nv_mov_b32 v4, 0x3f80\nv_lshlrev_b32 v2, v2, v4\nv_ashrrev_i32 v1, 1, v1")
    for q in range(0, 8, 2):
        e(f"v_cmp_eq_u32 vcc, {q}, v1\nv_cmp_eq_u32 s[30:31], {q+1}, v1\ns_nop 0\nv_cndmask_b32 v{SEL+q}, 0, v2, vcc\nv_cndmask_b32 v{SEL+q+1}, 0, v2, s[30:31]")
    e(f"s_mul_i32 s76, s5, {2*A_W}\ns_lshl_b32 s30, s6, 13\ns_add_u32 s76, s76, s30\ns_lshl_b32 s30, s4, 10\ns_add_u32 s76, s76, s30\ns_add_u32 s77, s76, {A_W}")
    def rnd(b):
        for r in range(0, 16, 2): e(f"v_cvt_pk_bf16_f32 v{b+r}, v{b+r}, v{b+r+1}")
        for r in range(0, 16, 2): e(f"v_and_b32 v{b+r+1}, 0xffff0000, v{b+r}\nv_lshlrev_b32 v{b+r}, 16, v{b+r}")
    e.vm0()
    st(e, "aggl")
    e("s_mov_b32 s95, 0")
    e.label("K_horner")
    e(f"v_min3_u32 v1, s84, v{AG+1}, v{AG+3}\nv_max3_u32 v2, s84, v{AG+1}, v{AG+3}")
    for i in range(1, 8):
        b = AG + 4*i
        src = (AG, AG + 2) if i == 1 else ((4, 5) if i % 2 == 0 else (6, 7))
        dst = (4, 5) if i % 2 == 1 else (6, 7)
        step(dst[0], dst[1], src[0], src[1], b, b + 2, 136, 137)
        e(f"v_min3_u32 v1, v1, v{b+1}, v{b+3}\nv_max3_u32 v2, v2, v{b+1}, v{b+3}")
    e("v_cmp_eq_u32 vcc, v1, v2\nv_mov_b32 v6, v4\nv_mov_b32 v7, v5\ns_cmp_eq_u64 vcc, -1\ns_cbranch_scc1 K_hok")
    e(f"s_add_u32 s95, s95, 1\ns_cmp_ge_u32 s95, {SPIN_MAX}\ns_cbranch_scc1 K_hok\ns_sleep 4")
    agg_loads()
    e("s_waitcnt vmcnt(0)\ns_branch K_horner")
    e.label("K_hok")
    st(e, "look")
    e("v_permlane32_swap_b32 v4, v6\nv_permlane32_swap_b32 v5, v7\ns_nop 0")
    step(6, 7, 4, 5, 6, 7, 26, 27)
    step(38, 39, 6, 7, 38, 39, 28, 29)
    e("v_xor_b32 v36, 0x80000000, v38\nv_xor_b32 v37, 0x80000000, v39")
    for j in range(0, 16, 2):
        for x in (j, j + 1):
            e(f"v_fmac_f32 v{GR+x}, v38, v{QR+x}\nv_fmac_f32 v{GI+x}, v37, v{QR+x}\nv_fmac_f32 v{GR+x}, v37, v{QI+x}\nv_fmac_f32 v{GI+x}, v36, v{QI+x}")
        e(f"v_cvt_pk_bf16_f32 v{40+j//2}, v{GR+j}, v{GR+j+1}\nv_cvt_pk_bf16_f32 v{48+j//2}, v{GI+j}, v{GI+j+1}")
    st(e, "fin")
    e("s_setprio 3")
    e(mfma(160, 40, SEL, True)); e(mfma(176, 48, SEL, True)); e(mfma(160, 44, SEL + 4)); e(mfma(176, 52, SEL + 4))
    e(f"s_setprio {sprio2}")
    e("s_add_u32 s30, s76, 4096\ns_add_u32 s31, s77, 4096\ns_nop 7")
    for r in range(16): e(f"v_cvt_pk_bf16_f32 v{56+r}, v{160+2*r}, v{161+2*r}")
    st(e, "ht")
    stores([f"buffer_store_dwordx4 v[56:59], v3, s[20:23], s76 offen", "buffer_store_dwordx4 v[60:63], v3, s[20:23], s30 offen",
            f"buffer_store_dwordx4 v[64:67], v3, s[20:23], s77 offen", "buffer_store_dwordx4 v[68:71], v3, s[20:23], s31 offen"], "h")
    st(e, "hst")
    e(cs_chk + "\ns_cmp_eq_u64 vcc, -1\ns_cbranch_scc1 K_cs_ok")
    def body():
        cs_loads()
        e("s_waitcnt vmcnt(0)\n" + cs_chk)
    spin(e, body, "s_cmp_eq_u64 vcc, -1", sleep=2)
    e.label("K_cs_ok")
    e("v_cmp_eq_u32 vcc, s74, v140")
    e(f"s_lshl_b32 s30, s4, 8\ns_add_u32 s30, s30, {CSW}\nv_lshl_add_u32 v1, v0, 2, s30")
    e("s_cmp_eq_u64 vcc, -1\ns_cselect_b32 s97, 2, 1")
    if force: e(f"s_mov_b32 s97, {force}")
    e("v_mov_b32 v2, s97\nds_write_b32 v1, v8\nds_write_b32 v20, v2 offset:16")
    e(f"s_lshl_b32 s30, s87, 14\ns_xor_b32 s31, s30, 0x4000\ns_and_b32 s29, s4, 1\ns_lshl_b32 s29, s29, 12\ns_sub_u32 s29, {C0}, s29\ns_add_u32 s30, s30, s29\ns_add_u32 s31, s31, s29\ns_lshl_b32 s29, s4, 5")
    for j in range(4): e(f"v_xor_b32 v{10+j}, s29, v{10+j}\nv_add_u32 v{14+j}, s31, v{10+j}\nv_add_u32 v{10+j}, s30, v{10+j}")
    e("s_lshl_b32 s30, s91, 7\ns_lshl_b32 s31, s4, 2\ns_add_u32 s31, s31, s30\nv_mov_b32 v4, s31\nv_mov_b32 v5, s84")
    e.vm_wait({"h"})
    e("s_mov_b64 exec, 1")
    dual(["buffer_store_dword v5, v4, s[20:23], s78 offen"], "fl")
    e("s_mov_b64 exec, -1")
    st(e, "hflag")
    if rb_y:
        e("s_add_u32 s30, s76, 4096\ns_add_u32 s31, s77, 4096")
        for g, sr in enumerate((76, 30, 77, 31)): e(f"buffer_load_dwordx4 v[{24+4*g}:{27+4*g}], v3, s[20:23], s{sr} offen sc1")
    e(f"s_lshl_b32 s92, s5, 1\ns_add_u32 s92, s92, s87\ns_mul_i32 s92, s92, {A_W}\ns_lshl_b32 s30, s85, 13\ns_add_u32 s93, s92, s30\ns_add_u32 s93, s93, {3*CH}\ns_lshl_b32 s30, s85, 16\ns_add_u32 s92, s92, s30")
    e("v_and_b32 v8, 7, v0\nv_min_u32 v8, 6, v8\nv_lshlrev_b32 v8, 7, v8\nv_and_b32 v1, 8, v0\nv_add_u32 v8, v8, v1\ns_and_b32 s30, s4, 1\ns_lshl_b32 s31, s30, 2\nv_add_u32 v8, s31, v8")
    e("s_lshl_b32 s30, s30, 10\ns_lshl_b32 s31, s85, 11\ns_add_u32 s30, s30, s31\nv_add_u32 v23, s30, v3\nv_xor_b32 v22, 0x800, v23")
    e(f"s_mul_i32 s76, s5, 7\ns_add_u32 s76, s76, s91\ns_lshl_b32 s76, s76, 1\ns_add_u32 s76, s76, s85\ns_lshl_b32 s76, s76, 15\ns_add_u32 s76, s76, s89\ns_xor_b32 s77, s76, 0x8000\ns_add_u32 s76, s76, {WS_PX}\ns_add_u32 s77, s77, {WS_PX}")
    def creg(k): return 144 + 8 * k
    def c_list(r):
        out = []
        for k in range(8*r, min(14, 8*r + 8)):
            if k == 12: out += [f"v_xor_b32 v{10+j}, s73, v{10+j}" for j in (0, 1, 4, 5)]
            for b in range(2):
                g = creg(k) + 4*b
                out.append(f"ds_read_b128 v[{g}:{g+3}], v{10 + 4*b + (k & 3)} offset:{r*2*CH + ((k >> 2) & 1)*4096}")
        return out
    XR, MR, RR = 64, 80, 96
    e(f"s_lshl_b32 s29, s85, 6\ns_and_b32 s31, s4, 1\ns_lshl_b32 s31, s31, 5\ns_add_u32 s29, s29, s31\ns_lshl_b32 s29, s29, 2\ns_add_u32 s29, s29, {STAT}\nv_lshl_add_u32 v4, v21, 6, s29")
    for q in range(4):
        e(f"ds_read_b128 v[{MR+4*q}:{MR+4*q+3}], v4 offset:{16*q}\nds_read_b128 v[{RR+4*q}:{RR+4*q+3}], v4 offset:{512+16*q}")
    for r in range(8): e(f"v_mov_b32 v{56+r}, v{208+r}\nv_lshlrev_b32 v{XR+2*r}, 16, v{208+r}\nv_and_b32 v{XR+2*r+1}, 0xffff0000, v{208+r}")
    e.lg0()
    for r in range(16): e(f"v_sub_f32 v{MR+r}, v{XR+r}, v{MR+r}")
    rnd(MR)
    for r in range(16): e(f"v_mul_f32 v{MR+r}, v{MR+r}, v{RR+r}")
    rnd(MR)
    for r in range(16): e(f"v_mul_f32 v{MR+r}, v{MR+r}, v142")
    for r in range(8): e(f"v_cvt_pk_bf16_f32 v{128+r}, v{MR+2*r}, v{MR+2*r+1}")
    st(e, "xn")
    wait_prog(6)
    for x in c_list(0): e(x)
    e("s_waitcnt lgkmcnt(0)\ns_mov_b64 exec, 1\nds_add_u32 v18, v19 offset:88")
    st(e, "c0")
    e("s_mov_b64 exec, 0xffff")
    def body():
        e("buffer_load_dword v9, v8, s[20:23], s78 offen sc1\ns_waitcnt vmcnt(0)\nv_cmp_eq_u32 vcc, s84, v9\ns_nop 1")
    spin(e, body, "s_cmp_eq_u64 vcc, exec", sleep=4)
    e("s_mov_b64 exec, -1")
    e.vm = []
    st(e, "hseen")
    NP = 8
    ypre = min(ypre, NP - 1)
    YA = [64, 96]
    def yreg(t): return 24 + 4*(t % NP)
    def yissue(t):
        k = t >> 1
        if (t & 1) == 0 and k > 0: e("s_mov_b32 s92, s93" if k == 12 else "s_add_u32 s92, s92, 4096")
        e.vmem(f"buffer_load_dwordx4 v[{yreg(t)}:{yreg(t)+3}], v{22 + (t & 1)}, s[20:23], s92 offen sc1", ("A", t))
    if ypre:
        if ywait > 6: wait_prog(ywait)
        for t in range(ypre): yissue(t)
    def body():
        e("ds_read_b128 v[4:7], v18 offset:32\ns_waitcnt lgkmcnt(0)\nv_min_u32 v4, v4, v5\nv_min3_u32 v4, v4, v6, v7\ns_nop 0\nv_readfirstlane_b32 s82, v4")
    spin(e, body, "s_cmp_lg_u32 s82, 0", sleep=1)
    st(e, "epid")
    e("s_setprio 3")
    for t in range(ypre, NP - 1): yissue(t)
    for x in c_list(1): e(x)
    e(f"s_add_u32 s31, s89, {SC}\nv_add_u32 v136, s31, v3\nv_xor_b32 v137, 0x2000, v136\nv_xor_b32 v138, 8, v20")
    for t in range(28):
        k = t >> 1
        if t == 8: e("s_waitcnt lgkmcnt(0)\ns_mov_b64 exec, 1\nds_add_u32 v18, v19 offset:92\ns_mov_b64 exec, -1")
        if t == 24: e("ds_read_b32 v1, v18 offset:92")
        e.vm_wait({("A", t)})
        for b in range(2):
            e(mfma(YA[t & 1] + 16*b, yreg(t), creg(k) + 4*b, k == 0))
            if b == 0 and t + NP - 1 < 28: yissue(t + NP - 1)
    st(e, "yloop")
    e("s_waitcnt lgkmcnt(0)\nv_readfirstlane_b32 s82, v1\ns_cmp_ge_u32 s82, 4\ns_cbranch_scc1 K_c1ok")
    lds_wait(18, 92, "s_cmp_ge_u32 s82, 4", 1, sleep=0)
    e.label("K_c1ok")
    e("s_nop 5")
    for ps in range(2):
        for g in range(4): e(f"ds_write_b128 v136, v[{YA[ps]+16+4*g}:{YA[ps]+19+4*g}] offset:{ps*CH + g*1024}")
    e("ds_write_b32 v20, v19 offset:96")
    lds_wait(138, 96, "s_cmp_lg_u32 s82, 0", 1, sleep=0)
    st(e, "yw")
    for ps in range(2):
        for g in range(4): e(f"ds_read_b128 v[{YA[ps]+16+4*g}:{YA[ps]+19+4*g}], v137 offset:{ps*CH + g*1024}")
    e("s_waitcnt lgkmcnt(4)")
    Y = YA[0]
    for r in range(16): e(f"v_add_f32 v{Y+r}, v{Y+r}, v{Y+16+r}")
    for r in range(0, 16, 2): e(f"v_cvt_pk_bf16_f32 v{24+r}, v{Y+r}, v{Y+r+1}\nv_mov_b32 v{25+r}, s84")
    e("s_waitcnt lgkmcnt(0)\ns_mov_b64 exec, 1\nds_add_u32 v18, v19 offset:84\ns_mov_b64 exec, -1")
    st(e, "yx")
    e("s_setprio 0")
    Y = YA[1]
    def ysend(g): stores([f"buffer_store_dwordx4 v[{24+4*g}:{27+4*g}], v3, s[20:23], s77 offen offset:{g*1024}"], "px")
    ysend(0)
    for r in range(16): e(f"v_add_f32 v{Y+r}, v{Y+r}, v{Y+16+r}")
    for r in range(8): e(f"v_lshlrev_b32 v{Y+16+2*r}, 16, v{128+r}\nv_and_b32 v{Y+17+2*r}, 0xffff0000, v{128+r}")
    ysend(1)
    for r in range(16): e(f"v_add_f32 v{Y+r}, v{Y+r}, v{Y+16+r}")
    lds_wait(18, 84, "s_cmp_ge_u32 s82, 4", 1, sleep=1)
    ysend(2)
    for g in range(4): e(f"ds_write_b128 v136, v[{Y+4*g}:{Y+3+4*g}] offset:{g*1024}")
    e(f"v_add_u32 v11, {6*CH + 2048 - SC}, v136")
    for g in range(2): e(f"ds_write_b128 v11, v[{56+4*g}:{59+4*g}] offset:{g*1024}")
    e("ds_write_b32 v20, v19 offset:128")
    e.lg0()
    ysend(3)
    st(e, "ydone")
    e.lg0()
    e("s_barrier")
    st.dump(e); info["S"] = st.names
    e("s_endpgm")

    e.vm = []; e.lg = []
    e.label("K_SPARE")
    st = Stamper(stamps, 143)
    e("s_getpc_b64 s[28:29]")
    e.label("K_PC")
    e(f"s_sub_u32 s28, s28, K_PC-{name}\ns_subb_u32 s29, s29, 0")
    e(f"v_lshlrev_b32 v7, 7, v2\nv_min_u32 v5, ALL_END-{name}-4, v7")
    e("s_cmp_lt_u32 s2, 248\ns_cbranch_scc1 K_sp0")
    e("global_load_dword v83, v5, s[28:29]")
    e.label("K_sp0")
    e("s_sub_u32 s4, s2, 224\ns_lshr_b32 s5, s4, 1\ns_and_b32 s6, s4, 1")
    e("v_lshrrev_b32 v3, 4, v2\nv_and_b32 v4, 15, v2\nv_mul_u32_u24 v5, 0xe00, v3\nv_lshl_add_u32 v5, v4, 4, v5")
    e(f"v_mov_b32 v6, 0\ns_mov_b32 s82, {WS_EP}\ns_lshl_b32 s28, s5, 8")
    e("s_cmp_eq_u32 s6, 0")
    e("s_waitcnt lgkmcnt(0)")
    e("s_cselect_b32 s16, s52, s54\ns_cselect_b32 s17, s53, s55")
    e(f"s_and_b32 s17, s17, 0xffff\ns_mov_b32 s18, {448*3584}\ns_mov_b32 s19, 0x20000")
    srd(e, 20, 62, WS_END)
    srd(e, 8, 56, 1792 * 896)
    srd(e, 64, 42, 448 * 896)
    srd(e, 68, 44, 448 * 896)
    e("s_cmp_ge_u32 s4, 28\ns_cbranch_scc1 K_sp4")
    e.vmem("buffer_load_dword v6, v6, s[20:23], s82 offen sc1", "ep")
    for i in range(14):
        e.vmem(f"buffer_load_dwordx4 v[{16+4*i}:{19+4*i}], v5, s[16:19], s28 offen", ("cs", i))
        if i < 13: e(f"s_add_u32 s28, s28, {32*3584}")
    if warm:
        e("s_mul_i32 s28, s4, 57344\ns_mul_i32 s29, s4, 14336")
        e.vmem("buffer_load_dword v80, v7, s[8:11], s28 offen", "t")
        e("v_and_b32 v4, 0x3fff, v7\ns_cmp_lt_u32 s3, 2\ns_cselect_b32 s64, s64, s68\ns_cselect_b32 s65, s65, s69\ns_cmp_lt_u32 s3, 4\ns_cselect_b32 s66, s66, 0")
        e.vmem("buffer_load_dword v81, v4, s[64:67], s29 offen", "t")
    for q in range(8): e(f"v_mov_b32 v{8+q}, 0")
    for i in range(14):
        e.vm_wait({("cs", i)})
        for q in range(4):
            e(f"v_lshlrev_b32 v72, 16, v{16+4*i+q}\nv_and_b32 v73, 0xffff0000, v{16+4*i+q}\nv_pk_add_f32 v[{8+2*q}:{9+2*q}], v[{8+2*q}:{9+2*q}], v[72:73]")
    e("v_lshlrev_b32 v3, 5, v2")
    e("ds_write_b128 v3, v[8:11]\nds_write_b128 v3, v[12:15] offset:16\ns_waitcnt lgkmcnt(0)")
    st(e, "acc")
    e("s_barrier")
    e("s_cmp_lg_u32 s3, 7\ns_cbranch_scc1 K_sp2")
    e("v_lshlrev_b32 v3, 3, v0\nv_add_u32 v9, 1, v6\nv_max_u32 v9, 1, v9\nv_mov_b32 v11, v9")
    for h in range(2):
        for i in range(16): e(f"ds_read_b64 v[{16+2*i}:{17+2*i}], v3 offset:{(16*h+i)*512}")
        e("s_waitcnt lgkmcnt(0)")
        if h == 0: e("v_mov_b32 v12, 0\nv_mov_b32 v13, 0")
        for i in range(16): e(f"v_pk_add_f32 v[12:13], v[12:13], v[{16+2*i}:{17+2*i}]")
    e(f"v_mov_b32 v8, v12\nv_mov_b32 v10, v13\nv_lshlrev_b32 v3, 4, v0\ns_lshl_b32 s30, s4, 10\ns_add_u32 s30, s30, {WS_CS}")
    e("buffer_store_dwordx4 v[8:11], v3, s[20:23], s30 offen sc1")
    e.label("K_sp2")
    e("s_barrier")
    e.label("K_sp4")
    e.label("K_sp3")
    st.dump(e); info["sp"] = st.names
    e.label("K_END")
    e("s_endpgm")
    e.label("ALL_END")
    return khead(name) + e.text(), kd(name, 256, 256), info

if __name__ == "__main__":
    import sys, json
    NAME = "recurrent_scan__ssm_conv_s5__glu_gated_reglu__prompt_kernel"
    stamps = "stamps" in sys.argv
    kw = {}
    for a in sys.argv[2:]:
        if "=" in a:
            k, v = a.split("="); kw[k] = int(v) if v.lstrip("-").isdigit() else v
    b, d, info = gen_fused(NAME, stamps=stamps, **kw)
    hdr = open("recurrent_scan__ssm_conv_s5__glu_gated_reglu__prompt.s.ref").read().split("; Override")[0]
    txt = hdr + f"; @launch grid=(256,1,1) block=(512,1,1) lds={LDS_BYTES}\n"
    if stamps and "rt" in sys.argv: txt += "; RT\n"
    if stamps: txt += "; STAMPS " + json.dumps(info) + "\n"
    txt += '.amdgcn_target "amdgcn-amd-amdhsa--gfx950"\n' + b + d
    open(sys.argv[1], "w").write(txt)
```

```python
from asmlib import *
from layout7 import *
LDS_BYTES = 163840
RING = 114688
NR = 5
MISC = RING + NR * 8192
STAT = MISC
CSB = MISC + 1024
CSW = MISC + 2048
SUB = MISC + 3072
FLG = MISC + 7168
LOG2E = 0x3fb8aa3b
SPIN_MAX = 0x200000
UNIT = 114688
CH = 16384
import sys
PADAT = ([a[6:] for a in sys.argv if a.startswith('padat=')] + [''])[0]
TIMER = 's_memrealtime' if 'rt' in sys.argv else 's_memtime'
C0 = 2 * CH
SC = 4 * CH

def mfma(d, a, b, first=False):
    c = "0" if first else f"v[{d}:{d+15}]"
    return f"v_mfma_f32_32x32x16_bf16 v[{d}:{d+15}], v[{a}:{a+3}], v[{b}:{b+3}], {c}"

class Stamper:
    def __init__(self, on, vreg): self.on = on; self.n = 0; self.v = vreg; self.names = []
    def __call__(self, e, name=""):
        if PADAT and name == PADAT and self.v == 127: e("s_memrealtime s[100:101]")
        if not self.on: return
        e.lg0()
        e(f"v_writelane_b32 v{self.v}, s80, {self.n}\n{TIMER} s[80:81]")
        self.n += 1; self.names.append(name)
        assert self.n <= 60
    def dump(self, e):
        if not self.on: return
        e("s_waitcnt vmcnt(0)")
        self(e, "end"); self(e)
        e("s_memrealtime s[80:81]\ns_waitcnt lgkmcnt(0)")
        e(f"v_writelane_b32 v{self.v}, s96, 62\nv_writelane_b32 v{self.v}, s80, 63\ns_mov_b32 s80, {self.n}\nv_writelane_b32 v{self.v}, s80, 61")
        e(f"s_mov_b32 s22, {WS_END + (1<<20)}")
        e("s_lshl_b32 s82, s2, 3\ns_add_u32 s82, s82, s3\ns_lshl_b32 s82, s82, 8")
        e(f"s_add_u32 s82, s82, {WS_END}")
        e("v_lshlrev_b32 v1, 2, v0")
        e(f"buffer_store_dword v{self.v}, v1, s[20:23], s82 offen")

def spin(e, body, cond_ok, sleep=1):
    l = e.newlabel("SP")
    e("s_mov_b32 s95, 0")
    e.label(l)
    body()
    e(cond_ok)
    e(f"s_cbranch_scc1 {l}_ok")
    if sleep: e(f"s_sleep {sleep}")
    e(f"s_add_u32 s95, s95, 1\ns_cmp_lt_u32 s95, {SPIN_MAX}\ns_cbranch_scc1 {l}")
    e.label(l + "_ok")

def tau_of_lane(e, d, t):
    e(f"v_bfe_u32 v{d}, v0, 2, 1\nv_lshlrev_b32 v{d}, 4, v{d}\nv_bfe_u32 v{t}, v0, 3, 2\nv_lshl_add_u32 v{d}, v{t}, 2, v{d}\nv_and_b32 v{t}, 3, v0\nv_add_u32 v{d}, v{d}, v{t}")

def plan_slots():
    wslot = {n: ("r", ((n + 2) % NR) * 8192) for n in range(5)}
    issue = {}
    nxt = 5
    free = []
    for n in range(28):
        if n in (5, 9):
            c = (n >> 2) - 1
            free += [("c", c * CH), ("c", c * CH + 2048)]
        free.append(wslot[n])
        issue[n] = []
        while free and nxt < 28 and len(issue[n]) < 2:
            wslot[nxt] = free.pop(0); issue[n].append(nxt); nxt += 1
    last = max(n for n in issue if issue[n])
    used_after = {}
    inv = {}
    for n in range(28): inv[wslot[n]] = n
    order = sorted(inv.items(), key=lambda x: x[1])
    wd = [(sl, n + 1, 0) for sl, n in order]
    wd += [(("c", 6 * CH), 0, 7)] + [(("c", C0 + (i >> 1) * CH + (i & 1) * 2048), 0, 0) for i in range(4)]
    assert len(wd) == 14, len(wd)
    return wslot, issue, wd, last

def gen_fused(name, stamps=False, D0=3, pad=0, ra=1, kint=3, fine=1, sidle=0, sprio=3, sprio2=0, fprio=2, NA=16, pace=0, warm=1, ypre=9, ssl=1, ysl=3, t0=29, ywait=7, wsl=1, xo=0, lp=1, cw=248, front=0, tlb=0, probe=0, late=0, rb_o=0, rb_y=0, padwg=-1, padat='', tr=50, gap=0, pt=0, pt0=15, ptn=7, noc=0, nowd=0, dwarm=0, outfl='nt', force=0, bulk=0):
    e = Em2()
    info = {}
    wslot, wissue, wdslot, wlast = plan_slots()
    def stores(ins_list, tag):
        for x in ins_list: e.vmem(x + " sc1", tag)
    def dual(ins_list, tag, on=True):
        if not on: return stores(ins_list, tag)
        l = e.newlabel("DS")
        e(f"s_cmp_eq_u32 s97, 2\ns_cbranch_scc1 {l}_l")
        for x in ins_list: e(x + " sc1")
        e(f"s_branch {l}_e")
        e.label(l + "_l")
        for x in ins_list: e.vmem(x, tag)
        e.label(l + "_e")
    def wd_setup(va, sr):
        e(f"v_lshrrev_b32 v{va}, 3, v0\nv_mul_u32_u24 v{va}, 0x380, v{va}\nv_bfe_u32 v{va+1}, v0, 4, 1\nv_lshlrev_b32 v{va+1}, 2, v{va+1}")
        e(f"v_and_b32 v1, 7, v0\nv_xor_b32 v1, v1, v{va+1}\nv_lshl_add_u32 v{va}, v1, 4, v{va}\nv_add_u32 v{va+1}, {8*896-1024}, v{va}")
        srd(e, sr, 56, 1792 * 896)
        e("s_lshl_b32 s98, s99, 1")
        e(f"s_mul_i32 s88, s4, {32*896}\ns_lshl_b32 s82, s91, 7\ns_add_u32 s88, s88, s82\ns_mul_i32 s82, s85, {7*UNIT}\ns_add_u32 s88, s88, s82")
        e(f"s_mul_i32 s64, s98, {UNIT}\ns_add_u32 s64, s64, s88\ns_add_u32 s88, s88, {7*UNIT}")
        for u in range(1, 7):
            e(f"s_add_u32 s{64+u}, s{63+u}, {UNIT}\ns_cmp_ge_u32 s{64+u}, s88\ns_cselect_b32 s82, {7*UNIT}, 0\ns_sub_u32 s{64+u}, s{64+u}, s82")
    def wd_dma(k, va, sr):
        kind, off = wdslot[k][0]
        e(f"s_add_u32 m0, s{89 if kind == 'c' else 79}, {off}\ns_add_u32 s82, s{64+(k>>1)}, {(k&1)*16*896}")
        e.vmem(f"buffer_load_dwordx4 v{va}, s[{sr}:{sr+3}], s82 offen lds", ("wd", k))
        e.vmem(f"buffer_load_dwordx4 v{va+1}, s[{sr}:{sr+3}], s82 offen offset:1024 lds", ("wd", k))
    def wd_half(k, hf):
        kind, off = wdslot[k][0]
        e(f"s_add_u32 m0, s{89 if kind == 'c' else 79}, {off}\ns_add_u32 s82, s{64+(k>>1)}, {(k&1)*16*896}")
        e.vmem(f"buffer_load_dwordx4 v{2+hf}, s[12:15], s82 offen" + (" offset:1024" if hf else "") + " lds", ("wd", k))
    def lds_wait(addr, off, cond, tmp, sleep=1):
        def body(): e(f"ds_read_b32 v{tmp}, v{addr} offset:{off}\ns_waitcnt lgkmcnt(0)\nv_readfirstlane_b32 s82, v{tmp}")
        spin(e, body, cond, sleep=sleep)
        e.lg = []
    if stamps: e(f"s_memrealtime s[96:97]\n{TIMER} s[80:81]")
    elif pad: e("s_memrealtime s[96:97]")
    e("s_load_dwordx16 s[32:47], s[0:1], 0")
    e("s_load_dwordx16 s[48:63], s[0:1], 64")
    e("v_readfirstlane_b32 s3, v0\ns_cmpk_lt_u32 s2, 224\ns_cbranch_scc1 K_MAIN")
    e(f"s_cmpk_lt_u32 s2, {cw}\ns_cbranch_scc1 K_SPARE\ns_getpc_b64 s[28:29]")
    e.label("K_PC")
    e("v_lshlrev_b32 v7, 7, v0\nv_min_u32 v7, ALL_END-K_PC-4, v7\nglobal_load_dword v83, v7, s[28:29]\ns_branch K_SPARE")
    e.label("K_MAIN")
    e("v_and_b32 v0, 63, v0\ns_lshr_b32 s3, s3, 6\ns_and_b32 s4, s3, 3\ns_and_b32 s5, s2, 3\ns_lshl_b32 s5, s5, 2\ns_bfe_u32 s99, s2, 0x20003\ns_add_u32 s5, s5, s99")
    e("s_lshr_b32 s91, s2, 5\nv_lshrrev_b32 v21, 5, v0\ns_lshl_b32 s89, s4, 12")
    def rot_off(d):
        if xo == 0:
            e(f"s_mul_i32 s{d}, s99, {ra}")
        else:
            tab = sum((((ra*(rb & 3) + xo*(rb >> 2)) % 7) << (4*rb)) for rb in range(16))
            e(f"s_mov_b32 s12, {tab & 0xffffffff}\ns_mov_b32 s13, {tab >> 32}\ns_lshl_b32 s{d}, s5, 2\ns_lshr_b64 s[12:13], s[12:13], s{d}\ns_and_b32 s{d}, s12, 7")
    def common2():
        e(f"s_bfe_u32 s85, s2, 0x10002\ns_mul_i32 s6, s85, 7\ns_add_u32 s6, s6, s91\ns_lshl_b32 s79, s4, 11\ns_add_u32 s79, s79, {RING}")
    def common3():
        e("v_and_b32 v20, 31, v0\nv_bfe_u32 v22, v0, 1, 3\nv_xor_b32 v22, v22, v21\nv_lshlrev_b32 v20, 7, v20")
    e("s_cmp_ge_u32 s3, 4")
    e("s_cbranch_scc1 K_S")

    st = Stamper(stamps, 127)
    e("v_bfe_u32 v6, v0, 3, 2\nv_and_b32 v9, 7, v0\nv_lshrrev_b32 v7, 4, v0\nv_xor_b32 v9, v9, v7\nv_lshlrev_b32 v9, 4, v9\nv_xor_b32 v7, 64, v9")
    e("v_lshl_add_u32 v5, v21, 4, v6\ns_movk_i32 s30, 0x380\nv_mad_u32_u24 v1, v5, s30, v9\nv_mad_u32_u24 v2, v5, s30, v7\ns_movk_i32 s31, 2560\nv_add_u32 v2, s31, v2")
    rot_off(10)
    e("s_add_u32 s7, s91, s10\ns_cmp_ge_u32 s7, 7\ns_cselect_b32 s10, 7, 0\ns_sub_u32 s7, s7, s10\ns_lshl_b32 s64, s7, 7")
    e("s_lshl_b32 s28, s5, 2\ns_add_u32 s28, s28, s4\ns_mulk_i32 s28, 28672\ns_lshl_b32 s31, s31, 1\nv_add_u32 v3, s31, v1\nv_add_u32 v4, s31, v2")
    e(f"s_mov_b32 s10, {2048*896}\ns_mov_b32 s11, 0x20000\ns_mov_b32 m0, s89\ns_add_u32 s83, s28, s64")
    e("s_waitcnt lgkmcnt(0)")
    st(e, "karg")
    e("s_mov_b32 s8, s32\ns_and_b32 s9, s33, 0xffff")
    for ii in range(4):
        e.vmem(f"buffer_load_dwordx4 v{1+ii}, s[8:11], s83 offen" + (f" offset:{ii*1024}" if ii else "") + " lds", ("x", 0))
    common2()
    e(f"v_lshl_add_u32 v6, v21, 3, v6\nv_mad_u32_u24 v5, v6, s30, v9\nv_mad_u32_u24 v6, v6, s30, v7\nv_add_u32 v6, {4*896-1024}, v6")
    e("s_lshl_b32 s29, s6, 1\ns_and_b32 s30, s4, 1\ns_add_u32 s29, s29, s30\ns_mulk_i32 s29, 14336")
    e(f"s_cmp_lt_u32 s4, 2\ns_cselect_b32 s12, s38, s40\ns_cselect_b32 s13, s39, s41\ns_and_b32 s13, s13, 0xffff\ns_mov_b32 s14, {448*896}\ns_mov_b32 s15, 0x20000")
    e("s_mov_b32 m0, s79\ns_add_u32 s83, s29, s64")
    e.vmem("buffer_load_dwordx4 v5, s[12:15], s83 offen lds", ("x", 0))
    e.vmem("buffer_load_dwordx4 v6, s[12:15], s83 offen offset:1024 lds", ("x", 0))
    e(f"s_setprio {fprio}")
    for c in range(1, 7):
        e(f"s_add_u32 s{64+c}, s{63+c}, 128\ns_cmp_ge_u32 s{64+c}, 896\ns_cselect_b32 s{64+c}, 0, s{64+c}")
    def xb_burst(c):
        e(f"s_add_u32 m0, s89, {c*CH}\ns_add_u32 s83, s28, s{64+c}")
        for ii in range(4):
            e.vmem(f"buffer_load_dwordx4 v{1+ii}, s[8:11], s83 offen" + (f" offset:{ii*1024}" if ii else "") + " lds", ("x", c))
        e(f"s_add_u32 m0, s79, {(c % NR)*8192}\ns_add_u32 s83, s29, s{64+c}")
        e.vmem("buffer_load_dwordx4 v5, s[12:15], s83 offen lds", ("x", c))
        e.vmem("buffer_load_dwordx4 v6, s[12:15], s83 offen offset:1024 lds", ("x", c))
    if D0 > 1: xb_burst(1)
    common3()
    if probe:
        st(e, "iss0")
        e("s_waitcnt vmcnt(5)")
        st(e, "land1")
        e("s_waitcnt vmcnt(0)")
        st(e, "land0")
    srd(e, 20, 62, WS_END)
    e(f"v_mov_b32 v120, 0\ns_mov_b32 s82, {WS_EP}")
    def ep_load():
        e(f"s_mov_b32 s82, {WS_EP}\ns_mov_b64 exec, 1")
        e.vmem("buffer_load_dword v120, v120, s[20:23], s82 offen sc1", "ep")
        e("s_mov_b64 exec, -1")
    if not late: ep_load()
    e(f"v_mov_b32 v124, 0\nv_mov_b32 v125, 0\ns_lshl_b32 s31, s4, 9\ns_add_u32 s31, s31, {SUB}\nv_lshl_add_u32 v8, v0, 3, s31")
    e.lds("ds_write_b64 v8, v[124:125]")
    e(f"v_lshlrev_b32 v8, 2, v0\nv_add_u32 v8, {FLG}, v8")
    e.lds("ds_write_b32 v8, v124")
    for jj in range(4):
        e(f"v_xor_b32 v{10+jj}, {2*jj}, v22\nv_lshl_add_u32 v{10+jj}, v{10+jj}, 4, v20\nv_add_u32 v{14+jj}, 0x10000, v{10+jj}")
    srd(e, 16, 52, 448 * 3584)
    srd(e, 24, 54, 448 * 3584)
    e("s_lshl_b32 s31, s6, 8\ns_lshl_b32 s82, s4, 6\ns_add_u32 s31, s31, s82")
    for c in range(7): e(f"s_mul_i32 s{72+c}, s{64+c}, 1792\ns_add_u32 s{72+c}, s{72+c}, s31")
    e("v_lshrrev_b32 v7, 2, v0\nv_mul_u32_u24 v7, 0xe00, v7\nv_and_b32 v8, 3, v0\nv_lshl_add_u32 v7, v8, 4, v7")
    e("v_bfe_u32 v8, v0, 2, 2\nv_lshl_add_u32 v8, v21, 3, v8\nv_lshlrev_b32 v9, 6, v8")
    e("v_bfe_u32 v8, v0, 4, 1\nv_lshl_add_u32 v9, v8, 5, v9\nv_and_b32 v8, 3, v0\nv_lshl_add_u32 v9, v8, 3, v9\nv_add_u32 v125, s89, v9\nv_add_u32 v9, s79, v9")
    e("v_lshlrev_b32 v18, 4, v0")
    e(f"s_lshl_b32 s31, s4, 2\ns_add_u32 s31, s31, {FLG}\nv_mov_b32 v19, s31")
    e(f"s_lshl_b32 s31, s4, 8\ns_add_u32 s31, s31, {CSW}\nv_lshl_add_u32 v122, v21, 4, s31")
    tau_of_lane(e, 123, 8)
    e(f"v_lshlrev_b32 v123, 2, v123\nv_add_u32 v123, {STAT}, v123\nv_mov_b32 v8, {FLG}")
    e(f"s_lshl_b32 s92, s5, 2\ns_add_u32 s92, s92, s4\ns_mul_i32 s92, s92, {A_W}\ns_add_u32 s92, s92, {WS_AO}\ns_lshl_b32 s31, s6, 13\ns_add_u32 s86, s92, s31\ns_add_u32 s87, s86, 4096")
    if probe: st(e, "setup")
    for c in range(2, D0): xb_burst(c)
    ptl = list(range(64)) if pt else []
    def pretouch(n):
        for _ in range(n):
            if ptl: e(f"s_load_dword s100, s[46:47], {ptl.pop(0) * 128}")
    if pt:
        e.lg0()
        e("s_add_u32 s46, s62, s86\ns_addc_u32 s47, s63, 0")
        pretouch(pt0)
    def w_issue(n, mt):
        c, jj = n >> 2, n & 3
        kind, off = wslot[n]
        e(f"s_add_u32 m0, s{89 if kind == 'c' else 79}, {off + mt*1024}\ns_add_u32 s83, s{72+c}, {16*jj*3584}")
        e.vmem(f"buffer_load_dwordx4 v7, s[{16+8*mt}:{19+8*mt}], s83 offen lds", ("w", n))
    FS = [24, 48]
    def reads(n):
        fs = FS[n & 1]; c, jj = n >> 2, n & 3
        xb = (10 + jj) if c < 4 else (14 + jj)
        xo = (c & 3) * CH
        kind, wo = wslot[n]
        wb = 125 if kind == "c" else 9
        X = lambda rt: (f"ds_read_b128 v[{fs+4*rt}:{fs+4*rt+3}], v{xb} offset:{xo + rt*4096}", ("X", n, rt))
        Wr = lambda mt, u2: (f"ds_read_b64_tr_b16 v[{fs+16+4*mt+2*u2}:{fs+17+4*mt+2*u2}], v{wb} offset:{wo + mt*1024 + u2*256}", ("W", n))
        if front: return [Wr(0, 0), X(0), Wr(0, 1), Wr(1, 0), Wr(1, 1), X(1), X(2), X(3)]
        return [Wr(0, 0), Wr(0, 1), X(0), Wr(1, 0), Wr(1, 1), X(1), X(2), X(3)]
    for sg in range(8):
        tags = {("x", sg)}
        eps = 7 if late else 1
        if sg == eps: tags.add("ep")
        e.vm_wait(tags)
        if sg == 0 and not pt: e.lg0()
        if sg == 7:
            e.vm_wait({("w", 0)})
            for s, t in reads(0): e.lds(s, t)
        if not pt or sg == 7: st(e, f"b{sg}")
        e("s_barrier")
        if sg + D0 < 7: xb_burst(sg + D0)
        if 3 <= sg < 7:
            w_issue(sg - 3, 0); w_issue(sg - 3, 1)
        if late and sg == 4: ep_load()
        if sg == eps: e("v_readfirstlane_b32 s84, v120\ns_add_u32 s84, s84, 1\ns_max_u32 s84, s84, 1")
        if sg < 7: pretouch(ptn)
        if sg == 5: wd_setup(2, 12)
        if sg == 6:
            e(f"s_bitcmp1_b32 s4, 1\ns_cselect_b32 s8, s44, s42\ns_cselect_b32 s9, s45, s43\ns_and_b32 s9, s9, 0xffff\ns_mov_b32 s10, {448*896}")
            e(f"s_mul_i32 s29, s91, {64*896}\ns_and_b32 s30, s4, 1\ns_lshl_b32 s28, s85, 2\ns_add_u32 s94, s28, 2\ns_add_u32 s28, s28, s30\ns_cmp_eq_u32 s30, 0\ns_cselect_b32 s94, s94, 3")
            e("s_lshl_b32 s28, s28, 7\ns_add_u32 s28, s28, s29\ns_lshl_b32 s94, s94, 7\ns_add_u32 s94, s94, s29")
            e("v_lshrrev_b32 v4, 3, v0\nv_mul_u32_u24 v4, 0x380, v4\nv_and_b32 v5, 7, v0\nv_lshrrev_b32 v6, 4, v0\nv_xor_b32 v5, v5, v6\nv_lshlrev_b32 v5, 4, v5")
            e(f"v_xor_b32 v6, 64, v5\nv_add_u32 v5, v4, v5\nv_add_u32 v6, v4, v6\nv_add_u32 v6, {8*896-1024}, v6")
    assert not ptl
    w_issue(4, 0); w_issue(4, 1)
    CS = 72; T = 104
    cs_rd = [("ds_read_b32 v121, v19 offset:16", "cs")] + [(f"ds_read_b32 v{20+rt}, v123 offset:{rt*128}", "cs") for rt in range(4)]
    cs_rd += [(f"ds_read_b128 v[{CS+16*mt+4*q}:{CS+16*mt+4*q+3}], v122 offset:{mt*128 + q*32}", "cs") for mt in range(2) for q in range(4)]
    p2 = []
    def p_(s): p2.extend(s.split("\n"))
    p_("v_bfe_u32 v112, v0, 2, 2\nv_lshrrev_b32 v113, 5, v0\nv_lshl_add_u32 v113, v113, 2, v112\nv_lshlrev_b32 v113, 7, v113")
    p_("s_lshr_b32 s31, s4, 1\nv_lshrrev_b32 v112, 1, v112\nv_xor_b32 v112, s31, v112\nv_lshl_add_u32 v113, v112, 6, v113")
    p_("v_bfe_u32 v112, v0, 4, 1\nv_lshl_add_u32 v113, v112, 5, v113\nv_and_b32 v112, 3, v0\nv_lshl_add_u32 v113, v112, 3, v113\nv_xor_b32 v112, 64, v113")
    p_(f"s_lshl_b32 s30, s31, 13\ns_lshl_b32 s31, s31, 12\ns_add_u32 s31, s31, {RING}")
    p_("v_add_u32 v108, s30, v113\nv_add_u32 v109, s30, v112\nv_add_u32 v110, s31, v113\nv_add_u32 v111, s31, v112\nv_add_u32 v112, 0x10000, v108\nv_add_u32 v113, 0x10000, v109")
    p_(f"s_lshl_b32 s93, s5, 1\ns_add_u32 s93, s93, s85\ns_lshl_b32 s93, s93, 10\ns_add_u32 s93, s93, {WS_FO}")
    p_(f"s_and_b32 s31, s4, 1\ns_mul_i32 s31, s31, {A_W}\ns_sub_u32 s92, s92, s31")
    p_(f"s_mul_i32 s31, s85, {7*8192}\ns_add_u32 s92, s92, s31\ns_xor_b32 s31, s85, 1\ns_lshl_b32 s31, s31, 11\ns_add_u32 s92, s92, s31")
    p_(f"s_lshl_b32 s90, s98, 13\ns_add_u32 s90, s90, s92\ns_add_u32 s92, s92, {7*8192}\ns_add_u32 s71, s90, {A_W}")
    p_("s_lshl_b32 s29, s85, 6\ns_and_b32 s31, s4, 1\ns_lshl_b32 s31, s31, 5\ns_add_u32 s29, s29, s31\ns_lshl_b32 s30, s5, 7\ns_add_u32 s30, s30, s29")
    p_(f"v_lshlrev_b32 v117, 4, v21\nv_add_u32 v114, s30, v117\ns_lshl_b32 s29, s29, 2\ns_add_u32 s29, s29, {STAT}\nv_lshl_add_u32 v117, v117, 2, s29")
    p_("s_lshl_b32 s29, s91, 6\ns_lshr_b32 s31, s4, 1\ns_lshl_b32 s31, s31, 5\ns_add_u32 s29, s29, s31\nv_and_b32 v115, 31, v0\nv_add_u32 v115, s29, v115")
    p_("v_mul_u32_u24 v114, 0x380, v114\nv_lshlrev_b32 v115, 1, v115\nv_add_u32 v114, v114, v115\nv_lshlrev_b32 v116, 1, v114")
    for q in range(1, 8): p_(f"s_movk_i32 s{32+q}, {q*3584}")
    p_(f"s_mul_i32 s40, s5, 7\ns_add_u32 s40, s40, s91\ns_lshl_b32 s40, s40, 1\ns_add_u32 s40, s40, s85\ns_lshl_b32 s40, s40, 15\ns_add_u32 s40, s40, s89\ns_xor_b32 s41, s40, 0x8000\ns_add_u32 s40, s40, {WS_PX + 16384}\ns_add_u32 s41, s41, {WS_PX + 16384}")
    slow = []; slow2 = []; slow3 = []
    for n in range(28):
        fs = FS[n & 1]
        rd = reads(n + 1) if n < 27 else list(cs_rd)
        if n < 27: e.vm_wait({("w", n + 1)})
        dq = [("w", m, mt) for m in wissue[n] for mt in range(2)]
        for k in range(9):
            if wdslot[k][1] - 1 == n: dq += [("d", k, 0), ("d", k, 1)]
        if nowd: dq = [x for x in dq if x[0] != "d"]
        if 13 <= n <= 26 and not noc: dq.append(("c", n - 13, 0))
        if n == 27 and not noc: dq += [("c", 14, 0), ("c", 15, 0)]
        gaps = {0: (), 1: (4,), 2: (2, 5), 3: (1, 4, 7), 4: (1, 3, 5, 7)}[len(dq)]
        if front: gaps = {0: (), 1: (5,), 2: (4, 6), 3: (3, 5, 7), 4: (2, 4, 6, 7)}[len(dq)] if front == 1 else gaps
        for i in range(8):
            rt, mt = i >> 1, i & 1
            if i == 0: e.lg_wait({("W", n), ("X", n, 0)})
            elif mt == 0: e.lg_wait({("X", n, rt)})
            e(mfma(128 + 64*mt + 16*rt, fs + 16 + 4*mt, fs + 4*rt, n == 0))
            k = 1 if (n < 27 and not front) else 2
            for s, t in rd[:k]: e.lds(s, t)
            rd = rd[k:]
            if n in (5, 9, 13, 17, 21, 25) and i == 0:
                l = e.newlabel("PG")
                e(f"v_readfirstlane_b32 s82, v104\ns_cmp_lt_u32 s82, {n >> 2}\ns_cbranch_scc1 {l}")
                e.label(l + "_r")
                slow.append((l, n >> 2))
            if i in gaps and dq:
                kd_, a1, a2 = dq.pop(0)
                if kd_ == "w": w_issue(a1, a2)
                elif kd_ == "d": wd_half(a1, a2)
                else:
                    e(f"s_add_u32 m0, s89, {C0 + (a1 >> 2)*CH + (a1 & 2)*1024}\ns_add_u32 s83, s{28 if a1 < 8 else 94}, {((a1 & 7) >> 1)*16*896}")
                    e.vmem(f"buffer_load_dwordx4 v{5 + (a1 & 1)}, s[8:11], s83 offen" + (" offset:1024" if a1 & 1 else "") + " lds", ("c", a1 >> 3))
            if i == 6 and (n & 3) == 3:
                if n == 23: e.vm_wait({("c", 0)})
                e(f"v_mov_b32 v126, {(n >> 2) + 1}")
                e.lds("ds_write_b32 v19, v126")
            if n in (4, 8, 12, 16, 20, 24):
                if i == 2: e.lds("ds_read_b128 v[104:107], v8", "pg")
                if i == 6:
                    e.lg_wait({"pg"})
                    e("v_min_u32 v104, v104, v105\nv_min3_u32 v104, v104, v106, v107")
            if 1 <= n < 27 and i not in gaps and i != 0 and len(gaps) < 4:
                if p2: e(p2.pop(0))
        assert not rd and not dq
        if (fine and (n & 3) == 3) or n == 27: st(e, f"k{n}")
    assert not p2
    e.lg0()
    e("v_readfirstlane_b32 s97, v121\ns_cmp_lg_u32 s97, 0\ns_cbranch_scc1 K_csok")
    def body():
        for s, t in cs_rd: e(s)
        e("s_waitcnt lgkmcnt(0)\nv_readfirstlane_b32 s97, v121")
    spin(e, body, "s_cmp_lg_u32 s97, 0")
    e.label("K_csok")
    st(e, "cs")
    for rt in range(4):
        G, U = 128 + 16*rt, 192 + 16*rt
        mp = 20 + (rt & 2)
        sel = ("op_sel:[0,1,0] op_sel_hi:[1,1,1]" if rt & 1 else "op_sel_hi:[1,0,1]") + " neg_lo:[1,0,0] neg_hi:[1,0,0]"
        for h in range(2):
            g = 2*rt + h
            tt = 24 + 4 * g
            rs = range(8*h, 8*h + 8, 2)
            if g == 7:
                e.lds("ds_read_b128 v[104:107], v8", "pg")
                e.lds("ds_read_b32 v121, v8 offset:88", "pg")
            for r in rs:
                e(f"v_pk_fma_f32 v[{G+r}:{G+r+1}], v[{CS+r}:{CS+r+1}], v[{mp}:{mp+1}], v[{G+r}:{G+r+1}] {sel}")
                e(f"v_pk_fma_f32 v[{U+r}:{U+r+1}], v[{CS+16+r}:{CS+17+r}], v[{mp}:{mp+1}], v[{U+r}:{U+r+1}] {sel}")
            for r in rs: e(f"v_max_f32 v{G+r}, 0, v{G+r}\nv_max_f32 v{G+r+1}, 0, v{G+r+1}")
            for r in rs: e(f"v_pk_mul_f32 v[{G+r}:{G+r+1}], v[{G+r}:{G+r+1}], v[{U+r}:{U+r+1}]")
            for r in rs: e(f"v_cvt_pk_bf16_f32 v{tt + ((r - 8*h) >> 1)}, v{G+r}, v{G+r+1}")
            dual([f"buffer_store_dwordx4 v[{tt}:{tt+3}], v18, s[20:23], s{86 + h} offen offset:{rt*1024}"], "hh", bulk & 1)
            if g == 7:
                e.vm_wait({("c", 1)})
                e.lds("ds_write_b32 v19, v126 offset:32")
                e.lg_wait({"pg"})
                l = e.newlabel("PG")
                e(f"v_min_u32 v104, v104, v105\nv_min3_u32 v104, v104, v106, v107\ns_nop 0\nv_readfirstlane_b32 s82, v104\ns_cmp_lt_u32 s82, 7\ns_cbranch_scc1 {l}")
                e.label(l + "_r")
                slow.append((l, 7))
    l = e.newlabel("CP")
    e(f"v_readfirstlane_b32 s82, v121\ns_cmp_lt_u32 s82, 4\ns_cbranch_scc1 {l}")
    e.label(l + "_r")
    slow2.append((l, 8, 88, "s_cmp_ge_u32 s82, 4"))
    st(e, "epi")
    e("s_setprio 0")
    XR, MR, RR = 56, 72, 88
    for q in range(4):
        e.lds(f"ds_read_b128 v[{RR+4*q}:{RR+4*q+3}], v117 offset:{512+16*q}")
    e("s_and_b32 s31, s4, 1\ns_lshl_b32 s31, s31, 10\nv_add_u32 v10, s31, v18\nv_add_u32 v11, 0x1000, v10")
    e("s_lshl_b32 s31, s91, 7\ns_lshl_b32 s30, s4, 2\ns_add_u32 s31, s31, s30\nv_mov_b32 v16, s31\nv_mov_b32 v17, s84")
    e("v_and_b32 v14, 7, v0\nv_min_u32 v14, 6, v14\nv_lshlrev_b32 v14, 7, v14\nv_bfe_u32 v15, v0, 3, 1\nv_lshl_add_u32 v14, v15, 2, v14\ns_and_b32 s30, s30, 8\nv_add_u32 v14, s30, v14")
    e(f"s_add_u32 s31, s89, {SC}\nv_add_u32 v4, s31, v18\nv_xor_b32 v5, 0x2000, v4\nv_xor_b32 v6, 8, v19\nv_xor_b32 v9, 4, v19\nv_add_u32 v7, {6*CH + 2048 - SC}, v4")
    srd(e, 16, 58, 2048 * 1792)
    e.lg0()
    for r in range(16): e(f"v_mul_f32 v{RR+r}, v{RR+r}, v{RR+r}")
    e.vm0()
    e("s_mov_b64 exec, 1")
    dual(["buffer_store_dword v17, v16, s[20:23], s93 offen"], "fl")
    e("s_mov_b64 exec, -1")
    st(e, "hhflag")
    if rb_o:
        for g in range(8): e(f"buffer_load_dwordx4 v[{192+4*g}:{195+4*g}], v18, s[20:23], s{86 + (g >> 2)} offen offset:{(g & 3)*1024} sc1")
    for k in range(9, 14): wd_dma(k, 2, 12)
    e("s_mov_b64 exec, 0xffff")
    def body():
        e("buffer_load_dword v17, v14, s[20:23], s93 offen sc1\ns_waitcnt vmcnt(0)\nv_cmp_eq_u32 vcc, s84, v17\ns_nop 1")
    spin(e, body, "s_cmp_eq_u64 vcc, exec", sleep=2)
    e("s_mov_b64 exec, -1")
    e.vm = []
    e.lds("ds_write_b32 v19, v126 offset:112")
    st(e, "hhseen")
    NT = 56
    def areg(t): return 192 + 4*(t % NA)
    def a_issue(t):
        sub = t & 3
        if sub == 0 and t > 0:
            e(f"s_add_u32 s90, s90, 8192\ns_cmp_ge_u32 s90, s92\ns_cselect_b32 s82, {7*8192}, 0\ns_sub_u32 s90, s90, s82")
            if t == 28: e("s_xor_b32 s90, s90, 0x800\ns_xor_b32 s92, s92, 0x800")
            e(f"s_add_u32 s71, s90, {A_W}")
        r = areg(t)
        e.vmem(f"buffer_load_dwordx4 v[{r}:{r+3}], v{10 + (sub & 1)}, s[20:23], s{71 if sub >> 1 else 90} offen sc1", ("A", t))
    def breg(t): return 24 + 8*(t % 4)
    def b_list(t):
        u = (t % 28) >> 2; sub = t & 3
        kind, off = wdslot[2*u + (sub & 1)][0]
        if kind == "r": bs = (110, 111); off += (sub >> 1) * 2048
        else:
            off += (sub >> 1) * 4096
            bs = (108, 109)
            if off >= 4*CH: bs = (112, 113); off -= 65536
        r = breg(t)
        return [(f"ds_read_b64_tr_b16 v[{r+4*b+2*u2}:{r+4*b+2*u2+1}], v{bs[b]} offset:{off + u2*1024}", ("B", t)) for b in range(2) for u2 in range(2)]
    for t in range(NA - 1): a_issue(t)
    for t in range(3):
        for s, tg in b_list(t): e.lds(s, tg)
    FO, OW = 128, 160
    side = []
    def S_(f): side.append(f)
    def both_wait(t):
        nv = e.vm_need({("A", t)})
        idx = [i for i, x in enumerate(e.lg) if x == ("B", t)]
        parts = []
        if nv is not None:
            parts.append(f"vmcnt({nv})"); e.vm = e.vm[len(e.vm) - nv:] if nv else []
        if idx:
            nl = min(15, len(e.lg) - 1 - idx[-1]); parts.append(f"lgkmcnt({nl})"); e.lg = e.lg[len(e.lg) - nl:] if nl else []
        if parts: e("s_waitcnt " + " ".join(parts))
    RV = 224
    YV = FO
    def recv_one(g, dst, sb): e(f"buffer_load_dwordx4 v[{dst+4*g}:{dst+4*g+3}], v18, s[20:23], s{sb} offen offset:{g*1024} sc1")
    e("s_sub_u32 s42, s40, 16384")
    nop = lambda: None
    for t in range(NT):
        acc = FO if t < 28 else OW
        def mkchk(tag, pfx, cond_bad, addr, off, cond_ok):
            def chk():
                e.lg_wait({tag})
                l = e.newlabel(pfx)
                e(f"v_readfirstlane_b32 s82, v121\n{cond_bad}\ns_cbranch_scc1 {l}")
                e.label(l + "_r")
                slow2.append((l, addr, off, cond_ok))
            return chk
        if t == 10: S_(lambda: e.lds("ds_read_b32 v121, v9 offset:112", "wl"))
        if t == 13: S_(mkchk("wl", "WL", "s_cmp_eq_u32 s82, 0", 9, 112, "s_cmp_lg_u32 s82, 0"))
        if t == 24: S_(lambda: e.lds("ds_read_b32 v121, v8 offset:84", "yx"))
        if t == 27:
            def chk():
                e.lg_wait({"yx"})
                l = e.newlabel("YX")
                e(f"v_readfirstlane_b32 s82, v121\ns_cmp_lt_u32 s82, 4\ns_cbranch_scc1 {l}")
                e.label(l + "_r")
                slow2.append((l, 8, 84, "s_cmp_ge_u32 s82, 4"))
            S_(chk)
        if t == t0:
            S_(nop)
            for g in range(0, 4, 2):
                def wr(g=g):
                    for gg in (g, g + 1): e.lds(f"ds_write_b128 v4, v[{FO+16+4*gg}:{FO+19+4*gg}] offset:{CH + gg*1024}")
                    if g == 2: e.lds("ds_write_b32 v19, v126 offset:48")
                S_(wr)
        if t == t0 + 3:
            def rdx():
                e.lds("ds_read_b32 v121, v6 offset:48", "ex")
                for g in range(4): e.lds(f"ds_read_b128 v[{FO+16+4*g}:{FO+19+4*g}], v5 offset:{CH + g*1024}", "ex")
            S_(rdx)
        if t == t0 + 5:
            def chk2():
                e.lg_wait({"ex"})
                l = e.newlabel("PX")
                e(f"v_readfirstlane_b32 s82, v121\ns_cmp_eq_u32 s82, 0\ns_cbranch_scc1 {l}")
                e.label(l + "_r")
                slow3.append(l)
                e.lds("ds_write_b32 v19, v126 offset:64")
            S_(chk2)
            for g in range(4):
                def grp(g=g):
                    for r in range(4*g, 4*g + 4): e(f"v_add_f32 v{FO+r}, v{FO+r}, v{FO+16+r}")
                def grp2(g=g):
                    for r in (4*g, 4*g + 2): e(f"v_cvt_pk_bf16_f32 v{FO+16+r}, v{FO+r}, v{FO+r+1}\nv_mov_b32 v{FO+17+r}, s84")
                def grp3(g=g):
                    stores([f"buffer_store_dwordx4 v[{FO+16+4*g}:{FO+19+4*g}], v18, s[20:23], s41 offen offset:{g*1024}"], "px")
                S_(grp); S_(lambda g=g, a=grp2, b=grp3: (a(), b()))
                for _ in range(gap): S_(nop)
        if t == 40:
            S_(lambda: e.lds("ds_read_b32 v121, v19 offset:128", "yd"))
            for g in range(0, 4, 2): S_(lambda g=g: [(recv_one(gg, YV, 42), e.vm.append("ry")) for gg in (g, g + 1)])
            S_(mkchk("yd", "YD", "s_cmp_eq_u32 s82, 0", 19, 128, "s_cmp_lg_u32 s82, 0"))
            S_(lambda: [e.lds(f"ds_read_b128 v[{MR+4*g}:{MR+3+4*g}], v4 offset:{g*1024}", "sx") for g in range(4)])
            S_(lambda: [e.lds(f"ds_read_b128 v[{104+4*g if g == 0 else 12}:{107+4*g if g == 0 else 15}], v7 offset:{g*1024}", "sx") for g in range(2)])
            S_(lambda: e.lds("ds_read_b32 v121, v6 offset:64", "sx"))
            S_(nop)
            for g in range(4):
                def ux(g=g):
                    if g == 0: e.lg_wait({"sx"})
                    for r in (2*g, 2*g + 1):
                        src = 104 + r if r < 4 else 12 + r - 4
                        e(f"v_lshlrev_b32 v{XR+2*r}, 16, v{src}\nv_and_b32 v{XR+2*r+1}, 0xffff0000, v{src}")
                S_(ux)
        if t == tr:
            for g in range(0, 4, 2): S_(lambda g=g: [(recv_one(gg, RV, 40), e.vm.append("rv")) for gg in (g, g + 1)])
        both_wait(t)
        bl = b_list(t + 3) if t + 3 < NT else []
        for b in range(2):
            e(mfma(acc + 16*b, areg(t), breg(t) + 4*b, t % 28 == 0))
            if b == 0 and t + NA - 1 < NT: a_issue(t + NA - 1)
            for s, tg in bl[2*b:2*b + 2]: e.lds(s, tg)
            if side: side.pop(0)()
        if t == 27: st(e, "ofor")
        if fine > 1 and t in (0, 6, 13, 20, 34, 39, 44, 50): st(e, f"t{t}")
    assert not side
    def recv_check(dst):
        e(f"v_min3_u32 v1, s84, v{dst+1}, v{dst+3}\nv_max3_u32 v2, s84, v{dst+1}, v{dst+3}")
        for g in range(1, 4): e(f"v_min3_u32 v1, v1, v{dst+4*g+1}, v{dst+4*g+3}\nv_max3_u32 v2, v2, v{dst+4*g+1}, v{dst+4*g+3}")
        e("v_cmp_eq_u32 vcc, v1, v2\ns_nop 1")
    def recv_finish(dst, sb, tag):
        l = e.newlabel("RV")
        e.vm_wait({tag})
        recv_check(dst)
        e(f"s_cmp_eq_u64 vcc, -1\ns_cbranch_scc1 {l}")
        def body():
            for g in range(4): recv_one(g, dst, sb)
            e("s_waitcnt vmcnt(0)")
            recv_check(dst)
        spin(e, body, "s_cmp_eq_u64 vcc, -1", sleep=1)
        e.label(l)
        for r in range(0, 16, 2): e(f"v_and_b32 v{dst+r+1}, 0xffff0000, v{dst+r}\nv_lshlrev_b32 v{dst+r}, 16, v{dst+r}")
    e.lg0()
    st(e, "oloop")
    l = e.newlabel("RX")
    e(f"v_readfirstlane_b32 s82, v121\ns_cmp_eq_u32 s82, 0\ns_cbranch_scc1 {l}")
    e.label(l + "_r")
    slow2.append((l, 6, 64, "s_cmp_lg_u32 s82, 0"))
    e("s_mov_b32 s28, 0xbfb8aa3b\ns_mov_b32 s29, 0xbfb8aa3b\ns_nop 5")
    for g in range(4): e(f"ds_write_b128 v4, v[{OW+16+4*g}:{OW+19+4*g}] offset:{CH + g*1024}")
    pk = lambda op, d, a, b, x="": e(f"v_pk_{op}_f32 v[{d}:{d+1}], v[{a}:{a+1}], {b} {x}".rstrip())
    R2 = range(0, 16, 2)
    O, PB, EX = OW, OW + 16, 24
    recv_finish(YV, 42, "ry")
    for r in R2: pk("add", MR+r, MR+r, f"v[{YV+r}:{YV+r+1}]")
    e.lg0()
    e("s_barrier")
    st(e, "fbar")
    for g in range(4): e(f"ds_read_b128 v[{EX+4*g}:{EX+3+4*g}], v5 offset:{CH + g*1024}")
    recv_finish(RV, 40, "rv")
    st(e, "orecv")
    for r in R2: pk("add", O+r, O+r, f"v[{RV+r}:{RV+r+1}]")
    e("s_waitcnt lgkmcnt(0)")
    for r in R2: pk("add", O+r, O+r, f"v[{EX+r}:{EX+r+1}]")
    for r in R2: pk("mul", O+r, O+r, f"v[{RR+r}:{RR+r+1}]")
    for r in R2: pk("mul", PB+r, O+r, "s[28:29]")
    for r in range(16): e(f"v_exp_f32 v{PB+r}, v{PB+r}")
    for r in R2: pk("mul", O+r, O+r, f"v[{MR+r}:{MR+r+1}]")
    for r in R2: pk("add", PB+r, PB+r, "1.0", "op_sel_hi:[1,0]")
    for r in range(16): e(f"v_rcp_f32 v{PB+r}, v{PB+r}")
    for r in R2:
        e(f"v_pk_fma_f32 v[{PB+r}:{PB+r+1}], v[{PB+r}:{PB+r+1}], v[{O+r}:{O+r+1}], v[{XR+r}:{XR+r+1}]")
        for rr in (r, r + 1):
            so = "0" if rr < 2 else f"s{32 + (rr >> 1)}"
            off = (rr & 1) * 1792
            e(f"buffer_store_dword v{PB+rr}, v116, s[16:19], {so} offen" + (f" offset:{off}" if off else "") + " " + outfl)
    e("s_cmp_lg_u32 s5, 15\ns_cbranch_scc1 K_nobump\ns_or_b32 s28, s6, s4\ns_cmp_lg_u32 s28, 0\ns_cbranch_scc1 K_nobump")
    e(f"v_mov_b32 v8, 0\nv_mov_b32 v9, s84\ns_mov_b32 s28, {WS_EP}\ns_mov_b64 exec, 1")
    e("buffer_store_dword v9, v8, s[20:23], s28 offen sc1")
    e("s_mov_b64 exec, -1")
    e.label("K_nobump")
    if pad:
        if padwg >= 0: e(f"s_cmp_lg_u32 s2, {padwg}\ns_cbranch_scc1 K_END")
        e.label("K_pad")
        e(f"s_memrealtime s[28:29]\ns_waitcnt lgkmcnt(0)\ns_sub_u32 s28, s28, s{100 if PADAT else 96}\ns_cmp_lt_u32 s28, {pad}\ns_cbranch_scc1 K_pad")
    st.dump(e); info["F"] = st.names
    e("s_endpgm")
    for l in slow3:
        e.label(l)
        lds_wait(6, 48, "s_cmp_lg_u32 s82, 0", 121, sleep=0)
        for g in range(4): e(f"ds_read_b128 v[{FO+16+4*g}:{FO+19+4*g}], v5 offset:{CH + g*1024}")
        e(f"s_waitcnt lgkmcnt(0)\ns_branch {l}_r")
    for l, addr, off, cond in slow2:
        e.label(l)
        lds_wait(addr, off, cond, 121, sleep=0)
        e(f"s_branch {l}_r")
    for l, need in slow:
        e.label(l)
        def body():
            e("ds_read_b128 v[104:107], v8\ns_waitcnt lgkmcnt(0)\nv_min_u32 v104, v104, v105\nv_min3_u32 v104, v104, v106, v107\ns_nop 0\nv_readfirstlane_b32 s82, v104")
        spin(e, body, f"s_cmp_ge_u32 s82, {need}", sleep=0)
        e(f"s_branch {l}_r")

    e.vm = []; e.lg = []
    e.label("K_S")
    st = Stamper(stamps, 143)
    e(f"s_setprio {sprio}")
    common2(); common3()
    e("v_and_b32 v1, 19, v0\nv_bfe_u32 v2, v0, 2, 1\nv_lshl_add_u32 v1, v2, 3, v1\nv_bfe_u32 v2, v0, 3, 1\nv_lshl_add_u32 v1, v2, 2, v1\ns_lshl_b32 s30, s6, 5\nv_add_u32 v1, s30, v1\nv_lshlrev_b32 v1, 1, v1\nv_and_b32 v1, -4, v1")
    e("s_lshl_b32 s30, s91, 7\ns_and_b32 s31, s4, 2\ns_lshl_b32 s31, s31, 5\ns_add_u32 s30, s30, s31\nv_and_b32 v7, 30, v0\nv_lshl_add_u32 v7, v7, 1, s30\nv_mov_b32 v247, 0")
    e(f"v_add_u32 v23, s89, v20\nv_add_u32 v24, {RING}, v20")
    e("s_lshl_b32 s31, s4, 1\nv_xor_b32 v6, s31, v22")
    for jj in range(4):
        e(f"v_xor_b32 v5, {2*jj}, v6\nv_lshl_add_u32 v{10+jj}, v5, 4, v23\nv_add_u32 v{14+jj}, 0x10000, v{10+jj}\nv_lshl_add_u32 v{240+jj}, v5, 4, v24")
    e("s_mov_b32 s94, 0x3f803f80\nv_mov_b32 v34, 0\nv_mov_b32 v35, 0\nv_mov_b32 v36, 0\nv_mov_b32 v37, 0")
    e(f"s_mov_b32 s22, {WS_END}\ns_mov_b32 s23, 0x20000\ns_mov_b32 s82, {WS_EP}")
    e(f"v_mov_b32 v18, {FLG}\nv_mov_b32 v19, 1\ns_lshl_b32 s30, s4, 2\ns_add_u32 s30, s30, {FLG}\nv_mov_b32 v20, s30")
    e("s_waitcnt lgkmcnt(0)")
    e("s_mov_b32 s20, s62\ns_and_b32 s21, s63, 0xffff\nv_mov_b32 v138, v1\nv_mov_b32 v139, v7")
    def par_loads():
        e.vmem("global_load_dword v244, v138, s[34:35]", "par")
        e.vmem("global_load_dword v245, v138, s[36:37]", "par")
        e.vmem("global_load_dword v246, v138, s[46:47]", "par")
        e.vmem("global_load_dword v142, v139, s[48:49]", "par")
        e(f"s_mov_b32 s82, {WS_EP}\ns_mov_b64 exec, 1")
        e.vmem("buffer_load_dword v247, v247, s[20:23], s82 offen sc1", "par")
        e("s_mov_b64 exec, -1")
    if not late: par_loads()
    if tlb:
        e("s_cmp_lg_u32 s4, 0\ns_cbranch_scc1 K_notlb\nv_mov_b32 v140, 0\ns_mov_b64 exec, 1")
        for p in (52, 54, 56, 42, 44): e(f"global_load_dword v141, v140, s[{p}:{p+1}]")
        if tlb > 1:
            e(f"s_mul_i32 s30, s5, {128*1792}\nv_mov_b32 v251, s30\nglobal_load_dword v141, v251, s[58:59]")
            e(f"s_mul_i32 s30, s5, {2*A_W}\nbuffer_load_dword v141, v140, s[20:23], s30 offen\ns_mul_i32 s30, s5, {4*A_W}\ns_add_u32 s30, s30, {WS_AO}\nbuffer_load_dword v141, v140, s[20:23], s30 offen")
            e(f"s_mul_i32 s30, s5, {14*32768}\ns_add_u32 s30, s30, {WS_PX}\nbuffer_load_dword v141, v140, s[20:23], s30 offen")
        e("s_mov_b64 exec, -1")
        e.label("K_notlb")
    rot_off(30)
    e(f"s_sub_u32 s30, 7, s30\ns_cmp_ge_u32 s30, 7\ns_cselect_b32 s30, 0, s30\ns_lshl_b32 s30, s30, 14\ns_lshl_b32 s31, s85, 13\ns_add_u32 s30, s30, s31\ns_and_b32 s31, s4, 1\ns_lshl_b32 s31, s31, 12\ns_add_u32 s30, s30, s31")
    e("v_bfe_u32 v4, v0, 2, 2\nv_lshl_add_u32 v4, v21, 2, v4\nv_lshrrev_b32 v5, 1, v4\nv_lshlrev_b32 v4, 7, v4\nv_bfe_u32 v7, v0, 4, 1\nv_lshlrev_b32 v7, 1, v7\nv_bfe_u32 v8, v0, 1, 1\nv_add_u32 v7, v7, v8")
    e("s_and_b32 s31, s4, 2\ns_lshl_b32 s31, s31, 1\nv_add_u32 v7, s31, v7\nv_xor_b32 v7, v7, v5\nv_lshl_add_u32 v4, v7, 4, v4\nv_and_b32 v7, 1, v0\nv_lshl_add_u32 v4, v7, 3, v4\nv_add_u32 v254, s30, v4\nv_xor_b32 v255, 64, v254")
    e("v_lshlrev_b32 v8, 4, v7\nv_xor_b32 v8, 16, v8")
    e("s_bitcmp1_b32 s4, 0\ns_cselect_b64 s[64:65], -1, 0")
    e("s_bitcmp1_b32 s4, 1\ns_cselect_b64 s[66:67], -1, 0\ns_mov_b32 s68, 0\ns_mov_b32 s69, -1")
    e("s_lshr_b32 s87, s4, 1\ns_lshl_b32 s73, s85, 6")
    K = []
    def k_(s): K.extend(s.split("\n"))
    for r in (244, 245, 246, 142): k_(f"v_lshlrev_b32 v{r}, v8, v{r}\nv_and_b32 v{r}, 0xffff0000, v{r}")
    k_(f"v_mul_f32 v246, {LOG2E}, v246\nv_exp_f32 v246, v246\ns_nop 0\nv_cvt_pk_bf16_f32 v246, v246, v246\nv_and_b32 v246, 0xffff0000, v246")
    k_(f"v_mul_f32 v5, v246, v244\nv_mul_f32 v6, v246, v245\nv_mul_f32 v5, {LOG2E}, v5\nv_exp_f32 v5, v5")
    k_("v_mul_f32 v6, 0.15915494, v6\nv_rndne_f32 v9, v6\nv_sub_f32 v6, v6, v9\nv_cos_f32 v22, v6\nv_sin_f32 v23, v6\ns_nop 0")
    k_("v_mul_f32 v22, v22, v5\nv_mul_f32 v23, v23, v5")
    k_("v_mul_f32 v5, v244, v244\nv_fma_f32 v5, v245, v245, v5\nv_rcp_f32 v5, v5\nv_add_f32 v6, -1.0, v22")
    k_("v_mul_f32 v30, v6, v244\nv_fma_f32 v30, v23, v245, v30\nv_mul_f32 v31, v23, v244\nv_fma_f32 v31, -v6, v245, v31")
    k_("v_add_f32 v5, v5, v5\nv_mul_f32 v30, v30, v5\nv_mul_f32 v31, v31, v5\nv_xor_b32 v33, 0x80000000, v23")
    def csq(d, s): k_(f"v_mul_f32 v9, v{s}, v{s+1}\nv_mul_f32 v{d}, v{s}, v{s}\nv_fma_f32 v{d}, -v{s+1}, v{s+1}, v{d}\nv_add_f32 v{d+1}, v9, v9")
    def pwmul(mask):
        k_(f"v_cndmask_b32 v5, 1.0, v26, {mask}\nv_cndmask_b32 v6, 0, v27, {mask}")
        k_("v_mul_f32 v9, v28, v6\nv_mul_f32 v28, v28, v5\nv_fma_f32 v28, -v29, v6, v28\nv_fma_f32 v29, v29, v5, v9")
    csq(24, 22); csq(24, 24); csq(24, 24); csq(24, 24)
    k_("v_cndmask_b32 v28, 1.0, v24, s[68:69]\nv_cndmask_b32 v29, 0, v25, s[68:69]")
    csq(26, 24); pwmul("s[64:65]"); csq(26, 26); pwmul("s[66:67]"); csq(26, 26); csq(136, 26)
    QR, QI = 104, 120
    for j in range(16):
        pr, pi = (30, 31) if j == 0 else (QR + j - 1, QI + j - 1)
        k_(f"v_mul_f32 v{QR+j}, v22, v{pr}\nv_mul_f32 v{QI+j}, v22, v{pi}\nv_fmac_f32 v{QR+j}, v33, v{pi}\nv_fmac_f32 v{QI+j}, v23, v{pr}")
    k_("v_xor_b32 v31, 0x80000000, v31\nv_xor_b32 v32, 0x80000000, v30")
    UR, UI = 40, 56
    SF = [144, 192]
    def sreads(sg):
        fs = SF[sg & 1]; out = []
        for j in range(4):
            xb = (10 + j) if sg < 4 else (14 + j)
            out += [f"ds_read_b128 v[{fs+12*j}:{fs+12*j+3}], v{xb} offset:{(sg & 3)*CH}",
                    f"ds_read_b128 v[{fs+12*j+4}:{fs+12*j+7}], v{240+j} offset:{(sg % NR)*8192}",
                    f"ds_read_b128 v[{fs+12*j+8}:{fs+12*j+11}], v{240+j} offset:{(sg % NR)*8192+4096}"]
        return out
    def dots(fs):
        for j in range(4):
            for q in range(4): e(f"v_dot2c_f32_bf16 v37, v{fs+12*j+q}, v{fs+12*j+q}\nv_dot2c_f32_bf16 v36, s94, v{fs+12*j+q}")
        for q in range(4): e(f"v_dot2c_f32_bf16 v34, s94, v{fs+4+q}\nv_dot2c_f32_bf16 v35, s94, v{fs+8+q}")
    Z = []
    def z_(s): Z.extend(s.split("\n"))
    z_("v_mov_b32 v1, v36\nv_mov_b32 v2, v37\ns_nop 1")
    z_("v_permlane32_swap_b32 v36, v1\nv_permlane32_swap_b32 v37, v2\nv_permlane32_swap_b32 v34, v35\ns_nop 1")
    z_("v_add_f32 v34, v34, v35\nv_add_f32 v36, v36, v1\nv_add_f32 v37, v37, v2\nds_write_b32 v248, v34")
    z_("v_mul_f32 v36, 0x3b124925, v36\nv_mul_f32 v37, 0x3b124925, v37")
    z_("v_fma_f32 v37, -v36, v36, v37\nv_max_f32 v37, 0, v37\nv_cvt_pk_bf16_f32 v1, v37, v36")
    z_("v_and_b32 v36, 0xffff0000, v1\nv_lshlrev_b32 v37, 16, v1\nv_add_f32 v37, 0x3727c5ac, v37")
    z_("v_cvt_pk_bf16_f32 v37, v37, v37\nv_and_b32 v37, 0xffff0000, v37\nv_sqrt_f32 v37, v37\ns_nop 0")
    z_("v_cvt_pk_bf16_f32 v37, v37, v37\nv_and_b32 v37, 0xffff0000, v37\nv_rcp_f32 v37, v37\ns_nop 0")
    z_("v_cndmask_b32 v36, v36, v37, s[68:69]\nds_write_b32 v249, v36")
    e(f"s_lshl_b32 s30, s4, 2\ns_add_u32 s30, s30, {CSB}\nv_lshl_add_u32 v248, v0, 4, s30")
    tau_of_lane(e, 249, 2)
    e(f"s_lshl_b32 s30, s4, 7\ns_add_u32 s30, s30, {STAT}\nv_lshl_add_u32 v249, v249, 2, s30\nv_lshl_add_u32 v249, v21, 9, v249\nv_lshl_add_u32 v3, v21, 6, s30")
    e(f"v_and_b32 v250, 31, v0\nv_lshlrev_b32 v250, 4, v250\nv_add_u32 v250, {CSB}, v250")
    st(e, "b0")
    e("s_barrier")
    for x in sreads(0): e(x)
    if late: par_loads()
    ks = 2 if late else 1
    for sg in range(7):
        fs = SF[sg & 1]
        if sg == ks:
            e.vm_wait({"par"})
            e("v_readfirstlane_b32 s84, v247\ns_add_u32 s84, s84, 1\ns_max_u32 s84, s84, 1")
            e(f"s_getreg_b32 s74, hwreg(HW_REG_XCC_ID, 0, 4)\ns_lshl_b32 s78, s5, 1\ns_add_u32 s78, s78, s85\ns_lshl_b32 s78, s78, 10\ns_add_u32 s78, s78, {WS_FH}\ns_add_u32 s75, s78, {WS_XID - WS_FH}")
            e("s_cmp_lg_u32 s4, 0\ns_cbranch_scc1 K_noxid")
            e("s_lshl_b32 s31, s91, 7\nv_mov_b32 v251, s31\nv_mov_b32 v252, s74\nv_mov_b32 v253, s84\ns_mov_b64 exec, 1")
            e("buffer_store_dwordx2 v[252:253], v251, s[20:23], s75 offen sc1\ns_mov_b64 exec, -1")
            e.label("K_noxid")
        e.lg0()
        if sg == 6:
            for j in range(4): e(f"ds_read_b64_tr_b16 v[{208+2*j}:{209+2*j}], v{254 + (j & 1)} offset:{j*1024}")
            dots(fs)
            e.lg0()
        st(e, f"b{sg+1}")
        e("s_barrier")
        rd = sreads(sg + 1) if sg < 6 else []
        for j in range(4):
            for acc, o in ((UR, 4), (UI, 8)):
                e(mfma(acc, fs+12*j, fs+12*j+o, sg == 0 and j == 0))
                for x in rd[:2]: e(x)
                nk = kint if rd else 4
                rd = rd[2:]
                for _ in range(nk):
                    if sg == 6:
                        if Z: e(Z.pop(0))
                    elif sg >= ks and K: e(K.pop(0))
        if sg < 6: dots(fs)
    for x in Z: e(x)
    gen = [0]
    def ssync(extra=None):
        gen[0] += 1
        e("s_mov_b64 exec, 1\nds_add_u32 v18, v19 offset:80\ns_mov_b64 exec, -1")
        def body():
            e("ds_read_b32 v1, v18 offset:80")
            if extra: extra()
            e("s_waitcnt lgkmcnt(0)\nv_readfirstlane_b32 s82, v1")
        spin(e, body, f"s_cmp_ge_u32 s82, {4*gen[0]}", sleep=ssl)
        e.lg = []
    def wait_prog(n):
        def body():
            e("ds_read_b128 v[4:7], v18\ns_waitcnt lgkmcnt(0)\nv_min_u32 v4, v4, v5\nv_min3_u32 v4, v4, v6, v7\ns_nop 0\nv_readfirstlane_b32 s82, v4")
        spin(e, body, f"s_cmp_ge_u32 s82, {n}", sleep=wsl)
        e.lg = []
    M, R = 72, 88
    e(f"s_setprio {sprio2}")
    if sidle:
        def body():
            e("s_sleep 8\nds_read_b128 v[4:7], v18\ns_waitcnt lgkmcnt(0)\nv_min_u32 v4, v4, v5\nv_min3_u32 v4, v4, v6, v7\ns_nop 0\nv_readfirstlane_b32 s82, v4")
        spin(e, body, "s_cmp_ge_u32 s82, 7", sleep=1)
    TMP = 192
    for q in range(4): e(f"ds_read_b128 v[{M+4*q}:{M+4*q+3}], v3 offset:{16*q}")
    for q in range(4): e(f"ds_read_b128 v[{R+4*q}:{R+4*q+3}], v3 offset:{512+16*q}")
    e(f"s_lshl_b32 s30, s4, 9\ns_add_u32 s30, s30, {SUB}\nv_lshl_add_u32 v2, v0, 3, s30\nv_add_u32 v3, {7*256}, v2")
    ssync(lambda: e(f"ds_read_b128 v[{TMP}:{TMP+3}], v250\nds_read_b128 v[{TMP+4}:{TMP+7}], v250 offset:512"))
    st(e, "ss1")
    t = TMP
    e(f"v_add_f32 v{t}, v{t}, v{t+1}\nv_add_f32 v{t+2}, v{t+2}, v{t+3}\nv_add_f32 v{t+4}, v{t+4}, v{t+5}\nv_add_f32 v{t+6}, v{t+6}, v{t+7}\nv_add_f32 v34, -v{t}, -v{t+2}\nv_add_f32 v35, -v{t+4}, -v{t+6}")
    for j in range(16): e(f"v_fmac_f32 v{UR+j}, v34, v{M+j}\nv_fmac_f32 v{UI+j}, v35, v{M+j}")
    for j in range(16): e(f"v_mul_f32 v{UR+j}, v{UR+j}, v{R+j}\nv_mul_f32 v{UI+j}, v{UI+j}, v{R+j}")
    st(e, "fold")
    for j in range(1, 16):
        e(f"v_fmac_f32 v{UR+j}, v22, v{UR+j-1}\nv_fmac_f32 v{UI+j}, v22, v{UI+j-1}\nv_fmac_f32 v{UR+j}, v33, v{UI+j-1}\nv_fmac_f32 v{UI+j}, v23, v{UR+j-1}")
    st(e, "scan")
    e(f"ds_write2_b32 v3, v{UR+15}, v{UI+15} offset1:1")
    def step(dr, di, hr, hi, ur, ui, lr, li):
        e(f"v_fma_f32 v{dr}, v{lr}, v{hr}, v{ur}\nv_fma_f32 v{di}, v{lr}, v{hi}, v{ui}")
        e(f"v_fma_f32 v{dr}, -v{li}, v{hi}, v{dr}\nv_fma_f32 v{di}, v{li}, v{hr}, v{di}")
    def rdsub():
        for d in range(7): e(f"ds_read_b64 v[{TMP+2*d}:{TMP+1+2*d}], v2 offset:{d*256}")
    ssync(rdsub)
    st(e, "ss")
    for d in range(1, 7):
        dd = (38, 39) if d == 6 else (TMP + 2*d, TMP + 1 + 2*d)
        step(dd[0], dd[1], TMP - 2 + 2*d, TMP - 1 + 2*d, TMP + 2*d, TMP + 1 + 2*d, 24, 25)
    e("s_cmp_lg_u32 s4, 3\ns_cbranch_scc1 K_nopub")
    step(TMP, TMP + 2, 38, 39, UR + 15, UI + 15, 24, 25)
    e(f"v_mov_b32 v{TMP+1}, s84\nv_mov_b32 v{TMP+3}, s84")
    e(f"s_lshl_b32 s30, s6, 4\ns_add_u32 s30, s30, s5\ns_lshl_b32 s30, s30, 9\ns_add_u32 s30, s30, {WS_AGG - 512}")
    e("v_lshlrev_b32 v1, 4, v0\ns_mov_b32 exec_lo, 0")
    e(f"buffer_store_dwordx4 v[{TMP}:{TMP+3}], v1, s[20:23], s30 offen sc1")
    e("s_mov_b32 exec_lo, -1")
    e.label("K_nopub")
    st(e, "pub")
    for x in K: e(x)
    GR, GI = 72, 88
    for j in range(16):
        e(f"v_mul_f32 v{GR+j}, v30, v{UR+j}\nv_mul_f32 v{GI+j}, v32, v{UI+j}\nv_fmac_f32 v{GR+j}, v31, v{UI+j}\nv_fmac_f32 v{GI+j}, v31, v{UR+j}")
    AG = 40
    st(e, "g")
    for i in range(8): e(f"v_mov_b32 v{AG+4*i}, 0\nv_mov_b32 v{AG+4*i+1}, s84\nv_mov_b32 v{AG+4*i+2}, 0\nv_mov_b32 v{AG+4*i+3}, s84")
    e(f"s_lshl_b32 s90, s6, 11\ns_lshl_b32 s30, s4, 8\ns_add_u32 s90, s90, s30\ns_add_u32 s90, s90, {WS_CS}")
    e("v_and_b32 v34, 31, v0\nv_lshlrev_b32 v34, 3, v34\nv_lshl_add_u32 v34, v21, 10, v34")
    def cs_loads():
        e("buffer_load_dwordx2 v[8:9], v34, s[20:23], s90 offen sc1\nbuffer_load_dwordx2 v[140:141], v35, s[20:23], s75 offen sc1")
    cs_chk = "v_cmp_eq_u32 vcc, s84, v9\nv_cmp_eq_u32 s[28:29], s84, v141\ns_nop 1\ns_and_b64 vcc, vcc, s[28:29]"
    e("v_min_u32 v35, 6, v0\nv_lshlrev_b32 v35, 7, v35")
    cs_loads()
    e(f"s_lshl_b32 s30, s91, 7\ns_add_u32 s30, s30, s78\nv_mul_u32_u24 v1, {WS_FO - WS_FH}, v21")
    e("s_mov_b32 exec_lo, 1\ns_mov_b32 exec_hi, 1\nbuffer_load_dword v251, v1, s[20:23], s30 offen sc1\ns_mov_b64 exec, -1")
    e(f"s_lshl_b32 s92, s6, 4\ns_add_u32 s92, s92, s5\ns_lshl_b32 s92, s92, 9\ns_add_u32 s92, s92, {WS_AGG - 8192}\ns_add_u32 s93, s92, 4096\nv_lshlrev_b32 v3, 4, v0")
    def agg_loads():
        for i in range(8):
            l = e.newlabel("AL")
            e(f"s_cmp_lt_u32 s5, {15 - 2*i}\ns_cbranch_scc1 {l}")
            e(f"s_cmp_ge_u32 s5, {16 - 2*i}\ns_cselect_b32 exec_lo, -1, 0")
            e(f"buffer_load_dwordx4 v[{AG+4*i}:{AG+4*i+3}], v3, s[20:23], s{92 + (i >> 2)} offen offset:{1024*(i & 3)} sc1")
            e.label(l)
        e("s_mov_b32 exec_lo, -1")
    agg_loads()
    st(e, "aggi")
    SEL = 144
    tau_of_lane(e, 1, 2)
    e("v_lshlrev_b32 v2, 4, v21\nv_sub_u32 v1, v1, v2\nv_and_b32 v2, 1, v1\nv_lshlrev_b32 v2, 4, v2\nv_mov_b32 v4, 0x3f80\nv_lshlrev_b32 v2, v2, v4\nv_ashrrev_i32 v1, 1, v1")
    for q in range(0, 8, 2):
        e(f"v_cmp_eq_u32 vcc, {q}, v1\nv_cmp_eq_u32 s[30:31], {q+1}, v1\ns_nop 0\nv_cndmask_b32 v{SEL+q}, 0, v2, vcc\nv_cndmask_b32 v{SEL+q+1}, 0, v2, s[30:31]")
    e(f"s_mul_i32 s76, s5, {2*A_W}\ns_lshl_b32 s30, s6, 13\ns_add_u32 s76, s76, s30\ns_lshl_b32 s30, s4, 10\ns_add_u32 s76, s76, s30\ns_add_u32 s77, s76, {A_W}")
    def rnd(b):
        for r in range(0, 16, 2): e(f"v_cvt_pk_bf16_f32 v{b+r}, v{b+r}, v{b+r+1}")
        for r in range(0, 16, 2): e(f"v_and_b32 v{b+r+1}, 0xffff0000, v{b+r}\nv_lshlrev_b32 v{b+r}, 16, v{b+r}")
    e.vm0()
    st(e, "aggl")
    e("s_mov_b32 s95, 0")
    e.label("K_horner")
    e(f"v_min3_u32 v1, s84, v{AG+1}, v{AG+3}\nv_max3_u32 v2, s84, v{AG+1}, v{AG+3}")
    for i in range(1, 8):
        b = AG + 4*i
        src = (AG, AG + 2) if i == 1 else ((4, 5) if i % 2 == 0 else (6, 7))
        dst = (4, 5) if i % 2 == 1 else (6, 7)
        step(dst[0], dst[1], src[0], src[1], b, b + 2, 136, 137)
        e(f"v_min3_u32 v1, v1, v{b+1}, v{b+3}\nv_max3_u32 v2, v2, v{b+1}, v{b+3}")
    e("v_cmp_eq_u32 vcc, v1, v2\nv_mov_b32 v6, v4\nv_mov_b32 v7, v5\ns_cmp_eq_u64 vcc, -1\ns_cbranch_scc1 K_hok")
    e(f"s_add_u32 s95, s95, 1\ns_cmp_ge_u32 s95, {SPIN_MAX}\ns_cbranch_scc1 K_hok")
    if lp:
        e(f"s_lshl_b32 s30, s6, 13\ns_add_u32 s30, s30, {WS_AGG + 508}\ns_sub_u32 s31, s5, 1\nv_min_u32 v1, s31, v0\nv_lshlrev_b32 v1, 9, v1\ns_mov_b64 exec, 0xffff")
        e.label("K_lp")
        e(f"s_sleep 2\nbuffer_load_dword v2, v1, s[20:23], s30 offen sc1\ns_add_u32 s95, s95, 1\ns_waitcnt vmcnt(0)\nv_cmp_eq_u32 vcc, s84, v2\ns_cmp_ge_u32 s95, {SPIN_MAX}\ns_cbranch_scc1 K_lpx\ns_cmp_eq_u64 vcc, exec\ns_cbranch_scc0 K_lp")
        e.label("K_lpx")
        e("s_mov_b64 exec, -1")
    else: e("s_sleep 4")
    agg_loads()
    e("s_waitcnt vmcnt(0)\ns_branch K_horner")
    e.label("K_hok")
    st(e, "look")
    e("v_permlane32_swap_b32 v4, v6\nv_permlane32_swap_b32 v5, v7\ns_nop 0")
    step(6, 7, 4, 5, 6, 7, 26, 27)
    step(38, 39, 6, 7, 38, 39, 28, 29)
    e("v_xor_b32 v36, 0x80000000, v38\nv_xor_b32 v37, 0x80000000, v39")
    for j in range(0, 16, 2):
        for x in (j, j + 1):
            e(f"v_fmac_f32 v{GR+x}, v38, v{QR+x}\nv_fmac_f32 v{GI+x}, v37, v{QR+x}\nv_fmac_f32 v{GR+x}, v37, v{QI+x}\nv_fmac_f32 v{GI+x}, v36, v{QI+x}")
        e(f"v_cvt_pk_bf16_f32 v{40+j//2}, v{GR+j}, v{GR+j+1}\nv_cvt_pk_bf16_f32 v{48+j//2}, v{GI+j}, v{GI+j+1}")
    st(e, "fin")
    e("s_setprio 3")
    e(mfma(160, 40, SEL, True)); e(mfma(176, 48, SEL, True)); e(mfma(160, 44, SEL + 4)); e(mfma(176, 52, SEL + 4))
    e(f"s_setprio {sprio2}")
    e("s_add_u32 s30, s76, 4096\ns_add_u32 s31, s77, 4096\ns_nop 7")
    for r in range(16): e(f"v_cvt_pk_bf16_f32 v{56+r}, v{160+2*r}, v{161+2*r}")
    st(e, "ht")
    stores([f"buffer_store_dwordx4 v[56:59], v3, s[20:23], s76 offen", "buffer_store_dwordx4 v[60:63], v3, s[20:23], s30 offen",
            f"buffer_store_dwordx4 v[64:67], v3, s[20:23], s77 offen", "buffer_store_dwordx4 v[68:71], v3, s[20:23], s31 offen"], "h")
    st(e, "hst")
    e(cs_chk + "\ns_cmp_eq_u64 vcc, -1\ns_cbranch_scc1 K_cs_ok")
    def body():
        cs_loads()
        e("s_waitcnt vmcnt(0)\n" + cs_chk)
    spin(e, body, "s_cmp_eq_u64 vcc, -1", sleep=2)
    e.label("K_cs_ok")
    e("v_cmp_eq_u32 vcc, s74, v140")
    e(f"s_lshl_b32 s30, s4, 8\ns_add_u32 s30, s30, {CSW}\nv_lshl_add_u32 v1, v0, 2, s30")
    e("s_cmp_eq_u64 vcc, -1\ns_cselect_b32 s97, 2, 1")
    if force: e(f"s_mov_b32 s97, {force}")
    e("v_mov_b32 v2, s97\nds_write_b32 v1, v8\nds_write_b32 v20, v2 offset:16")
    e(f"s_lshl_b32 s30, s87, 14\ns_xor_b32 s31, s30, 0x4000\ns_and_b32 s29, s4, 1\ns_lshl_b32 s29, s29, 12\ns_sub_u32 s29, {C0}, s29\ns_add_u32 s30, s30, s29\ns_add_u32 s31, s31, s29\ns_lshl_b32 s29, s4, 5")
    for j in range(4): e(f"v_xor_b32 v{10+j}, s29, v{10+j}\nv_add_u32 v{14+j}, s31, v{10+j}\nv_add_u32 v{10+j}, s30, v{10+j}")
    e("s_lshl_b32 s30, s91, 7\ns_lshl_b32 s31, s4, 2\ns_add_u32 s31, s31, s30\nv_mov_b32 v4, s31\nv_mov_b32 v5, s84")
    e.vm_wait({"h"})
    e("s_mov_b64 exec, 1")
    dual(["buffer_store_dword v5, v4, s[20:23], s78 offen"], "fl")
    e("s_mov_b64 exec, -1")
    st(e, "hflag")
    if rb_y:
        e("s_add_u32 s30, s76, 4096\ns_add_u32 s31, s77, 4096")
        for g, sr in enumerate((76, 30, 77, 31)): e(f"buffer_load_dwordx4 v[{24+4*g}:{27+4*g}], v3, s[20:23], s{sr} offen sc1")
    e(f"s_lshl_b32 s92, s5, 1\ns_add_u32 s92, s92, s87\ns_mul_i32 s92, s92, {A_W}\ns_lshl_b32 s30, s85, 13\ns_add_u32 s93, s92, s30\ns_add_u32 s93, s93, {3*CH}\ns_lshl_b32 s30, s85, 16\ns_add_u32 s92, s92, s30")
    e("v_and_b32 v8, 7, v0\nv_min_u32 v8, 6, v8\nv_lshlrev_b32 v8, 7, v8\nv_and_b32 v1, 8, v0\nv_add_u32 v8, v8, v1\ns_and_b32 s30, s4, 1\ns_lshl_b32 s31, s30, 2\nv_add_u32 v8, s31, v8")
    e("s_lshl_b32 s30, s30, 10\ns_lshl_b32 s31, s85, 11\ns_add_u32 s30, s30, s31\nv_add_u32 v23, s30, v3\nv_xor_b32 v22, 0x800, v23")
    e(f"s_mul_i32 s76, s5, 7\ns_add_u32 s76, s76, s91\ns_lshl_b32 s76, s76, 1\ns_add_u32 s76, s76, s85\ns_lshl_b32 s76, s76, 15\ns_add_u32 s76, s76, s89\ns_xor_b32 s77, s76, 0x8000\ns_add_u32 s76, s76, {WS_PX}\ns_add_u32 s77, s77, {WS_PX}")
    def creg(k): return 144 + 8 * k
    def c_list(r):
        out = []
        for k in range(8*r, min(14, 8*r + 8)):
            if k == 12: out += [f"v_xor_b32 v{10+j}, s73, v{10+j}" for j in (0, 1, 4, 5)]
            for b in range(2):
                g = creg(k) + 4*b
                out.append(f"ds_read_b128 v[{g}:{g+3}], v{10 + 4*b + (k & 3)} offset:{r*2*CH + ((k >> 2) & 1)*4096}")
        return out
    XR, MR, RR = 64, 80, 96
    e(f"s_lshl_b32 s29, s85, 6\ns_and_b32 s31, s4, 1\ns_lshl_b32 s31, s31, 5\ns_add_u32 s29, s29, s31\ns_lshl_b32 s29, s29, 2\ns_add_u32 s29, s29, {STAT}\nv_lshl_add_u32 v4, v21, 6, s29")
    for q in range(4):
        e(f"ds_read_b128 v[{MR+4*q}:{MR+4*q+3}], v4 offset:{16*q}\nds_read_b128 v[{RR+4*q}:{RR+4*q+3}], v4 offset:{512+16*q}")
    for r in range(8): e(f"v_mov_b32 v{56+r}, v{208+r}\nv_lshlrev_b32 v{XR+2*r}, 16, v{208+r}\nv_and_b32 v{XR+2*r+1}, 0xffff0000, v{208+r}")
    e.lg0()
    for r in range(16): e(f"v_sub_f32 v{MR+r}, v{XR+r}, v{MR+r}")
    rnd(MR)
    for r in range(16): e(f"v_mul_f32 v{MR+r}, v{MR+r}, v{RR+r}")
    rnd(MR)
    for r in range(16): e(f"v_mul_f32 v{MR+r}, v{MR+r}, v142")
    for r in range(8): e(f"v_cvt_pk_bf16_f32 v{128+r}, v{MR+2*r}, v{MR+2*r+1}")
    st(e, "xn")
    wait_prog(6)
    for x in c_list(0): e(x)
    e("s_waitcnt lgkmcnt(0)\ns_mov_b64 exec, 1\nds_add_u32 v18, v19 offset:88")
    st(e, "c0")
    e("s_mov_b64 exec, 0xffff")
    def body():
        e("buffer_load_dword v9, v8, s[20:23], s78 offen sc1\ns_waitcnt vmcnt(0)\nv_cmp_eq_u32 vcc, s84, v9\ns_nop 1")
    spin(e, body, "s_cmp_eq_u64 vcc, exec", sleep=4)
    e("s_mov_b64 exec, -1")
    e.vm = []
    st(e, "hseen")
    NP = 8
    ypre = min(ypre, NP - 1)
    YA = [64, 96]
    def yreg(t): return 24 + 4*(t % NP)
    def yissue(t):
        k = t >> 1
        if (t & 1) == 0 and k > 0: e("s_mov_b32 s92, s93" if k == 12 else "s_add_u32 s92, s92, 4096")
        e.vmem(f"buffer_load_dwordx4 v[{yreg(t)}:{yreg(t)+3}], v{22 + (t & 1)}, s[20:23], s92 offen sc1", ("A", t))
    if ypre:
        if ywait > 6: wait_prog(ywait)
        for t in range(ypre): yissue(t)
    def body():
        e("ds_read_b128 v[4:7], v18 offset:32\ns_waitcnt lgkmcnt(0)\nv_min_u32 v4, v4, v5\nv_min3_u32 v4, v4, v6, v7\ns_nop 0\nv_readfirstlane_b32 s82, v4")
    spin(e, body, "s_cmp_lg_u32 s82, 0", sleep=1)
    st(e, "epid")
    e("s_setprio 3")
    for t in range(ypre, NP - 1): yissue(t)
    for x in c_list(1): e(x)
    e(f"s_add_u32 s31, s89, {SC}\nv_add_u32 v136, s31, v3\nv_xor_b32 v137, 0x2000, v136\nv_xor_b32 v138, 8, v20")
    for t in range(28):
        k = t >> 1
        if t == 8: e("s_waitcnt lgkmcnt(0)\ns_mov_b64 exec, 1\nds_add_u32 v18, v19 offset:92\ns_mov_b64 exec, -1")
        if t == 24: e("ds_read_b32 v1, v18 offset:92")
        e.vm_wait({("A", t)})
        for b in range(2):
            e(mfma(YA[t & 1] + 16*b, yreg(t), creg(k) + 4*b, k == 0))
            if b == 0 and t + NP - 1 < 28: yissue(t + NP - 1)
    st(e, "yloop")
    e("s_waitcnt lgkmcnt(0)\nv_readfirstlane_b32 s82, v1\ns_cmp_ge_u32 s82, 4\ns_cbranch_scc1 K_c1ok")
    lds_wait(18, 92, "s_cmp_ge_u32 s82, 4", 1, sleep=0)
    e.label("K_c1ok")
    e("s_nop 5")
    for ps in range(2):
        for g in range(4): e(f"ds_write_b128 v136, v[{YA[ps]+16+4*g}:{YA[ps]+19+4*g}] offset:{ps*CH + g*1024}")
    e("ds_write_b32 v20, v19 offset:96")
    lds_wait(138, 96, "s_cmp_lg_u32 s82, 0", 1, sleep=0)
    st(e, "yw")
    for ps in range(2):
        for g in range(4): e(f"ds_read_b128 v[{YA[ps]+16+4*g}:{YA[ps]+19+4*g}], v137 offset:{ps*CH + g*1024}")
    e("s_waitcnt lgkmcnt(4)")
    Y = YA[0]
    for r in range(16): e(f"v_add_f32 v{Y+r}, v{Y+r}, v{Y+16+r}")
    for r in range(0, 16, 2): e(f"v_cvt_pk_bf16_f32 v{24+r}, v{Y+r}, v{Y+r+1}\nv_mov_b32 v{25+r}, s84")
    e("s_waitcnt lgkmcnt(0)\ns_mov_b64 exec, 1\nds_add_u32 v18, v19 offset:84\ns_mov_b64 exec, -1")
    st(e, "yx")
    e("s_setprio 0")
    Y = YA[1]
    def ysend(g): stores([f"buffer_store_dwordx4 v[{24+4*g}:{27+4*g}], v3, s[20:23], s77 offen offset:{g*1024}"], "px")
    ysend(0)
    for r in range(16): e(f"v_add_f32 v{Y+r}, v{Y+r}, v{Y+16+r}")
    for r in range(8): e(f"v_lshlrev_b32 v{Y+16+2*r}, 16, v{128+r}\nv_and_b32 v{Y+17+2*r}, 0xffff0000, v{128+r}")
    ysend(1)
    for r in range(16): e(f"v_add_f32 v{Y+r}, v{Y+r}, v{Y+16+r}")
    lds_wait(18, 84, "s_cmp_ge_u32 s82, 4", 1, sleep=1)
    ysend(2)
    for g in range(4): e(f"ds_write_b128 v136, v[{Y+4*g}:{Y+3+4*g}] offset:{g*1024}")
    e(f"v_add_u32 v11, {6*CH + 2048 - SC}, v136")
    for g in range(2): e(f"ds_write_b128 v11, v[{56+4*g}:{59+4*g}] offset:{g*1024}")
    e("ds_write_b32 v20, v19 offset:128")
    e.lg0()
    ysend(3)
    st(e, "ydone")
    e.lg0()
    e("s_barrier")
    st.dump(e); info["S"] = st.names
    e("s_endpgm")

    e.vm = []; e.lg = []
    e.label("K_SPARE")
    st = Stamper(stamps, 143)
    e("s_cmp_ge_u32 s2, 256\ns_cbranch_scc1 K_END\nv_mov_b32 v2, v0\nv_and_b32 v0, 63, v0\ns_lshr_b32 s3, s3, 6")
    e("v_lshlrev_b32 v7, 7, v2")
    e("s_sub_u32 s4, s2, 224\ns_lshr_b32 s5, s4, 1\ns_and_b32 s6, s4, 1")
    e("v_lshrrev_b32 v3, 4, v2\nv_and_b32 v4, 15, v2\nv_mul_u32_u24 v5, 0xe00, v3\nv_lshl_add_u32 v5, v4, 4, v5")
    e(f"v_mov_b32 v6, 0\ns_mov_b32 s82, {WS_EP}\ns_lshl_b32 s28, s5, 8")
    e("s_cmp_eq_u32 s6, 0")
    e("s_waitcnt lgkmcnt(0)")
    e("s_cselect_b32 s16, s52, s54\ns_cselect_b32 s17, s53, s55")
    e(f"s_and_b32 s17, s17, 0xffff\ns_mov_b32 s18, {448*3584}\ns_mov_b32 s19, 0x20000")
    srd(e, 20, 62, WS_END)
    srd(e, 8, 56, 1792 * 896)
    srd(e, 64, 42, 448 * 896)
    srd(e, 68, 44, 448 * 896)
    if late:
        e("s_cmp_lg_u32 s3, 0\ns_cbranch_scc1 K_sp6\nv_min_u32 v84, 6, v0\nv_lshlrev_b32 v84, 7, v84\ns_mov_b64 exec, 0x7f")
        for i, p in enumerate((34, 36, 46, 48, 58)): e(f"global_load_dword v{85+i}, v84, s[{p}:{p+1}]")
        e("s_mov_b64 exec, -1")
        e.label("K_sp6")
    e("s_cmp_ge_u32 s4, 28\ns_cbranch_scc1 K_sp4")
    e.vmem("buffer_load_dword v6, v6, s[20:23], s82 offen sc1", "ep")
    for i in range(14):
        e.vmem(f"buffer_load_dwordx4 v[{16+4*i}:{19+4*i}], v5, s[16:19], s28 offen", ("cs", i))
        if i < 13: e(f"s_add_u32 s28, s28, {32*3584}")
    if warm:
        e("s_mul_i32 s28, s4, 57344\ns_mul_i32 s29, s4, 14336")
        e.vmem("buffer_load_dword v80, v7, s[8:11], s28 offen", "t")
        e("v_and_b32 v4, 0x3fff, v7\ns_cmp_lt_u32 s3, 2\ns_cselect_b32 s64, s64, s68\ns_cselect_b32 s65, s65, s69\ns_cmp_lt_u32 s3, 4\ns_cselect_b32 s66, s66, 0")
        e.vmem("buffer_load_dword v81, v4, s[64:67], s29 offen", "t")
    for q in range(8): e(f"v_mov_b32 v{8+q}, 0")
    for i in range(14):
        e.vm_wait({("cs", i)})
        for q in range(4):
            e(f"v_lshlrev_b32 v72, 16, v{16+4*i+q}\nv_and_b32 v73, 0xffff0000, v{16+4*i+q}\nv_pk_add_f32 v[{8+2*q}:{9+2*q}], v[{8+2*q}:{9+2*q}], v[72:73]")
    e("v_lshlrev_b32 v3, 5, v2")
    e("ds_write_b128 v3, v[8:11]\nds_write_b128 v3, v[12:15] offset:16\ns_waitcnt lgkmcnt(0)")
    st(e, "acc")
    e("s_barrier")
    e("s_cmp_lg_u32 s3, 7\ns_cbranch_scc1 K_sp2")
    e("v_lshlrev_b32 v3, 3, v0\nv_add_u32 v9, 1, v6\nv_max_u32 v9, 1, v9\nv_mov_b32 v11, v9")
    for h in range(2):
        for i in range(16): e(f"ds_read_b64 v[{16+2*i}:{17+2*i}], v3 offset:{(16*h+i)*512}")
        e("s_waitcnt lgkmcnt(0)")
        if h == 0: e("v_mov_b32 v12, 0\nv_mov_b32 v13, 0")
        for i in range(16): e(f"v_pk_add_f32 v[12:13], v[12:13], v[{16+2*i}:{17+2*i}]")
    e(f"v_mov_b32 v8, v12\nv_mov_b32 v10, v13\nv_lshlrev_b32 v3, 4, v0\ns_lshl_b32 s30, s4, 10\ns_add_u32 s30, s30, {WS_CS}")
    e("buffer_store_dwordx4 v[8:11], v3, s[20:23], s30 offen sc1")
    e.label("K_sp2")
    e("s_barrier")
    e.label("K_sp4")
    e.label("K_sp3")
    st.dump(e); info["sp"] = st.names
    e.label("K_END")
    e("s_endpgm")
    e.label("ALL_END")
    return khead(name) + e.text(), kd(name, 256, 256), info

if __name__ == "__main__":
    import sys, json
    NAME = "recurrent_scan__ssm_conv_s5__glu_gated_reglu__prompt_kernel"
    stamps = "stamps" in sys.argv
    kw = {}
    for a in sys.argv[2:]:
        if "=" in a:
            k, v = a.split("="); kw[k] = int(v) if v.lstrip("-").isdigit() else v
    b, d, info = gen_fused(NAME, stamps=stamps, **kw)
    hdr = open("recurrent_scan__ssm_conv_s5__glu_gated_reglu__prompt.s.ref").read().split("; Override")[0]
    txt = hdr + f"; @launch grid=(256,1,1) block=(512,1,1) lds={LDS_BYTES}\n"
    if stamps and "rt" in sys.argv: txt += "; RT\n"
    if stamps: txt += "; STAMPS " + json.dumps(info) + "\n"
    txt += '.amdgcn_target "amdgcn-amd-amdhsa--gfx950"\n' + b + d
    open(sys.argv[1], "w").write(txt)
```

```python
from asmlib import *
from layout7 import *
LDS_BYTES = 163840
RING = 114688
NR = 5
MISC = RING + NR * 8192
STAT = MISC
CSB = MISC + 1024
CSW = MISC + 2048
SUB = MISC + 3072
FLG = MISC + 7168
LOG2E = 0x3fb8aa3b
SPIN_MAX = 0x200000
UNIT = 114688
CH = 16384
import sys
PADAT = ([a[6:] for a in sys.argv if a.startswith('padat=')] + [''])[0]
TIMER = 's_memrealtime' if 'rt' in sys.argv else 's_memtime'
C0 = 2 * CH
SC = 4 * CH

def mfma(d, a, b, first=False):
    c = "0" if first else f"v[{d}:{d+15}]"
    return f"v_mfma_f32_32x32x16_bf16 v[{d}:{d+15}], v[{a}:{a+3}], v[{b}:{b+3}], {c}"

class Stamper:
    def __init__(self, on, vreg): self.on = on; self.n = 0; self.v = vreg; self.names = []
    def __call__(self, e, name=""):
        if PADAT and name == PADAT and self.v == 127: e("s_memrealtime s[100:101]")
        if not self.on: return
        e.lg0()
        e(f"v_writelane_b32 v{self.v}, s80, {self.n}\n{TIMER} s[80:81]")
        self.n += 1; self.names.append(name)
        assert self.n <= 60
    def dump(self, e):
        if not self.on: return
        e("s_waitcnt vmcnt(0)")
        self(e, "end"); self(e)
        e("s_memrealtime s[80:81]\ns_waitcnt lgkmcnt(0)")
        e(f"v_writelane_b32 v{self.v}, s96, 62\nv_writelane_b32 v{self.v}, s80, 63\ns_mov_b32 s80, {self.n}\nv_writelane_b32 v{self.v}, s80, 61")
        e(f"s_mov_b32 s22, {WS_END + (1<<20)}")
        e("s_lshl_b32 s82, s2, 3\ns_add_u32 s82, s82, s3\ns_lshl_b32 s82, s82, 8")
        e(f"s_add_u32 s82, s82, {WS_END}")
        e("v_lshlrev_b32 v1, 2, v0")
        e(f"buffer_store_dword v{self.v}, v1, s[20:23], s82 offen")

def spin(e, body, cond_ok, sleep=1):
    l = e.newlabel("SP")
    e("s_mov_b32 s95, 0")
    e.label(l)
    body()
    e(cond_ok)
    e(f"s_cbranch_scc1 {l}_ok")
    if sleep: e(f"s_sleep {sleep}")
    e(f"s_add_u32 s95, s95, 1\ns_cmp_lt_u32 s95, {SPIN_MAX}\ns_cbranch_scc1 {l}")
    e.label(l + "_ok")

def tau_of_lane(e, d, t):
    e(f"v_bfe_u32 v{d}, v0, 2, 1\nv_lshlrev_b32 v{d}, 4, v{d}\nv_bfe_u32 v{t}, v0, 3, 2\nv_lshl_add_u32 v{d}, v{t}, 2, v{d}\nv_and_b32 v{t}, 3, v0\nv_add_u32 v{d}, v{d}, v{t}")

def plan_slots():
    wslot = {n: ("r", ((n + 2) % NR) * 8192) for n in range(5)}
    issue = {}
    nxt = 5
    free = []
    for n in range(28):
        if n in (5, 9):
            c = (n >> 2) - 1
            free += [("c", c * CH), ("c", c * CH + 2048)]
        free.append(wslot[n])
        issue[n] = []
        while free and nxt < 28 and len(issue[n]) < 2:
            wslot[nxt] = free.pop(0); issue[n].append(nxt); nxt += 1
    last = max(n for n in issue if issue[n])
    used_after = {}
    inv = {}
    for n in range(28): inv[wslot[n]] = n
    order = sorted(inv.items(), key=lambda x: x[1])
    wd = [(sl, n + 1, 0) for sl, n in order]
    wd += [(("c", 6 * CH), 0, 7)] + [(("c", C0 + (i >> 1) * CH + (i & 1) * 2048), 0, 0) for i in range(4)]
    assert len(wd) == 14, len(wd)
    return wslot, issue, wd, last

def gen_fused(name, stamps=False, D0=3, pad=0, ra=0, kint=3, fine=1, sidle=0, sprio=3, sprio2=0, fprio=2, NA=16, pace=0, warm=1, ypre=9, ssl=1, ysl=3, t0=29, ywait=7, wsl=1, ymode=0, ty=40, tpos=1, tfl='', retouch=0, xo=2, lp=1, cw=248, front=0, tlb=0, probe=0, late=0, rb_o=0, rb_y=0, padwg=-1, padat='', tr=47, gap=0, pt=0, pt0=15, ptn=7, noc=0, nowd=0, dwarm=0, outfl='nt', force=0, bulk=0):
    e = Em2()
    info = {}
    wslot, wissue, wdslot, wlast = plan_slots()
    def stores(ins_list, tag):
        for x in ins_list: e.vmem(x + " sc1", tag)
    def dual(ins_list, tag, on=True):
        if not on: return stores(ins_list, tag)
        l = e.newlabel("DS")
        e(f"s_cmp_eq_u32 s97, 2\ns_cbranch_scc1 {l}_l")
        for x in ins_list: e(x + " sc1")
        e(f"s_branch {l}_e")
        e.label(l + "_l")
        for x in ins_list: e.vmem(x, tag)
        e.label(l + "_e")
    def wd_setup(va, sr):
        e(f"v_lshrrev_b32 v{va}, 3, v0\nv_mul_u32_u24 v{va}, 0x380, v{va}\nv_bfe_u32 v{va+1}, v0, 4, 1\nv_lshlrev_b32 v{va+1}, 2, v{va+1}")
        e(f"v_and_b32 v1, 7, v0\nv_xor_b32 v1, v1, v{va+1}\nv_lshl_add_u32 v{va}, v1, 4, v{va}\nv_add_u32 v{va+1}, {8*896-1024}, v{va}")
        srd(e, sr, 56, 1792 * 896)
        e("s_lshl_b32 s98, s99, 1")
        e(f"s_mul_i32 s88, s4, {32*896}\ns_lshl_b32 s82, s91, 7\ns_add_u32 s88, s88, s82\ns_mul_i32 s82, s85, {7*UNIT}\ns_add_u32 s88, s88, s82")
        e(f"s_mul_i32 s64, s98, {UNIT}\ns_add_u32 s64, s64, s88\ns_add_u32 s88, s88, {7*UNIT}")
        for u in range(1, 7):
            e(f"s_add_u32 s{64+u}, s{63+u}, {UNIT}\ns_cmp_ge_u32 s{64+u}, s88\ns_cselect_b32 s82, {7*UNIT}, 0\ns_sub_u32 s{64+u}, s{64+u}, s82")
    def wd_dma(k, va, sr):
        kind, off = wdslot[k][0]
        e(f"s_add_u32 m0, s{89 if kind == 'c' else 79}, {off}\ns_add_u32 s82, s{64+(k>>1)}, {(k&1)*16*896}")
        e.vmem(f"buffer_load_dwordx4 v{va}, s[{sr}:{sr+3}], s82 offen lds", ("wd", k))
        e.vmem(f"buffer_load_dwordx4 v{va+1}, s[{sr}:{sr+3}], s82 offen offset:1024 lds", ("wd", k))
    def wd_half(k, hf):
        kind, off = wdslot[k][0]
        e(f"s_add_u32 m0, s{89 if kind == 'c' else 79}, {off}\ns_add_u32 s82, s{64+(k>>1)}, {(k&1)*16*896}")
        e.vmem(f"buffer_load_dwordx4 v{2+hf}, s[12:15], s82 offen" + (" offset:1024" if hf else "") + " lds", ("wd", k))
    def lds_wait(addr, off, cond, tmp, sleep=1):
        def body(): e(f"ds_read_b32 v{tmp}, v{addr} offset:{off}\ns_waitcnt lgkmcnt(0)\nv_readfirstlane_b32 s82, v{tmp}")
        spin(e, body, cond, sleep=sleep)
        e.lg = []
    if stamps: e(f"s_memrealtime s[96:97]\n{TIMER} s[80:81]")
    elif pad: e("s_memrealtime s[96:97]")
    e("s_load_dwordx16 s[32:47], s[0:1], 0")
    e("s_load_dwordx16 s[48:63], s[0:1], 64")
    e("v_readfirstlane_b32 s3, v0\ns_cmpk_lt_u32 s2, 224\ns_cbranch_scc1 K_MAIN")
    e(f"s_cmpk_lt_u32 s2, {cw}\ns_cbranch_scc1 K_SPARE\ns_getpc_b64 s[28:29]")
    e.label("K_PC")
    e("v_lshlrev_b32 v7, 7, v0\nv_min_u32 v7, ALL_END-K_PC-4, v7\nglobal_load_dword v83, v7, s[28:29]\ns_branch K_SPARE")
    e.label("K_MAIN")
    e("v_and_b32 v0, 63, v0\ns_lshr_b32 s3, s3, 6\ns_and_b32 s4, s3, 3\ns_and_b32 s5, s2, 3\ns_lshl_b32 s5, s5, 2\ns_bfe_u32 s99, s2, 0x20003\ns_add_u32 s5, s5, s99")
    e("s_lshr_b32 s91, s2, 5\nv_lshrrev_b32 v21, 5, v0\ns_lshl_b32 s89, s4, 12")
    def rot_off(d):
        if xo == 0:
            e(f"s_mul_i32 s{d}, s99, {ra}")
        else:
            tab = sum((((ra*(rb & 3) + xo*(rb >> 2)) % 7) << (4*rb)) for rb in range(16))
            e(f"s_mov_b32 s12, {tab & 0xffffffff}\ns_mov_b32 s13, {tab >> 32}\ns_lshl_b32 s{d}, s5, 2\ns_lshr_b64 s[12:13], s[12:13], s{d}\ns_and_b32 s{d}, s12, 7")
    def common2():
        e(f"s_bfe_u32 s85, s2, 0x10002\ns_mul_i32 s6, s85, 7\ns_add_u32 s6, s6, s91\ns_lshl_b32 s79, s4, 11\ns_add_u32 s79, s79, {RING}")
    def common3():
        e("v_and_b32 v20, 31, v0\nv_bfe_u32 v22, v0, 1, 3\nv_xor_b32 v22, v22, v21\nv_lshlrev_b32 v20, 7, v20")
    e("s_cmp_ge_u32 s3, 4")
    e("s_cbranch_scc1 K_S")

    st = Stamper(stamps, 127)
    e("v_bfe_u32 v6, v0, 3, 2\nv_and_b32 v9, 7, v0\nv_lshrrev_b32 v7, 4, v0\nv_xor_b32 v9, v9, v7\nv_lshlrev_b32 v9, 4, v9\nv_xor_b32 v7, 64, v9")
    e("v_lshl_add_u32 v5, v21, 4, v6\ns_movk_i32 s30, 0x380\nv_mad_u32_u24 v1, v5, s30, v9\nv_mad_u32_u24 v2, v5, s30, v7\ns_movk_i32 s31, 2560\nv_add_u32 v2, s31, v2")
    rot_off(10)
    e("s_add_u32 s7, s91, s10\ns_cmp_ge_u32 s7, 7\ns_cselect_b32 s10, 7, 0\ns_sub_u32 s7, s7, s10\ns_lshl_b32 s64, s7, 7")
    e("s_lshl_b32 s28, s5, 2\ns_add_u32 s28, s28, s4\ns_mulk_i32 s28, 28672\ns_lshl_b32 s31, s31, 1\nv_add_u32 v3, s31, v1\nv_add_u32 v4, s31, v2")
    e(f"s_mov_b32 s10, {2048*896}\ns_mov_b32 s11, 0x20000\ns_mov_b32 m0, s89\ns_add_u32 s83, s28, s64")
    e("s_waitcnt lgkmcnt(0)")
    st(e, "karg")
    e("s_mov_b32 s8, s32\ns_and_b32 s9, s33, 0xffff")
    for ii in range(4):
        e.vmem(f"buffer_load_dwordx4 v{1+ii}, s[8:11], s83 offen" + (f" offset:{ii*1024}" if ii else "") + " lds", ("x", 0))
    common2()
    e(f"v_lshl_add_u32 v6, v21, 3, v6\nv_mad_u32_u24 v5, v6, s30, v9\nv_mad_u32_u24 v6, v6, s30, v7\nv_add_u32 v6, {4*896-1024}, v6")
    e("s_lshl_b32 s29, s6, 1\ns_and_b32 s30, s4, 1\ns_add_u32 s29, s29, s30\ns_mulk_i32 s29, 14336")
    e(f"s_cmp_lt_u32 s4, 2\ns_cselect_b32 s12, s38, s40\ns_cselect_b32 s13, s39, s41\ns_and_b32 s13, s13, 0xffff\ns_mov_b32 s14, {448*896}\ns_mov_b32 s15, 0x20000")
    e("s_mov_b32 m0, s79\ns_add_u32 s83, s29, s64")
    e.vmem("buffer_load_dwordx4 v5, s[12:15], s83 offen lds", ("x", 0))
    e.vmem("buffer_load_dwordx4 v6, s[12:15], s83 offen offset:1024 lds", ("x", 0))
    e(f"s_setprio {fprio}")
    for c in range(1, 7):
        e(f"s_add_u32 s{64+c}, s{63+c}, 128\ns_cmp_ge_u32 s{64+c}, 896\ns_cselect_b32 s{64+c}, 0, s{64+c}")
    def xb_burst(c):
        e(f"s_add_u32 m0, s89, {c*CH}\ns_add_u32 s83, s28, s{64+c}")
        for ii in range(4):
            e.vmem(f"buffer_load_dwordx4 v{1+ii}, s[8:11], s83 offen" + (f" offset:{ii*1024}" if ii else "") + " lds", ("x", c))
        e(f"s_add_u32 m0, s79, {(c % NR)*8192}\ns_add_u32 s83, s29, s{64+c}")
        e.vmem("buffer_load_dwordx4 v5, s[12:15], s83 offen lds", ("x", c))
        e.vmem("buffer_load_dwordx4 v6, s[12:15], s83 offen offset:1024 lds", ("x", c))
    if D0 > 1: xb_burst(1)
    common3()
    if probe:
        st(e, "iss0")
        e("s_waitcnt vmcnt(5)")
        st(e, "land1")
        e("s_waitcnt vmcnt(0)")
        st(e, "land0")
    srd(e, 20, 62, WS_END)
    e(f"v_mov_b32 v120, 0\ns_mov_b32 s82, {WS_EP}")
    def ep_load():
        e(f"s_mov_b32 s82, {WS_EP}\ns_mov_b64 exec, 1")
        e.vmem("buffer_load_dword v120, v120, s[20:23], s82 offen sc1", "ep")
        e("s_mov_b64 exec, -1")
    if not late: ep_load()
    e(f"v_mov_b32 v124, 0\nv_mov_b32 v125, 0\ns_lshl_b32 s31, s4, 9\ns_add_u32 s31, s31, {SUB}\nv_lshl_add_u32 v8, v0, 3, s31")
    e.lds("ds_write_b64 v8, v[124:125]")
    e(f"v_lshlrev_b32 v8, 2, v0\nv_add_u32 v8, {FLG}, v8")
    e.lds("ds_write_b32 v8, v124")
    for jj in range(4):
        e(f"v_xor_b32 v{10+jj}, {2*jj}, v22\nv_lshl_add_u32 v{10+jj}, v{10+jj}, 4, v20\nv_add_u32 v{14+jj}, 0x10000, v{10+jj}")
    srd(e, 16, 52, 448 * 3584)
    srd(e, 24, 54, 448 * 3584)
    e("s_lshl_b32 s31, s6, 8\ns_lshl_b32 s82, s4, 6\ns_add_u32 s31, s31, s82")
    for c in range(7): e(f"s_mul_i32 s{72+c}, s{64+c}, 1792\ns_add_u32 s{72+c}, s{72+c}, s31")
    e("v_lshrrev_b32 v7, 2, v0\nv_mul_u32_u24 v7, 0xe00, v7\nv_and_b32 v8, 3, v0\nv_lshl_add_u32 v7, v8, 4, v7")
    e("v_bfe_u32 v8, v0, 2, 2\nv_lshl_add_u32 v8, v21, 3, v8\nv_lshlrev_b32 v9, 6, v8")
    e("v_bfe_u32 v8, v0, 4, 1\nv_lshl_add_u32 v9, v8, 5, v9\nv_and_b32 v8, 3, v0\nv_lshl_add_u32 v9, v8, 3, v9\nv_add_u32 v125, s89, v9\nv_add_u32 v9, s79, v9")
    e("v_lshlrev_b32 v18, 4, v0")
    e(f"s_lshl_b32 s31, s4, 2\ns_add_u32 s31, s31, {FLG}\nv_mov_b32 v19, s31")
    e(f"s_lshl_b32 s31, s4, 8\ns_add_u32 s31, s31, {CSW}\nv_lshl_add_u32 v122, v21, 4, s31")
    tau_of_lane(e, 123, 8)
    e(f"v_lshlrev_b32 v123, 2, v123\nv_add_u32 v123, {STAT}, v123\nv_mov_b32 v8, {FLG}")
    e(f"s_lshl_b32 s92, s5, 2\ns_add_u32 s92, s92, s4\ns_mul_i32 s92, s92, {A_W}\ns_add_u32 s92, s92, {WS_AO}\ns_lshl_b32 s31, s6, 13\ns_add_u32 s86, s92, s31\ns_add_u32 s87, s86, 4096")
    if probe: st(e, "setup")
    for c in range(2, D0): xb_burst(c)
    ptl = list(range(64)) if pt else []
    def pretouch(n):
        for _ in range(n):
            if ptl: e(f"s_load_dword s100, s[46:47], {ptl.pop(0) * 128}")
    if pt:
        e.lg0()
        e("s_add_u32 s46, s62, s86\ns_addc_u32 s47, s63, 0")
        pretouch(pt0)
    def w_issue(n, mt):
        c, jj = n >> 2, n & 3
        kind, off = wslot[n]
        e(f"s_add_u32 m0, s{89 if kind == 'c' else 79}, {off + mt*1024}\ns_add_u32 s83, s{72+c}, {16*jj*3584}")
        e.vmem(f"buffer_load_dwordx4 v7, s[{16+8*mt}:{19+8*mt}], s83 offen lds", ("w", n))
    FS = [24, 48]
    def reads(n):
        fs = FS[n & 1]; c, jj = n >> 2, n & 3
        xb = (10 + jj) if c < 4 else (14 + jj)
        xo = (c & 3) * CH
        kind, wo = wslot[n]
        wb = 125 if kind == "c" else 9
        X = lambda rt: (f"ds_read_b128 v[{fs+4*rt}:{fs+4*rt+3}], v{xb} offset:{xo + rt*4096}", ("X", n, rt))
        Wr = lambda mt, u2: (f"ds_read_b64_tr_b16 v[{fs+16+4*mt+2*u2}:{fs+17+4*mt+2*u2}], v{wb} offset:{wo + mt*1024 + u2*256}", ("W", n))
        if front: return [Wr(0, 0), X(0), Wr(0, 1), Wr(1, 0), Wr(1, 1), X(1), X(2), X(3)]
        return [Wr(0, 0), Wr(0, 1), X(0), Wr(1, 0), Wr(1, 1), X(1), X(2), X(3)]
    for sg in range(8):
        tags = {("x", sg)}
        eps = 7 if late else 1
        if sg == eps: tags.add("ep")
        e.vm_wait(tags)
        if sg == 0 and not pt: e.lg0()
        if sg == 7:
            e.vm_wait({("w", 0)})
            for s, t in reads(0): e.lds(s, t)
        if not pt or sg == 7: st(e, f"b{sg}")
        e("s_barrier")
        if sg + D0 < 7: xb_burst(sg + D0)
        if 3 <= sg < 7:
            w_issue(sg - 3, 0); w_issue(sg - 3, 1)
        if late and sg == 4: ep_load()
        if sg == eps: e("v_readfirstlane_b32 s84, v120\ns_add_u32 s84, s84, 1\ns_max_u32 s84, s84, 1")
        if sg < 7: pretouch(ptn)
        if sg == 5: wd_setup(2, 12)
        if sg == 6:
            e(f"s_bitcmp1_b32 s4, 1\ns_cselect_b32 s8, s44, s42\ns_cselect_b32 s9, s45, s43\ns_and_b32 s9, s9, 0xffff\ns_mov_b32 s10, {448*896}")
            e(f"s_mul_i32 s29, s91, {64*896}\ns_and_b32 s30, s4, 1\ns_lshl_b32 s28, s85, 2\ns_add_u32 s94, s28, 2\ns_add_u32 s28, s28, s30\ns_cmp_eq_u32 s30, 0\ns_cselect_b32 s94, s94, 3")
            e("s_lshl_b32 s28, s28, 7\ns_add_u32 s28, s28, s29\ns_lshl_b32 s94, s94, 7\ns_add_u32 s94, s94, s29")
            e("v_lshrrev_b32 v4, 3, v0\nv_mul_u32_u24 v4, 0x380, v4\nv_and_b32 v5, 7, v0\nv_lshrrev_b32 v6, 4, v0\nv_xor_b32 v5, v5, v6\nv_lshlrev_b32 v5, 4, v5")
            e(f"v_xor_b32 v6, 64, v5\nv_add_u32 v5, v4, v5\nv_add_u32 v6, v4, v6\nv_add_u32 v6, {8*896-1024}, v6")
    assert not ptl
    w_issue(4, 0); w_issue(4, 1)
    CS = 72; T = 104
    cs_rd = [("ds_read_b32 v121, v19 offset:16", "cs")] + [(f"ds_read_b32 v{20+rt}, v123 offset:{rt*128}", "cs") for rt in range(4)]
    cs_rd += [(f"ds_read_b128 v[{CS+16*mt+4*q}:{CS+16*mt+4*q+3}], v122 offset:{mt*128 + q*32}", "cs") for mt in range(2) for q in range(4)]
    p2 = []
    def p_(s): p2.extend(s.split("\n"))
    p_("v_bfe_u32 v112, v0, 2, 2\nv_lshrrev_b32 v113, 5, v0\nv_lshl_add_u32 v113, v113, 2, v112\nv_lshlrev_b32 v113, 7, v113")
    p_("s_lshr_b32 s31, s4, 1\nv_lshrrev_b32 v112, 1, v112\nv_xor_b32 v112, s31, v112\nv_lshl_add_u32 v113, v112, 6, v113")
    p_("v_bfe_u32 v112, v0, 4, 1\nv_lshl_add_u32 v113, v112, 5, v113\nv_and_b32 v112, 3, v0\nv_lshl_add_u32 v113, v112, 3, v113\nv_xor_b32 v112, 64, v113")
    p_(f"s_lshl_b32 s30, s31, 13\ns_lshl_b32 s31, s31, 12\ns_add_u32 s31, s31, {RING}")
    p_("v_add_u32 v108, s30, v113\nv_add_u32 v109, s30, v112\nv_add_u32 v110, s31, v113\nv_add_u32 v111, s31, v112\nv_add_u32 v112, 0x10000, v108\nv_add_u32 v113, 0x10000, v109")
    p_(f"s_lshl_b32 s93, s5, 1\ns_add_u32 s93, s93, s85\ns_lshl_b32 s93, s93, 10\ns_add_u32 s93, s93, {WS_FO}")
    p_(f"s_and_b32 s31, s4, 1\ns_mul_i32 s31, s31, {A_W}\ns_sub_u32 s92, s92, s31")
    p_(f"s_mul_i32 s31, s85, {7*8192}\ns_add_u32 s92, s92, s31\ns_xor_b32 s31, s85, 1\ns_lshl_b32 s31, s31, 11\ns_add_u32 s92, s92, s31")
    p_(f"s_lshl_b32 s90, s98, 13\ns_add_u32 s90, s90, s92\ns_add_u32 s92, s92, {7*8192}\ns_add_u32 s71, s90, {A_W}")
    p_("s_lshl_b32 s29, s85, 6\ns_and_b32 s31, s4, 1\ns_lshl_b32 s31, s31, 5\ns_add_u32 s29, s29, s31\ns_lshl_b32 s30, s5, 7\ns_add_u32 s30, s30, s29")
    p_(f"v_lshlrev_b32 v117, 4, v21\nv_add_u32 v114, s30, v117\ns_lshl_b32 s29, s29, 2\ns_add_u32 s29, s29, {STAT}\nv_lshl_add_u32 v117, v117, 2, s29")
    p_("s_lshl_b32 s29, s91, 6\ns_lshr_b32 s31, s4, 1\ns_lshl_b32 s31, s31, 5\ns_add_u32 s29, s29, s31\nv_and_b32 v115, 31, v0\nv_add_u32 v115, s29, v115")
    p_("v_mul_u32_u24 v114, 0x380, v114\nv_lshlrev_b32 v115, 1, v115\nv_add_u32 v114, v114, v115\nv_lshlrev_b32 v116, 1, v114")
    for q in range(1, 8): p_(f"s_movk_i32 s{32+q}, {q*3584}")
    p_(f"s_mul_i32 s40, s5, 7\ns_add_u32 s40, s40, s91\ns_lshl_b32 s40, s40, 1\ns_add_u32 s40, s40, s85\ns_lshl_b32 s40, s40, 15\ns_add_u32 s40, s40, s89\ns_xor_b32 s41, s40, 0x8000\ns_add_u32 s40, s40, {WS_PX + 16384}\ns_add_u32 s41, s41, {WS_PX + 16384}")
    slow = []; slow2 = []; slow3 = []
    for n in range(28):
        fs = FS[n & 1]
        rd = reads(n + 1) if n < 27 else list(cs_rd)
        if n < 27: e.vm_wait({("w", n + 1)})
        dq = [("w", m, mt) for m in wissue[n] for mt in range(2)]
        for k in range(9):
            if wdslot[k][1] - 1 == n: dq += [("d", k, 0), ("d", k, 1)]
        if nowd: dq = [x for x in dq if x[0] != "d"]
        if 13 <= n <= 26 and not noc: dq.append(("c", n - 13, 0))
        if n == 27 and not noc: dq += [("c", 14, 0), ("c", 15, 0)]
        gaps = {0: (), 1: (4,), 2: (2, 5), 3: (1, 4, 7), 4: (1, 3, 5, 7)}[len(dq)]
        if front: gaps = {0: (), 1: (5,), 2: (4, 6), 3: (3, 5, 7), 4: (2, 4, 6, 7)}[len(dq)] if front == 1 else gaps
        for i in range(8):
            rt, mt = i >> 1, i & 1
            if i == 0: e.lg_wait({("W", n), ("X", n, 0)})
            elif mt == 0: e.lg_wait({("X", n, rt)})
            e(mfma(128 + 64*mt + 16*rt, fs + 16 + 4*mt, fs + 4*rt, n == 0))
            k = 1 if (n < 27 and not front) else 2
            for s, t in rd[:k]: e.lds(s, t)
            rd = rd[k:]
            if n in (5, 9, 13, 17, 21, 25) and i == 0:
                l = e.newlabel("PG")
                e(f"v_readfirstlane_b32 s82, v104\ns_cmp_lt_u32 s82, {n >> 2}\ns_cbranch_scc1 {l}")
                e.label(l + "_r")
                slow.append((l, n >> 2))
            if i in gaps and dq:
                kd_, a1, a2 = dq.pop(0)
                if kd_ == "w": w_issue(a1, a2)
                elif kd_ == "d": wd_half(a1, a2)
                else:
                    e(f"s_add_u32 m0, s89, {C0 + (a1 >> 2)*CH + (a1 & 2)*1024}\ns_add_u32 s83, s{28 if a1 < 8 else 94}, {((a1 & 7) >> 1)*16*896}")
                    e.vmem(f"buffer_load_dwordx4 v{5 + (a1 & 1)}, s[8:11], s83 offen" + (" offset:1024" if a1 & 1 else "") + " lds", ("c", a1 >> 3))
            if i == 6 and (n & 3) == 3:
                if n == 23: e.vm_wait({("c", 0)})
                e(f"v_mov_b32 v126, {(n >> 2) + 1}")
                e.lds("ds_write_b32 v19, v126")
            if n in (4, 8, 12, 16, 20, 24):
                if i == 2: e.lds("ds_read_b128 v[104:107], v8", "pg")
                if i == 6:
                    e.lg_wait({"pg"})
                    e("v_min_u32 v104, v104, v105\nv_min3_u32 v104, v104, v106, v107")
            if 1 <= n < 27 and i not in gaps and i != 0 and len(gaps) < 4:
                if p2: e(p2.pop(0))
        assert not rd and not dq
        if (fine and (n & 3) == 3) or n == 27: st(e, f"k{n}")
    assert not p2
    e.lg0()
    e("v_readfirstlane_b32 s97, v121\ns_cmp_lg_u32 s97, 0\ns_cbranch_scc1 K_csok")
    def body():
        for s, t in cs_rd: e(s)
        e("s_waitcnt lgkmcnt(0)\nv_readfirstlane_b32 s97, v121")
    spin(e, body, "s_cmp_lg_u32 s97, 0")
    e.label("K_csok")
    st(e, "cs")
    for rt in range(4):
        G, U = 128 + 16*rt, 192 + 16*rt
        mp = 20 + (rt & 2)
        sel = ("op_sel:[0,1,0] op_sel_hi:[1,1,1]" if rt & 1 else "op_sel_hi:[1,0,1]") + " neg_lo:[1,0,0] neg_hi:[1,0,0]"
        for h in range(2):
            g = 2*rt + h
            tt = 24 + 4 * g
            rs = range(8*h, 8*h + 8, 2)
            if g == 7:
                e.lds("ds_read_b128 v[104:107], v8", "pg")
                e.lds("ds_read_b32 v121, v8 offset:88", "pg")
            for r in rs:
                e(f"v_pk_fma_f32 v[{G+r}:{G+r+1}], v[{CS+r}:{CS+r+1}], v[{mp}:{mp+1}], v[{G+r}:{G+r+1}] {sel}")
                e(f"v_pk_fma_f32 v[{U+r}:{U+r+1}], v[{CS+16+r}:{CS+17+r}], v[{mp}:{mp+1}], v[{U+r}:{U+r+1}] {sel}")
            for r in rs: e(f"v_max_f32 v{G+r}, 0, v{G+r}\nv_max_f32 v{G+r+1}, 0, v{G+r+1}")
            for r in rs: e(f"v_pk_mul_f32 v[{G+r}:{G+r+1}], v[{G+r}:{G+r+1}], v[{U+r}:{U+r+1}]")
            for r in rs: e(f"v_cvt_pk_bf16_f32 v{tt + ((r - 8*h) >> 1)}, v{G+r}, v{G+r+1}")
            dual([f"buffer_store_dwordx4 v[{tt}:{tt+3}], v18, s[20:23], s{86 + h} offen offset:{rt*1024}"], "hh", bulk & 1)
            if g == 7:
                e.vm_wait({("c", 1)})
                e.lds("ds_write_b32 v19, v126 offset:32")
                e.lg_wait({"pg"})
                l = e.newlabel("PG")
                e(f"v_min_u32 v104, v104, v105\nv_min3_u32 v104, v104, v106, v107\ns_nop 0\nv_readfirstlane_b32 s82, v104\ns_cmp_lt_u32 s82, 7\ns_cbranch_scc1 {l}")
                e.label(l + "_r")
                slow.append((l, 7))
    l = e.newlabel("CP")
    e(f"v_readfirstlane_b32 s82, v121\ns_cmp_lt_u32 s82, 4\ns_cbranch_scc1 {l}")
    e.label(l + "_r")
    slow2.append((l, 8, 88, "s_cmp_ge_u32 s82, 4"))
    st(e, "epi")
    e("s_setprio 0")
    XR, MR, RR = 56, 72, 88
    for q in range(4):
        e.lds(f"ds_read_b128 v[{RR+4*q}:{RR+4*q+3}], v117 offset:{512+16*q}")
    e("s_and_b32 s31, s4, 1\ns_lshl_b32 s31, s31, 10\nv_add_u32 v10, s31, v18\nv_add_u32 v11, 0x1000, v10")
    e("s_lshl_b32 s31, s91, 7\ns_lshl_b32 s30, s4, 2\ns_add_u32 s31, s31, s30\nv_mov_b32 v16, s31\nv_mov_b32 v17, s84")
    e("v_and_b32 v14, 7, v0\nv_min_u32 v14, 6, v14\nv_lshlrev_b32 v14, 7, v14\nv_bfe_u32 v15, v0, 3, 1\nv_lshl_add_u32 v14, v15, 2, v14\ns_and_b32 s30, s30, 8\nv_add_u32 v14, s30, v14")
    e(f"s_add_u32 s31, s89, {SC}\nv_add_u32 v4, s31, v18\nv_xor_b32 v5, 0x2000, v4\nv_xor_b32 v6, 8, v19\nv_xor_b32 v9, 4, v19\nv_add_u32 v7, {6*CH + 2048 - SC}, v4")
    srd(e, 16, 58, 2048 * 1792)
    e.lg0()
    for r in range(16): e(f"v_mul_f32 v{RR+r}, v{RR+r}, v{RR+r}")
    e.vm0()
    e("s_mov_b64 exec, 1")
    dual(["buffer_store_dword v17, v16, s[20:23], s93 offen"], "fl")
    e("s_mov_b64 exec, -1")
    st(e, "hhflag")
    if rb_o:
        for g in range(8): e(f"buffer_load_dwordx4 v[{192+4*g}:{195+4*g}], v18, s[20:23], s{86 + (g >> 2)} offen offset:{(g & 3)*1024} sc1")
    for k in range(9, 14): wd_dma(k, 2, 12)
    e("s_mov_b64 exec, 0xffff")
    def body():
        e("buffer_load_dword v17, v14, s[20:23], s93 offen sc1\ns_waitcnt vmcnt(0)\nv_cmp_eq_u32 vcc, s84, v17\ns_nop 1")
    spin(e, body, "s_cmp_eq_u64 vcc, exec", sleep=2)
    e("s_mov_b64 exec, -1")
    e.vm = []
    e.lds("ds_write_b32 v19, v126 offset:112")
    st(e, "hhseen")
    NT = 56
    def areg(t): return 192 + 4*(t % NA)
    def a_issue(t):
        sub = t & 3
        if sub == 0 and t > 0:
            e(f"s_add_u32 s90, s90, 8192\ns_cmp_ge_u32 s90, s92\ns_cselect_b32 s82, {7*8192}, 0\ns_sub_u32 s90, s90, s82")
            if t == 28: e("s_xor_b32 s90, s90, 0x800\ns_xor_b32 s92, s92, 0x800")
            e(f"s_add_u32 s71, s90, {A_W}")
        r = areg(t)
        e.vmem(f"buffer_load_dwordx4 v[{r}:{r+3}], v{10 + (sub & 1)}, s[20:23], s{71 if sub >> 1 else 90} offen sc1", ("A", t))
    def breg(t): return 24 + 8*(t % 4)
    def b_list(t):
        u = (t % 28) >> 2; sub = t & 3
        kind, off = wdslot[2*u + (sub & 1)][0]
        if kind == "r": bs = (110, 111); off += (sub >> 1) * 2048
        else:
            off += (sub >> 1) * 4096
            bs = (108, 109)
            if off >= 4*CH: bs = (112, 113); off -= 65536
        r = breg(t)
        return [(f"ds_read_b64_tr_b16 v[{r+4*b+2*u2}:{r+4*b+2*u2+1}], v{bs[b]} offset:{off + u2*1024}", ("B", t)) for b in range(2) for u2 in range(2)]
    for t in range(NA - 1): a_issue(t)
    for t in range(3):
        for s, tg in b_list(t): e.lds(s, tg)
    FO, OW = 128, 160
    side = []
    PK = XR
    def S_(f): side.append(f)
    def both_wait(t):
        nv = e.vm_need({("A", t)})
        idx = [i for i, x in enumerate(e.lg) if x == ("B", t)]
        parts = []
        if nv is not None:
            parts.append(f"vmcnt({nv})"); e.vm = e.vm[len(e.vm) - nv:] if nv else []
        if idx:
            nl = min(15, len(e.lg) - 1 - idx[-1]); parts.append(f"lgkmcnt({nl})"); e.lg = e.lg[len(e.lg) - nl:] if nl else []
        if parts: e("s_waitcnt " + " ".join(parts))
    RV = 224
    YV = FO
    def recv_one(g, dst, sb): e(f"buffer_load_dwordx4 v[{dst+4*g}:{dst+4*g+3}], v18, s[20:23], s{sb} offen offset:{g*1024} sc1")
    e("s_sub_u32 s42, s40, 16384")
    nop = lambda: None
    for t in range(NT):
        acc = FO if t < 28 else OW
        def mkchk(tag, pfx, cond_bad, addr, off, cond_ok):
            def chk():
                e.lg_wait({tag})
                l = e.newlabel(pfx)
                e(f"v_readfirstlane_b32 s82, v121\n{cond_bad}\ns_cbranch_scc1 {l}")
                e.label(l + "_r")
                slow2.append((l, addr, off, cond_ok))
            return chk
        if t == 10: S_(lambda: e.lds("ds_read_b32 v121, v9 offset:112", "wl"))
        if t == 13: S_(mkchk("wl", "WL", "s_cmp_eq_u32 s82, 0", 9, 112, "s_cmp_lg_u32 s82, 0"))
        if t == 24: S_(lambda: e.lds("ds_read_b32 v121, v8 offset:84", "yx"))
        if t == 27:
            def chk():
                e.lg_wait({"yx"})
                l = e.newlabel("YX")
                e(f"v_readfirstlane_b32 s82, v121\ns_cmp_lt_u32 s82, 4\ns_cbranch_scc1 {l}")
                e.label(l + "_r")
                slow2.append((l, 8, 84, "s_cmp_ge_u32 s82, 4"))
            S_(chk)
        if t == t0:
            S_(nop)
            for g in range(0, 4, 2):
                def wr(g=g):
                    for gg in (g, g + 1): e.lds(f"ds_write_b128 v4, v[{FO+16+4*gg}:{FO+19+4*gg}] offset:{CH + gg*1024}")
                    if g == 2: e.lds("ds_write_b32 v19, v126 offset:48")
                S_(wr)
        if t == t0 + 3:
            def rdx():
                e.lds("ds_read_b32 v121, v6 offset:48", "ex")
                for g in range(4): e.lds(f"ds_read_b128 v[{FO+16+4*g}:{FO+19+4*g}], v5 offset:{CH + g*1024}", "ex")
            S_(rdx)
        if t == t0 + 5:
            def chk2():
                e.lg_wait({"ex"})
                l = e.newlabel("PX")
                e(f"v_readfirstlane_b32 s82, v121\ns_cmp_eq_u32 s82, 0\ns_cbranch_scc1 {l}")
                e.label(l + "_r")
                slow3.append(l)
                e.lds("ds_write_b32 v19, v126 offset:64")
            S_(chk2)
            for g in range(4):
                S_(lambda g=g: [e(f"v_add_f32 v{FO+r}, v{FO+r}, v{FO+16+r}") for r in range(4*g, 4*g + 4)])
                if g >= 1:
                    def snd(q=g-1):
                        for j in range(3):
                            p = 3*q + j
                            e(f"v_cvt_pk_bf16_f32 v{PK+4*q+j}, v{FO+2*p}, v{FO+2*p+1}" if p < 8 else f"v_mov_b32 v{PK+4*q+j}, s84")
                        e(f"v_mov_b32 v{PK+4*q+3}, s84")
                        stores([f"buffer_store_dwordx4 v[{PK+4*q}:{PK+4*q+3}], v18, s[20:23], s41 offen offset:{q*1024}"], "px")
                    S_(snd)
                for _ in range(gap): S_(nop)
        if t == 40:
            S_(lambda: e.lds("ds_read_b32 v121, v19 offset:128", "yd"))
            S_(mkchk("yd", "YD", "s_cmp_eq_u32 s82, 0", 19, 128, "s_cmp_lg_u32 s82, 0"))
            S_(lambda: [e.lds(f"ds_read_b128 v[{MR+4*g}:{MR+3+4*g}], v4 offset:{g*1024}", "sx") for g in range(4)])
            S_(lambda: [e.lds(f"ds_read_b128 v[{104+4*g if g == 0 else 12}:{107+4*g if g == 0 else 15}], v7 offset:{g*1024}", "sx") for g in range(2)])
            S_(lambda: e.lds("ds_read_b32 v121, v6 offset:64", "sx"))
            S_(nop)
            for g in range(4):
                def ux(g=g):
                    if g == 0: e.lg_wait({"sx"})
                    for r in (2*g, 2*g + 1):
                        src = 104 + r if r < 4 else 12 + r - 4
                        e(f"v_lshlrev_b32 v{XR+2*r}, 16, v{src}\nv_and_b32 v{XR+2*r+1}, 0xffff0000, v{src}")
                S_(ux)
        if t == ty: S_(lambda: [(recv_one(gg, YV, 42), e.vm.append("ry")) for gg in range(3)])
        if t == tr:
            S_(lambda: [(recv_one(gg, RV, 40), e.vm.append("rv")) for gg in range(3)])
        both_wait(t)
        bl = b_list(t + 3) if t + 3 < NT else []
        for b in range(2):
            e(mfma(acc + 16*b, areg(t), breg(t) + 4*b, t % 28 == 0))
            if b == 0 and t + NA - 1 < NT: a_issue(t + NA - 1)
            for s, tg in bl[2*b:2*b + 2]: e.lds(s, tg)
            if side: side.pop(0)()
        if t == 27: st(e, "ofor")
        if fine > 1 and t in (0, 6, 13, 20, 34, 39, 44, 50): st(e, f"t{t}")
    assert not side
    def recv_check(dst):
        e(f"v_min3_u32 v1, s84, v{dst+3}, v{dst+7}\nv_max3_u32 v2, s84, v{dst+3}, v{dst+7}\nv_min_u32 v1, v1, v{dst+11}\nv_max_u32 v2, v2, v{dst+11}")
        e("v_cmp_eq_u32 vcc, v1, v2\ns_nop 1")
    def recv_finish(dst, sb, tag):
        l = e.newlabel("RV")
        e.vm_wait({tag})
        recv_check(dst)
        e(f"s_cmp_eq_u64 vcc, -1\ns_cbranch_scc1 {l}")
        def body():
            for g in range(3): recv_one(g, dst, sb)
            e("s_waitcnt vmcnt(0)")
            recv_check(dst)
        spin(e, body, "s_cmp_eq_u64 vcc, -1", sleep=1)
        e.label(l)
        for p in range(8): e(f"v_lshlrev_b32 v{dst+16+2*p}, 16, v{dst+4*(p//3)+p%3}\nv_and_b32 v{dst+17+2*p}, 0xffff0000, v{dst+4*(p//3)+p%3}")
    e.lg0()
    st(e, "oloop")
    l = e.newlabel("RX")
    e(f"v_readfirstlane_b32 s82, v121\ns_cmp_eq_u32 s82, 0\ns_cbranch_scc1 {l}")
    e.label(l + "_r")
    slow2.append((l, 6, 64, "s_cmp_lg_u32 s82, 0"))
    e("s_mov_b32 s28, 0xbfb8aa3b\ns_mov_b32 s29, 0xbfb8aa3b\ns_nop 5")
    for g in range(4): e(f"ds_write_b128 v4, v[{OW+16+4*g}:{OW+19+4*g}] offset:{CH + g*1024}")
    pk = lambda op, d, a, b, x="": e(f"v_pk_{op}_f32 v[{d}:{d+1}], v[{a}:{a+1}], {b} {x}".rstrip())
    R2 = range(0, 16, 2)
    O, PB, EX = OW, OW + 16, 24
    recv_finish(YV, 42, "ry")
    for r in R2: pk("add", MR+r, MR+r, f"v[{YV+16+r}:{YV+17+r}]")
    e.lg0()
    e("s_barrier")
    st(e, "fbar")
    for g in range(4): e(f"ds_read_b128 v[{EX+4*g}:{EX+3+4*g}], v5 offset:{CH + g*1024}")
    recv_finish(RV, 40, "rv")
    st(e, "orecv")
    for r in R2: pk("add", O+r, O+r, f"v[{RV+16+r}:{RV+17+r}]")
    e("s_waitcnt lgkmcnt(0)")
    for r in R2: pk("add", O+r, O+r, f"v[{EX+r}:{EX+r+1}]")
    for r in R2: pk("mul", O+r, O+r, f"v[{RR+r}:{RR+r+1}]")
    for r in R2: pk("mul", PB+r, O+r, "s[28:29]")
    for r in range(16): e(f"v_exp_f32 v{PB+r}, v{PB+r}")
    for r in R2: pk("mul", O+r, O+r, f"v[{MR+r}:{MR+r+1}]")
    for r in R2: pk("add", PB+r, PB+r, "1.0", "op_sel_hi:[1,0]")
    for r in range(16): e(f"v_rcp_f32 v{PB+r}, v{PB+r}")
    for r in R2:
        e(f"v_pk_fma_f32 v[{PB+r}:{PB+r+1}], v[{PB+r}:{PB+r+1}], v[{O+r}:{O+r+1}], v[{XR+r}:{XR+r+1}]")
        for rr in (r, r + 1):
            so = "0" if rr < 2 else f"s{32 + (rr >> 1)}"
            off = (rr & 1) * 1792
            e(f"buffer_store_dword v{PB+rr}, v116, s[16:19], {so} offen" + (f" offset:{off}" if off else "") + " " + outfl)
    e("s_cmp_lg_u32 s5, 15\ns_cbranch_scc1 K_nobump\ns_or_b32 s28, s6, s4\ns_cmp_lg_u32 s28, 0\ns_cbranch_scc1 K_nobump")
    e(f"v_mov_b32 v8, 0\nv_mov_b32 v9, s84\ns_mov_b32 s28, {WS_EP}\ns_mov_b64 exec, 1")
    e("buffer_store_dword v9, v8, s[20:23], s28 offen sc1")
    e("s_mov_b64 exec, -1")
    e.label("K_nobump")
    if pad:
        if padwg >= 0: e(f"s_cmp_lg_u32 s2, {padwg}\ns_cbranch_scc1 K_END")
        e.label("K_pad")
        e(f"s_memrealtime s[28:29]\ns_waitcnt lgkmcnt(0)\ns_sub_u32 s28, s28, s{100 if PADAT else 96}\ns_cmp_lt_u32 s28, {pad}\ns_cbranch_scc1 K_pad")
    st.dump(e); info["F"] = st.names
    e("s_endpgm")
    for l in slow3:
        e.label(l)
        lds_wait(6, 48, "s_cmp_lg_u32 s82, 0", 121, sleep=0)
        for g in range(4): e(f"ds_read_b128 v[{FO+16+4*g}:{FO+19+4*g}], v5 offset:{CH + g*1024}")
        e(f"s_waitcnt lgkmcnt(0)\ns_branch {l}_r")
    for l, addr, off, cond in slow2:
        e.label(l)
        lds_wait(addr, off, cond, 121, sleep=0)
        e(f"s_branch {l}_r")
    for l, need in slow:
        e.label(l)
        def body():
            e("ds_read_b128 v[104:107], v8\ns_waitcnt lgkmcnt(0)\nv_min_u32 v104, v104, v105\nv_min3_u32 v104, v104, v106, v107\ns_nop 0\nv_readfirstlane_b32 s82, v104")
        spin(e, body, f"s_cmp_ge_u32 s82, {need}", sleep=0)
        e(f"s_branch {l}_r")

    e.vm = []; e.lg = []
    e.label("K_S")
    st = Stamper(stamps, 143)
    e(f"s_setprio {sprio}")
    common2(); common3()
    e("v_and_b32 v1, 19, v0\nv_bfe_u32 v2, v0, 2, 1\nv_lshl_add_u32 v1, v2, 3, v1\nv_bfe_u32 v2, v0, 3, 1\nv_lshl_add_u32 v1, v2, 2, v1\ns_lshl_b32 s30, s6, 5\nv_add_u32 v1, s30, v1\nv_lshlrev_b32 v1, 1, v1\nv_and_b32 v1, -4, v1")
    e("s_lshl_b32 s30, s91, 7\ns_and_b32 s31, s4, 2\ns_lshl_b32 s31, s31, 5\ns_add_u32 s30, s30, s31\nv_and_b32 v7, 30, v0\nv_lshl_add_u32 v7, v7, 1, s30\nv_mov_b32 v247, 0")
    e(f"v_add_u32 v23, s89, v20\nv_add_u32 v24, {RING}, v20")
    e("s_lshl_b32 s31, s4, 1\nv_xor_b32 v6, s31, v22")
    for jj in range(4):
        e(f"v_xor_b32 v5, {2*jj}, v6\nv_lshl_add_u32 v{10+jj}, v5, 4, v23\nv_add_u32 v{14+jj}, 0x10000, v{10+jj}\nv_lshl_add_u32 v{240+jj}, v5, 4, v24")
    e("s_mov_b32 s94, 0x3f803f80\nv_mov_b32 v34, 0\nv_mov_b32 v35, 0\nv_mov_b32 v36, 0\nv_mov_b32 v37, 0")
    e(f"s_mov_b32 s22, {WS_END}\ns_mov_b32 s23, 0x20000\ns_mov_b32 s82, {WS_EP}")
    e(f"v_mov_b32 v18, {FLG}\nv_mov_b32 v19, 1\ns_lshl_b32 s30, s4, 2\ns_add_u32 s30, s30, {FLG}\nv_mov_b32 v20, s30")
    e("s_waitcnt lgkmcnt(0)")
    e("s_mov_b32 s20, s62\ns_and_b32 s21, s63, 0xffff\nv_mov_b32 v138, v1\nv_mov_b32 v139, v7")
    def par_loads():
        e.vmem("global_load_dword v244, v138, s[34:35]", "par")
        e.vmem("global_load_dword v245, v138, s[36:37]", "par")
        e.vmem("global_load_dword v246, v138, s[46:47]", "par")
        e.vmem("global_load_dword v142, v139, s[48:49]", "par")
        e(f"s_mov_b32 s82, {WS_EP}\ns_mov_b64 exec, 1")
        e.vmem("buffer_load_dword v247, v247, s[20:23], s82 offen sc1", "par")
        e("s_mov_b64 exec, -1")
    if not late: par_loads()
    if tlb:
        e("s_cmp_lg_u32 s4, 0\ns_cbranch_scc1 K_notlb\nv_mov_b32 v140, 0\ns_mov_b64 exec, 1")
        for p in (52, 54, 56, 42, 44): e(f"global_load_dword v141, v140, s[{p}:{p+1}]")
        if tlb > 1:
            e(f"s_mul_i32 s30, s5, {128*1792}\nv_mov_b32 v251, s30\nglobal_load_dword v141, v251, s[58:59]")
            e(f"s_mul_i32 s30, s5, {2*A_W}\nbuffer_load_dword v141, v140, s[20:23], s30 offen\ns_mul_i32 s30, s5, {4*A_W}\ns_add_u32 s30, s30, {WS_AO}\nbuffer_load_dword v141, v140, s[20:23], s30 offen")
            e(f"s_mul_i32 s30, s5, {14*32768}\ns_add_u32 s30, s30, {WS_PX}\nbuffer_load_dword v141, v140, s[20:23], s30 offen")
        e("s_mov_b64 exec, -1")
        e.label("K_notlb")
    rot_off(30)
    e(f"s_sub_u32 s30, 7, s30\ns_cmp_ge_u32 s30, 7\ns_cselect_b32 s30, 0, s30\ns_lshl_b32 s30, s30, 14\ns_lshl_b32 s31, s85, 13\ns_add_u32 s30, s30, s31\ns_and_b32 s31, s4, 1\ns_lshl_b32 s31, s31, 12\ns_add_u32 s30, s30, s31")
    e("v_bfe_u32 v4, v0, 2, 2\nv_lshl_add_u32 v4, v21, 2, v4\nv_lshrrev_b32 v5, 1, v4\nv_lshlrev_b32 v4, 7, v4\nv_bfe_u32 v7, v0, 4, 1\nv_lshlrev_b32 v7, 1, v7\nv_bfe_u32 v8, v0, 1, 1\nv_add_u32 v7, v7, v8")
    e("s_and_b32 s31, s4, 2\ns_lshl_b32 s31, s31, 1\nv_add_u32 v7, s31, v7\nv_xor_b32 v7, v7, v5\nv_lshl_add_u32 v4, v7, 4, v4\nv_and_b32 v7, 1, v0\nv_lshl_add_u32 v4, v7, 3, v4\nv_add_u32 v254, s30, v4\nv_xor_b32 v255, 64, v254")
    e("v_lshlrev_b32 v8, 4, v7\nv_xor_b32 v8, 16, v8")
    e("s_bitcmp1_b32 s4, 0\ns_cselect_b64 s[64:65], -1, 0")
    e("s_bitcmp1_b32 s4, 1\ns_cselect_b64 s[66:67], -1, 0\ns_mov_b32 s68, 0\ns_mov_b32 s69, -1")
    e("s_lshr_b32 s87, s4, 1\ns_lshl_b32 s73, s85, 6")
    K = []
    def k_(s): K.extend(s.split("\n"))
    for r in (244, 245, 246, 142): k_(f"v_lshlrev_b32 v{r}, v8, v{r}\nv_and_b32 v{r}, 0xffff0000, v{r}")
    k_(f"v_mul_f32 v246, {LOG2E}, v246\nv_exp_f32 v246, v246\ns_nop 0\nv_cvt_pk_bf16_f32 v246, v246, v246\nv_and_b32 v246, 0xffff0000, v246")
    k_(f"v_mul_f32 v5, v246, v244\nv_mul_f32 v6, v246, v245\nv_mul_f32 v5, {LOG2E}, v5\nv_exp_f32 v5, v5")
    k_("v_mul_f32 v6, 0.15915494, v6\nv_rndne_f32 v9, v6\nv_sub_f32 v6, v6, v9\nv_cos_f32 v22, v6\nv_sin_f32 v23, v6\ns_nop 0")
    k_("v_mul_f32 v22, v22, v5\nv_mul_f32 v23, v23, v5")
    k_("v_mul_f32 v5, v244, v244\nv_fma_f32 v5, v245, v245, v5\nv_rcp_f32 v5, v5\nv_add_f32 v6, -1.0, v22")
    k_("v_mul_f32 v30, v6, v244\nv_fma_f32 v30, v23, v245, v30\nv_mul_f32 v31, v23, v244\nv_fma_f32 v31, -v6, v245, v31")
    k_("v_add_f32 v5, v5, v5\nv_mul_f32 v30, v30, v5\nv_mul_f32 v31, v31, v5\nv_xor_b32 v33, 0x80000000, v23")
    def csq(d, s): k_(f"v_mul_f32 v9, v{s}, v{s+1}\nv_mul_f32 v{d}, v{s}, v{s}\nv_fma_f32 v{d}, -v{s+1}, v{s+1}, v{d}\nv_add_f32 v{d+1}, v9, v9")
    def pwmul(mask):
        k_(f"v_cndmask_b32 v5, 1.0, v26, {mask}\nv_cndmask_b32 v6, 0, v27, {mask}")
        k_("v_mul_f32 v9, v28, v6\nv_mul_f32 v28, v28, v5\nv_fma_f32 v28, -v29, v6, v28\nv_fma_f32 v29, v29, v5, v9")
    csq(24, 22); csq(24, 24); csq(24, 24); csq(24, 24)
    k_("v_cndmask_b32 v28, 1.0, v24, s[68:69]\nv_cndmask_b32 v29, 0, v25, s[68:69]")
    csq(26, 24); pwmul("s[64:65]"); csq(26, 26); pwmul("s[66:67]"); csq(26, 26); csq(136, 26)
    QR, QI = 104, 120
    for j in range(16):
        pr, pi = (30, 31) if j == 0 else (QR + j - 1, QI + j - 1)
        k_(f"v_mul_f32 v{QR+j}, v22, v{pr}\nv_mul_f32 v{QI+j}, v22, v{pi}\nv_fmac_f32 v{QR+j}, v33, v{pi}\nv_fmac_f32 v{QI+j}, v23, v{pr}")
    k_("v_xor_b32 v31, 0x80000000, v31\nv_xor_b32 v32, 0x80000000, v30")
    UR, UI = 40, 56
    SF = [144, 192]
    def sreads(sg):
        fs = SF[sg & 1]; out = []
        for j in range(4):
            xb = (10 + j) if sg < 4 else (14 + j)
            out += [f"ds_read_b128 v[{fs+12*j}:{fs+12*j+3}], v{xb} offset:{(sg & 3)*CH}",
                    f"ds_read_b128 v[{fs+12*j+4}:{fs+12*j+7}], v{240+j} offset:{(sg % NR)*8192}",
                    f"ds_read_b128 v[{fs+12*j+8}:{fs+12*j+11}], v{240+j} offset:{(sg % NR)*8192+4096}"]
        return out
    def dots(fs):
        for j in range(4):
            for q in range(4): e(f"v_dot2c_f32_bf16 v37, v{fs+12*j+q}, v{fs+12*j+q}\nv_dot2c_f32_bf16 v36, s94, v{fs+12*j+q}")
        for q in range(4): e(f"v_dot2c_f32_bf16 v34, s94, v{fs+4+q}\nv_dot2c_f32_bf16 v35, s94, v{fs+8+q}")
    Z = []
    def z_(s): Z.extend(s.split("\n"))
    z_("v_mov_b32 v1, v36\nv_mov_b32 v2, v37\ns_nop 1")
    z_("v_permlane32_swap_b32 v36, v1\nv_permlane32_swap_b32 v37, v2\nv_permlane32_swap_b32 v34, v35\ns_nop 1")
    z_("v_add_f32 v34, v34, v35\nv_add_f32 v36, v36, v1\nv_add_f32 v37, v37, v2\nds_write_b32 v248, v34")
    z_("v_mul_f32 v36, 0x3b124925, v36\nv_mul_f32 v37, 0x3b124925, v37")
    z_("v_fma_f32 v37, -v36, v36, v37\nv_max_f32 v37, 0, v37\nv_cvt_pk_bf16_f32 v1, v37, v36")
    z_("v_and_b32 v36, 0xffff0000, v1\nv_lshlrev_b32 v37, 16, v1\nv_add_f32 v37, 0x3727c5ac, v37")
    z_("v_cvt_pk_bf16_f32 v37, v37, v37\nv_and_b32 v37, 0xffff0000, v37\nv_sqrt_f32 v37, v37\ns_nop 0")
    z_("v_cvt_pk_bf16_f32 v37, v37, v37\nv_and_b32 v37, 0xffff0000, v37\nv_rcp_f32 v37, v37\ns_nop 0")
    z_("v_cndmask_b32 v36, v36, v37, s[68:69]\nds_write_b32 v249, v36")
    e(f"s_lshl_b32 s30, s4, 2\ns_add_u32 s30, s30, {CSB}\nv_lshl_add_u32 v248, v0, 4, s30")
    tau_of_lane(e, 249, 2)
    e(f"s_lshl_b32 s30, s4, 7\ns_add_u32 s30, s30, {STAT}\nv_lshl_add_u32 v249, v249, 2, s30\nv_lshl_add_u32 v249, v21, 9, v249\nv_lshl_add_u32 v3, v21, 6, s30")
    e(f"v_and_b32 v250, 31, v0\nv_lshlrev_b32 v250, 4, v250\nv_add_u32 v250, {CSB}, v250")
    st(e, "b0")
    e("s_barrier")
    for x in sreads(0): e(x)
    if late: par_loads()
    ks = 2 if late else 1
    for sg in range(7):
        fs = SF[sg & 1]
        if sg == ks:
            e.vm_wait({"par"})
            e("v_readfirstlane_b32 s84, v247\ns_add_u32 s84, s84, 1\ns_max_u32 s84, s84, 1")
            e(f"s_getreg_b32 s74, hwreg(HW_REG_XCC_ID, 0, 4)\ns_lshl_b32 s78, s5, 1\ns_add_u32 s78, s78, s85\ns_lshl_b32 s78, s78, 10\ns_add_u32 s78, s78, {WS_FH}\ns_add_u32 s75, s78, {WS_XID - WS_FH}")
            e("s_cmp_lg_u32 s4, 0\ns_cbranch_scc1 K_noxid")
            e("s_lshl_b32 s31, s91, 7\nv_mov_b32 v251, s31\nv_mov_b32 v252, s74\nv_mov_b32 v253, s84\ns_mov_b64 exec, 1")
            e("buffer_store_dwordx2 v[252:253], v251, s[20:23], s75 offen sc1\ns_mov_b64 exec, -1")
            e.label("K_noxid")
        e.lg0()
        if sg == 6:
            for j in range(4): e(f"ds_read_b64_tr_b16 v[{208+2*j}:{209+2*j}], v{254 + (j & 1)} offset:{j*1024}")
            dots(fs)
            e.lg0()
        st(e, f"b{sg+1}")
        e("s_barrier")
        rd = sreads(sg + 1) if sg < 6 else []
        for j in range(4):
            for acc, o in ((UR, 4), (UI, 8)):
                e(mfma(acc, fs+12*j, fs+12*j+o, sg == 0 and j == 0))
                for x in rd[:2]: e(x)
                nk = kint if rd else 4
                rd = rd[2:]
                for _ in range(nk):
                    if sg == 6:
                        if Z: e(Z.pop(0))
                    elif sg >= ks and K: e(K.pop(0))
        if sg < 6: dots(fs)
    for x in Z: e(x)
    gen = [0]
    def ssync(extra=None):
        gen[0] += 1
        e("s_mov_b64 exec, 1\nds_add_u32 v18, v19 offset:80\ns_mov_b64 exec, -1")
        def body():
            e("ds_read_b32 v1, v18 offset:80")
            if extra: extra()
            e("s_waitcnt lgkmcnt(0)\nv_readfirstlane_b32 s82, v1")
        spin(e, body, f"s_cmp_ge_u32 s82, {4*gen[0]}", sleep=ssl)
        e.lg = []
    def wait_prog(n):
        def body():
            e("ds_read_b128 v[4:7], v18\ns_waitcnt lgkmcnt(0)\nv_min_u32 v4, v4, v5\nv_min3_u32 v4, v4, v6, v7\ns_nop 0\nv_readfirstlane_b32 s82, v4")
        spin(e, body, f"s_cmp_ge_u32 s82, {n}", sleep=wsl)
        e.lg = []
    M, R = 72, 88
    e(f"s_setprio {sprio2}")
    if sidle:
        def body():
            e("s_sleep 8\nds_read_b128 v[4:7], v18\ns_waitcnt lgkmcnt(0)\nv_min_u32 v4, v4, v5\nv_min3_u32 v4, v4, v6, v7\ns_nop 0\nv_readfirstlane_b32 s82, v4")
        spin(e, body, "s_cmp_ge_u32 s82, 7", sleep=1)
    TMP = 192
    for q in range(4): e(f"ds_read_b128 v[{M+4*q}:{M+4*q+3}], v3 offset:{16*q}")
    for q in range(4): e(f"ds_read_b128 v[{R+4*q}:{R+4*q+3}], v3 offset:{512+16*q}")
    e(f"s_lshl_b32 s30, s4, 9\ns_add_u32 s30, s30, {SUB}\nv_lshl_add_u32 v2, v0, 3, s30\nv_add_u32 v3, {7*256}, v2")
    ssync(lambda: e(f"ds_read_b128 v[{TMP}:{TMP+3}], v250\nds_read_b128 v[{TMP+4}:{TMP+7}], v250 offset:512"))
    st(e, "ss1")
    t = TMP
    e(f"v_add_f32 v{t}, v{t}, v{t+1}\nv_add_f32 v{t+2}, v{t+2}, v{t+3}\nv_add_f32 v{t+4}, v{t+4}, v{t+5}\nv_add_f32 v{t+6}, v{t+6}, v{t+7}\nv_add_f32 v34, -v{t}, -v{t+2}\nv_add_f32 v35, -v{t+4}, -v{t+6}")
    for j in range(16): e(f"v_fmac_f32 v{UR+j}, v34, v{M+j}\nv_fmac_f32 v{UI+j}, v35, v{M+j}")
    for j in range(16): e(f"v_mul_f32 v{UR+j}, v{UR+j}, v{R+j}\nv_mul_f32 v{UI+j}, v{UI+j}, v{R+j}")
    st(e, "fold")
    for j in range(1, 16):
        e(f"v_fmac_f32 v{UR+j}, v22, v{UR+j-1}\nv_fmac_f32 v{UI+j}, v22, v{UI+j-1}\nv_fmac_f32 v{UR+j}, v33, v{UI+j-1}\nv_fmac_f32 v{UI+j}, v23, v{UR+j-1}")
    st(e, "scan")
    e(f"ds_write2_b32 v3, v{UR+15}, v{UI+15} offset1:1")
    def step(dr, di, hr, hi, ur, ui, lr, li):
        e(f"v_fma_f32 v{dr}, v{lr}, v{hr}, v{ur}\nv_fma_f32 v{di}, v{lr}, v{hi}, v{ui}")
        e(f"v_fma_f32 v{dr}, -v{li}, v{hi}, v{dr}\nv_fma_f32 v{di}, v{li}, v{hr}, v{di}")
    def rdsub():
        for d in range(7): e(f"ds_read_b64 v[{TMP+2*d}:{TMP+1+2*d}], v2 offset:{d*256}")
    ssync(rdsub)
    st(e, "ss")
    for d in range(1, 7):
        dd = (38, 39) if d == 6 else (TMP + 2*d, TMP + 1 + 2*d)
        step(dd[0], dd[1], TMP - 2 + 2*d, TMP - 1 + 2*d, TMP + 2*d, TMP + 1 + 2*d, 24, 25)
    e("s_cmp_lg_u32 s4, 3\ns_cbranch_scc1 K_nopub")
    step(TMP, TMP + 2, 38, 39, UR + 15, UI + 15, 24, 25)
    e(f"v_mov_b32 v{TMP+1}, s84\nv_mov_b32 v{TMP+3}, s84")
    e(f"s_lshl_b32 s30, s6, 4\ns_add_u32 s30, s30, s5\ns_lshl_b32 s30, s30, 9\ns_add_u32 s30, s30, {WS_AGG - 512}")
    e("v_lshlrev_b32 v1, 4, v0\ns_mov_b32 exec_lo, 0")
    e(f"buffer_store_dwordx4 v[{TMP}:{TMP+3}], v1, s[20:23], s30 offen sc1")
    e("s_mov_b32 exec_lo, -1")
    e.label("K_nopub")
    st(e, "pub")
    e(f"s_mul_i32 s76, s5, {2*A_W}\ns_lshl_b32 s30, s6, 13\ns_add_u32 s76, s76, s30\ns_lshl_b32 s30, s4, 10\ns_add_u32 s76, s76, s30\ns_add_u32 s77, s76, {A_W}")
    if bulk & 2:
        e(f"v_and_b32 v1, 7, v0\nv_lshlrev_b32 v1, 7, v1\nv_bfe_u32 v2, v0, 3, 1\nv_lshl_add_u32 v1, v2, 12, v1\nv_bfe_u32 v2, v0, 4, 1\nv_mul_u32_u24 v2, {A_W}, v2\nv_add_u32 v1, v1, v2")
        e(f"s_mov_b32 exec_hi, 0\nbuffer_load_dword v252, v1, s[20:23], s76 offen {tfl}\ns_mov_b32 exec_hi, -1")
    def touch_hh():
        e(f"s_lshl_b32 s30, s5, 2\ns_add_u32 s30, s30, s4\ns_mul_i32 s30, s30, {A_W}\ns_lshl_b32 s31, s6, 13\ns_add_u32 s30, s30, s31\ns_add_u32 s30, s30, {WS_AO}\nv_lshlrev_b32 v253, 7, v0")
        e(f"buffer_load_dword v253, v253, s[20:23], s30 offen {tfl}")
    if (bulk & 1) and tpos == 0: touch_hh()
    for x in K: e(x)
    GR, GI = 72, 88
    for j in range(16):
        e(f"v_mul_f32 v{GR+j}, v30, v{UR+j}\nv_mul_f32 v{GI+j}, v32, v{UI+j}\nv_fmac_f32 v{GR+j}, v31, v{UI+j}\nv_fmac_f32 v{GI+j}, v31, v{UR+j}")
    AG = 40
    st(e, "g")
    for i in range(8): e(f"v_mov_b32 v{AG+4*i}, 0\nv_mov_b32 v{AG+4*i+1}, s84\nv_mov_b32 v{AG+4*i+2}, 0\nv_mov_b32 v{AG+4*i+3}, s84")
    e(f"s_lshl_b32 s90, s6, 11\ns_lshl_b32 s30, s4, 8\ns_add_u32 s90, s90, s30\ns_add_u32 s90, s90, {WS_CS}")
    e("v_and_b32 v34, 31, v0\nv_lshlrev_b32 v34, 3, v34\nv_lshl_add_u32 v34, v21, 10, v34")
    def cs_loads():
        e("buffer_load_dwordx2 v[8:9], v34, s[20:23], s90 offen sc1\nbuffer_load_dwordx2 v[140:141], v35, s[20:23], s75 offen sc1")
    cs_chk = "v_cmp_eq_u32 vcc, s84, v9\nv_cmp_eq_u32 s[28:29], s84, v141\ns_nop 1\ns_and_b64 vcc, vcc, s[28:29]"
    e("v_min_u32 v35, 6, v0\nv_lshlrev_b32 v35, 7, v35")
    cs_loads()
    e(f"s_lshl_b32 s30, s91, 7\ns_add_u32 s30, s30, s78\nv_mul_u32_u24 v1, {WS_FO - WS_FH}, v21")
    e("s_mov_b32 exec_lo, 1\ns_mov_b32 exec_hi, 1\nbuffer_load_dword v251, v1, s[20:23], s30 offen sc1\ns_mov_b64 exec, -1")
    e(f"s_lshl_b32 s92, s6, 4\ns_add_u32 s92, s92, s5\ns_lshl_b32 s92, s92, 9\ns_add_u32 s92, s92, {WS_AGG - 8192}\ns_add_u32 s93, s92, 4096\nv_lshlrev_b32 v3, 4, v0")
    def agg_loads():
        for i in range(8):
            l = e.newlabel("AL")
            e(f"s_cmp_lt_u32 s5, {15 - 2*i}\ns_cbranch_scc1 {l}")
            e(f"s_cmp_ge_u32 s5, {16 - 2*i}\ns_cselect_b32 exec_lo, -1, 0")
            e(f"buffer_load_dwordx4 v[{AG+4*i}:{AG+4*i+3}], v3, s[20:23], s{92 + (i >> 2)} offen offset:{1024*(i & 3)} sc1")
            e.label(l)
        e("s_mov_b32 exec_lo, -1")
    agg_loads()
    st(e, "aggi")
    SEL = 144
    tau_of_lane(e, 1, 2)
    e("v_lshlrev_b32 v2, 4, v21\nv_sub_u32 v1, v1, v2\nv_and_b32 v2, 1, v1\nv_lshlrev_b32 v2, 4, v2\nv_mov_b32 v4, 0x3f80\nv_lshlrev_b32 v2, v2, v4\nv_ashrrev_i32 v1, 1, v1")
    for q in range(0, 8, 2):
        e(f"v_cmp_eq_u32 vcc, {q}, v1\nv_cmp_eq_u32 s[30:31], {q+1}, v1\ns_nop 0\nv_cndmask_b32 v{SEL+q}, 0, v2, vcc\nv_cndmask_b32 v{SEL+q+1}, 0, v2, s[30:31]")
    if (bulk & 1) and tpos == 1: touch_hh()
    def rnd(b):
        for r in range(0, 16, 2): e(f"v_cvt_pk_bf16_f32 v{b+r}, v{b+r}, v{b+r+1}")
        for r in range(0, 16, 2): e(f"v_and_b32 v{b+r+1}, 0xffff0000, v{b+r}\nv_lshlrev_b32 v{b+r}, 16, v{b+r}")
    e.vm0()
    st(e, "aggl")
    e("s_mov_b32 s95, 0")
    e.label("K_horner")
    e(f"v_min3_u32 v1, s84, v{AG+1}, v{AG+3}\nv_max3_u32 v2, s84, v{AG+1}, v{AG+3}")
    for i in range(1, 8):
        b = AG + 4*i
        src = (AG, AG + 2) if i == 1 else ((4, 5) if i % 2 == 0 else (6, 7))
        dst = (4, 5) if i % 2 == 1 else (6, 7)
        step(dst[0], dst[1], src[0], src[1], b, b + 2, 136, 137)
        e(f"v_min3_u32 v1, v1, v{b+1}, v{b+3}\nv_max3_u32 v2, v2, v{b+1}, v{b+3}")
    e("v_cmp_eq_u32 vcc, v1, v2\nv_mov_b32 v6, v4\nv_mov_b32 v7, v5\ns_cmp_eq_u64 vcc, -1\ns_cbranch_scc1 K_hok")
    e(f"s_add_u32 s95, s95, 1\ns_cmp_ge_u32 s95, {SPIN_MAX}\ns_cbranch_scc1 K_hok")
    if lp:
        e(f"s_lshl_b32 s30, s6, 13\ns_add_u32 s30, s30, {WS_AGG + 508}\ns_sub_u32 s31, s5, 1\nv_min_u32 v1, s31, v0\nv_lshlrev_b32 v1, 9, v1\ns_mov_b64 exec, 0xffff")
        e.label("K_lp")
        e(f"s_sleep 2\nbuffer_load_dword v2, v1, s[20:23], s30 offen sc1\ns_add_u32 s95, s95, 1\ns_waitcnt vmcnt(0)\nv_cmp_eq_u32 vcc, s84, v2\ns_cmp_ge_u32 s95, {SPIN_MAX}\ns_cbranch_scc1 K_lpx\ns_cmp_eq_u64 vcc, exec\ns_cbranch_scc0 K_lp")
        e.label("K_lpx")
        e("s_mov_b64 exec, -1")
    else: e("s_sleep 4")
    agg_loads()
    e("s_waitcnt vmcnt(0)\ns_branch K_horner")
    e.label("K_hok")
    st(e, "look")
    e("v_permlane32_swap_b32 v4, v6\nv_permlane32_swap_b32 v5, v7\ns_nop 0")
    step(6, 7, 4, 5, 6, 7, 26, 27)
    step(38, 39, 6, 7, 38, 39, 28, 29)
    e("v_xor_b32 v36, 0x80000000, v38\nv_xor_b32 v37, 0x80000000, v39")
    for j in range(0, 16, 2):
        for x in (j, j + 1):
            e(f"v_fmac_f32 v{GR+x}, v38, v{QR+x}\nv_fmac_f32 v{GI+x}, v37, v{QR+x}\nv_fmac_f32 v{GR+x}, v37, v{QI+x}\nv_fmac_f32 v{GI+x}, v36, v{QI+x}")
        e(f"v_cvt_pk_bf16_f32 v{40+j//2}, v{GR+j}, v{GR+j+1}\nv_cvt_pk_bf16_f32 v{48+j//2}, v{GI+j}, v{GI+j+1}")
    st(e, "fin")
    e("s_setprio 3")
    e(mfma(160, 40, SEL, True)); e(mfma(176, 48, SEL, True)); e(mfma(160, 44, SEL + 4)); e(mfma(176, 52, SEL + 4))
    e(f"s_setprio {sprio2}")
    e("s_add_u32 s30, s76, 4096\ns_add_u32 s31, s77, 4096\ns_nop 7")
    for r in range(16): e(f"v_cvt_pk_bf16_f32 v{56+r}, v{160+2*r}, v{161+2*r}")
    st(e, "ht")
    def do_hst():
        e("s_add_u32 s30, s76, 4096\ns_add_u32 s31, s77, 4096")
        dual([f"buffer_store_dwordx4 v[56:59], v3, s[20:23], s76 offen", "buffer_store_dwordx4 v[60:63], v3, s[20:23], s30 offen",
                f"buffer_store_dwordx4 v[64:67], v3, s[20:23], s77 offen", "buffer_store_dwordx4 v[68:71], v3, s[20:23], s31 offen"], "h", bulk & 2)
        st(e, "hst")
    if not (bulk & 2): do_hst()
    e(cs_chk + "\ns_cmp_eq_u64 vcc, -1\ns_cbranch_scc1 K_cs_ok")
    def body():
        cs_loads()
        e("s_waitcnt vmcnt(0)\n" + cs_chk)
    spin(e, body, "s_cmp_eq_u64 vcc, -1", sleep=2)
    e.label("K_cs_ok")
    e("v_cmp_eq_u32 vcc, s74, v140")
    e(f"s_lshl_b32 s30, s4, 8\ns_add_u32 s30, s30, {CSW}\nv_lshl_add_u32 v1, v0, 2, s30")
    e("s_cmp_eq_u64 vcc, -1\ns_cselect_b32 s97, 2, 1")
    if force: e(f"s_mov_b32 s97, {force}")
    e("v_mov_b32 v2, s97\nds_write_b32 v1, v8\nds_write_b32 v20, v2 offset:16")
    if bulk & 2: do_hst()
    e(f"s_lshl_b32 s30, s87, 14\ns_xor_b32 s31, s30, 0x4000\ns_and_b32 s29, s4, 1\ns_lshl_b32 s29, s29, 12\ns_sub_u32 s29, {C0}, s29\ns_add_u32 s30, s30, s29\ns_add_u32 s31, s31, s29\ns_lshl_b32 s29, s4, 5")
    for j in range(4): e(f"v_xor_b32 v{10+j}, s29, v{10+j}\nv_add_u32 v{14+j}, s31, v{10+j}\nv_add_u32 v{10+j}, s30, v{10+j}")
    e("s_lshl_b32 s30, s91, 7\ns_lshl_b32 s31, s4, 2\ns_add_u32 s31, s31, s30\nv_mov_b32 v4, s31\nv_mov_b32 v5, s84")
    e.vm_wait({"h"})
    e("s_mov_b64 exec, 1")
    dual(["buffer_store_dword v5, v4, s[20:23], s78 offen"], "fl")
    e("s_mov_b64 exec, -1")
    st(e, "hflag")
    if (bulk & 1) and tpos == 2: touch_hh()
    if rb_y:
        e("s_add_u32 s30, s76, 4096\ns_add_u32 s31, s77, 4096")
        for g, sr in enumerate((76, 30, 77, 31)): e(f"buffer_load_dwordx4 v[{24+4*g}:{27+4*g}], v3, s[20:23], s{sr} offen sc1")
    e(f"s_lshl_b32 s92, s5, 1\ns_add_u32 s92, s92, s87\ns_mul_i32 s92, s92, {A_W}\ns_lshl_b32 s30, s85, 13\ns_add_u32 s93, s92, s30\ns_add_u32 s93, s93, {3*CH}\ns_lshl_b32 s30, s85, 16\ns_add_u32 s92, s92, s30")
    e("v_and_b32 v8, 7, v0\nv_min_u32 v8, 6, v8\nv_lshlrev_b32 v8, 7, v8\nv_and_b32 v1, 8, v0\nv_add_u32 v8, v8, v1\ns_and_b32 s30, s4, 1\ns_lshl_b32 s31, s30, 2\nv_add_u32 v8, s31, v8")
    e("s_lshl_b32 s30, s30, 10\ns_lshl_b32 s31, s85, 11\ns_add_u32 s30, s30, s31\nv_add_u32 v23, s30, v3\nv_xor_b32 v22, 0x800, v23")
    e(f"s_mul_i32 s76, s5, 7\ns_add_u32 s76, s76, s91\ns_lshl_b32 s76, s76, 1\ns_add_u32 s76, s76, s85\ns_lshl_b32 s76, s76, 15\ns_add_u32 s76, s76, s89\ns_xor_b32 s77, s76, 0x8000\ns_add_u32 s76, s76, {WS_PX}\ns_add_u32 s77, s77, {WS_PX}")
    def creg(k): return 144 + 8 * k
    def c_list(r):
        out = []
        for k in range(8*r, min(14, 8*r + 8)):
            if k == 12: out += [f"v_xor_b32 v{10+j}, s73, v{10+j}" for j in (0, 1, 4, 5)]
            for b in range(2):
                g = creg(k) + 4*b
                out.append(f"ds_read_b128 v[{g}:{g+3}], v{10 + 4*b + (k & 3)} offset:{r*2*CH + ((k >> 2) & 1)*4096}")
        return out
    XR, MR, RR = 64, 80, 96
    e(f"s_lshl_b32 s29, s85, 6\ns_and_b32 s31, s4, 1\ns_lshl_b32 s31, s31, 5\ns_add_u32 s29, s29, s31\ns_lshl_b32 s29, s29, 2\ns_add_u32 s29, s29, {STAT}\nv_lshl_add_u32 v4, v21, 6, s29")
    for q in range(4):
        e(f"ds_read_b128 v[{MR+4*q}:{MR+4*q+3}], v4 offset:{16*q}\nds_read_b128 v[{RR+4*q}:{RR+4*q+3}], v4 offset:{512+16*q}")
    for r in range(8): e(f"v_mov_b32 v{56+r}, v{208+r}\nv_lshlrev_b32 v{XR+2*r}, 16, v{208+r}\nv_and_b32 v{XR+2*r+1}, 0xffff0000, v{208+r}")
    e.lg0()
    for r in range(16): e(f"v_sub_f32 v{MR+r}, v{XR+r}, v{MR+r}")
    rnd(MR)
    for r in range(16): e(f"v_mul_f32 v{MR+r}, v{MR+r}, v{RR+r}")
    rnd(MR)
    for r in range(16): e(f"v_mul_f32 v{MR+r}, v{MR+r}, v142")
    for r in range(8): e(f"v_cvt_pk_bf16_f32 v{128+r}, v{MR+2*r}, v{MR+2*r+1}")
    st(e, "xn")
    wait_prog(6)
    for x in c_list(0): e(x)
    e("s_waitcnt lgkmcnt(0)\ns_mov_b64 exec, 1\nds_add_u32 v18, v19 offset:88")
    st(e, "c0")
    e("s_mov_b64 exec, 0xffff")
    def body():
        e("buffer_load_dword v9, v8, s[20:23], s78 offen sc1\ns_waitcnt vmcnt(0)\nv_cmp_eq_u32 vcc, s84, v9\ns_nop 1")
    spin(e, body, "s_cmp_eq_u64 vcc, exec", sleep=4)
    e("s_mov_b64 exec, -1")
    e.vm = []
    st(e, "hseen")
    NP = 8
    ypre = min(ypre, NP - 1)
    YA = [64, 96]
    def yreg(t): return 24 + 4*(t % NP)
    def yissue(t):
        k = t >> 1
        if (t & 1) == 0 and k > 0: e("s_mov_b32 s92, s93" if k == 12 else "s_add_u32 s92, s92, 4096")
        e.vmem(f"buffer_load_dwordx4 v[{yreg(t)}:{yreg(t)+3}], v{22 + (t & 1)}, s[20:23], s92 offen sc1", ("A", t))
    if ypre:
        if ywait > 6: wait_prog(ywait)
        for t in range(ypre): yissue(t)
    def body():
        e("ds_read_b128 v[4:7], v18 offset:32\ns_waitcnt lgkmcnt(0)\nv_min_u32 v4, v4, v5\nv_min3_u32 v4, v4, v6, v7\ns_nop 0\nv_readfirstlane_b32 s82, v4")
    spin(e, body, "s_cmp_lg_u32 s82, 0", sleep=1)
    st(e, "epid")
    e("s_setprio 3")
    for t in range(ypre, NP - 1): yissue(t)
    for x in c_list(1): e(x)
    e(f"s_add_u32 s31, s89, {SC}\nv_add_u32 v136, s31, v3\nv_xor_b32 v137, 0x2000, v136\nv_xor_b32 v138, 8, v20")
    for t in range(28):
        k = t >> 1
        if t == 8: e("s_waitcnt lgkmcnt(0)\ns_mov_b64 exec, 1\nds_add_u32 v18, v19 offset:92\ns_mov_b64 exec, -1")
        if t == 24: e("ds_read_b32 v1, v18 offset:92")
        e.vm_wait({("A", t)})
        for b in range(2):
            e(mfma(YA[t & 1] + 16*b, yreg(t), creg(k) + 4*b, k == 0))
            if b == 0 and t + NP - 1 < 28: yissue(t + NP - 1)
    st(e, "yloop")
    e("s_waitcnt lgkmcnt(0)\nv_readfirstlane_b32 s82, v1\ns_cmp_ge_u32 s82, 4\ns_cbranch_scc1 K_c1ok")
    lds_wait(18, 92, "s_cmp_ge_u32 s82, 4", 1, sleep=0)
    e.label("K_c1ok")
    e("s_nop 5")
    for ps in range(2):
        for g in range(4): e(f"ds_write_b128 v136, v[{YA[ps]+16+4*g}:{YA[ps]+19+4*g}] offset:{ps*CH + g*1024}")
    e("ds_write_b32 v20, v19 offset:96")
    lds_wait(138, 96, "s_cmp_lg_u32 s82, 0", 1, sleep=0)
    st(e, "yw")
    for ps in range(2):
        for g in range(4): e(f"ds_read_b128 v[{YA[ps]+16+4*g}:{YA[ps]+19+4*g}], v137 offset:{ps*CH + g*1024}")
    e("s_waitcnt lgkmcnt(4)")
    Y = YA[0]
    for r in range(16): e(f"v_add_f32 v{Y+r}, v{Y+r}, v{Y+16+r}")
    for p in range(8): e(f"v_cvt_pk_bf16_f32 v{24+4*(p//3)+p%3}, v{Y+2*p}, v{Y+2*p+1}")
    for r in (27, 31, 34, 35): e(f"v_mov_b32 v{r}, s84")
    e("s_waitcnt lgkmcnt(0)\ns_mov_b64 exec, 1\nds_add_u32 v18, v19 offset:84\ns_mov_b64 exec, -1")
    st(e, "yx")
    e("s_setprio 0")
    Y = YA[1]
    def ysend(g): stores([f"buffer_store_dwordx4 v[{24+4*g}:{27+4*g}], v3, s[20:23], s77 offen offset:{g*1024}"], "px")
    if ymode == 0: ysend(0)
    if ymode == 1: [ysend(g) for g in range(3)]
    for r in range(16): e(f"v_add_f32 v{Y+r}, v{Y+r}, v{Y+16+r}")
    for r in range(8): e(f"v_lshlrev_b32 v{Y+16+2*r}, 16, v{128+r}\nv_and_b32 v{Y+17+2*r}, 0xffff0000, v{128+r}")
    if ymode == 0: ysend(1)
    for r in range(16): e(f"v_add_f32 v{Y+r}, v{Y+r}, v{Y+16+r}")
    lds_wait(18, 84, "s_cmp_ge_u32 s82, 4", 1, sleep=1)
    for g in range(4): e(f"ds_write_b128 v136, v[{Y+4*g}:{Y+3+4*g}] offset:{g*1024}")
    e(f"v_add_u32 v11, {6*CH + 2048 - SC}, v136")
    for g in range(2): e(f"ds_write_b128 v11, v[{56+4*g}:{59+4*g}] offset:{g*1024}")
    e("ds_write_b32 v20, v19 offset:128")
    e.lg0()
    if ymode == 0: ysend(2)
    if ymode == 2:
        lds_wait(20, 48, "s_cmp_lg_u32 s82, 0", 1, sleep=2)
        for g in range(3): ysend(g)
    st(e, "ydone")
    e.lg0()
    e("s_barrier")
    st.dump(e); info["S"] = st.names
    e("s_endpgm")

    e.vm = []; e.lg = []
    e.label("K_SPARE")
    st = Stamper(stamps, 143)
    e("s_cmp_ge_u32 s2, 256\ns_cbranch_scc1 K_END\nv_mov_b32 v2, v0\nv_and_b32 v0, 63, v0\ns_lshr_b32 s3, s3, 6")
    e("v_lshlrev_b32 v7, 7, v2")
    e("s_sub_u32 s4, s2, 224\ns_lshr_b32 s5, s4, 1\ns_and_b32 s6, s4, 1")
    e("v_lshrrev_b32 v3, 4, v2\nv_and_b32 v4, 15, v2\nv_mul_u32_u24 v5, 0xe00, v3\nv_lshl_add_u32 v5, v4, 4, v5")
    e(f"v_mov_b32 v6, 0\ns_mov_b32 s82, {WS_EP}\ns_lshl_b32 s28, s5, 8")
    e("s_cmp_eq_u32 s6, 0")
    e("s_waitcnt lgkmcnt(0)")
    e("s_cselect_b32 s16, s52, s54\ns_cselect_b32 s17, s53, s55")
    e(f"s_and_b32 s17, s17, 0xffff\ns_mov_b32 s18, {448*3584}\ns_mov_b32 s19, 0x20000")
    srd(e, 20, 62, WS_END)
    srd(e, 8, 56, 1792 * 896)
    srd(e, 64, 42, 448 * 896)
    srd(e, 68, 44, 448 * 896)
    if late:
        e("s_cmp_lg_u32 s3, 0\ns_cbranch_scc1 K_sp6\nv_min_u32 v84, 6, v0\nv_lshlrev_b32 v84, 7, v84\ns_mov_b64 exec, 0x7f")
        for i, p in enumerate((34, 36, 46, 48, 58)): e(f"global_load_dword v{85+i}, v84, s[{p}:{p+1}]")
        e("s_mov_b64 exec, -1")
        e.label("K_sp6")
    e("s_cmp_ge_u32 s4, 28\ns_cbranch_scc1 K_sp4")
    e.vmem("buffer_load_dword v6, v6, s[20:23], s82 offen sc1", "ep")
    for i in range(14):
        e.vmem(f"buffer_load_dwordx4 v[{16+4*i}:{19+4*i}], v5, s[16:19], s28 offen", ("cs", i))
        if i < 13: e(f"s_add_u32 s28, s28, {32*3584}")
    if warm:
        e("s_mul_i32 s28, s4, 57344\ns_mul_i32 s29, s4, 14336")
        e.vmem("buffer_load_dword v80, v7, s[8:11], s28 offen", "t")
        e("v_and_b32 v4, 0x3fff, v7\ns_cmp_lt_u32 s3, 2\ns_cselect_b32 s64, s64, s68\ns_cselect_b32 s65, s65, s69\ns_cmp_lt_u32 s3, 4\ns_cselect_b32 s66, s66, 0")
        e.vmem("buffer_load_dword v81, v4, s[64:67], s29 offen", "t")
    for q in range(8): e(f"v_mov_b32 v{8+q}, 0")
    for i in range(14):
        e.vm_wait({("cs", i)})
        for q in range(4):
            e(f"v_lshlrev_b32 v72, 16, v{16+4*i+q}\nv_and_b32 v73, 0xffff0000, v{16+4*i+q}\nv_pk_add_f32 v[{8+2*q}:{9+2*q}], v[{8+2*q}:{9+2*q}], v[72:73]")
    e("v_lshlrev_b32 v3, 5, v2")
    e("ds_write_b128 v3, v[8:11]\nds_write_b128 v3, v[12:15] offset:16\ns_waitcnt lgkmcnt(0)")
    st(e, "acc")
    e("s_barrier")
    e("s_cmp_lg_u32 s3, 7\ns_cbranch_scc1 K_sp2")
    e("v_lshlrev_b32 v3, 3, v0\nv_add_u32 v9, 1, v6\nv_max_u32 v9, 1, v9\nv_mov_b32 v11, v9")
    for h in range(2):
        for i in range(16): e(f"ds_read_b64 v[{16+2*i}:{17+2*i}], v3 offset:{(16*h+i)*512}")
        e("s_waitcnt lgkmcnt(0)")
        if h == 0: e("v_mov_b32 v12, 0\nv_mov_b32 v13, 0")
        for i in range(16): e(f"v_pk_add_f32 v[12:13], v[12:13], v[{16+2*i}:{17+2*i}]")
    e(f"v_mov_b32 v8, v12\nv_mov_b32 v10, v13\nv_lshlrev_b32 v3, 4, v0\ns_lshl_b32 s30, s4, 10\ns_add_u32 s30, s30, {WS_CS}")
    e("buffer_store_dwordx4 v[8:11], v3, s[20:23], s30 offen sc1")
    e.label("K_sp2")
    e("s_barrier")
    e.label("K_sp4")
    if retouch:
        e("s_getpc_b64 s[28:29]")
        e.label("K_PC2")
        e(f"s_sub_u32 s28, s28, K_PC2-{name}\ns_subb_u32 s29, s29, 0\nv_min_u32 v7, ALL_END-{name}-4, v7\nglobal_load_dword v83, v7, s[28:29] sc1")
    e.label("K_sp3")
    st.dump(e); info["sp"] = st.names
    e.label("K_END")
    e("s_endpgm")
    e.label("ALL_END")
    return khead(name) + e.text(), kd(name, 256, 256), info

if __name__ == "__main__":
    import sys, json
    NAME = "recurrent_scan__ssm_conv_s5__glu_gated_reglu__prompt_kernel"
    stamps = "stamps" in sys.argv
    kw = {}
    for a in sys.argv[2:]:
        if "=" in a:
            k, v = a.split("="); kw[k] = int(v) if v.lstrip("-").isdigit() else v
    b, d, info = gen_fused(NAME, stamps=stamps, **kw)
    hdr = open("recurrent_scan__ssm_conv_s5__glu_gated_reglu__prompt.s.ref").read().split("; Override")[0]
    txt = hdr + f"; @launch grid=(256,1,1) block=(512,1,1) lds={LDS_BYTES}\n"
    if stamps and "rt" in sys.argv: txt += "; RT\n"
    if stamps: txt += "; STAMPS " + json.dumps(info) + "\n"
    txt += '.amdgcn_target "amdgcn-amd-amdhsa--gfx950"\n' + b + d
    open(sys.argv[1], "w").write(txt)
```

```python
from asmlib import *
from layout7 import *
import sys as _sys
APAD = int(([a[5:] for a in _sys.argv if a.startswith("apad=")] + ["0"])[0])
if APAD:
    A_W += APAD
    WS_AY = WS_END + (2 << 20); WS_AO = WS_AY + 32 * A_W
    WS_LIM = WS_AO + 64 * A_W
else:
    WS_LIM = WS_END
LDS_BYTES = 163840
RING = 114688
NR = 5
MISC = RING + NR * 8192
STAT = MISC
CSB = MISC + 1024
CSW = MISC + 2048
SUB = MISC + 3072
FLG = MISC + 7168
LOG2E = 0x3fb8aa3b
SPIN_MAX = 0x200000
UNIT = 114688
CH = 16384
import sys
PADAT = ([a[6:] for a in sys.argv if a.startswith('padat=')] + [''])[0]
TIMER = 's_memrealtime' if 'rt' in sys.argv else 's_memtime'
C0 = 2 * CH
SC = 4 * CH

def mfma(d, a, b, first=False):
    c = "0" if first else f"v[{d}:{d+15}]"
    return f"v_mfma_f32_32x32x16_bf16 v[{d}:{d+15}], v[{a}:{a+3}], v[{b}:{b+3}], {c}"

class Stamper:
    def __init__(self, on, vreg): self.on = on; self.n = 0; self.v = vreg; self.names = []
    def __call__(self, e, name=""):
        if PADAT and name == PADAT and self.v == 127: e("s_memrealtime s[100:101]")
        if not self.on: return
        e.lg0()
        e(f"v_writelane_b32 v{self.v}, s80, {self.n}\n{TIMER} s[80:81]")
        self.n += 1; self.names.append(name)
        assert self.n <= 60
    def dump(self, e):
        if not self.on: return
        e("s_waitcnt vmcnt(0)")
        self(e, "end"); self(e)
        e("s_memrealtime s[80:81]\ns_waitcnt lgkmcnt(0)")
        e(f"v_writelane_b32 v{self.v}, s96, 62\nv_writelane_b32 v{self.v}, s80, 63\ns_mov_b32 s80, {self.n}\nv_writelane_b32 v{self.v}, s80, 61")
        e(f"s_mov_b32 s22, {WS_END + (1<<20)}")
        e("s_lshl_b32 s82, s2, 3\ns_add_u32 s82, s82, s3\ns_lshl_b32 s82, s82, 8")
        e(f"s_add_u32 s82, s82, {WS_END}")
        e("v_lshlrev_b32 v1, 2, v0")
        e(f"buffer_store_dword v{self.v}, v1, s[20:23], s82 offen")

def spin(e, body, cond_ok, sleep=1):
    l = e.newlabel("SP")
    e("s_mov_b32 s95, 0")
    e.label(l)
    body()
    e(cond_ok)
    e(f"s_cbranch_scc1 {l}_ok")
    if sleep: e(f"s_sleep {sleep}")
    e(f"s_add_u32 s95, s95, 1\ns_cmp_lt_u32 s95, {SPIN_MAX}\ns_cbranch_scc1 {l}")
    e.label(l + "_ok")

def tau_of_lane(e, d, t):
    e(f"v_bfe_u32 v{d}, v0, 2, 1\nv_lshlrev_b32 v{d}, 4, v{d}\nv_bfe_u32 v{t}, v0, 3, 2\nv_lshl_add_u32 v{d}, v{t}, 2, v{d}\nv_and_b32 v{t}, 3, v0\nv_add_u32 v{d}, v{d}, v{t}")

def plan_slots():
    wslot = {n: ("r", ((n + 2) % NR) * 8192) for n in range(5)}
    issue = {}
    nxt = 5
    free = []
    for n in range(28):
        if n in (5, 9):
            c = (n >> 2) - 1
            free += [("c", c * CH), ("c", c * CH + 2048)]
        if n == 0: free.append(wslot[0])
        if n + 1 < 28: free.append(wslot[n + 1])
        issue[n] = []
        while free and nxt < 28 and len(issue[n]) < 2:
            wslot[nxt] = free.pop(0); issue[n].append(nxt); nxt += 1
    last = max(n for n in issue if issue[n])
    used_after = {}
    inv = {}
    for n in range(28): inv[wslot[n]] = n
    order = sorted(inv.items(), key=lambda x: x[1])
    wd = [(sl, n, 0) for sl, n in order]
    wd += [(("c", 6 * CH), 0, 7)] + [(("c", C0 + (i >> 1) * CH + (i & 1) * 2048), 0, 0) for i in range(4)]
    assert len(wd) == 14, len(wd)
    return wslot, issue, wd, last

def gen_fused(name, stamps=False, D0=3, pad=0, ra=0, kint=2, fine=1, sidle=0, sprio=3, sprio2=0, fprio=2, NA=20, pace=0, warm=1, ypre=9, ssl=1, ysl=3, t0=29, ywait=6, wsl=1, pxs=3072, ag1=1, adel=1, fgrp=2, xne=2, lw=0, psl=2, na0=99, dep=20, yprio=3, apad=0, ymode=0, ty=40, tpos=1, tfl='', retouch=0, xo=2, lp=1, cw=248, front=0, tlb=0, probe=0, late=0, rb_o=0, rb_y=0, padwg=-1, padat='', tr=47, gap=0, pt=0, pt0=15, ptn=7, noc=0, nowd=0, dwarm=0, outfl='nt', force=0, bulk=0):
    e = Em2()
    info = {}
    wslot, wissue, wdslot, wlast = plan_slots()
    def stores(ins_list, tag):
        for x in ins_list: e.vmem(x + " sc1", tag)
    def dual(ins_list, tag, on=True):
        if not on: return stores(ins_list, tag)
        l = e.newlabel("DS")
        e(f"s_cmp_eq_u32 s97, 2\ns_cbranch_scc1 {l}_l")
        for x in ins_list: e(x + " sc1")
        e(f"s_branch {l}_e")
        e.label(l + "_l")
        for x in ins_list: e.vmem(x, tag)
        e.label(l + "_e")
    def wd_setup(va, sr):
        e(f"v_lshrrev_b32 v{va}, 3, v0\nv_mul_u32_u24 v{va}, 0x380, v{va}\nv_bfe_u32 v{va+1}, v0, 4, 1\nv_lshlrev_b32 v{va+1}, 2, v{va+1}")
        e(f"v_and_b32 v1, 7, v0\nv_xor_b32 v1, v1, v{va+1}\nv_lshl_add_u32 v{va}, v1, 4, v{va}\nv_add_u32 v{va+1}, {16*896-1024}, v{va}")
        srd(e, sr, 56, 1792 * 896)
        e("s_lshl_b32 s98, s99, 1")
        e(f"s_mul_i32 s88, s4, {32*896}\ns_lshl_b32 s82, s91, 7\ns_add_u32 s88, s88, s82\ns_mul_i32 s82, s85, {7*UNIT}\ns_add_u32 s88, s88, s82")
        e(f"s_mul_i32 s64, s98, {UNIT}\ns_add_u32 s64, s64, s88\ns_add_u32 s88, s88, {7*UNIT}")
        for u in range(1, 7):
            e(f"s_add_u32 s{64+u}, s{63+u}, {UNIT}\ns_cmp_ge_u32 s{64+u}, s88\ns_cselect_b32 s82, {7*UNIT}, 0\ns_sub_u32 s{64+u}, s{64+u}, s82")
    def wd_dma(k, va, sr):
        kind, off = wdslot[k][0]
        e(f"s_add_u32 m0, s{89 if kind == 'c' else 79}, {off}\ns_add_u32 s82, s{64+(k>>1)}, {(k&1)*8*896}")
        e.vmem(f"buffer_load_dwordx4 v{va}, s[{sr}:{sr+3}], s82 offen lds", ("wd", k))
        e.vmem(f"buffer_load_dwordx4 v{va+1}, s[{sr}:{sr+3}], s82 offen offset:1024 lds", ("wd", k))
    def wd_half(k, hf):
        kind, off = wdslot[k][0]
        e(f"s_add_u32 m0, s{89 if kind == 'c' else 79}, {off}\ns_add_u32 s82, s{64+(k>>1)}, {(k&1)*8*896}")
        e.vmem(f"buffer_load_dwordx4 v{2+hf}, s[12:15], s82 offen" + (" offset:1024" if hf else "") + " lds", ("wd", k))
    def lds_wait(addr, off, cond, tmp, sleep=1):
        def body(): e(f"ds_read_b32 v{tmp}, v{addr} offset:{off}\ns_waitcnt lgkmcnt(0)\nv_readfirstlane_b32 s82, v{tmp}")
        spin(e, body, cond, sleep=sleep)
        e.lg = []
    if stamps: e(f"s_memrealtime s[96:97]\n{TIMER} s[80:81]")
    elif pad: e("s_memrealtime s[96:97]")
    e("s_load_dwordx16 s[32:47], s[0:1], 0")
    e("s_load_dwordx16 s[48:63], s[0:1], 64")
    e("v_readfirstlane_b32 s3, v0\ns_cmpk_lt_u32 s2, 224\ns_cbranch_scc1 K_MAIN")
    e(f"s_cmpk_lt_u32 s2, {cw}\ns_cbranch_scc1 K_SPARE\ns_getpc_b64 s[28:29]")
    e.label("K_PC")
    e("v_lshlrev_b32 v7, 7, v0\nv_min_u32 v7, ALL_END-K_PC-4, v7\nglobal_load_dword v83, v7, s[28:29]\ns_branch K_SPARE")
    e.label("K_MAIN")
    e("v_and_b32 v0, 63, v0\ns_lshr_b32 s3, s3, 6\ns_and_b32 s4, s3, 3\ns_and_b32 s5, s2, 3\ns_lshl_b32 s5, s5, 2\ns_bfe_u32 s99, s2, 0x20003\ns_add_u32 s5, s5, s99")
    e("s_lshr_b32 s91, s2, 5\nv_lshrrev_b32 v21, 5, v0\ns_lshl_b32 s89, s4, 12")
    def rot_off(d):
        if xo == 0:
            e(f"s_mul_i32 s{d}, s99, {ra}")
        else:
            tab = sum((((ra*(rb & 3) + xo*(rb >> 2)) % 7) << (4*rb)) for rb in range(16))
            e(f"s_mov_b32 s12, {tab & 0xffffffff}\ns_mov_b32 s13, {tab >> 32}\ns_lshl_b32 s{d}, s5, 2\ns_lshr_b64 s[12:13], s[12:13], s{d}\ns_and_b32 s{d}, s12, 7")
    def common2():
        e(f"s_bfe_u32 s85, s2, 0x10002\ns_mul_i32 s6, s85, 7\ns_add_u32 s6, s6, s91\ns_lshl_b32 s79, s4, 11\ns_add_u32 s79, s79, {RING}")
    def common3():
        e("v_and_b32 v20, 31, v0\nv_bfe_u32 v22, v0, 1, 3\nv_xor_b32 v22, v22, v21\nv_lshlrev_b32 v20, 7, v20")
    e("s_cmp_ge_u32 s3, 4")
    e("s_cbranch_scc1 K_S")

    st = Stamper(stamps, 127)
    e("v_bfe_u32 v6, v0, 3, 2\nv_and_b32 v9, 7, v0\nv_lshrrev_b32 v7, 4, v0\nv_xor_b32 v9, v9, v7\nv_lshlrev_b32 v9, 4, v9\nv_xor_b32 v7, 64, v9")
    e("v_lshl_add_u32 v5, v21, 4, v6\ns_movk_i32 s30, 0x380\nv_mad_u32_u24 v1, v5, s30, v9\nv_mad_u32_u24 v2, v5, s30, v7\ns_movk_i32 s31, 2560\nv_add_u32 v2, s31, v2")
    rot_off(10)
    e("s_add_u32 s7, s91, s10\ns_cmp_ge_u32 s7, 7\ns_cselect_b32 s10, 7, 0\ns_sub_u32 s7, s7, s10\ns_lshl_b32 s64, s7, 7")
    e("s_lshl_b32 s28, s5, 2\ns_add_u32 s28, s28, s4\ns_mulk_i32 s28, 28672\ns_lshl_b32 s31, s31, 1\nv_add_u32 v3, s31, v1\nv_add_u32 v4, s31, v2")
    e(f"s_mov_b32 s10, {2048*896}\ns_mov_b32 s11, 0x20000\ns_mov_b32 m0, s89\ns_add_u32 s83, s28, s64")
    e("s_waitcnt lgkmcnt(0)")
    st(e, "karg")
    e("s_mov_b32 s8, s32\ns_and_b32 s9, s33, 0xffff")
    for ii in range(4):
        e.vmem(f"buffer_load_dwordx4 v{1+ii}, s[8:11], s83 offen" + (f" offset:{ii*1024}" if ii else "") + " lds", ("x", 0))
    common2()
    e(f"v_lshl_add_u32 v6, v21, 3, v6\nv_mad_u32_u24 v5, v6, s30, v9\nv_mad_u32_u24 v6, v6, s30, v7\nv_add_u32 v6, {4*896-1024}, v6")
    e("s_lshl_b32 s29, s6, 1\ns_and_b32 s30, s4, 1\ns_add_u32 s29, s29, s30\ns_mulk_i32 s29, 14336")
    e(f"s_cmp_lt_u32 s4, 2\ns_cselect_b32 s12, s38, s40\ns_cselect_b32 s13, s39, s41\ns_and_b32 s13, s13, 0xffff\ns_mov_b32 s14, {448*896}\ns_mov_b32 s15, 0x20000")
    e("s_mov_b32 m0, s79\ns_add_u32 s83, s29, s64")
    e.vmem("buffer_load_dwordx4 v5, s[12:15], s83 offen lds", ("x", 0))
    e.vmem("buffer_load_dwordx4 v6, s[12:15], s83 offen offset:1024 lds", ("x", 0))
    e(f"s_setprio {fprio}")
    for c in range(1, 7):
        e(f"s_add_u32 s{64+c}, s{63+c}, 128\ns_cmp_ge_u32 s{64+c}, 896\ns_cselect_b32 s{64+c}, 0, s{64+c}")
    def xb_burst(c):
        e(f"s_add_u32 m0, s89, {c*CH}\ns_add_u32 s83, s28, s{64+c}")
        for ii in range(4):
            e.vmem(f"buffer_load_dwordx4 v{1+ii}, s[8:11], s83 offen" + (f" offset:{ii*1024}" if ii else "") + " lds", ("x", c))
        e(f"s_add_u32 m0, s79, {(c % NR)*8192}\ns_add_u32 s83, s29, s{64+c}")
        e.vmem("buffer_load_dwordx4 v5, s[12:15], s83 offen lds", ("x", c))
        e.vmem("buffer_load_dwordx4 v6, s[12:15], s83 offen offset:1024 lds", ("x", c))
    if D0 > 1: xb_burst(1)
    if probe:
        st(e, "iss0")
        e("s_waitcnt vmcnt(5)")
        st(e, "land1")
        e("s_waitcnt vmcnt(0)")
        st(e, "land0")
    srd(e, 20, 62, WS_LIM)
    e(f"v_mov_b32 v120, 0\ns_mov_b32 s82, {WS_EP}")
    def ep_load():
        e(f"s_mov_b32 s82, {WS_EP}\ns_mov_b64 exec, 1")
        e.vmem("buffer_load_dword v120, v120, s[20:23], s82 offen sc1", "ep")
        e("s_mov_b64 exec, -1")
    if not late: ep_load()
    e(f"v_mov_b32 v124, 0\nv_mov_b32 v125, 0\ns_lshl_b32 s31, s4, 9\ns_add_u32 s31, s31, {SUB}\nv_lshl_add_u32 v8, v0, 3, s31")
    e.lds("ds_write_b64 v8, v[124:125]")
    e(f"v_lshlrev_b32 v8, 2, v0\nv_add_u32 v8, {FLG}, v8")
    e.lds("ds_write_b32 v8, v124")
    e("v_lshrrev_b32 v23, 4, v0\nv_and_b32 v20, 15, v0\nv_bfe_u32 v10, v0, 1, 3\nv_xor_b32 v10, v10, v23\nv_lshlrev_b32 v10, 4, v10\nv_lshl_add_u32 v10, v20, 7, v10")
    e("v_xor_b32 v11, 64, v10\nv_add_u32 v12, 0x10000, v10\nv_add_u32 v13, 0x10000, v11")
    srd(e, 16, 52, 448 * 3584)
    srd(e, 24, 54, 448 * 3584)
    e("s_lshl_b32 s31, s6, 8\ns_lshl_b32 s82, s4, 6\ns_add_u32 s31, s31, s82")
    for c in range(7): e(f"s_mul_i32 s{72+c}, s{64+c}, 1792\ns_add_u32 s{72+c}, s{72+c}, s31")
    e("v_bfe_u32 v8, v0, 2, 2\nv_lshl_add_u32 v7, v23, 3, v8\nv_mul_u32_u24 v7, 0xe00, v7\nv_and_b32 v22, 1, v23\nv_lshlrev_b32 v9, 1, v22\nv_and_b32 v14, 3, v0\nv_xor_b32 v9, v9, v14\nv_lshl_add_u32 v7, v9, 4, v7")
    e("v_lshrrev_b32 v9, 2, v0\nv_lshlrev_b32 v9, 6, v9\nv_lshl_add_u32 v9, v22, 5, v9\nv_lshl_add_u32 v9, v14, 3, v9\nv_add_u32 v125, s89, v9\nv_add_u32 v9, s79, v9\nv_xor_b32 v14, 32, v9\nv_xor_b32 v15, 32, v125")
    e("v_lshlrev_b32 v17, 12, v21\nv_lshl_add_u32 v17, v22, 9, v17\nv_lshl_add_u32 v17, v20, 4, v17")
    e("v_lshlrev_b32 v18, 4, v0")
    e(f"s_lshl_b32 s31, s4, 2\ns_add_u32 s31, s31, {FLG}\nv_mov_b32 v19, s31")
    e(f"s_lshl_b32 s31, s4, 8\ns_add_u32 s31, s31, {CSW}\nv_lshl_add_u32 v122, v23, 4, s31")
    e("v_bfe_u32 v123, v0, 2, 1\nv_lshlrev_b32 v123, 4, v123\nv_bfe_u32 v8, v0, 3, 1\nv_lshl_add_u32 v123, v8, 2, v123\nv_and_b32 v8, 3, v0\nv_add_u32 v123, v123, v8")
    e(f"v_lshlrev_b32 v123, 2, v123\nv_add_u32 v123, {STAT}, v123\nv_mov_b32 v8, {FLG}")
    e(f"s_lshl_b32 s92, s5, 2\ns_add_u32 s92, s92, s4\ns_mul_i32 s92, s92, {A_W}\ns_add_u32 s92, s92, {WS_AO}\ns_lshl_b32 s31, s6, 13\ns_add_u32 s86, s92, s31\ns_add_u32 s87, s86, 4096")
    if probe: st(e, "setup")
    for c in range(2, D0): xb_burst(c)
    ptl = list(range(64)) if pt else []
    def pretouch(n):
        for _ in range(n):
            if ptl: e(f"s_load_dword s100, s[46:47], {ptl.pop(0) * 128}")
    if pt:
        e.lg0()
        e("s_add_u32 s46, s62, s86\ns_addc_u32 s47, s63, 0")
        pretouch(pt0)
    def dma_parts(kd_, a1, a2):
        if kd_ == "w":
            c, jj = a1 >> 2, a1 & 3
            kind, off = wslot[a1]
            return (f"s_add_u32 m0, s{89 if kind == 'c' else 79}, {off + a2*1024}\ns_add_u32 s83, s{72+c}, {(32*(jj >> 1) + 4*(jj & 1))*3584}",
                    f"buffer_load_dwordx4 v7, s[{16+8*a2}:{19+8*a2}], s83 offen lds", ("w", a1))
        if kd_ == "d":
            kind, off = wdslot[a1][0]
            return (f"s_add_u32 m0, s{89 if kind == 'c' else 79}, {off}\ns_add_u32 s83, s{64+(a1>>1)}, {(a1&1)*8*896}",
                    f"buffer_load_dwordx4 v{2+a2}, s[12:15], s83 offen" + (" offset:1024" if a2 else "") + " lds", ("wd", a1))
        return (f"s_add_u32 m0, s89, {C0 + (a1 >> 2)*CH + (a1 & 2)*1024}\ns_add_u32 s83, s{28 if a1 < 8 else 94}, {((a1 & 7) >> 1)*16*896}",
                f"buffer_load_dwordx4 v{5 + (a1 & 1)}, s[8:11], s83 offen" + (" offset:1024" if a1 & 1 else "") + " lds", ("c", a1 >> 3))
    def w_issue(n, mt):
        a, b, t = dma_parts("w", n, mt)
        e(a); e.vmem(b, t)
    def wreads(m):
        kind, wo = wslot[m]
        ws_ = 24 + 16*((m >> 1) & 1) + 2*(m & 1)
        return [(f"ds_read_b64_tr_b16 v[{ws_+8*mt+4*ft}:{ws_+8*mt+4*ft+1}], v{((125, 15) if kind == 'c' else (9, 14))[ft]} offset:{wo + mt*1024}", ("W", m)) for mt in range(2) for ft in range(2)]
    def xread(q):
        d, tt = q >> 3, q & 7; c = d >> 1
        r = 56 + 4*(q % 4)
        return (f"ds_read_b128 v[{r}:{r+3}], v{10 + (d & 1) + (2 if c >= 4 else 0)} offset:{(c & 3)*CH + tt*2048}", ("X", q))
    for sg in range(8):
        tags = {("x", sg)}
        eps = 7 if late else 1
        if sg == eps: tags.add("ep")
        e.vm_wait(tags)
        if sg == 0 and not pt: e.lg0()
        if sg == 7:
            e.vm_wait({("w", 1)})
            for s, t in wreads(0) + wreads(1) + [xread(q) for q in range(3)]: e.lds(s, t)
        if not pt or sg == 7: st(e, f"b{sg}")
        e("s_barrier")
        if sg + D0 < 7: xb_burst(sg + D0)
        if 3 <= sg < 7:
            w_issue(sg - 3, 0); w_issue(sg - 3, 1)
        if late and sg == 4: ep_load()
        if sg == eps: e("v_readfirstlane_b32 s84, v120\ns_add_u32 s84, s84, 1\ns_max_u32 s84, s84, 1")
        if sg < 7: pretouch(ptn)
        if sg == 5: wd_setup(2, 12)
        if sg == 6:
            e(f"s_bitcmp1_b32 s4, 1\ns_cselect_b32 s8, s44, s42\ns_cselect_b32 s9, s45, s43\ns_and_b32 s9, s9, 0xffff\ns_mov_b32 s10, {448*896}")
            e(f"s_mul_i32 s29, s91, {64*896}\ns_and_b32 s30, s4, 1\ns_lshl_b32 s28, s85, 2\ns_add_u32 s94, s28, 2\ns_add_u32 s28, s28, s30\ns_cmp_eq_u32 s30, 0\ns_cselect_b32 s94, s94, 3")
            e("s_lshl_b32 s28, s28, 7\ns_add_u32 s28, s28, s29\ns_lshl_b32 s94, s94, 7\ns_add_u32 s94, s94, s29")
            e("v_lshrrev_b32 v4, 3, v0\nv_mul_u32_u24 v4, 0x380, v4\nv_and_b32 v5, 7, v0\nv_lshrrev_b32 v6, 4, v0\nv_xor_b32 v5, v5, v6\nv_lshlrev_b32 v5, 4, v5")
            e(f"v_xor_b32 v6, 64, v5\nv_add_u32 v5, v4, v5\nv_add_u32 v6, v4, v6\nv_add_u32 v6, {8*896-1024}, v6")
    assert not ptl
    w_issue(4, 0); w_issue(4, 1)
    CS = 72; T = 104
    cs_rd = [("ds_read_b32 v121, v19 offset:16", "cs")] + [(f"ds_read_b32 v{88+tt}, v123 offset:{(tt >> 1)*128 + (tt & 1)*32}", "cs") for tt in range(8)]
    cs_rd += [(f"ds_read_b128 v[{CS+8*mt+4*ft}:{CS+8*mt+4*ft+3}], v122 offset:{mt*128 + ft*64}", "cs") for mt in range(2) for ft in range(2)]
    p2 = []
    def p_(s): p2.extend(s.split("\n"))
    p_("v_bfe_u32 v112, v0, 2, 2\nv_lshrrev_b32 v113, 5, v0\nv_lshl_add_u32 v113, v113, 2, v112\nv_lshlrev_b32 v113, 7, v113")
    p_("s_lshr_b32 s31, s4, 1\nv_lshrrev_b32 v112, 1, v112\nv_xor_b32 v112, s31, v112\nv_lshl_add_u32 v113, v112, 6, v113")
    p_("v_bfe_u32 v112, v0, 4, 1\nv_lshl_add_u32 v113, v112, 5, v113\nv_and_b32 v112, 3, v0\nv_lshl_add_u32 v113, v112, 3, v113\nv_xor_b32 v112, 64, v113")
    p_(f"s_lshl_b32 s30, s31, 13\ns_lshl_b32 s31, s31, 12\ns_add_u32 s31, s31, {RING}")
    p_("v_add_u32 v108, s30, v113\nv_add_u32 v109, s30, v112\nv_add_u32 v110, s31, v113\nv_add_u32 v111, s31, v112\nv_add_u32 v112, 0x10000, v108\nv_add_u32 v113, 0x10000, v109")
    p_(f"s_lshl_b32 s93, s5, 1\ns_add_u32 s93, s93, s85\ns_lshl_b32 s93, s93, 10\ns_add_u32 s93, s93, {WS_FO}")
    p_(f"s_and_b32 s31, s4, 1\ns_mul_i32 s31, s31, {A_W}\ns_sub_u32 s92, s92, s31")
    p_(f"s_mul_i32 s31, s85, {7*8192}\ns_add_u32 s92, s92, s31")
    p_(f"s_lshl_b32 s90, s98, 13\ns_add_u32 s90, s90, s92\ns_add_u32 s92, s92, {7*8192}\ns_add_u32 s71, s90, {A_W}")
    p_("s_lshl_b32 s29, s85, 6\ns_and_b32 s31, s4, 1\ns_lshl_b32 s31, s31, 5\ns_add_u32 s29, s29, s31\ns_lshl_b32 s30, s5, 7\ns_add_u32 s30, s30, s29")
    p_(f"v_lshlrev_b32 v117, 4, v21\nv_add_u32 v114, s30, v117\ns_lshl_b32 s29, s29, 2\ns_add_u32 s29, s29, {STAT}\nv_lshl_add_u32 v117, v117, 2, s29")
    p_("s_lshl_b32 s29, s91, 6\ns_lshr_b32 s31, s4, 1\ns_lshl_b32 s31, s31, 5\ns_add_u32 s29, s29, s31\nv_and_b32 v115, 31, v0\nv_add_u32 v115, s29, v115")
    p_("v_mul_u32_u24 v114, 0x380, v114\nv_lshlrev_b32 v115, 1, v115\nv_add_u32 v114, v114, v115\nv_lshlrev_b32 v116, 1, v114")
    for q in range(1, 8): p_(f"s_movk_i32 s{32+q}, {q*3584}")
    p_(f"s_mul_i32 s40, s5, 7\ns_add_u32 s40, s40, s91\ns_lshl_b32 s40, s40, 1\ns_add_u32 s40, s40, s85\ns_lshl_b32 s40, s40, 2\ns_add_u32 s40, s40, s4\ns_xor_b32 s41, s40, 4\ns_mul_i32 s40, s40, {pxs}\ns_mul_i32 s41, s41, {pxs}\ns_add_u32 s40, s40, {WS_PX + 896*pxs}\ns_add_u32 s41, s41, {WS_PX + 896*pxs}")
    slow = []; slow2 = []; slow3 = []
    csq_ = list(cs_rd)
    for n in range(28):
        d = n >> 1
        wr = wreads(n + 2) if n + 2 < 28 else []
        dq = [("w", m, mt) for m in wissue[n] for mt in range(2)]
        for k in range(9):
            if wdslot[k][1] - 1 == n: dq += [("d", k, 0), ("d", k, 1)]
        if 13 <= n <= 26: dq.append(("c", n - 13, 0))
        if n == 27: dq += [("c", 14, 0), ("c", 15, 0)]
        assert len(dq) <= 4
        grp = {0: (), 1: (2,), 2: (1, 3), 3: (1, 2, 3), 4: (0, 1, 2, 3)}[len(dq)]
        cur = None
        for i in range(16):
            j, k4 = i >> 2, i & 3
            q = 4*n + j; tt = q & 7
            mt, ft = k4 >> 1, k4 & 1
            if k4 == 0:
                tg = {("X", q)}
                if j == 0: tg |= {("W", n + 1), ("W", n)}
                nv = e.vm_need({("w", n + 2)}) if j == 0 else None
                idx = [x for x, y in enumerate(e.lg) if y in tg]
                parts = []
                if nv is not None:
                    parts.append(f"vmcnt({nv})"); e.vm = e.vm[len(e.vm) - nv:] if nv else []
                if idx:
                    nl = min(15, len(e.lg) - 1 - idx[-1]); parts.append(f"lgkmcnt({nl})"); e.lg = e.lg[len(e.lg) - nl:] if nl else []
                if parts: e("s_waitcnt " + " ".join(parts))
            dd = 128 + 64*mt + 8*tt + 4*ft
            a_ = 24 + 16*(d & 1) + 8*mt + 4*ft; b_ = 56 + 4*(q % 4)
            e(f"v_mfma_f32_16x16x32_bf16 v[{dd}:{dd+3}], v[{a_}:{a_+3}], v[{b_}:{b_+3}], " + ("0" if d == 0 else f"v[{dd}:{dd+3}]"))
            extra = True
            if k4 == 0:
                if q + 3 < 112: e.lds(*xread(q + 3))
                if j < 2 and wr: e.lds(*wr.pop(0)); extra = False
            elif k4 == 1:
                if n in (5, 9, 13, 17, 21, 25) and j == 0:
                    l = e.newlabel("PG")
                    e(f"v_readfirstlane_b32 s82, v104\ns_cmp_lt_u32 s82, {n >> 2}\ns_cbranch_scc1 {l}")
                    e.label(l + "_r")
                    slow.append((l, n >> 2)); extra = False
                elif wr: e.lds(*wr.pop(0))
                if j == 3 and (n & 3) == 3:
                    if n == 23: e.vm_wait({("c", 0)})
                    e(f"v_mov_b32 v126, {(n >> 2) + 1}")
                    e.lds("ds_write_b32 v19, v126"); extra = False
                if n in (4, 8, 12, 16, 20, 24):
                    if j == 1: e.lds("ds_read_b128 v[104:107], v8", "pg"); extra = False
                    if j == 3:
                        e.lg_wait({"pg"})
                        e("v_min_u32 v104, v104, v105\nv_min3_u32 v104, v104, v106, v107"); extra = False
            elif k4 == 2 and j in grp:
                cur = dma_parts(*dq.pop(0)); e(cur[0]); extra = False
            elif k4 == 3 and j in grp:
                e.vmem(cur[1], cur[2]); extra = False
            if extra:
                if n == 27 and csq_: e.lds(*csq_.pop(0))
                elif n >= 1 and p2 and k4 in (1, 2): e(p2.pop(0))
        assert not wr and not dq
        if (fine and (n & 3) == 3) or n == 27: st(e, f"k{n}")
    for x in csq_: e.lds(*x)
    assert not p2
    e.lg0()
    e("v_readfirstlane_b32 s97, v121\ns_cmp_lg_u32 s97, 0\ns_cbranch_scc1 K_csok")
    def body():
        for s, t in cs_rd: e(s)
        e("s_waitcnt lgkmcnt(0)\nv_readfirstlane_b32 s97, v121")
    spin(e, body, "s_cmp_lg_u32 s97, 0")
    e.label("K_csok")
    st(e, "cs")
    for g in range(8):
        G, U = 128 + 8*g, 192 + 8*g
        mp = 88 + (g & 6)
        sel = ("op_sel:[0,1,0] op_sel_hi:[1,1,1]" if g & 1 else "op_sel_hi:[1,0,1]") + " neg_lo:[1,0,0] neg_hi:[1,0,0]"
        if True:
            tt = 24 + 4 * g
            rs = range(0, 8, 2)
            if g == 7:
                e.lds("ds_read_b128 v[104:107], v8", "pg")
                e.lds("ds_read_b32 v121, v8 offset:88", "pg")
            for r in rs:
                e(f"v_pk_fma_f32 v[{G+r}:{G+r+1}], v[{CS+r}:{CS+r+1}], v[{mp}:{mp+1}], v[{G+r}:{G+r+1}] {sel}")
                e(f"v_pk_fma_f32 v[{U+r}:{U+r+1}], v[{CS+8+r}:{CS+9+r}], v[{mp}:{mp+1}], v[{U+r}:{U+r+1}] {sel}")
            for r in rs: e(f"v_max_f32 v{G+r}, 0, v{G+r}\nv_max_f32 v{G+r+1}, 0, v{G+r+1}")
            for r in rs: e(f"v_pk_mul_f32 v[{G+r}:{G+r+1}], v[{G+r}:{G+r+1}], v[{U+r}:{U+r+1}]")
            for r in rs: e(f"v_cvt_pk_bf16_f32 v{tt + (r >> 1)}, v{G+r}, v{G+r+1}")
            stores([f"buffer_store_dwordx4 v[{tt}:{tt+3}], v17, s[20:23], s86 offen offset:{(g >> 1)*1024 + (g & 1)*256}"], "hh")
            if g == 7:
                e.vm_wait({("c", 1)})
                e.lds("ds_write_b32 v19, v126 offset:32")
                e.lg_wait({"pg"})
                l = e.newlabel("PG")
                e(f"v_min_u32 v104, v104, v105\nv_min3_u32 v104, v104, v106, v107\ns_nop 0\nv_readfirstlane_b32 s82, v104\ns_cmp_lt_u32 s82, 7\ns_cbranch_scc1 {l}")
                e.label(l + "_r")
                slow.append((l, 7))
    l = e.newlabel("CP")
    e(f"v_readfirstlane_b32 s82, v121\ns_cmp_lt_u32 s82, 4\ns_cbranch_scc1 {l}")
    e.label(l + "_r")
    slow2.append((l, 8, 88, "s_cmp_ge_u32 s82, 4"))
    st(e, "epi")
    e("s_setprio 0")
    XR, MR, RR = 56, 72, 88
    for q in range(4 if NA < 28 else 0):
        e.lds(f"ds_read_b128 v[{RR+4*q}:{RR+4*q+3}], v117 offset:{512+16*q}")
    e("s_and_b32 s31, s4, 1\ns_xor_b32 s30, s85, 1\ns_lshl_b32 s30, s30, 1\ns_add_u32 s31, s31, s30\ns_lshl_b32 s31, s31, 10\nv_add_u32 v10, s31, v18\nv_add_u32 v11, 0x1000, v10")
    e("s_lshl_b32 s31, s91, 7\ns_lshl_b32 s30, s4, 2\ns_add_u32 s31, s31, s30\nv_mov_b32 v16, s31\nv_mov_b32 v17, s84")
    e("v_and_b32 v14, 7, v0\nv_min_u32 v14, 6, v14\nv_lshlrev_b32 v14, 7, v14\nv_bfe_u32 v15, v0, 3, 1\nv_lshl_add_u32 v14, v15, 2, v14\ns_and_b32 s30, s30, 8\nv_add_u32 v14, s30, v14")
    e(f"s_add_u32 s31, s89, {SC}\nv_add_u32 v4, s31, v18\nv_xor_b32 v5, 0x2000, v4\nv_xor_b32 v6, 8, v19\nv_xor_b32 v9, 4, v19\nv_add_u32 v7, {6*CH + 2048 - SC}, v4")
    srd(e, 16, 58, 2048 * 1792)
    e.lg0()
    for r in range(16 if NA < 28 else 0): e(f"v_mul_f32 v{RR+r}, v{RR+r}, v{RR+r}")
    e.vm0()
    e("s_mov_b64 exec, 1")
    dual(["buffer_store_dword v17, v16, s[20:23], s93 offen"], "fl")
    e("s_mov_b64 exec, -1")
    st(e, "hhflag")
    if rb_o:
        for g in range(8): e(f"buffer_load_dwordx4 v[{192+4*g}:{195+4*g}], v18, s[20:23], s{86 + (g >> 2)} offen offset:{(g & 3)*1024} sc1")
    if not lw:
        for k in range(9, 14): wd_dma(k, 2, 12)
    e("s_mov_b64 exec, 0xffff")
    def body():
        e("buffer_load_dword v17, v14, s[20:23], s93 offen sc1\ns_waitcnt vmcnt(0)\nv_cmp_eq_u32 vcc, s84, v17\ns_nop 1")
    spin(e, body, "s_cmp_eq_u64 vcc, exec", sleep=psl)
    e("s_mov_b64 exec, -1")
    e.vm = []
    if not lw: e.lds("ds_write_b32 v19, v126 offset:112")
    st(e, "hhseen")
    NT = 56
    def areg(t):
        if NA == 28: return 56 + 4*(t % 28) if t % 28 < 12 else 192 + 4*(t % 28 - 12)
        return 192 + 4*(t % NA) if t % NA < 16 else MR + 4*(t % NA - 16)
    def a_issue(t):
        sub = t & 3
        if sub == 0 and t > 0:
            e(f"s_add_u32 s90, s90, 8192\ns_cmp_ge_u32 s90, s92\ns_cselect_b32 s82, {7*8192}, 0\ns_sub_u32 s90, s90, s82")
            if t == 28: e("v_xor_b32 v10, 0x800, v10\nv_xor_b32 v11, 0x800, v11")
            e(f"s_add_u32 s71, s90, {A_W}")
        r = areg(t)
        e.vmem(f"buffer_load_dwordx4 v[{r}:{r+3}], v{10 + (sub & 1)}, s[20:23], s{71 if sub >> 1 else 90} offen sc1", ("A", t))
    def breg(t): return 24 + 8*(t % 4)
    def b_list(t):
        u = (t % 28) >> 2; sub = t & 3
        kind, off = wdslot[2*u + (sub & 1)][0]
        if kind == "r": bs = (110, 111); off += (sub >> 1) * 2048
        else:
            off += (sub >> 1) * 4096
            bs = (108, 109)
            if off >= 4*CH: bs = (112, 113); off -= 65536
        r = breg(t)
        return [(f"ds_read_b64_tr_b16 v[{r+4*b+2*u2}:{r+4*b+2*u2+1}], v{bs[b]} offset:{off + u2*1024}", ("B", t)) for b in range(2) for u2 in range(2)]
    ai = [0]
    def a_next(lim):
        if ai[0] < min(lim, NT): a_issue(ai[0]); ai[0] += 1
    for t in range(min(na0, NA - 1)): a_next(NT)
    for t in range(3):
        for s, tg in b_list(t): e.lds(s, tg)
    FO, OW = 128, 160
    side = []
    PK = XR if NA < 28 else FO + 16
    def S_(f): side.append(f)
    def both_wait(t):
        nv = e.vm_need({("A", t)})
        idx = [i for i, x in enumerate(e.lg) if x == ("B", t)]
        parts = []
        if nv is not None:
            parts.append(f"vmcnt({nv})"); e.vm = e.vm[len(e.vm) - nv:] if nv else []
        if idx:
            nl = min(15, len(e.lg) - 1 - idx[-1]); parts.append(f"lgkmcnt({nl})"); e.lg = e.lg[len(e.lg) - nl:] if nl else []
        if parts: e("s_waitcnt " + " ".join(parts))
    RV = 224 if NA == 16 else 192
    YV = FO
    def recv_one(g, dst, sb): e(f"buffer_load_dwordx4 v[{dst+4*g}:{dst+4*g+3}], v18, s[20:23], s{sb} offen offset:{g*1024} sc1")
    e(f"s_sub_u32 s42, s40, {896*pxs}")
    nop = lambda: None
    for t in range(NT):
        acc = FO if t < 28 else OW
        def mkchk(tag, pfx, cond_bad, addr, off, cond_ok):
            def chk():
                e.lg_wait({tag})
                l = e.newlabel(pfx)
                e(f"v_readfirstlane_b32 s82, v121\n{cond_bad}\ns_cbranch_scc1 {l}")
                e.label(l + "_r")
                slow2.append((l, addr, off, cond_ok))
            return chk
        if lw and t == lw + 1: S_(lambda: (e.vm_wait({("wd", 13)}), e.lds("ds_write_b32 v19, v126 offset:112")))
        if t == 11: S_(lambda: e.lds("ds_read_b32 v121, v9 offset:112", "wl"))
        if t == 13: S_(mkchk("wl", "WL", "s_cmp_eq_u32 s82, 0", 9, 112, "s_cmp_lg_u32 s82, 0"))
        if t == 24: S_(lambda: e.lds("ds_read_b32 v121, v8 offset:84", "yx"))
        if t == 27:
            def chk():
                e.lg_wait({"yx"})
                l = e.newlabel("YX")
                e(f"v_readfirstlane_b32 s82, v121\ns_cmp_lt_u32 s82, 4\ns_cbranch_scc1 {l}")
                e.label(l + "_r")
                slow2.append((l, 8, 84, "s_cmp_ge_u32 s82, 4"))
            S_(chk)
        if t == t0:
            S_(nop)
            for g in range(0, 4, 2):
                def wr(g=g):
                    for gg in (g, g + 1): e.lds(f"ds_write_b128 v4, v[{FO+16+4*gg}:{FO+19+4*gg}] offset:{CH + gg*1024}")
                    if g == 2: e.lds("ds_write_b32 v19, v126 offset:48")
                S_(wr)
        if t == t0 + 3:
            def rdx():
                e.lds("ds_read_b32 v121, v6 offset:48", "ex")
                for g in range(4): e.lds(f"ds_read_b128 v[{FO+16+4*g}:{FO+19+4*g}], v5 offset:{CH + g*1024}", "ex")
            S_(rdx)
        if t == t0 + 5:
            def chk2():
                e.lg_wait({"ex"})
                l = e.newlabel("PX")
                e(f"v_readfirstlane_b32 s82, v121\ns_cmp_eq_u32 s82, 0\ns_cbranch_scc1 {l}")
                e.label(l + "_r")
                slow3.append(l)
                e.lds("ds_write_b32 v19, v126 offset:64")
            S_(chk2)
            for g in range(4):
                S_(lambda g=g: [e(f"v_add_f32 v{FO+r}, v{FO+r}, v{FO+16+r}") for r in range(4*g, 4*g + 4)])
                if g >= 1:
                    def snd(q=g-1):
                        for j in range(3):
                            p = 3*q + j
                            e(f"v_cvt_pk_bf16_f32 v{PK+4*q+j}, v{FO+2*p}, v{FO+2*p+1}" if p < 8 else f"v_mov_b32 v{PK+4*q+j}, s84")
                        e(f"v_mov_b32 v{PK+4*q+3}, s84")
                        stores([f"buffer_store_dwordx4 v[{PK+4*q}:{PK+4*q+3}], v18, s[20:23], s41 offen offset:{q*1024}"], "px")
                    S_(snd)
                for _ in range(gap): S_(nop)
        if t == 40:
            S_(lambda: e.lds("ds_read_b32 v121, v19 offset:128", "yd"))
            S_(mkchk("yd", "YD", "s_cmp_eq_u32 s82, 0", 19, 128, "s_cmp_lg_u32 s82, 0"))
            S_(lambda: [e.lds(f"ds_read_b128 v[{MR+4*g}:{MR+3+4*g}], v4 offset:{g*1024}", "sx") for g in range(4)])
            S_(lambda: [e.lds(f"ds_read_b128 v[{104+4*g if g == 0 else 12}:{107+4*g if g == 0 else 15}], v7 offset:{g*1024}", "sx") for g in range(2)])
            S_(lambda: e.lds("ds_read_b32 v121, v6 offset:64", "sx"))
            S_(nop if NA < 28 else (lambda: [e.lds(f"ds_read_b128 v[{RR+4*q}:{RR+4*q+3}], v117 offset:{512+16*q}", "sx") for q in range(4)]))
            for g in range(4):
                def ux(g=g):
                    if g == 0: e.lg_wait({"sx"})
                    for r in (2*g, 2*g + 1):
                        src = 104 + r if r < 4 else 12 + r - 4
                        e(f"v_lshlrev_b32 v{XR+2*r}, 16, v{src}\nv_and_b32 v{XR+2*r+1}, 0xffff0000, v{src}")
                S_(ux)
            if NA == 28:
                for g in range(4): S_(lambda g=g: [e(f"v_mul_f32 v{RR+r}, v{RR+r}, v{RR+r}") for r in range(4*g, 4*g + 4)])
        if t == ty: S_(lambda: [(recv_one(gg, YV, 42), e.vm.append("ry")) for gg in range(3)])
        if t == tr:
            S_(lambda: [(recv_one(gg, RV, 40), e.vm.append("rv")) for gg in range(3)])
        both_wait(t)
        bl = b_list(t + 3) if t + 3 < NT else []
        for b in range(2):
            e(mfma(acc + 16*b, areg(t), breg(t) + 4*b, t % 28 == 0))
            a_next(t + dep)
            for s, tg in bl[2*b:2*b + 2]: e.lds(s, tg)
            if side: side.pop(0)()
        if t == 27: st(e, "ofor")
        if fine > 1 and t in (0, 6, 13, 20, 34, 39, 44, 50): st(e, f"t{t}")
    assert not side
    def recv_check(dst):
        e(f"v_min3_u32 v1, s84, v{dst+3}, v{dst+7}\nv_max3_u32 v2, s84, v{dst+3}, v{dst+7}\nv_min_u32 v1, v1, v{dst+11}\nv_max_u32 v2, v2, v{dst+11}")
        e("v_cmp_eq_u32 vcc, v1, v2\ns_nop 1")
    def recv_finish(dst, sb, tag):
        l = e.newlabel("RV")
        e.vm_wait({tag})
        recv_check(dst)
        e(f"s_cmp_eq_u64 vcc, -1\ns_cbranch_scc1 {l}")
        def body():
            for g in range(3): recv_one(g, dst, sb)
            e("s_waitcnt vmcnt(0)")
            recv_check(dst)
        spin(e, body, "s_cmp_eq_u64 vcc, -1", sleep=1)
        e.label(l)
        for p in range(8): e(f"v_lshlrev_b32 v{dst+16+2*p}, 16, v{dst+4*(p//3)+p%3}\nv_and_b32 v{dst+17+2*p}, 0xffff0000, v{dst+4*(p//3)+p%3}")
    e.lg0()
    st(e, "oloop")
    l = e.newlabel("RX")
    e(f"v_readfirstlane_b32 s82, v121\ns_cmp_eq_u32 s82, 0\ns_cbranch_scc1 {l}")
    e.label(l + "_r")
    slow2.append((l, 6, 64, "s_cmp_lg_u32 s82, 0"))
    e("s_mov_b32 s28, 0xbfb8aa3b\ns_mov_b32 s29, 0xbfb8aa3b\ns_nop 5")
    for g in range(4): e(f"ds_write_b128 v4, v[{OW+16+4*g}:{OW+19+4*g}] offset:{CH + g*1024}")
    pk = lambda op, d, a, b, x="": e(f"v_pk_{op}_f32 v[{d}:{d+1}], v[{a}:{a+1}], {b} {x}".rstrip())
    R2 = range(0, 16, 2)
    O, PB, EX = OW, OW + 16, 24
    recv_finish(YV, 42, "ry")
    for r in R2: pk("add", MR+r, MR+r, f"v[{YV+16+r}:{YV+17+r}]")
    e.lg0()
    e("s_barrier")
    st(e, "fbar")
    for g in range(4): e(f"ds_read_b128 v[{EX+4*g}:{EX+3+4*g}], v5 offset:{CH + g*1024}")
    recv_finish(RV, 40, "rv")
    st(e, "orecv")
    for r in R2: pk("add", O+r, O+r, f"v[{RV+16+r}:{RV+17+r}]")
    e("s_waitcnt lgkmcnt(0)")
    for r in R2: pk("add", O+r, O+r, f"v[{EX+r}:{EX+r+1}]")
    for gi in range(fgrp):
        G1_ = range(gi*16//fgrp, (gi+1)*16//fgrp); G2_ = G1_[::2]
        for r in G2_: pk("mul", O+r, O+r, f"v[{RR+r}:{RR+r+1}]")
        for r in G2_: pk("mul", PB+r, O+r, "s[28:29]")
        for r in G1_: e(f"v_exp_f32 v{PB+r}, v{PB+r}")
        for r in G2_: pk("mul", O+r, O+r, f"v[{MR+r}:{MR+r+1}]")
        for r in G2_: pk("add", PB+r, PB+r, "1.0", "op_sel_hi:[1,0]")
        for r in G1_: e(f"v_rcp_f32 v{PB+r}, v{PB+r}")
        for r in G2_:
            e(f"v_pk_fma_f32 v[{PB+r}:{PB+r+1}], v[{PB+r}:{PB+r+1}], v[{O+r}:{O+r+1}], v[{XR+r}:{XR+r+1}]")
            for rr in (r, r + 1):
                so = "0" if rr < 2 else f"s{32 + (rr >> 1)}"
                off = (rr & 1) * 1792
                e(f"buffer_store_dword v{PB+rr}, v116, s[16:19], {so} offen" + (f" offset:{off}" if off else "") + " " + outfl)
    e("s_cmp_lg_u32 s5, 15\ns_cbranch_scc1 K_nobump\ns_or_b32 s28, s6, s4\ns_cmp_lg_u32 s28, 0\ns_cbranch_scc1 K_nobump")
    e(f"v_mov_b32 v8, 0\nv_mov_b32 v9, s84\ns_mov_b32 s28, {WS_EP}\ns_mov_b64 exec, 1")
    e("buffer_store_dword v9, v8, s[20:23], s28 offen sc1")
    e("s_mov_b64 exec, -1")
    e.label("K_nobump")
    if pad:
        if padwg >= 0: e(f"s_cmp_lg_u32 s2, {padwg}\ns_cbranch_scc1 K_END")
        e.label("K_pad")
        e(f"s_memrealtime s[28:29]\ns_waitcnt lgkmcnt(0)\ns_sub_u32 s28, s28, s{100 if PADAT else 96}\ns_cmp_lt_u32 s28, {pad}\ns_cbranch_scc1 K_pad")
    st.dump(e); info["F"] = st.names
    e("s_endpgm")
    for l in slow3:
        e.label(l)
        lds_wait(6, 48, "s_cmp_lg_u32 s82, 0", 121, sleep=0)
        for g in range(4): e(f"ds_read_b128 v[{FO+16+4*g}:{FO+19+4*g}], v5 offset:{CH + g*1024}")
        e(f"s_waitcnt lgkmcnt(0)\ns_branch {l}_r")
    for l, addr, off, cond in slow2:
        e.label(l)
        lds_wait(addr, off, cond, 121, sleep=0)
        e(f"s_branch {l}_r")
    for l, need in slow:
        e.label(l)
        def body():
            e("ds_read_b128 v[104:107], v8\ns_waitcnt lgkmcnt(0)\nv_min_u32 v104, v104, v105\nv_min3_u32 v104, v104, v106, v107\ns_nop 0\nv_readfirstlane_b32 s82, v104")
        spin(e, body, f"s_cmp_ge_u32 s82, {need}", sleep=0)
        e(f"s_branch {l}_r")

    e.vm = []; e.lg = []
    e.label("K_S")
    st = Stamper(stamps, 143)
    e(f"s_setprio {sprio}")
    common2(); common3()
    e("v_and_b32 v1, 19, v0\nv_bfe_u32 v2, v0, 2, 1\nv_lshl_add_u32 v1, v2, 3, v1\nv_bfe_u32 v2, v0, 3, 1\nv_lshl_add_u32 v1, v2, 2, v1\ns_lshl_b32 s30, s6, 5\nv_add_u32 v1, s30, v1\nv_lshlrev_b32 v1, 1, v1\nv_and_b32 v1, -4, v1")
    e("s_lshl_b32 s30, s91, 7\ns_and_b32 s31, s4, 2\ns_lshl_b32 s31, s31, 5\ns_add_u32 s30, s30, s31\nv_and_b32 v7, 30, v0\nv_lshl_add_u32 v7, v7, 1, s30\nv_mov_b32 v247, 0")
    e(f"v_add_u32 v23, s89, v20\nv_add_u32 v24, {RING}, v20")
    e("s_lshl_b32 s31, s4, 1\nv_xor_b32 v6, s31, v22")
    for jj in range(4):
        e(f"v_xor_b32 v5, {2*jj}, v6\nv_lshl_add_u32 v{10+jj}, v5, 4, v23\nv_add_u32 v{14+jj}, 0x10000, v{10+jj}\nv_lshl_add_u32 v{240+jj}, v5, 4, v24")
    e("s_mov_b32 s94, 0x3f803f80\nv_mov_b32 v34, 0\nv_mov_b32 v35, 0\nv_mov_b32 v36, 0\nv_mov_b32 v37, 0")
    e(f"s_mov_b32 s22, {WS_LIM}\ns_mov_b32 s23, 0x20000\ns_mov_b32 s82, {WS_EP}")
    e(f"v_mov_b32 v18, {FLG}\nv_mov_b32 v19, 1\ns_lshl_b32 s30, s4, 2\ns_add_u32 s30, s30, {FLG}\nv_mov_b32 v20, s30")
    e("s_waitcnt lgkmcnt(0)")
    e("s_mov_b32 s20, s62\ns_and_b32 s21, s63, 0xffff\nv_mov_b32 v138, v1\nv_mov_b32 v139, v7")
    def par_loads():
        e.vmem("global_load_dword v244, v138, s[34:35]", "par")
        e.vmem("global_load_dword v245, v138, s[36:37]", "par")
        e.vmem("global_load_dword v246, v138, s[46:47]", "par")
        e.vmem("global_load_dword v142, v139, s[48:49]", "par")
        e(f"s_mov_b32 s82, {WS_EP}\ns_mov_b64 exec, 1")
        e.vmem("buffer_load_dword v247, v247, s[20:23], s82 offen sc1", "par")
        e("s_mov_b64 exec, -1")
    if not late: par_loads()
    if tlb:
        e("s_cmp_lg_u32 s4, 0\ns_cbranch_scc1 K_notlb\nv_mov_b32 v140, 0\ns_mov_b64 exec, 1")
        for p in (52, 54, 56, 42, 44): e(f"global_load_dword v141, v140, s[{p}:{p+1}]")
        if tlb > 1:
            e(f"s_mul_i32 s30, s5, {128*1792}\nv_mov_b32 v251, s30\nglobal_load_dword v141, v251, s[58:59]")
            e(f"s_mul_i32 s30, s5, {2*A_W}\nbuffer_load_dword v141, v140, s[20:23], s30 offen\ns_mul_i32 s30, s5, {4*A_W}\ns_add_u32 s30, s30, {WS_AO}\nbuffer_load_dword v141, v140, s[20:23], s30 offen")
            e(f"s_mul_i32 s30, s5, {14*32768}\ns_add_u32 s30, s30, {WS_PX}\nbuffer_load_dword v141, v140, s[20:23], s30 offen")
        e("s_mov_b64 exec, -1")
        e.label("K_notlb")
    rot_off(30)
    e(f"s_sub_u32 s30, 7, s30\ns_cmp_ge_u32 s30, 7\ns_cselect_b32 s30, 0, s30\ns_lshl_b32 s30, s30, 14\ns_lshl_b32 s31, s85, 13\ns_add_u32 s30, s30, s31\ns_and_b32 s31, s4, 1\ns_lshl_b32 s31, s31, 12\ns_add_u32 s30, s30, s31")
    e("v_bfe_u32 v4, v0, 2, 2\nv_lshl_add_u32 v4, v21, 2, v4\nv_lshrrev_b32 v5, 1, v4\nv_lshlrev_b32 v4, 7, v4\nv_bfe_u32 v7, v0, 4, 1\nv_lshlrev_b32 v7, 1, v7\nv_bfe_u32 v8, v0, 1, 1\nv_add_u32 v7, v7, v8")
    e("s_and_b32 s31, s4, 2\ns_lshl_b32 s31, s31, 1\nv_add_u32 v7, s31, v7\nv_xor_b32 v7, v7, v5\nv_lshl_add_u32 v4, v7, 4, v4\nv_and_b32 v7, 1, v0\nv_lshl_add_u32 v4, v7, 3, v4\nv_add_u32 v254, s30, v4\nv_xor_b32 v255, 64, v254")
    e("v_lshlrev_b32 v8, 4, v7\nv_xor_b32 v8, 16, v8")
    e("s_bitcmp1_b32 s4, 0\ns_cselect_b64 s[64:65], -1, 0")
    e("s_bitcmp1_b32 s4, 1\ns_cselect_b64 s[66:67], -1, 0\ns_mov_b32 s68, 0\ns_mov_b32 s69, -1")
    e("s_lshr_b32 s87, s4, 1\ns_lshl_b32 s73, s85, 6")
    K = []
    def k_(s): K.extend(s.split("\n"))
    for r in (244, 245, 246, 142): k_(f"v_lshlrev_b32 v{r}, v8, v{r}\nv_and_b32 v{r}, 0xffff0000, v{r}")
    k_(f"v_mul_f32 v246, {LOG2E}, v246\nv_exp_f32 v246, v246\ns_nop 0\nv_cvt_pk_bf16_f32 v246, v246, v246\nv_and_b32 v246, 0xffff0000, v246")
    k_(f"v_mul_f32 v5, v246, v244\nv_mul_f32 v6, v246, v245\nv_mul_f32 v5, {LOG2E}, v5\nv_exp_f32 v5, v5")
    k_("v_mul_f32 v6, 0.15915494, v6\nv_rndne_f32 v9, v6\nv_sub_f32 v6, v6, v9\nv_cos_f32 v22, v6\nv_sin_f32 v23, v6\ns_nop 0")
    k_("v_mul_f32 v22, v22, v5\nv_mul_f32 v23, v23, v5")
    k_("v_mul_f32 v5, v244, v244\nv_fma_f32 v5, v245, v245, v5\nv_rcp_f32 v5, v5\nv_add_f32 v6, -1.0, v22")
    k_("v_mul_f32 v30, v6, v244\nv_fma_f32 v30, v23, v245, v30\nv_mul_f32 v31, v23, v244\nv_fma_f32 v31, -v6, v245, v31")
    k_("v_add_f32 v5, v5, v5\nv_mul_f32 v30, v30, v5\nv_mul_f32 v31, v31, v5\nv_xor_b32 v33, 0x80000000, v23")
    def csq(d, s): k_(f"v_mul_f32 v9, v{s}, v{s+1}\nv_mul_f32 v{d}, v{s}, v{s}\nv_fma_f32 v{d}, -v{s+1}, v{s+1}, v{d}\nv_add_f32 v{d+1}, v9, v9")
    def pwmul(mask):
        k_(f"v_cndmask_b32 v5, 1.0, v26, {mask}\nv_cndmask_b32 v6, 0, v27, {mask}")
        k_("v_mul_f32 v9, v28, v6\nv_mul_f32 v28, v28, v5\nv_fma_f32 v28, -v29, v6, v28\nv_fma_f32 v29, v29, v5, v9")
    csq(24, 22); csq(24, 24); csq(24, 24); csq(24, 24)
    k_("v_cndmask_b32 v28, 1.0, v24, s[68:69]\nv_cndmask_b32 v29, 0, v25, s[68:69]")
    csq(26, 24); pwmul("s[64:65]"); csq(26, 26); pwmul("s[66:67]"); csq(26, 26); csq(136, 26)
    QR, QI = 104, 120
    for j in range(16):
        pr, pi = (30, 31) if j == 0 else (QR + j - 1, QI + j - 1)
        k_(f"v_mul_f32 v{QR+j}, v22, v{pr}\nv_mul_f32 v{QI+j}, v22, v{pi}\nv_fmac_f32 v{QR+j}, v33, v{pi}\nv_fmac_f32 v{QI+j}, v23, v{pr}")
    k_("v_xor_b32 v31, 0x80000000, v31\nv_xor_b32 v32, 0x80000000, v30")
    UR, UI = 40, 56
    SF = [144, 192]
    def sreads(sg):
        fs = SF[sg & 1]; out = []
        for j in range(4):
            xb = (10 + j) if sg < 4 else (14 + j)
            out += [f"ds_read_b128 v[{fs+12*j}:{fs+12*j+3}], v{xb} offset:{(sg & 3)*CH}",
                    f"ds_read_b128 v[{fs+12*j+4}:{fs+12*j+7}], v{240+j} offset:{(sg % NR)*8192}",
                    f"ds_read_b128 v[{fs+12*j+8}:{fs+12*j+11}], v{240+j} offset:{(sg % NR)*8192+4096}"]
        return out
    def dots(fs):
        for j in range(4):
            for q in range(4): e(f"v_dot2c_f32_bf16 v37, v{fs+12*j+q}, v{fs+12*j+q}\nv_dot2c_f32_bf16 v36, s94, v{fs+12*j+q}")
        for q in range(4): e(f"v_dot2c_f32_bf16 v34, s94, v{fs+4+q}\nv_dot2c_f32_bf16 v35, s94, v{fs+8+q}")
    Z = []
    def z_(s): Z.extend(s.split("\n"))
    z_("v_mov_b32 v1, v36\nv_mov_b32 v2, v37\ns_nop 1")
    z_("v_permlane32_swap_b32 v36, v1\nv_permlane32_swap_b32 v37, v2\nv_permlane32_swap_b32 v34, v35\ns_nop 1")
    z_("v_add_f32 v34, v34, v35\nv_add_f32 v36, v36, v1\nv_add_f32 v37, v37, v2\nds_write_b32 v248, v34")
    z_("v_mul_f32 v36, 0x3b124925, v36\nv_mul_f32 v37, 0x3b124925, v37")
    z_("v_fma_f32 v37, -v36, v36, v37\nv_max_f32 v37, 0, v37\nv_cvt_pk_bf16_f32 v1, v37, v36")
    z_("v_and_b32 v36, 0xffff0000, v1\nv_lshlrev_b32 v37, 16, v1\nv_add_f32 v37, 0x3727c5ac, v37")
    z_("v_cvt_pk_bf16_f32 v37, v37, v37\nv_and_b32 v37, 0xffff0000, v37\nv_sqrt_f32 v37, v37\ns_nop 0")
    z_("v_cvt_pk_bf16_f32 v37, v37, v37\nv_and_b32 v37, 0xffff0000, v37\nv_rcp_f32 v37, v37\ns_nop 0")
    z_("v_cndmask_b32 v36, v36, v37, s[68:69]\nds_write_b32 v249, v36")
    e(f"s_lshl_b32 s30, s4, 2\ns_add_u32 s30, s30, {CSB}\nv_lshl_add_u32 v248, v0, 4, s30")
    tau_of_lane(e, 249, 2)
    e(f"s_lshl_b32 s30, s4, 7\ns_add_u32 s30, s30, {STAT}\nv_lshl_add_u32 v249, v249, 2, s30\nv_lshl_add_u32 v249, v21, 9, v249\nv_lshl_add_u32 v3, v21, 6, s30")
    e(f"v_and_b32 v250, 31, v0\nv_lshlrev_b32 v250, 4, v250\nv_add_u32 v250, {CSB}, v250")
    st(e, "b0")
    e("s_barrier")
    for x in sreads(0): e(x)
    if late: par_loads()
    ks = 2 if late else 1
    for sg in range(7):
        fs = SF[sg & 1]
        if sg == ks:
            e.vm_wait({"par"})
            e("v_readfirstlane_b32 s84, v247\ns_add_u32 s84, s84, 1\ns_max_u32 s84, s84, 1")
            e(f"s_getreg_b32 s74, hwreg(HW_REG_XCC_ID, 0, 4)\ns_lshl_b32 s78, s5, 1\ns_add_u32 s78, s78, s85\ns_lshl_b32 s78, s78, 10\ns_add_u32 s78, s78, {WS_FH}\ns_add_u32 s75, s78, {WS_XID - WS_FH}")
            e("s_cmp_lg_u32 s4, 0\ns_cbranch_scc1 K_noxid")
            e("s_lshl_b32 s31, s91, 7\nv_mov_b32 v251, s31\nv_mov_b32 v252, s74\nv_mov_b32 v253, s84\ns_mov_b64 exec, 1")
            e("buffer_store_dwordx2 v[252:253], v251, s[20:23], s75 offen sc1\ns_mov_b64 exec, -1")
            e.label("K_noxid")
        e.lg0()
        if sg == 6:
            for j in range(4): e(f"ds_read_b64_tr_b16 v[{208+2*j}:{209+2*j}], v{254 + (j & 1)} offset:{j*1024}")
            dots(fs)
            e.lg0()
        st(e, f"b{sg+1}")
        e("s_barrier")
        rd = sreads(sg + 1) if sg < 6 else []
        for j in range(4):
            for acc, o in ((UR, 4), (UI, 8)):
                e(mfma(acc, fs+12*j, fs+12*j+o, sg == 0 and j == 0))
                for x in rd[:2]: e(x)
                nk = kint if rd else 4
                rd = rd[2:]
                for _ in range(nk):
                    if sg == 6:
                        if Z: e(Z.pop(0))
                    elif sg >= ks and K: e(K.pop(0))
        if sg < 6: dots(fs)
    for x in Z: e(x)
    gen = [0]
    def ssync(extra=None):
        gen[0] += 1
        e("s_mov_b64 exec, 1\nds_add_u32 v18, v19 offset:80\ns_mov_b64 exec, -1")
        def body():
            e("ds_read_b32 v1, v18 offset:80")
            if extra: extra()
            e("s_waitcnt lgkmcnt(0)\nv_readfirstlane_b32 s82, v1")
        spin(e, body, f"s_cmp_ge_u32 s82, {4*gen[0]}", sleep=ssl)
        e.lg = []
    def wait_prog(n):
        def body():
            e("ds_read_b128 v[4:7], v18\ns_waitcnt lgkmcnt(0)\nv_min_u32 v4, v4, v5\nv_min3_u32 v4, v4, v6, v7\ns_nop 0\nv_readfirstlane_b32 s82, v4")
        spin(e, body, f"s_cmp_ge_u32 s82, {n}", sleep=wsl)
        e.lg = []
    M, R = 72, 88
    e(f"s_setprio {sprio2}")
    if sidle:
        def body():
            e("s_sleep 8\nds_read_b128 v[4:7], v18\ns_waitcnt lgkmcnt(0)\nv_min_u32 v4, v4, v5\nv_min3_u32 v4, v4, v6, v7\ns_nop 0\nv_readfirstlane_b32 s82, v4")
        spin(e, body, "s_cmp_ge_u32 s82, 7", sleep=1)
    TMP = 192
    for q in range(4): e(f"ds_read_b128 v[{M+4*q}:{M+4*q+3}], v3 offset:{16*q}")
    for q in range(4): e(f"ds_read_b128 v[{R+4*q}:{R+4*q+3}], v3 offset:{512+16*q}")
    e(f"s_lshl_b32 s30, s4, 9\ns_add_u32 s30, s30, {SUB}\nv_lshl_add_u32 v2, v0, 3, s30\nv_add_u32 v3, {7*256}, v2")
    ssync(lambda: e(f"ds_read_b128 v[{TMP}:{TMP+3}], v250\nds_read_b128 v[{TMP+4}:{TMP+7}], v250 offset:512"))
    st(e, "ss1")
    t = TMP
    e(f"v_add_f32 v{t}, v{t}, v{t+1}\nv_add_f32 v{t+2}, v{t+2}, v{t+3}\nv_add_f32 v{t+4}, v{t+4}, v{t+5}\nv_add_f32 v{t+6}, v{t+6}, v{t+7}\nv_add_f32 v34, -v{t}, -v{t+2}\nv_add_f32 v35, -v{t+4}, -v{t+6}")
    for j in range(16): e(f"v_fmac_f32 v{UR+j}, v34, v{M+j}\nv_fmac_f32 v{UI+j}, v35, v{M+j}")
    for j in range(16): e(f"v_mul_f32 v{UR+j}, v{UR+j}, v{R+j}\nv_mul_f32 v{UI+j}, v{UI+j}, v{R+j}")
    st(e, "fold")
    for j in range(1, 16):
        e(f"v_fmac_f32 v{UR+j}, v22, v{UR+j-1}\nv_fmac_f32 v{UI+j}, v22, v{UI+j-1}\nv_fmac_f32 v{UR+j}, v33, v{UI+j-1}\nv_fmac_f32 v{UI+j}, v23, v{UR+j-1}")
    st(e, "scan")
    e(f"ds_write2_b32 v3, v{UR+15}, v{UI+15} offset1:1")
    def step(dr, di, hr, hi, ur, ui, lr, li):
        e(f"v_fma_f32 v{dr}, v{lr}, v{hr}, v{ur}\nv_fma_f32 v{di}, v{lr}, v{hi}, v{ui}")
        e(f"v_fma_f32 v{dr}, -v{li}, v{hi}, v{dr}\nv_fma_f32 v{di}, v{li}, v{hr}, v{di}")
    def rdsub():
        for d in range(7): e(f"ds_read_b64 v[{TMP+2*d}:{TMP+1+2*d}], v2 offset:{d*256}")
    ssync(rdsub)
    st(e, "ss")
    for d in range(1, 7):
        dd = (38, 39) if d == 6 else (TMP + 2*d, TMP + 1 + 2*d)
        step(dd[0], dd[1], TMP - 2 + 2*d, TMP - 1 + 2*d, TMP + 2*d, TMP + 1 + 2*d, 24, 25)
    e("s_cmp_lg_u32 s4, 3\ns_cbranch_scc1 K_nopub")
    step(TMP, TMP + 2, 38, 39, UR + 15, UI + 15, 24, 25)
    e(f"v_mov_b32 v{TMP+1}, s84\nv_mov_b32 v{TMP+3}, s84")
    e(f"s_lshl_b32 s30, s6, 4\ns_add_u32 s30, s30, s5\ns_lshl_b32 s30, s30, 9\ns_add_u32 s30, s30, {WS_AGG - 512}")
    e("v_lshlrev_b32 v1, 4, v0\ns_mov_b32 exec_lo, 0")
    e(f"buffer_store_dwordx4 v[{TMP}:{TMP+3}], v1, s[20:23], s30 offen sc1")
    e("s_mov_b32 exec_lo, -1")
    e.label("K_nopub")
    st(e, "pub")
    e(f"s_mul_i32 s76, s5, {2*A_W}\ns_lshl_b32 s30, s6, 13\ns_add_u32 s76, s76, s30\ns_lshl_b32 s30, s4, 10\ns_add_u32 s76, s76, s30\ns_add_u32 s76, s76, {WS_AY}\ns_add_u32 s77, s76, {A_W}")
    if bulk & 2:
        e(f"v_and_b32 v1, 7, v0\nv_lshlrev_b32 v1, 7, v1\nv_bfe_u32 v2, v0, 3, 1\nv_lshl_add_u32 v1, v2, 12, v1\nv_bfe_u32 v2, v0, 4, 1\nv_mul_u32_u24 v2, {A_W}, v2\nv_add_u32 v1, v1, v2")
        e(f"s_mov_b32 exec_hi, 0\nbuffer_load_dword v252, v1, s[20:23], s76 offen {tfl}\ns_mov_b32 exec_hi, -1")
    def touch_hh():
        e(f"s_lshl_b32 s30, s5, 2\ns_add_u32 s30, s30, s4\ns_mul_i32 s30, s30, {A_W}\ns_lshl_b32 s31, s6, 13\ns_add_u32 s30, s30, s31\ns_add_u32 s30, s30, {WS_AO}\nv_lshlrev_b32 v253, 7, v0")
        e(f"buffer_load_dword v253, v253, s[20:23], s30 offen {tfl}")
    if (bulk & 1) and tpos == 0: touch_hh()
    for x in K: e(x)
    GR, GI = 72, 88
    for j in range(16):
        e(f"v_mul_f32 v{GR+j}, v30, v{UR+j}\nv_mul_f32 v{GI+j}, v32, v{UI+j}\nv_fmac_f32 v{GR+j}, v31, v{UI+j}\nv_fmac_f32 v{GI+j}, v31, v{UR+j}")
    AG = 40
    st(e, "g")
    for i in range(8): e(f"v_mov_b32 v{AG+4*i}, 0\nv_mov_b32 v{AG+4*i+1}, s84\nv_mov_b32 v{AG+4*i+2}, 0\nv_mov_b32 v{AG+4*i+3}, s84")
    e(f"s_lshl_b32 s90, s6, 11\ns_lshl_b32 s30, s4, 8\ns_add_u32 s90, s90, s30\ns_add_u32 s90, s90, {WS_CS}")
    e("v_and_b32 v34, 31, v0\nv_lshlrev_b32 v34, 3, v34\nv_lshl_add_u32 v34, v21, 10, v34")
    def cs_loads():
        e("buffer_load_dwordx2 v[8:9], v34, s[20:23], s90 offen sc1\nbuffer_load_dwordx2 v[140:141], v35, s[20:23], s75 offen sc1")
    cs_chk = "v_cmp_eq_u32 vcc, s84, v9\nv_cmp_eq_u32 s[28:29], s84, v141\ns_nop 1\ns_and_b64 vcc, vcc, s[28:29]"
    e("v_min_u32 v35, 6, v0\nv_lshlrev_b32 v35, 7, v35")
    cs_loads()
    e(f"s_lshl_b32 s30, s91, 7\ns_add_u32 s30, s30, s78\nv_mul_u32_u24 v1, {WS_FO - WS_FH}, v21")
    e("s_mov_b32 exec_lo, 1\ns_mov_b32 exec_hi, 1\nbuffer_load_dword v251, v1, s[20:23], s30 offen sc1\ns_mov_b64 exec, -1")
    e(f"s_lshl_b32 s92, s6, 4\ns_add_u32 s92, s92, s5\ns_lshl_b32 s92, s92, 9\ns_add_u32 s92, s92, {WS_AGG - 8192}\ns_add_u32 s93, s92, 4096\nv_lshlrev_b32 v3, 4, v0")
    def agg_loads(fl=' sc1'):
        for i in range(8):
            l = e.newlabel("AL")
            e(f"s_cmp_lt_u32 s5, {15 - 2*i}\ns_cbranch_scc1 {l}")
            e(f"s_cmp_ge_u32 s5, {16 - 2*i}\ns_cselect_b32 exec_lo, -1, 0")
            e(f"buffer_load_dwordx4 v[{AG+4*i}:{AG+4*i+3}], v3, s[20:23], s{92 + (i >> 2)} offen offset:{1024*(i & 3)}{fl}")
            e.label(l)
        e("s_mov_b32 exec_lo, -1")
    if not adel: agg_loads('' if ag1 else ' sc1')
    st(e, "aggi")
    SEL = 144
    tau_of_lane(e, 1, 2)
    e("v_lshlrev_b32 v2, 4, v21\nv_sub_u32 v1, v1, v2\nv_and_b32 v2, 1, v1\nv_lshlrev_b32 v2, 4, v2\nv_mov_b32 v4, 0x3f80\nv_lshlrev_b32 v2, v2, v4\nv_ashrrev_i32 v1, 1, v1")
    for q in range(0, 8, 2):
        e(f"v_cmp_eq_u32 vcc, {q}, v1\nv_cmp_eq_u32 s[30:31], {q+1}, v1\ns_nop 0\nv_cndmask_b32 v{SEL+q}, 0, v2, vcc\nv_cndmask_b32 v{SEL+q+1}, 0, v2, s[30:31]")
    if (bulk & 1) and tpos == 1: touch_hh()
    def rnd(b):
        for r in range(0, 16, 2): e(f"v_cvt_pk_bf16_f32 v{b+r}, v{b+r}, v{b+r+1}")
        for r in range(0, 16, 2): e(f"v_and_b32 v{b+r+1}, 0xffff0000, v{b+r}\nv_lshlrev_b32 v{b+r}, 16, v{b+r}")
    mark = len(e.l)
    if xne:
        XR, MR, RR = 160, 176, 192
        e(f"s_lshl_b32 s29, s85, 6\ns_and_b32 s31, s4, 1\ns_lshl_b32 s31, s31, 5\ns_add_u32 s29, s29, s31\ns_lshl_b32 s29, s29, 2\ns_add_u32 s29, s29, {STAT}\nv_lshl_add_u32 v4, v21, 6, s29")
        for q in range(4):
            e(f"ds_read_b128 v[{MR+4*q}:{MR+4*q+3}], v4 offset:{16*q}\nds_read_b128 v[{RR+4*q}:{RR+4*q+3}], v4 offset:{512+16*q}")
        for r in range(8): e(f"v_lshlrev_b32 v{XR+2*r}, 16, v{208+r}\nv_and_b32 v{XR+2*r+1}, 0xffff0000, v{208+r}")
        e.lg0()
        for r in range(16): e(f"v_sub_f32 v{MR+r}, v{XR+r}, v{MR+r}")
        rnd(MR)
        for r in range(16): e(f"v_mul_f32 v{MR+r}, v{MR+r}, v{RR+r}")
        rnd(MR)
        for r in range(16): e(f"v_mul_f32 v{MR+r}, v{MR+r}, v142")
        for r in range(8): e(f"v_cvt_pk_bf16_f32 v{216+r}, v{MR+2*r}, v{MR+2*r+1}")
    blk = e.l[mark:]; del e.l[mark:]
    cutp = len(blk) * min(xne, 4) // 4
    e.l += blk[:cutp]
    if adel: agg_loads('' if ag1 else ' sc1')
    e.l += blk[cutp:]
    e.vm0()
    st(e, "aggl")
    e("s_mov_b32 s95, 0")
    e.label("K_horner")
    e(f"v_min3_u32 v1, s84, v{AG+1}, v{AG+3}\nv_max3_u32 v2, s84, v{AG+1}, v{AG+3}")
    for i in range(1, 8):
        b = AG + 4*i
        src = (AG, AG + 2) if i == 1 else ((4, 5) if i % 2 == 0 else (6, 7))
        dst = (4, 5) if i % 2 == 1 else (6, 7)
        step(dst[0], dst[1], src[0], src[1], b, b + 2, 136, 137)
        e(f"v_min3_u32 v1, v1, v{b+1}, v{b+3}\nv_max3_u32 v2, v2, v{b+1}, v{b+3}")
    e("v_cmp_eq_u32 vcc, v1, v2\nv_mov_b32 v6, v4\nv_mov_b32 v7, v5\ns_cmp_eq_u64 vcc, -1\ns_cbranch_scc1 K_hok")
    e(f"s_add_u32 s95, s95, 1\ns_cmp_ge_u32 s95, {SPIN_MAX}\ns_cbranch_scc1 K_hok")
    if lp:
        e(f"s_lshl_b32 s30, s6, 13\ns_add_u32 s30, s30, {WS_AGG + 508}\ns_sub_u32 s31, s5, 1\nv_min_u32 v1, s31, v0\nv_lshlrev_b32 v1, 9, v1\ns_mov_b64 exec, 0xffff")
        e.label("K_lp")
        e(f"s_sleep 2\nbuffer_load_dword v2, v1, s[20:23], s30 offen sc1\ns_add_u32 s95, s95, 1\ns_waitcnt vmcnt(0)\nv_cmp_eq_u32 vcc, s84, v2\ns_cmp_ge_u32 s95, {SPIN_MAX}\ns_cbranch_scc1 K_lpx\ns_cmp_eq_u64 vcc, exec\ns_cbranch_scc0 K_lp")
        e.label("K_lpx")
        e("s_mov_b64 exec, -1")
    else: e("s_sleep 4")
    agg_loads()
    e("s_waitcnt vmcnt(0)\ns_branch K_horner")
    e.label("K_hok")
    st(e, "look")
    e("v_permlane32_swap_b32 v4, v6\nv_permlane32_swap_b32 v5, v7\ns_nop 0")
    step(6, 7, 4, 5, 6, 7, 26, 27)
    step(38, 39, 6, 7, 38, 39, 28, 29)
    e("v_xor_b32 v36, 0x80000000, v38\nv_xor_b32 v37, 0x80000000, v39")
    for j in range(0, 16, 2):
        for x in (j, j + 1):
            e(f"v_fmac_f32 v{GR+x}, v38, v{QR+x}\nv_fmac_f32 v{GI+x}, v37, v{QR+x}\nv_fmac_f32 v{GR+x}, v37, v{QI+x}\nv_fmac_f32 v{GI+x}, v36, v{QI+x}")
        e(f"v_cvt_pk_bf16_f32 v{40+j//2}, v{GR+j}, v{GR+j+1}\nv_cvt_pk_bf16_f32 v{48+j//2}, v{GI+j}, v{GI+j+1}")
    st(e, "fin")
    e("s_setprio 3")
    e(mfma(160, 40, SEL, True)); e(mfma(176, 48, SEL, True)); e(mfma(160, 44, SEL + 4)); e(mfma(176, 52, SEL + 4))
    e(f"s_setprio {sprio2}")
    e("s_add_u32 s30, s76, 4096\ns_add_u32 s31, s77, 4096\ns_nop 7")
    for r in range(16): e(f"v_cvt_pk_bf16_f32 v{56+r}, v{160+2*r}, v{161+2*r}")
    st(e, "ht")
    def do_hst():
        e("s_add_u32 s30, s76, 4096\ns_add_u32 s31, s77, 4096")
        dual([f"buffer_store_dwordx4 v[56:59], v3, s[20:23], s76 offen", "buffer_store_dwordx4 v[60:63], v3, s[20:23], s30 offen",
                f"buffer_store_dwordx4 v[64:67], v3, s[20:23], s77 offen", "buffer_store_dwordx4 v[68:71], v3, s[20:23], s31 offen"], "h", bulk & 2)
        st(e, "hst")
    if not (bulk & 2): do_hst()
    e(cs_chk + "\ns_cmp_eq_u64 vcc, -1\ns_cbranch_scc1 K_cs_ok")
    def body():
        cs_loads()
        e("s_waitcnt vmcnt(0)\n" + cs_chk)
    spin(e, body, "s_cmp_eq_u64 vcc, -1", sleep=2)
    e.label("K_cs_ok")
    e("v_cmp_eq_u32 vcc, s74, v140")
    e(f"s_lshl_b32 s30, s4, 8\ns_add_u32 s30, s30, {CSW}\nv_lshl_add_u32 v1, v0, 2, s30")
    e("s_cmp_eq_u64 vcc, -1\ns_cselect_b32 s97, 2, 1")
    if force: e(f"s_mov_b32 s97, {force}")
    e("v_mov_b32 v2, s97\nds_write_b32 v1, v8\nds_write_b32 v20, v2 offset:16")
    if bulk & 2: do_hst()
    e(f"s_lshl_b32 s30, s87, 14\ns_xor_b32 s31, s30, 0x4000\ns_and_b32 s29, s4, 1\ns_lshl_b32 s29, s29, 12\ns_sub_u32 s29, {C0}, s29\ns_add_u32 s30, s30, s29\ns_add_u32 s31, s31, s29\ns_lshl_b32 s29, s4, 5")
    for j in range(4): e(f"v_xor_b32 v{10+j}, s29, v{10+j}\nv_add_u32 v{14+j}, s31, v{10+j}\nv_add_u32 v{10+j}, s30, v{10+j}")
    e("s_lshl_b32 s30, s91, 7\ns_lshl_b32 s31, s4, 2\ns_add_u32 s31, s31, s30\nv_mov_b32 v4, s31\nv_mov_b32 v5, s84")
    e.vm_wait({"h"})
    e("s_mov_b64 exec, 1")
    dual(["buffer_store_dword v5, v4, s[20:23], s78 offen"], "fl")
    e("s_mov_b64 exec, -1")
    st(e, "hflag")
    if (bulk & 1) and tpos == 2: touch_hh()
    if rb_y:
        e("s_add_u32 s30, s76, 4096\ns_add_u32 s31, s77, 4096")
        for g, sr in enumerate((76, 30, 77, 31)): e(f"buffer_load_dwordx4 v[{24+4*g}:{27+4*g}], v3, s[20:23], s{sr} offen sc1")
    e(f"s_lshl_b32 s92, s5, 1\ns_add_u32 s92, s92, s87\ns_mul_i32 s92, s92, {A_W}\ns_add_u32 s92, s92, {WS_AY}\ns_lshl_b32 s30, s85, 13\ns_add_u32 s93, s92, s30\ns_add_u32 s93, s93, {3*CH}\ns_lshl_b32 s30, s85, 16\ns_add_u32 s92, s92, s30")
    e("v_and_b32 v8, 7, v0\nv_min_u32 v8, 6, v8\nv_lshlrev_b32 v8, 7, v8\nv_and_b32 v1, 8, v0\nv_add_u32 v8, v8, v1\ns_and_b32 s30, s4, 1\ns_lshl_b32 s31, s30, 2\nv_add_u32 v8, s31, v8")
    e("s_lshl_b32 s30, s30, 10\ns_lshl_b32 s31, s85, 11\ns_add_u32 s30, s30, s31\nv_add_u32 v23, s30, v3\nv_xor_b32 v22, 0x800, v23")
    e(f"s_mul_i32 s76, s5, 7\ns_add_u32 s76, s76, s91\ns_lshl_b32 s76, s76, 1\ns_add_u32 s76, s76, s85\ns_lshl_b32 s76, s76, 2\ns_add_u32 s76, s76, s4\ns_xor_b32 s77, s76, 4\ns_mul_i32 s77, s77, {pxs}\ns_add_u32 s77, s77, {WS_PX}")
    def creg(k): return 144 + 8 * k
    def c_list(r):
        out = []
        for k in range(8*r, min(14, 8*r + 8)):
            if k == 12: out += [f"v_xor_b32 v{10+j}, s73, v{10+j}" for j in (0, 1, 4, 5)]
            for b in range(2):
                g = creg(k) + 4*b
                out.append(f"ds_read_b128 v[{g}:{g+3}], v{10 + 4*b + (k & 3)} offset:{r*2*CH + ((k >> 2) & 1)*4096}")
        return out
    if not xne:
        XR, MR, RR = 64, 80, 96
        e(f"s_lshl_b32 s29, s85, 6\ns_and_b32 s31, s4, 1\ns_lshl_b32 s31, s31, 5\ns_add_u32 s29, s29, s31\ns_lshl_b32 s29, s29, 2\ns_add_u32 s29, s29, {STAT}\nv_lshl_add_u32 v4, v21, 6, s29")
        for q in range(4):
            e(f"ds_read_b128 v[{MR+4*q}:{MR+4*q+3}], v4 offset:{16*q}\nds_read_b128 v[{RR+4*q}:{RR+4*q+3}], v4 offset:{512+16*q}")
        for r in range(8): e(f"v_mov_b32 v{56+r}, v{208+r}\nv_lshlrev_b32 v{XR+2*r}, 16, v{208+r}\nv_and_b32 v{XR+2*r+1}, 0xffff0000, v{208+r}")
        e.lg0()
        for r in range(16): e(f"v_sub_f32 v{MR+r}, v{XR+r}, v{MR+r}")
        rnd(MR)
        for r in range(16): e(f"v_mul_f32 v{MR+r}, v{MR+r}, v{RR+r}")
        rnd(MR)
        for r in range(16): e(f"v_mul_f32 v{MR+r}, v{MR+r}, v142")
        for r in range(8): e(f"v_cvt_pk_bf16_f32 v{128+r}, v{MR+2*r}, v{MR+2*r+1}")
    else:
        for r in range(8): e(f"v_mov_b32 v{56+r}, v{208+r}\nv_mov_b32 v{128+r}, v{216+r}")
    st(e, "xn")
    wait_prog(6)
    for x in c_list(0): e(x)
    e("s_waitcnt lgkmcnt(0)\ns_mov_b64 exec, 1\nds_add_u32 v18, v19 offset:88")
    st(e, "c0")
    e("s_mov_b64 exec, 0xffff")
    def body():
        e("buffer_load_dword v9, v8, s[20:23], s78 offen sc1\ns_waitcnt vmcnt(0)\nv_cmp_eq_u32 vcc, s84, v9\ns_nop 1")
    spin(e, body, "s_cmp_eq_u64 vcc, exec", sleep=4)
    e("s_mov_b64 exec, -1")
    e.vm = []
    st(e, "hseen")
    NP = 8
    ypre = min(ypre, NP - 1)
    YA = [64, 96]
    def yreg(t): return 24 + 4*(t % NP)
    def yissue(t):
        k = t >> 1
        if (t & 1) == 0 and k > 0: e("s_mov_b32 s92, s93" if k == 12 else "s_add_u32 s92, s92, 4096")
        e.vmem(f"buffer_load_dwordx4 v[{yreg(t)}:{yreg(t)+3}], v{22 + (t & 1)}, s[20:23], s92 offen sc1", ("A", t))
    if ypre:
        if ywait > 6: wait_prog(ywait)
        for t in range(ypre): yissue(t)
    def body():
        e("ds_read_b128 v[4:7], v18 offset:32\ns_waitcnt lgkmcnt(0)\nv_min_u32 v4, v4, v5\nv_min3_u32 v4, v4, v6, v7\ns_nop 0\nv_readfirstlane_b32 s82, v4")
    spin(e, body, "s_cmp_lg_u32 s82, 0", sleep=1)
    st(e, "epid")
    e(f"s_setprio {yprio}")
    for t in range(ypre, NP - 1): yissue(t)
    for x in c_list(1): e(x)
    e(f"s_add_u32 s31, s89, {SC}\nv_add_u32 v136, s31, v3\nv_xor_b32 v137, 0x2000, v136\nv_xor_b32 v138, 8, v20")
    for t in range(28):
        k = t >> 1
        if t == 8: e("s_waitcnt lgkmcnt(0)\ns_mov_b64 exec, 1\nds_add_u32 v18, v19 offset:92\ns_mov_b64 exec, -1")
        if t == 24: e("ds_read_b32 v1, v18 offset:92")
        e.vm_wait({("A", t)})
        for b in range(2):
            e(mfma(YA[t & 1] + 16*b, yreg(t), creg(k) + 4*b, k == 0))
            if b == 0 and t + NP - 1 < 28: yissue(t + NP - 1)
    st(e, "yloop")
    e("s_waitcnt lgkmcnt(0)\nv_readfirstlane_b32 s82, v1\ns_cmp_ge_u32 s82, 4\ns_cbranch_scc1 K_c1ok")
    lds_wait(18, 92, "s_cmp_ge_u32 s82, 4", 1, sleep=0)
    e.label("K_c1ok")
    e("s_nop 5")
    for ps in range(2):
        for g in range(4): e(f"ds_write_b128 v136, v[{YA[ps]+16+4*g}:{YA[ps]+19+4*g}] offset:{ps*CH + g*1024}")
    e("ds_write_b32 v20, v19 offset:96")
    lds_wait(138, 96, "s_cmp_lg_u32 s82, 0", 1, sleep=0)
    st(e, "yw")
    for ps in range(2):
        for g in range(4): e(f"ds_read_b128 v[{YA[ps]+16+4*g}:{YA[ps]+19+4*g}], v137 offset:{ps*CH + g*1024}")
    e("s_waitcnt lgkmcnt(4)")
    Y = YA[0]
    for r in range(16): e(f"v_add_f32 v{Y+r}, v{Y+r}, v{Y+16+r}")
    for p in range(8): e(f"v_cvt_pk_bf16_f32 v{24+4*(p//3)+p%3}, v{Y+2*p}, v{Y+2*p+1}")
    for r in (27, 31, 34, 35): e(f"v_mov_b32 v{r}, s84")
    e("s_waitcnt lgkmcnt(0)\ns_mov_b64 exec, 1\nds_add_u32 v18, v19 offset:84\ns_mov_b64 exec, -1")
    st(e, "yx")
    e("s_setprio 0")
    Y = YA[1]
    def ysend(g): stores([f"buffer_store_dwordx4 v[{24+4*g}:{27+4*g}], v3, s[20:23], s77 offen offset:{g*1024}"], "px")
    if ymode == 0: ysend(0)
    if ymode == 1: [ysend(g) for g in range(3)]
    for r in range(16): e(f"v_add_f32 v{Y+r}, v{Y+r}, v{Y+16+r}")
    for r in range(8): e(f"v_lshlrev_b32 v{Y+16+2*r}, 16, v{128+r}\nv_and_b32 v{Y+17+2*r}, 0xffff0000, v{128+r}")
    if ymode == 0: ysend(1)
    for r in range(16): e(f"v_add_f32 v{Y+r}, v{Y+r}, v{Y+16+r}")
    lds_wait(18, 84, "s_cmp_ge_u32 s82, 4", 1, sleep=1)
    for g in range(4): e(f"ds_write_b128 v136, v[{Y+4*g}:{Y+3+4*g}] offset:{g*1024}")
    e(f"v_add_u32 v11, {6*CH + 2048 - SC}, v136")
    for g in range(2): e(f"ds_write_b128 v11, v[{56+4*g}:{59+4*g}] offset:{g*1024}")
    e("ds_write_b32 v20, v19 offset:128")
    e.lg0()
    if ymode == 0: ysend(2)
    if ymode == 2:
        lds_wait(20, 48, "s_cmp_lg_u32 s82, 0", 1, sleep=2)
        for g in range(3): ysend(g)
    st(e, "ydone")
    e.lg0()
    e("s_barrier")
    st.dump(e); info["S"] = st.names
    e("s_endpgm")

    e.vm = []; e.lg = []
    e.label("K_SPARE")
    st = Stamper(stamps, 143)
    e("s_cmp_ge_u32 s2, 256\ns_cbranch_scc1 K_END\nv_mov_b32 v2, v0\nv_and_b32 v0, 63, v0\ns_lshr_b32 s3, s3, 6")
    e("v_lshlrev_b32 v7, 7, v2")
    e("s_sub_u32 s4, s2, 224\ns_lshr_b32 s5, s4, 1\ns_and_b32 s6, s4, 1")
    e("v_lshrrev_b32 v3, 4, v2\nv_and_b32 v4, 15, v2\nv_mul_u32_u24 v5, 0xe00, v3\nv_lshl_add_u32 v5, v4, 4, v5")
    e(f"v_mov_b32 v6, 0\ns_mov_b32 s82, {WS_EP}\ns_lshl_b32 s28, s5, 8")
    e("s_cmp_eq_u32 s6, 0")
    e("s_waitcnt lgkmcnt(0)")
    e("s_cselect_b32 s16, s52, s54\ns_cselect_b32 s17, s53, s55")
    e(f"s_and_b32 s17, s17, 0xffff\ns_mov_b32 s18, {448*3584}\ns_mov_b32 s19, 0x20000")
    srd(e, 20, 62, WS_LIM)
    srd(e, 8, 56, 1792 * 896)
    srd(e, 64, 42, 448 * 896)
    srd(e, 68, 44, 448 * 896)
    if late:
        e("s_cmp_lg_u32 s3, 0\ns_cbranch_scc1 K_sp6\nv_min_u32 v84, 6, v0\nv_lshlrev_b32 v84, 7, v84\ns_mov_b64 exec, 0x7f")
        for i, p in enumerate((34, 36, 46, 48, 58)): e(f"global_load_dword v{85+i}, v84, s[{p}:{p+1}]")
        e("s_mov_b64 exec, -1")
        e.label("K_sp6")
    e("s_cmp_ge_u32 s4, 28\ns_cbranch_scc1 K_sp4")
    e.vmem("buffer_load_dword v6, v6, s[20:23], s82 offen sc1", "ep")
    for i in range(14):
        e.vmem(f"buffer_load_dwordx4 v[{16+4*i}:{19+4*i}], v5, s[16:19], s28 offen", ("cs", i))
        if i < 13: e(f"s_add_u32 s28, s28, {32*3584}")
    if warm:
        e("s_mul_i32 s28, s4, 57344\ns_mul_i32 s29, s4, 14336")
        e.vmem("buffer_load_dword v80, v7, s[8:11], s28 offen", "t")
        e("v_and_b32 v4, 0x3fff, v7\ns_cmp_lt_u32 s3, 2\ns_cselect_b32 s64, s64, s68\ns_cselect_b32 s65, s65, s69\ns_cmp_lt_u32 s3, 4\ns_cselect_b32 s66, s66, 0")
        e.vmem("buffer_load_dword v81, v4, s[64:67], s29 offen", "t")
    for q in range(8): e(f"v_mov_b32 v{8+q}, 0")
    for i in range(14):
        e.vm_wait({("cs", i)})
        for q in range(4):
            e(f"v_lshlrev_b32 v72, 16, v{16+4*i+q}\nv_and_b32 v73, 0xffff0000, v{16+4*i+q}\nv_pk_add_f32 v[{8+2*q}:{9+2*q}], v[{8+2*q}:{9+2*q}], v[72:73]")
    e("v_lshlrev_b32 v3, 5, v2")
    e("ds_write_b128 v3, v[8:11]\nds_write_b128 v3, v[12:15] offset:16\ns_waitcnt lgkmcnt(0)")
    st(e, "acc")
    e("s_barrier")
    e("s_cmp_lg_u32 s3, 7\ns_cbranch_scc1 K_sp2")
    e("v_lshlrev_b32 v3, 3, v0\nv_add_u32 v9, 1, v6\nv_max_u32 v9, 1, v9\nv_mov_b32 v11, v9")
    for h in range(2):
        for i in range(16): e(f"ds_read_b64 v[{16+2*i}:{17+2*i}], v3 offset:{(16*h+i)*512}")
        e("s_waitcnt lgkmcnt(0)")
        if h == 0: e("v_mov_b32 v12, 0\nv_mov_b32 v13, 0")
        for i in range(16): e(f"v_pk_add_f32 v[12:13], v[12:13], v[{16+2*i}:{17+2*i}]")
    e(f"v_mov_b32 v8, v12\nv_mov_b32 v10, v13\nv_lshlrev_b32 v3, 4, v0\ns_lshl_b32 s30, s4, 10\ns_add_u32 s30, s30, {WS_CS}")
    e("buffer_store_dwordx4 v[8:11], v3, s[20:23], s30 offen sc1")
    e.label("K_sp2")
    e("s_barrier")
    e.label("K_sp4")
    if retouch:
        e("s_getpc_b64 s[28:29]")
        e.label("K_PC2")
        e(f"s_sub_u32 s28, s28, K_PC2-{name}\ns_subb_u32 s29, s29, 0\nv_min_u32 v7, ALL_END-{name}-4, v7\nglobal_load_dword v83, v7, s[28:29] sc1")
    e.label("K_sp3")
    st.dump(e); info["sp"] = st.names
    e.label("K_END")
    e("s_endpgm")
    e.label("ALL_END")
    return khead(name) + e.text(), kd(name, 256, 256), info

if __name__ == "__main__":
    import sys, json
    NAME = "recurrent_scan__ssm_conv_s5__glu_gated_reglu__prompt_kernel"
    stamps = "stamps" in sys.argv
    kw = {}
    for a in sys.argv[2:]:
        if "=" in a:
            k, v = a.split("="); kw[k] = int(v) if v.lstrip("-").isdigit() else v
    b, d, info = gen_fused(NAME, stamps=stamps, **kw)
    hdr = open("recurrent_scan__ssm_conv_s5__glu_gated_reglu__prompt.s.ref").read().split("; Override")[0]
    txt = hdr + f"; @launch grid=(256,1,1) block=(512,1,1) lds={LDS_BYTES}\n"
    if stamps and "rt" in sys.argv: txt += "; RT\n"
    if stamps: txt += "; STAMPS " + json.dumps(info) + "\n"
    txt += '.amdgcn_target "amdgcn-amd-amdhsa--gfx950"\n' + b + d
    open(sys.argv[1], "w").write(txt)
```

```python
from asmlib import *
from layout7 import *
import sys as _sys
APAD = int(([a[5:] for a in _sys.argv if a.startswith("apad=")] + ["0"])[0])
if APAD:
    A_W += APAD
    WS_AY = WS_END + (2 << 20); WS_AO = WS_AY + 32 * A_W
    WS_LIM = WS_AO + 64 * A_W
else:
    WS_LIM = WS_END
LDS_BYTES = 163840
RING = 114688
NR = 5
MISC = RING + NR * 8192
STAT = MISC
CSB = MISC + 1024
CSW = MISC + 2048
SUB = MISC + 3072
FLG = MISC + 7168
LOG2E = 0x3fb8aa3b
SPIN_MAX = 0x200000
UNIT = 114688
CH = 16384
import sys
PADAT = ([a[6:] for a in sys.argv if a.startswith('padat=')] + [''])[0]
TIMER = 's_memrealtime' if 'rt' in sys.argv else 's_memtime'
C0 = 2 * CH
SC = 4 * CH

def mfma(d, a, b, first=False):
    c = "0" if first else f"v[{d}:{d+15}]"
    return f"v_mfma_f32_32x32x16_bf16 v[{d}:{d+15}], v[{a}:{a+3}], v[{b}:{b+3}], {c}"

def mf16(d, a, b, first=False):
    c = "0" if first else f"v[{d}:{d+3}]"
    return f"v_mfma_f32_16x16x32_bf16 v[{d}:{d+3}], v[{a}:{a+3}], v[{b}:{b+3}], {c}"

class Stamper:
    def __init__(self, on, vreg): self.on = on; self.n = 0; self.v = vreg; self.names = []
    def __call__(self, e, name=""):
        if PADAT and name == PADAT and self.v == 127: e("s_memrealtime s[100:101]")
        if not self.on: return
        e.lg0()
        e(f"v_writelane_b32 v{self.v}, s80, {self.n}\n{TIMER} s[80:81]")
        self.n += 1; self.names.append(name)
        assert self.n <= 60
    def dump(self, e):
        if not self.on: return
        e("s_waitcnt vmcnt(0)")
        self(e, "end"); self(e)
        e("s_memrealtime s[80:81]\ns_waitcnt lgkmcnt(0)")
        e(f"v_writelane_b32 v{self.v}, s96, 62\nv_writelane_b32 v{self.v}, s80, 63\ns_mov_b32 s80, {self.n}\nv_writelane_b32 v{self.v}, s80, 61")
        e(f"s_mov_b32 s22, {WS_END + (1<<20)}")
        e("s_lshl_b32 s82, s2, 3\ns_add_u32 s82, s82, s3\ns_lshl_b32 s82, s82, 8")
        e(f"s_add_u32 s82, s82, {WS_END}")
        e("v_lshlrev_b32 v1, 2, v0")
        e(f"buffer_store_dword v{self.v}, v1, s[20:23], s82 offen")

def spin(e, body, cond_ok, sleep=1):
    l = e.newlabel("SP")
    e("s_mov_b32 s95, 0")
    e.label(l)
    body()
    e(cond_ok)
    e(f"s_cbranch_scc1 {l}_ok")
    if sleep: e(f"s_sleep {sleep}")
    e(f"s_add_u32 s95, s95, 1\ns_cmp_lt_u32 s95, {SPIN_MAX}\ns_cbranch_scc1 {l}")
    e.label(l + "_ok")

def tau_of_lane(e, d, t):
    e(f"v_bfe_u32 v{d}, v0, 2, 1\nv_lshlrev_b32 v{d}, 4, v{d}\nv_bfe_u32 v{t}, v0, 3, 2\nv_lshl_add_u32 v{d}, v{t}, 2, v{d}\nv_and_b32 v{t}, 3, v0\nv_add_u32 v{d}, v{d}, v{t}")

def plan_slots(cc):
    rp = {}
    for m in range(2, 28):
        rp[m] = m - 2
    if cc < 7:
        b = 4 * (cc - 1)
        for m, p in zip(range(b + 2, b + 8), (b, b + 1, b + 1, b + 2, b + 3, b + 3)): rp[m] = p
        for m in range(b + 8, 28): rp[m] = m - 4
    rp[0] = rp[1] = -1
    rd = {n: [m for m in range(28) if rp[m] == n] for n in range(-1, 28)}
    wslot = {n: ("r", ((n + 2) % NR) * 8192) for n in range(5)}
    issue = {}
    nxt = 5
    free = []
    wd = []
    for n in range(28):
        if n in (5, 9):
            c = (n >> 2) - 1
            free += [("c", c * CH), ("c", c * CH + 2048)]
        free += [wslot[m] for m in rd[n - 1]]
        issue[n] = []
        cap = 2 if n < 13 else 1
        while free and nxt < 28 and len(issue[n]) < cap:
            wslot[nxt] = free.pop(0); issue[n].append(nxt); nxt += 1
        if nxt == 28 and not issue[n] and free: wd.append((free.pop(0), n + 1, 0))
    assert len(wd) == 9 and not free, (wd, free)
    wd += [(("r", -8192), 0, 7)] + [(("c", C0 + (i >> 1) * CH + (i & 1) * 2048), 0, 0) for i in range(4)]
    return wslot, issue, rd, wd

def gen_fused(name, stamps=False, D0=3, pad=0, ra=0, kint=2, fine=1, sidle=0, sprio=3, sprio2=0, fprio=2, NA=20, pace=0, warm=2, ypre=9, ssl=1, ysl=3, t0=29, ywait=6, wsl=1, pxs=3072, lin=0, cf=2, direct=1, pf=1, strim=1, hsl=4, deep=0, ysl2=0, spw=1, spd=0, cc=2, ovl=1, thr=14, cap=3, sch=1, ych=0, postb=0, ag1=1, adel=1, fgrp=2, xne=2, lw=0, psl=1, na0=99, dep=20, yprio=3, apad=0, ymode=0, ty=40, tpos=1, tfl='', retouch=0, xo=6, lp=1, cw=248, front=0, tlb=0, probe=0, late=0, rb_o=0, rb_y=0, padwg=-1, padat='', tr=50, gap=0, pt=0, pt0=15, ptn=7, noc=0, nowd=0, dwarm=0, outfl='nt', force=0, bulk=0):
    e = Em2()
    info = {}
    wslot, wissue, wrd, wdslot = plan_slots(cc)
    def stores(ins_list, tag):
        for x in ins_list: e.vmem(x + " sc1", tag)
    def dual(ins_list, tag, on=True):
        if not on: return stores(ins_list, tag)
        l = e.newlabel("DS")
        e(f"s_cmp_eq_u32 s97, 2\ns_cbranch_scc1 {l}_l")
        for x in ins_list: e(x + " sc1")
        e(f"s_branch {l}_e")
        e.label(l + "_l")
        for x in ins_list: e.vmem(x, tag)
        e.label(l + "_e")
    def wd_setup(va, sr):
        e(f"v_lshrrev_b32 v{va}, 3, v0\nv_mul_u32_u24 v{va}, 0x380, v{va}\nv_lshrrev_b32 v{va+1}, 4, v0\nv_lshlrev_b32 v{va+1}, 1, v{va+1}")
        e(f"v_and_b32 v1, 7, v0\nv_xor_b32 v1, v1, v{va+1}\nv_lshl_add_u32 v{va}, v1, 4, v{va}\nv_add_u32 v{va+1}, {8*896-1024}, v{va}")
        srd(e, sr, 56, 1792 * 896)
        e("s_lshl_b32 s98, s99, 1")
        e(f"s_mul_i32 s88, s4, {32*896}\ns_lshl_b32 s82, s91, 7\ns_add_u32 s88, s88, s82\ns_mul_i32 s82, s85, {7*UNIT}\ns_add_u32 s88, s88, s82")
        e(f"s_mul_i32 s64, s98, {UNIT}\ns_add_u32 s64, s64, s88\ns_add_u32 s88, s88, {7*UNIT}")
        for u in range(1, 7):
            e(f"s_add_u32 s{64+u}, s{63+u}, {UNIT}\ns_cmp_ge_u32 s{64+u}, s88\ns_cselect_b32 s82, {7*UNIT}, 0\ns_sub_u32 s{64+u}, s{64+u}, s82")
    def wd_dma(k, va, sr):
        kind, off = wdslot[k][0]
        e(f"s_add_u32 m0, s{89 if kind == 'c' else 79}, {off}\ns_add_u32 s82, s{64+(k>>1)}, {(k&1)*16*896}")
        e.vmem(f"buffer_load_dwordx4 v{va}, s[{sr}:{sr+3}], s82 offen lds", ("wd", k))
        e.vmem(f"buffer_load_dwordx4 v{va+1}, s[{sr}:{sr+3}], s82 offen offset:1024 lds", ("wd", k))
    def wd_half(k, hf):
        kind, off = wdslot[k][0]
        e(f"s_add_u32 m0, s{89 if kind == 'c' else 79}, {off}\ns_add_u32 s82, s{64+(k>>1)}, {(k&1)*16*896}")
        e.vmem(f"buffer_load_dwordx4 v{2+hf}, s[12:15], s82 offen" + (" offset:1024" if hf else "") + " lds", ("wd", k))
    def lds_wait(addr, off, cond, tmp, sleep=1):
        def body(): e(f"ds_read_b32 v{tmp}, v{addr} offset:{off}\ns_waitcnt lgkmcnt(0)\nv_readfirstlane_b32 s82, v{tmp}")
        spin(e, body, cond, sleep=sleep)
        e.lg = []
    if stamps: e(f"s_memrealtime s[96:97]\n{TIMER} s[80:81]")
    elif pad: e("s_memrealtime s[96:97]")
    e("s_load_dwordx16 s[32:47], s[0:1], 0")
    e("s_load_dwordx16 s[48:63], s[0:1], 64")
    e("v_readfirstlane_b32 s3, v0\ns_cmpk_lt_u32 s2, 224\ns_cbranch_scc1 K_MAIN")
    e(f"s_cmpk_lt_u32 s2, {cw}\ns_cbranch_scc1 K_SPARE\ns_getpc_b64 s[28:29]")
    e.label("K_PC")
    e("v_lshlrev_b32 v7, 7, v0\nv_min_u32 v7, ALL_END-K_PC-4, v7\nglobal_load_dword v83, v7, s[28:29]\ns_branch K_SPARE")
    e.label("K_MAIN")
    e("v_and_b32 v0, 63, v0\ns_lshr_b32 s3, s3, 6\ns_and_b32 s4, s3, 3\ns_and_b32 s5, s2, 3\ns_lshl_b32 s5, s5, 2\ns_bfe_u32 s99, s2, 0x20003\ns_add_u32 s5, s5, s99")
    e("s_lshr_b32 s91, s2, 5\nv_lshrrev_b32 v21, 5, v0\ns_lshl_b32 s89, s4, 12")
    def rot_off(d):
        if xo == 0:
            e(f"s_mul_i32 s{d}, s99, {ra}")
        else:
            tab = sum((((ra*(rb & 3) + xo*(rb >> 2)) % 7) << (4*rb)) for rb in range(16))
            e(f"s_mov_b32 s12, {tab & 0xffffffff}\ns_mov_b32 s13, {tab >> 32}\ns_lshl_b32 s{d}, s5, 2\ns_lshr_b64 s[12:13], s[12:13], s{d}\ns_and_b32 s{d}, s12, 7")
    rot_off0 = rot_off
    def rot_off(d):
        rot_off0(d)
        if cf:
            fct = {1: lambda c: 0, 2: lambda c: c >> 1, 3: lambda c: c & 1, 4: lambda c: (c % 3), 5: lambda c: 2*(c % 4)}[cf]
            tab = sum((((fct(c) - c) % 7) << (4*c)) for c in range(7))
            e(f"s_lshl_b32 s12, s91, 2\ns_lshr_b32 s12, {tab}, s12\ns_and_b32 s12, s12, 7\ns_add_u32 s{d}, s{d}, s12\ns_cmp_ge_u32 s{d}, 7\ns_cselect_b32 s12, 7, 0\ns_sub_u32 s{d}, s{d}, s12")
    def common2():
        e(f"s_bfe_u32 s85, s2, 0x10002\ns_mul_i32 s6, s85, 7\ns_add_u32 s6, s6, s91\ns_lshl_b32 s79, s4, 11\ns_add_u32 s79, s79, {RING}")
    def common3():
        e("v_and_b32 v20, 31, v0\nv_bfe_u32 v22, v0, 1, 3\nv_xor_b32 v22, v22, v21\nv_lshlrev_b32 v20, 7, v20")
    e("s_cmp_ge_u32 s3, 4")
    e("s_cbranch_scc1 K_S")

    st = Stamper(stamps, 127)
    e("v_bfe_u32 v6, v0, 3, 2\nv_and_b32 v9, 7, v0\nv_lshrrev_b32 v7, 4, v0\nv_xor_b32 v9, v9, v7\nv_lshlrev_b32 v9, 4, v9\nv_xor_b32 v7, 64, v9")
    e("v_lshl_add_u32 v5, v21, 4, v6\ns_movk_i32 s30, 0x380\nv_mad_u32_u24 v1, v5, s30, v9\nv_mad_u32_u24 v2, v5, s30, v7\ns_movk_i32 s31, 2560\nv_add_u32 v2, s31, v2")
    def rho():
        e("s_lshr_b32 s7, s2, 6\ns_and_b32 s10, s2, 3\ns_sub_u32 s7, s7, s10\ns_cselect_b32 s10, 7, 0\ns_add_u32 s7, s7, s10")
    if direct:
        assert (ra, xo, cf) == (0, 6, 2)
        rho()
        e("s_lshl_b32 s64, s7, 7")
    else:
        rot_off(10)
        e("s_add_u32 s7, s91, s10\ns_cmp_ge_u32 s7, 7\ns_cselect_b32 s10, 7, 0\ns_sub_u32 s7, s7, s10\ns_lshl_b32 s64, s7, 7")
    e("s_lshl_b32 s28, s5, 2\ns_add_u32 s28, s28, s4\ns_mulk_i32 s28, 28672\ns_lshl_b32 s31, s31, 1\nv_add_u32 v3, s31, v1\nv_add_u32 v4, s31, v2")
    e(f"s_mov_b32 s10, {2048*896}\ns_mov_b32 s11, 0x20000\ns_mov_b32 m0, s89\ns_add_u32 s83, s28, s64")
    e("s_waitcnt lgkmcnt(0)")
    st(e, "karg")
    e("s_mov_b32 s8, s32\ns_and_b32 s9, s33, 0xffff")
    for ii in range(4):
        e.vmem(f"buffer_load_dwordx4 v{1+ii}, s[8:11], s83 offen" + (f" offset:{ii*1024}" if ii else "") + " lds", ("x", 0))
    common2()
    e(f"v_lshl_add_u32 v6, v21, 3, v6\nv_mad_u32_u24 v5, v6, s30, v9\nv_mad_u32_u24 v6, v6, s30, v7\nv_add_u32 v6, {4*896-1024}, v6")
    e("s_lshl_b32 s29, s6, 1\ns_and_b32 s30, s4, 1\ns_add_u32 s29, s29, s30\ns_mulk_i32 s29, 14336")
    e(f"s_cmp_lt_u32 s4, 2\ns_cselect_b32 s12, s38, s40\ns_cselect_b32 s13, s39, s41\ns_and_b32 s13, s13, 0xffff\ns_mov_b32 s14, {448*896}\ns_mov_b32 s15, 0x20000")
    e("s_mov_b32 m0, s79\ns_add_u32 s83, s29, s64")
    e.vmem("buffer_load_dwordx4 v5, s[12:15], s83 offen lds", ("x", 0))
    e.vmem("buffer_load_dwordx4 v6, s[12:15], s83 offen offset:1024 lds", ("x", 0))
    e(f"s_setprio {fprio}")
    for c in range(1, 7):
        e(f"s_add_u32 s{64+c}, s{63+c}, 128\ns_cmp_ge_u32 s{64+c}, 896\ns_cselect_b32 s{64+c}, 0, s{64+c}")
    def xb_burst(c):
        e(f"s_add_u32 m0, s89, {c*CH}\ns_add_u32 s83, s28, s{64+c}")
        for ii in range(4):
            e.vmem(f"buffer_load_dwordx4 v{1+ii}, s[8:11], s83 offen" + (f" offset:{ii*1024}" if ii else "") + " lds", ("x", c))
        e(f"s_add_u32 m0, s79, {(c % NR)*8192}\ns_add_u32 s83, s29, s{64+c}")
        e.vmem("buffer_load_dwordx4 v5, s[12:15], s83 offen lds", ("x", c))
        e.vmem("buffer_load_dwordx4 v6, s[12:15], s83 offen offset:1024 lds", ("x", c))
    if D0 > 1: xb_burst(1)
    if probe:
        st(e, "iss0")
        e("s_waitcnt vmcnt(5)")
        st(e, "land1")
        e("s_waitcnt vmcnt(0)")
        st(e, "land0")
    srd(e, 20, 62, WS_LIM)
    e(f"v_mov_b32 v120, 0\ns_mov_b32 s82, {WS_EP}")
    def ep_load():
        e(f"s_mov_b32 s82, {WS_EP}\ns_mov_b64 exec, 1")
        e.vmem("buffer_load_dword v120, v120, s[20:23], s82 offen sc1", "ep")
        e("s_mov_b64 exec, -1")
    if not late: ep_load()
    e(f"v_mov_b32 v124, 0\nv_mov_b32 v125, 0\ns_lshl_b32 s31, s4, 9\ns_add_u32 s31, s31, {SUB}\nv_lshl_add_u32 v8, v0, 3, s31")
    e.lds("ds_write_b64 v8, v[124:125]")
    e(f"v_lshlrev_b32 v8, 2, v0\nv_add_u32 v8, {FLG}, v8")
    e.lds("ds_write_b32 v8, v124")
    e("v_lshrrev_b32 v23, 4, v0\nv_and_b32 v20, 15, v0\nv_bfe_u32 v10, v0, 1, 3\nv_xor_b32 v10, v10, v23\nv_lshlrev_b32 v10, 4, v10\nv_lshl_add_u32 v10, v20, 7, v10")
    e("v_xor_b32 v11, 64, v10\nv_add_u32 v12, 0x10000, v10\nv_add_u32 v13, 0x10000, v11")
    srd(e, 16, 52, 448 * 3584)
    srd(e, 24, 54, 448 * 3584)
    e("s_lshl_b32 s31, s6, 8\ns_lshl_b32 s82, s4, 6\ns_add_u32 s31, s31, s82")
    for c in range(7): e(f"s_mul_i32 s{72+c}, s{64+c}, 1792\ns_add_u32 s{72+c}, s{72+c}, s31")
    e("v_bfe_u32 v8, v0, 2, 2\nv_lshl_add_u32 v7, v23, 3, v8\nv_mul_u32_u24 v7, 0xe00, v7\nv_and_b32 v22, 1, v23\nv_lshlrev_b32 v9, 1, v22\nv_and_b32 v14, 3, v0\nv_xor_b32 v9, v9, v14\nv_lshl_add_u32 v7, v9, 4, v7")
    e("v_lshrrev_b32 v9, 2, v0\nv_lshlrev_b32 v9, 6, v9\nv_lshl_add_u32 v9, v22, 5, v9\nv_lshl_add_u32 v9, v14, 3, v9\nv_add_u32 v125, s89, v9\nv_add_u32 v9, s79, v9\nv_xor_b32 v14, 32, v9\nv_xor_b32 v15, 32, v125")
    e("v_lshlrev_b32 v18, 4, v0")
    e(f"s_lshl_b32 s31, s4, 2\ns_add_u32 s31, s31, {FLG}\nv_mov_b32 v19, s31")
    e(f"s_lshl_b32 s31, s4, 8\ns_add_u32 s31, s31, {CSW}\nv_lshl_add_u32 v122, v23, 4, s31")
    e("v_bfe_u32 v123, v0, 2, 1\nv_lshlrev_b32 v123, 4, v123\nv_bfe_u32 v8, v0, 3, 1\nv_lshl_add_u32 v123, v8, 2, v123\nv_and_b32 v8, 3, v0\nv_add_u32 v123, v123, v8")
    e(f"v_lshlrev_b32 v123, 2, v123\nv_add_u32 v123, {STAT}, v123\nv_lshlrev_b32 v17, 2, v8\nv_add_u32 v17, {FLG}, v17\nv_mov_b32 v8, {FLG}")
    e(f"s_lshl_b32 s92, s5, 2\ns_add_u32 s92, s92, s4\ns_mul_i32 s92, s92, {A_W}\ns_add_u32 s92, s92, {WS_AO}\ns_lshl_b32 s31, s6, 13\ns_add_u32 s86, s92, s31\ns_add_u32 s87, s86, 4096")
    if probe: st(e, "setup")
    for c in range(2, D0): xb_burst(c)
    ptl = list(range(64)) if pt else []
    def pretouch(n):
        for _ in range(n):
            if ptl: e(f"s_load_dword s100, s[46:47], {ptl.pop(0) * 128}")
    if pt:
        e.lg0()
        e("s_add_u32 s46, s62, s86\ns_addc_u32 s47, s63, 0")
        pretouch(pt0)
    def dma_parts(kd_, a1, a2):
        if kd_ == "w":
            c, jj = a1 >> 2, a1 & 3
            kind, off = wslot[a1]
            return (f"s_add_u32 m0, s{89 if kind == 'c' else 79}, {off + a2*1024}\ns_add_u32 s83, s{72+c}, {(32*(jj >> 1) + 4*(jj & 1))*3584}",
                    f"buffer_load_dwordx4 v7, s[{16+8*a2}:{19+8*a2}], s83 offen lds", ("w", a1))
        if kd_ == "d":
            kind, off = wdslot[a1][0]
            return (f"s_add_u32 m0, s{89 if kind == 'c' else 79}, {off}\ns_add_u32 s83, s{64+(a1>>1)}, {(a1&1)*16*896}",
                    f"buffer_load_dwordx4 v{2+a2}, s[12:15], s83 offen" + (" offset:1024" if a2 else "") + " lds", ("wd", a1))
        return (f"s_add_u32 m0, s89, {C0 + (a1 >> 2)*CH + (a1 & 2)*1024}\ns_add_u32 s83, s{28 if a1 < 8 else 94}, {((a1 & 7) >> 1)*16*896}",
                f"buffer_load_dwordx4 v{5 + (a1 & 1)}, s[8:11], s83 offen" + (" offset:1024" if a1 & 1 else "") + " lds", ("c", a1 >> 3))
    def w_issue(n, mt):
        a, b, t = dma_parts("w", n, mt)
        e(a); e.vmem(b, t)
    def wreads(m):
        kind, wo = wslot[m]
        ws_ = 24 + 16*((m >> 1) & 3) + 2*(m & 1)
        return [(f"ds_read_b64_tr_b16 v[{ws_+8*mt+4*ft}:{ws_+8*mt+4*ft+1}], v{((125, 15) if kind == 'c' else (9, 14))[ft]} offset:{wo + mt*1024}", ("W", m)) for mt in range(2) for ft in range(2)]
    def xmap(q):
        c, z = q >> 4, q & 15
        return (c, z >> 3, z & 7) if c < cc else (c, z & 1, z >> 1)
    def xreg(q): return 88 + 4*(q % 5)
    def xread(q):
        c, dp, tt = xmap(q)
        return (f"ds_read_b128 v[{xreg(q)}:{xreg(q)+3}], v{10 + dp + (2 if c >= 4 else 0)} offset:{(c & 3)*CH + tt*2048}", ("X", q))
    for sg in range(8):
        tags = {("x", sg)}
        eps = 7 if late else 1
        if sg == eps: tags.add("ep")
        e.vm_wait(tags)
        if sg == 0 and not pt: e.lg0()
        if sg == 7 and not postb:
            e.vm_wait({("w", 1)})
            for s, t in wreads(0) + wreads(1) + [xread(q) for q in range(4)]: e.lds(s, t)
        if not pt or sg == 7: st(e, f"b{sg}")
        e("s_barrier")
        if sg + D0 < 7: xb_burst(sg + D0)
        if 3 <= sg < 7:
            w_issue(sg - 3, 0); w_issue(sg - 3, 1)
        if late and sg == 4: ep_load()
        if sg == eps: e("v_readfirstlane_b32 s84, v120\ns_add_u32 s84, s84, 1\ns_max_u32 s84, s84, 1")
        if sg < 7: pretouch(ptn)
        if sg == 5: wd_setup(2, 12)
        if sg == 6:
            e(f"s_bitcmp1_b32 s4, 1\ns_cselect_b32 s8, s44, s42\ns_cselect_b32 s9, s45, s43\ns_and_b32 s9, s9, 0xffff\ns_mov_b32 s10, {448*896}")
            e(f"s_mul_i32 s29, s91, {64*896}\ns_and_b32 s30, s4, 1\ns_lshl_b32 s28, s85, 2\ns_add_u32 s94, s28, 2\ns_add_u32 s28, s28, s30\ns_cmp_eq_u32 s30, 0\ns_cselect_b32 s94, s94, 3")
            e("s_lshl_b32 s28, s28, 7\ns_add_u32 s28, s28, s29\ns_lshl_b32 s94, s94, 7\ns_add_u32 s94, s94, s29")
            e("v_lshrrev_b32 v4, 3, v0\nv_mul_u32_u24 v4, 0x380, v4\nv_and_b32 v5, 7, v0\nv_lshrrev_b32 v6, 4, v0\nv_xor_b32 v5, v5, v6\nv_lshlrev_b32 v5, 4, v5")
            e(f"v_xor_b32 v6, 64, v5\nv_add_u32 v5, v4, v5\nv_add_u32 v6, v4, v6\nv_add_u32 v6, {8*896-1024}, v6")
    assert not ptl
    w_issue(4, 0); w_issue(4, 1)
    if postb:
        e.vm_wait({("w", 1)})
        for s, t in wreads(0) + wreads(1) + [xread(q) for q in range(4)]: e.lds(s, t)
    CS = 56; MM = 72
    cs_rd = [("ds_read_b32 v121, v19 offset:16", "cs")] + [(f"ds_read_b32 v{MM+tt}, v123 offset:{(tt >> 1)*128 + (tt & 1)*32}", "cs") for tt in range(8)]
    cs_rd += [(f"ds_read_b128 v[{CS+8*mt+4*ft}:{CS+8*mt+4*ft+3}], v122 offset:{mt*128 + ft*64}", "cs") for mt in range(2) for ft in range(2)]
    p2 = []
    def p_(s): p2.extend(s.split("\n"))
    p_("v_lshrrev_b32 v115, 2, v0\nv_bfe_u32 v114, v0, 3, 2\ns_and_b32 s31, s4, 2\nv_xor_b32 v114, s31, v114\nv_lshlrev_b32 v115, 7, v115\nv_lshl_add_u32 v115, v114, 5, v115\nv_and_b32 v114, 3, v0\nv_lshl_add_u32 v115, v114, 3, v115")
    p_(f"s_lshl_b32 s30, s31, 12\ns_lshl_b32 s31, s31, 11\ns_add_u32 s31, s31, {RING - 8192}\nv_add_u32 v108, s30, v115\nv_add_u32 v112, s31, v115")
    for cb in range(1, 4): p_(f"v_xor_b32 v{108+cb}, {32*cb}, v108\nv_xor_b32 v{112+cb}, {32*cb}, v112")
    p_(f"s_lshl_b32 s93, s5, 1\ns_add_u32 s93, s93, s85\ns_lshl_b32 s93, s93, 10\ns_add_u32 s93, s93, {WS_FO}")
    p_(f"s_and_b32 s31, s4, 1\ns_mul_i32 s31, s31, {A_W}\ns_sub_u32 s92, s92, s31")
    p_(f"s_mul_i32 s31, s85, {7*8192}\ns_add_u32 s92, s92, s31")
    p_(f"s_lshl_b32 s90, s98, 13\ns_add_u32 s90, s90, s92\ns_add_u32 s92, s92, {7*8192}\ns_add_u32 s71, s90, {A_W}")
    p_("s_lshl_b32 s29, s85, 6\ns_and_b32 s31, s4, 1\ns_lshl_b32 s31, s31, 5\ns_add_u32 s29, s29, s31\ns_lshl_b32 s30, s5, 7\ns_add_u32 s30, s30, s29")
    p_(f"v_lshlrev_b32 v117, 4, v22\nv_lshl_add_u32 v117, v21, 2, v117\nv_add_u32 v116, s30, v117\ns_lshl_b32 s29, s29, 2\ns_add_u32 s29, s29, {STAT}\nv_lshl_add_u32 v117, v117, 2, s29")
    p_("s_lshl_b32 s29, s91, 8\ns_lshr_b32 s31, s4, 1\ns_lshl_b32 s31, s31, 7\ns_add_u32 s29, s29, s31\nv_mul_u32_u24 v116, 0x700, v116\nv_lshl_add_u32 v116, v20, 2, v116\nv_add_u32 v116, s29, v116")
    for q in range(1, 8): p_(f"s_movk_i32 s{32+q}, {q*3584}")
    p_(f"s_mul_i32 s40, s5, 7\ns_add_u32 s40, s40, s91\ns_lshl_b32 s40, s40, 1\ns_add_u32 s40, s40, s85\ns_lshl_b32 s40, s40, 2\ns_add_u32 s40, s40, s4\ns_xor_b32 s41, s40, 4\ns_mul_i32 s40, s40, {pxs}\ns_mul_i32 s41, s41, {pxs}\ns_add_u32 s40, s40, {WS_PX + 896*pxs}\ns_add_u32 s41, s41, {WS_PX + 896*pxs}")
    slow = []; slow2 = []; slow3 = []
    def epi_plain(g):
        G, U = 128 + 8*g, 192 + 8*g
        o = []
        for r in range(8): o += [f"v_fma_f32 v{G+r}, -v{CS+r}, v{MM+g}, v{G+r}", f"v_fma_f32 v{U+r}, -v{CS+8+r}, v{MM+g}, v{U+r}"]
        for r in range(8): o.append(f"v_max_f32 v{G+r}, 0, v{G+r}")
        for r in range(8): o.append(f"v_mul_f32 v{G+r}, v{G+r}, v{U+r}")
        for r in range(4): o.append(f"v_cvt_pk_bf16_f32 v{U+r}, v{G+2*r}, v{G+2*r+1}")
        return o
    def hh_store(g): dual([f"buffer_store_dwordx4 v[{192+8*g}:{195+8*g}], v18, s[20:23], s{86 + (g >> 2)} offen offset:{(g & 3)*1024}"], "hh", bulk & 1)
    xn_ = 4
    epq = []
    epi_done = 0; csok = [False]
    for n in range(28):
        c = n >> 2
        chained = c >= cc
        it = []
        wr = [x for m in wrd[n] for x in wreads(m)]
        for k, x in enumerate(wr): it.append((1 + (k * (10 if len(wr) > 4 else 8)) // len(wr), 1, lambda x=x: e.lds(*x)))
        dq = [("w", m, mt) for m in wissue[n] for mt in range(2)]
        for k in range(9):
            if wdslot[k][1] - 1 == n: dq += [("d", k, 0), ("d", k, 1)]
        cpl = {n_: [n_ - 13] for n_ in range(13, 25)}; cpl.update({25: [12, 13], 26: [14, 15]})
        if lin:
            cpl.update({17: [4, 5], 18: [6, 7], 19: [], 20: []})
            for k, hf in {25: [(10, 0), (10, 1)], 26: [(11, 0), (11, 1)], 27: [(12, 0), (12, 1), (13, 0), (13, 1)]}.get(n, []): dq.append(("d", k, hf))
            if n == 20: it.append((9, 2, lambda: (e.vm_wait({("c", 0)}), e.lds("ds_write_b32 v19, v126 offset:144"))))
            if n == 24: it.append((13, 1, lambda: e.lds("ds_read_b32 v121, v8 offset:88", "cp")))
            if n == 25:
                def cpc():
                    e.lg_wait({"cp"})
                    l = e.newlabel("CP")
                    e(f"v_readfirstlane_b32 s82, v121\ns_cmp_lt_u32 s82, 4\ns_cbranch_scc1 {l}")
                    e.label(l + "_r")
                    slow2.append((l, 8, 88, "s_cmp_ge_u32 s82, 4"))
                it.append((1, 4, cpc))
        for a in cpl.get(n, []): dq.append(("c", a, 0))
        assert len(dq) <= 4, (n, dq)
        for k, x in enumerate(dq):
            g0 = {1: (10,), 2: (6, 14), 3: (6, 10, 14), 4: (2, 6, 10, 14)}[len(dq)][k]
            pr = dma_parts(*x)
            it.append((g0, 2, lambda pr=pr: e(pr[0])))
            it.append((g0 + 1, 1, lambda pr=pr: e.vmem(pr[1], pr[2])))
        if n in (4, 8, 12, 16, 20, 24):
            it.append((5, 1, lambda: e.lds("ds_read_b32 v16, v17", "pg")))
            it.append((13, 2, lambda n=n: (e.lg_wait({"pg"}), e(f"v_cmp_gt_u32 vcc, {n >> 2}, v16"))))
        if n in (5, 9, 13, 17, 21, 25):
            def pg(n=n):
                l = e.newlabel("PG")
                e(f"s_cbranch_vccnz {l}")
                e.label(l + "_r")
                slow.append((l, n >> 2))
            it.append((0, 1, pg))
        if (n & 3) == 3:
            def prog(n=n):
                if n == 23: e.vm_wait({("c", 0)})
                assert not any(t_[0] == "X" and (t_[1] >> 4) == (n >> 2) for t_ in e.lg if isinstance(t_, tuple))
                e(f"v_mov_b32 v126, {(n >> 2) + 1}")
                e.lds("ds_write_b32 v19, v126")
            it.append((13, 2, prog))
        csn = 24 if (ovl and cc < 7) else 27
        if n == csn:
            for k, x in enumerate(cs_rd): it.append((k * 5 // len(cs_rd), 1, lambda x=x: e.lds(*x)))
            if csn == 24:
                def cschk():
                    e.lg_wait({"cs"})
                    e("v_readfirstlane_b32 s97, v121\ns_cmp_eq_u32 s97, 0\ns_cbranch_scc1 K_csslow")
                    e.label("K_csok")
                    csok[0] = True
                it.append((12, 4, cschk))
        it.sort(key=lambda x: x[0])
        for i in range(16):
            z = 16*(n & 3) + i
            if chained: tt, f4, dp = z >> 3, (z >> 1) & 3, z & 1; q = 16*c + 2*tt + dp; newx = (z & 7) < 2
            else: dp, tt, f4 = z >> 5, (z >> 2) & 7, z & 3; q = 16*c + 8*dp + tt; newx = f4 == 0
            mt, ft = f4 >> 1, f4 & 1
            tg = {("X", q)} if newx else set()
            if i == 0: tg |= {("W", m) for m in wrd[n - 1]}
            nv = e.vm_need({("w", m) for m in wrd[n]}) if i == 0 else None
            idx = [x for x, y in enumerate(e.lg) if y in tg]
            parts = []
            if nv is not None:
                parts.append(f"vmcnt({nv})"); e.vm = e.vm[len(e.vm) - nv:] if nv else []
            if idx:
                nl = min(15, len(e.lg) - 1 - idx[-1]); parts.append(f"lgkmcnt({nl})"); e.lg = e.lg[len(e.lg) - nl:] if nl else []
            if parts: e("s_waitcnt " + " ".join(parts))
            e(mf16(128 + 64*mt + 8*tt + 4*ft, 24 + 32*(c & 1) + 16*dp + 8*mt + 4*ft, xreg(q), c == 0 and dp == 0))
            used = 0
            oldest = (q & ~1) if chained else q
            if xn_ < 112 and xn_ < oldest + 5:
                e.lds(*xread(xn_)); xn_ += 1; used += 1
            while it and (it[0][0] <= i) and (used == 0 or used + it[0][1] <= 2 or i == 15):
                x = it.pop(0); x[2](); used += x[1]
            if ovl and chained and c == 6 and csok[0] and not epq and z >= 8*epi_done + 12 and 64 - z >= thr:
                epq = epi_plain(epi_done) + [epi_done]; epi_done += 1
            while used < cap and (epq or (p2 and n >= 1 and used == 0)):
                if epq:
                    x = epq.pop(0)
                    if isinstance(x, int): hh_store(x)
                    else: e(x)
                else: e(p2.pop(0))
                used += 1
        assert not it
        if (fine and (n & 3) == 3) or n == 27: st(e, f"k{n}")
    assert not p2
    for x in epq:
        if isinstance(x, int): hh_store(x)
        else: e(x)
    def csbody():
        for s, t in cs_rd: e(s)
        e("s_waitcnt lgkmcnt(0)\nv_readfirstlane_b32 s97, v121")
    if not (ovl and cc < 7):
        e.lg0()
        e("v_readfirstlane_b32 s97, v121\ns_cmp_eq_u32 s97, 0\ns_cbranch_scc1 K_csslow")
        e.label("K_csok")
    st(e, "cs")
    info["epi_hidden"] = epi_done
    for g in range(epi_done, 8):
        G, U = 128 + 8*g, 192 + 8*g
        mp = MM + (g & 6)
        sel = ("op_sel:[0,1,0] op_sel_hi:[1,1,1]" if g & 1 else "op_sel_hi:[1,0,1]") + " neg_lo:[1,0,0] neg_hi:[1,0,0]"
        rs = range(0, 8, 2)
        if g == 7:
            e.lds("ds_read_b32 v16, v17", "pg")
            e.lds("ds_read_b32 v121, v8 offset:88", "pg")
        for r in rs:
            e(f"v_pk_fma_f32 v[{G+r}:{G+r+1}], v[{CS+r}:{CS+r+1}], v[{mp}:{mp+1}], v[{G+r}:{G+r+1}] {sel}")
            e(f"v_pk_fma_f32 v[{U+r}:{U+r+1}], v[{CS+8+r}:{CS+9+r}], v[{mp}:{mp+1}], v[{U+r}:{U+r+1}] {sel}")
        for r in rs: e(f"v_max_f32 v{G+r}, 0, v{G+r}\nv_max_f32 v{G+r+1}, 0, v{G+r+1}")
        for r in rs: e(f"v_pk_mul_f32 v[{G+r}:{G+r+1}], v[{G+r}:{G+r+1}], v[{U+r}:{U+r+1}]")
        for r in rs: e(f"v_cvt_pk_bf16_f32 v{U + (r >> 1)}, v{G+r}, v{G+r+1}")
        hh_store(g)
    e.vm_wait({("c", 1)})
    e.lds("ds_write_b32 v19, v126 offset:32")
    e.lg_wait({"pg"})
    l = e.newlabel("PG")
    e(f"v_cmp_gt_u32 vcc, 7, v16\ns_nop 4\ns_cbranch_vccnz {l}")
    e.label(l + "_r")
    slow.append((l, 7))
    l = e.newlabel("CP")
    e(f"v_readfirstlane_b32 s82, v121\ns_cmp_lt_u32 s82, 4\ns_cbranch_scc1 {l}")
    e.label(l + "_r")
    slow2.append((l, 8, 88, "s_cmp_ge_u32 s82, 4"))
    st(e, "epi")
    e("s_setprio 0")
    XR, MR, RR = 56, 72, 88
    for q in range(2):
        e.lds(f"ds_read_b128 v[{RR+4*q}:{RR+4*q+3}], v117 offset:{512+32*q}")
    e("s_and_b32 s31, s4, 1\ns_xor_b32 s30, s85, 1\ns_lshl_b32 s30, s30, 1\ns_add_u32 s31, s31, s30\ns_lshl_b32 s31, s31, 11\nv_add_u32 v10, s31, v18")
    e("s_lshl_b32 s31, s91, 7\ns_lshl_b32 s30, s4, 2\ns_add_u32 s31, s31, s30\nv_mov_b32 v16, s31\nv_mov_b32 v17, s84")
    e("v_and_b32 v14, 7, v0\nv_min_u32 v14, 6, v14\nv_lshlrev_b32 v14, 7, v14\nv_bfe_u32 v15, v0, 3, 1\nv_lshl_add_u32 v14, v15, 2, v14\ns_and_b32 s30, s30, 8\nv_add_u32 v14, s30, v14")
    e(f"s_add_u32 s31, s89, {SC}\nv_add_u32 v4, s31, v18\nv_xor_b32 v5, 0x2000, v4\nv_xor_b32 v6, 8, v19\nv_xor_b32 v9, 4, v19\ns_sub_u32 s31, s79, 16384\nv_add_u32 v7, s31, v18")
    srd(e, 16, 58, 2048 * 1792)
    e.lg0()
    for r in range(8): e(f"v_mul_f32 v{RR+r}, v{RR+r}, v{RR+r}")
    e.vm0()
    e("s_mov_b64 exec, 1")
    dual(["buffer_store_dword v17, v16, s[20:23], s93 offen"], "fl")
    e("s_mov_b64 exec, -1")
    st(e, "hhflag")
    if rb_o:
        for g in range(8): e(f"buffer_load_dwordx4 v[{192+4*g}:{195+4*g}], v18, s[20:23], s{86 + (g >> 2)} offen offset:{(g & 3)*1024} sc1")
    if not lw:
        for k in range(9, 10 if lin else 14): wd_dma(k, 2, 12)
    e("s_mov_b64 exec, 0xffff")
    def body():
        e("buffer_load_dword v17, v14, s[20:23], s93 offen sc1\ns_waitcnt vmcnt(0)\nv_cmp_eq_u32 vcc, s84, v17\ns_nop 1")
    spin(e, body, "s_cmp_eq_u64 vcc, exec", sleep=psl)
    e("s_mov_b64 exec, -1")
    e.vm = []
    if not lw: e.lds("ds_write_b32 v19, v126 offset:112")
    st(e, "hhseen")
    NT = 56
    def areg(t):
        if NA == 28: return 56 + 4*(t % 28) if t % 28 < 12 else 192 + 4*(t % 28 - 12)
        return 192 + 4*(t % NA) if t % NA < 16 else MR + 4*(t % NA - 16)
    def a_issue(t):
        sub = t & 3
        if sub == 0 and t > 0:
            e(f"s_add_u32 s90, s90, 8192\ns_cmp_ge_u32 s90, s92\ns_cselect_b32 s82, {7*8192}, 0\ns_sub_u32 s90, s90, s82")
            if t == 28: e("v_xor_b32 v10, 0x1000, v10")
            e(f"s_add_u32 s71, s90, {A_W}")
        r = areg(t)
        e.vmem(f"buffer_load_dwordx4 v[{r}:{r+3}], v10, s[20:23], s{71 if sub >> 1 else 90} offen offset:{(sub & 1)*1024} sc1", ("A", t))
    def breg(D): return 24 + 16*(D & 1)
    def b_list(D):
        u = (D % 14) >> 1; pw = D & 1
        out = []
        for cb in range(4):
            for u2 in range(2):
                kind, off = wdslot[2*u + u2][0]
                if kind == "r": bs = 112; off += 8192 + pw * 2048
                else: bs = 108; off += pw * 4096
                r = breg(D) + 4*cb + 2*u2
                out.append((f"ds_read_b64_tr_b16 v[{r}:{r+1}], v{bs+cb} offset:{off}", ("B", D, cb >> 1)))
        return out
    ai = [0]
    def a_next(lim):
        if ai[0] < min(lim, NT): a_issue(ai[0]); ai[0] += 1
    for t in range(min(na0, NA - 1)): a_next(NT)
    for s, tg in b_list(0): e.lds(s, tg)
    FO, OW = 128, 160
    side = []
    PK = XR if NA < 28 else FO + 16
    def S_(f): side.append(f)
    def both_wait(t):
        nv = e.vm_need({("A", t)})
        idx = [i for i, x in enumerate(e.lg) if x == ("B", t >> 1, 0)]
        parts = []
        if nv is not None:
            parts.append(f"vmcnt({nv})"); e.vm = e.vm[len(e.vm) - nv:] if nv else []
        if idx:
            nl = min(15, len(e.lg) - 1 - idx[-1]); parts.append(f"lgkmcnt({nl})"); e.lg = e.lg[len(e.lg) - nl:] if nl else []
        if parts: e("s_waitcnt " + " ".join(parts))
    RV = 224 if NA == 16 else 192
    YV = FO
    def recv_one(g, dst, sb): e(f"buffer_load_dwordx4 v[{dst+4*g}:{dst+4*g+3}], v18, s[20:23], s{sb} offen offset:{g*1024} sc1")
    e(f"s_sub_u32 s42, s40, {896*pxs}")
    nop = lambda: None
    for t in range(NT):
        acc = FO if t < 28 else OW
        def mkchk(tag, pfx, cond_bad, addr, off, cond_ok):
            def chk():
                e.lg_wait({tag})
                l = e.newlabel(pfx)
                e(f"v_readfirstlane_b32 s82, v121\n{cond_bad}\ns_cbranch_scc1 {l}")
                e.label(l + "_r")
                slow2.append((l, addr, off, cond_ok))
            return chk
        if lw and t == lw + 1: S_(lambda: (e.vm_wait({("wd", 13)}), e.lds("ds_write_b32 v19, v126 offset:112")))
        if t == 10: S_(lambda: e.lds("ds_read_b32 v121, v9 offset:112", "wl"))
        if t == 12: S_(mkchk("wl", "WL", "s_cmp_eq_u32 s82, 0", 9, 112, "s_cmp_lg_u32 s82, 0"))
        if t == 24: S_(lambda: e.lds("ds_read_b32 v121, v8 offset:84", "yx"))
        if t == 27:
            def chk():
                e.lg_wait({"yx"})
                l = e.newlabel("YX")
                e(f"v_readfirstlane_b32 s82, v121\ns_cmp_lt_u32 s82, 4\ns_cbranch_scc1 {l}")
                e.label(l + "_r")
                slow2.append((l, 8, 84, "s_cmp_ge_u32 s82, 4"))
            S_(chk)
        if t == t0:
            S_(nop)
            for g in range(0, 4, 2):
                def wr(g=g):
                    for gg in (g, g + 1): e.lds(f"ds_write_b128 v4, v[{FO+16+4*gg}:{FO+19+4*gg}] offset:{CH + gg*1024}")
                    if g == 2: e.lds("ds_write_b32 v19, v126 offset:48")
                S_(wr)
        if t == t0 + 3:
            def rdx():
                e.lds("ds_read_b32 v121, v6 offset:48", "ex")
                for g in range(4): e.lds(f"ds_read_b128 v[{FO+16+4*g}:{FO+19+4*g}], v5 offset:{CH + g*1024}", "ex")
            S_(rdx)
        if t == t0 + 5:
            def chk2():
                e.lg_wait({"ex"})
                l = e.newlabel("PX")
                e(f"v_readfirstlane_b32 s82, v121\ns_cmp_eq_u32 s82, 0\ns_cbranch_scc1 {l}")
                e.label(l + "_r")
                slow3.append(l)
                e.lds("ds_write_b32 v19, v126 offset:64")
            S_(chk2)
            for g in range(4):
                S_(lambda g=g: [e(f"v_add_f32 v{FO+r}, v{FO+r}, v{FO+16+r}") for r in range(4*g, 4*g + 4)])
                if g >= 1:
                    def snd(q=g-1):
                        for j in range(3):
                            p = 3*q + j
                            e(f"v_cvt_pk_bf16_f32 v{PK+4*q+j}, v{FO+2*p}, v{FO+2*p+1}" if p < 8 else f"v_mov_b32 v{PK+4*q+j}, s84")
                        e(f"v_mov_b32 v{PK+4*q+3}, s84")
                        stores([f"buffer_store_dwordx4 v[{PK+4*q}:{PK+4*q+3}], v18, s[20:23], s41 offen offset:{q*1024}"], "px")
                    S_(snd)
                for _ in range(gap): S_(nop)
        if t == 40:
            S_(lambda: e.lds("ds_read_b32 v121, v19 offset:128", "yd"))
            S_(mkchk("yd", "YD", "s_cmp_eq_u32 s82, 0", 19, 128, "s_cmp_lg_u32 s82, 0"))
            S_(lambda: [e.lds(f"ds_read_b128 v[{MR+4*g}:{MR+3+4*g}], v4 offset:{g*1024}", "sx") for g in range(4)])
            S_(lambda: [e.lds(f"ds_read_b128 v[{104+4*g if g == 0 else 12}:{107+4*g if g == 0 else 15}], v7 offset:{g*1024}", "sx") for g in range(2)])
            S_(lambda: e.lds("ds_read_b32 v121, v6 offset:64", "sx"))
            S_(nop if NA < 28 else (lambda: [e.lds(f"ds_read_b128 v[{RR+4*q}:{RR+4*q+3}], v117 offset:{512+16*q}", "sx") for q in range(4)]))
            for g in range(4):
                def ux(g=g):
                    if g == 0: e.lg_wait({"sx"})
                    for r in (2*g, 2*g + 1):
                        src = 104 + r if r < 4 else 12 + r - 4
                        e(f"v_lshlrev_b32 v{XR+2*r}, 16, v{src}\nv_and_b32 v{XR+2*r+1}, 0xffff0000, v{src}")
                S_(ux)
            if NA == 28:
                for g in range(4): S_(lambda g=g: [e(f"v_mul_f32 v{RR+r}, v{RR+r}, v{RR+r}") for r in range(4*g, 4*g + 4)])
        if t == ty: S_(lambda: [(recv_one(gg, YV, 42), e.vm.append("ry")) for gg in range(3)])
        if t == tr:
            S_(lambda: [(recv_one(gg, RV, 40), e.vm.append("rv")) for gg in range(3)])
        both_wait(t)
        D, th = t >> 1, t & 1
        bl = b_list(D + 1) if (th == 0 and D + 1 < 28) else []
        for cb in range(4):
            if th == 0 and cb == 2: e.lg_wait({("B", D, 1)})
            e(mf16(acc + 8*cb + 4*th, areg(t), breg(D) + 4*cb, D % 14 == 0))
            for s, tg in bl[2*cb:2*cb + 2]: e.lds(s, tg)
            if th == 1:
                if cb in (0, 2): a_next(t + dep - 1 + (cb >> 1))
                if side: side.pop(0)()
            elif not bl and side: side.pop(0)()
        if t == 27: st(e, "ofor")
        if fine > 1 and t in (0, 6, 13, 20, 34, 39, 44, 50): st(e, f"t{t}")
    for f in side: f()
    def recv_check(dst):
        e(f"v_min3_u32 v1, s84, v{dst+3}, v{dst+7}\nv_max3_u32 v2, s84, v{dst+3}, v{dst+7}\nv_min_u32 v1, v1, v{dst+11}\nv_max_u32 v2, v2, v{dst+11}")
        e("v_cmp_eq_u32 vcc, v1, v2\ns_nop 1")
    def recv_finish(dst, sb, tag):
        l = e.newlabel("RV")
        e.vm_wait({tag})
        recv_check(dst)
        e(f"s_cmp_eq_u64 vcc, -1\ns_cbranch_scc1 {l}")
        def body():
            for g in range(3): recv_one(g, dst, sb)
            e("s_waitcnt vmcnt(0)")
            recv_check(dst)
        spin(e, body, "s_cmp_eq_u64 vcc, -1", sleep=1)
        e.label(l)
        for p in range(8): e(f"v_lshlrev_b32 v{dst+16+2*p}, 16, v{dst+4*(p//3)+p%3}\nv_and_b32 v{dst+17+2*p}, 0xffff0000, v{dst+4*(p//3)+p%3}")
    e.lg0()
    st(e, "oloop")
    l = e.newlabel("RX")
    e(f"v_readfirstlane_b32 s82, v121\ns_cmp_eq_u32 s82, 0\ns_cbranch_scc1 {l}")
    e.label(l + "_r")
    slow2.append((l, 6, 64, "s_cmp_lg_u32 s82, 0"))
    e("s_mov_b32 s28, 0xbfb8aa3b\ns_mov_b32 s29, 0xbfb8aa3b\ns_nop 5")
    for g in range(4): e(f"ds_write_b128 v4, v[{OW+16+4*g}:{OW+19+4*g}] offset:{CH + g*1024}")
    pk = lambda op, d, a, b, x="": e(f"v_pk_{op}_f32 v[{d}:{d+1}], v[{a}:{a+1}], {b} {x}".rstrip())
    R2 = range(0, 16, 2)
    O, PB, EX = OW, OW + 16, 24
    recv_finish(YV, 42, "ry")
    for r in R2: pk("add", MR+r, MR+r, f"v[{YV+16+r}:{YV+17+r}]")
    e.lg0()
    e("s_barrier")
    st(e, "fbar")
    for g in range(4): e(f"ds_read_b128 v[{EX+4*g}:{EX+3+4*g}], v5 offset:{CH + g*1024}")
    recv_finish(RV, 40, "rv")
    st(e, "orecv")
    for r in R2: pk("add", O+r, O+r, f"v[{RV+16+r}:{RV+17+r}]")
    e("s_waitcnt lgkmcnt(0)")
    for r in R2: pk("add", O+r, O+r, f"v[{EX+r}:{EX+r+1}]")
    for gi in range(fgrp):
        G1_ = [8*cb + 4*gi + r for r2 in (0, 2) for cb in range(2) for r in (r2, r2 + 1)] if fgrp == 2 else list(range(16)); G2_ = G1_[::2]
        for r in G2_: pk("mul", O+r, O+r, f"v[{RR+(r&7)}:{RR+(r&7)+1}]")
        for r in G2_: pk("mul", PB+r, O+r, "s[28:29]")
        for r in G1_: e(f"v_exp_f32 v{PB+r}, v{PB+r}")
        for r in G2_: pk("mul", O+r, O+r, f"v[{MR+r}:{MR+r+1}]")
        for r in G2_: pk("add", PB+r, PB+r, "1.0", "op_sel_hi:[1,0]")
        for r in G1_: e(f"v_rcp_f32 v{PB+r}, v{PB+r}")
        for r in G2_:
            e(f"v_pk_fma_f32 v[{PB+r}:{PB+r+1}], v[{PB+r}:{PB+r+1}], v[{O+r}:{O+r+1}], v[{XR+r}:{XR+r+1}]")
            for rr in (r, r + 1):
                row = 8*((rr >> 2) & 1) + (rr & 3)
                so = "0" if row < 2 else f"s{32 + (row >> 1)}"
                off = (row & 1) * 1792 + (rr >> 3) * 64
                e(f"buffer_store_dword v{PB+rr}, v116, s[16:19], {so} offen" + (f" offset:{off}" if off else "") + " " + outfl)
    e("s_cmp_lg_u32 s5, 15\ns_cbranch_scc1 K_nobump\ns_or_b32 s28, s6, s4\ns_cmp_lg_u32 s28, 0\ns_cbranch_scc1 K_nobump")
    e(f"v_mov_b32 v8, 0\nv_mov_b32 v9, s84\ns_mov_b32 s28, {WS_EP}\ns_mov_b64 exec, 1")
    e("buffer_store_dword v9, v8, s[20:23], s28 offen sc1")
    e("s_mov_b64 exec, -1")
    e.label("K_nobump")
    if pad:
        if padwg >= 0: e(f"s_cmp_lg_u32 s2, {padwg}\ns_cbranch_scc1 K_END")
        e.label("K_pad")
        e(f"s_memrealtime s[28:29]\ns_waitcnt lgkmcnt(0)\ns_sub_u32 s28, s28, s{100 if PADAT else 96}\ns_cmp_lt_u32 s28, {pad}\ns_cbranch_scc1 K_pad")
    st.dump(e); info["F"] = st.names
    e("s_endpgm")
    for l in slow3:
        e.label(l)
        lds_wait(6, 48, "s_cmp_lg_u32 s82, 0", 121, sleep=0)
        for g in range(4): e(f"ds_read_b128 v[{FO+16+4*g}:{FO+19+4*g}], v5 offset:{CH + g*1024}")
        e(f"s_waitcnt lgkmcnt(0)\ns_branch {l}_r")
    for l, addr, off, cond in slow2:
        e.label(l)
        lds_wait(addr, off, cond, 121, sleep=0)
        e(f"s_branch {l}_r")
    e.label("K_csslow")
    spin(e, csbody, "s_cmp_lg_u32 s97, 0")
    e("s_branch K_csok")
    for l, need in slow:
        e.label(l)
        def body():
            e(f"ds_read_b32 v16, v17\ns_waitcnt lgkmcnt(0)\nv_cmp_gt_u32 vcc, {need}, v16\ns_nop 1")
        spin(e, body, "s_cmp_eq_u64 vcc, 0", sleep=0)
        e(f"s_branch {l}_r")

    e.vm = []; e.lg = []
    e.label("K_S")
    st = Stamper(stamps, 143)
    e(f"s_setprio {sprio}")
    common2(); common3()
    e("v_and_b32 v1, 19, v0\nv_bfe_u32 v2, v0, 2, 1\nv_lshl_add_u32 v1, v2, 3, v1\nv_bfe_u32 v2, v0, 3, 1\nv_lshl_add_u32 v1, v2, 2, v1\ns_lshl_b32 s30, s6, 5\nv_add_u32 v1, s30, v1\nv_lshlrev_b32 v1, 1, v1\nv_and_b32 v1, -4, v1")
    e("s_lshl_b32 s30, s91, 7\ns_and_b32 s31, s4, 2\ns_lshl_b32 s31, s31, 5\ns_add_u32 s30, s30, s31\nv_and_b32 v7, 14, v0\nv_lshl_add_u32 v7, v7, 1, s30\nv_mov_b32 v247, 0")
    e(f"v_add_u32 v23, s89, v20\nv_add_u32 v24, {RING}, v20")
    e("s_lshl_b32 s31, s4, 1\nv_xor_b32 v6, s31, v22")
    for jj in range(4):
        e(f"v_xor_b32 v5, {2*jj}, v6\nv_lshl_add_u32 v{10+jj}, v5, 4, v23\nv_add_u32 v{14+jj}, 0x10000, v{10+jj}\nv_lshl_add_u32 v{240+jj}, v5, 4, v24")
    e("s_mov_b32 s94, 0x3f803f80\nv_mov_b32 v34, 0\nv_mov_b32 v35, 0\nv_mov_b32 v36, 0\nv_mov_b32 v37, 0")
    e(f"s_mov_b32 s22, {WS_LIM}\ns_mov_b32 s23, 0x20000\ns_mov_b32 s82, {WS_EP}")
    e(f"v_mov_b32 v18, {FLG}\nv_mov_b32 v19, 1\ns_lshl_b32 s30, s4, 2\ns_add_u32 s30, s30, {FLG}\nv_mov_b32 v20, s30")
    e("s_waitcnt lgkmcnt(0)")
    e("s_mov_b32 s20, s62\ns_and_b32 s21, s63, 0xffff\nv_mov_b32 v138, v1\nv_mov_b32 v139, v7")
    def par_loads():
        e.vmem("global_load_dword v244, v138, s[34:35]", "par")
        e.vmem("global_load_dword v245, v138, s[36:37]", "par")
        e.vmem("global_load_dword v246, v138, s[46:47]", "par")
        e.vmem("global_load_dword v142, v139, s[48:49]", "par")
        e.vmem("global_load_dword v139, v139, s[48:49] offset:32", "par")
        e(f"s_mov_b32 s82, {WS_EP}\ns_mov_b64 exec, 1")
        e.vmem("buffer_load_dword v247, v247, s[20:23], s82 offen sc1", "par")
        e("s_mov_b64 exec, -1")
    if not late: par_loads()
    if tlb:
        e("s_cmp_lg_u32 s4, 0\ns_cbranch_scc1 K_notlb\nv_mov_b32 v140, 0\ns_mov_b64 exec, 1")
        for p in (52, 54, 56, 42, 44): e(f"global_load_dword v141, v140, s[{p}:{p+1}]")
        if tlb > 1:
            e(f"s_mul_i32 s30, s5, {128*1792}\nv_mov_b32 v251, s30\nglobal_load_dword v141, v251, s[58:59]")
            e(f"s_mul_i32 s30, s5, {2*A_W}\nbuffer_load_dword v141, v140, s[20:23], s30 offen\ns_mul_i32 s30, s5, {4*A_W}\ns_add_u32 s30, s30, {WS_AO}\nbuffer_load_dword v141, v140, s[20:23], s30 offen")
            e(f"s_mul_i32 s30, s5, {14*32768}\ns_add_u32 s30, s30, {WS_PX}\nbuffer_load_dword v141, v140, s[20:23], s30 offen")
        e("s_mov_b64 exec, -1")
        e.label("K_notlb")
    if direct:
        rho()
        e("s_sub_u32 s30, s91, s7\ns_cselect_b32 s10, 7, 0\ns_add_u32 s30, s30, s10")
    else:
        rot_off(30)
        e("s_sub_u32 s30, 7, s30\ns_cmp_ge_u32 s30, 7\ns_cselect_b32 s30, 0, s30")
    e(f"s_lshl_b32 s30, s30, 14\ns_lshl_b32 s31, s85, 13\ns_add_u32 s30, s30, s31\ns_and_b32 s31, s4, 1\ns_lshl_b32 s31, s31, 12\ns_add_u32 s30, s30, s31")
    e("v_lshrrev_b32 v4, 2, v0\nv_lshrrev_b32 v5, 3, v0\nv_lshlrev_b32 v4, 7, v4\nv_bfe_u32 v7, v0, 1, 1")
    e("s_and_b32 s31, s4, 2\ns_lshl_b32 s31, s31, 1\nv_add_u32 v7, s31, v7\nv_xor_b32 v7, v7, v5\nv_lshl_add_u32 v4, v7, 4, v4\nv_and_b32 v7, 1, v0\nv_lshl_add_u32 v4, v7, 3, v4\nv_add_u32 v254, s30, v4\nv_xor_b32 v255, 32, v254")
    e("v_lshlrev_b32 v8, 4, v7\nv_xor_b32 v8, 16, v8")
    e("s_bitcmp1_b32 s4, 0\ns_cselect_b64 s[64:65], -1, 0")
    e("s_bitcmp1_b32 s4, 1\ns_cselect_b64 s[66:67], -1, 0\ns_mov_b32 s68, 0\ns_mov_b32 s69, -1")
    e("s_lshr_b32 s87, s4, 1\ns_lshl_b32 s73, s85, 6")
    K = []
    def k_(s): K.extend(s.split("\n"))
    for r in (244, 245, 246, 142, 139): k_(f"v_lshlrev_b32 v{r}, v8, v{r}\nv_and_b32 v{r}, 0xffff0000, v{r}")
    k_(f"v_mul_f32 v246, {LOG2E}, v246\nv_exp_f32 v246, v246\ns_nop 0\nv_cvt_pk_bf16_f32 v246, v246, v246\nv_and_b32 v246, 0xffff0000, v246")
    k_(f"v_mul_f32 v5, v246, v244\nv_mul_f32 v6, v246, v245\nv_mul_f32 v5, {LOG2E}, v5\nv_exp_f32 v5, v5")
    k_("v_mul_f32 v6, 0.15915494, v6\nv_rndne_f32 v9, v6\nv_sub_f32 v6, v6, v9\nv_cos_f32 v22, v6\nv_sin_f32 v23, v6\ns_nop 0")
    k_("v_mul_f32 v22, v22, v5\nv_mul_f32 v23, v23, v5")
    k_("v_mul_f32 v5, v244, v244\nv_fma_f32 v5, v245, v245, v5\nv_rcp_f32 v5, v5\nv_add_f32 v6, -1.0, v22")
    k_("v_mul_f32 v30, v6, v244\nv_fma_f32 v30, v23, v245, v30\nv_mul_f32 v31, v23, v244\nv_fma_f32 v31, -v6, v245, v31")
    k_("v_add_f32 v5, v5, v5\nv_mul_f32 v30, v30, v5\nv_mul_f32 v31, v31, v5\nv_xor_b32 v33, 0x80000000, v23")
    def csq(d, s): k_(f"v_mul_f32 v9, v{s}, v{s+1}\nv_mul_f32 v{d}, v{s}, v{s}\nv_fma_f32 v{d}, -v{s+1}, v{s+1}, v{d}\nv_add_f32 v{d+1}, v9, v9")
    def pwmul(mask):
        k_(f"v_cndmask_b32 v5, 1.0, v26, {mask}\nv_cndmask_b32 v6, 0, v27, {mask}")
        k_("v_mul_f32 v9, v28, v6\nv_mul_f32 v28, v28, v5\nv_fma_f32 v28, -v29, v6, v28\nv_fma_f32 v29, v29, v5, v9")
    csq(24, 22); csq(24, 24); csq(24, 24); csq(24, 24)
    k_("v_cndmask_b32 v28, 1.0, v24, s[68:69]\nv_cndmask_b32 v29, 0, v25, s[68:69]")
    csq(26, 24); pwmul("s[64:65]"); csq(26, 26); pwmul("s[66:67]"); csq(26, 26); csq(136, 26)
    QR, QI = 104, 120
    for j in range(16):
        pr, pi = (30, 31) if j == 0 else (QR + j - 1, QI + j - 1)
        k_(f"v_mul_f32 v{QR+j}, v22, v{pr}\nv_mul_f32 v{QI+j}, v22, v{pi}\nv_fmac_f32 v{QR+j}, v33, v{pi}\nv_fmac_f32 v{QI+j}, v23, v{pr}")
    k_("v_xor_b32 v31, 0x80000000, v31\nv_xor_b32 v32, 0x80000000, v30")
    UR, UI = 40, 56
    SF = [144, 192]
    def sreads(sg):
        fs = SF[sg & 1]; out = []
        for j in range(4):
            xb = (10 + j) if sg < 4 else (14 + j)
            out += [f"ds_read_b128 v[{fs+12*j}:{fs+12*j+3}], v{xb} offset:{(sg & 3)*CH}",
                    f"ds_read_b128 v[{fs+12*j+4}:{fs+12*j+7}], v{240+j} offset:{(sg % NR)*8192}",
                    f"ds_read_b128 v[{fs+12*j+8}:{fs+12*j+11}], v{240+j} offset:{(sg % NR)*8192+4096}"]
        return out
    def dots(fs):
        for j in range(4):
            for q in range(4): e(f"v_dot2c_f32_bf16 v37, v{fs+12*j+q}, v{fs+12*j+q}\nv_dot2c_f32_bf16 v36, s94, v{fs+12*j+q}")
        for q in range(4): e(f"v_dot2c_f32_bf16 v34, s94, v{fs+4+q}\nv_dot2c_f32_bf16 v35, s94, v{fs+8+q}")
    Z = []
    def z_(s): Z.extend(s.split("\n"))
    z_("v_mov_b32 v1, v36\nv_mov_b32 v2, v37\ns_nop 1")
    z_("v_permlane32_swap_b32 v36, v1\nv_permlane32_swap_b32 v37, v2\nv_permlane32_swap_b32 v34, v35\ns_nop 1")
    z_("v_add_f32 v34, v34, v35\nv_add_f32 v36, v36, v1\nv_add_f32 v37, v37, v2\nds_write_b32 v248, v34")
    z_("v_mul_f32 v36, 0x3b124925, v36\nv_mul_f32 v37, 0x3b124925, v37")
    z_("v_fma_f32 v37, -v36, v36, v37\nv_max_f32 v37, 0, v37\nv_cvt_pk_bf16_f32 v1, v37, v36")
    z_("v_and_b32 v36, 0xffff0000, v1\nv_lshlrev_b32 v37, 16, v1\nv_add_f32 v37, 0x3727c5ac, v37")
    z_("v_cvt_pk_bf16_f32 v37, v37, v37\nv_and_b32 v37, 0xffff0000, v37\nv_sqrt_f32 v37, v37\ns_nop 0")
    z_("v_cvt_pk_bf16_f32 v37, v37, v37\nv_and_b32 v37, 0xffff0000, v37\nv_rcp_f32 v37, v37\ns_nop 0")
    z_("v_cndmask_b32 v36, v36, v37, s[68:69]\nds_write_b32 v249, v36")
    mark0 = len(e.l)
    SEL = 72
    tau_of_lane(e, 1, 2)
    e("v_lshlrev_b32 v2, 4, v21\nv_sub_u32 v1, v1, v2\nv_and_b32 v2, 1, v1\nv_lshlrev_b32 v2, 4, v2\nv_mov_b32 v4, 0x3f80\nv_lshlrev_b32 v2, v2, v4\nv_ashrrev_i32 v1, 1, v1")
    for q in range(0, 8, 2):
        e(f"v_cmp_eq_u32 vcc, {q}, v1\nv_cmp_eq_u32 s[70:71], {q+1}, v1\ns_nop 0\nv_cndmask_b32 v{SEL+q}, 0, v2, vcc\nv_cndmask_b32 v{SEL+q+1}, 0, v2, s[70:71]")
    e(f"s_lshl_b32 s72, s4, 2\ns_add_u32 s72, s72, {CSB}\nv_lshl_add_u32 v248, v0, 4, s72")
    tau_of_lane(e, 249, 2)
    e(f"s_lshl_b32 s72, s4, 7\ns_add_u32 s72, s72, {STAT}\nv_lshl_add_u32 v249, v249, 2, s72\nv_lshl_add_u32 v249, v21, 9, v249\nv_lshl_add_u32 v3, v21, 6, s72")
    e(f"v_and_b32 v250, 31, v0\nv_lshlrev_b32 v250, 4, v250\nv_add_u32 v250, {CSB}, v250")
    K0 = []
    if strim:
        K0 = [x.strip() for x in e.l[mark0:]]; del e.l[mark0:]
        na = len(K0) - 17
        K = K[:60] + K0[na:] + K[60:]; K0 = K0[:na]
    st(e, "b0")
    e("s_barrier")
    for x in sreads(0): e(x)
    if late: par_loads()
    ks = 2 if late else 1
    for sg in range(7):
        fs = SF[sg & 1]
        if sg == ks:
            e.vm_wait({"par"})
            e("v_readfirstlane_b32 s84, v247\ns_add_u32 s84, s84, 1\ns_max_u32 s84, s84, 1")
            e(f"s_getreg_b32 s74, hwreg(HW_REG_XCC_ID, 0, 4)\ns_lshl_b32 s78, s5, 1\ns_add_u32 s78, s78, s85\ns_lshl_b32 s78, s78, 10\ns_add_u32 s78, s78, {WS_FH}\ns_add_u32 s75, s78, {WS_XID - WS_FH}")
            e("s_cmp_lg_u32 s4, 0\ns_cbranch_scc1 K_noxid")
            e("s_lshl_b32 s31, s91, 7\nv_mov_b32 v251, s31\nv_mov_b32 v252, s74\nv_mov_b32 v253, s84\ns_mov_b64 exec, 1")
            e("buffer_store_dwordx2 v[252:253], v251, s[20:23], s75 offen sc1\ns_mov_b64 exec, -1")
            e.label("K_noxid")
        e.lg0()
        if sg == 6:
            for j in range(4): e(f"ds_read_b64_tr_b16 v[{208+2*j}:{209+2*j}], v{254 + (j >> 1)} offset:{(j & 1)*2048}")
            dots(fs)
            e.lg0()
        st(e, f"b{sg+1}")
        e("s_barrier")
        rd = sreads(sg + 1) if sg < 6 else []
        ordr = [(j, x) for j in range(4) for x in range(2)] if not sch else [(j, x ^ (sg & 1)) for x in range(2) for j in range(4)]
        for j, x_ in ordr:
            for acc, o in (((UR, 4), (UI, 8))[x_],):
                e(mfma(acc, fs+12*j, fs+12*j+o, sg == 0 and j == 0))
                for x in rd[:2]: e(x)
                nk = kint if rd else 4
                rd = rd[2:]
                for _ in range(nk):
                    if sg == 6:
                        if Z: e(Z.pop(0))
                    elif K0: e(K0.pop(0))
                    elif sg >= ks and K: e(K.pop(0))
        if sg < 6: dots(fs)
    for x in Z: e(x)
    gen = [0]
    def ssync(extra=None):
        gen[0] += 1
        e("s_mov_b64 exec, 1\nds_add_u32 v18, v19 offset:80\ns_mov_b64 exec, -1")
        def body():
            e("ds_read_b32 v1, v18 offset:80")
            if extra: extra()
            e("s_waitcnt lgkmcnt(0)\nv_readfirstlane_b32 s82, v1")
        spin(e, body, f"s_cmp_ge_u32 s82, {4*gen[0]}", sleep=ssl)
        e.lg = []
    def wait_prog(n):
        def body():
            e("ds_read_b128 v[4:7], v18\ns_waitcnt lgkmcnt(0)\nv_min_u32 v4, v4, v5\nv_min3_u32 v4, v4, v6, v7\ns_nop 0\nv_readfirstlane_b32 s82, v4")
        spin(e, body, f"s_cmp_ge_u32 s82, {n}", sleep=wsl)
        e.lg = []
    M, R = 144, 160
    e(f"s_setprio {sprio2}")
    if sidle:
        def body():
            e("s_sleep 8\nds_read_b128 v[4:7], v18\ns_waitcnt lgkmcnt(0)\nv_min_u32 v4, v4, v5\nv_min3_u32 v4, v4, v6, v7\ns_nop 0\nv_readfirstlane_b32 s82, v4")
        spin(e, body, "s_cmp_ge_u32 s82, 7", sleep=1)
    TMP = 192
    for q in range(4): e(f"ds_read_b128 v[{M+4*q}:{M+4*q+3}], v3 offset:{16*q}")
    for q in range(4): e(f"ds_read_b128 v[{R+4*q}:{R+4*q+3}], v3 offset:{512+16*q}")
    e(f"s_lshl_b32 s30, s4, 9\ns_add_u32 s30, s30, {SUB}\nv_lshl_add_u32 v2, v0, 3, s30\nv_add_u32 v3, {7*256}, v2")
    ssync(lambda: e(f"ds_read_b128 v[{TMP}:{TMP+3}], v250\nds_read_b128 v[{TMP+4}:{TMP+7}], v250 offset:512"))
    st(e, "ss1")
    t = TMP
    e(f"v_add_f32 v{t}, v{t}, v{t+1}\nv_add_f32 v{t+2}, v{t+2}, v{t+3}\nv_add_f32 v{t+4}, v{t+4}, v{t+5}\nv_add_f32 v{t+6}, v{t+6}, v{t+7}\nv_add_f32 v34, -v{t}, -v{t+2}\nv_add_f32 v35, -v{t+4}, -v{t+6}")
    for j in range(16): e(f"v_fmac_f32 v{UR+j}, v34, v{M+j}\nv_fmac_f32 v{UI+j}, v35, v{M+j}")
    for j in range(16): e(f"v_mul_f32 v{UR+j}, v{UR+j}, v{R+j}\nv_mul_f32 v{UI+j}, v{UI+j}, v{R+j}")
    st(e, "fold")
    for j in range(1, 16):
        e(f"v_fmac_f32 v{UR+j}, v22, v{UR+j-1}\nv_fmac_f32 v{UI+j}, v22, v{UI+j-1}\nv_fmac_f32 v{UR+j}, v33, v{UI+j-1}\nv_fmac_f32 v{UI+j}, v23, v{UR+j-1}")
    st(e, "scan")
    e(f"ds_write2_b32 v3, v{UR+15}, v{UI+15} offset1:1")
    def step(dr, di, hr, hi, ur, ui, lr, li):
        e(f"v_fma_f32 v{dr}, v{lr}, v{hr}, v{ur}\nv_fma_f32 v{di}, v{lr}, v{hi}, v{ui}")
        e(f"v_fma_f32 v{dr}, -v{li}, v{hi}, v{dr}\nv_fma_f32 v{di}, v{li}, v{hr}, v{di}")
    def rdsub():
        for d in range(7): e(f"ds_read_b64 v[{TMP+2*d}:{TMP+1+2*d}], v2 offset:{d*256}")
    ssync(rdsub)
    st(e, "ss")
    for d in range(1, 7):
        dd = (38, 39) if d == 6 else (TMP + 2*d, TMP + 1 + 2*d)
        step(dd[0], dd[1], TMP - 2 + 2*d, TMP - 1 + 2*d, TMP + 2*d, TMP + 1 + 2*d, 24, 25)
    e("s_cmp_lg_u32 s4, 3\ns_cbranch_scc1 K_nopub")
    step(TMP, TMP + 2, 38, 39, UR + 15, UI + 15, 24, 25)
    e(f"v_mov_b32 v{TMP+1}, s84\nv_mov_b32 v{TMP+3}, s84")
    e(f"s_lshl_b32 s30, s6, 4\ns_add_u32 s30, s30, s5\ns_lshl_b32 s30, s30, 9\ns_add_u32 s30, s30, {WS_AGG - 512}")
    e("v_lshlrev_b32 v1, 4, v0\ns_mov_b32 exec_lo, 0")
    e(f"buffer_store_dwordx4 v[{TMP}:{TMP+3}], v1, s[20:23], s30 offen sc1")
    e("s_mov_b32 exec_lo, -1")
    e.label("K_nopub")
    st(e, "pub")
    e(f"s_mul_i32 s76, s5, {2*A_W}\ns_lshl_b32 s30, s6, 13\ns_add_u32 s76, s76, s30\ns_lshl_b32 s30, s4, 10\ns_add_u32 s76, s76, s30\ns_add_u32 s76, s76, {WS_AY}\ns_add_u32 s77, s76, {A_W}")
    if bulk & 2:
        e(f"v_and_b32 v1, 7, v0\nv_lshlrev_b32 v1, 7, v1\nv_bfe_u32 v2, v0, 3, 1\nv_lshl_add_u32 v1, v2, 12, v1\nv_bfe_u32 v2, v0, 4, 1\nv_mul_u32_u24 v2, {A_W}, v2\nv_add_u32 v1, v1, v2")
        e(f"s_mov_b32 exec_hi, 0\nbuffer_load_dword v252, v1, s[20:23], s76 offen {tfl}\ns_mov_b32 exec_hi, -1")
    def touch_hh():
        e(f"s_lshl_b32 s30, s5, 2\ns_add_u32 s30, s30, s4\ns_mul_i32 s30, s30, {A_W}\ns_lshl_b32 s31, s6, 13\ns_add_u32 s30, s30, s31\ns_add_u32 s30, s30, {WS_AO}\nv_lshlrev_b32 v253, 7, v0")
        e(f"buffer_load_dword v253, v253, s[20:23], s30 offen {tfl}")
    if (bulk & 1) and tpos == 0: touch_hh()
    for x in K: e(x)
    GR, GI = 144, 160
    for j in range(16):
        e(f"v_mul_f32 v{GR+j}, v30, v{UR+j}\nv_mul_f32 v{GI+j}, v32, v{UI+j}\nv_fmac_f32 v{GR+j}, v31, v{UI+j}\nv_fmac_f32 v{GI+j}, v31, v{UR+j}")
    AG = 40
    st(e, "g")
    for i in range(8):
        if i: e(f"s_cmp_ge_u32 s5, {16 - 2*i}\ns_cbranch_scc1 K_agi")
        e(f"v_mov_b32 v{AG+4*i}, 0\nv_mov_b32 v{AG+4*i+1}, s84\nv_mov_b32 v{AG+4*i+2}, 0\nv_mov_b32 v{AG+4*i+3}, s84")
    e.label("K_agi")
    e(f"s_lshl_b32 s90, s6, 11\ns_lshl_b32 s30, s4, 8\ns_add_u32 s90, s90, s30\ns_add_u32 s90, s90, {WS_CS}")
    e("v_and_b32 v34, 31, v0\nv_lshlrev_b32 v34, 3, v34\nv_lshl_add_u32 v34, v21, 10, v34")
    def cs_loads():
        e("buffer_load_dwordx2 v[8:9], v34, s[20:23], s90 offen sc1\nbuffer_load_dwordx2 v[140:141], v35, s[20:23], s75 offen sc1")
    cs_chk = "v_cmp_eq_u32 vcc, s84, v9\nv_cmp_eq_u32 s[28:29], s84, v141\ns_nop 1\ns_and_b64 vcc, vcc, s[28:29]"
    e("v_min_u32 v35, 6, v0\nv_lshlrev_b32 v35, 7, v35")
    cs_loads()
    e(f"s_lshl_b32 s30, s91, 7\ns_add_u32 s30, s30, s78\nv_mul_u32_u24 v1, {WS_FO - WS_FH}, v21")
    e("s_mov_b32 exec_lo, 1\ns_mov_b32 exec_hi, 1\nbuffer_load_dword v251, v1, s[20:23], s30 offen sc1\ns_mov_b64 exec, -1")
    e(f"s_lshl_b32 s92, s6, 4\ns_add_u32 s92, s92, s5\ns_lshl_b32 s92, s92, 9\ns_add_u32 s92, s92, {WS_AGG - 8192}\ns_add_u32 s93, s92, 4096\nv_lshlrev_b32 v3, 4, v0")
    def agg_loads(fl=' sc1'):
        for i in range(8):
            l = e.newlabel("AL")
            e(f"s_cmp_lt_u32 s5, {15 - 2*i}\ns_cbranch_scc1 {l}")
            e(f"s_cmp_ge_u32 s5, {16 - 2*i}\ns_cselect_b32 exec_lo, -1, 0")
            e(f"buffer_load_dwordx4 v[{AG+4*i}:{AG+4*i+3}], v3, s[20:23], s{92 + (i >> 2)} offen offset:{1024*(i & 3)}{fl}")
            e.label(l)
        e("s_mov_b32 exec_lo, -1")
    if not adel: agg_loads('' if ag1 else ' sc1')
    st(e, "aggi")
    if (bulk & 1) and tpos == 1: touch_hh()
    def rnd(b):
        for r in range(0, 16, 2): e(f"v_cvt_pk_bf16_f32 v{b+r}, v{b+r}, v{b+r+1}")
        for r in range(0, 16, 2): e(f"v_and_b32 v{b+r+1}, 0xffff0000, v{b+r}\nv_lshlrev_b32 v{b+r}, 16, v{b+r}")
    mark = len(e.l)
    if xne:
        XR, MR, RR = 176, 192, 200
        e(f"s_lshl_b32 s29, s85, 6\ns_and_b32 s31, s4, 1\ns_lshl_b32 s31, s31, 5\ns_add_u32 s29, s29, s31\ns_lshl_b32 s29, s29, 2\ns_add_u32 s29, s29, {STAT}\nv_lshl_add_u32 v4, v21, 4, s29\nv_and_b32 v5, 16, v0\nv_lshl_add_u32 v4, v5, 2, v4")
        for q in range(2):
            e(f"ds_read_b128 v[{MR+4*q}:{MR+4*q+3}], v4 offset:{32*q}\nds_read_b128 v[{RR+4*q}:{RR+4*q+3}], v4 offset:{512+32*q}")
        for r in range(8): e(f"v_lshlrev_b32 v{XR+2*r}, 16, v{208+r}\nv_and_b32 v{XR+2*r+1}, 0xffff0000, v{208+r}")
        e.lg0()
        for r in range(16): e(f"v_sub_f32 v{XR+r}, v{XR+r}, v{MR+(r&7)}")
        rnd(XR)
        for r in range(16): e(f"v_mul_f32 v{XR+r}, v{XR+r}, v{RR+(r&7)}")
        rnd(XR)
        for r in range(16): e(f"v_mul_f32 v{XR+r}, v{XR+r}, v{142 if r < 8 else 139}")
        for r in range(8): e(f"v_cvt_pk_bf16_f32 v{216+r}, v{XR+2*r}, v{XR+2*r+1}")
    blk = e.l[mark:]; del e.l[mark:]
    cutp = len(blk) * min(xne, 4) // 4
    e.l += blk[:cutp]
    if adel: agg_loads('' if ag1 else ' sc1')
    e.l += blk[cutp:]
    e.vm0()
    st(e, "aggl")
    e("s_mov_b32 s95, 0")
    e.label("K_horner")
    e(f"v_min3_u32 v1, s84, v{AG+1}, v{AG+3}\nv_max3_u32 v2, s84, v{AG+1}, v{AG+3}")
    for i in range(1, 8):
        b = AG + 4*i
        src = (AG, AG + 2) if i == 1 else ((4, 5) if i % 2 == 0 else (6, 7))
        dst = (4, 5) if i % 2 == 1 else (6, 7)
        step(dst[0], dst[1], src[0], src[1], b, b + 2, 136, 137)
        e(f"v_min3_u32 v1, v1, v{b+1}, v{b+3}\nv_max3_u32 v2, v2, v{b+1}, v{b+3}")
    e("v_cmp_eq_u32 vcc, v1, v2\nv_mov_b32 v6, v4\nv_mov_b32 v7, v5\ns_cmp_eq_u64 vcc, -1\ns_cbranch_scc1 K_hok")
    e(f"s_add_u32 s95, s95, 1\ns_cmp_ge_u32 s95, {SPIN_MAX}\ns_cbranch_scc1 K_hok")
    if lp:
        e(f"s_lshl_b32 s30, s6, 13\ns_add_u32 s30, s30, {WS_AGG + 508}\ns_sub_u32 s31, s5, 1\nv_min_u32 v1, s31, v0\nv_lshlrev_b32 v1, 9, v1\ns_mov_b64 exec, 0xffff")
        e.label("K_lp")
        e(f"s_sleep 2\nbuffer_load_dword v2, v1, s[20:23], s30 offen sc1\ns_add_u32 s95, s95, 1\ns_waitcnt vmcnt(0)\nv_cmp_eq_u32 vcc, s84, v2\ns_cmp_ge_u32 s95, {SPIN_MAX}\ns_cbranch_scc1 K_lpx\ns_cmp_eq_u64 vcc, exec\ns_cbranch_scc0 K_lp")
        e.label("K_lpx")
        e("s_mov_b64 exec, -1")
    else: e("s_sleep 4")
    agg_loads()
    e("s_waitcnt vmcnt(0)\ns_branch K_horner")
    e.label("K_hok")
    st(e, "look")
    e("v_permlane32_swap_b32 v4, v6\nv_permlane32_swap_b32 v5, v7\ns_nop 0")
    step(6, 7, 4, 5, 6, 7, 26, 27)
    step(38, 39, 6, 7, 38, 39, 28, 29)
    e("v_xor_b32 v36, 0x80000000, v38\nv_xor_b32 v37, 0x80000000, v39")
    for j in range(0, 16, 2):
        for x in (j, j + 1):
            e(f"v_fmac_f32 v{GR+x}, v38, v{QR+x}\nv_fmac_f32 v{GI+x}, v37, v{QR+x}\nv_fmac_f32 v{GR+x}, v37, v{QI+x}\nv_fmac_f32 v{GI+x}, v36, v{QI+x}")
        e(f"v_cvt_pk_bf16_f32 v{40+j//2}, v{GR+j}, v{GR+j+1}\nv_cvt_pk_bf16_f32 v{48+j//2}, v{GI+j}, v{GI+j+1}")
    st(e, "fin")
    e("s_setprio 3")
    e(mfma(104, 40, SEL, True)); e(mfma(120, 48, SEL, True)); e(mfma(104, 44, SEL + 4)); e(mfma(120, 52, SEL + 4))
    e(f"s_setprio {sprio2}")
    e("s_add_u32 s30, s76, 4096\ns_add_u32 s31, s77, 4096\ns_nop 7")
    for r in range(16): e(f"v_cvt_pk_bf16_f32 v{56+r}, v{104+2*r}, v{105+2*r}")
    st(e, "ht")
    def do_hst():
        e("s_add_u32 s30, s76, 4096\ns_add_u32 s31, s77, 4096")
        dual([f"buffer_store_dwordx4 v[56:59], v3, s[20:23], s76 offen", "buffer_store_dwordx4 v[60:63], v3, s[20:23], s30 offen",
                f"buffer_store_dwordx4 v[64:67], v3, s[20:23], s77 offen", "buffer_store_dwordx4 v[68:71], v3, s[20:23], s31 offen"], "h", bulk & 2)
        st(e, "hst")
    if not (bulk & 2): do_hst()
    e(cs_chk + "\ns_cmp_eq_u64 vcc, -1\ns_cbranch_scc1 K_cs_ok")
    def body():
        cs_loads()
        e("s_waitcnt vmcnt(0)\n" + cs_chk)
    spin(e, body, "s_cmp_eq_u64 vcc, -1", sleep=2)
    e.label("K_cs_ok")
    e("v_cmp_eq_u32 vcc, s74, v140")
    e(f"s_lshl_b32 s30, s4, 8\ns_add_u32 s30, s30, {CSW}\nv_lshl_add_u32 v1, v0, 2, s30")
    e("s_cmp_eq_u64 vcc, -1\ns_cselect_b32 s97, 2, 1")
    if force: e(f"s_mov_b32 s97, {force}")
    e("v_mov_b32 v2, s97\nds_write_b32 v1, v8\nds_write_b32 v20, v2 offset:16")
    if bulk & 2: do_hst()
    e("v_lshrrev_b32 v14, 4, v0\nv_and_b32 v15, 15, v0\nv_bfe_u32 v10, v0, 1, 3\nv_xor_b32 v10, v10, v14\nv_lshlrev_b32 v10, 4, v10\nv_lshl_add_u32 v10, v15, 7, v10")
    e(f"s_mul_i32 s30, s87, {CH + 8192}\ns_add_u32 s30, s30, {C0}\nv_add_u32 v10, s30, v10\nv_xor_b32 v11, 64, v10\nv_xor_b32 v12, 0x4000, v10\nv_xor_b32 v13, 0x4000, v11")
    e("s_lshl_b32 s30, s91, 7\ns_lshl_b32 s31, s4, 2\ns_add_u32 s31, s31, s30\nv_mov_b32 v4, s31\nv_mov_b32 v5, s84")
    e.vm_wait({"h"})
    e("s_mov_b64 exec, 1")
    dual(["buffer_store_dword v5, v4, s[20:23], s78 offen"], "fl")
    e("s_mov_b64 exec, -1")
    st(e, "hflag")
    if (bulk & 1) and tpos == 2: touch_hh()
    if rb_y:
        e("s_add_u32 s30, s76, 4096\ns_add_u32 s31, s77, 4096")
        for g, sr in enumerate((76, 30, 77, 31)): e(f"buffer_load_dwordx4 v[{24+4*g}:{27+4*g}], v3, s[20:23], s{sr} offen sc1")
    e(f"s_lshl_b32 s92, s5, 1\ns_add_u32 s92, s92, s87\ns_mul_i32 s92, s92, {A_W}\ns_add_u32 s92, s92, {WS_AY}\ns_lshl_b32 s30, s85, 13\ns_add_u32 s93, s92, s30\ns_add_u32 s93, s93, {3*CH}\ns_lshl_b32 s30, s85, 16\ns_add_u32 s92, s92, s30")
    e("v_and_b32 v8, 7, v0\nv_min_u32 v8, 6, v8\nv_lshlrev_b32 v8, 7, v8\nv_and_b32 v1, 8, v0\nv_add_u32 v8, v8, v1\ns_and_b32 s30, s4, 1\ns_lshl_b32 s31, s30, 2\nv_add_u32 v8, s31, v8")
    e("s_lshl_b32 s30, s30, 10\ns_lshl_b32 s31, s85, 11\ns_add_u32 s30, s30, s31\nv_lshlrev_b32 v23, 12, v21\nv_and_b32 v14, 1, v14\nv_lshl_add_u32 v23, v14, 9, v23\nv_lshl_add_u32 v23, v15, 4, v23\nv_add_u32 v23, s30, v23\nv_xor_b32 v22, 0x800, v23")
    e(f"s_mul_i32 s76, s5, 7\ns_add_u32 s76, s76, s91\ns_lshl_b32 s76, s76, 1\ns_add_u32 s76, s76, s85\ns_lshl_b32 s76, s76, 2\ns_add_u32 s76, s76, s4\ns_xor_b32 s77, s76, 4\ns_mul_i32 s77, s77, {pxs}\ns_add_u32 s77, s77, {WS_PX}")
    def creg(D): return 144 + 16 * D
    def c_list(r):
        out = []
        for D in range(4*r, min(7, 4*r + 4)):
            if D == 6: out += [f"v_xor_b32 v{j}, s73, v{j}" for j in (10, 12)]
            for cb in range(4):
                g = creg(D) + 4*cb
                out.append(f"ds_read_b128 v[{g}:{g+3}], v{10 + 2*(cb >> 1) + (D & 1)} offset:{r*2*CH + ((D >> 1) & 1)*4096 + (cb & 1)*2048}")
        return out
    if not xne:
        assert False
    else:
        for r in range(8): e(f"v_mov_b32 v{56+r}, v{208+r}\nv_mov_b32 v{128+r}, v{216+r}")
    st(e, "xn")
    def pull0():
        if lin:
            def body():
                e("ds_read_b128 v[4:7], v18 offset:144\ns_waitcnt lgkmcnt(0)\nv_min_u32 v4, v4, v5\nv_min3_u32 v4, v4, v6, v7\ns_nop 0\nv_readfirstlane_b32 s82, v4")
            spin(e, body, "s_cmp_lg_u32 s82, 0", sleep=wsl)
        else: wait_prog(6)
        for x in c_list(0): e(x)
        e("s_waitcnt lgkmcnt(0)\ns_mov_b64 exec, 1\nds_add_u32 v18, v19 offset:88")
        st(e, "c0")
        e("s_mov_b64 exec, -1")
    if not pf: pull0()
    e("s_mov_b64 exec, 0xffff")
    def body():
        e("buffer_load_dword v9, v8, s[20:23], s78 offen sc1\ns_waitcnt vmcnt(0)\nv_cmp_eq_u32 vcc, s84, v9\ns_nop 1")
    spin(e, body, "s_cmp_eq_u64 vcc, exec", sleep=hsl)
    e("s_mov_b64 exec, -1")
    e.vm = []
    st(e, "hseen")
    NP = 8
    ypre = min(ypre, NP - 1 if not deep else 20)
    YA = [64, 96]
    def yreg(t):
        if not deep: return 24 + 4*(t % NP)
        if t < 4: return 24 + 4*t
        if t < 12: return creg(4) + 4*(t - 4)
        if t < 16: return 40 + 4*(t - 12)
        if t < 20: return creg(6) + 4*(t - 16)
        return 24 + 4*(t - 20)
    def ymap(t):
        if not ych or t >= 24: return t >> 2, t & 3
        return 2*(t >> 3) + (t & 1), (t >> 1) & 3
    def yissue(t):
        D, qd = ymap(t)
        if ych:
            if t == 0: e("s_add_u32 s90, s92, 8192")
            elif t == 24: e("s_mov_b32 s92, s93")
            elif (t & 7) == 0: e("s_add_u32 s92, s92, 16384\ns_add_u32 s90, s90, 16384")
        elif (t & 3) == 0 and D > 0: e("s_mov_b32 s92, s93" if D == 6 else "s_add_u32 s92, s92, 8192")
        e.vmem(f"buffer_load_dwordx4 v[{yreg(t)}:{yreg(t)+3}], v{22 + (qd >> 1)}, s[20:23], s{90 if (ych and D & 1) else 92} offen offset:{(qd & 1)*256} sc1", ("A", t))
    if ypre:
        if ywait > 6: wait_prog(ywait)
        for t in range(ypre):
            yissue(t)
            if ysl2 and t >= 3: e(f"s_sleep {ysl2}")
    if pf: pull0()
    def body():
        e("ds_read_b128 v[4:7], v18 offset:32\ns_waitcnt lgkmcnt(0)\nv_min_u32 v4, v4, v5\nv_min3_u32 v4, v4, v6, v7\ns_nop 0\nv_readfirstlane_b32 s82, v4")
    spin(e, body, "s_cmp_lg_u32 s82, 0", sleep=1)
    st(e, "epid")
    e(f"s_setprio {yprio}")
    for t in range(ypre, NP - 1 if not deep else 20): yissue(t)
    if not deep:
        for x in c_list(1): e(x)
    yn = [NP - 1]
    e(f"s_add_u32 s31, s89, {SC}\nv_add_u32 v136, s31, v3\nv_xor_b32 v137, 0x2000, v136\nv_xor_b32 v138, 8, v20")
    for t in range(28):
        k = t >> 1
        if deep:
            if t == 12:
                for x in c_list(1)[:8]: e(x)
            if t == 16: e("s_waitcnt lgkmcnt(0)")
            if t == 20:
                for x in c_list(1)[8:]: e(x)
            if t == 24: e("s_waitcnt lgkmcnt(0)\ns_mov_b64 exec, 1\nds_add_u32 v18, v19 offset:92\ns_mov_b64 exec, -1")
            if t == 27: e("ds_read_b32 v1, v18 offset:92")
            D, qd = t >> 2, t & 3
            e.vm_wait({("A", t)})
            for cb in range(4):
                e(mf16(YA[qd >> 1] + 8*cb + 4*(qd & 1), yreg(t), creg(D) + 4*cb, D == 0))
                if cb == 0 and 1 <= t <= 4: yissue(t + 19)
                if cb == 0 and 13 <= t <= 16: yissue(t + 11)
            continue
        if t == 8: e("s_waitcnt lgkmcnt(0)\ns_mov_b64 exec, 1\nds_add_u32 v18, v19 offset:92\ns_mov_b64 exec, -1")
        if t == 24: e("ds_read_b32 v1, v18 offset:92")
        D, qd = ymap(t)
        if ych and t < 24:
            if t & 1: continue
            e.vm_wait({("A", t + 1)})
            for cb in range(4):
                for x in range(2): e(mf16(YA[qd >> 1] + 8*cb + 4*(qd & 1), yreg(t + x), creg(D + x) + 4*cb, D + x == 0))
                if cb < 2 and yn[0] < min(28, t + NP): yissue(yn[0]); yn[0] += 1
            continue
        e.vm_wait({("A", t)})
        for cb in range(4):
            e(mf16(YA[qd >> 1] + 8*cb + 4*(qd & 1), yreg(t), creg(D) + 4*cb, D == 0))
            if cb == 0 and yn[0] < min(28, t + NP): yissue(yn[0]); yn[0] += 1
    st(e, "yloop")
    e("s_waitcnt lgkmcnt(0)\nv_readfirstlane_b32 s82, v1\ns_cmp_ge_u32 s82, 4\ns_cbranch_scc1 K_c1ok")
    lds_wait(18, 92, "s_cmp_ge_u32 s82, 4", 1, sleep=0)
    e.label("K_c1ok")
    e("s_nop 5")
    for ps in range(2):
        for g in range(4): e(f"ds_write_b128 v136, v[{YA[ps]+16+4*g}:{YA[ps]+19+4*g}] offset:{ps*CH + g*1024}")
    e("ds_write_b32 v20, v19 offset:96")
    lds_wait(138, 96, "s_cmp_lg_u32 s82, 0", 1, sleep=0)
    st(e, "yw")
    for ps in range(2):
        for g in range(4): e(f"ds_read_b128 v[{YA[ps]+16+4*g}:{YA[ps]+19+4*g}], v137 offset:{ps*CH + g*1024}")
    e("s_waitcnt lgkmcnt(4)")
    Y = YA[0]
    for r in range(16): e(f"v_add_f32 v{Y+r}, v{Y+r}, v{Y+16+r}")
    for p in range(8): e(f"v_cvt_pk_bf16_f32 v{24+4*(p//3)+p%3}, v{Y+2*p}, v{Y+2*p+1}")
    for r in (27, 31, 34, 35): e(f"v_mov_b32 v{r}, s84")
    e("s_waitcnt lgkmcnt(0)\ns_mov_b64 exec, 1\nds_add_u32 v18, v19 offset:84\ns_mov_b64 exec, -1")
    st(e, "yx")
    e("s_setprio 0")
    Y = YA[1]
    def ysend(g): stores([f"buffer_store_dwordx4 v[{24+4*g}:{27+4*g}], v3, s[20:23], s77 offen offset:{g*1024}"], "px")
    if ymode == 0: ysend(0)
    if ymode == 1: [ysend(g) for g in range(3)]
    for r in range(16): e(f"v_add_f32 v{Y+r}, v{Y+r}, v{Y+16+r}")
    for r in range(8): e(f"v_lshlrev_b32 v{Y+16+2*r}, 16, v{128+r}\nv_and_b32 v{Y+17+2*r}, 0xffff0000, v{128+r}")
    if ymode == 0: ysend(1)
    for r in range(16): e(f"v_add_f32 v{Y+r}, v{Y+r}, v{Y+16+r}")
    lds_wait(18, 84, "s_cmp_ge_u32 s82, 4", 1, sleep=1)
    for g in range(4): e(f"ds_write_b128 v136, v[{Y+4*g}:{Y+3+4*g}] offset:{g*1024}")
    e("s_sub_u32 s31, s79, 16384\nv_add_u32 v11, s31, v3")
    for g in range(2): e(f"ds_write_b128 v11, v[{56+4*g}:{59+4*g}] offset:{g*1024}")
    e("ds_write_b32 v20, v19 offset:128")
    e.lg0()
    if ymode == 0: ysend(2)
    if ymode == 2:
        lds_wait(20, 48, "s_cmp_lg_u32 s82, 0", 1, sleep=2)
        for g in range(3): ysend(g)
    st(e, "ydone")
    e.lg0()
    e("s_barrier")
    st.dump(e); info["S"] = st.names
    e("s_endpgm")

    e.vm = []; e.lg = []
    e.label("K_SPARE")
    st = Stamper(stamps, 143)
    e("s_cmp_ge_u32 s2, 256\ns_cbranch_scc1 K_END\nv_mov_b32 v2, v0\nv_and_b32 v0, 63, v0\ns_lshr_b32 s3, s3, 6")
    e("v_lshlrev_b32 v7, 7, v2")
    e("s_sub_u32 s4, s2, 224\ns_lshr_b32 s5, s4, 1\ns_and_b32 s6, s4, 1")
    e("v_lshrrev_b32 v3, 4, v2\nv_and_b32 v4, 15, v2\nv_mul_u32_u24 v5, 0xe00, v3\nv_lshl_add_u32 v5, v4, 4, v5")
    e(f"v_mov_b32 v6, 0\ns_mov_b32 s82, {WS_EP}\ns_lshl_b32 s28, s5, 8")
    e("s_cmp_eq_u32 s6, 0")
    e("s_waitcnt lgkmcnt(0)")
    e("s_cselect_b32 s16, s52, s54\ns_cselect_b32 s17, s53, s55")
    e(f"s_and_b32 s17, s17, 0xffff\ns_mov_b32 s18, {448*3584}\ns_mov_b32 s19, 0x20000")
    srd(e, 20, 62, WS_LIM)
    srd(e, 8, 56, 1792 * 896)
    srd(e, 64, 42, 448 * 896)
    srd(e, 68, 44, 448 * 896)
    if late:
        e("s_cmp_lg_u32 s3, 0\ns_cbranch_scc1 K_sp6\nv_min_u32 v84, 6, v0\nv_lshlrev_b32 v84, 7, v84\ns_mov_b64 exec, 0x7f")
        for i, p in enumerate((34, 36, 46, 48, 58)): e(f"global_load_dword v{85+i}, v84, s[{p}:{p+1}]")
        e("s_mov_b64 exec, -1")
        e.label("K_sp6")
    e("s_cmp_ge_u32 s4, 28\ns_cbranch_scc1 K_sp4")
    e.vmem("buffer_load_dword v6, v6, s[20:23], s82 offen sc1", "ep")
    if spw: e.vm0()
    for i in range(14):
        e.vmem(f"buffer_load_dwordx4 v[{16+4*i}:{19+4*i}], v5, s[16:19], s28 offen", ("cs", i))
        if i < 13: e(f"s_add_u32 s28, s28, {32*3584}")
        if spd and i >= spd - 1 and i < 6: e.vm_wait({("cs", i - spd + 1)})
    def do_warm():
        e("s_mul_i32 s28, s4, 57344\ns_mul_i32 s29, s4, 14336")
        e.vmem("buffer_load_dword v80, v7, s[8:11], s28 offen", "t")
        e("v_and_b32 v4, 0x3fff, v7\ns_cmp_lt_u32 s3, 2\ns_cselect_b32 s64, s64, s68\ns_cselect_b32 s65, s65, s69\ns_cmp_lt_u32 s3, 4\ns_cselect_b32 s66, s66, 0")
        e.vmem("buffer_load_dword v81, v4, s[64:67], s29 offen", "t")
    if warm == 1: do_warm()
    for q in range(8): e(f"v_mov_b32 v{8+q}, 0")
    for i in range(14):
        e.vm_wait({("cs", i)})
        for q in range(4):
            e(f"v_lshlrev_b32 v72, 16, v{16+4*i+q}\nv_and_b32 v73, 0xffff0000, v{16+4*i+q}\nv_pk_add_f32 v[{8+2*q}:{9+2*q}], v[{8+2*q}:{9+2*q}], v[72:73]")
    e("v_lshlrev_b32 v3, 5, v2")
    e("ds_write_b128 v3, v[8:11]\nds_write_b128 v3, v[12:15] offset:16\ns_waitcnt lgkmcnt(0)")
    st(e, "acc")
    e("s_barrier")
    e("s_cmp_lg_u32 s3, 7\ns_cbranch_scc1 K_sp2")
    e("v_lshlrev_b32 v3, 3, v0\nv_add_u32 v9, 1, v6\nv_max_u32 v9, 1, v9\nv_mov_b32 v11, v9")
    for h in range(2):
        for i in range(16): e(f"ds_read_b64 v[{16+2*i}:{17+2*i}], v3 offset:{(16*h+i)*512}")
        e("s_waitcnt lgkmcnt(0)")
        if h == 0: e("v_mov_b32 v12, 0\nv_mov_b32 v13, 0")
        for i in range(16): e(f"v_pk_add_f32 v[12:13], v[12:13], v[{16+2*i}:{17+2*i}]")
    e(f"v_mov_b32 v8, v12\nv_mov_b32 v10, v13\nv_lshlrev_b32 v3, 4, v0\ns_lshl_b32 s30, s4, 10\ns_add_u32 s30, s30, {WS_CS}")
    e("buffer_store_dwordx4 v[8:11], v3, s[20:23], s30 offen sc1")
    e.label("K_sp2")
    if warm == 2: do_warm()
    e.label("K_sp4")
    if retouch:
        e("s_getpc_b64 s[28:29]")
        e.label("K_PC2")
        e(f"s_sub_u32 s28, s28, K_PC2-{name}\ns_subb_u32 s29, s29, 0\nv_min_u32 v7, ALL_END-{name}-4, v7\nglobal_load_dword v83, v7, s[28:29] sc1")
    e.label("K_sp3")
    st.dump(e); info["sp"] = st.names
    e.label("K_END")
    e("s_endpgm")
    e.label("ALL_END")
    return khead(name) + e.text(), kd(name, 256, 256), info

if __name__ == "__main__":
    import sys, json
    NAME = "recurrent_scan__ssm_conv_s5__glu_gated_reglu__prompt_kernel"
    stamps = "stamps" in sys.argv
    kw = {}
    for a in sys.argv[2:]:
        if "=" in a:
            k, v = a.split("="); kw[k] = int(v) if v.lstrip("-").isdigit() else v
    b, d, info = gen_fused(NAME, stamps=stamps, **kw)
    hdr = open("recurrent_scan__ssm_conv_s5__glu_gated_reglu__prompt.s.ref").read().split("; Override")[0]
    txt = hdr + f"; @launch grid=(256,1,1) block=(512,1,1) lds={LDS_BYTES}\n"
    if stamps and "rt" in sys.argv: txt += "; RT\n"
    if stamps: txt += "; STAMPS " + json.dumps(info) + "\n"
    txt += '.amdgcn_target "amdgcn-amd-amdhsa--gfx950"\n' + b + d
    open(sys.argv[1], "w").write(txt)
```

```python
from asmlib import *
from layout7 import *
import sys as _sys
APAD = int(([a[5:] for a in _sys.argv if a.startswith("apad=")] + ["0"])[0])
if APAD:
    A_W += APAD
    WS_AY = WS_END + (2 << 20); WS_AO = WS_AY + 32 * A_W
    WS_LIM = WS_AO + 64 * A_W
else:
    WS_LIM = WS_END
LDS_BYTES = 163840
RING = 114688
NR = 5
MISC = RING + NR * 8192
STAT = MISC
CSB = MISC + 1024
CSW = MISC + 2048
SUB = MISC + 3072
FLG = MISC + 7168
LOG2E = 0x3fb8aa3b
SPIN_MAX = 0x200000
UNIT = 114688
CH = 16384
import sys
PADAT = ([a[6:] for a in sys.argv if a.startswith('padat=')] + [''])[0]
TIMER = 's_memrealtime' if 'rt' in sys.argv else 's_memtime'
C0 = 2 * CH
SC = 4 * CH

def mfma(d, a, b, first=False):
    c = "0" if first else f"v[{d}:{d+15}]"
    return f"v_mfma_f32_32x32x16_bf16 v[{d}:{d+15}], v[{a}:{a+3}], v[{b}:{b+3}], {c}"

def mf16(d, a, b, first=False):
    c = "0" if first else f"v[{d}:{d+3}]"
    return f"v_mfma_f32_16x16x32_bf16 v[{d}:{d+3}], v[{a}:{a+3}], v[{b}:{b+3}], {c}"

class Stamper:
    def __init__(self, on, vreg): self.on = on; self.n = 0; self.v = vreg; self.names = []
    def __call__(self, e, name=""):
        if PADAT and name == PADAT and self.v == 127: e("s_memrealtime s[100:101]")
        if not self.on: return
        e.lg0()
        e(f"v_writelane_b32 v{self.v}, s80, {self.n}\n{TIMER} s[80:81]")
        self.n += 1; self.names.append(name)
        assert self.n <= 60
    def dump(self, e):
        if not self.on: return
        e("s_waitcnt vmcnt(0)")
        self(e, "end"); self(e)
        e("s_memrealtime s[80:81]\ns_waitcnt lgkmcnt(0)")
        e(f"v_writelane_b32 v{self.v}, s96, 62\nv_writelane_b32 v{self.v}, s80, 63\ns_mov_b32 s80, {self.n}\nv_writelane_b32 v{self.v}, s80, 61")
        e(f"s_mov_b32 s22, {WS_END + (1<<20)}")
        e("s_lshl_b32 s82, s2, 3\ns_add_u32 s82, s82, s3\ns_lshl_b32 s82, s82, 8")
        e(f"s_add_u32 s82, s82, {WS_END}")
        e("v_lshlrev_b32 v1, 2, v0")
        e(f"buffer_store_dword v{self.v}, v1, s[20:23], s82 offen")

def spin(e, body, cond_ok, sleep=1):
    l = e.newlabel("SP")
    e("s_mov_b32 s95, 0")
    e.label(l)
    body()
    e(cond_ok)
    e(f"s_cbranch_scc1 {l}_ok")
    if sleep: e(f"s_sleep {sleep}")
    e(f"s_add_u32 s95, s95, 1\ns_cmp_lt_u32 s95, {SPIN_MAX}\ns_cbranch_scc1 {l}")
    e.label(l + "_ok")

def tau_of_lane(e, d, t):
    e(f"v_bfe_u32 v{d}, v0, 2, 1\nv_lshlrev_b32 v{d}, 4, v{d}\nv_bfe_u32 v{t}, v0, 3, 2\nv_lshl_add_u32 v{d}, v{t}, 2, v{d}\nv_and_b32 v{t}, 3, v0\nv_add_u32 v{d}, v{d}, v{t}")

def plan_slots(cc):
    rp = {}
    for m in range(2, 28):
        rp[m] = m - 2
    if cc < 7:
        b = 4 * (cc - 1)
        for m, p in zip(range(b + 2, b + 8), (b, b + 1, b + 1, b + 2, b + 3, b + 3)): rp[m] = p
        for m in range(b + 8, 28): rp[m] = m - 4
    rp[0] = rp[1] = -1
    rd = {n: [m for m in range(28) if rp[m] == n] for n in range(-1, 28)}
    wslot = {n: ("r", ((n + 2) % NR) * 8192) for n in range(5)}
    issue = {}
    nxt = 5
    free = []
    wd = []
    for n in range(28):
        if n in (5, 9):
            c = (n >> 2) - 1
            free += [("c", c * CH), ("c", c * CH + 2048)]
        free += [wslot[m] for m in rd[n - 1]]
        issue[n] = []
        cap = 2 if n < 13 else 1
        while free and nxt < 28 and len(issue[n]) < cap:
            wslot[nxt] = free.pop(0); issue[n].append(nxt); nxt += 1
        if nxt == 28 and not issue[n] and free: wd.append((free.pop(0), n + 1, 0))
    assert len(wd) == 9 and not free, (wd, free)
    wd += [(("r", -8192), 0, 7)] + [(("c", C0 + (i >> 1) * CH + (i & 1) * 2048), 0, 0) for i in range(4)]
    return wslot, issue, rd, wd

def gen_fused(name, stamps=False, D0=3, pad=0, ra=0, kint=2, fine=1, sidle=0, sprio=3, sprio2=0, fprio=2, NA=20, pace=0, warm=2, ypre=9, ssl=1, ysl=3, t0=28, e0=0, e1=3, e2=3, ywait=6, wsl=1, pxs=3072, lin=0, cf=2, direct=1, pf=1, c4=0, cpl8=0, al=0, ng=252, dg=0, strim=1, hsl=4, deep=0, ysl2=0, spw=1, spd=0, cc=2, ovl=1, thr=14, cap=3, sch=1, ych=0, postb=0, ag1=1, adel=1, fgrp=2, xne=2, lw=0, psl=1, na0=99, dep=20, yprio=3, apad=0, ymode=0, ty=40, tpos=1, tfl='', retouch=0, xo=6, lp=1, cw=244, front=0, tlb=0, probe=0, late=0, rb_o=0, rb_y=0, padwg=-1, padat='', tr=55, gap=0, pt=0, pt0=15, ptn=7, noc=0, nowd=0, dwarm=0, outfl='nt', force=0, bulk=0):
    e = Em2()
    info = {}
    wslot, wissue, wrd, wdslot = plan_slots(cc)
    def stores(ins_list, tag):
        for x in ins_list: e.vmem(x + " sc1", tag)
    def dual(ins_list, tag, on=True):
        if not on: return stores(ins_list, tag)
        l = e.newlabel("DS")
        e(f"s_cmp_eq_u32 s97, 2\ns_cbranch_scc1 {l}_l")
        for x in ins_list: e(x + " sc1")
        e(f"s_branch {l}_e")
        e.label(l + "_l")
        for x in ins_list: e.vmem(x, tag)
        e.label(l + "_e")
    def wd_setup(va, sr):
        e(f"v_lshrrev_b32 v{va}, 3, v0\nv_mul_u32_u24 v{va}, 0x380, v{va}\nv_lshrrev_b32 v{va+1}, 4, v0\nv_lshlrev_b32 v{va+1}, 1, v{va+1}")
        e(f"v_and_b32 v1, 7, v0\nv_xor_b32 v1, v1, v{va+1}\nv_lshl_add_u32 v{va}, v1, 4, v{va}\nv_add_u32 v{va+1}, {8*896-1024}, v{va}")
        srd(e, sr, 56, 1792 * 896)
        e("s_lshl_b32 s98, s99, 1")
        e(f"s_mul_i32 s88, s4, {32*896}\ns_lshl_b32 s82, s91, 7\ns_add_u32 s88, s88, s82\ns_mul_i32 s82, s85, {7*UNIT}\ns_add_u32 s88, s88, s82")
        e(f"s_mul_i32 s64, s98, {UNIT}\ns_add_u32 s64, s64, s88\ns_add_u32 s88, s88, {7*UNIT}")
        for u in range(1, 7):
            e(f"s_add_u32 s{64+u}, s{63+u}, {UNIT}\ns_cmp_ge_u32 s{64+u}, s88\ns_cselect_b32 s82, {7*UNIT}, 0\ns_sub_u32 s{64+u}, s{64+u}, s82")
    def wd_dma(k, va, sr):
        kind, off = wdslot[k][0]
        e(f"s_add_u32 m0, s{89 if kind == 'c' else 79}, {off}\ns_add_u32 s82, s{64+(k>>1)}, {(k&1)*16*896}")
        e.vmem(f"buffer_load_dwordx4 v{va}, s[{sr}:{sr+3}], s82 offen lds", ("wd", k))
        e.vmem(f"buffer_load_dwordx4 v{va+1}, s[{sr}:{sr+3}], s82 offen offset:1024 lds", ("wd", k))
    def wd_half(k, hf):
        kind, off = wdslot[k][0]
        e(f"s_add_u32 m0, s{89 if kind == 'c' else 79}, {off}\ns_add_u32 s82, s{64+(k>>1)}, {(k&1)*16*896}")
        e.vmem(f"buffer_load_dwordx4 v{2+hf}, s[12:15], s82 offen" + (" offset:1024" if hf else "") + " lds", ("wd", k))
    def lds_wait(addr, off, cond, tmp, sleep=1):
        def body(): e(f"ds_read_b32 v{tmp}, v{addr} offset:{off}\ns_waitcnt lgkmcnt(0)\nv_readfirstlane_b32 s82, v{tmp}")
        spin(e, body, cond, sleep=sleep)
        e.lg = []
    if stamps: e(f"s_memrealtime s[96:97]\n{TIMER} s[80:81]")
    elif pad: e("s_memrealtime s[96:97]")
    e("s_load_dwordx16 s[32:47], s[0:1], 0")
    e("s_load_dwordx16 s[48:63], s[0:1], 64")
    e("v_readfirstlane_b32 s3, v0\ns_cmpk_lt_u32 s2, 224\ns_cbranch_scc1 K_MAIN")
    e(f"s_cmpk_lt_u32 s2, {cw}\ns_cbranch_scc1 K_SPARE\ns_getpc_b64 s[28:29]")
    e.label("K_PC")
    e("v_lshlrev_b32 v7, 7, v0\nv_min_u32 v7, ALL_END-K_PC-4, v7\nglobal_load_dword v83, v7, s[28:29]\ns_branch K_SPARE")
    e.label("K_MAIN")
    e("v_and_b32 v0, 63, v0\ns_lshr_b32 s3, s3, 6\ns_and_b32 s4, s3, 3\ns_and_b32 s5, s2, 3\ns_lshl_b32 s5, s5, 2\ns_bfe_u32 s99, s2, 0x20003\ns_add_u32 s5, s5, s99")
    e("s_lshr_b32 s91, s2, 5\nv_lshrrev_b32 v21, 5, v0\ns_lshl_b32 s89, s4, 12")
    def rot_off(d):
        if xo == 0:
            e(f"s_mul_i32 s{d}, s99, {ra}")
        else:
            tab = sum((((ra*(rb & 3) + xo*(rb >> 2)) % 7) << (4*rb)) for rb in range(16))
            e(f"s_mov_b32 s12, {tab & 0xffffffff}\ns_mov_b32 s13, {tab >> 32}\ns_lshl_b32 s{d}, s5, 2\ns_lshr_b64 s[12:13], s[12:13], s{d}\ns_and_b32 s{d}, s12, 7")
    rot_off0 = rot_off
    def rot_off(d):
        rot_off0(d)
        if cf:
            fct = {1: lambda c: 0, 2: lambda c: c >> 1, 3: lambda c: c & 1, 4: lambda c: (c % 3), 5: lambda c: 2*(c % 4)}[cf]
            tab = sum((((fct(c) - c) % 7) << (4*c)) for c in range(7))
            e(f"s_lshl_b32 s12, s91, 2\ns_lshr_b32 s12, {tab}, s12\ns_and_b32 s12, s12, 7\ns_add_u32 s{d}, s{d}, s12\ns_cmp_ge_u32 s{d}, 7\ns_cselect_b32 s12, 7, 0\ns_sub_u32 s{d}, s{d}, s12")
    def common2():
        e(f"s_bfe_u32 s85, s2, 0x10002\ns_mul_i32 s6, s85, 7\ns_add_u32 s6, s6, s91\ns_lshl_b32 s79, s4, 11\ns_add_u32 s79, s79, {RING}")
    def common3():
        e("v_and_b32 v20, 31, v0\nv_bfe_u32 v22, v0, 1, 3\nv_xor_b32 v22, v22, v21\nv_lshlrev_b32 v20, 7, v20")
    e("s_cmp_ge_u32 s3, 4")
    e("s_cbranch_scc1 K_S")

    st = Stamper(stamps, 127)
    e("v_bfe_u32 v6, v0, 3, 2\nv_and_b32 v9, 7, v0\nv_lshrrev_b32 v7, 4, v0\nv_xor_b32 v9, v9, v7\nv_lshlrev_b32 v9, 4, v9\nv_xor_b32 v7, 64, v9")
    e("v_lshl_add_u32 v5, v21, 4, v6\ns_movk_i32 s30, 0x380\nv_mad_u32_u24 v1, v5, s30, v9\nv_mad_u32_u24 v2, v5, s30, v7\ns_movk_i32 s31, 2560\nv_add_u32 v2, s31, v2")
    def rho():
        e("s_lshr_b32 s7, s2, 6\ns_and_b32 s10, s2, 3\ns_sub_u32 s7, s7, s10\ns_cselect_b32 s10, 7, 0\ns_add_u32 s7, s7, s10")
    if direct:
        assert (ra, xo, cf) == (0, 6, 2)
        rho()
        e("s_lshl_b32 s64, s7, 7")
    else:
        rot_off(10)
        e("s_add_u32 s7, s91, s10\ns_cmp_ge_u32 s7, 7\ns_cselect_b32 s10, 7, 0\ns_sub_u32 s7, s7, s10\ns_lshl_b32 s64, s7, 7")
    e("s_lshl_b32 s28, s5, 2\ns_add_u32 s28, s28, s4\ns_mulk_i32 s28, 28672\ns_lshl_b32 s31, s31, 1\nv_add_u32 v3, s31, v1\nv_add_u32 v4, s31, v2")
    e(f"s_mov_b32 s10, {2048*896}\ns_mov_b32 s11, 0x20000\ns_mov_b32 m0, s89\ns_add_u32 s83, s28, s64")
    e("s_waitcnt lgkmcnt(0)")
    st(e, "karg")
    e("s_mov_b32 s8, s32\ns_and_b32 s9, s33, 0xffff")
    for ii in range(4):
        e.vmem(f"buffer_load_dwordx4 v{1+ii}, s[8:11], s83 offen" + (f" offset:{ii*1024}" if ii else "") + " lds", ("x", 0))
    common2()
    e(f"v_lshl_add_u32 v6, v21, 3, v6\nv_mad_u32_u24 v5, v6, s30, v9\nv_mad_u32_u24 v6, v6, s30, v7\nv_add_u32 v6, {4*896-1024}, v6")
    e("s_lshl_b32 s29, s6, 1\ns_and_b32 s30, s4, 1\ns_add_u32 s29, s29, s30\ns_mulk_i32 s29, 14336")
    e(f"s_cmp_lt_u32 s4, 2\ns_cselect_b32 s12, s38, s40\ns_cselect_b32 s13, s39, s41\ns_and_b32 s13, s13, 0xffff\ns_mov_b32 s14, {448*896}\ns_mov_b32 s15, 0x20000")
    e("s_mov_b32 m0, s79\ns_add_u32 s83, s29, s64")
    e.vmem("buffer_load_dwordx4 v5, s[12:15], s83 offen lds", ("x", 0))
    e.vmem("buffer_load_dwordx4 v6, s[12:15], s83 offen offset:1024 lds", ("x", 0))
    e(f"s_setprio {fprio}")
    for c in range(1, 7):
        e(f"s_add_u32 s{64+c}, s{63+c}, 128\ns_cmp_ge_u32 s{64+c}, 896\ns_cselect_b32 s{64+c}, 0, s{64+c}")
    def xb_burst(c):
        e(f"s_add_u32 m0, s89, {c*CH}\ns_add_u32 s83, s28, s{64+c}")
        for ii in range(4):
            e.vmem(f"buffer_load_dwordx4 v{1+ii}, s[8:11], s83 offen" + (f" offset:{ii*1024}" if ii else "") + " lds", ("x", c))
        e(f"s_add_u32 m0, s79, {(c % NR)*8192}\ns_add_u32 s83, s29, s{64+c}")
        e.vmem("buffer_load_dwordx4 v5, s[12:15], s83 offen lds", ("x", c))
        e.vmem("buffer_load_dwordx4 v6, s[12:15], s83 offen offset:1024 lds", ("x", c))
    if D0 > 1: xb_burst(1)
    if probe:
        st(e, "iss0")
        e("s_waitcnt vmcnt(5)")
        st(e, "land1")
        e("s_waitcnt vmcnt(0)")
        st(e, "land0")
    srd(e, 20, 62, WS_LIM)
    e(f"v_mov_b32 v120, 0\ns_mov_b32 s82, {WS_EP}")
    def ep_load():
        e(f"s_mov_b32 s82, {WS_EP}\ns_mov_b64 exec, 1")
        e.vmem("buffer_load_dword v120, v120, s[20:23], s82 offen sc1", "ep")
        e("s_mov_b64 exec, -1")
    if not late: ep_load()
    e(f"v_mov_b32 v124, 0\nv_mov_b32 v125, 0\ns_lshl_b32 s31, s4, 9\ns_add_u32 s31, s31, {SUB}\nv_lshl_add_u32 v8, v0, 3, s31")
    e.lds("ds_write_b64 v8, v[124:125]")
    e(f"v_lshlrev_b32 v8, 2, v0\nv_add_u32 v8, {FLG}, v8")
    e.lds("ds_write_b32 v8, v124")
    e("v_lshrrev_b32 v23, 4, v0\nv_and_b32 v20, 15, v0\nv_bfe_u32 v10, v0, 1, 3\nv_xor_b32 v10, v10, v23\nv_lshlrev_b32 v10, 4, v10\nv_lshl_add_u32 v10, v20, 7, v10")
    e("v_xor_b32 v11, 64, v10\nv_add_u32 v12, 0x10000, v10\nv_add_u32 v13, 0x10000, v11")
    srd(e, 16, 52, 448 * 3584)
    srd(e, 24, 54, 448 * 3584)
    e("s_lshl_b32 s31, s6, 8\ns_lshl_b32 s82, s4, 6\ns_add_u32 s31, s31, s82")
    for c in range(7): e(f"s_mul_i32 s{72+c}, s{64+c}, 1792\ns_add_u32 s{72+c}, s{72+c}, s31")
    e("v_bfe_u32 v8, v0, 2, 2\nv_lshl_add_u32 v7, v23, 3, v8\nv_mul_u32_u24 v7, 0xe00, v7\nv_and_b32 v22, 1, v23\nv_lshlrev_b32 v9, 1, v22\nv_and_b32 v14, 3, v0\nv_xor_b32 v9, v9, v14\nv_lshl_add_u32 v7, v9, 4, v7")
    e("v_lshrrev_b32 v9, 2, v0\nv_lshlrev_b32 v9, 6, v9\nv_lshl_add_u32 v9, v22, 5, v9\nv_lshl_add_u32 v9, v14, 3, v9\nv_add_u32 v125, s89, v9\nv_add_u32 v9, s79, v9\nv_xor_b32 v14, 32, v9\nv_xor_b32 v15, 32, v125")
    e("v_lshlrev_b32 v18, 4, v0")
    e(f"s_lshl_b32 s31, s4, 2\ns_add_u32 s31, s31, {FLG}\nv_mov_b32 v19, s31")
    e(f"s_lshl_b32 s31, s4, 8\ns_add_u32 s31, s31, {CSW}\nv_lshl_add_u32 v122, v23, 4, s31")
    e("v_bfe_u32 v123, v0, 2, 1\nv_lshlrev_b32 v123, 4, v123\nv_bfe_u32 v8, v0, 3, 1\nv_lshl_add_u32 v123, v8, 2, v123\nv_and_b32 v8, 3, v0\nv_add_u32 v123, v123, v8")
    e(f"v_lshlrev_b32 v123, 2, v123\nv_add_u32 v123, {STAT}, v123\nv_lshlrev_b32 v17, 2, v8\nv_add_u32 v17, {FLG}, v17\nv_mov_b32 v8, {FLG}")
    e(f"s_lshl_b32 s92, s5, 2\ns_add_u32 s92, s92, s4\ns_mul_i32 s92, s92, {A_W}\ns_add_u32 s92, s92, {WS_AO}\ns_lshl_b32 s31, s6, 13\ns_add_u32 s86, s92, s31\ns_add_u32 s87, s86, 4096")
    if probe: st(e, "setup")
    for c in range(2, D0): xb_burst(c)
    ptl = list(range(64)) if pt else []
    def pretouch(n):
        for _ in range(n):
            if ptl: e(f"s_load_dword s100, s[46:47], {ptl.pop(0) * 128}")
    if pt:
        e.lg0()
        e("s_add_u32 s46, s62, s86\ns_addc_u32 s47, s63, 0")
        pretouch(pt0)
    def dma_parts(kd_, a1, a2):
        if kd_ == "w":
            c, jj = a1 >> 2, a1 & 3
            kind, off = wslot[a1]
            return (f"s_add_u32 m0, s{89 if kind == 'c' else 79}, {off + a2*1024}\ns_add_u32 s83, s{72+c}, {(32*(jj >> 1) + 4*(jj & 1))*3584}",
                    f"buffer_load_dwordx4 v7, s[{16+8*a2}:{19+8*a2}], s83 offen lds", ("w", a1))
        if kd_ == "d":
            kind, off = wdslot[a1][0]
            return (f"s_add_u32 m0, s{89 if kind == 'c' else 79}, {off}\ns_add_u32 s83, s{64+(a1>>1)}, {(a1&1)*16*896}",
                    f"buffer_load_dwordx4 v{2+a2}, s[12:15], s83 offen" + (" offset:1024" if a2 else "") + " lds", ("wd", a1))
        return (f"s_add_u32 m0, s89, {C0 + (a1 >> 2)*CH + (a1 & 2)*1024}\ns_add_u32 s83, s{28 if a1 < 8 else 94}, {((a1 & 7) >> 1)*16*896}",
                f"buffer_load_dwordx4 v{5 + (a1 & 1)}, s[8:11], s83 offen" + (" offset:1024" if a1 & 1 else "") + " lds", ("c", a1 >> 3))
    def w_issue(n, mt):
        a, b, t = dma_parts("w", n, mt)
        e(a); e.vmem(b, t)
    def wreads(m):
        kind, wo = wslot[m]
        ws_ = 24 + 16*((m >> 1) & 3) + 2*(m & 1)
        return [(f"ds_read_b64_tr_b16 v[{ws_+8*mt+4*ft}:{ws_+8*mt+4*ft+1}], v{((125, 15) if kind == 'c' else (9, 14))[ft]} offset:{wo + mt*1024}", ("W", m)) for mt in range(2) for ft in range(2)]
    def xmap(q):
        c, z = q >> 4, q & 15
        return (c, z >> 3, z & 7) if c < cc else (c, z & 1, z >> 1)
    def xreg(q): return 88 + 4*(q % 5)
    def xread(q):
        c, dp, tt = xmap(q)
        return (f"ds_read_b128 v[{xreg(q)}:{xreg(q)+3}], v{10 + dp + (2 if c >= 4 else 0)} offset:{(c & 3)*CH + tt*2048}", ("X", q))
    for sg in range(8):
        tags = {("x", sg)}
        eps = 7 if late else 1
        if sg == eps: tags.add("ep")
        e.vm_wait(tags)
        if sg == 0 and not pt: e.lg0()
        if sg == 7 and not postb:
            e.vm_wait({("w", 1)})
            for s, t in wreads(0) + wreads(1) + [xread(q) for q in range(4)]: e.lds(s, t)
        if not pt or sg == 7: st(e, f"b{sg}")
        e("s_barrier")
        if sg + D0 < 7: xb_burst(sg + D0)
        if 3 <= sg < 7:
            w_issue(sg - 3, 0); w_issue(sg - 3, 1)
        if late and sg == 4: ep_load()
        if sg == eps: e("v_readfirstlane_b32 s84, v120\ns_add_u32 s84, s84, 1\ns_max_u32 s84, s84, 1")
        if sg < 7: pretouch(ptn)
        if sg == 5: wd_setup(2, 12)
        if sg == 6:
            e(f"s_bitcmp1_b32 s4, 1\ns_cselect_b32 s8, s44, s42\ns_cselect_b32 s9, s45, s43\ns_and_b32 s9, s9, 0xffff\ns_mov_b32 s10, {448*896}")
            e(f"s_mul_i32 s29, s91, {64*896}\ns_and_b32 s30, s4, 1\ns_lshl_b32 s28, s85, 2\ns_add_u32 s94, s28, 2\ns_add_u32 s28, s28, s30\ns_cmp_eq_u32 s30, 0\ns_cselect_b32 s94, s94, 3")
            e("s_lshl_b32 s28, s28, 7\ns_add_u32 s28, s28, s29\ns_lshl_b32 s94, s94, 7\ns_add_u32 s94, s94, s29")
            e("v_lshrrev_b32 v4, 3, v0\nv_mul_u32_u24 v4, 0x380, v4\nv_and_b32 v5, 7, v0\nv_lshrrev_b32 v6, 4, v0\nv_xor_b32 v5, v5, v6\nv_lshlrev_b32 v5, 4, v5")
            e(f"v_xor_b32 v6, 64, v5\nv_add_u32 v5, v4, v5\nv_add_u32 v6, v4, v6\nv_add_u32 v6, {8*896-1024}, v6")
    assert not ptl
    w_issue(4, 0); w_issue(4, 1)
    if postb:
        e.vm_wait({("w", 1)})
        for s, t in wreads(0) + wreads(1) + [xread(q) for q in range(4)]: e.lds(s, t)
    CS = 56; MM = 72
    cs_rd = [("ds_read_b32 v121, v19 offset:16", "cs")] + [(f"ds_read_b32 v{MM+tt}, v123 offset:{(tt >> 1)*128 + (tt & 1)*32}", "cs") for tt in range(8)]
    cs_rd += [(f"ds_read_b128 v[{CS+8*mt+4*ft}:{CS+8*mt+4*ft+3}], v122 offset:{mt*128 + ft*64}", "cs") for mt in range(2) for ft in range(2)]
    p2 = []
    def p_(s): p2.extend(s.split("\n"))
    p_("v_lshrrev_b32 v115, 2, v0\nv_bfe_u32 v114, v0, 3, 2\ns_and_b32 s31, s4, 2\nv_xor_b32 v114, s31, v114\nv_lshlrev_b32 v115, 7, v115\nv_lshl_add_u32 v115, v114, 5, v115\nv_and_b32 v114, 3, v0\nv_lshl_add_u32 v115, v114, 3, v115")
    p_(f"s_lshl_b32 s30, s31, 12\ns_lshl_b32 s31, s31, 11\ns_add_u32 s31, s31, {RING - 8192}\nv_add_u32 v108, s30, v115\nv_add_u32 v112, s31, v115")
    for cb in range(1, 4): p_(f"v_xor_b32 v{108+cb}, {32*cb}, v108\nv_xor_b32 v{112+cb}, {32*cb}, v112")
    p_(f"s_lshl_b32 s93, s5, 1\ns_add_u32 s93, s93, s85\ns_lshl_b32 s93, s93, 10\ns_add_u32 s93, s93, {WS_FO}")
    p_(f"s_and_b32 s31, s4, 1\ns_mul_i32 s31, s31, {A_W}\ns_sub_u32 s92, s92, s31")
    p_(f"s_mul_i32 s31, s85, {7*8192}\ns_add_u32 s92, s92, s31")
    p_(f"s_lshl_b32 s90, s98, 13\ns_add_u32 s90, s90, s92\ns_add_u32 s92, s92, {7*8192}\ns_add_u32 s71, s90, {A_W}")
    p_("s_lshl_b32 s29, s85, 6\ns_and_b32 s31, s4, 1\ns_lshl_b32 s31, s31, 5\ns_add_u32 s29, s29, s31\ns_lshl_b32 s30, s5, 7\ns_add_u32 s30, s30, s29")
    p_(f"v_lshlrev_b32 v117, 4, v22\nv_lshl_add_u32 v117, v21, 2, v117\nv_add_u32 v116, s30, v117\ns_lshl_b32 s29, s29, 2\ns_add_u32 s29, s29, {STAT}\nv_lshl_add_u32 v117, v117, 2, s29")
    p_("s_lshl_b32 s29, s91, 8\ns_lshr_b32 s31, s4, 1\ns_lshl_b32 s31, s31, 7\ns_add_u32 s29, s29, s31\nv_mul_u32_u24 v116, 0x700, v116\nv_lshl_add_u32 v116, v20, 2, v116\nv_add_u32 v116, s29, v116")
    for q in range(1, 8): p_(f"s_movk_i32 s{32+q}, {q*3584}")
    p_(f"s_mul_i32 s40, s5, 7\ns_add_u32 s40, s40, s91\ns_lshl_b32 s40, s40, 1\ns_add_u32 s40, s40, s85\ns_lshl_b32 s40, s40, 2\ns_add_u32 s40, s40, s4\ns_xor_b32 s41, s40, 4\ns_mul_i32 s40, s40, {pxs}\ns_mul_i32 s41, s41, {pxs}\ns_add_u32 s40, s40, {WS_PX + 896*pxs}\ns_add_u32 s41, s41, {WS_PX + 896*pxs}")
    slow = []; slow2 = []; slow3 = []
    def epi_plain(g):
        G, U = 128 + 8*g, 192 + 8*g
        o = []
        for r in range(8): o += [f"v_fma_f32 v{G+r}, -v{CS+r}, v{MM+g}, v{G+r}", f"v_fma_f32 v{U+r}, -v{CS+8+r}, v{MM+g}, v{U+r}"]
        for r in range(8): o.append(f"v_max_f32 v{G+r}, 0, v{G+r}")
        for r in range(8): o.append(f"v_mul_f32 v{G+r}, v{G+r}, v{U+r}")
        for r in range(4): o.append(f"v_cvt_pk_bf16_f32 v{U+r}, v{G+2*r}, v{G+2*r+1}")
        return o
    def hh_store(g): dual([f"buffer_store_dwordx4 v[{192+8*g}:{195+8*g}], v18, s[20:23], s{86 + (g >> 2)} offen offset:{(g & 3)*1024}"], "hh", bulk & 1)
    xn_ = 4
    epq = []
    epi_done = 0; csok = [False]
    for n in range(28):
        c = n >> 2
        chained = c >= cc
        it = []
        wr = [x for m in wrd[n] for x in wreads(m)]
        for k, x in enumerate(wr): it.append((1 + (k * (10 if len(wr) > 4 else 8)) // len(wr), 1, lambda x=x: e.lds(*x)))
        dq = [("w", m, mt) for m in wissue[n] for mt in range(2)]
        for k in range(9):
            if wdslot[k][1] - 1 == n: dq += [("d", k, 0), ("d", k, 1)]
        cpl = {n_: [n_ - 13] for n_ in range(13, 25)}; cpl.update({25: [12, 13], 26: [14, 15]})
        if lin:
            cpl.update({17: [4, 5], 18: [6, 7], 19: [], 20: []})
            for k, hf in {25: [(10, 0), (10, 1)], 26: [(11, 0), (11, 1)], 27: [(12, 0), (12, 1), (13, 0), (13, 1)]}.get(n, []): dq.append(("d", k, hf))
            if n == 20: it.append((9, 2, lambda: (e.vm_wait({("c", 0)}), e.lds("ds_write_b32 v19, v126 offset:144"))))
            if n == 24: it.append((13, 1, lambda: e.lds("ds_read_b32 v121, v8 offset:88", "cp")))
            if n == 25:
                def cpc():
                    e.lg_wait({"cp"})
                    l = e.newlabel("CP")
                    e(f"v_readfirstlane_b32 s82, v121\ns_cmp_lt_u32 s82, 4\ns_cbranch_scc1 {l}")
                    e.label(l + "_r")
                    slow2.append((l, 8, 88, "s_cmp_ge_u32 s82, 4"))
                it.append((1, 4, cpc))
        if c4: cpl.update({21: [8, 9], 22: [10, 11], 23: [], 24: [], 25: [12, 13, 14, 15], 26: []})
        for a in cpl.get(n, []): dq.append(("c", a, 0))
        assert len(dq) <= 4, (n, dq)
        for k, x in enumerate(dq):
            g0 = {1: (10,), 2: (6, 14), 3: (6, 10, 14), 4: (2, 6, 10, 14)}[len(dq)][k]
            if dg == 1: g0 = {1: (10,), 2: (4, 12), 3: (4, 10, 13), 4: (2, 5, 10, 13)}[len(dq)][k]
            if dg == 2: g0 -= 1
            pr = dma_parts(*x)
            if dg == 3:
                it.append((g0, 3, lambda pr=pr: (e(pr[0]), e.vmem(pr[1], pr[2]))))
                continue
            it.append((g0, 2, lambda pr=pr: e(pr[0])))
            it.append((g0 + 1, 9 if dg in (1, 2, 4) else 1, lambda pr=pr: e.vmem(pr[1], pr[2])))
        if n in (4, 8, 12, 16, 20, 24):
            it.append((5, 1, lambda: e.lds("ds_read_b32 v16, v17", "pg")))
            it.append((13, 2, lambda n=n: (e.lg_wait({"pg"}), e(f"v_cmp_gt_u32 vcc, {n >> 2}, v16"))))
        if n in (5, 9, 13, 17, 21, 25):
            def pg(n=n):
                l = e.newlabel("PG")
                e(f"s_cbranch_vccnz {l}")
                e.label(l + "_r")
                slow.append((l, n >> 2))
            it.append((0, 1, pg))
        if (n & 3) == 3:
            def prog(n=n):
                if n == 23: e.vm_wait({("c", 0)})
                assert not any(t_[0] == "X" and (t_[1] >> 4) == (n >> 2) for t_ in e.lg if isinstance(t_, tuple))
                e(f"v_mov_b32 v126, {(n >> 2) + 1}")
                e.lds("ds_write_b32 v19, v126")
            it.append((13, 2, prog))
        csn = 24 if (ovl and cc < 7) else 27
        if n == csn:
            for k, x in enumerate(cs_rd): it.append((k * 5 // len(cs_rd), 1, lambda x=x: e.lds(*x)))
            if csn == 24:
                def cschk():
                    e.lg_wait({"cs"})
                    e("v_readfirstlane_b32 s97, v121\ns_cmp_eq_u32 s97, 0\ns_cbranch_scc1 K_csslow")
                    e.label("K_csok")
                    csok[0] = True
                it.append((12, 4, cschk))
        it.sort(key=lambda x: x[0])
        for i in range(16):
            z = 16*(n & 3) + i
            if chained: tt, f4, dp = z >> 3, (z >> 1) & 3, z & 1; q = 16*c + 2*tt + dp; newx = (z & 7) < 2
            else: dp, tt, f4 = z >> 5, (z >> 2) & 7, z & 3; q = 16*c + 8*dp + tt; newx = f4 == 0
            mt, ft = f4 >> 1, f4 & 1
            tg = {("X", q)} if newx else set()
            if i == 0: tg |= {("W", m) for m in wrd[n - 1]}
            nv = e.vm_need({("w", m) for m in wrd[n]}) if i == 0 else None
            idx = [x for x, y in enumerate(e.lg) if y in tg]
            parts = []
            if nv is not None:
                parts.append(f"vmcnt({nv})"); e.vm = e.vm[len(e.vm) - nv:] if nv else []
            if idx:
                nl = min(15, len(e.lg) - 1 - idx[-1]); parts.append(f"lgkmcnt({nl})"); e.lg = e.lg[len(e.lg) - nl:] if nl else []
            if parts: e("s_waitcnt " + " ".join(parts))
            e(mf16(128 + 64*mt + 8*tt + 4*ft, 24 + 32*(c & 1) + 16*dp + 8*mt + 4*ft, xreg(q), c == 0 and dp == 0))
            used = 0
            oldest = (q & ~1) if chained else q
            if xn_ < 112 and xn_ < oldest + 5:
                e.lds(*xread(xn_)); xn_ += 1; used += 1
            while it and (it[0][0] <= i) and (used == 0 or used + it[0][1] <= 2 or i == 15):
                x = it.pop(0); x[2](); used += x[1]
            if ovl and chained and c == 6 and csok[0] and not epq and z >= 8*epi_done + 12 and 64 - z >= thr:
                epq = epi_plain(epi_done) + [epi_done]; epi_done += 1
            while used < cap and (epq or (p2 and n >= 1 and used == 0)):
                if epq:
                    x = epq.pop(0)
                    if isinstance(x, int): hh_store(x)
                    else: e(x)
                else: e(p2.pop(0))
                used += 1
        assert not it
        if (fine and (n & 3) == 3) or n == 27: st(e, f"k{n}")
    assert not p2
    for x in epq:
        if isinstance(x, int): hh_store(x)
        else: e(x)
    def csbody():
        for s, t in cs_rd: e(s)
        e("s_waitcnt lgkmcnt(0)\nv_readfirstlane_b32 s97, v121")
    if not (ovl and cc < 7):
        e.lg0()
        e("v_readfirstlane_b32 s97, v121\ns_cmp_eq_u32 s97, 0\ns_cbranch_scc1 K_csslow")
        e.label("K_csok")
    st(e, "cs")
    info["epi_hidden"] = epi_done
    def align(k=0):
        if al: e(".p2alignl 3, 0xbf800000")
        if al == 2: e("s_nop 0")
    align()
    for g in range(epi_done, 8):
        G, U = 128 + 8*g, 192 + 8*g
        mp = MM + (g & 6)
        sel = ("op_sel:[0,1,0] op_sel_hi:[1,1,1]" if g & 1 else "op_sel_hi:[1,0,1]") + " neg_lo:[1,0,0] neg_hi:[1,0,0]"
        rs = range(0, 8, 2)
        if g == 7:
            e.lds("ds_read_b32 v16, v17", "pg")
            e.lds("ds_read_b32 v121, v8 offset:88", "pg")
        for r in rs:
            e(f"v_pk_fma_f32 v[{G+r}:{G+r+1}], v[{CS+r}:{CS+r+1}], v[{mp}:{mp+1}], v[{G+r}:{G+r+1}] {sel}")
            e(f"v_pk_fma_f32 v[{U+r}:{U+r+1}], v[{CS+8+r}:{CS+9+r}], v[{mp}:{mp+1}], v[{U+r}:{U+r+1}] {sel}")
        for r in rs: e(f"v_max_f32 v{G+r}, 0, v{G+r}\nv_max_f32 v{G+r+1}, 0, v{G+r+1}")
        for r in rs: e(f"v_pk_mul_f32 v[{G+r}:{G+r+1}], v[{G+r}:{G+r+1}], v[{U+r}:{U+r+1}]")
        for r in rs: e(f"v_cvt_pk_bf16_f32 v{U + (r >> 1)}, v{G+r}, v{G+r+1}")
        hh_store(g)
    e.vm_wait({("c", 1)})
    e.lds("ds_write_b32 v19, v126 offset:32")
    e.lg_wait({"pg"})
    l = e.newlabel("PG")
    e(f"v_cmp_gt_u32 vcc, 7, v16\ns_nop 4\ns_cbranch_vccnz {l}")
    e.label(l + "_r")
    slow.append((l, 7))
    def cpchk():
        l = e.newlabel("CP")
        e(f"v_readfirstlane_b32 s82, v121\ns_cmp_lt_u32 s82, 4\ns_cbranch_scc1 {l}")
        e.label(l + "_r")
        slow2.append((l, 8, 88, "s_cmp_ge_u32 s82, 4"))
    if not cpl8: cpchk()
    st(e, "epi")
    e("s_setprio 0")
    XR, MR, RR = 56, 72, 88
    for q in range(2):
        e.lds(f"ds_read_b128 v[{RR+4*q}:{RR+4*q+3}], v117 offset:{512+32*q}")
    e("s_and_b32 s31, s4, 1\ns_xor_b32 s30, s85, 1\ns_lshl_b32 s30, s30, 1\ns_add_u32 s31, s31, s30\ns_lshl_b32 s31, s31, 11\nv_add_u32 v10, s31, v18")
    e("s_lshl_b32 s31, s91, 7\ns_lshl_b32 s30, s4, 2\ns_add_u32 s31, s31, s30\nv_mov_b32 v16, s31\nv_mov_b32 v17, s84")
    e("v_and_b32 v14, 7, v0\nv_min_u32 v14, 6, v14\nv_lshlrev_b32 v14, 7, v14\nv_bfe_u32 v15, v0, 3, 1\nv_lshl_add_u32 v14, v15, 2, v14\ns_and_b32 s30, s30, 8\nv_add_u32 v14, s30, v14")
    e(f"s_add_u32 s31, s89, {SC}\nv_add_u32 v4, s31, v18\nv_xor_b32 v5, 0x2000, v4\nv_xor_b32 v6, 8, v19\nv_xor_b32 v9, 4, v19\ns_sub_u32 s31, s79, 16384\nv_add_u32 v7, s31, v18")
    srd(e, 16, 58, 2048 * 1792)
    e.lg0()
    for r in range(8): e(f"v_mul_f32 v{RR+r}, v{RR+r}, v{RR+r}")
    e.vm0()
    e("s_mov_b64 exec, 1")
    dual(["buffer_store_dword v17, v16, s[20:23], s93 offen"], "fl")
    e("s_mov_b64 exec, -1")
    st(e, "hhflag")
    if cpl8: cpchk()
    if rb_o:
        for g in range(8): e(f"buffer_load_dwordx4 v[{192+4*g}:{195+4*g}], v18, s[20:23], s{86 + (g >> 2)} offen offset:{(g & 3)*1024} sc1")
    if not lw:
        for k in range(9, 10 if lin else 14): wd_dma(k, 2, 12)
    e("s_mov_b64 exec, 0xffff")
    def body():
        e("buffer_load_dword v17, v14, s[20:23], s93 offen sc1\ns_waitcnt vmcnt(0)\nv_cmp_eq_u32 vcc, s84, v17\ns_nop 1")
    spin(e, body, "s_cmp_eq_u64 vcc, exec", sleep=psl)
    e("s_mov_b64 exec, -1")
    e.vm = []
    if not lw: e.lds("ds_write_b32 v19, v126 offset:112")
    st(e, "hhseen")
    NT = 56
    def areg(t):
        if NA == 28: return 56 + 4*(t % 28) if t % 28 < 12 else 192 + 4*(t % 28 - 12)
        return 192 + 4*(t % NA) if t % NA < 16 else MR + 4*(t % NA - 16)
    def a_issue(t):
        sub = t & 3
        if sub == 0 and t > 0:
            e(f"s_add_u32 s90, s90, 8192\ns_cmp_ge_u32 s90, s92\ns_cselect_b32 s82, {7*8192}, 0\ns_sub_u32 s90, s90, s82")
            if t == 28: e("v_xor_b32 v10, 0x1000, v10")
            e(f"s_add_u32 s71, s90, {A_W}")
        r = areg(t)
        e.vmem(f"buffer_load_dwordx4 v[{r}:{r+3}], v10, s[20:23], s{71 if sub >> 1 else 90} offen offset:{(sub & 1)*1024} sc1", ("A", t))
    def breg(D): return 24 + 16*(D & 1)
    def b_list(D):
        u = (D % 14) >> 1; pw = D & 1
        out = []
        for cb in range(4):
            for u2 in range(2):
                kind, off = wdslot[2*u + u2][0]
                if kind == "r": bs = 112; off += 8192 + pw * 2048
                else: bs = 108; off += pw * 4096
                r = breg(D) + 4*cb + 2*u2
                out.append((f"ds_read_b64_tr_b16 v[{r}:{r+1}], v{bs+cb} offset:{off}", ("B", D, cb >> 1)))
        return out
    ai = [0]
    def a_next(lim):
        if ai[0] < min(lim, NT): a_issue(ai[0]); ai[0] += 1
    for t in range(min(na0, NA - 1)): a_next(NT)
    for s, tg in b_list(0): e.lds(s, tg)
    FO, OW = 128, 160
    side = []
    PK = XR if NA < 28 else FO + 16
    def S_(f): side.append(f)
    def both_wait(t):
        nv = e.vm_need({("A", t)})
        idx = [i for i, x in enumerate(e.lg) if x == ("B", t >> 1, 0)]
        parts = []
        if nv is not None:
            parts.append(f"vmcnt({nv})"); e.vm = e.vm[len(e.vm) - nv:] if nv else []
        if idx:
            nl = min(15, len(e.lg) - 1 - idx[-1]); parts.append(f"lgkmcnt({nl})"); e.lg = e.lg[len(e.lg) - nl:] if nl else []
        if parts: e("s_waitcnt " + " ".join(parts))
    RV = 224 if NA == 16 else 192
    YV = FO
    def recv_one(g, dst, sb): e(f"buffer_load_dwordx4 v[{dst+4*g}:{dst+4*g+3}], v18, s[20:23], s{sb} offen offset:{g*1024} sc1")
    e(f"s_sub_u32 s42, s40, {896*pxs}")
    nop = lambda: None
    for t in range(NT):
        acc = FO if t < 28 else OW
        def mkchk(tag, pfx, cond_bad, addr, off, cond_ok):
            def chk():
                e.lg_wait({tag})
                l = e.newlabel(pfx)
                e(f"v_readfirstlane_b32 s82, v121\n{cond_bad}\ns_cbranch_scc1 {l}")
                e.label(l + "_r")
                slow2.append((l, addr, off, cond_ok))
            return chk
        if lw and t == lw + 1: S_(lambda: (e.vm_wait({("wd", 13)}), e.lds("ds_write_b32 v19, v126 offset:112")))
        if t == 10: S_(lambda: e.lds("ds_read_b32 v121, v9 offset:112", "wl"))
        if t == 12: S_(mkchk("wl", "WL", "s_cmp_eq_u32 s82, 0", 9, 112, "s_cmp_lg_u32 s82, 0"))
        if t == 24: S_(lambda: e.lds("ds_read_b32 v121, v8 offset:84", "yx"))
        if t == 27:
            def chk():
                e.lg_wait({"yx"})
                l = e.newlabel("YX")
                e(f"v_readfirstlane_b32 s82, v121\ns_cmp_lt_u32 s82, 4\ns_cbranch_scc1 {l}")
                e.label(l + "_r")
                slow2.append((l, 8, 84, "s_cmp_ge_u32 s82, 4"))
            S_(chk)
        if t == t0:
            for _ in range(e0): S_(nop)
            for g in range(0, 4, 2):
                def wr(g=g):
                    for gg in (g, g + 1): e.lds(f"ds_write_b128 v4, v[{FO+16+4*gg}:{FO+19+4*gg}] offset:{CH + gg*1024}")
                    if g == 2: e.lds("ds_write_b32 v19, v126 offset:48")
                S_(wr)
        if t == t0 + e1:
            def rdx():
                e.lds("ds_read_b32 v121, v6 offset:48", "ex")
                for g in range(4): e.lds(f"ds_read_b128 v[{FO+16+4*g}:{FO+19+4*g}], v5 offset:{CH + g*1024}", "ex")
            S_(rdx)
        if t == t0 + e2:
            if e2 == e1: S_(nop); S_(nop)
            def chk2():
                e.lg_wait({"ex"})
                l = e.newlabel("PX")
                e(f"v_readfirstlane_b32 s82, v121\ns_cmp_eq_u32 s82, 0\ns_cbranch_scc1 {l}")
                e.label(l + "_r")
                slow3.append(l)
                e.lds("ds_write_b32 v19, v126 offset:64")
            S_(chk2)
            for g in range(4):
                S_(lambda g=g: [e(f"v_add_f32 v{FO+r}, v{FO+r}, v{FO+16+r}") for r in range(4*g, 4*g + 4)])
                if g >= 1:
                    def snd(q=g-1):
                        for j in range(3):
                            p = 3*q + j
                            e(f"v_cvt_pk_bf16_f32 v{PK+4*q+j}, v{FO+2*p}, v{FO+2*p+1}" if p < 8 else f"v_mov_b32 v{PK+4*q+j}, s84")
                        e(f"v_mov_b32 v{PK+4*q+3}, s84")
                        stores([f"buffer_store_dwordx4 v[{PK+4*q}:{PK+4*q+3}], v18, s[20:23], s41 offen offset:{q*1024}"], "px")
                    S_(snd)
                for _ in range(gap): S_(nop)
        if t == 40:
            S_(lambda: e.lds("ds_read_b32 v121, v19 offset:128", "yd"))
            S_(mkchk("yd", "YD", "s_cmp_eq_u32 s82, 0", 19, 128, "s_cmp_lg_u32 s82, 0"))
            S_(lambda: [e.lds(f"ds_read_b128 v[{MR+4*g}:{MR+3+4*g}], v4 offset:{g*1024}", "sx") for g in range(4)])
            S_(lambda: [e.lds(f"ds_read_b128 v[{104+4*g if g == 0 else 12}:{107+4*g if g == 0 else 15}], v7 offset:{g*1024}", "sx") for g in range(2)])
            S_(lambda: e.lds("ds_read_b32 v121, v6 offset:64", "sx"))
            S_(nop if NA < 28 else (lambda: [e.lds(f"ds_read_b128 v[{RR+4*q}:{RR+4*q+3}], v117 offset:{512+16*q}", "sx") for q in range(4)]))
            for g in range(4):
                def ux(g=g):
                    if g == 0: e.lg_wait({"sx"})
                    for r in (2*g, 2*g + 1):
                        src = 104 + r if r < 4 else 12 + r - 4
                        e(f"v_lshlrev_b32 v{XR+2*r}, 16, v{src}\nv_and_b32 v{XR+2*r+1}, 0xffff0000, v{src}")
                S_(ux)
            if NA == 28:
                for g in range(4): S_(lambda g=g: [e(f"v_mul_f32 v{RR+r}, v{RR+r}, v{RR+r}") for r in range(4*g, 4*g + 4)])
        if t == ty: S_(lambda: [(recv_one(gg, YV, 42), e.vm.append("ry")) for gg in range(3)])
        if t == tr:
            S_(lambda: [(recv_one(gg, RV, 40), e.vm.append("rv")) for gg in range(3)])
        both_wait(t)
        D, th = t >> 1, t & 1
        bl = b_list(D + 1) if (th == 0 and D + 1 < 28) else []
        for cb in range(4):
            if th == 0 and cb == 2: e.lg_wait({("B", D, 1)})
            e(mf16(acc + 8*cb + 4*th, areg(t), breg(D) + 4*cb, D % 14 == 0))
            for s, tg in bl[2*cb:2*cb + 2]: e.lds(s, tg)
            if th == 1:
                if cb in (0, 2): a_next(t + dep - 1 + (cb >> 1))
                if side: side.pop(0)()
            elif not bl and side: side.pop(0)()
        if t == 27: st(e, "ofor")
        if fine > 1 and t in (0, 6, 13, 20, 34, 39, 44, 50): st(e, f"t{t}")
    for f in side: f()
    def recv_check(dst):
        e(f"v_min3_u32 v1, s84, v{dst+3}, v{dst+7}\nv_max3_u32 v2, s84, v{dst+3}, v{dst+7}\nv_min_u32 v1, v1, v{dst+11}\nv_max_u32 v2, v2, v{dst+11}")
        e("v_cmp_eq_u32 vcc, v1, v2\ns_nop 1")
    def recv_finish(dst, sb, tag):
        l = e.newlabel("RV")
        e.vm_wait({tag})
        recv_check(dst)
        e(f"s_cmp_eq_u64 vcc, -1\ns_cbranch_scc1 {l}")
        def body():
            for g in range(3): recv_one(g, dst, sb)
            e("s_waitcnt vmcnt(0)")
            recv_check(dst)
        spin(e, body, "s_cmp_eq_u64 vcc, -1", sleep=1)
        e.label(l)
        for p in range(8): e(f"v_lshlrev_b32 v{dst+16+2*p}, 16, v{dst+4*(p//3)+p%3}\nv_and_b32 v{dst+17+2*p}, 0xffff0000, v{dst+4*(p//3)+p%3}")
    e.lg0()
    st(e, "oloop")
    l = e.newlabel("RX")
    e(f"v_readfirstlane_b32 s82, v121\ns_cmp_eq_u32 s82, 0\ns_cbranch_scc1 {l}")
    e.label(l + "_r")
    slow2.append((l, 6, 64, "s_cmp_lg_u32 s82, 0"))
    e("s_mov_b32 s28, 0xbfb8aa3b\ns_mov_b32 s29, 0xbfb8aa3b\ns_nop 5")
    for g in range(4): e(f"ds_write_b128 v4, v[{OW+16+4*g}:{OW+19+4*g}] offset:{CH + g*1024}")
    pk = lambda op, d, a, b, x="": e(f"v_pk_{op}_f32 v[{d}:{d+1}], v[{a}:{a+1}], {b} {x}".rstrip())
    R2 = range(0, 16, 2)
    O, PB, EX = OW, OW + 16, 24
    recv_finish(YV, 42, "ry")
    for r in R2: pk("add", MR+r, MR+r, f"v[{YV+16+r}:{YV+17+r}]")
    e.lg0()
    e("s_barrier")
    st(e, "fbar")
    for g in range(4): e(f"ds_read_b128 v[{EX+4*g}:{EX+3+4*g}], v5 offset:{CH + g*1024}")
    recv_finish(RV, 40, "rv")
    st(e, "orecv")
    align()
    for r in R2: pk("add", O+r, O+r, f"v[{RV+16+r}:{RV+17+r}]")
    e("s_waitcnt lgkmcnt(0)")
    align()
    for r in R2: pk("add", O+r, O+r, f"v[{EX+r}:{EX+r+1}]")
    for gi in range(fgrp):
        G1_ = [8*cb + 4*gi + r for r2 in (0, 2) for cb in range(2) for r in (r2, r2 + 1)] if fgrp == 2 else list(range(16)); G2_ = G1_[::2]
        for r in G2_: pk("mul", O+r, O+r, f"v[{RR+(r&7)}:{RR+(r&7)+1}]")
        for r in G2_: pk("mul", PB+r, O+r, "s[28:29]")
        for r in G1_: e(f"v_exp_f32 v{PB+r}, v{PB+r}")
        for r in G2_: pk("mul", O+r, O+r, f"v[{MR+r}:{MR+r+1}]")
        for r in G2_: pk("add", PB+r, PB+r, "1.0", "op_sel_hi:[1,0]")
        for r in G1_: e(f"v_rcp_f32 v{PB+r}, v{PB+r}")
        for r in G2_:
            e(f"v_pk_fma_f32 v[{PB+r}:{PB+r+1}], v[{PB+r}:{PB+r+1}], v[{O+r}:{O+r+1}], v[{XR+r}:{XR+r+1}]")
            for rr in (r, r + 1):
                row = 8*((rr >> 2) & 1) + (rr & 3)
                so = "0" if row < 2 else f"s{32 + (row >> 1)}"
                off = (row & 1) * 1792 + (rr >> 3) * 64
                e(f"buffer_store_dword v{PB+rr}, v116, s[16:19], {so} offen" + (f" offset:{off}" if off else "") + " " + outfl)
    e("s_cmp_lg_u32 s5, 15\ns_cbranch_scc1 K_nobump\ns_or_b32 s28, s6, s4\ns_cmp_lg_u32 s28, 0\ns_cbranch_scc1 K_nobump")
    e(f"v_mov_b32 v8, 0\nv_mov_b32 v9, s84\ns_mov_b32 s28, {WS_EP}\ns_mov_b64 exec, 1")
    e("buffer_store_dword v9, v8, s[20:23], s28 offen sc1")
    e("s_mov_b64 exec, -1")
    e.label("K_nobump")
    if pad:
        if padwg >= 0: e(f"s_cmp_lg_u32 s2, {padwg}\ns_cbranch_scc1 K_END")
        e.label("K_pad")
        e(f"s_memrealtime s[28:29]\ns_waitcnt lgkmcnt(0)\ns_sub_u32 s28, s28, s{100 if PADAT else 96}\ns_cmp_lt_u32 s28, {pad}\ns_cbranch_scc1 K_pad")
    st.dump(e); info["F"] = st.names
    e("s_endpgm")
    for l in slow3:
        e.label(l)
        lds_wait(6, 48, "s_cmp_lg_u32 s82, 0", 121, sleep=0)
        for g in range(4): e(f"ds_read_b128 v[{FO+16+4*g}:{FO+19+4*g}], v5 offset:{CH + g*1024}")
        e(f"s_waitcnt lgkmcnt(0)\ns_branch {l}_r")
    for l, addr, off, cond in slow2:
        e.label(l)
        lds_wait(addr, off, cond, 121, sleep=0)
        e(f"s_branch {l}_r")
    e.label("K_csslow")
    spin(e, csbody, "s_cmp_lg_u32 s97, 0")
    e("s_branch K_csok")
    for l, need in slow:
        e.label(l)
        def body():
            e(f"ds_read_b32 v16, v17\ns_waitcnt lgkmcnt(0)\nv_cmp_gt_u32 vcc, {need}, v16\ns_nop 1")
        spin(e, body, "s_cmp_eq_u64 vcc, 0", sleep=0)
        e(f"s_branch {l}_r")

    e.vm = []; e.lg = []
    e.label("K_S")
    st = Stamper(stamps, 143)
    e(f"s_setprio {sprio}")
    common2(); common3()
    e("v_and_b32 v1, 19, v0\nv_bfe_u32 v2, v0, 2, 1\nv_lshl_add_u32 v1, v2, 3, v1\nv_bfe_u32 v2, v0, 3, 1\nv_lshl_add_u32 v1, v2, 2, v1\ns_lshl_b32 s30, s6, 5\nv_add_u32 v1, s30, v1\nv_lshlrev_b32 v1, 1, v1\nv_and_b32 v1, -4, v1")
    e("s_lshl_b32 s30, s91, 7\ns_and_b32 s31, s4, 2\ns_lshl_b32 s31, s31, 5\ns_add_u32 s30, s30, s31\nv_and_b32 v7, 14, v0\nv_lshl_add_u32 v7, v7, 1, s30\nv_mov_b32 v247, 0")
    e(f"v_add_u32 v23, s89, v20\nv_add_u32 v24, {RING}, v20")
    e("s_lshl_b32 s31, s4, 1\nv_xor_b32 v6, s31, v22")
    for jj in range(4):
        e(f"v_xor_b32 v5, {2*jj}, v6\nv_lshl_add_u32 v{10+jj}, v5, 4, v23\nv_add_u32 v{14+jj}, 0x10000, v{10+jj}\nv_lshl_add_u32 v{240+jj}, v5, 4, v24")
    e("s_mov_b32 s94, 0x3f803f80\nv_mov_b32 v34, 0\nv_mov_b32 v35, 0\nv_mov_b32 v36, 0\nv_mov_b32 v37, 0")
    e(f"s_mov_b32 s22, {WS_LIM}\ns_mov_b32 s23, 0x20000\ns_mov_b32 s82, {WS_EP}")
    e(f"v_mov_b32 v18, {FLG}\nv_mov_b32 v19, 1\ns_lshl_b32 s30, s4, 2\ns_add_u32 s30, s30, {FLG}\nv_mov_b32 v20, s30")
    e("s_waitcnt lgkmcnt(0)")
    e("s_mov_b32 s20, s62\ns_and_b32 s21, s63, 0xffff\nv_mov_b32 v138, v1\nv_mov_b32 v139, v7")
    def par_loads():
        e.vmem("global_load_dword v244, v138, s[34:35]", "par")
        e.vmem("global_load_dword v245, v138, s[36:37]", "par")
        e.vmem("global_load_dword v246, v138, s[46:47]", "par")
        e.vmem("global_load_dword v142, v139, s[48:49]", "par")
        e.vmem("global_load_dword v139, v139, s[48:49] offset:32", "par")
        e(f"s_mov_b32 s82, {WS_EP}\ns_mov_b64 exec, 1")
        e.vmem("buffer_load_dword v247, v247, s[20:23], s82 offen sc1", "par")
        e("s_mov_b64 exec, -1")
    if not late: par_loads()
    if tlb:
        e("s_cmp_lg_u32 s4, 0\ns_cbranch_scc1 K_notlb\nv_mov_b32 v140, 0\ns_mov_b64 exec, 1")
        for p in (52, 54, 56, 42, 44): e(f"global_load_dword v141, v140, s[{p}:{p+1}]")
        if tlb > 1:
            e(f"s_mul_i32 s30, s5, {128*1792}\nv_mov_b32 v251, s30\nglobal_load_dword v141, v251, s[58:59]")
            e(f"s_mul_i32 s30, s5, {2*A_W}\nbuffer_load_dword v141, v140, s[20:23], s30 offen\ns_mul_i32 s30, s5, {4*A_W}\ns_add_u32 s30, s30, {WS_AO}\nbuffer_load_dword v141, v140, s[20:23], s30 offen")
            e(f"s_mul_i32 s30, s5, {14*32768}\ns_add_u32 s30, s30, {WS_PX}\nbuffer_load_dword v141, v140, s[20:23], s30 offen")
        e("s_mov_b64 exec, -1")
        e.label("K_notlb")
    if direct:
        rho()
        e("s_sub_u32 s30, s91, s7\ns_cselect_b32 s10, 7, 0\ns_add_u32 s30, s30, s10")
    else:
        rot_off(30)
        e("s_sub_u32 s30, 7, s30\ns_cmp_ge_u32 s30, 7\ns_cselect_b32 s30, 0, s30")
    e(f"s_lshl_b32 s30, s30, 14\ns_lshl_b32 s31, s85, 13\ns_add_u32 s30, s30, s31\ns_and_b32 s31, s4, 1\ns_lshl_b32 s31, s31, 12\ns_add_u32 s30, s30, s31")
    e("v_lshrrev_b32 v4, 2, v0\nv_lshrrev_b32 v5, 3, v0\nv_lshlrev_b32 v4, 7, v4\nv_bfe_u32 v7, v0, 1, 1")
    e("s_and_b32 s31, s4, 2\ns_lshl_b32 s31, s31, 1\nv_add_u32 v7, s31, v7\nv_xor_b32 v7, v7, v5\nv_lshl_add_u32 v4, v7, 4, v4\nv_and_b32 v7, 1, v0\nv_lshl_add_u32 v4, v7, 3, v4\nv_add_u32 v254, s30, v4\nv_xor_b32 v255, 32, v254")
    e("v_lshlrev_b32 v8, 4, v7\nv_xor_b32 v8, 16, v8")
    e("s_bitcmp1_b32 s4, 0\ns_cselect_b64 s[64:65], -1, 0")
    e("s_bitcmp1_b32 s4, 1\ns_cselect_b64 s[66:67], -1, 0\ns_mov_b32 s68, 0\ns_mov_b32 s69, -1")
    e("s_lshr_b32 s87, s4, 1\ns_lshl_b32 s73, s85, 6")
    K = []
    def k_(s): K.extend(s.split("\n"))
    for r in (244, 245, 246, 142, 139): k_(f"v_lshlrev_b32 v{r}, v8, v{r}\nv_and_b32 v{r}, 0xffff0000, v{r}")
    k_(f"v_mul_f32 v246, {LOG2E}, v246\nv_exp_f32 v246, v246\ns_nop 0\nv_cvt_pk_bf16_f32 v246, v246, v246\nv_and_b32 v246, 0xffff0000, v246")
    k_(f"v_mul_f32 v5, v246, v244\nv_mul_f32 v6, v246, v245\nv_mul_f32 v5, {LOG2E}, v5\nv_exp_f32 v5, v5")
    k_("v_mul_f32 v6, 0.15915494, v6\nv_rndne_f32 v9, v6\nv_sub_f32 v6, v6, v9\nv_cos_f32 v22, v6\nv_sin_f32 v23, v6\ns_nop 0")
    k_("v_mul_f32 v22, v22, v5\nv_mul_f32 v23, v23, v5")
    k_("v_mul_f32 v5, v244, v244\nv_fma_f32 v5, v245, v245, v5\nv_rcp_f32 v5, v5\nv_add_f32 v6, -1.0, v22")
    k_("v_mul_f32 v30, v6, v244\nv_fma_f32 v30, v23, v245, v30\nv_mul_f32 v31, v23, v244\nv_fma_f32 v31, -v6, v245, v31")
    k_("v_add_f32 v5, v5, v5\nv_mul_f32 v30, v30, v5\nv_mul_f32 v31, v31, v5\nv_xor_b32 v33, 0x80000000, v23")
    def csq(d, s): k_(f"v_mul_f32 v9, v{s}, v{s+1}\nv_mul_f32 v{d}, v{s}, v{s}\nv_fma_f32 v{d}, -v{s+1}, v{s+1}, v{d}\nv_add_f32 v{d+1}, v9, v9")
    def pwmul(mask):
        k_(f"v_cndmask_b32 v5, 1.0, v26, {mask}\nv_cndmask_b32 v6, 0, v27, {mask}")
        k_("v_mul_f32 v9, v28, v6\nv_mul_f32 v28, v28, v5\nv_fma_f32 v28, -v29, v6, v28\nv_fma_f32 v29, v29, v5, v9")
    csq(24, 22); csq(24, 24); csq(24, 24); csq(24, 24)
    k_("v_cndmask_b32 v28, 1.0, v24, s[68:69]\nv_cndmask_b32 v29, 0, v25, s[68:69]")
    csq(26, 24); pwmul("s[64:65]"); csq(26, 26); pwmul("s[66:67]"); csq(26, 26); csq(136, 26)
    QR, QI = 104, 120
    for j in range(16):
        pr, pi = (30, 31) if j == 0 else (QR + j - 1, QI + j - 1)
        k_(f"v_mul_f32 v{QR+j}, v22, v{pr}\nv_mul_f32 v{QI+j}, v22, v{pi}\nv_fmac_f32 v{QR+j}, v33, v{pi}\nv_fmac_f32 v{QI+j}, v23, v{pr}")
    k_("v_xor_b32 v31, 0x80000000, v31\nv_xor_b32 v32, 0x80000000, v30")
    UR, UI = 40, 56
    SF = [144, 192]
    def sreads(sg):
        fs = SF[sg & 1]; out = []
        for j in range(4):
            xb = (10 + j) if sg < 4 else (14 + j)
            out += [f"ds_read_b128 v[{fs+12*j}:{fs+12*j+3}], v{xb} offset:{(sg & 3)*CH}",
                    f"ds_read_b128 v[{fs+12*j+4}:{fs+12*j+7}], v{240+j} offset:{(sg % NR)*8192}",
                    f"ds_read_b128 v[{fs+12*j+8}:{fs+12*j+11}], v{240+j} offset:{(sg % NR)*8192+4096}"]
        return out
    def dots(fs):
        for j in range(4):
            for q in range(4): e(f"v_dot2c_f32_bf16 v37, v{fs+12*j+q}, v{fs+12*j+q}\nv_dot2c_f32_bf16 v36, s94, v{fs+12*j+q}")
        for q in range(4): e(f"v_dot2c_f32_bf16 v34, s94, v{fs+4+q}\nv_dot2c_f32_bf16 v35, s94, v{fs+8+q}")
    Z = []
    def z_(s): Z.extend(s.split("\n"))
    z_("v_mov_b32 v1, v36\nv_mov_b32 v2, v37\ns_nop 1")
    z_("v_permlane32_swap_b32 v36, v1\nv_permlane32_swap_b32 v37, v2\nv_permlane32_swap_b32 v34, v35\ns_nop 1")
    z_("v_add_f32 v34, v34, v35\nv_add_f32 v36, v36, v1\nv_add_f32 v37, v37, v2\nds_write_b32 v248, v34")
    z_("v_mul_f32 v36, 0x3b124925, v36\nv_mul_f32 v37, 0x3b124925, v37")
    z_("v_fma_f32 v37, -v36, v36, v37\nv_max_f32 v37, 0, v37\nv_cvt_pk_bf16_f32 v1, v37, v36")
    z_("v_and_b32 v36, 0xffff0000, v1\nv_lshlrev_b32 v37, 16, v1\nv_add_f32 v37, 0x3727c5ac, v37")
    z_("v_cvt_pk_bf16_f32 v37, v37, v37\nv_and_b32 v37, 0xffff0000, v37\nv_sqrt_f32 v37, v37\ns_nop 0")
    z_("v_cvt_pk_bf16_f32 v37, v37, v37\nv_and_b32 v37, 0xffff0000, v37\nv_rcp_f32 v37, v37\ns_nop 0")
    z_("v_cndmask_b32 v36, v36, v37, s[68:69]\nds_write_b32 v249, v36")
    mark0 = len(e.l)
    SEL = 72
    tau_of_lane(e, 1, 2)
    e("v_lshlrev_b32 v2, 4, v21\nv_sub_u32 v1, v1, v2\nv_and_b32 v2, 1, v1\nv_lshlrev_b32 v2, 4, v2\nv_mov_b32 v4, 0x3f80\nv_lshlrev_b32 v2, v2, v4\nv_ashrrev_i32 v1, 1, v1")
    for q in range(0, 8, 2):
        e(f"v_cmp_eq_u32 vcc, {q}, v1\nv_cmp_eq_u32 s[70:71], {q+1}, v1\ns_nop 0\nv_cndmask_b32 v{SEL+q}, 0, v2, vcc\nv_cndmask_b32 v{SEL+q+1}, 0, v2, s[70:71]")
    e(f"s_lshl_b32 s72, s4, 2\ns_add_u32 s72, s72, {CSB}\nv_lshl_add_u32 v248, v0, 4, s72")
    tau_of_lane(e, 249, 2)
    e(f"s_lshl_b32 s72, s4, 7\ns_add_u32 s72, s72, {STAT}\nv_lshl_add_u32 v249, v249, 2, s72\nv_lshl_add_u32 v249, v21, 9, v249\nv_lshl_add_u32 v3, v21, 6, s72")
    e(f"v_and_b32 v250, 31, v0\nv_lshlrev_b32 v250, 4, v250\nv_add_u32 v250, {CSB}, v250")
    K0 = []
    if strim:
        K0 = [x.strip() for x in e.l[mark0:]]; del e.l[mark0:]
        na = len(K0) - 17
        K = K[:60] + K0[na:] + K[60:]; K0 = K0[:na]
    st(e, "b0")
    e("s_barrier")
    for x in sreads(0): e(x)
    if late: par_loads()
    ks = 2 if late else 1
    for sg in range(7):
        fs = SF[sg & 1]
        if sg == ks:
            e.vm_wait({"par"})
            e("v_readfirstlane_b32 s84, v247\ns_add_u32 s84, s84, 1\ns_max_u32 s84, s84, 1")
            e(f"s_getreg_b32 s74, hwreg(HW_REG_XCC_ID, 0, 4)\ns_lshl_b32 s78, s5, 1\ns_add_u32 s78, s78, s85\ns_lshl_b32 s78, s78, 10\ns_add_u32 s78, s78, {WS_FH}\ns_add_u32 s75, s78, {WS_XID - WS_FH}")
            e("s_cmp_lg_u32 s4, 0\ns_cbranch_scc1 K_noxid")
            e("s_lshl_b32 s31, s91, 7\nv_mov_b32 v251, s31\nv_mov_b32 v252, s74\nv_mov_b32 v253, s84\ns_mov_b64 exec, 1")
            e("buffer_store_dwordx2 v[252:253], v251, s[20:23], s75 offen sc1\ns_mov_b64 exec, -1")
            e.label("K_noxid")
        e.lg0()
        if sg == 6:
            for j in range(4): e(f"ds_read_b64_tr_b16 v[{208+2*j}:{209+2*j}], v{254 + (j >> 1)} offset:{(j & 1)*2048}")
            dots(fs)
            e.lg0()
        st(e, f"b{sg+1}")
        e("s_barrier")
        rd = sreads(sg + 1) if sg < 6 else []
        ordr = [(j, x) for j in range(4) for x in range(2)] if not sch else [(j, x ^ (sg & 1)) for x in range(2) for j in range(4)]
        for j, x_ in ordr:
            for acc, o in (((UR, 4), (UI, 8))[x_],):
                e(mfma(acc, fs+12*j, fs+12*j+o, sg == 0 and j == 0))
                for x in rd[:2]: e(x)
                nk = kint if rd else 4
                rd = rd[2:]
                for _ in range(nk):
                    if sg == 6:
                        if Z: e(Z.pop(0))
                    elif K0: e(K0.pop(0))
                    elif sg >= ks and K: e(K.pop(0))
        if sg < 6: dots(fs)
    for x in Z: e(x)
    gen = [0]
    def ssync(extra=None):
        gen[0] += 1
        e("s_mov_b64 exec, 1\nds_add_u32 v18, v19 offset:80\ns_mov_b64 exec, -1")
        def body():
            e("ds_read_b32 v1, v18 offset:80")
            if extra: extra()
            e("s_waitcnt lgkmcnt(0)\nv_readfirstlane_b32 s82, v1")
        spin(e, body, f"s_cmp_ge_u32 s82, {4*gen[0]}", sleep=ssl)
        e.lg = []
    def wait_prog(n):
        def body():
            e("ds_read_b128 v[4:7], v18\ns_waitcnt lgkmcnt(0)\nv_min_u32 v4, v4, v5\nv_min3_u32 v4, v4, v6, v7\ns_nop 0\nv_readfirstlane_b32 s82, v4")
        spin(e, body, f"s_cmp_ge_u32 s82, {n}", sleep=wsl)
        e.lg = []
    M, R = 144, 160
    e(f"s_setprio {sprio2}")
    if sidle:
        def body():
            e("s_sleep 8\nds_read_b128 v[4:7], v18\ns_waitcnt lgkmcnt(0)\nv_min_u32 v4, v4, v5\nv_min3_u32 v4, v4, v6, v7\ns_nop 0\nv_readfirstlane_b32 s82, v4")
        spin(e, body, "s_cmp_ge_u32 s82, 7", sleep=1)
    TMP = 192
    for q in range(4): e(f"ds_read_b128 v[{M+4*q}:{M+4*q+3}], v3 offset:{16*q}")
    for q in range(4): e(f"ds_read_b128 v[{R+4*q}:{R+4*q+3}], v3 offset:{512+16*q}")
    e(f"s_lshl_b32 s30, s4, 9\ns_add_u32 s30, s30, {SUB}\nv_lshl_add_u32 v2, v0, 3, s30\nv_add_u32 v3, {7*256}, v2")
    ssync(lambda: e(f"ds_read_b128 v[{TMP}:{TMP+3}], v250\nds_read_b128 v[{TMP+4}:{TMP+7}], v250 offset:512"))
    st(e, "ss1")
    t = TMP
    e(f"v_add_f32 v{t}, v{t}, v{t+1}\nv_add_f32 v{t+2}, v{t+2}, v{t+3}\nv_add_f32 v{t+4}, v{t+4}, v{t+5}\nv_add_f32 v{t+6}, v{t+6}, v{t+7}\nv_add_f32 v34, -v{t}, -v{t+2}\nv_add_f32 v35, -v{t+4}, -v{t+6}")
    for j in range(16): e(f"v_fmac_f32 v{UR+j}, v34, v{M+j}\nv_fmac_f32 v{UI+j}, v35, v{M+j}")
    for j in range(16): e(f"v_mul_f32 v{UR+j}, v{UR+j}, v{R+j}\nv_mul_f32 v{UI+j}, v{UI+j}, v{R+j}")
    st(e, "fold")
    for j in range(1, 16):
        e(f"v_fmac_f32 v{UR+j}, v22, v{UR+j-1}\nv_fmac_f32 v{UI+j}, v22, v{UI+j-1}\nv_fmac_f32 v{UR+j}, v33, v{UI+j-1}\nv_fmac_f32 v{UI+j}, v23, v{UR+j-1}")
    st(e, "scan")
    e(f"ds_write2_b32 v3, v{UR+15}, v{UI+15} offset1:1")
    def step(dr, di, hr, hi, ur, ui, lr, li):
        e(f"v_fma_f32 v{dr}, v{lr}, v{hr}, v{ur}\nv_fma_f32 v{di}, v{lr}, v{hi}, v{ui}")
        e(f"v_fma_f32 v{dr}, -v{li}, v{hi}, v{dr}\nv_fma_f32 v{di}, v{li}, v{hr}, v{di}")
    def rdsub():
        for d in range(7): e(f"ds_read_b64 v[{TMP+2*d}:{TMP+1+2*d}], v2 offset:{d*256}")
    ssync(rdsub)
    st(e, "ss")
    for d in range(1, 7):
        dd = (38, 39) if d == 6 else (TMP + 2*d, TMP + 1 + 2*d)
        step(dd[0], dd[1], TMP - 2 + 2*d, TMP - 1 + 2*d, TMP + 2*d, TMP + 1 + 2*d, 24, 25)
    e("s_cmp_lg_u32 s4, 3\ns_cbranch_scc1 K_nopub")
    step(TMP, TMP + 2, 38, 39, UR + 15, UI + 15, 24, 25)
    e(f"v_mov_b32 v{TMP+1}, s84\nv_mov_b32 v{TMP+3}, s84")
    e(f"s_lshl_b32 s30, s6, 4\ns_add_u32 s30, s30, s5\ns_lshl_b32 s30, s30, 9\ns_add_u32 s30, s30, {WS_AGG - 512}")
    e("v_lshlrev_b32 v1, 4, v0\ns_mov_b32 exec_lo, 0")
    e(f"buffer_store_dwordx4 v[{TMP}:{TMP+3}], v1, s[20:23], s30 offen sc1")
    e("s_mov_b32 exec_lo, -1")
    e.label("K_nopub")
    st(e, "pub")
    e(f"s_mul_i32 s76, s5, {2*A_W}\ns_lshl_b32 s30, s6, 13\ns_add_u32 s76, s76, s30\ns_lshl_b32 s30, s4, 10\ns_add_u32 s76, s76, s30\ns_add_u32 s76, s76, {WS_AY}\ns_add_u32 s77, s76, {A_W}")
    if bulk & 2:
        e(f"v_and_b32 v1, 7, v0\nv_lshlrev_b32 v1, 7, v1\nv_bfe_u32 v2, v0, 3, 1\nv_lshl_add_u32 v1, v2, 12, v1\nv_bfe_u32 v2, v0, 4, 1\nv_mul_u32_u24 v2, {A_W}, v2\nv_add_u32 v1, v1, v2")
        e(f"s_mov_b32 exec_hi, 0\nbuffer_load_dword v252, v1, s[20:23], s76 offen {tfl}\ns_mov_b32 exec_hi, -1")
    def touch_hh():
        e(f"s_lshl_b32 s30, s5, 2\ns_add_u32 s30, s30, s4\ns_mul_i32 s30, s30, {A_W}\ns_lshl_b32 s31, s6, 13\ns_add_u32 s30, s30, s31\ns_add_u32 s30, s30, {WS_AO}\nv_lshlrev_b32 v253, 7, v0")
        e(f"buffer_load_dword v253, v253, s[20:23], s30 offen {tfl}")
    if (bulk & 1) and tpos == 0: touch_hh()
    for x in K: e(x)
    GR, GI = 144, 160
    for j in range(16):
        e(f"v_mul_f32 v{GR+j}, v30, v{UR+j}\nv_mul_f32 v{GI+j}, v32, v{UI+j}\nv_fmac_f32 v{GR+j}, v31, v{UI+j}\nv_fmac_f32 v{GI+j}, v31, v{UR+j}")
    AG = 40
    st(e, "g")
    for i in range(8):
        if i: e(f"s_cmp_ge_u32 s5, {16 - 2*i}\ns_cbranch_scc1 K_agi")
        e(f"v_mov_b32 v{AG+4*i}, 0\nv_mov_b32 v{AG+4*i+1}, s84\nv_mov_b32 v{AG+4*i+2}, 0\nv_mov_b32 v{AG+4*i+3}, s84")
    e.label("K_agi")
    e(f"s_lshl_b32 s90, s6, 11\ns_lshl_b32 s30, s4, 8\ns_add_u32 s90, s90, s30\ns_add_u32 s90, s90, {WS_CS}")
    e("v_and_b32 v34, 31, v0\nv_lshlrev_b32 v34, 3, v34\nv_lshl_add_u32 v34, v21, 10, v34")
    def cs_loads():
        e("buffer_load_dwordx2 v[8:9], v34, s[20:23], s90 offen sc1\nbuffer_load_dwordx2 v[140:141], v35, s[20:23], s75 offen sc1")
    cs_chk = "v_cmp_eq_u32 vcc, s84, v9\nv_cmp_eq_u32 s[28:29], s84, v141\ns_nop 1\ns_and_b64 vcc, vcc, s[28:29]"
    e("v_min_u32 v35, 6, v0\nv_lshlrev_b32 v35, 7, v35")
    cs_loads()
    e(f"s_lshl_b32 s30, s91, 7\ns_add_u32 s30, s30, s78\nv_mul_u32_u24 v1, {WS_FO - WS_FH}, v21")
    e("s_mov_b32 exec_lo, 1\ns_mov_b32 exec_hi, 1\nbuffer_load_dword v251, v1, s[20:23], s30 offen sc1\ns_mov_b64 exec, -1")
    e(f"s_lshl_b32 s92, s6, 4\ns_add_u32 s92, s92, s5\ns_lshl_b32 s92, s92, 9\ns_add_u32 s92, s92, {WS_AGG - 8192}\ns_add_u32 s93, s92, 4096\nv_lshlrev_b32 v3, 4, v0")
    def agg_loads(fl=' sc1'):
        for i in range(8):
            l = e.newlabel("AL")
            e(f"s_cmp_lt_u32 s5, {15 - 2*i}\ns_cbranch_scc1 {l}")
            e(f"s_cmp_ge_u32 s5, {16 - 2*i}\ns_cselect_b32 exec_lo, -1, 0")
            e(f"buffer_load_dwordx4 v[{AG+4*i}:{AG+4*i+3}], v3, s[20:23], s{92 + (i >> 2)} offen offset:{1024*(i & 3)}{fl}")
            e.label(l)
        e("s_mov_b32 exec_lo, -1")
    if not adel: agg_loads('' if ag1 else ' sc1')
    st(e, "aggi")
    if (bulk & 1) and tpos == 1: touch_hh()
    def rnd(b):
        for r in range(0, 16, 2): e(f"v_cvt_pk_bf16_f32 v{b+r}, v{b+r}, v{b+r+1}")
        for r in range(0, 16, 2): e(f"v_and_b32 v{b+r+1}, 0xffff0000, v{b+r}\nv_lshlrev_b32 v{b+r}, 16, v{b+r}")
    mark = len(e.l)
    if xne:
        XR, MR, RR = 176, 192, 200
        e(f"s_lshl_b32 s29, s85, 6\ns_and_b32 s31, s4, 1\ns_lshl_b32 s31, s31, 5\ns_add_u32 s29, s29, s31\ns_lshl_b32 s29, s29, 2\ns_add_u32 s29, s29, {STAT}\nv_lshl_add_u32 v4, v21, 4, s29\nv_and_b32 v5, 16, v0\nv_lshl_add_u32 v4, v5, 2, v4")
        for q in range(2):
            e(f"ds_read_b128 v[{MR+4*q}:{MR+4*q+3}], v4 offset:{32*q}\nds_read_b128 v[{RR+4*q}:{RR+4*q+3}], v4 offset:{512+32*q}")
        for r in range(8): e(f"v_lshlrev_b32 v{XR+2*r}, 16, v{208+r}\nv_and_b32 v{XR+2*r+1}, 0xffff0000, v{208+r}")
        e.lg0()
        for r in range(16): e(f"v_sub_f32 v{XR+r}, v{XR+r}, v{MR+(r&7)}")
        rnd(XR)
        for r in range(16): e(f"v_mul_f32 v{XR+r}, v{XR+r}, v{RR+(r&7)}")
        rnd(XR)
        for r in range(16): e(f"v_mul_f32 v{XR+r}, v{XR+r}, v{142 if r < 8 else 139}")
        for r in range(8): e(f"v_cvt_pk_bf16_f32 v{216+r}, v{XR+2*r}, v{XR+2*r+1}")
    blk = e.l[mark:]; del e.l[mark:]
    cutp = len(blk) * min(xne, 4) // 4
    e.l += blk[:cutp]
    if adel: agg_loads('' if ag1 else ' sc1')
    e.l += blk[cutp:]
    e.vm0()
    st(e, "aggl")
    e("s_mov_b32 s95, 0")
    e.label("K_horner")
    e(f"v_min3_u32 v1, s84, v{AG+1}, v{AG+3}\nv_max3_u32 v2, s84, v{AG+1}, v{AG+3}")
    for i in range(1, 8):
        b = AG + 4*i
        src = (AG, AG + 2) if i == 1 else ((4, 5) if i % 2 == 0 else (6, 7))
        dst = (4, 5) if i % 2 == 1 else (6, 7)
        step(dst[0], dst[1], src[0], src[1], b, b + 2, 136, 137)
        e(f"v_min3_u32 v1, v1, v{b+1}, v{b+3}\nv_max3_u32 v2, v2, v{b+1}, v{b+3}")
    e("v_cmp_eq_u32 vcc, v1, v2\nv_mov_b32 v6, v4\nv_mov_b32 v7, v5\ns_cmp_eq_u64 vcc, -1\ns_cbranch_scc1 K_hok")
    e(f"s_add_u32 s95, s95, 1\ns_cmp_ge_u32 s95, {SPIN_MAX}\ns_cbranch_scc1 K_hok")
    if lp:
        e(f"s_lshl_b32 s30, s6, 13\ns_add_u32 s30, s30, {WS_AGG + 508}\ns_sub_u32 s31, s5, 1\nv_min_u32 v1, s31, v0\nv_lshlrev_b32 v1, 9, v1\ns_mov_b64 exec, 0xffff")
        e.label("K_lp")
        e(f"s_sleep 2\nbuffer_load_dword v2, v1, s[20:23], s30 offen sc1\ns_add_u32 s95, s95, 1\ns_waitcnt vmcnt(0)\nv_cmp_eq_u32 vcc, s84, v2\ns_cmp_ge_u32 s95, {SPIN_MAX}\ns_cbranch_scc1 K_lpx\ns_cmp_eq_u64 vcc, exec\ns_cbranch_scc0 K_lp")
        e.label("K_lpx")
        e("s_mov_b64 exec, -1")
    else: e("s_sleep 4")
    agg_loads()
    e("s_waitcnt vmcnt(0)\ns_branch K_horner")
    e.label("K_hok")
    st(e, "look")
    e("v_permlane32_swap_b32 v4, v6\nv_permlane32_swap_b32 v5, v7\ns_nop 0")
    step(6, 7, 4, 5, 6, 7, 26, 27)
    step(38, 39, 6, 7, 38, 39, 28, 29)
    e("v_xor_b32 v36, 0x80000000, v38\nv_xor_b32 v37, 0x80000000, v39")
    for j in range(0, 16, 2):
        for x in (j, j + 1):
            e(f"v_fmac_f32 v{GR+x}, v38, v{QR+x}\nv_fmac_f32 v{GI+x}, v37, v{QR+x}\nv_fmac_f32 v{GR+x}, v37, v{QI+x}\nv_fmac_f32 v{GI+x}, v36, v{QI+x}")
        e(f"v_cvt_pk_bf16_f32 v{40+j//2}, v{GR+j}, v{GR+j+1}\nv_cvt_pk_bf16_f32 v{48+j//2}, v{GI+j}, v{GI+j+1}")
    st(e, "fin")
    e("s_setprio 3")
    e(mfma(104, 40, SEL, True)); e(mfma(120, 48, SEL, True)); e(mfma(104, 44, SEL + 4)); e(mfma(120, 52, SEL + 4))
    e(f"s_setprio {sprio2}")
    e("s_add_u32 s30, s76, 4096\ns_add_u32 s31, s77, 4096\ns_nop 7")
    for r in range(16): e(f"v_cvt_pk_bf16_f32 v{56+r}, v{104+2*r}, v{105+2*r}")
    st(e, "ht")
    def do_hst():
        e("s_add_u32 s30, s76, 4096\ns_add_u32 s31, s77, 4096")
        dual([f"buffer_store_dwordx4 v[56:59], v3, s[20:23], s76 offen", "buffer_store_dwordx4 v[60:63], v3, s[20:23], s30 offen",
                f"buffer_store_dwordx4 v[64:67], v3, s[20:23], s77 offen", "buffer_store_dwordx4 v[68:71], v3, s[20:23], s31 offen"], "h", bulk & 2)
        st(e, "hst")
    if not (bulk & 2): do_hst()
    e(cs_chk + "\ns_cmp_eq_u64 vcc, -1\ns_cbranch_scc1 K_cs_ok")
    def body():
        cs_loads()
        e("s_waitcnt vmcnt(0)\n" + cs_chk)
    spin(e, body, "s_cmp_eq_u64 vcc, -1", sleep=2)
    e.label("K_cs_ok")
    e("v_cmp_eq_u32 vcc, s74, v140")
    e(f"s_lshl_b32 s30, s4, 8\ns_add_u32 s30, s30, {CSW}\nv_lshl_add_u32 v1, v0, 2, s30")
    e("s_cmp_eq_u64 vcc, -1\ns_cselect_b32 s97, 2, 1")
    if force: e(f"s_mov_b32 s97, {force}")
    e("v_mov_b32 v2, s97\nds_write_b32 v1, v8\nds_write_b32 v20, v2 offset:16")
    if bulk & 2: do_hst()
    e("v_lshrrev_b32 v14, 4, v0\nv_and_b32 v15, 15, v0\nv_bfe_u32 v10, v0, 1, 3\nv_xor_b32 v10, v10, v14\nv_lshlrev_b32 v10, 4, v10\nv_lshl_add_u32 v10, v15, 7, v10")
    e(f"s_mul_i32 s30, s87, {CH + 8192}\ns_add_u32 s30, s30, {C0}\nv_add_u32 v10, s30, v10\nv_xor_b32 v11, 64, v10\nv_xor_b32 v12, 0x4000, v10\nv_xor_b32 v13, 0x4000, v11")
    e("s_lshl_b32 s30, s91, 7\ns_lshl_b32 s31, s4, 2\ns_add_u32 s31, s31, s30\nv_mov_b32 v4, s31\nv_mov_b32 v5, s84")
    e.vm_wait({"h"})
    e("s_mov_b64 exec, 1")
    dual(["buffer_store_dword v5, v4, s[20:23], s78 offen"], "fl")
    e("s_mov_b64 exec, -1")
    st(e, "hflag")
    if (bulk & 1) and tpos == 2: touch_hh()
    if rb_y:
        e("s_add_u32 s30, s76, 4096\ns_add_u32 s31, s77, 4096")
        for g, sr in enumerate((76, 30, 77, 31)): e(f"buffer_load_dwordx4 v[{24+4*g}:{27+4*g}], v3, s[20:23], s{sr} offen sc1")
    e(f"s_lshl_b32 s92, s5, 1\ns_add_u32 s92, s92, s87\ns_mul_i32 s92, s92, {A_W}\ns_add_u32 s92, s92, {WS_AY}\ns_lshl_b32 s30, s85, 13\ns_add_u32 s93, s92, s30\ns_add_u32 s93, s93, {3*CH}\ns_lshl_b32 s30, s85, 16\ns_add_u32 s92, s92, s30")
    e("v_and_b32 v8, 7, v0\nv_min_u32 v8, 6, v8\nv_lshlrev_b32 v8, 7, v8\nv_and_b32 v1, 8, v0\nv_add_u32 v8, v8, v1\ns_and_b32 s30, s4, 1\ns_lshl_b32 s31, s30, 2\nv_add_u32 v8, s31, v8")
    e("s_lshl_b32 s30, s30, 10\ns_lshl_b32 s31, s85, 11\ns_add_u32 s30, s30, s31\nv_lshlrev_b32 v23, 12, v21\nv_and_b32 v14, 1, v14\nv_lshl_add_u32 v23, v14, 9, v23\nv_lshl_add_u32 v23, v15, 4, v23\nv_add_u32 v23, s30, v23\nv_xor_b32 v22, 0x800, v23")
    e(f"s_mul_i32 s76, s5, 7\ns_add_u32 s76, s76, s91\ns_lshl_b32 s76, s76, 1\ns_add_u32 s76, s76, s85\ns_lshl_b32 s76, s76, 2\ns_add_u32 s76, s76, s4\ns_xor_b32 s77, s76, 4\ns_mul_i32 s77, s77, {pxs}\ns_add_u32 s77, s77, {WS_PX}")
    def creg(D): return 144 + 16 * D
    def c_list(r):
        out = []
        for D in range(4*r, min(7, 4*r + 4)):
            if D == 6: out += [f"v_xor_b32 v{j}, s73, v{j}" for j in (10, 12)]
            for cb in range(4):
                g = creg(D) + 4*cb
                out.append(f"ds_read_b128 v[{g}:{g+3}], v{10 + 2*(cb >> 1) + (D & 1)} offset:{r*2*CH + ((D >> 1) & 1)*4096 + (cb & 1)*2048}")
        return out
    if not xne:
        for r in range(8): e(f"v_mov_b32 v{56+r}, v{208+r}")
    else:
        for r in range(8): e(f"v_mov_b32 v{56+r}, v{208+r}\nv_mov_b32 v{128+r}, v{216+r}")
    st(e, "xn")
    def pull0():
        if lin:
            def body():
                e("ds_read_b128 v[4:7], v18 offset:144\ns_waitcnt lgkmcnt(0)\nv_min_u32 v4, v4, v5\nv_min3_u32 v4, v4, v6, v7\ns_nop 0\nv_readfirstlane_b32 s82, v4")
            spin(e, body, "s_cmp_lg_u32 s82, 0", sleep=wsl)
        else: wait_prog(6)
        for x in c_list(0): e(x)
        e("s_waitcnt lgkmcnt(0)\ns_mov_b64 exec, 1\nds_add_u32 v18, v19 offset:88")
        st(e, "c0")
        e("s_mov_b64 exec, -1")
    if not pf: pull0()
    e("s_mov_b64 exec, 0xffff")
    def body():
        e("buffer_load_dword v9, v8, s[20:23], s78 offen sc1\ns_waitcnt vmcnt(0)\nv_cmp_eq_u32 vcc, s84, v9\ns_nop 1")
    spin(e, body, "s_cmp_eq_u64 vcc, exec", sleep=hsl)
    e("s_mov_b64 exec, -1")
    e.vm = []
    st(e, "hseen")
    NP = 8
    ypre = min(ypre, NP - 1 if not deep else 20)
    YA = [64, 96]
    def yreg(t):
        if not deep: return 24 + 4*(t % NP)
        if t < 4: return 24 + 4*t
        if t < 12: return creg(4) + 4*(t - 4)
        if t < 16: return 40 + 4*(t - 12)
        if t < 20: return creg(6) + 4*(t - 16)
        return 24 + 4*(t - 20)
    def ymap(t):
        if not ych or t >= 24: return t >> 2, t & 3
        return 2*(t >> 3) + (t & 1), (t >> 1) & 3
    def yissue(t):
        D, qd = ymap(t)
        if ych:
            if t == 0: e("s_add_u32 s90, s92, 8192")
            elif t == 24: e("s_mov_b32 s92, s93")
            elif (t & 7) == 0: e("s_add_u32 s92, s92, 16384\ns_add_u32 s90, s90, 16384")
        elif (t & 3) == 0 and D > 0: e("s_mov_b32 s92, s93" if D == 6 else "s_add_u32 s92, s92, 8192")
        e.vmem(f"buffer_load_dwordx4 v[{yreg(t)}:{yreg(t)+3}], v{22 + (qd >> 1)}, s[20:23], s{90 if (ych and D & 1) else 92} offen offset:{(qd & 1)*256} sc1", ("A", t))
    if ypre:
        if ywait > 6: wait_prog(ywait)
        for t in range(ypre):
            yissue(t)
            if ysl2 and t >= 3: e(f"s_sleep {ysl2}")
    if pf: pull0()
    if not xne:
        XR, MR, RR = 64, 80, 88
        e(f"s_lshl_b32 s29, s85, 6\ns_and_b32 s31, s4, 1\ns_lshl_b32 s31, s31, 5\ns_add_u32 s29, s29, s31\ns_lshl_b32 s29, s29, 2\ns_add_u32 s29, s29, {STAT}\nv_lshl_add_u32 v4, v21, 4, s29\nv_and_b32 v5, 16, v0\nv_lshl_add_u32 v4, v5, 2, v4")
        for q in range(2):
            e(f"ds_read_b128 v[{MR+4*q}:{MR+4*q+3}], v4 offset:{32*q}\nds_read_b128 v[{RR+4*q}:{RR+4*q+3}], v4 offset:{512+32*q}")
        for r in range(8): e(f"v_lshlrev_b32 v{XR+2*r}, 16, v{56+r}\nv_and_b32 v{XR+2*r+1}, 0xffff0000, v{56+r}")
        e.lg0()
        for r in range(16): e(f"v_sub_f32 v{XR+r}, v{XR+r}, v{MR+(r&7)}")
        rnd(XR)
        for r in range(16): e(f"v_mul_f32 v{XR+r}, v{XR+r}, v{RR+(r&7)}")
        rnd(XR)
        for r in range(16): e(f"v_mul_f32 v{XR+r}, v{XR+r}, v{142 if r < 8 else 139}")
        for r in range(8): e(f"v_cvt_pk_bf16_f32 v{128+r}, v{XR+2*r}, v{XR+2*r+1}")
    def body():
        e("ds_read_b128 v[4:7], v18 offset:32\ns_waitcnt lgkmcnt(0)\nv_min_u32 v4, v4, v5\nv_min3_u32 v4, v4, v6, v7\ns_nop 0\nv_readfirstlane_b32 s82, v4")
    spin(e, body, "s_cmp_lg_u32 s82, 0", sleep=1)
    st(e, "epid")
    e(f"s_setprio {yprio}")
    for t in range(ypre, NP - 1 if not deep else 20): yissue(t)
    if not deep:
        for x in c_list(1): e(x)
    yn = [NP - 1]
    e(f"s_add_u32 s31, s89, {SC}\nv_add_u32 v136, s31, v3\nv_xor_b32 v137, 0x2000, v136\nv_xor_b32 v138, 8, v20")
    for t in range(28):
        k = t >> 1
        if deep:
            if t == 12:
                for x in c_list(1)[:8]: e(x)
            if t == 16: e("s_waitcnt lgkmcnt(0)")
            if t == 20:
                for x in c_list(1)[8:]: e(x)
            if t == 24: e("s_waitcnt lgkmcnt(0)\ns_mov_b64 exec, 1\nds_add_u32 v18, v19 offset:92\ns_mov_b64 exec, -1")
            if t == 27: e("ds_read_b32 v1, v18 offset:92")
            D, qd = t >> 2, t & 3
            e.vm_wait({("A", t)})
            for cb in range(4):
                e(mf16(YA[qd >> 1] + 8*cb + 4*(qd & 1), yreg(t), creg(D) + 4*cb, D == 0))
                if cb == 0 and 1 <= t <= 4: yissue(t + 19)
                if cb == 0 and 13 <= t <= 16: yissue(t + 11)
            continue
        if t == 8: e("s_waitcnt lgkmcnt(0)\ns_mov_b64 exec, 1\nds_add_u32 v18, v19 offset:92\ns_mov_b64 exec, -1")
        if t == 24: e("ds_read_b32 v1, v18 offset:92")
        D, qd = ymap(t)
        if ych and t < 24:
            if t & 1: continue
            e.vm_wait({("A", t + 1)})
            for cb in range(4):
                for x in range(2): e(mf16(YA[qd >> 1] + 8*cb + 4*(qd & 1), yreg(t + x), creg(D + x) + 4*cb, D + x == 0))
                if cb < 2 and yn[0] < min(28, t + NP): yissue(yn[0]); yn[0] += 1
            continue
        e.vm_wait({("A", t)})
        for cb in range(4):
            e(mf16(YA[qd >> 1] + 8*cb + 4*(qd & 1), yreg(t), creg(D) + 4*cb, D == 0))
            if cb == 0 and yn[0] < min(28, t + NP): yissue(yn[0]); yn[0] += 1
    st(e, "yloop")
    e("s_waitcnt lgkmcnt(0)\nv_readfirstlane_b32 s82, v1\ns_cmp_ge_u32 s82, 4\ns_cbranch_scc1 K_c1ok")
    lds_wait(18, 92, "s_cmp_ge_u32 s82, 4", 1, sleep=0)
    e.label("K_c1ok")
    e("s_nop 5")
    for ps in range(2):
        for g in range(4): e(f"ds_write_b128 v136, v[{YA[ps]+16+4*g}:{YA[ps]+19+4*g}] offset:{ps*CH + g*1024}")
    e("ds_write_b32 v20, v19 offset:96")
    lds_wait(138, 96, "s_cmp_lg_u32 s82, 0", 1, sleep=0)
    st(e, "yw")
    for ps in range(2):
        for g in range(4): e(f"ds_read_b128 v[{YA[ps]+16+4*g}:{YA[ps]+19+4*g}], v137 offset:{ps*CH + g*1024}")
    e("s_waitcnt lgkmcnt(4)")
    Y = YA[0]
    for r in range(16): e(f"v_add_f32 v{Y+r}, v{Y+r}, v{Y+16+r}")
    for p in range(8): e(f"v_cvt_pk_bf16_f32 v{24+4*(p//3)+p%3}, v{Y+2*p}, v{Y+2*p+1}")
    for r in (27, 31, 34, 35): e(f"v_mov_b32 v{r}, s84")
    e("s_waitcnt lgkmcnt(0)\ns_mov_b64 exec, 1\nds_add_u32 v18, v19 offset:84\ns_mov_b64 exec, -1")
    st(e, "yx")
    e("s_setprio 0")
    Y = YA[1]
    def ysend(g): stores([f"buffer_store_dwordx4 v[{24+4*g}:{27+4*g}], v3, s[20:23], s77 offen offset:{g*1024}"], "px")
    if ymode == 0: ysend(0)
    if ymode == 1: [ysend(g) for g in range(3)]
    for r in range(16): e(f"v_add_f32 v{Y+r}, v{Y+r}, v{Y+16+r}")
    for r in range(8): e(f"v_lshlrev_b32 v{Y+16+2*r}, 16, v{128+r}\nv_and_b32 v{Y+17+2*r}, 0xffff0000, v{128+r}")
    if ymode == 0: ysend(1)
    for r in range(16): e(f"v_add_f32 v{Y+r}, v{Y+r}, v{Y+16+r}")
    lds_wait(18, 84, "s_cmp_ge_u32 s82, 4", 1, sleep=1)
    for g in range(4): e(f"ds_write_b128 v136, v[{Y+4*g}:{Y+3+4*g}] offset:{g*1024}")
    e("s_sub_u32 s31, s79, 16384\nv_add_u32 v11, s31, v3")
    for g in range(2): e(f"ds_write_b128 v11, v[{56+4*g}:{59+4*g}] offset:{g*1024}")
    e("ds_write_b32 v20, v19 offset:128")
    e.lg0()
    if ymode == 0: ysend(2)
    if ymode == 2:
        lds_wait(20, 48, "s_cmp_lg_u32 s82, 0", 1, sleep=2)
        for g in range(3): ysend(g)
    st(e, "ydone")
    e.lg0()
    e("s_barrier")
    st.dump(e); info["S"] = st.names
    e("s_endpgm")

    e.vm = []; e.lg = []
    e.label("K_SPARE")
    st = Stamper(stamps, 143)
    e(f"s_cmp_ge_u32 s2, {ng}\ns_cbranch_scc1 K_END\nv_mov_b32 v2, v0\nv_and_b32 v0, 63, v0\ns_lshr_b32 s3, s3, 6")
    e("v_lshlrev_b32 v7, 7, v2")
    e("s_sub_u32 s4, s2, 224\ns_lshr_b32 s5, s4, 1\ns_and_b32 s6, s4, 1")
    e("v_lshrrev_b32 v3, 4, v2\nv_and_b32 v4, 15, v2\nv_mul_u32_u24 v5, 0xe00, v3\nv_lshl_add_u32 v5, v4, 4, v5")
    e(f"v_mov_b32 v6, 0\ns_mov_b32 s82, {WS_EP}\ns_lshl_b32 s28, s5, 8")
    e("s_cmp_eq_u32 s6, 0")
    e("s_waitcnt lgkmcnt(0)")
    e("s_cselect_b32 s16, s52, s54\ns_cselect_b32 s17, s53, s55")
    e(f"s_and_b32 s17, s17, 0xffff\ns_mov_b32 s18, {448*3584}\ns_mov_b32 s19, 0x20000")
    srd(e, 20, 62, WS_LIM)
    srd(e, 8, 56, 1792 * 896)
    srd(e, 64, 42, 448 * 896)
    srd(e, 68, 44, 448 * 896)
    if late:
        e("s_cmp_lg_u32 s3, 0\ns_cbranch_scc1 K_sp6\nv_min_u32 v84, 6, v0\nv_lshlrev_b32 v84, 7, v84\ns_mov_b64 exec, 0x7f")
        for i, p in enumerate((34, 36, 46, 48, 58)): e(f"global_load_dword v{85+i}, v84, s[{p}:{p+1}]")
        e("s_mov_b64 exec, -1")
        e.label("K_sp6")
    e("s_cmp_ge_u32 s4, 28\ns_cbranch_scc1 K_sp4")
    e.vmem("buffer_load_dword v6, v6, s[20:23], s82 offen sc1", "ep")
    if spw: e.vm0()
    for i in range(14):
        e.vmem(f"buffer_load_dwordx4 v[{16+4*i}:{19+4*i}], v5, s[16:19], s28 offen", ("cs", i))
        if i < 13: e(f"s_add_u32 s28, s28, {32*3584}")
        if spd and i >= spd - 1 and i < 6: e.vm_wait({("cs", i - spd + 1)})
    def do_warm():
        e("s_mul_i32 s28, s4, 57344\ns_mul_i32 s29, s4, 14336")
        e.vmem("buffer_load_dword v80, v7, s[8:11], s28 offen", "t")
        e("v_and_b32 v4, 0x3fff, v7\ns_cmp_lt_u32 s3, 2\ns_cselect_b32 s64, s64, s68\ns_cselect_b32 s65, s65, s69\ns_cmp_lt_u32 s3, 4\ns_cselect_b32 s66, s66, 0")
        e.vmem("buffer_load_dword v81, v4, s[64:67], s29 offen", "t")
    if warm == 1: do_warm()
    for q in range(8): e(f"v_mov_b32 v{8+q}, 0")
    for i in range(14):
        e.vm_wait({("cs", i)})
        for q in range(4):
            e(f"v_lshlrev_b32 v72, 16, v{16+4*i+q}\nv_and_b32 v73, 0xffff0000, v{16+4*i+q}\nv_pk_add_f32 v[{8+2*q}:{9+2*q}], v[{8+2*q}:{9+2*q}], v[72:73]")
    e("v_lshlrev_b32 v3, 5, v2")
    e("ds_write_b128 v3, v[8:11]\nds_write_b128 v3, v[12:15] offset:16\ns_waitcnt lgkmcnt(0)")
    st(e, "acc")
    e("s_barrier")
    e("s_cmp_lg_u32 s3, 7\ns_cbranch_scc1 K_sp2")
    e("v_lshlrev_b32 v3, 3, v0\nv_add_u32 v9, 1, v6\nv_max_u32 v9, 1, v9\nv_mov_b32 v11, v9")
    for h in range(2):
        for i in range(16): e(f"ds_read_b64 v[{16+2*i}:{17+2*i}], v3 offset:{(16*h+i)*512}")
        e("s_waitcnt lgkmcnt(0)")
        if h == 0: e("v_mov_b32 v12, 0\nv_mov_b32 v13, 0")
        for i in range(16): e(f"v_pk_add_f32 v[12:13], v[12:13], v[{16+2*i}:{17+2*i}]")
    e(f"v_mov_b32 v8, v12\nv_mov_b32 v10, v13\nv_lshlrev_b32 v3, 4, v0\ns_lshl_b32 s30, s4, 10\ns_add_u32 s30, s30, {WS_CS}")
    e("buffer_store_dwordx4 v[8:11], v3, s[20:23], s30 offen sc1")
    e.label("K_sp2")
    if warm == 2: do_warm()
    e.label("K_sp4")
    if retouch:
        e("s_getpc_b64 s[28:29]")
        e.label("K_PC2")
        e(f"s_sub_u32 s28, s28, K_PC2-{name}\ns_subb_u32 s29, s29, 0\nv_min_u32 v7, ALL_END-{name}-4, v7\nglobal_load_dword v83, v7, s[28:29] sc1")
    e.label("K_sp3")
    st.dump(e); info["sp"] = st.names
    e.label("K_END")
    e("s_endpgm")
    e.label("ALL_END")
    return khead(name) + e.text(), kd(name, 256, 256), info

if __name__ == "__main__":
    import sys, json
    NAME = "recurrent_scan__ssm_conv_s5__glu_gated_reglu__prompt_kernel"
    stamps = "stamps" in sys.argv
    kw = {}
    for a in sys.argv[2:]:
        if "=" in a:
            k, v = a.split("="); kw[k] = int(v) if v.lstrip("-").isdigit() else v
    b, d, info = gen_fused(NAME, stamps=stamps, **kw)
    hdr = open("recurrent_scan__ssm_conv_s5__glu_gated_reglu__prompt.s.ref").read().split("; Override")[0]
    txt = hdr + f"; @launch grid=({kw.get('ng', 252)},1,1) block=(512,1,1) lds={LDS_BYTES}\n"
    if stamps and "rt" in sys.argv: txt += "; RT\n"
    if stamps: txt += "; STAMPS " + json.dumps(info) + "\n"
    txt += '.amdgcn_target "amdgcn-amd-amdhsa--gfx950"\n' + b + d
    open(sys.argv[1], "w").write(txt)
```

```python
from asmlib import *
from layout7 import *
import sys as _sys
APAD = int(([a[5:] for a in _sys.argv if a.startswith("apad=")] + ["0"])[0])
if APAD:
    A_W += APAD
    WS_AY = WS_END + (2 << 20); WS_AO = WS_AY + 32 * A_W
    WS_LIM = WS_AO + 64 * A_W
else:
    WS_LIM = WS_END
LDS_BYTES = 163840
RING = 114688
NR = 5
MISC = RING + NR * 8192
STAT = MISC
CSB = MISC + 1024
CSW = MISC + 2048
SUB = MISC + 3072
FLG = MISC + 7168
LOG2E = 0x3fb8aa3b
SPIN_MAX = 0x200000
UNIT = 114688
CH = 16384
import sys
PADAT = ([a[6:] for a in sys.argv if a.startswith('padat=')] + [''])[0]
TIMER = 's_memrealtime' if 'rt' in sys.argv else 's_memtime'
C0 = 2 * CH
SC = 4 * CH

def mfma(d, a, b, first=False):
    c = "0" if first else f"v[{d}:{d+15}]"
    return f"v_mfma_f32_32x32x16_bf16 v[{d}:{d+15}], v[{a}:{a+3}], v[{b}:{b+3}], {c}"

def mf16(d, a, b, first=False):
    c = "0" if first else f"v[{d}:{d+3}]"
    return f"v_mfma_f32_16x16x32_bf16 v[{d}:{d+3}], v[{a}:{a+3}], v[{b}:{b+3}], {c}"

class Stamper:
    def __init__(self, on, vreg): self.on = on; self.n = 0; self.v = vreg; self.names = []
    def __call__(self, e, name=""):
        if PADAT and name == PADAT and self.v == 127: e("s_memrealtime s[100:101]")
        if not self.on: return
        e.lg0()
        e(f"v_writelane_b32 v{self.v}, s80, {self.n}\n{TIMER} s[80:81]")
        self.n += 1; self.names.append(name)
        assert self.n <= 60
    def dump(self, e):
        if not self.on: return
        e("s_waitcnt vmcnt(0)")
        self(e, "end"); self(e)
        e("s_memrealtime s[80:81]\ns_waitcnt lgkmcnt(0)")
        e(f"v_writelane_b32 v{self.v}, s96, 62\nv_writelane_b32 v{self.v}, s80, 63\ns_mov_b32 s80, {self.n}\nv_writelane_b32 v{self.v}, s80, 61")
        e(f"s_mov_b32 s22, {WS_END + (1<<20)}")
        e("s_lshl_b32 s82, s2, 3\ns_add_u32 s82, s82, s3\ns_lshl_b32 s82, s82, 8")
        e(f"s_add_u32 s82, s82, {WS_END}")
        e("v_lshlrev_b32 v1, 2, v0")
        e(f"buffer_store_dword v{self.v}, v1, s[20:23], s82 offen")

def spin(e, body, cond_ok, sleep=1):
    l = e.newlabel("SP")
    e("s_mov_b32 s95, 0")
    e.label(l)
    body()
    e(cond_ok)
    e(f"s_cbranch_scc1 {l}_ok")
    if sleep: e(f"s_sleep {sleep}")
    e(f"s_add_u32 s95, s95, 1\ns_cmp_lt_u32 s95, {SPIN_MAX}\ns_cbranch_scc1 {l}")
    e.label(l + "_ok")

def tau_of_lane(e, d, t):
    e(f"v_bfe_u32 v{d}, v0, 2, 1\nv_lshlrev_b32 v{d}, 4, v{d}\nv_bfe_u32 v{t}, v0, 3, 2\nv_lshl_add_u32 v{d}, v{t}, 2, v{d}\nv_and_b32 v{t}, 3, v0\nv_add_u32 v{d}, v{d}, v{t}")

def plan_slots(cc):
    rp = {}
    for m in range(2, 28):
        rp[m] = m - 2
    if cc < 7:
        b = 4 * (cc - 1)
        for m, p in zip(range(b + 2, b + 8), (b, b + 1, b + 1, b + 2, b + 3, b + 3)): rp[m] = p
        for m in range(b + 8, 28): rp[m] = m - 4
    rp[0] = rp[1] = -1
    rd = {n: [m for m in range(28) if rp[m] == n] for n in range(-1, 28)}
    wslot = {n: ("r", ((n + 2) % NR) * 8192) for n in range(5)}
    issue = {}
    nxt = 5
    free = []
    wd = []
    for n in range(28):
        if n in (5, 9):
            c = (n >> 2) - 1
            free += [("c", c * CH), ("c", c * CH + 2048)]
        free += [wslot[m] for m in rd[n - 1]]
        issue[n] = []
        cap = 2 if n < 13 else 1
        while free and nxt < 28 and len(issue[n]) < cap:
            wslot[nxt] = free.pop(0); issue[n].append(nxt); nxt += 1
        if nxt == 28 and not issue[n] and free: wd.append((free.pop(0), n + 1, 0))
    assert len(wd) == 9 and not free, (wd, free)
    wd += [(("r", -8192), 0, 7)] + [(("c", C0 + (i >> 1) * CH + (i & 1) * 2048), 0, 0) for i in range(4)]
    return wslot, issue, rd, wd

def gen_fused(name, stamps=False, D0=3, pad=0, ra=0, kint=2, fine=1, sidle=0, sprio=3, sprio2=0, fprio=2, NA=16, pace=0, warm=2, ypre=9, ssl=1, ysl=3, t0=28, e0=0, e1=3, e2=3, ywait=6, wsl=1, pxs=3072, lin=0, cf=2, direct=1, pf=0, ff=1, ho=0, sof=-1, c4=0, cpl8=0, al=0, ng=252, dg=0, strim=1, hsl=4, deep=0, ysl2=0, spw=1, spd=0, cc=2, ovl=1, thr=14, cap=3, sch=1, ych=0, postb=0, ag1=1, adel=1, fgrp=2, xne=2, lw=0, psl=1, na0=99, dep=16, yprio=3, apad=0, ymode=0, ty=40, tpos=1, tfl='', retouch=0, xo=6, lp=1, cw=244, front=0, tlb=0, probe=0, late=0, rb_o=0, rb_y=0, padwg=-1, padat='', tr=55, gap=0, pt=0, pt0=15, ptn=7, noc=0, nowd=0, dwarm=0, outfl='nt', force=0, bulk=0):
    e = Em2()
    info = {}
    wslot, wissue, wrd, wdslot = plan_slots(cc)
    def stores(ins_list, tag):
        for x in ins_list: e.vmem(x + " sc1", tag)
    def dual(ins_list, tag, on=True):
        if not on: return stores(ins_list, tag)
        l = e.newlabel("DS")
        e(f"s_cmp_eq_u32 s97, 2\ns_cbranch_scc1 {l}_l")
        for x in ins_list: e(x + " sc1")
        e(f"s_branch {l}_e")
        e.label(l + "_l")
        for x in ins_list: e.vmem(x, tag)
        e.label(l + "_e")
    def wd_setup(va, sr):
        e(f"v_lshrrev_b32 v{va}, 3, v0\nv_mul_u32_u24 v{va}, 0x380, v{va}\nv_lshrrev_b32 v{va+1}, 4, v0\nv_lshlrev_b32 v{va+1}, 1, v{va+1}")
        e(f"v_and_b32 v1, 7, v0\nv_xor_b32 v1, v1, v{va+1}\nv_lshl_add_u32 v{va}, v1, 4, v{va}\nv_add_u32 v{va+1}, {8*896-1024}, v{va}")
        srd(e, sr, 56, 1792 * 896)
        e("s_lshl_b32 s98, s99, 1")
        e(f"s_mul_i32 s88, s4, {32*896}\ns_lshl_b32 s82, s91, 7\ns_add_u32 s88, s88, s82\ns_mul_i32 s82, s85, {7*UNIT}\ns_add_u32 s88, s88, s82")
        e(f"s_mul_i32 s64, s91, {UNIT}\ns_add_u32 s64, s64, s88")
        for u in range(1, 7):
            if u > 1: e("s_add_u32 s98, s98, 1\ns_cmp_ge_u32 s98, 7\ns_cselect_b32 s98, 0, s98")
            e("s_cmp_eq_u32 s98, s91\ns_addc_u32 s98, s98, 0\ns_cmp_ge_u32 s98, 7\ns_cselect_b32 s98, 0, s98")
            e(f"s_lshl_b32 s{45+u}, s98, 13\ns_mul_i32 s{64+u}, s98, {UNIT}\ns_add_u32 s{64+u}, s{64+u}, s88")
    def wd_dma(k, va, sr):
        kind, off = wdslot[k][0]
        e(f"s_add_u32 m0, s{89 if kind == 'c' else 79}, {off}\ns_add_u32 s82, s{64+(k>>1)}, {(k&1)*16*896}")
        e.vmem(f"buffer_load_dwordx4 v{va}, s[{sr}:{sr+3}], s82 offen lds", ("wd", k))
        e.vmem(f"buffer_load_dwordx4 v{va+1}, s[{sr}:{sr+3}], s82 offen offset:1024 lds", ("wd", k))
    def wd_half(k, hf):
        kind, off = wdslot[k][0]
        e(f"s_add_u32 m0, s{89 if kind == 'c' else 79}, {off}\ns_add_u32 s82, s{64+(k>>1)}, {(k&1)*16*896}")
        e.vmem(f"buffer_load_dwordx4 v{2+hf}, s[12:15], s82 offen" + (" offset:1024" if hf else "") + " lds", ("wd", k))
    def lds_wait(addr, off, cond, tmp, sleep=1):
        def body(): e(f"ds_read_b32 v{tmp}, v{addr} offset:{off}\ns_waitcnt lgkmcnt(0)\nv_readfirstlane_b32 s82, v{tmp}")
        spin(e, body, cond, sleep=sleep)
        e.lg = []
    if stamps: e(f"s_memrealtime s[96:97]\n{TIMER} s[80:81]")
    elif pad: e("s_memrealtime s[96:97]")
    e("s_load_dwordx16 s[32:47], s[0:1], 0")
    e("s_load_dwordx16 s[48:63], s[0:1], 64")
    e("v_readfirstlane_b32 s3, v0\ns_cmpk_lt_u32 s2, 224\ns_cbranch_scc1 K_MAIN")
    e(f"s_cmpk_lt_u32 s2, {cw}\ns_cbranch_scc1 K_SPARE\ns_getpc_b64 s[28:29]")
    e.label("K_PC")
    e("v_lshlrev_b32 v7, 7, v0\nv_min_u32 v7, ALL_END-K_PC-4, v7\nglobal_load_dword v83, v7, s[28:29]\ns_branch K_SPARE")
    e.label("K_MAIN")
    e("v_and_b32 v0, 63, v0\ns_lshr_b32 s3, s3, 6\ns_and_b32 s4, s3, 3\ns_and_b32 s5, s2, 3\ns_lshl_b32 s5, s5, 2\ns_bfe_u32 s99, s2, 0x20003\ns_add_u32 s5, s5, s99")
    e("s_lshr_b32 s91, s2, 5\nv_lshrrev_b32 v21, 5, v0\ns_lshl_b32 s89, s4, 12")
    def rot_off(d):
        if xo == 0:
            e(f"s_mul_i32 s{d}, s99, {ra}")
        else:
            tab = sum((((ra*(rb & 3) + xo*(rb >> 2)) % 7) << (4*rb)) for rb in range(16))
            e(f"s_mov_b32 s12, {tab & 0xffffffff}\ns_mov_b32 s13, {tab >> 32}\ns_lshl_b32 s{d}, s5, 2\ns_lshr_b64 s[12:13], s[12:13], s{d}\ns_and_b32 s{d}, s12, 7")
    rot_off0 = rot_off
    def rot_off(d):
        rot_off0(d)
        if cf:
            fct = {1: lambda c: 0, 2: lambda c: c >> 1, 3: lambda c: c & 1, 4: lambda c: (c % 3), 5: lambda c: 2*(c % 4), 6: lambda c: 2*(c % 3), 7: lambda c: 3*(c & 1), 8: lambda c: (c + 1) >> 1, 9: lambda c: (0, 2, 5)[c % 3]}[cf]
            tab = sum((((fct(c) - c) % 7) << (4*c)) for c in range(7))
            tab1 = sum((((fct(c) + ho - c) % 7) << (4*c)) for c in range(7))
            e(f"s_mov_b32 s13, {tab}\ns_bitcmp1_b32 s2, 2\ns_cselect_b32 s13, {tab1}, s13")
            e(f"s_lshl_b32 s12, s91, 2\ns_lshr_b32 s12, s13, s12\ns_and_b32 s12, s12, 7\ns_add_u32 s{d}, s{d}, s12\ns_cmp_ge_u32 s{d}, 7\ns_cselect_b32 s12, 7, 0\ns_sub_u32 s{d}, s{d}, s12")
    def common2():
        e(f"s_bfe_u32 s85, s2, 0x10002\ns_mul_i32 s6, s85, 7\ns_add_u32 s6, s6, s91\ns_lshl_b32 s79, s4, 11\ns_add_u32 s79, s79, {RING}")
    def common3():
        e("v_and_b32 v20, 31, v0\nv_bfe_u32 v22, v0, 1, 3\nv_xor_b32 v22, v22, v21\nv_lshlrev_b32 v20, 7, v20")
    e("s_cmp_ge_u32 s3, 4")
    e("s_cbranch_scc1 K_S")

    st = Stamper(stamps, 127)
    e("v_bfe_u32 v6, v0, 3, 2\nv_and_b32 v9, 7, v0\nv_lshrrev_b32 v7, 4, v0\nv_xor_b32 v9, v9, v7\nv_lshlrev_b32 v9, 4, v9\nv_xor_b32 v7, 64, v9")
    e("v_lshl_add_u32 v5, v21, 4, v6\ns_movk_i32 s30, 0x380\nv_mad_u32_u24 v1, v5, s30, v9\nv_mad_u32_u24 v2, v5, s30, v7\ns_movk_i32 s31, 2560\nv_add_u32 v2, s31, v2")
    def rho():
        e("s_lshr_b32 s7, s2, 6\ns_and_b32 s10, s2, 3\ns_sub_u32 s7, s7, s10\ns_cselect_b32 s10, 7, 0\ns_add_u32 s7, s7, s10")
    if direct:
        assert (ra, xo, cf) == (0, 6, 2)
        rho()
        e("s_lshl_b32 s64, s7, 7")
    else:
        rot_off(10)
        e("s_add_u32 s7, s91, s10\ns_cmp_ge_u32 s7, 7\ns_cselect_b32 s10, 7, 0\ns_sub_u32 s7, s7, s10\ns_lshl_b32 s64, s7, 7")
    e("s_lshl_b32 s28, s5, 2\ns_add_u32 s28, s28, s4\ns_mulk_i32 s28, 28672\ns_lshl_b32 s31, s31, 1\nv_add_u32 v3, s31, v1\nv_add_u32 v4, s31, v2")
    e(f"s_mov_b32 s10, {2048*896}\ns_mov_b32 s11, 0x20000\ns_mov_b32 m0, s89\ns_add_u32 s83, s28, s64")
    e("s_waitcnt lgkmcnt(0)")
    st(e, "karg")
    e("s_mov_b32 s8, s32\ns_and_b32 s9, s33, 0xffff")
    for ii in range(4):
        e.vmem(f"buffer_load_dwordx4 v{1+ii}, s[8:11], s83 offen" + (f" offset:{ii*1024}" if ii else "") + " lds", ("x", 0))
    common2()
    e(f"v_lshl_add_u32 v6, v21, 3, v6\nv_mad_u32_u24 v5, v6, s30, v9\nv_mad_u32_u24 v6, v6, s30, v7\nv_add_u32 v6, {4*896-1024}, v6")
    e("s_lshl_b32 s29, s6, 1\ns_and_b32 s30, s4, 1\ns_add_u32 s29, s29, s30\ns_mulk_i32 s29, 14336")
    e(f"s_cmp_lt_u32 s4, 2\ns_cselect_b32 s12, s38, s40\ns_cselect_b32 s13, s39, s41\ns_and_b32 s13, s13, 0xffff\ns_mov_b32 s14, {448*896}\ns_mov_b32 s15, 0x20000")
    e("s_mov_b32 m0, s79\ns_add_u32 s83, s29, s64")
    e.vmem("buffer_load_dwordx4 v5, s[12:15], s83 offen lds", ("x", 0))
    e.vmem("buffer_load_dwordx4 v6, s[12:15], s83 offen offset:1024 lds", ("x", 0))
    e(f"s_setprio {fprio}")
    for c in range(1, 7):
        e(f"s_add_u32 s{64+c}, s{63+c}, 128\ns_cmp_ge_u32 s{64+c}, 896\ns_cselect_b32 s{64+c}, 0, s{64+c}")
    def xb_burst(c):
        e(f"s_add_u32 m0, s89, {c*CH}\ns_add_u32 s83, s28, s{64+c}")
        for ii in range(4):
            e.vmem(f"buffer_load_dwordx4 v{1+ii}, s[8:11], s83 offen" + (f" offset:{ii*1024}" if ii else "") + " lds", ("x", c))
        e(f"s_add_u32 m0, s79, {(c % NR)*8192}\ns_add_u32 s83, s29, s{64+c}")
        e.vmem("buffer_load_dwordx4 v5, s[12:15], s83 offen lds", ("x", c))
        e.vmem("buffer_load_dwordx4 v6, s[12:15], s83 offen offset:1024 lds", ("x", c))
    if D0 > 1: xb_burst(1)
    if probe:
        st(e, "iss0")
        e("s_waitcnt vmcnt(5)")
        st(e, "land1")
        e("s_waitcnt vmcnt(0)")
        st(e, "land0")
    srd(e, 20, 62, WS_LIM)
    e(f"v_mov_b32 v120, 0\ns_mov_b32 s82, {WS_EP}")
    def ep_load():
        e(f"s_mov_b32 s82, {WS_EP}\ns_mov_b64 exec, 1")
        e.vmem("buffer_load_dword v120, v120, s[20:23], s82 offen sc1", "ep")
        e("s_mov_b64 exec, -1")
    if not late: ep_load()
    e(f"v_mov_b32 v124, 0\nv_mov_b32 v125, 0\ns_lshl_b32 s31, s4, 9\ns_add_u32 s31, s31, {SUB}\nv_lshl_add_u32 v8, v0, 3, s31")
    e.lds("ds_write_b64 v8, v[124:125]")
    e(f"v_lshlrev_b32 v8, 2, v0\nv_add_u32 v8, {FLG}, v8")
    e.lds("ds_write_b32 v8, v124")
    e("v_lshrrev_b32 v23, 4, v0\nv_and_b32 v20, 15, v0\nv_bfe_u32 v10, v0, 1, 3\nv_xor_b32 v10, v10, v23\nv_lshlrev_b32 v10, 4, v10\nv_lshl_add_u32 v10, v20, 7, v10")
    e("v_xor_b32 v11, 64, v10\nv_add_u32 v12, 0x10000, v10\nv_add_u32 v13, 0x10000, v11")
    srd(e, 16, 52, 448 * 3584)
    srd(e, 24, 54, 448 * 3584)
    e("s_lshl_b32 s31, s6, 8\ns_lshl_b32 s82, s4, 6\ns_add_u32 s31, s31, s82")
    for c in range(7): e(f"s_mul_i32 s{72+c}, s{64+c}, 1792\ns_add_u32 s{72+c}, s{72+c}, s31")
    e("v_bfe_u32 v8, v0, 2, 2\nv_lshl_add_u32 v7, v23, 3, v8\nv_mul_u32_u24 v7, 0xe00, v7\nv_and_b32 v22, 1, v23\nv_lshlrev_b32 v9, 1, v22\nv_and_b32 v14, 3, v0\nv_xor_b32 v9, v9, v14\nv_lshl_add_u32 v7, v9, 4, v7")
    e("v_lshrrev_b32 v9, 2, v0\nv_lshlrev_b32 v9, 6, v9\nv_lshl_add_u32 v9, v22, 5, v9\nv_lshl_add_u32 v9, v14, 3, v9\nv_add_u32 v125, s89, v9\nv_add_u32 v9, s79, v9\nv_xor_b32 v14, 32, v9\nv_xor_b32 v15, 32, v125")
    e("v_lshlrev_b32 v18, 4, v0")
    e(f"s_lshl_b32 s31, s4, 2\ns_add_u32 s31, s31, {FLG}\nv_mov_b32 v19, s31")
    e(f"s_lshl_b32 s31, s4, 8\ns_add_u32 s31, s31, {CSW}\nv_lshl_add_u32 v122, v23, 4, s31")
    e("v_bfe_u32 v123, v0, 2, 1\nv_lshlrev_b32 v123, 4, v123\nv_bfe_u32 v8, v0, 3, 1\nv_lshl_add_u32 v123, v8, 2, v123\nv_and_b32 v8, 3, v0\nv_add_u32 v123, v123, v8")
    e(f"v_lshlrev_b32 v123, 2, v123\nv_add_u32 v123, {STAT}, v123\nv_lshlrev_b32 v17, 2, v8\nv_add_u32 v17, {FLG}, v17\nv_mov_b32 v8, {FLG}")
    e(f"s_lshl_b32 s92, s5, 2\ns_add_u32 s92, s92, s4\ns_mul_i32 s92, s92, {A_W}\ns_add_u32 s92, s92, {WS_AO}\ns_lshl_b32 s31, s6, 13\ns_add_u32 s86, s92, s31\ns_add_u32 s87, s86, 4096")
    if probe: st(e, "setup")
    for c in range(2, D0): xb_burst(c)
    ptl = list(range(64)) if pt else []
    def pretouch(n):
        for _ in range(n):
            if ptl: e(f"s_load_dword s100, s[46:47], {ptl.pop(0) * 128}")
    if pt:
        e.lg0()
        e("s_add_u32 s46, s62, s86\ns_addc_u32 s47, s63, 0")
        pretouch(pt0)
    def dma_parts(kd_, a1, a2):
        if kd_ == "w":
            c, jj = a1 >> 2, a1 & 3
            kind, off = wslot[a1]
            return (f"s_add_u32 m0, s{89 if kind == 'c' else 79}, {off + a2*1024}\ns_add_u32 s83, s{72+c}, {(32*(jj >> 1) + 4*(jj & 1))*3584}",
                    f"buffer_load_dwordx4 v7, s[{16+8*a2}:{19+8*a2}], s83 offen lds", ("w", a1))
        if kd_ == "d":
            kind, off = wdslot[a1][0]
            return (f"s_add_u32 m0, s{89 if kind == 'c' else 79}, {off}\ns_add_u32 s83, s{64+(a1>>1)}, {(a1&1)*16*896}",
                    f"buffer_load_dwordx4 v{2+a2}, s[12:15], s83 offen" + (" offset:1024" if a2 else "") + " lds", ("wd", a1))
        return (f"s_add_u32 m0, s89, {C0 + (a1 >> 2)*CH + (a1 & 2)*1024}\ns_add_u32 s83, s{28 if a1 < 8 else 94}, {((a1 & 7) >> 1)*16*896}",
                f"buffer_load_dwordx4 v{5 + (a1 & 1)}, s[8:11], s83 offen" + (" offset:1024" if a1 & 1 else "") + " lds", ("c", a1 >> 3))
    def w_issue(n, mt):
        a, b, t = dma_parts("w", n, mt)
        e(a); e.vmem(b, t)
    def wreads(m):
        kind, wo = wslot[m]
        ws_ = 24 + 16*((m >> 1) & 3) + 2*(m & 1)
        return [(f"ds_read_b64_tr_b16 v[{ws_+8*mt+4*ft}:{ws_+8*mt+4*ft+1}], v{((125, 15) if kind == 'c' else (9, 14))[ft]} offset:{wo + mt*1024}", ("W", m)) for mt in range(2) for ft in range(2)]
    def xmap(q):
        c, z = q >> 4, q & 15
        return (c, z >> 3, z & 7) if c < cc else (c, z & 1, z >> 1)
    def xreg(q): return 88 + 4*(q % 5)
    def xread(q):
        c, dp, tt = xmap(q)
        return (f"ds_read_b128 v[{xreg(q)}:{xreg(q)+3}], v{10 + dp + (2 if c >= 4 else 0)} offset:{(c & 3)*CH + tt*2048}", ("X", q))
    for sg in range(8):
        tags = {("x", sg)}
        eps = 7 if late else 1
        if sg == eps: tags.add("ep")
        e.vm_wait(tags)
        if sg == 0 and not pt: e.lg0()
        if sg == 7 and not postb:
            e.vm_wait({("w", 1)})
            for s, t in wreads(0) + wreads(1) + [xread(q) for q in range(4)]: e.lds(s, t)
        if not pt or sg == 7: st(e, f"b{sg}")
        e("s_barrier")
        if sg + D0 < 7: xb_burst(sg + D0)
        if 3 <= sg < 7:
            w_issue(sg - 3, 0); w_issue(sg - 3, 1)
        if late and sg == 4: ep_load()
        if sg == eps: e("v_readfirstlane_b32 s84, v120\ns_add_u32 s84, s84, 1\ns_max_u32 s84, s84, 1")
        if sg < 7: pretouch(ptn)
        if sg == 5: wd_setup(2, 12)
        if sg == 6:
            e(f"s_bitcmp1_b32 s4, 1\ns_cselect_b32 s8, s44, s42\ns_cselect_b32 s9, s45, s43\ns_and_b32 s9, s9, 0xffff\ns_mov_b32 s10, {448*896}")
            e(f"s_mul_i32 s29, s91, {64*896}\ns_and_b32 s30, s4, 1\ns_lshl_b32 s28, s85, 2\ns_add_u32 s94, s28, 2\ns_add_u32 s28, s28, s30\ns_cmp_eq_u32 s30, 0\ns_cselect_b32 s94, s94, 3")
            e("s_lshl_b32 s28, s28, 7\ns_add_u32 s28, s28, s29\ns_lshl_b32 s94, s94, 7\ns_add_u32 s94, s94, s29")
            e("v_lshrrev_b32 v4, 3, v0\nv_mul_u32_u24 v4, 0x380, v4\nv_and_b32 v5, 7, v0\nv_lshrrev_b32 v6, 4, v0\nv_xor_b32 v5, v5, v6\nv_lshlrev_b32 v5, 4, v5")
            e(f"v_xor_b32 v6, 64, v5\nv_add_u32 v5, v4, v5\nv_add_u32 v6, v4, v6\nv_add_u32 v6, {8*896-1024}, v6")
    assert not ptl
    w_issue(4, 0); w_issue(4, 1)
    if postb:
        e.vm_wait({("w", 1)})
        for s, t in wreads(0) + wreads(1) + [xread(q) for q in range(4)]: e.lds(s, t)
    CS = 56; MM = 72
    cs_rd = [("ds_read_b32 v121, v19 offset:16", "cs")] + [(f"ds_read_b32 v{MM+tt}, v123 offset:{(tt >> 1)*128 + (tt & 1)*32}", "cs") for tt in range(8)]
    cs_rd += [(f"ds_read_b128 v[{CS+8*mt+4*ft}:{CS+8*mt+4*ft+3}], v122 offset:{mt*128 + ft*64}", "cs") for mt in range(2) for ft in range(2)]
    p2 = []
    def p_(s): p2.extend(s.split("\n"))
    p_("v_lshrrev_b32 v115, 2, v0\nv_bfe_u32 v114, v0, 3, 2\ns_and_b32 s31, s4, 2\nv_xor_b32 v114, s31, v114\nv_lshlrev_b32 v115, 7, v115\nv_lshl_add_u32 v115, v114, 5, v115\nv_and_b32 v114, 3, v0\nv_lshl_add_u32 v115, v114, 3, v115")
    p_(f"s_lshl_b32 s30, s31, 12\ns_lshl_b32 s31, s31, 11\ns_add_u32 s31, s31, {RING - 8192}\nv_add_u32 v108, s30, v115\nv_add_u32 v112, s31, v115")
    for cb in range(1, 4): p_(f"v_xor_b32 v{108+cb}, {32*cb}, v108\nv_xor_b32 v{112+cb}, {32*cb}, v112")
    p_(f"s_lshl_b32 s93, s5, 1\ns_add_u32 s93, s93, s85\ns_lshl_b32 s93, s93, 10\ns_add_u32 s93, s93, {WS_FO}")
    p_(f"s_and_b32 s31, s4, 1\ns_mul_i32 s31, s31, {A_W}\ns_sub_u32 s92, s92, s31")
    p_(f"s_mul_i32 s31, s85, {7*8192}\ns_add_u32 s92, s92, s31")
    for u in range(1, 7): p_(f"s_add_u32 s{45+u}, s{45+u}, s92")
    p_("s_lshl_b32 s29, s85, 6\ns_and_b32 s31, s4, 1\ns_lshl_b32 s31, s31, 5\ns_add_u32 s29, s29, s31\ns_lshl_b32 s30, s5, 7\ns_add_u32 s30, s30, s29")
    p_(f"v_lshlrev_b32 v117, 4, v22\nv_lshl_add_u32 v117, v21, 2, v117\nv_add_u32 v116, s30, v117\ns_lshl_b32 s29, s29, 2\ns_add_u32 s29, s29, {STAT}\nv_lshl_add_u32 v117, v117, 2, s29")
    p_("s_lshl_b32 s29, s91, 8\ns_lshr_b32 s31, s4, 1\ns_lshl_b32 s31, s31, 7\ns_add_u32 s29, s29, s31\nv_mul_u32_u24 v116, 0x700, v116\nv_lshl_add_u32 v116, v20, 2, v116\nv_add_u32 v116, s29, v116")
    for q in range(1, 8): p_(f"s_movk_i32 s{32+q}, {q*3584}")
    p_(f"s_mul_i32 s40, s5, 7\ns_add_u32 s40, s40, s91\ns_lshl_b32 s40, s40, 1\ns_add_u32 s40, s40, s85\ns_lshl_b32 s40, s40, 2\ns_add_u32 s40, s40, s4\ns_xor_b32 s41, s40, 4\ns_mul_i32 s40, s40, {pxs}\ns_mul_i32 s41, s41, {pxs}\ns_add_u32 s40, s40, {WS_PX + 896*pxs}\ns_add_u32 s41, s41, {WS_PX + 896*pxs}")
    slow = []; slow2 = []; slow3 = []
    def epi_plain(g):
        G, U = 128 + 8*g, 192 + 8*g
        o = []
        for r in range(8): o += [f"v_fma_f32 v{G+r}, -v{CS+r}, v{MM+g}, v{G+r}", f"v_fma_f32 v{U+r}, -v{CS+8+r}, v{MM+g}, v{U+r}"]
        for r in range(8): o.append(f"v_max_f32 v{G+r}, 0, v{G+r}")
        for r in range(8): o.append(f"v_mul_f32 v{G+r}, v{G+r}, v{U+r}")
        for r in range(4): o.append(f"v_cvt_pk_bf16_f32 v{U+r}, v{G+2*r}, v{G+2*r+1}")
        return o
    def hh_store(g): dual([f"buffer_store_dwordx4 v[{192+8*g}:{195+8*g}], v18, s[20:23], s{86 + (g >> 2)} offen offset:{(g & 3)*1024}"], "hh", bulk & 1)
    xn_ = 4
    epq = []
    epi_done = 0; csok = [False]
    for n in range(28):
        c = n >> 2
        chained = c >= cc
        it = []
        wr = [x for m in wrd[n] for x in wreads(m)]
        for k, x in enumerate(wr): it.append((1 + (k * (10 if len(wr) > 4 else 8)) // len(wr), 1, lambda x=x: e.lds(*x)))
        dq = [("w", m, mt) for m in wissue[n] for mt in range(2)]
        for k in range(9):
            if wdslot[k][1] - 1 == n: dq += [("d", k, 0), ("d", k, 1)]
        cpl = {n_: [n_ - 13] for n_ in range(13, 25)}; cpl.update({25: [12, 13], 26: [14, 15]})
        if lin:
            cpl.update({17: [4, 5], 18: [6, 7], 19: [], 20: []})
            for k, hf in {25: [(10, 0), (10, 1)], 26: [(11, 0), (11, 1)], 27: [(12, 0), (12, 1), (13, 0), (13, 1)]}.get(n, []): dq.append(("d", k, hf))
            if n == 20: it.append((9, 2, lambda: (e.vm_wait({("c", 0)}), e.lds("ds_write_b32 v19, v126 offset:144"))))
            if n == 24: it.append((13, 1, lambda: e.lds("ds_read_b32 v121, v8 offset:88", "cp")))
            if n == 25:
                def cpc():
                    e.lg_wait({"cp"})
                    l = e.newlabel("CP")
                    e(f"v_readfirstlane_b32 s82, v121\ns_cmp_lt_u32 s82, 4\ns_cbranch_scc1 {l}")
                    e.label(l + "_r")
                    slow2.append((l, 8, 88, "s_cmp_ge_u32 s82, 4"))
                it.append((1, 4, cpc))
        if c4: cpl.update({21: [8, 9], 22: [10, 11], 23: [], 24: [], 25: [12, 13, 14, 15], 26: []})
        for a in cpl.get(n, []): dq.append(("c", a, 0))
        assert len(dq) <= 4, (n, dq)
        for k, x in enumerate(dq):
            g0 = {1: (10,), 2: (6, 14), 3: (6, 10, 14), 4: (2, 6, 10, 14)}[len(dq)][k]
            if dg == 1: g0 = {1: (10,), 2: (4, 12), 3: (4, 10, 13), 4: (2, 5, 10, 13)}[len(dq)][k]
            if dg == 2: g0 -= 1
            pr = dma_parts(*x)
            if dg == 3:
                it.append((g0, 3, lambda pr=pr: (e(pr[0]), e.vmem(pr[1], pr[2]))))
                continue
            it.append((g0, 2, lambda pr=pr: e(pr[0])))
            it.append((g0 + 1, 9 if dg in (1, 2, 4) else 1, lambda pr=pr: e.vmem(pr[1], pr[2])))
        if n in (4, 8, 12, 16, 20, 24):
            it.append((5, 1, lambda: e.lds("ds_read_b32 v16, v17", "pg")))
            it.append((13, 2, lambda n=n: (e.lg_wait({"pg"}), e(f"v_cmp_gt_u32 vcc, {n >> 2}, v16"))))
        if n in (5, 9, 13, 17, 21, 25):
            def pg(n=n):
                l = e.newlabel("PG")
                e(f"s_cbranch_vccnz {l}")
                e.label(l + "_r")
                slow.append((l, n >> 2))
            it.append((0, 1, pg))
        if (n & 3) == 3:
            def prog(n=n):
                if n == 23: e.vm_wait({("c", 0)})
                assert not any(t_[0] == "X" and (t_[1] >> 4) == (n >> 2) for t_ in e.lg if isinstance(t_, tuple))
                e(f"v_mov_b32 v126, {(n >> 2) + 1}")
                e.lds("ds_write_b32 v19, v126")
            it.append((13, 2, prog))
        csn = 24 if (ovl and cc < 7) else 27
        if n == csn:
            for k, x in enumerate(cs_rd): it.append((k * 5 // len(cs_rd), 1, lambda x=x: e.lds(*x)))
            if csn == 24:
                def cschk():
                    e.lg_wait({"cs"})
                    e("v_readfirstlane_b32 s97, v121\ns_cmp_eq_u32 s97, 0\ns_cbranch_scc1 K_csslow")
                    e.label("K_csok")
                    csok[0] = True
                it.append((12, 4, cschk))
        it.sort(key=lambda x: x[0])
        for i in range(16):
            z = 16*(n & 3) + i
            if chained: tt, f4, dp = z >> 3, (z >> 1) & 3, z & 1; q = 16*c + 2*tt + dp; newx = (z & 7) < 2
            else: dp, tt, f4 = z >> 5, (z >> 2) & 7, z & 3; q = 16*c + 8*dp + tt; newx = f4 == 0
            mt, ft = f4 >> 1, f4 & 1
            tg = {("X", q)} if newx else set()
            if i == 0: tg |= {("W", m) for m in wrd[n - 1]}
            nv = e.vm_need({("w", m) for m in wrd[n]}) if i == 0 else None
            idx = [x for x, y in enumerate(e.lg) if y in tg]
            parts = []
            if nv is not None:
                parts.append(f"vmcnt({nv})"); e.vm = e.vm[len(e.vm) - nv:] if nv else []
            if idx:
                nl = min(15, len(e.lg) - 1 - idx[-1]); parts.append(f"lgkmcnt({nl})"); e.lg = e.lg[len(e.lg) - nl:] if nl else []
            if parts: e("s_waitcnt " + " ".join(parts))
            e(mf16(128 + 64*mt + 8*tt + 4*ft, 24 + 32*(c & 1) + 16*dp + 8*mt + 4*ft, xreg(q), c == 0 and dp == 0))
            used = 0
            oldest = (q & ~1) if chained else q
            if xn_ < 112 and xn_ < oldest + 5:
                e.lds(*xread(xn_)); xn_ += 1; used += 1
            while it and (it[0][0] <= i) and (used == 0 or used + it[0][1] <= 2 or i == 15):
                x = it.pop(0); x[2](); used += x[1]
            if ovl and chained and c == 6 and csok[0] and not epq and z >= 8*epi_done + 12 and 64 - z >= thr:
                epq = epi_plain(epi_done) + [epi_done]; epi_done += 1
            while used < cap and (epq or (p2 and n >= 1 and used == 0)):
                if epq:
                    x = epq.pop(0)
                    if isinstance(x, int): hh_store(x)
                    else: e(x)
                else: e(p2.pop(0))
                used += 1
        assert not it
        if (fine and (n & 3) == 3) or n == 27: st(e, f"k{n}")
    assert not p2
    for x in epq:
        if isinstance(x, int): hh_store(x)
        else: e(x)
    def csbody():
        for s, t in cs_rd: e(s)
        e("s_waitcnt lgkmcnt(0)\nv_readfirstlane_b32 s97, v121")
    if not (ovl and cc < 7):
        e.lg0()
        e("v_readfirstlane_b32 s97, v121\ns_cmp_eq_u32 s97, 0\ns_cbranch_scc1 K_csslow")
        e.label("K_csok")
    st(e, "cs")
    info["epi_hidden"] = epi_done
    def align(k=0):
        if al: e(".p2alignl 3, 0xbf800000")
        if al == 2: e("s_nop 0")
    align()
    for g in range(epi_done, 8):
        G, U = 128 + 8*g, 192 + 8*g
        mp = MM + (g & 6)
        sel = ("op_sel:[0,1,0] op_sel_hi:[1,1,1]" if g & 1 else "op_sel_hi:[1,0,1]") + " neg_lo:[1,0,0] neg_hi:[1,0,0]"
        rs = range(0, 8, 2)
        if g == 7:
            e.lds("ds_read_b32 v16, v17", "pg")
            e.lds("ds_read_b32 v121, v8 offset:88", "pg")
        for r in rs:
            e(f"v_pk_fma_f32 v[{G+r}:{G+r+1}], v[{CS+r}:{CS+r+1}], v[{mp}:{mp+1}], v[{G+r}:{G+r+1}] {sel}")
            e(f"v_pk_fma_f32 v[{U+r}:{U+r+1}], v[{CS+8+r}:{CS+9+r}], v[{mp}:{mp+1}], v[{U+r}:{U+r+1}] {sel}")
        for r in rs: e(f"v_max_f32 v{G+r}, 0, v{G+r}\nv_max_f32 v{G+r+1}, 0, v{G+r+1}")
        for r in rs: e(f"v_pk_mul_f32 v[{G+r}:{G+r+1}], v[{G+r}:{G+r+1}], v[{U+r}:{U+r+1}]")
        for r in rs: e(f"v_cvt_pk_bf16_f32 v{U + (r >> 1)}, v{G+r}, v{G+r+1}")
        hh_store(g)
    e.vm_wait({("c", 1)})
    e.lds("ds_write_b32 v19, v126 offset:32")
    e.lg_wait({"pg"})
    l = e.newlabel("PG")
    e(f"v_cmp_gt_u32 vcc, 7, v16\ns_nop 4\ns_cbranch_vccnz {l}")
    e.label(l + "_r")
    slow.append((l, 7))
    def cpchk():
        l = e.newlabel("CP")
        e(f"v_readfirstlane_b32 s82, v121\ns_cmp_lt_u32 s82, 4\ns_cbranch_scc1 {l}")
        e.label(l + "_r")
        slow2.append((l, 8, 88, "s_cmp_ge_u32 s82, 4"))
    if not cpl8: cpchk()
    e(f"s_add_u32 s31, s89, {C0}\nv_add_u32 v12, s31, v18")
    for g in range(8): e.lds(f"ds_write_b128 v12, v[{192+8*g}:{195+8*g}] offset:{(g >> 2)*CH + (g & 3)*1024}")
    e.lds("ds_write_b32 v19, v126 offset:160")
    st(e, "epi")
    e("s_setprio 0")
    XR, MR, RR = 56, 72, 88
    for q in range(2):
        e.lds(f"ds_read_b128 v[{RR+4*q}:{RR+4*q+3}], v117 offset:{512+32*q}")
    e("s_and_b32 s31, s4, 1\ns_xor_b32 s30, s85, 1\ns_lshl_b32 s30, s30, 1\ns_add_u32 s31, s31, s30\ns_lshl_b32 s31, s31, 11\nv_add_u32 v10, s31, v18")
    e("s_lshl_b32 s31, s91, 7\ns_lshl_b32 s30, s4, 2\ns_add_u32 s31, s31, s30\nv_mov_b32 v16, s31\nv_mov_b32 v17, s84")
    e("v_and_b32 v14, 7, v0\nv_min_u32 v14, 6, v14\nv_lshlrev_b32 v14, 7, v14\nv_bfe_u32 v15, v0, 3, 1\nv_lshl_add_u32 v14, v15, 2, v14\ns_and_b32 s30, s30, 8\nv_add_u32 v14, s30, v14")
    e(f"s_add_u32 s31, s89, {SC}\nv_add_u32 v4, s31, v18\nv_xor_b32 v5, 0x2000, v4\nv_xor_b32 v6, 8, v19\nv_xor_b32 v9, 4, v19\ns_sub_u32 s31, s79, 16384\nv_add_u32 v7, s31, v18")
    srd(e, 16, 58, 2048 * 1792)
    e.lg0()
    for r in range(8): e(f"v_mul_f32 v{RR+r}, v{RR+r}, v{RR+r}")
    e(f"s_and_b32 s30, s4, 2\ns_lshl_b32 s30, s30, 12\ns_and_b32 s31, s4, 1\ns_lshl_b32 s31, s31, 11\ns_add_u32 s30, s30, s31\ns_lshl_b32 s31, s85, 14\ns_add_u32 s30, s30, s31\ns_add_u32 s30, s30, {C0}\nv_add_u32 v13, s30, v18\nv_xor_b32 v12, 0x4000, v13")
    def ownrd():
        def body():
            e("ds_read_b32 v121, v9 offset:160")
            for pw in range(2):
                for ps in range(2):
                    for th in range(2):
                        r = 56 + 16*pw + 8*ps + 4*th
                        e(f"ds_read_b128 v[{r}:{r+3}], v{12+ps} offset:{pw*4096 + th*1024}")
            e("s_waitcnt lgkmcnt(0)\nv_readfirstlane_b32 s82, v121")
        spin(e, body, "s_cmp_lg_u32 s82, 0", sleep=0)
        e.lg = []
        e.lds("ds_write_b32 v19, v126 offset:176")
    if not ff: ownrd()
    e.vm0()
    e("s_mov_b64 exec, 1")
    dual(["buffer_store_dword v17, v16, s[20:23], s93 offen"], "fl")
    e("s_mov_b64 exec, -1")
    st(e, "hhflag")
    if ff: ownrd()
    NPS = 24; NT = 48
    def areg(t):
        if NA == 28: return 56 + 4*(t % 28) if t % 28 < 12 else 192 + 4*(t % 28 - 12)
        return 192 + 4*(t % NA) if t % NA < 16 else MR + 4*(t % NA - 16)
    def a_issue(t):
        sub = t & 3; u = 1 + ((t % NPS) >> 2)
        if t == NPS: e("v_xor_b32 v10, 0x1000, v10")
        if sub == 2: e(f"s_add_u32 s71, s{45+u}, {A_W}")
        r = areg(t)
        e.vmem(f"buffer_load_dwordx4 v[{r}:{r+3}], v10, s[20:23], s{71 if sub >> 1 else 45+u} offen offset:{(sub & 1)*1024} sc1", ("A", t))
    def breg(D): return 24 + 16*(D & 1)
    def b_list(D, u=None):
        if u is None: u = 1 + ((D % 12) >> 1)
        pw = D & 1
        out = []
        for cb in range(4):
            for u2 in range(2):
                kind, off = wdslot[2*u + u2][0]
                if kind == "r": bs = 112; off += 8192 + pw * 2048
                else: bs = 108; off += pw * 4096
                r = breg(D) + 4*cb + 2*u2
                out.append((f"ds_read_b64_tr_b16 v[{r}:{r+1}], v{bs+cb} offset:{off}", ("B", D, cb >> 1)))
        return out
    FO, OW = 128, 160
    for D in range(2):
        for x, tg in b_list(D, 0): e.lds(x, tg)
    lds_wait(9, 176, "s_cmp_lg_u32 s82, 0", 121, sleep=0)
    e("s_nop 1")
    for k in range(9, 14): wd_dma(k, 2, 12)
    pollld = "buffer_load_dword v17, v14, s[20:23], s93 offen sc1"
    e("s_mov_b64 exec, 0xffff\n" + pollld + "\ns_mov_b64 exec, -1")
    for ps in range(2):
        for th in range(2):
            for cb in range(4):
                for pw in range(2): e(mf16((FO, OW)[ps] + 8*cb + 4*th, 56 + 16*pw + 8*ps + 4*th, breg(pw) + 4*cb, pw == 0))
    e("s_mov_b64 exec, 0xffff\ns_waitcnt vmcnt(0)\nv_cmp_eq_u32 vcc, s84, v17\ns_nop 1\ns_cmp_eq_u64 vcc, exec\ns_cbranch_scc1 K_hhok")
    def body():
        e(pollld + "\ns_waitcnt vmcnt(0)\nv_cmp_eq_u32 vcc, s84, v17\ns_nop 1")
    spin(e, body, "s_cmp_eq_u64 vcc, exec", sleep=psl)
    e.label("K_hhok")
    e("s_mov_b64 exec, -1")
    e.vm = []
    e.lds("ds_write_b32 v19, v126 offset:112")
    st(e, "hhseen")
    t0 -= 4; ty -= 6; tr -= 8
    ai = [0]
    def a_next(lim):
        if ai[0] < min(lim, NT): a_issue(ai[0]); ai[0] += 1
    for t in range(min(na0, NA - 1)): a_next(NT)
    for s, tg in b_list(0): e.lds(s, tg)
    side = []
    PK = XR if NA < 28 else FO + 16
    def S_(f): side.append(f)
    def both_wait(t):
        nv = e.vm_need({("A", t)})
        idx = [i for i, x in enumerate(e.lg) if x == ("B", t >> 1, 0)]
        parts = []
        if nv is not None:
            parts.append(f"vmcnt({nv})"); e.vm = e.vm[len(e.vm) - nv:] if nv else []
        if idx:
            nl = min(15, len(e.lg) - 1 - idx[-1]); parts.append(f"lgkmcnt({nl})"); e.lg = e.lg[len(e.lg) - nl:] if nl else []
        if parts: e("s_waitcnt " + " ".join(parts))
    assert NA == 16
    RV = 192
    YV = FO
    def recv_one(g, dst, sb): e(f"buffer_load_dwordx4 v[{dst+4*g}:{dst+4*g+3}], v18, s[20:23], s{sb} offen offset:{g*1024} sc1")
    e(f"s_sub_u32 s42, s40, {896*pxs}")
    nop = lambda: None
    for t in range(NT):
        acc = FO if t < NPS else OW
        def mkchk(tag, pfx, cond_bad, addr, off, cond_ok):
            def chk():
                e.lg_wait({tag})
                l = e.newlabel(pfx)
                e(f"v_readfirstlane_b32 s82, v121\n{cond_bad}\ns_cbranch_scc1 {l}")
                e.label(l + "_r")
                slow2.append((l, addr, off, cond_ok))
            return chk
        if t == 6: S_(lambda: e.lds("ds_read_b32 v121, v9 offset:112", "wl"))
        if t == 8: S_(mkchk("wl", "WL", "s_cmp_eq_u32 s82, 0", 9, 112, "s_cmp_lg_u32 s82, 0"))
        if t == NPS - 4: S_(lambda: e.lds("ds_read_b32 v121, v8 offset:84", "yx"))
        if t == NPS - 1:
            def chk():
                e.lg_wait({"yx"})
                l = e.newlabel("YX")
                e(f"v_readfirstlane_b32 s82, v121\ns_cmp_lt_u32 s82, 4\ns_cbranch_scc1 {l}")
                e.label(l + "_r")
                slow2.append((l, 8, 84, "s_cmp_ge_u32 s82, 4"))
            S_(chk)
        if t == t0:
            for _ in range(e0): S_(nop)
            for g in range(0, 4, 2):
                def wr(g=g):
                    for gg in (g, g + 1): e.lds(f"ds_write_b128 v4, v[{FO+16+4*gg}:{FO+19+4*gg}] offset:{CH + gg*1024}")
                    if g == 2: e.lds("ds_write_b32 v19, v126 offset:48")
                S_(wr)
        if t == t0 + e1:
            def rdx():
                e.lds("ds_read_b32 v121, v6 offset:48", "ex")
                for g in range(4): e.lds(f"ds_read_b128 v[{FO+16+4*g}:{FO+19+4*g}], v5 offset:{CH + g*1024}", "ex")
            S_(rdx)
        if t == t0 + e2:
            if e2 == e1: S_(nop); S_(nop)
            def chk2():
                e.lg_wait({"ex"})
                l = e.newlabel("PX")
                e(f"v_readfirstlane_b32 s82, v121\ns_cmp_eq_u32 s82, 0\ns_cbranch_scc1 {l}")
                e.label(l + "_r")
                slow3.append(l)
                e.lds("ds_write_b32 v19, v126 offset:64")
            S_(chk2)
            for g in range(4):
                S_(lambda g=g: [e(f"v_add_f32 v{FO+r}, v{FO+r}, v{FO+16+r}") for r in range(4*g, 4*g + 4)])
                if g >= 1:
                    def snd(q=g-1):
                        for j in range(3):
                            p = 3*q + j
                            e(f"v_cvt_pk_bf16_f32 v{PK+4*q+j}, v{FO+2*p}, v{FO+2*p+1}" if p < 8 else f"v_mov_b32 v{PK+4*q+j}, s84")
                        e(f"v_mov_b32 v{PK+4*q+3}, s84")
                        stores([f"buffer_store_dwordx4 v[{PK+4*q}:{PK+4*q+3}], v18, s[20:23], s41 offen offset:{q*1024}"], "px")
                    S_(snd)
                for _ in range(gap): S_(nop)
        if t == 34:
            S_(lambda: e.lds("ds_read_b32 v121, v19 offset:128", "yd"))
            S_(mkchk("yd", "YD", "s_cmp_eq_u32 s82, 0", 19, 128, "s_cmp_lg_u32 s82, 0"))
            S_(lambda: [e.lds(f"ds_read_b128 v[{MR+4*g}:{MR+3+4*g}], v4 offset:{g*1024}", "sx") for g in range(4)])
            S_(lambda: [e.lds(f"ds_read_b128 v[{104+4*g if g == 0 else 12}:{107+4*g if g == 0 else 15}], v7 offset:{g*1024}", "sx") for g in range(2)])
            S_(lambda: e.lds("ds_read_b32 v121, v6 offset:64", "sx"))
            S_(nop if NA < 28 else (lambda: [e.lds(f"ds_read_b128 v[{RR+4*q}:{RR+4*q+3}], v117 offset:{512+16*q}", "sx") for q in range(4)]))
            for g in range(4):
                def ux(g=g):
                    if g == 0: e.lg_wait({"sx"})
                    for r in (2*g, 2*g + 1):
                        src = 104 + r if r < 4 else 12 + r - 4
                        e(f"v_lshlrev_b32 v{XR+2*r}, 16, v{src}\nv_and_b32 v{XR+2*r+1}, 0xffff0000, v{src}")
                S_(ux)
            if NA == 28:
                for g in range(4): S_(lambda g=g: [e(f"v_mul_f32 v{RR+r}, v{RR+r}, v{RR+r}") for r in range(4*g, 4*g + 4)])
        if t == ty: S_(lambda: [(recv_one(gg, YV, 42), e.vm.append("ry")) for gg in range(3)])
        if t == tr:
            S_(lambda: [(recv_one(gg, RV, 40), e.vm.append("rv")) for gg in range(3)])
        both_wait(t)
        D, th = t >> 1, t & 1
        bl = b_list(D + 1) if (th == 0 and D + 1 < NPS) else []
        for cb in range(4):
            if th == 0 and cb == 2: e.lg_wait({("B", D, 1)})
            e(mf16(acc + 8*cb + 4*th, areg(t), breg(D) + 4*cb))
            for s, tg in bl[2*cb:2*cb + 2]: e.lds(s, tg)
            if th == 1:
                if cb in (0, 2): a_next(t + dep - 1 + (cb >> 1))
                if side: side.pop(0)()
            elif not bl and side: side.pop(0)()
        if t == NPS - 1: st(e, "ofor")
        if fine > 1 and t in (0, 6, 13, 20, 34, 39, 44, 50): st(e, f"t{t}")
    for f in side: f()
    def recv_check(dst):
        e(f"v_min3_u32 v1, s84, v{dst+3}, v{dst+7}\nv_max3_u32 v2, s84, v{dst+3}, v{dst+7}\nv_min_u32 v1, v1, v{dst+11}\nv_max_u32 v2, v2, v{dst+11}")
        e("v_cmp_eq_u32 vcc, v1, v2\ns_nop 1")
    def recv_finish(dst, sb, tag):
        l = e.newlabel("RV")
        e.vm_wait({tag})
        recv_check(dst)
        e(f"s_cmp_eq_u64 vcc, -1\ns_cbranch_scc1 {l}")
        def body():
            for g in range(3): recv_one(g, dst, sb)
            e("s_waitcnt vmcnt(0)")
            recv_check(dst)
        spin(e, body, "s_cmp_eq_u64 vcc, -1", sleep=1)
        e.label(l)
        for p in range(8): e(f"v_lshlrev_b32 v{dst+16+2*p}, 16, v{dst+4*(p//3)+p%3}\nv_and_b32 v{dst+17+2*p}, 0xffff0000, v{dst+4*(p//3)+p%3}")
    e.lg0()
    st(e, "oloop")
    l = e.newlabel("RX")
    e(f"v_readfirstlane_b32 s82, v121\ns_cmp_eq_u32 s82, 0\ns_cbranch_scc1 {l}")
    e.label(l + "_r")
    slow2.append((l, 6, 64, "s_cmp_lg_u32 s82, 0"))
    e("s_mov_b32 s28, 0xbfb8aa3b\ns_mov_b32 s29, 0xbfb8aa3b\ns_nop 5")
    for g in range(4): e(f"ds_write_b128 v4, v[{OW+16+4*g}:{OW+19+4*g}] offset:{CH + g*1024}")
    pk = lambda op, d, a, b, x="": e(f"v_pk_{op}_f32 v[{d}:{d+1}], v[{a}:{a+1}], {b} {x}".rstrip())
    R2 = range(0, 16, 2)
    O, PB, EX = OW, OW + 16, 24
    recv_finish(YV, 42, "ry")
    for r in R2: pk("add", MR+r, MR+r, f"v[{YV+16+r}:{YV+17+r}]")
    e.lg0()
    e("s_barrier")
    st(e, "fbar")
    for g in range(4): e(f"ds_read_b128 v[{EX+4*g}:{EX+3+4*g}], v5 offset:{CH + g*1024}")
    recv_finish(RV, 40, "rv")
    st(e, "orecv")
    align()
    for r in R2: pk("add", O+r, O+r, f"v[{RV+16+r}:{RV+17+r}]")
    e("s_waitcnt lgkmcnt(0)")
    align()
    for r in R2: pk("add", O+r, O+r, f"v[{EX+r}:{EX+r+1}]")
    for gi in range(fgrp):
        G1_ = [8*cb + 4*gi + r for r2 in (0, 2) for cb in range(2) for r in (r2, r2 + 1)] if fgrp == 2 else list(range(16)); G2_ = G1_[::2]
        for r in G2_: pk("mul", O+r, O+r, f"v[{RR+(r&7)}:{RR+(r&7)+1}]")
        for r in G2_: pk("mul", PB+r, O+r, "s[28:29]")
        for r in G1_: e(f"v_exp_f32 v{PB+r}, v{PB+r}")
        for r in G2_: pk("mul", O+r, O+r, f"v[{MR+r}:{MR+r+1}]")
        for r in G2_: pk("add", PB+r, PB+r, "1.0", "op_sel_hi:[1,0]")
        for r in G1_: e(f"v_rcp_f32 v{PB+r}, v{PB+r}")
        for r in G2_:
            e(f"v_pk_fma_f32 v[{PB+r}:{PB+r+1}], v[{PB+r}:{PB+r+1}], v[{O+r}:{O+r+1}], v[{XR+r}:{XR+r+1}]")
            for rr in (r, r + 1):
                row = 8*((rr >> 2) & 1) + (rr & 3)
                so = "0" if row < 2 else f"s{32 + (row >> 1)}"
                off = (row & 1) * 1792 + (rr >> 3) * 64
                e(f"buffer_store_dword v{PB+rr}, v116, s[16:19], {so} offen" + (f" offset:{off}" if off else "") + " " + outfl)
    e("s_cmp_lg_u32 s5, 15\ns_cbranch_scc1 K_nobump\ns_or_b32 s28, s6, s4\ns_cmp_lg_u32 s28, 0\ns_cbranch_scc1 K_nobump")
    e(f"v_mov_b32 v8, 0\nv_mov_b32 v9, s84\ns_mov_b32 s28, {WS_EP}\ns_mov_b64 exec, 1")
    e("buffer_store_dword v9, v8, s[20:23], s28 offen sc1")
    e("s_mov_b64 exec, -1")
    e.label("K_nobump")
    if pad:
        if padwg >= 0: e(f"s_cmp_lg_u32 s2, {padwg}\ns_cbranch_scc1 K_END")
        e.label("K_pad")
        e(f"s_memrealtime s[28:29]\ns_waitcnt lgkmcnt(0)\ns_sub_u32 s28, s28, s{100 if PADAT else 96}\ns_cmp_lt_u32 s28, {pad}\ns_cbranch_scc1 K_pad")
    st.dump(e); info["F"] = st.names
    e("s_endpgm")
    for l in slow3:
        e.label(l)
        lds_wait(6, 48, "s_cmp_lg_u32 s82, 0", 121, sleep=0)
        for g in range(4): e(f"ds_read_b128 v[{FO+16+4*g}:{FO+19+4*g}], v5 offset:{CH + g*1024}")
        e(f"s_waitcnt lgkmcnt(0)\ns_branch {l}_r")
    for l, addr, off, cond in slow2:
        e.label(l)
        lds_wait(addr, off, cond, 121, sleep=0)
        e(f"s_branch {l}_r")
    e.label("K_csslow")
    spin(e, csbody, "s_cmp_lg_u32 s97, 0")
    e("s_branch K_csok")
    for l, need in slow:
        e.label(l)
        def body():
            e(f"ds_read_b32 v16, v17\ns_waitcnt lgkmcnt(0)\nv_cmp_gt_u32 vcc, {need}, v16\ns_nop 1")
        spin(e, body, "s_cmp_eq_u64 vcc, 0", sleep=0)
        e(f"s_branch {l}_r")

    e.vm = []; e.lg = []
    e.label("K_S")
    st = Stamper(stamps, 143)
    e(f"s_setprio {sprio}")
    common2(); common3()
    e("v_and_b32 v1, 19, v0\nv_bfe_u32 v2, v0, 2, 1\nv_lshl_add_u32 v1, v2, 3, v1\nv_bfe_u32 v2, v0, 3, 1\nv_lshl_add_u32 v1, v2, 2, v1\ns_lshl_b32 s30, s6, 5\nv_add_u32 v1, s30, v1\nv_lshlrev_b32 v1, 1, v1\nv_and_b32 v1, -4, v1")
    e("s_lshl_b32 s30, s91, 7\ns_and_b32 s31, s4, 2\ns_lshl_b32 s31, s31, 5\ns_add_u32 s30, s30, s31\nv_and_b32 v7, 14, v0\nv_lshl_add_u32 v7, v7, 1, s30\nv_mov_b32 v247, 0")
    e(f"v_add_u32 v23, s89, v20\nv_add_u32 v24, {RING}, v20")
    e("s_lshl_b32 s31, s4, 1\nv_xor_b32 v6, s31, v22")
    for jj in range(4):
        e(f"v_xor_b32 v5, {2*jj}, v6\nv_lshl_add_u32 v{10+jj}, v5, 4, v23\nv_add_u32 v{14+jj}, 0x10000, v{10+jj}\nv_lshl_add_u32 v{240+jj}, v5, 4, v24")
    e("s_mov_b32 s94, 0x3f803f80\nv_mov_b32 v34, 0\nv_mov_b32 v35, 0\nv_mov_b32 v36, 0\nv_mov_b32 v37, 0")
    e(f"s_mov_b32 s22, {WS_LIM}\ns_mov_b32 s23, 0x20000\ns_mov_b32 s82, {WS_EP}")
    e(f"v_mov_b32 v18, {FLG}\nv_mov_b32 v19, 1\ns_lshl_b32 s30, s4, 2\ns_add_u32 s30, s30, {FLG}\nv_mov_b32 v20, s30")
    e("s_waitcnt lgkmcnt(0)")
    e("s_mov_b32 s20, s62\ns_and_b32 s21, s63, 0xffff\nv_mov_b32 v138, v1\nv_mov_b32 v139, v7")
    def par_loads():
        e.vmem("global_load_dword v244, v138, s[34:35]", "par")
        e.vmem("global_load_dword v245, v138, s[36:37]", "par")
        e.vmem("global_load_dword v246, v138, s[46:47]", "par")
        e.vmem("global_load_dword v142, v139, s[48:49]", "par")
        e.vmem("global_load_dword v139, v139, s[48:49] offset:32", "par")
        e(f"s_mov_b32 s82, {WS_EP}\ns_mov_b64 exec, 1")
        e.vmem("buffer_load_dword v247, v247, s[20:23], s82 offen sc1", "par")
        e("s_mov_b64 exec, -1")
    if not late: par_loads()
    if tlb:
        e("s_cmp_lg_u32 s4, 0\ns_cbranch_scc1 K_notlb\nv_mov_b32 v140, 0\ns_mov_b64 exec, 1")
        for p in (52, 54, 56, 42, 44): e(f"global_load_dword v141, v140, s[{p}:{p+1}]")
        if tlb > 1:
            e(f"s_mul_i32 s30, s5, {128*1792}\nv_mov_b32 v251, s30\nglobal_load_dword v141, v251, s[58:59]")
            e(f"s_mul_i32 s30, s5, {2*A_W}\nbuffer_load_dword v141, v140, s[20:23], s30 offen\ns_mul_i32 s30, s5, {4*A_W}\ns_add_u32 s30, s30, {WS_AO}\nbuffer_load_dword v141, v140, s[20:23], s30 offen")
            e(f"s_mul_i32 s30, s5, {14*32768}\ns_add_u32 s30, s30, {WS_PX}\nbuffer_load_dword v141, v140, s[20:23], s30 offen")
        e("s_mov_b64 exec, -1")
        e.label("K_notlb")
    if direct:
        rho()
        e("s_sub_u32 s30, s91, s7\ns_cselect_b32 s10, 7, 0\ns_add_u32 s30, s30, s10")
    else:
        rot_off(30)
        e("s_sub_u32 s30, 7, s30\ns_cmp_ge_u32 s30, 7\ns_cselect_b32 s30, 0, s30")
    e(f"s_lshl_b32 s30, s30, 14\ns_lshl_b32 s31, s85, 13\ns_add_u32 s30, s30, s31\ns_and_b32 s31, s4, 1\ns_lshl_b32 s31, s31, 12\ns_add_u32 s30, s30, s31")
    e("v_lshrrev_b32 v4, 2, v0\nv_lshrrev_b32 v5, 3, v0\nv_lshlrev_b32 v4, 7, v4\nv_bfe_u32 v7, v0, 1, 1")
    e("s_and_b32 s31, s4, 2\ns_lshl_b32 s31, s31, 1\nv_add_u32 v7, s31, v7\nv_xor_b32 v7, v7, v5\nv_lshl_add_u32 v4, v7, 4, v4\nv_and_b32 v7, 1, v0\nv_lshl_add_u32 v4, v7, 3, v4\nv_add_u32 v254, s30, v4\nv_xor_b32 v255, 32, v254")
    e("v_lshlrev_b32 v8, 4, v7\nv_xor_b32 v8, 16, v8")
    e("s_bitcmp1_b32 s4, 0\ns_cselect_b64 s[64:65], -1, 0")
    e("s_bitcmp1_b32 s4, 1\ns_cselect_b64 s[66:67], -1, 0\ns_mov_b32 s68, 0\ns_mov_b32 s69, -1")
    e("s_lshr_b32 s87, s4, 1\ns_lshl_b32 s73, s85, 6")
    K = []
    def k_(s): K.extend(s.split("\n"))
    for r in (244, 245, 246, 142, 139): k_(f"v_lshlrev_b32 v{r}, v8, v{r}\nv_and_b32 v{r}, 0xffff0000, v{r}")
    k_(f"v_mul_f32 v246, {LOG2E}, v246\nv_exp_f32 v246, v246\ns_nop 0\nv_cvt_pk_bf16_f32 v246, v246, v246\nv_and_b32 v246, 0xffff0000, v246")
    k_(f"v_mul_f32 v5, v246, v244\nv_mul_f32 v6, v246, v245\nv_mul_f32 v5, {LOG2E}, v5\nv_exp_f32 v5, v5")
    k_("v_mul_f32 v6, 0.15915494, v6\nv_rndne_f32 v9, v6\nv_sub_f32 v6, v6, v9\nv_cos_f32 v22, v6\nv_sin_f32 v23, v6\ns_nop 0")
    k_("v_mul_f32 v22, v22, v5\nv_mul_f32 v23, v23, v5")
    k_("v_mul_f32 v5, v244, v244\nv_fma_f32 v5, v245, v245, v5\nv_rcp_f32 v5, v5\nv_add_f32 v6, -1.0, v22")
    k_("v_mul_f32 v30, v6, v244\nv_fma_f32 v30, v23, v245, v30\nv_mul_f32 v31, v23, v244\nv_fma_f32 v31, -v6, v245, v31")
    k_("v_add_f32 v5, v5, v5\nv_mul_f32 v30, v30, v5\nv_mul_f32 v31, v31, v5\nv_xor_b32 v33, 0x80000000, v23")
    def csq(d, s): k_(f"v_mul_f32 v9, v{s}, v{s+1}\nv_mul_f32 v{d}, v{s}, v{s}\nv_fma_f32 v{d}, -v{s+1}, v{s+1}, v{d}\nv_add_f32 v{d+1}, v9, v9")
    def pwmul(mask):
        k_(f"v_cndmask_b32 v5, 1.0, v26, {mask}\nv_cndmask_b32 v6, 0, v27, {mask}")
        k_("v_mul_f32 v9, v28, v6\nv_mul_f32 v28, v28, v5\nv_fma_f32 v28, -v29, v6, v28\nv_fma_f32 v29, v29, v5, v9")
    csq(24, 22); csq(24, 24); csq(24, 24); csq(24, 24)
    k_("v_cndmask_b32 v28, 1.0, v24, s[68:69]\nv_cndmask_b32 v29, 0, v25, s[68:69]")
    csq(26, 24); pwmul("s[64:65]"); csq(26, 26); pwmul("s[66:67]"); csq(26, 26); csq(136, 26)
    QR, QI = 104, 120
    for j in range(16):
        pr, pi = (30, 31) if j == 0 else (QR + j - 1, QI + j - 1)
        k_(f"v_mul_f32 v{QR+j}, v22, v{pr}\nv_mul_f32 v{QI+j}, v22, v{pi}\nv_fmac_f32 v{QR+j}, v33, v{pi}\nv_fmac_f32 v{QI+j}, v23, v{pr}")
    k_("v_xor_b32 v31, 0x80000000, v31\nv_xor_b32 v32, 0x80000000, v30")
    UR, UI = 40, 56
    SF = [144, 192]
    def sreads(sg):
        fs = SF[sg & 1]; out = []
        for j in range(4):
            xb = (10 + j) if sg < 4 else (14 + j)
            out += [f"ds_read_b128 v[{fs+12*j}:{fs+12*j+3}], v{xb} offset:{(sg & 3)*CH}",
                    f"ds_read_b128 v[{fs+12*j+4}:{fs+12*j+7}], v{240+j} offset:{(sg % NR)*8192}",
                    f"ds_read_b128 v[{fs+12*j+8}:{fs+12*j+11}], v{240+j} offset:{(sg % NR)*8192+4096}"]
        return out
    def dots(fs):
        for j in range(4):
            for q in range(4): e(f"v_dot2c_f32_bf16 v37, v{fs+12*j+q}, v{fs+12*j+q}\nv_dot2c_f32_bf16 v36, s94, v{fs+12*j+q}")
        for q in range(4): e(f"v_dot2c_f32_bf16 v34, s94, v{fs+4+q}\nv_dot2c_f32_bf16 v35, s94, v{fs+8+q}")
    Z = []
    def z_(s): Z.extend(s.split("\n"))
    z_("v_mov_b32 v1, v36\nv_mov_b32 v2, v37\ns_nop 1")
    z_("v_permlane32_swap_b32 v36, v1\nv_permlane32_swap_b32 v37, v2\nv_permlane32_swap_b32 v34, v35\ns_nop 1")
    z_("v_add_f32 v34, v34, v35\nv_add_f32 v36, v36, v1\nv_add_f32 v37, v37, v2\nds_write_b32 v248, v34")
    z_("v_mul_f32 v36, 0x3b124925, v36\nv_mul_f32 v37, 0x3b124925, v37")
    z_("v_fma_f32 v37, -v36, v36, v37\nv_max_f32 v37, 0, v37\nv_cvt_pk_bf16_f32 v1, v37, v36")
    z_("v_and_b32 v36, 0xffff0000, v1\nv_lshlrev_b32 v37, 16, v1\nv_add_f32 v37, 0x3727c5ac, v37")
    z_("v_cvt_pk_bf16_f32 v37, v37, v37\nv_and_b32 v37, 0xffff0000, v37\nv_sqrt_f32 v37, v37\ns_nop 0")
    z_("v_cvt_pk_bf16_f32 v37, v37, v37\nv_and_b32 v37, 0xffff0000, v37\nv_rcp_f32 v37, v37\ns_nop 0")
    z_("v_cndmask_b32 v36, v36, v37, s[68:69]\nds_write_b32 v249, v36")
    mark0 = len(e.l)
    SEL = 72
    tau_of_lane(e, 1, 2)
    e("v_lshlrev_b32 v2, 4, v21\nv_sub_u32 v1, v1, v2\nv_and_b32 v2, 1, v1\nv_lshlrev_b32 v2, 4, v2\nv_mov_b32 v4, 0x3f80\nv_lshlrev_b32 v2, v2, v4\nv_ashrrev_i32 v1, 1, v1")
    for q in range(0, 8, 2):
        e(f"v_cmp_eq_u32 vcc, {q}, v1\nv_cmp_eq_u32 s[70:71], {q+1}, v1\ns_nop 0\nv_cndmask_b32 v{SEL+q}, 0, v2, vcc\nv_cndmask_b32 v{SEL+q+1}, 0, v2, s[70:71]")
    e(f"s_lshl_b32 s72, s4, 2\ns_add_u32 s72, s72, {CSB}\nv_lshl_add_u32 v248, v0, 4, s72")
    tau_of_lane(e, 249, 2)
    e(f"s_lshl_b32 s72, s4, 7\ns_add_u32 s72, s72, {STAT}\nv_lshl_add_u32 v249, v249, 2, s72\nv_lshl_add_u32 v249, v21, 9, v249\nv_lshl_add_u32 v3, v21, 6, s72")
    e(f"v_and_b32 v250, 31, v0\nv_lshlrev_b32 v250, 4, v250\nv_add_u32 v250, {CSB}, v250")
    K0 = []
    if strim:
        K0 = [x.strip() for x in e.l[mark0:]]; del e.l[mark0:]
        na = len(K0) - 17
        K = K[:60] + K0[na:] + K[60:]; K0 = K0[:na]
    st(e, "b0")
    e("s_barrier")
    for x in sreads(0): e(x)
    if late: par_loads()
    ks = 2 if late else 1
    for sg in range(7):
        fs = SF[sg & 1]
        if sg == ks:
            e.vm_wait({"par"})
            e("v_readfirstlane_b32 s84, v247\ns_add_u32 s84, s84, 1\ns_max_u32 s84, s84, 1")
            e(f"s_getreg_b32 s74, hwreg(HW_REG_XCC_ID, 0, 4)\ns_lshl_b32 s78, s5, 1\ns_add_u32 s78, s78, s85\ns_lshl_b32 s78, s78, 10\ns_add_u32 s78, s78, {WS_FH}\ns_add_u32 s75, s78, {WS_XID - WS_FH}")
            e("s_cmp_lg_u32 s4, 0\ns_cbranch_scc1 K_noxid")
            e("s_lshl_b32 s31, s91, 7\nv_mov_b32 v251, s31\nv_mov_b32 v252, s74\nv_mov_b32 v253, s84\ns_mov_b64 exec, 1")
            e("buffer_store_dwordx2 v[252:253], v251, s[20:23], s75 offen sc1\ns_mov_b64 exec, -1")
            e.label("K_noxid")
        e.lg0()
        if sg == 6:
            for j in range(4): e(f"ds_read_b64_tr_b16 v[{208+2*j}:{209+2*j}], v{254 + (j >> 1)} offset:{(j & 1)*2048}")
            dots(fs)
            e.lg0()
        st(e, f"b{sg+1}")
        e("s_barrier")
        rd = sreads(sg + 1) if sg < 6 else []
        ordr = [(j, x) for j in range(4) for x in range(2)] if not sch else [(j, x ^ (sg & 1)) for x in range(2) for j in range(4)]
        for j, x_ in ordr:
            for acc, o in (((UR, 4), (UI, 8))[x_],):
                e(mfma(acc, fs+12*j, fs+12*j+o, sg == 0 and j == 0))
                for x in rd[:2]: e(x)
                nk = kint if rd else 4
                rd = rd[2:]
                for _ in range(nk):
                    if sg == 6:
                        if Z: e(Z.pop(0))
                    elif K0: e(K0.pop(0))
                    elif sg >= ks and K: e(K.pop(0))
        if sg < 6: dots(fs)
    for x in Z: e(x)
    gen = [0]
    def ssync(extra=None):
        gen[0] += 1
        e("s_mov_b64 exec, 1\nds_add_u32 v18, v19 offset:80\ns_mov_b64 exec, -1")
        def body():
            e("ds_read_b32 v1, v18 offset:80")
            if extra: extra()
            e("s_waitcnt lgkmcnt(0)\nv_readfirstlane_b32 s82, v1")
        spin(e, body, f"s_cmp_ge_u32 s82, {4*gen[0]}", sleep=ssl)
        e.lg = []
    def wait_prog(n):
        def body():
            e("ds_read_b128 v[4:7], v18\ns_waitcnt lgkmcnt(0)\nv_min_u32 v4, v4, v5\nv_min3_u32 v4, v4, v6, v7\ns_nop 0\nv_readfirstlane_b32 s82, v4")
        spin(e, body, f"s_cmp_ge_u32 s82, {n}", sleep=wsl)
        e.lg = []
    M, R = 144, 160
    e(f"s_setprio {sprio2}")
    if sidle:
        def body():
            e("s_sleep 8\nds_read_b128 v[4:7], v18\ns_waitcnt lgkmcnt(0)\nv_min_u32 v4, v4, v5\nv_min3_u32 v4, v4, v6, v7\ns_nop 0\nv_readfirstlane_b32 s82, v4")
        spin(e, body, "s_cmp_ge_u32 s82, 7", sleep=1)
    TMP = 192
    for q in range(4): e(f"ds_read_b128 v[{M+4*q}:{M+4*q+3}], v3 offset:{16*q}")
    for q in range(4): e(f"ds_read_b128 v[{R+4*q}:{R+4*q+3}], v3 offset:{512+16*q}")
    e(f"s_lshl_b32 s30, s4, 9\ns_add_u32 s30, s30, {SUB}\nv_lshl_add_u32 v2, v0, 3, s30\nv_add_u32 v3, {7*256}, v2")
    ssync(lambda: e(f"ds_read_b128 v[{TMP}:{TMP+3}], v250\nds_read_b128 v[{TMP+4}:{TMP+7}], v250 offset:512"))
    st(e, "ss1")
    t = TMP
    e(f"v_add_f32 v{t}, v{t}, v{t+1}\nv_add_f32 v{t+2}, v{t+2}, v{t+3}\nv_add_f32 v{t+4}, v{t+4}, v{t+5}\nv_add_f32 v{t+6}, v{t+6}, v{t+7}\nv_add_f32 v34, -v{t}, -v{t+2}\nv_add_f32 v35, -v{t+4}, -v{t+6}")
    for j in range(16): e(f"v_fmac_f32 v{UR+j}, v34, v{M+j}\nv_fmac_f32 v{UI+j}, v35, v{M+j}")
    for j in range(16): e(f"v_mul_f32 v{UR+j}, v{UR+j}, v{R+j}\nv_mul_f32 v{UI+j}, v{UI+j}, v{R+j}")
    st(e, "fold")
    for j in range(1, 16):
        e(f"v_fmac_f32 v{UR+j}, v22, v{UR+j-1}\nv_fmac_f32 v{UI+j}, v22, v{UI+j-1}\nv_fmac_f32 v{UR+j}, v33, v{UI+j-1}\nv_fmac_f32 v{UI+j}, v23, v{UR+j-1}")
    st(e, "scan")
    e(f"ds_write2_b32 v3, v{UR+15}, v{UI+15} offset1:1")
    def step(dr, di, hr, hi, ur, ui, lr, li):
        e(f"v_fma_f32 v{dr}, v{lr}, v{hr}, v{ur}\nv_fma_f32 v{di}, v{lr}, v{hi}, v{ui}")
        e(f"v_fma_f32 v{dr}, -v{li}, v{hi}, v{dr}\nv_fma_f32 v{di}, v{li}, v{hr}, v{di}")
    def rdsub():
        for d in range(7): e(f"ds_read_b64 v[{TMP+2*d}:{TMP+1+2*d}], v2 offset:{d*256}")
    ssync(rdsub)
    st(e, "ss")
    for d in range(1, 7):
        dd = (38, 39) if d == 6 else (TMP + 2*d, TMP + 1 + 2*d)
        step(dd[0], dd[1], TMP - 2 + 2*d, TMP - 1 + 2*d, TMP + 2*d, TMP + 1 + 2*d, 24, 25)
    e("s_cmp_lg_u32 s4, 3\ns_cbranch_scc1 K_nopub")
    step(TMP, TMP + 2, 38, 39, UR + 15, UI + 15, 24, 25)
    e(f"v_mov_b32 v{TMP+1}, s84\nv_mov_b32 v{TMP+3}, s84")
    e(f"s_lshl_b32 s30, s6, 4\ns_add_u32 s30, s30, s5\ns_lshl_b32 s30, s30, 9\ns_add_u32 s30, s30, {WS_AGG - 512}")
    e("v_lshlrev_b32 v1, 4, v0\ns_mov_b32 exec_lo, 0")
    e(f"buffer_store_dwordx4 v[{TMP}:{TMP+3}], v1, s[20:23], s30 offen sc1")
    e("s_mov_b32 exec_lo, -1")
    e.label("K_nopub")
    st(e, "pub")
    e(f"s_mul_i32 s76, s5, {2*A_W}\ns_lshl_b32 s30, s6, 13\ns_add_u32 s76, s76, s30\ns_lshl_b32 s30, s4, 10\ns_add_u32 s76, s76, s30\ns_add_u32 s76, s76, {WS_AY}\ns_add_u32 s77, s76, {A_W}")
    if bulk & 2:
        e(f"v_and_b32 v1, 7, v0\nv_lshlrev_b32 v1, 7, v1\nv_bfe_u32 v2, v0, 3, 1\nv_lshl_add_u32 v1, v2, 12, v1\nv_bfe_u32 v2, v0, 4, 1\nv_mul_u32_u24 v2, {A_W}, v2\nv_add_u32 v1, v1, v2")
        e(f"s_mov_b32 exec_hi, 0\nbuffer_load_dword v252, v1, s[20:23], s76 offen {tfl}\ns_mov_b32 exec_hi, -1")
    def touch_hh():
        e(f"s_lshl_b32 s30, s5, 2\ns_add_u32 s30, s30, s4\ns_mul_i32 s30, s30, {A_W}\ns_lshl_b32 s31, s6, 13\ns_add_u32 s30, s30, s31\ns_add_u32 s30, s30, {WS_AO}\nv_lshlrev_b32 v253, 7, v0")
        e(f"buffer_load_dword v253, v253, s[20:23], s30 offen {tfl}")
    if (bulk & 1) and tpos == 0: touch_hh()
    for x in K: e(x)
    GR, GI = 144, 160
    for j in range(16):
        e(f"v_mul_f32 v{GR+j}, v30, v{UR+j}\nv_mul_f32 v{GI+j}, v32, v{UI+j}\nv_fmac_f32 v{GR+j}, v31, v{UI+j}\nv_fmac_f32 v{GI+j}, v31, v{UR+j}")
    AG = 40
    st(e, "g")
    for i in range(8):
        if i: e(f"s_cmp_ge_u32 s5, {16 - 2*i}\ns_cbranch_scc1 K_agi")
        e(f"v_mov_b32 v{AG+4*i}, 0\nv_mov_b32 v{AG+4*i+1}, s84\nv_mov_b32 v{AG+4*i+2}, 0\nv_mov_b32 v{AG+4*i+3}, s84")
    e.label("K_agi")
    e(f"s_lshl_b32 s90, s6, 11\ns_lshl_b32 s30, s4, 8\ns_add_u32 s90, s90, s30\ns_add_u32 s90, s90, {WS_CS}")
    e("v_and_b32 v34, 31, v0\nv_lshlrev_b32 v34, 3, v34\nv_lshl_add_u32 v34, v21, 10, v34")
    def cs_loads():
        e("buffer_load_dwordx2 v[8:9], v34, s[20:23], s90 offen sc1\nbuffer_load_dwordx2 v[140:141], v35, s[20:23], s75 offen sc1")
    cs_chk = "v_cmp_eq_u32 vcc, s84, v9\nv_cmp_eq_u32 s[28:29], s84, v141\ns_nop 1\ns_and_b64 vcc, vcc, s[28:29]"
    e("v_min_u32 v35, 6, v0\nv_lshlrev_b32 v35, 7, v35")
    cs_loads()
    e(f"s_lshl_b32 s30, s91, 7\ns_add_u32 s30, s30, s78\nv_mul_u32_u24 v1, {WS_FO - WS_FH}, v21")
    e("s_mov_b32 exec_lo, 1\ns_mov_b32 exec_hi, 1\nbuffer_load_dword v251, v1, s[20:23], s30 offen sc1\ns_mov_b64 exec, -1")
    e(f"s_lshl_b32 s92, s6, 4\ns_add_u32 s92, s92, s5\ns_lshl_b32 s92, s92, 9\ns_add_u32 s92, s92, {WS_AGG - 8192}\ns_add_u32 s93, s92, 4096\nv_lshlrev_b32 v3, 4, v0")
    def agg_loads(fl=' sc1'):
        for i in range(8):
            l = e.newlabel("AL")
            e(f"s_cmp_lt_u32 s5, {15 - 2*i}\ns_cbranch_scc1 {l}")
            e(f"s_cmp_ge_u32 s5, {16 - 2*i}\ns_cselect_b32 exec_lo, -1, 0")
            e(f"buffer_load_dwordx4 v[{AG+4*i}:{AG+4*i+3}], v3, s[20:23], s{92 + (i >> 2)} offen offset:{1024*(i & 3)}{fl}")
            e.label(l)
        e("s_mov_b32 exec_lo, -1")
    if not adel: agg_loads('' if ag1 else ' sc1')
    st(e, "aggi")
    if (bulk & 1) and tpos == 1: touch_hh()
    def rnd(b):
        for r in range(0, 16, 2): e(f"v_cvt_pk_bf16_f32 v{b+r}, v{b+r}, v{b+r+1}")
        for r in range(0, 16, 2): e(f"v_and_b32 v{b+r+1}, 0xffff0000, v{b+r}\nv_lshlrev_b32 v{b+r}, 16, v{b+r}")
    mark = len(e.l)
    if xne:
        XR, MR, RR = 176, 192, 200
        e(f"s_lshl_b32 s29, s85, 6\ns_and_b32 s31, s4, 1\ns_lshl_b32 s31, s31, 5\ns_add_u32 s29, s29, s31\ns_lshl_b32 s29, s29, 2\ns_add_u32 s29, s29, {STAT}\nv_lshl_add_u32 v4, v21, 4, s29\nv_and_b32 v5, 16, v0\nv_lshl_add_u32 v4, v5, 2, v4")
        for q in range(2):
            e(f"ds_read_b128 v[{MR+4*q}:{MR+4*q+3}], v4 offset:{32*q}\nds_read_b128 v[{RR+4*q}:{RR+4*q+3}], v4 offset:{512+32*q}")
        for r in range(8): e(f"v_lshlrev_b32 v{XR+2*r}, 16, v{208+r}\nv_and_b32 v{XR+2*r+1}, 0xffff0000, v{208+r}")
        e.lg0()
        for r in range(16): e(f"v_sub_f32 v{XR+r}, v{XR+r}, v{MR+(r&7)}")
        rnd(XR)
        for r in range(16): e(f"v_mul_f32 v{XR+r}, v{XR+r}, v{RR+(r&7)}")
        rnd(XR)
        for r in range(16): e(f"v_mul_f32 v{XR+r}, v{XR+r}, v{142 if r < 8 else 139}")
        for r in range(8): e(f"v_cvt_pk_bf16_f32 v{216+r}, v{XR+2*r}, v{XR+2*r+1}")
    blk = e.l[mark:]; del e.l[mark:]
    cutp = len(blk) * min(xne, 4) // 4
    e.l += blk[:cutp]
    if adel: agg_loads('' if ag1 else ' sc1')
    e.l += blk[cutp:]
    e.vm0()
    st(e, "aggl")
    e("s_mov_b32 s95, 0")
    e.label("K_horner")
    e(f"v_min3_u32 v1, s84, v{AG+1}, v{AG+3}\nv_max3_u32 v2, s84, v{AG+1}, v{AG+3}")
    for i in range(1, 8):
        b = AG + 4*i
        src = (AG, AG + 2) if i == 1 else ((4, 5) if i % 2 == 0 else (6, 7))
        dst = (4, 5) if i % 2 == 1 else (6, 7)
        step(dst[0], dst[1], src[0], src[1], b, b + 2, 136, 137)
        e(f"v_min3_u32 v1, v1, v{b+1}, v{b+3}\nv_max3_u32 v2, v2, v{b+1}, v{b+3}")
    e("v_cmp_eq_u32 vcc, v1, v2\nv_mov_b32 v6, v4\nv_mov_b32 v7, v5\ns_cmp_eq_u64 vcc, -1\ns_cbranch_scc1 K_hok")
    e(f"s_add_u32 s95, s95, 1\ns_cmp_ge_u32 s95, {SPIN_MAX}\ns_cbranch_scc1 K_hok")
    if lp:
        e(f"s_lshl_b32 s30, s6, 13\ns_add_u32 s30, s30, {WS_AGG + 508}\ns_sub_u32 s31, s5, 1\nv_min_u32 v1, s31, v0\nv_lshlrev_b32 v1, 9, v1\ns_mov_b64 exec, 0xffff")
        e.label("K_lp")
        e(f"s_sleep 2\nbuffer_load_dword v2, v1, s[20:23], s30 offen sc1\ns_add_u32 s95, s95, 1\ns_waitcnt vmcnt(0)\nv_cmp_eq_u32 vcc, s84, v2\ns_cmp_ge_u32 s95, {SPIN_MAX}\ns_cbranch_scc1 K_lpx\ns_cmp_eq_u64 vcc, exec\ns_cbranch_scc0 K_lp")
        e.label("K_lpx")
        e("s_mov_b64 exec, -1")
    else: e("s_sleep 4")
    agg_loads()
    e("s_waitcnt vmcnt(0)\ns_branch K_horner")
    e.label("K_hok")
    st(e, "look")
    e("v_permlane32_swap_b32 v4, v6\nv_permlane32_swap_b32 v5, v7\ns_nop 0")
    step(6, 7, 4, 5, 6, 7, 26, 27)
    step(38, 39, 6, 7, 38, 39, 28, 29)
    e("v_xor_b32 v36, 0x80000000, v38\nv_xor_b32 v37, 0x80000000, v39")
    for j in range(0, 16, 2):
        for x in (j, j + 1):
            e(f"v_fmac_f32 v{GR+x}, v38, v{QR+x}\nv_fmac_f32 v{GI+x}, v37, v{QR+x}\nv_fmac_f32 v{GR+x}, v37, v{QI+x}\nv_fmac_f32 v{GI+x}, v36, v{QI+x}")
        e(f"v_cvt_pk_bf16_f32 v{40+j//2}, v{GR+j}, v{GR+j+1}\nv_cvt_pk_bf16_f32 v{48+j//2}, v{GI+j}, v{GI+j+1}")
    st(e, "fin")
    e("s_setprio 3")
    e(mfma(104, 40, SEL, True)); e(mfma(120, 48, SEL, True)); e(mfma(104, 44, SEL + 4)); e(mfma(120, 52, SEL + 4))
    e(f"s_setprio {sprio2}")
    e("s_add_u32 s30, s76, 4096\ns_add_u32 s31, s77, 4096\ns_nop 7")
    for r in range(16): e(f"v_cvt_pk_bf16_f32 v{56+r}, v{104+2*r}, v{105+2*r}")
    st(e, "ht")
    def do_hst():
        e("s_add_u32 s30, s76, 4096\ns_add_u32 s31, s77, 4096")
        dual([f"buffer_store_dwordx4 v[56:59], v3, s[20:23], s76 offen", "buffer_store_dwordx4 v[60:63], v3, s[20:23], s30 offen",
                f"buffer_store_dwordx4 v[64:67], v3, s[20:23], s77 offen", "buffer_store_dwordx4 v[68:71], v3, s[20:23], s31 offen"], "h", bulk & 2)
        st(e, "hst")
    if not (bulk & 2): do_hst()
    e(cs_chk + "\ns_cmp_eq_u64 vcc, -1\ns_cbranch_scc1 K_cs_ok")
    def body():
        cs_loads()
        e("s_waitcnt vmcnt(0)\n" + cs_chk)
    spin(e, body, "s_cmp_eq_u64 vcc, -1", sleep=2)
    e.label("K_cs_ok")
    e("v_cmp_eq_u32 vcc, s74, v140")
    e(f"s_lshl_b32 s30, s4, 8\ns_add_u32 s30, s30, {CSW}\nv_lshl_add_u32 v1, v0, 2, s30")
    e("s_cmp_eq_u64 vcc, -1\ns_cselect_b32 s97, 2, 1")
    if force: e(f"s_mov_b32 s97, {force}")
    e("v_mov_b32 v2, s97\nds_write_b32 v1, v8\nds_write_b32 v20, v2 offset:16")
    if bulk & 2: do_hst()
    e("v_lshrrev_b32 v14, 4, v0\nv_and_b32 v15, 15, v0\nv_bfe_u32 v10, v0, 1, 3\nv_xor_b32 v10, v10, v14\nv_lshlrev_b32 v10, 4, v10\nv_lshl_add_u32 v10, v15, 7, v10")
    e(f"s_mul_i32 s30, s87, {CH + 8192}\ns_add_u32 s30, s30, {C0}\nv_add_u32 v10, s30, v10\nv_xor_b32 v11, 64, v10\nv_xor_b32 v12, 0x4000, v10\nv_xor_b32 v13, 0x4000, v11")
    e("s_lshl_b32 s30, s91, 7\ns_lshl_b32 s31, s4, 2\ns_add_u32 s31, s31, s30\nv_mov_b32 v4, s31\nv_mov_b32 v5, s84")
    e.vm_wait({"h"})
    e("s_mov_b64 exec, 1")
    dual(["buffer_store_dword v5, v4, s[20:23], s78 offen"], "fl")
    e("s_mov_b64 exec, -1")
    st(e, "hflag")
    if (bulk & 1) and tpos == 2: touch_hh()
    if rb_y:
        e("s_add_u32 s30, s76, 4096\ns_add_u32 s31, s77, 4096")
        for g, sr in enumerate((76, 30, 77, 31)): e(f"buffer_load_dwordx4 v[{24+4*g}:{27+4*g}], v3, s[20:23], s{sr} offen sc1")
    e(f"s_lshl_b32 s92, s5, 1\ns_add_u32 s92, s92, s87\ns_mul_i32 s92, s92, {A_W}\ns_add_u32 s92, s92, {WS_AY}\ns_lshl_b32 s30, s85, 13\ns_add_u32 s93, s92, s30\ns_add_u32 s93, s93, {3*CH}\ns_lshl_b32 s30, s85, 16\ns_add_u32 s92, s92, s30")
    e("v_and_b32 v8, 7, v0\nv_min_u32 v8, 6, v8\nv_lshlrev_b32 v8, 7, v8\nv_and_b32 v1, 8, v0\nv_add_u32 v8, v8, v1\ns_and_b32 s30, s4, 1\ns_lshl_b32 s31, s30, 2\nv_add_u32 v8, s31, v8")
    e("s_lshl_b32 s30, s30, 10\ns_lshl_b32 s31, s85, 11\ns_add_u32 s30, s30, s31\nv_lshlrev_b32 v23, 12, v21\nv_and_b32 v14, 1, v14\nv_lshl_add_u32 v23, v14, 9, v23\nv_lshl_add_u32 v23, v15, 4, v23\nv_add_u32 v23, s30, v23\nv_xor_b32 v22, 0x800, v23")
    e(f"s_mul_i32 s76, s5, 7\ns_add_u32 s76, s76, s91\ns_lshl_b32 s76, s76, 1\ns_add_u32 s76, s76, s85\ns_lshl_b32 s76, s76, 2\ns_add_u32 s76, s76, s4\ns_xor_b32 s77, s76, 4\ns_mul_i32 s77, s77, {pxs}\ns_add_u32 s77, s77, {WS_PX}")
    def creg(D): return 144 + 16 * D
    def c_list(r):
        out = []
        for D in range(4*r, min(7, 4*r + 4)):
            if D == 6: out += [f"v_xor_b32 v{j}, s73, v{j}" for j in (10, 12)]
            for cb in range(4):
                g = creg(D) + 4*cb
                out.append(f"ds_read_b128 v[{g}:{g+3}], v{10 + 2*(cb >> 1) + (D & 1)} offset:{r*2*CH + ((D >> 1) & 1)*4096 + (cb & 1)*2048}")
        return out
    if not xne:
        for r in range(8): e(f"v_mov_b32 v{56+r}, v{208+r}")
    else:
        for r in range(8): e(f"v_mov_b32 v{56+r}, v{208+r}\nv_mov_b32 v{128+r}, v{216+r}")
    st(e, "xn")
    def pull0():
        if lin:
            def body():
                e("ds_read_b128 v[4:7], v18 offset:144\ns_waitcnt lgkmcnt(0)\nv_min_u32 v4, v4, v5\nv_min3_u32 v4, v4, v6, v7\ns_nop 0\nv_readfirstlane_b32 s82, v4")
            spin(e, body, "s_cmp_lg_u32 s82, 0", sleep=wsl)
        else: wait_prog(6)
        for x in c_list(0): e(x)
        e("s_waitcnt lgkmcnt(0)\ns_mov_b64 exec, 1\nds_add_u32 v18, v19 offset:88")
        st(e, "c0")
        e("s_mov_b64 exec, -1")
    if not pf: pull0()
    e("s_mov_b64 exec, 0xffff")
    def body():
        e("buffer_load_dword v9, v8, s[20:23], s78 offen sc1\ns_waitcnt vmcnt(0)\nv_cmp_eq_u32 vcc, s84, v9\ns_nop 1")
    spin(e, body, "s_cmp_eq_u64 vcc, exec", sleep=hsl)
    e("s_mov_b64 exec, -1")
    e.vm = []
    st(e, "hseen")
    NP = 8
    ypre = min(ypre, NP - 1 if not deep else 20)
    YA = [64, 96]
    def yreg(t):
        if not deep: return 24 + 4*(t % NP)
        if t < 4: return 24 + 4*t
        if t < 12: return creg(4) + 4*(t - 4)
        if t < 16: return 40 + 4*(t - 12)
        if t < 20: return creg(6) + 4*(t - 16)
        return 24 + 4*(t - 20)
    def ymap(t):
        if not ych or t >= 24: return t >> 2, t & 3
        return 2*(t >> 3) + (t & 1), (t >> 1) & 3
    def yissue(t):
        D, qd = ymap(t)
        if ych:
            if t == 0: e("s_add_u32 s90, s92, 8192")
            elif t == 24: e("s_mov_b32 s92, s93")
            elif (t & 7) == 0: e("s_add_u32 s92, s92, 16384\ns_add_u32 s90, s90, 16384")
        elif (t & 3) == 0 and D > 0: e("s_mov_b32 s92, s93" if D == 6 else "s_add_u32 s92, s92, 8192")
        e.vmem(f"buffer_load_dwordx4 v[{yreg(t)}:{yreg(t)+3}], v{22 + (qd >> 1)}, s[20:23], s{90 if (ych and D & 1) else 92} offen offset:{(qd & 1)*256} sc1", ("A", t))
    if ypre:
        if ywait > 6: wait_prog(ywait)
        for t in range(ypre):
            yissue(t)
            if ysl2 and t >= 3: e(f"s_sleep {ysl2}")
    if pf: pull0()
    if not xne:
        XR, MR, RR = 64, 80, 88
        e(f"s_lshl_b32 s29, s85, 6\ns_and_b32 s31, s4, 1\ns_lshl_b32 s31, s31, 5\ns_add_u32 s29, s29, s31\ns_lshl_b32 s29, s29, 2\ns_add_u32 s29, s29, {STAT}\nv_lshl_add_u32 v4, v21, 4, s29\nv_and_b32 v5, 16, v0\nv_lshl_add_u32 v4, v5, 2, v4")
        for q in range(2):
            e(f"ds_read_b128 v[{MR+4*q}:{MR+4*q+3}], v4 offset:{32*q}\nds_read_b128 v[{RR+4*q}:{RR+4*q+3}], v4 offset:{512+32*q}")
        for r in range(8): e(f"v_lshlrev_b32 v{XR+2*r}, 16, v{56+r}\nv_and_b32 v{XR+2*r+1}, 0xffff0000, v{56+r}")
        e.lg0()
        for r in range(16): e(f"v_sub_f32 v{XR+r}, v{XR+r}, v{MR+(r&7)}")
        rnd(XR)
        for r in range(16): e(f"v_mul_f32 v{XR+r}, v{XR+r}, v{RR+(r&7)}")
        rnd(XR)
        for r in range(16): e(f"v_mul_f32 v{XR+r}, v{XR+r}, v{142 if r < 8 else 139}")
        for r in range(8): e(f"v_cvt_pk_bf16_f32 v{128+r}, v{XR+2*r}, v{XR+2*r+1}")
    def body():
        e("ds_read_b128 v[4:7], v18 offset:32\ns_waitcnt lgkmcnt(0)\nv_min_u32 v4, v4, v5\nv_min3_u32 v4, v4, v6, v7\ns_nop 0\nv_readfirstlane_b32 s82, v4")
    spin(e, body, "s_cmp_lg_u32 s82, 0", sleep=1)
    st(e, "epid")
    e(f"s_setprio {yprio}")
    for t in range(ypre, NP - 1 if not deep else 20): yissue(t)
    if not deep:
        for x in c_list(1): e(x)
    yn = [NP - 1]
    e(f"s_add_u32 s31, s89, {SC}\nv_add_u32 v136, s31, v3\nv_xor_b32 v137, 0x2000, v136\nv_xor_b32 v138, 8, v20")
    for t in range(28):
        k = t >> 1
        if deep:
            if t == 12:
                for x in c_list(1)[:8]: e(x)
            if t == 16: e("s_waitcnt lgkmcnt(0)")
            if t == 20:
                for x in c_list(1)[8:]: e(x)
            if t == 24: e("s_waitcnt lgkmcnt(0)\ns_mov_b64 exec, 1\nds_add_u32 v18, v19 offset:92\ns_mov_b64 exec, -1")
            if t == 27: e("ds_read_b32 v1, v18 offset:92")
            D, qd = t >> 2, t & 3
            e.vm_wait({("A", t)})
            for cb in range(4):
                e(mf16(YA[qd >> 1] + 8*cb + 4*(qd & 1), yreg(t), creg(D) + 4*cb, D == 0))
                if cb == 0 and 1 <= t <= 4: yissue(t + 19)
                if cb == 0 and 13 <= t <= 16: yissue(t + 11)
            continue
        if t == 8: e("s_waitcnt lgkmcnt(0)\ns_mov_b64 exec, 1\nds_add_u32 v18, v19 offset:92\ns_mov_b64 exec, -1")
        if t == 24: e("ds_read_b32 v1, v18 offset:92")
        D, qd = ymap(t)
        if ych and t < 24:
            if t & 1: continue
            e.vm_wait({("A", t + 1)})
            for cb in range(4):
                for x in range(2): e(mf16(YA[qd >> 1] + 8*cb + 4*(qd & 1), yreg(t + x), creg(D + x) + 4*cb, D + x == 0))
                if cb < 2 and yn[0] < min(28, t + NP): yissue(yn[0]); yn[0] += 1
            continue
        e.vm_wait({("A", t)})
        for cb in range(4):
            e(mf16(YA[qd >> 1] + 8*cb + 4*(qd & 1), yreg(t), creg(D) + 4*cb, D == 0))
            if cb == 0 and yn[0] < min(28, t + NP): yissue(yn[0]); yn[0] += 1
    st(e, "yloop")
    e("s_waitcnt lgkmcnt(0)\nv_readfirstlane_b32 s82, v1\ns_cmp_ge_u32 s82, 4\ns_cbranch_scc1 K_c1ok")
    lds_wait(18, 92, "s_cmp_ge_u32 s82, 4", 1, sleep=0)
    e.label("K_c1ok")
    e("s_nop 5")
    for ps in range(2):
        for g in range(4): e(f"ds_write_b128 v136, v[{YA[ps]+16+4*g}:{YA[ps]+19+4*g}] offset:{ps*CH + g*1024}")
    e("ds_write_b32 v20, v19 offset:96")
    lds_wait(138, 96, "s_cmp_lg_u32 s82, 0", 1, sleep=0)
    st(e, "yw")
    for ps in range(2):
        for g in range(4): e(f"ds_read_b128 v[{YA[ps]+16+4*g}:{YA[ps]+19+4*g}], v137 offset:{ps*CH + g*1024}")
    e("s_waitcnt lgkmcnt(4)")
    Y = YA[0]
    for r in range(16): e(f"v_add_f32 v{Y+r}, v{Y+r}, v{Y+16+r}")
    for p in range(8): e(f"v_cvt_pk_bf16_f32 v{24+4*(p//3)+p%3}, v{Y+2*p}, v{Y+2*p+1}")
    for r in (27, 31, 34, 35): e(f"v_mov_b32 v{r}, s84")
    e("s_waitcnt lgkmcnt(0)\ns_mov_b64 exec, 1\nds_add_u32 v18, v19 offset:84\ns_mov_b64 exec, -1")
    st(e, "yx")
    e("s_setprio 0")
    Y = YA[1]
    def ysend(g): stores([f"buffer_store_dwordx4 v[{24+4*g}:{27+4*g}], v3, s[20:23], s77 offen offset:{g*1024}"], "px")
    if ymode == 0: ysend(0)
    if ymode == 1: [ysend(g) for g in range(3)]
    for r in range(16): e(f"v_add_f32 v{Y+r}, v{Y+r}, v{Y+16+r}")
    for r in range(8): e(f"v_lshlrev_b32 v{Y+16+2*r}, 16, v{128+r}\nv_and_b32 v{Y+17+2*r}, 0xffff0000, v{128+r}")
    if ymode == 0: ysend(1)
    for r in range(16): e(f"v_add_f32 v{Y+r}, v{Y+r}, v{Y+16+r}")
    lds_wait(18, 84, "s_cmp_ge_u32 s82, 4", 1, sleep=1)
    for g in range(4): e(f"ds_write_b128 v136, v[{Y+4*g}:{Y+3+4*g}] offset:{g*1024}")
    e("s_sub_u32 s31, s79, 16384\nv_add_u32 v11, s31, v3")
    for g in range(2): e(f"ds_write_b128 v11, v[{56+4*g}:{59+4*g}] offset:{g*1024}")
    e("ds_write_b32 v20, v19 offset:128")
    e.lg0()
    if ymode == 0: ysend(2)
    if ymode == 2:
        lds_wait(20, 48, "s_cmp_lg_u32 s82, 0", 1, sleep=2)
        for g in range(3): ysend(g)
    st(e, "ydone")
    e.lg0()
    e("s_barrier")
    st.dump(e); info["S"] = st.names
    e("s_endpgm")

    e.vm = []; e.lg = []
    e.label("K_SPARE")
    st = Stamper(stamps, 143)
    e(f"s_cmp_ge_u32 s2, {ng}\ns_cbranch_scc1 K_END\nv_mov_b32 v2, v0\nv_and_b32 v0, 63, v0\ns_lshr_b32 s3, s3, 6")
    e("v_lshlrev_b32 v7, 7, v2")
    e("s_sub_u32 s4, s2, 224\ns_lshr_b32 s5, s4, 1\ns_and_b32 s6, s4, 1")
    e("v_lshrrev_b32 v3, 4, v2\nv_and_b32 v4, 15, v2\nv_mul_u32_u24 v5, 0xe00, v3\nv_lshl_add_u32 v5, v4, 4, v5")
    e(f"v_mov_b32 v6, 0\ns_mov_b32 s82, {WS_EP}\ns_lshl_b32 s28, s5, 8")
    e("s_cmp_eq_u32 s6, 0")
    e("s_waitcnt lgkmcnt(0)")
    e("s_cselect_b32 s16, s52, s54\ns_cselect_b32 s17, s53, s55")
    e(f"s_and_b32 s17, s17, 0xffff\ns_mov_b32 s18, {448*3584}\ns_mov_b32 s19, 0x20000")
    srd(e, 20, 62, WS_LIM)
    srd(e, 8, 56, 1792 * 896)
    srd(e, 64, 42, 448 * 896)
    srd(e, 68, 44, 448 * 896)
    if late:
        e("s_cmp_lg_u32 s3, 0\ns_cbranch_scc1 K_sp6\nv_min_u32 v84, 6, v0\nv_lshlrev_b32 v84, 7, v84\ns_mov_b64 exec, 0x7f")
        for i, p in enumerate((34, 36, 46, 48, 58)): e(f"global_load_dword v{85+i}, v84, s[{p}:{p+1}]")
        e("s_mov_b64 exec, -1")
        e.label("K_sp6")
    e("s_cmp_ge_u32 s4, 28\ns_cbranch_scc1 K_sp4")
    e.vmem("buffer_load_dword v6, v6, s[20:23], s82 offen sc1", "ep")
    if sof >= 0:
        e(f"s_cmp_ge_u32 s5, 7\ns_cselect_b32 s29, 7, 0\ns_sub_u32 s29, s5, s29\ns_lshr_b32 s29, s29, 1\ns_add_u32 s29, s29, {sof}\ns_cmp_ge_u32 s29, 7\ns_cselect_b32 s30, 7, 0\ns_sub_u32 s29, s29, s30")
        e(f"s_add_u32 s31, s28, {448*3584}\ns_mul_i32 s29, s29, {64*3584}\ns_add_u32 s28, s28, s29")
    if spw: e.vm0()
    for i in range(14):
        e.vmem(f"buffer_load_dwordx4 v[{16+4*i}:{19+4*i}], v5, s[16:19], s28 offen", ("cs", i))
        if i < 13: e(f"s_add_u32 s28, s28, {32*3584}")
        if i < 13 and sof >= 0: e(f"s_cmp_ge_u32 s28, s31\ns_cselect_b32 s30, {448*3584}, 0\ns_sub_u32 s28, s28, s30")
        if spd and i >= spd - 1 and i < 6: e.vm_wait({("cs", i - spd + 1)})
    def do_warm():
        e("s_mul_i32 s28, s4, 57344\ns_mul_i32 s29, s4, 14336")
        e.vmem("buffer_load_dword v80, v7, s[8:11], s28 offen", "t")
        e("v_and_b32 v4, 0x3fff, v7\ns_cmp_lt_u32 s3, 2\ns_cselect_b32 s64, s64, s68\ns_cselect_b32 s65, s65, s69\ns_cmp_lt_u32 s3, 4\ns_cselect_b32 s66, s66, 0")
        e.vmem("buffer_load_dword v81, v4, s[64:67], s29 offen", "t")
    if warm == 1: do_warm()
    for q in range(8): e(f"v_mov_b32 v{8+q}, 0")
    for i in range(14):
        e.vm_wait({("cs", i)})
        for q in range(4):
            e(f"v_lshlrev_b32 v72, 16, v{16+4*i+q}\nv_and_b32 v73, 0xffff0000, v{16+4*i+q}\nv_pk_add_f32 v[{8+2*q}:{9+2*q}], v[{8+2*q}:{9+2*q}], v[72:73]")
    e("v_lshlrev_b32 v3, 5, v2")
    e("ds_write_b128 v3, v[8:11]\nds_write_b128 v3, v[12:15] offset:16\ns_waitcnt lgkmcnt(0)")
    st(e, "acc")
    e("s_barrier")
    e("s_cmp_lg_u32 s3, 7\ns_cbranch_scc1 K_sp2")
    e("v_lshlrev_b32 v3, 3, v0\nv_add_u32 v9, 1, v6\nv_max_u32 v9, 1, v9\nv_mov_b32 v11, v9")
    for h in range(2):
        for i in range(16): e(f"ds_read_b64 v[{16+2*i}:{17+2*i}], v3 offset:{(16*h+i)*512}")
        e("s_waitcnt lgkmcnt(0)")
        if h == 0: e("v_mov_b32 v12, 0\nv_mov_b32 v13, 0")
        for i in range(16): e(f"v_pk_add_f32 v[12:13], v[12:13], v[{16+2*i}:{17+2*i}]")
    e(f"v_mov_b32 v8, v12\nv_mov_b32 v10, v13\nv_lshlrev_b32 v3, 4, v0\ns_lshl_b32 s30, s4, 10\ns_add_u32 s30, s30, {WS_CS}")
    e("buffer_store_dwordx4 v[8:11], v3, s[20:23], s30 offen sc1")
    e.label("K_sp2")
    if warm in (2, 4, 5): do_warm()
    e.label("K_sp4")
    if warm >= 3:
        srd(e, 64, 42, 448 * 896)
        e("s_lshr_b32 s28, s4, 3\ns_mul_i32 s28, s28, 100352\ns_bfe_u32 s29, s4, 0x10002\ns_mul_i32 s30, s29, 384\ns_add_u32 s28, s28, s30")
        e("v_lshrrev_b32 v3, 2, v2\nv_mul_u32_u24 v3, 0x380, v3\nv_and_b32 v4, 3, v2\nv_lshl_add_u32 v3, v4, 7, v3")
        e("s_cmp_eq_u32 s3, 7\ns_cbranch_scc1 K_sp5")
        e("buffer_load_dword v81, v3, s[64:67], s28 offen\nbuffer_load_dword v82, v3, s[68:71], s28 offen")
        e.label("K_sp5")
        if warm in (3, 5):
            e(f"s_mul_i32 s28, s29, {7*UNIT}\ns_lshr_b32 s30, s4, 3\ns_mul_i32 s30, s30, {7*UNIT//4}\ns_add_u32 s28, s28, s30")
            for q in range(3): e(f"buffer_load_dword v{84+q}, v7, s[8:11], s28 offen\ns_add_u32 s28, s28, 65536")
    if retouch:
        e("s_getpc_b64 s[28:29]")
        e.label("K_PC2")
        e(f"s_sub_u32 s28, s28, K_PC2-{name}\ns_subb_u32 s29, s29, 0\nv_min_u32 v7, ALL_END-{name}-4, v7\nglobal_load_dword v83, v7, s[28:29] sc1")
    e.label("K_sp3")
    st.dump(e); info["sp"] = st.names
    e.label("K_END")
    e("s_endpgm")
    e.label("ALL_END")
    return khead(name) + e.text(), kd(name, 256, 256), info

if __name__ == "__main__":
    import sys, json
    NAME = "recurrent_scan__ssm_conv_s5__glu_gated_reglu__prompt_kernel"
    stamps = "stamps" in sys.argv
    kw = {}
    for a in sys.argv[2:]:
        if "=" in a:
            k, v = a.split("="); kw[k] = int(v) if v.lstrip("-").isdigit() else v
    b, d, info = gen_fused(NAME, stamps=stamps, **kw)
    hdr = open("recurrent_scan__ssm_conv_s5__glu_gated_reglu__prompt.s.ref").read().split("; Override")[0]
    txt = hdr + f"; @launch grid=({kw.get('ng', 252)},1,1) block=(512,1,1) lds={LDS_BYTES}\n"
    if stamps and "rt" in sys.argv: txt += "; RT\n"
    if stamps: txt += "; STAMPS " + json.dumps(info) + "\n"
    doc = """; ---------------------------------------------------------------------------------------------
;      The down / C GEMMs are split in two K halves over workgroup pairs which swap bf16 partials.
; ---------------------------------------------------------------------------------------------
"""
    txt += '.amdgcn_target "amdgcn-amd-amdhsa--gfx950"\n' + doc + b + d
    open(sys.argv[1], "w").write(txt)
```
